```python
import torch

def _softmax(x, axis=-1):
    return torch.softmax(x, dim=axis)
def _gelu(x):
    return torch.nn.functional.gelu(x, approximate="tanh")
def _silu(x):
    return torch.nn.functional.silu(x)
def _sigmoid(x):
    return torch.sigmoid(x)
def _layernorm(x, axis=-1, eps=1e-5):
    m = x.mean(dim=axis, keepdim=True)
    v = x.var(dim=axis, keepdim=True, unbiased=False)
    return (x - m) / torch.sqrt(v + eps)
def _scatter_add(tgt, idx, src, axis=0):
    return tgt.clone().index_add_(axis, idx, src)
def _segment_sum(src, seg, n):
    out = torch.zeros((n,) + src.shape[1:], dtype=src.dtype)
    return out.index_add_(0, seg, src)
def _pad(x, pw):
    flat = tuple(v for pair in reversed(pw) for v in pair)
    return torch.nn.functional.pad(x, flat)

kernel_name = 'gated_mix__compressed_kv_cla__dense_activation_mish__decode'

def setup_inputs():

    _w = (lambda a: (lambda t: t.to(torch.bfloat16) if t.is_floating_point() else t)(torch.as_tensor(a)))
    def _A_setup():
        B, H, Sq, Sk, D, M = 4, 32, 1, 4096, 128, 512
        Dc = 4 * D
        return {
            "x": _w((lambda *s: torch.randn(*s, dtype=torch.bfloat16) * 0.05)(B, Sq, M)),
            "c_kv": _w((lambda *s: torch.randn(*s, dtype=torch.bfloat16) * 0.4)(B, Sk, Dc)),
            "w_q": _w((lambda *s: torch.randn(*s, dtype=torch.bfloat16) * 12.8)(M, H, D) * (M ** -0.5)),
            "w_uk": _w((lambda *s: torch.randn(*s, dtype=torch.bfloat16) * 12.8)(Dc, H, D) * (Dc ** -0.5)),
            "w_uv": _w((lambda *s: torch.randn(*s, dtype=torch.bfloat16) * 0.4)(Dc, H, D) * (Dc ** -0.5)),
            "w_o": _w((lambda *s: torch.randn(*s, dtype=torch.bfloat16) * 0.4)(H, D, M) * ((H * D) ** -0.5)),
        }
    _A_in = _A_setup()

    def _B_setup():
        B, S, D, F = 4, 1, 512, 1376
        return {
            "x": _w((lambda *s: torch.randn(*s, dtype=torch.bfloat16) * 0.05)(B, S, D)),
            "w1": _w((lambda *s: torch.randn(*s, dtype=torch.bfloat16) * 12.8)(D, F) * (D ** -0.5)),
            "b1": _w((lambda *s: torch.randn(*s, dtype=torch.bfloat16) * 0.2)(F)),
            "w2": _w((lambda *s: torch.randn(*s, dtype=torch.bfloat16) * 0.05)(F, D) * (F ** -0.5)),
        }
    _B_in = _B_setup()

    return {
        "A_x": _A_in["x"],
        "A_c_kv": _A_in["c_kv"],
        "A_w_q": _A_in["w_q"],
        "A_w_uk": _A_in["w_uk"],
        "A_w_uv": _A_in["w_uv"],
        "A_w_o": _A_in["w_o"],
        "B_x": _B_in["x"],
        "B_w1": _B_in["w1"],
        "B_b1": _B_in["b1"],
        "B_w2": _B_in["w2"],
        "gate_w": _w((lambda *s: torch.randn(*s, dtype=torch.bfloat16) * 0.05)(512) * 16.0),
    }

def reference(A_x, A_c_kv, A_w_q, A_w_uk, A_w_uv, A_w_o, B_x, B_w1, B_b1, B_w2, gate_w):
    def _A_ref(x, c_kv, w_q, w_uk, w_uv, w_o):
        B, Sq, M = x.shape[0], x.shape[1], x.shape[2]
        Sk = c_kv.shape[1]
        H, D = w_q.shape[1], w_q.shape[2]
        q = torch.einsum("bqm,mhd->bhqd", x, w_q)
        k = torch.einsum("bkc,chd->bhkd", c_kv, w_uk)
        v = torch.einsum("bkc,chd->bhkd", c_kv, w_uv)
        scores = torch.einsum("bhqd,bhkd->bhqk", q, k) * (D ** -0.5)
        off = Sk - Sq
        qi = torch.arange(Sq)[:, None]
        kj = torch.arange(Sk)[None, :]
        cmask = kj <= (qi + off)
        scores = torch.where(cmask[None, None], scores, -1e9)
        p = _softmax(scores, axis=-1)
        ctx = torch.einsum("bhqk,bhkd->bhqd", p, v)
        return torch.einsum("bhqd,hdm->bqm", ctx, w_o)

    def _B_ref(x, w1, b1, w2):
        h = torch.einsum("bsd,df->bsf", x, w1) + b1
        sp = torch.log1p(torch.exp(-torch.abs(h))) + torch.where(h > 0, h, torch.zeros_like(h))
        act = h * torch.tanh(sp)
        return torch.einsum("bsf,fd->bsd", act, w2)

    x = A_x
    g = _sigmoid((x * gate_w).sum(-1, keepdims=True))
    a = _A_ref(x, A_c_kv, A_w_q, A_w_uk, A_w_uv, A_w_o)
    b = _B_ref(x, B_w1, B_b1, B_w2)
    return g * a + (1 - g) * b
```

```python
KNAME = "gated_mix__compressed_kv_cla__dense_activation_mish__decode_kernel"
HEADER = """; Kernarg layout (112 bytes, ptrs only, base s[0:1]):
"""
class Asm:
    def __init__(self):
        self.l = []
        self._lab = 0
    def __call__(self, s=""):
        for x in s.split("\n"):
            x = x.strip()
            if x: self.l.append(("" if x.endswith(":") else "    ") + x)
    def label(self, name): self.l.append(name + ":")
    def newlabel(self, base="L"):
        self._lab += 1
        return "%s_%d" % (base, self._lab)
    def c(self, s): self.l.append("    ; " + s)
    def text(self): return "\n".join(self.l) + "\n"
def v(a, n=1): return "v%d" % a if n == 1 else "v[%d:%d]" % (a, a + n - 1)
def s(a, n=1): return "s%d" % a if n == 1 else "s[%d:%d]" % (a, a + n - 1)
def a(x, n=1): return "a%d" % x if n == 1 else "a[%d:%d]" % (x, x + n - 1)
def wrap(kernels, launches, extra_header=""):
    o = HEADER + extra_header
    if len(launches) == 1 and launches[0][0] == KNAME:
        n, g, b, lds = launches[0]
        o += "; @launch grid=(%d,%d,%d) block=(%d,%d,%d) lds=%d\n" % (*g, *b, lds)
    else:
        for n, g, b, lds in launches:
            o += "; @launch kernel=%s grid=(%d,%d,%d) block=(%d,%d,%d) lds=%d\n" % (n, *g, *b, lds)
    o += '.amdgcn_target "amdgcn-amd-amdhsa--gfx950"\n.text\n'
    for n, body, nv, ns, acc in kernels:
        o += ".globl %s\n.p2align 8\n.type %s,@function\n%s:\n" % (n, n, n)
        o += body
    o += '.section .rodata,"a"\n'
    for n, body, nv, ns, acc in kernels:
        o += ".p2align 6\n.amdhsa_kernel %s\n" % n
        o += "  .amdhsa_next_free_vgpr %d\n  .amdhsa_next_free_sgpr %d\n  .amdhsa_accum_offset %d\n" % (nv, ns, acc)
        o += "  .amdhsa_group_segment_fixed_size 0\n  .amdhsa_kernarg_size 112\n  .amdhsa_user_sgpr_count 2\n  .amdhsa_user_sgpr_kernarg_segment_ptr 1\n  .amdhsa_system_sgpr_workgroup_id_x 1\n"
        o += "  .amdhsa_float_denorm_mode_32 3\n"
        o += ".end_amdhsa_kernel\n"
    return o
```

```python
import re
TRANS = ("v_exp_f32","v_log_f32","v_rcp_f32","v_rsq_f32","v_sqrt_f32","v_sin_f32","v_cos_f32","v_rcp_iflag_f32")
def regs(tok):
    tok = tok.strip()
    neg = tok.lstrip("-")
    m = re.fullmatch(r"abs\((.*)\)", neg)
    if m: neg = m.group(1)
    neg = neg.strip("|")
    m = re.fullmatch(r"([vsa])(\d+)", neg)
    if m: return {(m.group(1), int(m.group(2)))}
    m = re.fullmatch(r"([vsa])\[(\d+):(\d+)\]", neg)
    if m: return {(m.group(1), i) for i in range(int(m.group(2)), int(m.group(3)) + 1)}
    if neg == "vcc": return {("s", 106), ("s", 107)}
    if neg == "vcc_lo": return {("s", 106)}
    if neg == "vcc_hi": return {("s", 107)}
    if neg == "m0": return {("s", 124)}
    if neg == "exec": return {("s", 126), ("s", 127)}
    return set()
def split_ops(rest):
    out = []; depth = 0; cur = ""
    for ch in rest:
        if ch == "[": depth += 1
        if ch == "]": depth -= 1
        if ch == "," and depth == 0:
            out.append(cur.strip()); cur = ""
        else: cur += ch
    if cur.strip(): out.append(cur.strip())
    return out
class I:
    pass
def parse(line):
    s = line.split(";")[0].strip()
    if not s or s.endswith(":") or s.startswith("."): return None
    p = s.split(None, 1)
    mn = p[0]; rest = p[1] if len(p) > 1 else ""
    ops = split_ops(rest)
    mods = ""
    if ops:
        q = ops[-1].split()
        ops[-1] = q[0] if q else ""
        mods = " ".join(q[1:])
    i = I(); i.mn = mn; i.ops = ops; i.mods = mods; i.text = s
    i.w = set(); i.r = set(); i.kind = "other"; i.srcC = set(); i.srcAB = set(); i.dppsrc = set(); i.storedata = set()
    R = lambda k: regs(ops[k]) if k < len(ops) else set()
    allr = lambda a: set().union(*[regs(o) for o in ops[a:]]) if len(ops) > a else set()
    base = mn.replace("_e32", "").replace("_e64", "")
    if mn.startswith("v_mfma"):
        i.kind = "mfma"; i.w = R(0); i.srcAB = R(1) | R(2); i.srcC = R(3); i.r = i.srcAB | i.srcC
    elif mn.startswith("v_permlane"):
        i.kind = "perml"; i.w = R(0) | R(1); i.r = R(0) | R(1)
    elif mn.startswith("v_swap"):
        i.kind = "valu"; i.w = R(0) | R(1); i.r = R(0) | R(1)
    elif mn.startswith("v_readlane") or mn.startswith("v_readfirstlane"):
        i.kind = "readlane"; i.w = R(0); i.r = allr(1)
    elif mn.startswith("v_cmp"):
        i.kind = "valu"; i.w = R(0); i.r = allr(1)
    elif mn.startswith("v_"):
        i.kind = "trans" if base in TRANS else "valu"
        i.w = R(0); i.r = allr(1)
        if base.startswith("v_add_co") or base.startswith("v_addc_co") or base.startswith("v_sub_co"):
            i.w |= R(1); i.r = allr(2)
        if base in ("v_fmac_f32","v_dot2c_f32_bf16","v_writelane_b32") or "_dpp" in mn: i.r |= R(0)
        if base.startswith("v_cndmask") and len(ops) == 3: i.r |= regs("vcc")
        if "_dpp" in mn:
            i.dpp = True; i.dppsrc = R(1)
    elif mn.startswith("buffer_") or mn.startswith("global_"):
        i.kind = "vmem"
        lds = " lds" in (" " + mods)
        if mn.startswith("buffer_load") and not lds:
            i.w = R(0); i.r = allr(1)
        elif mn.startswith("buffer_load"):
            i.r = allr(0); i.lds = True
        elif mn.startswith("global_load_lds"):
            i.r = allr(0); i.lds = True
        elif mn.startswith("global_load"):
            i.w = R(0); i.r = allr(1)
        elif mn.startswith("buffer_store") or mn.startswith("buffer_atomic"):
            i.r = allr(0)
            if "x4" in mn or "x3" in mn: i.storedata = R(0)
        elif mn.startswith("global_store") or mn.startswith("global_atomic"):
            i.r = allr(0)
            if "x4" in mn or "x3" in mn: i.storedata = R(1)
        else: i.r = allr(0)
    elif mn.startswith("ds_"):
        i.kind = "ds"
        if mn.startswith("ds_read") or mn.startswith("ds_bpermute") or mn.startswith("ds_permute") or mn.startswith("ds_swizzle"):
            i.w = R(0); i.r = allr(1)
        else: i.r = allr(0)
    elif mn == "s_nop":
        i.kind = "nop"; i.n = int(ops[0], 0) + 1
    elif mn.startswith("s_"):
        i.kind = "salu"
        if mn.startswith("s_cmp") or mn.startswith("s_cbranch") or mn in ("s_branch","s_barrier","s_waitcnt","s_endpgm","s_sleep","s_setprio"):
            i.r = allr(0)
        else:
            i.w = R(0); i.r = allr(1)
    return i
VAL = ("valu", "trans", "perml", "readlane")
def need(prev, cur):
    n = 0
    pv = {x for x in prev.w if x[0] in "va"}
    ps = {x for x in prev.w if x[0] == "s"}
    if prev.kind in VAL:
        if cur.kind == "mfma" and pv & cur.r: n = max(n, 2)
        if cur.dppsrc & pv: n = max(n, 2)
        if cur.kind == "perml" and pv & cur.r: n = max(n, 2)
        if cur.kind == "readlane" and pv & cur.r: n = max(n, 1)
        if prev.kind == "trans" and cur.kind in ("valu", "perml", "readlane", "mfma") and pv & cur.r: n = max(n, 1)
        if ps:
            cs = {x for x in cur.r if x[0] == "s"}
            if ps & cs:
                if cur.kind == "vmem": n = max(n, 5)
                elif cur.kind == "readlane": n = max(n, 4)
                elif cur.kind in VAL or cur.kind == "mfma": n = max(n, 2)
    if prev.kind == "mfma":
        D = prev.w
        if cur.kind == "mfma":
            if D & cur.srcAB: n = max(n, 8)
            if D & cur.srcC and cur.srcC != D: n = max(n, 6)
            if D & cur.w and cur.w != D and not (D & cur.srcC): n = max(n, 8)
        else:
            if D & (cur.r | cur.w): n = max(n, 8)
        if cur.kind in VAL and prev.srcC & cur.w: n = max(n, 3)
    if prev.kind == "vmem" and prev.storedata:
        if prev.storedata & cur.w: n = max(n, 2 if cur.kind in VAL else 1)
    if prev.kind == "salu" and ("s", 124) in prev.w and getattr(cur, "lds", False): n = max(n, 1)
    return n
def fix(lines, verbose=False):
    out = []; hist = []
    pos = 0; added = 0
    for ln in lines:
        st = ln.split(";")[0].strip()
        i = parse(ln)
        if i is None:
            out.append(ln); continue
        if i.kind == "nop":
            out.append(ln); pos += i.n; continue
        req = 0
        for p, pp in hist[-24:]:
            nd = need(p, i)
            if nd:
                have = pos - pp - 1
                req = max(req, nd - have)
        if req > 0:
            out.append("    s_nop %d" % (req - 1)); pos += req; added += req
        out.append(ln); hist.append((i, pos)); pos += 1
    if verbose: print("hazard: added %d wait states" % added)
    return out
```

```python
import sys; sys.path.insert(0, "dev")
from asmlib import *
import hazard

WS_E, WS_QA, WS_QC, WS_ST, WS_OP, WS_FD, WS_FC, WS_DBG = 0, 0x10000, 0x30000, 0x40000, 0x100000, 0x500000, 0x680000, 0x800000
PITCH = 1056
L_KV = 0
L_QL = 128 * PITCH
L_RED = L_QL
L_MISC = L_QL + 16 * PITCH
L_QB = L_MISC
L_MX = L_MISC + 1024
L_LS = L_MISC + 1280
L_G  = L_MISC + 1536
L_PB = L_MISC + 2048
L_CC = L_MISC + 6144
L_HR = L_MISC + 6656
L_FR = L_MISC + 8704
L_CT = L_KV
LDS_SIZE = L_MISC + 9216
NPROD = 299
NSLOT = 320
MLP0 = 64
NMLP = 43
HASH_K, HASH_C = 0x9E3779B1, 0x7F4A7C15
SCALE = (128 ** -0.5) * 1.4426950408889634
LOG2E = 1.4426950408889634

sX, sKV, sWQ, sWUK, sWUV, sWO, sW1, sB1, sW2, sGW, sOUT, sWS = 8, 12, 16, 20, 24, 28, 32, 36, 40, 44, 48, 52
sW, sXCD, sR, sHG, sJ, sH, sB, sKC, sNONCE, sE = 56, 57, 58, 59, 60, 61, 62, 63, 64, 65
sT0, sT1, sT2, sT3, sT4, sT5 = 66, 67, 68, 69, 70, 71
sCNT = 72
sEX = 74
sM0 = 76
sM1 = 78
sTS = 80
sM2, sM3 = 4, 6
POLL_MAX = 20000

def f2u(x):
    import struct
    return struct.unpack("<I", struct.pack("<f", x))[0]

class Cfg:
    nt_w = True
    ts = False
    stop = None
    prefetch_code = True

def srd(A, sr, karg_off, size):
    A(f"s_load_dwordx2 {s(sr,2)}, s[0:1], {karg_off}")
def srd_fin(A, sr, size):
    A(f"s_mov_b32 {s(sr+2)}, {hex(size)}")
    A(f"s_mov_b32 {s(sr+3)}, 0x20000")

def stamp(A, cfg, k):
    if cfg.ts:
        A(f"s_memrealtime {s(sTS+2*k,2)}")

def xreduce_rows(A, op, x, tmp):
    A(f"v_mov_b32 {v(tmp)}, {v(x)}")
    A(f"v_permlane16_swap_b32 {v(x)}, {v(tmp)}")
    A(f"{op} {v(x)}, {v(x)}, {v(tmp)}")
    A(f"v_mov_b32 {v(tmp)}, {v(x)}")
    A(f"v_permlane32_swap_b32 {v(x)}, {v(tmp)}")
    A(f"{op} {v(x)}, {v(x)}, {v(tmp)}")

def xreduce_rows2(A, op0, x0, t0, op1, x1, t1):
    for sw in ("v_permlane16_swap_b32", "v_permlane32_swap_b32"):
        A(f"v_mov_b32 {v(t0)}, {v(x0)}")
        A(f"v_mov_b32 {v(t1)}, {v(x1)}")
        A(f"{sw} {v(x0)}, {v(t0)}")
        A(f"{sw} {v(x1)}, {v(t1)}")
        A(f"{op0} {v(x0)}, {v(x0)}, {v(t0)}")
        A(f"{op1} {v(x1)}, {v(x1)}, {v(t1)}")

def wave_sum_u32(A, x, t):
    for d in ("quad_perm:[1,0,3,2]", "quad_perm:[2,3,0,1]", "row_half_mirror", "row_mirror"):
        A(f"v_add_u32_dpp {v(x)}, {v(x)}, {v(x)} {d} row_mask:0xf bank_mask:0xf")
    xreduce_rows(A, "v_add_u32", x, t)

def sum_dwords(A, dst, regs):
    regs = list(regs)
    A(f"v_add3_u32 {v(dst)}, {v(regs[0])}, {v(regs[1])}, {v(regs[2])}")
    k = 3
    while k + 1 < len(regs):
        A(f"v_add3_u32 {v(dst)}, {v(dst)}, {v(regs[k])}, {v(regs[k+1])}"); k += 2
    if k < len(regs):
        A(f"v_add_u32 {v(dst)}, {v(dst)}, {v(regs[k])}")

def make_sels(A, vn, vsel, vt):
    A(f"v_and_b32 {v(vt)}, 3, {v(vn)}")
    A(f"v_mov_b32 {v(vt+1)}, 0x0c0c0c0c")
    pats = [(0, 0x0c0c0100, 1, 0x01000c0c), (2, 0x0c0c0100, 3, 0x01000c0c), (0, 0x0c0c0302, 1, 0x03020c0c), (2, 0x0c0c0302, 3, 0x03020c0c)]
    for k, (j0, p0, j1, p1) in enumerate(pats):
        A(f"v_mov_b32 {v(vt+2)}, {hex(p0)}")
        A(f"v_cmp_eq_u32 vcc, {j0}, {v(vt)}")
        A(f"v_cndmask_b32 {v(vsel+k)}, {v(vt+1)}, {v(vt+2)}, vcc")
        A(f"v_mov_b32 {v(vt+2)}, {hex(p1)}")
        A(f"v_cmp_eq_u32 vcc, {j1}, {v(vt)}")
        A(f"v_cndmask_b32 {v(vsel+k)}, {v(vsel+k)}, {v(vt+2)}, vcc")

def sel_gemm_step(A, xp, vsel, af, wreg, dx, dy, first, swap=True):
    if swap:
        A(f"v_swap_b32 {v(wreg+2)}, {v(wreg+4)}")
        A(f"v_swap_b32 {v(wreg+3)}, {v(wreg+5)}")
    for k in range(4):
        A(f"v_perm_b32 {v(af+k)}, {v(xp)}, {v(xp)}, {v(vsel+k)}")
    c0 = "0" if first else v(dx,4)
    c1 = "0" if first else v(dy,4)
    A(f"v_mfma_f32_16x16x32_bf16 {v(dx,4)}, {v(af,4)}, {v(wreg,4)}, {c0}")
    A(f"v_mfma_f32_16x16x32_bf16 {v(dy,4)}, {v(af,4)}, {v(wreg+4,4)}, {c1}")

def poll_head(A, name):
    lab = A.newlabel(name)
    A(f"s_mov_b32 {s(sCNT)}, 0")
    A.label(lab)
    return lab
def poll_tail(A, lab, bad_pair):
    done = A.newlabel("done")
    A(f"s_cmp_eq_u64 {s(bad_pair,2)}, 0")
    A(f"s_cbranch_scc1 {done}")
    A(f"s_add_u32 {s(sCNT)}, {s(sCNT)}, 1")
    A(f"s_cmp_lt_u32 {s(sCNT)}, {POLL_MAX}")
    A(f"s_cbranch_scc1 {lab}")
    A.label(done)

def publish_final(A, cfg, dx, dy, vscale, vprod_off, vchk_off, pk, t):
    for k in range(4):
        A(f"v_mul_f32 {v(dx+k)}, {v(dx+k)}, {v(vscale)}")
        A(f"v_mul_f32 {v(dy+k)}, {v(dy+k)}, {v(vscale)}")
    A(f"v_cvt_pk_bf16_f32 {v(pk)}, {v(dx)}, {v(dx+1)}")
    A(f"v_cvt_pk_bf16_f32 {v(pk+1)}, {v(dx+2)}, {v(dx+3)}")
    A(f"v_cvt_pk_bf16_f32 {v(pk+2)}, {v(dy)}, {v(dy+1)}")
    A(f"v_cvt_pk_bf16_f32 {v(pk+3)}, {v(dy+2)}, {v(dy+3)}")
    A(f"buffer_store_dwordx4 {v(pk,4)}, {v(vprod_off)}, {s(sWS,4)}, 0 offen sc1")
    sum_dwords(A, t, [pk, pk+1, pk+2, pk+3])
    A(f"v_add_u32_dpp {v(t)}, {v(t)}, {v(t)} quad_perm:[1,0,3,2] row_mask:0xf bank_mask:0xf")
    A(f"v_add_u32_dpp {v(t)}, {v(t)}, {v(t)} quad_perm:[2,3,0,1] row_mask:0xf bank_mask:0xf")
    A(f"v_add_u32 {v(t+1)}, {s(sNONCE)}, {v(t)}")
    A(f"s_mov_b64 {s(sEX,2)}, exec")
    A(f"s_mov_b32 exec_lo, 0x11111111")
    A(f"s_mov_b32 exec_hi, 0x11111111")
    A(f"buffer_store_dwordx2 {v(t,2)}, {v(vchk_off)}, {s(sWS,4)}, 0 offen sc1")
    A(f"s_mov_b64 exec, {s(sEX,2)}")

def final_offsets(A, vn, vq, s_ct, s_prod, voff, vchk, t):
    A(f"v_lshrrev_b32 {v(t)}, 2, {v(vn)}")
    A(f"v_lshl_add_u32 {v(t)}, {v(vq)}, 4, {v(t)}")
    A(f"s_lshl_b32 {s(sT0)}, {s(s_ct)}, 2")
    A(f"v_add_u32 {v(t)}, {s(sT0)}, {v(t)}")
    A(f"s_movk_i32 {s(sT1)}, {NSLOT}")
    A(f"v_mul_lo_u32 {v(t)}, {v(t)}, {s(sT1)}")
    A(f"v_add_u32 {v(t)}, {s(s_prod)}, {v(t)}")
    A(f"v_lshlrev_b32 {v(vchk)}, 3, {v(t)}")
    A(f"v_add_u32 {v(vchk)}, {hex(WS_FC)}, {v(vchk)}")
    A(f"v_and_b32 {v(t+1)}, 3, {v(vn)}")
    A(f"v_lshlrev_b32 {v(t+1)}, 4, {v(t+1)}")
    A(f"v_lshl_add_u32 {v(voff)}, {v(t)}, 6, {v(t+1)}")
    A(f"v_add_u32 {v(voff)}, {hex(WS_FD)}, {v(voff)}")

def gen(cfg):
    A = Asm()
    NT = " nt" if cfg.nt_w else ""
    vL, vN, vS = 0, 1, 2
    vSEL = 4
    A(f"s_cmp_ge_u32 s2, 256")
    A(f"s_cbranch_scc1 L_exit")
    for sr, off in ((sX,0),(sWQ,16),(sWUK,24),(sWS,104),(sKV,8),(sWUV,32),(sWO,40),(sW1,56),(sB1,64),(sW2,72),(sGW,80),(sOUT,88)):
        srd(A, sr, off, 0)
    stamp(A, cfg, 0)
    A(f"v_lshrrev_b32 v3, 6, v0")
    A(f"v_and_b32 {v(vL)}, 63, v0")
    A(f"v_readfirstlane_b32 {s(sW)}, v3")
    A(f"v_and_b32 {v(vN)}, 15, {v(vL)}")
    A(f"v_lshrrev_b32 {v(vS)}, 4, {v(vL)}")
    A(f"s_and_b32 {s(sXCD)}, s2, 7")
    A(f"s_lshr_b32 {s(sR)}, s2, 3")
    A(f"s_and_b32 {s(sHG)}, {s(sR)}, 1")
    A(f"s_bfe_u32 {s(sJ)}, {s(sR)}, 0x30001")
    A(f"s_lshr_b32 {s(sT0)}, {s(sR)}, 4")
    A(f"s_lshl_b32 {s(sT1)}, {s(sXCD)}, 1")
    A(f"s_add_u32 {s(sT1)}, {s(sT1)}, {s(sT0)}")
    A(f"s_lshl_b32 {s(sT0)}, {s(sHG)}, 4")
    A(f"s_add_u32 {s(sH)}, {s(sT0)}, {s(sT1)}")
    A(f"s_lshr_b32 {s(sB)}, {s(sXCD)}, 1")
    A(f"s_and_b32 {s(sT0)}, {s(sXCD)}, 1")
    A(f"s_lshl_b32 {s(sT0)}, {s(sT0)}, 4")
    A(f"s_lshr_b32 {s(sT1)}, {s(sR)}, 1")
    A(f"s_add_u32 {s(sKC)}, {s(sT0)}, {s(sT1)}")
    for sr, size in ((sX,4096),(sWQ,4<<20),(sWUK,4<<20),(sWS,256<<20),(sKV,16<<20),(sWUV,4<<20),(sWO,4<<20),(sW1,512*2752),(sB1,2752),(sW2,1376*1024),(sGW,1024),(sOUT,4096)):
        srd_fin(A, sr, size)
    A(f"s_cmp_ge_u32 {s(sW)}, 4")
    A(f"s_cbranch_scc1 L_Lpath")
    vXP, vAF0, vAF1, vQX, vQY, vT = 8, 24, 28, 32, 36, 40
    vWUK, vWQ = 64, 128
    vA0, vA1, vA2 = 40, 41, 42
    vE = 3
    A(f"v_lshrrev_b32 {v(vA0)}, 2, {v(vN)}")
    A(f"v_lshlrev_b32 {v(vA0)}, 10, {v(vA0)}")
    A(f"v_lshl_add_u32 {v(vA0)}, {v(vS)}, 6, {v(vA0)}")
    A(f"s_lshl_b32 {s(sT0)}, {s(sW)}, 8")
    A(f"v_add_u32 {v(vA0)}, {s(sT0)}, {v(vA0)}")
    A(f"s_lshl_b32 {s(sT0)}, {s(sW)}, 20")
    A(f"s_lshl_b32 {s(sT1)}, {s(sH)}, 8")
    A(f"s_add_u32 {s(sT0)}, {s(sT0)}, {s(sT1)}")
    A(f"v_lshlrev_b32 {v(vA1)}, 18, {v(vS)}")
    A(f"v_lshl_add_u32 {v(vA1)}, {v(vN)}, 4, {v(vA1)}")
    A(f"v_add_u32 {v(vA1)}, {s(sT0)}, {v(vA1)}")
    A(f"v_lshrrev_b32 {v(vA2)}, 2, {v(vN)}")
    A(f"v_lshlrev_b32 {v(vA2)}, 4, {v(vA2)}")
    A(f"v_and_b32 v43, 3, {v(vN)}")
    A(f"v_add_u32 {v(vA2)}, {v(vA2)}, v43")
    A(f"v_lshlrev_b32 {v(vA2)}, 13, {v(vA2)}")
    A(f"v_lshl_add_u32 {v(vA2)}, {v(vS)}, 4, {v(vA2)}")
    A(f"s_lshl_b32 {s(sT0)}, {s(sJ)}, 19")
    A(f"s_add_u32 {s(sT0)}, {s(sT0)}, {s(sT1)}")
    A(f"v_add_u32 {v(vA2)}, {s(sT0)}, {v(vA2)}")
    A(f"v_mov_b32 v43, 0")
    A(f"s_waitcnt lgkmcnt(0)")
    A(f"buffer_load_dword {v(vE)}, v43, {s(sWS,4)}, 0 offen sc1")
    for k in range(4):
        A(f"buffer_load_dwordx4 {v(vXP+4*k,4)}, {v(vA0)}, {s(sX,4)}, 0 offen offset:{16*k}")
    A(f"s_cmp_lg_u32 {s(sW)}, 0")
    A(f"s_cbranch_scc1 L_nowuk")
    A(f"s_mov_b32 {s(sT2)}, 0")
    for T in range(4):
        for t in range(4):
            A(f"buffer_load_dwordx4 {v(vWUK+16*T+4*t,4)}, {v(vA2)}, {s(sWUK,4)}, {s(sT2)} offen offset:{64*t}{NT}")
        if T < 3: A(f"s_add_u32 {s(sT2)}, {s(sT2)}, 32768")
    A.label("L_nowuk")
    A(f"s_mov_b32 {s(sT2)}, 0")
    for k in range(32):
        A(f"buffer_load_dwordx4 {v(vWQ+4*k,4)}, {v(vA1)}, {s(sWQ,4)}, {s(sT2)} offen{NT}")
        if k < 31: A(f"s_add_u32 {s(sT2)}, {s(sT2)}, 8192")
    A(f"s_barrier")
    make_sels(A, vN, vSEL, vT)
    A(f"s_waitcnt vmcnt(32)")
    A(f"v_readfirstlane_b32 {s(sE)}, {v(vE)}")
    A(f"s_mul_i32 {s(sNONCE)}, {s(sE)}, {hex(HASH_K)}")
    A(f"s_add_u32 {s(sNONCE)}, {s(sNONCE)}, {hex(HASH_C)}")
    for t in range(16):
        A(f"s_waitcnt vmcnt({30-2*t})")
        sel_gemm_step(A, vXP+t, vSEL, vAF0 if t % 2 == 0 else vAF1, vWQ+8*t, vQX, vQY, t == 0)
    stamp(A, cfg, 1)
    A(f"v_lshlrev_b32 {v(vA0)}, 9, {v(vS)}")
    A(f"v_lshl_add_u32 {v(vA0)}, {v(vN)}, 5, {v(vA0)}")
    A(f"s_lshl_b32 {s(sT0)}, {s(sW)}, 11")
    A(f"s_add_u32 {s(sT0)}, {s(sT0)}, {L_RED}")
    A(f"v_add_u32 {v(vA0)}, {s(sT0)}, {v(vA0)}")
    A(f"ds_write_b128 {v(vA0)}, {v(vQX,4)}")
    A(f"ds_write_b128 {v(vA0)}, {v(vQY,4)} offset:16")
    A(f"s_waitcnt lgkmcnt(0)")
    A(f"s_barrier")
    A(f"s_lshl_b32 {s(sT0)}, {s(sW)}, 6")
    A(f"v_add_u32 {v(vA1)}, {s(sT0)}, {v(vL)}")
    A(f"v_lshlrev_b32 {v(vA0)}, 3, {v(vA1)}")
    A(f"v_add_u32 {v(vA0)}, {L_RED}, {v(vA0)}")
    for ww in range(4):
        A(f"ds_read_b64 {v(44+2*ww,2)}, {v(vA0)} offset:{2048*ww}")
    A(f"v_lshlrev_b32 {v(vA1)}, 2, {v(vA1)}")
    A(f"v_add_u32 {v(vA1)}, {L_QB}, {v(vA1)}")
    A(f"s_waitcnt lgkmcnt(2)")
    A(f"v_add_f32 v44, v44, v46")
    A(f"v_add_f32 v45, v45, v47")
    A(f"s_waitcnt lgkmcnt(0)")
    A(f"v_add_f32 v48, v48, v50")
    A(f"v_add_f32 v49, v49, v51")
    A(f"v_add_f32 v44, v44, v48")
    A(f"v_add_f32 v45, v45, v49")
    A(f"v_cvt_pk_bf16_f32 v44, v44, v45")
    A(f"ds_write_b32 {v(vA1)}, v44")
    A(f"s_waitcnt lgkmcnt(0)")
    A(f"s_barrier")
    A(f"s_cmp_lg_u32 {s(sW)}, 0")
    A(f"s_cbranch_scc1 L_noqabs")
    vQF4 = 128
    vD = 144
    vPK = 160
    A(f"v_and_b32 {v(vA0)}, 3, {v(vN)}")
    A(f"v_lshlrev_b32 {v(vA0)}, 8, {v(vA0)}")
    A(f"v_lshl_add_u32 {v(vA0)}, {v(vS)}, 4, {v(vA0)}")
    A(f"v_add_u32 {v(vA0)}, {L_QB}, {v(vA0)}")
    for t in range(4):
        A(f"ds_read_b128 {v(vQF4+4*t,4)}, {v(vA0)} offset:{64*t}")
    A(f"s_and_b32 {s(sT0)}, {s(sH)}, 15")
    A(f"s_lshl_b32 {s(sT1)}, {s(sHG)}, 4")
    A(f"s_add_u32 {s(sT0)}, {s(sT0)}, {s(sT1)}")
    A(f"v_lshl_add_u32 {v(vA1)}, {v(vN)}, 5, {s(sT0)}")
    A(f"v_lshlrev_b32 {v(vA2)}, 3, {v(vA1)}")
    A(f"v_add_u32 {v(vA2)}, {s(sJ)}, {v(vA2)}")
    A(f"v_lshlrev_b32 {v(vA2)}, 3, {v(vA2)}")
    A(f"v_add_u32 {v(vA2)}, {hex(WS_QC)}, {v(vA2)}")
    A(f"v_lshlrev_b32 {v(vA1)}, 10, {v(vA1)}")
    A(f"v_lshl_add_u32 {v(vA1)}, {v(vS)}, 5, {v(vA1)}")
    A(f"s_lshl_b32 {s(sT0)}, {s(sJ)}, 7")
    A(f"s_add_u32 {s(sT0)}, {s(sT0)}, {hex(WS_QA)}")
    A(f"v_add_u32 {v(vA1)}, {s(sT0)}, {v(vA1)}")
    for t in range(4):
        A(f"s_waitcnt lgkmcnt({3-t})")
        for T in range(4):
            c = "0" if t == 0 else v(vD+4*T,4)
            A(f"v_mfma_f32_16x16x32_bf16 {v(vD+4*T,4)}, {v(vWUK+16*T+4*t,4)}, {v(vQF4+4*t,4)}, {c}")
    A(f"s_mov_b32 {s(sT0)}, {hex(f2u(SCALE))}")
    for k in range(16):
        A(f"v_mul_f32 {v(vD+k)}, {s(sT0)}, {v(vD+k)}")
    for k in range(8):
        A(f"v_cvt_pk_bf16_f32 {v(vPK+k)}, {v(vD+2*k)}, {v(vD+2*k+1)}")
    A(f"s_mov_b64 {s(sEX,2)}, exec")
    A(f"s_mov_b32 exec_lo, 0x000f000f")
    A(f"s_mov_b32 exec_hi, 0x000f000f")
    A(f"buffer_store_dwordx4 {v(vPK,4)}, {v(vA1)}, {s(sWS,4)}, 0 offen sc1")
    A(f"buffer_store_dwordx4 {v(vPK+4,4)}, {v(vA1)}, {s(sWS,4)}, 0 offen offset:16 sc1")
    A(f"s_mov_b64 exec, {s(sEX,2)}")
    sum_dwords(A, 44, range(vPK, vPK+8))
    xreduce_rows(A, "v_add_u32", 44, 46)
    A(f"v_add_u32 v45, {s(sNONCE)}, v44")
    A(f"s_mov_b64 exec, 0xf")
    A(f"buffer_store_dwordx2 v[44:45], {v(vA2)}, {s(sWS,4)}, 0 offen sc1")
    A(f"s_mov_b64 exec, {s(sEX,2)}")
    A.label("L_noqabs")
    stamp(A, cfg, 2)
    vQG, vQC = 64, 80
    A(f"s_lshl_b32 {s(sT0)}, {s(sB)}, 1")
    A(f"s_add_u32 {s(sT0)}, {s(sT0)}, {s(sHG)}")
    A(f"s_lshl_b32 {s(sT0)}, {s(sT0)}, 4")
    A(f"s_lshl_b32 {s(sT1)}, {s(sW)}, 2")
    A(f"s_add_u32 {s(sT0)}, {s(sT0)}, {s(sT1)}")
    A(f"s_lshl_b32 {s(sT1)}, {s(sT0)}, 10")
    A(f"s_add_u32 {s(sT1)}, {s(sT1)}, {hex(WS_QA)}")
    A(f"v_lshl_add_u32 {v(vA0)}, {v(vL)}, 4, {s(sT1)}")
    A(f"s_lshl_b32 {s(sT1)}, {s(sT0)}, 6")
    A(f"s_add_u32 {s(sT1)}, {s(sT1)}, {hex(WS_QC)}")
    A(f"v_lshl_add_u32 {v(vA1)}, {v(vL)}, 3, {s(sT1)}")
    A(f"v_cmp_lt_u32 {s(sM0,2)}, {v(vL)}, 32")
    A(f"v_mov_b32 v43, 0x7ffffff0")
    A(f"v_cndmask_b32 {v(vA1)}, v43, {v(vA1)}, {s(sM0,2)}")
    A(f"s_mul_i32 {s(sT1)}, {s(sW)}, {4*PITCH}")
    A(f"s_add_u32 {s(sT1)}, {s(sT1)}, {L_QL}")
    A(f"v_lshl_add_u32 {v(vA2)}, {v(vL)}, 4, {s(sT1)}")
    lab = poll_head(A, "L_hop2")
    for i in range(4):
        A(f"buffer_load_dwordx4 {v(vQG+4*i,4)}, {v(vA0)}, {s(sWS,4)}, 0 offen offset:{1024*i} sc1")
    A(f"buffer_load_dwordx2 {v(vQC,2)}, {v(vA1)}, {s(sWS,4)}, 0 offen sc1")
    A(f"s_waitcnt vmcnt(0)")
    sum_dwords(A, 44, range(vQG, vQG+16))
    A(f"v_sub_u32 v44, v44, {v(vQC)}")
    A(f"v_add_u32 v45, {s(sNONCE)}, {v(vQC)}")
    A(f"v_cmp_ne_u32 vcc, v45, {v(vQC+1)}")
    wave_sum_u32(A, 44, 46)
    A(f"s_and_b64 {s(sM1,2)}, vcc, {s(sM0,2)}")
    A(f"v_cmp_ne_u32 vcc, 0, v44")
    A(f"s_or_b64 {s(sM1,2)}, {s(sM1,2)}, vcc")
    poll_tail(A, lab, sM1)
    for i in range(4):
        A(f"ds_write_b128 {v(vA2)}, {v(vQG+4*i,4)} offset:{PITCH*i}")
    stamp(A, cfg, 3)
    vW1, vW2, vB1 = 192, 224, 56
    A(f"s_sub_u32 {s(sT4)}, s2, {MLP0}")
    A(f"s_cmp_ge_u32 {s(sT4)}, {NMLP}")
    A(f"s_cbranch_scc1 L_nomlpload")
    A(f"s_lshl_b32 {s(sT0)}, {s(sW)}, 7")
    A(f"v_lshl_add_u32 {v(vA0)}, {v(vS)}, 5, {s(sT0)}")
    A(f"s_movk_i32 {s(sT1)}, 2752")
    A(f"v_mul_lo_u32 {v(vA0)}, {v(vA0)}, {s(sT1)}")
    A(f"s_lshl_b32 {s(sT0)}, {s(sT4)}, 6")
    A(f"v_lshl_add_u32 {v(vA0)}, {v(vN)}, 2, {v(vA0)}")
    A(f"v_add_u32 {v(vA0)}, {s(sT0)}, {v(vA0)}")
    A(f"s_mov_b32 {s(sT2)}, 0")
    for k in range(32):
        A(f"buffer_load_dword {v(vW1+k)}, {v(vA0)}, {s(sW1,4)}, {s(sT2)} offen{NT}")
        if k < 31: A(f"s_add_u32 {s(sT2)}, {s(sT2)}, 2752")
    A(f"s_lshl_b32 {s(sT0)}, {s(sT4)}, 15")
    A(f"s_lshl_b32 {s(sT1)}, {s(sW)}, 8")
    A(f"s_add_u32 {s(sT0)}, {s(sT0)}, {s(sT1)}")
    A(f"v_lshlrev_b32 {v(vA0)}, 13, {v(vS)}")
    A(f"v_lshl_add_u32 {v(vA0)}, {v(vN)}, 4, {v(vA0)}")
    A(f"v_add_u32 {v(vA0)}, {s(sT0)}, {v(vA0)}")
    A(f"s_movk_i32 {s(sT2)}, 4096")
    for k in range(8):
        so = "0" if k < 4 else s(sT2)
        A(f"buffer_load_dwordx4 {v(vW2+4*k,4)}, {v(vA0)}, {s(sW2,4)}, {so} offen offset:{1024*(k%4)}{NT}")
    A(f"s_lshl_b32 {s(sT0)}, {s(sT4)}, 6")
    A(f"v_lshl_add_u32 {v(vA0)}, {v(vS)}, 4, {s(sT0)}")
    A(f"buffer_load_dwordx4 {v(vB1,4)}, {v(vA0)}, {s(sB1,4)}, 0 offen")
    A.label("L_nomlpload")
    A(f"s_waitcnt lgkmcnt(0)")
    A(f"s_barrier")
    vQF = 64
    vKE, vKO = 40, 41
    vQE, vQO = 42, 43
    A(f"s_movk_i32 {s(sT1)}, {PITCH}")
    A(f"v_mul_lo_u32 v44, {v(vN)}, {s(sT1)}")
    A(f"v_lshl_add_u32 v44, {v(vS)}, 8, v44")
    A(f"v_and_b32 v45, 1, {v(vS)}")
    A(f"v_lshlrev_b32 v45, 4, v45")
    A(f"v_add_u32 {v(vQE)}, v44, v45")
    A(f"v_sub_u32 {v(vQO)}, v44, v45")
    A(f"s_mul_i32 {s(sT0)}, {s(sW)}, {32*PITCH}")
    A(f"v_add_u32 {v(vKE)}, {s(sT0)}, {v(vQE)}")
    A(f"v_add_u32 {v(vKO)}, {s(sT0)}, {v(vQO)}")
    A(f"v_add_u32 {v(vQE)}, {L_QL}, {v(vQE)}")
    A(f"v_add_u32 {v(vQO)}, {L_QL}, {v(vQO)}")
    for t in range(16):
        if t == 12: A(f"s_waitcnt lgkmcnt(8)")
        A(f"ds_read_b128 {v(vQF+4*t,4)}, {v(vQE if t%2==0 else vQO)} offset:{16*t}")
    A(f"s_waitcnt lgkmcnt(0)")
    A(f"s_barrier")
    stamp(A, cfg, 4)
    vRING = 128
    vS0, vS1 = 32, 36
    LOOK = 6
    def kvread(t, tt):
        slot = (2*t+tt) % 16
        A(f"ds_read_b128 {v(vRING+4*slot,4)}, {v(vKE if t%2==0 else vKO)} offset:{16*t + tt*16*PITCH}")
    for t in range(LOOK):
        kvread(t,0); kvread(t,1)
    for t in range(16):
        rem = min(LOOK-1, 15-t)
        A(f"s_waitcnt lgkmcnt({2*rem})")
        for tt in range(2):
            slot = (2*t+tt) % 16
            acc = vS0 if tt == 0 else vS1
            c = "0" if t == 0 else v(acc,4)
            A(f"v_mfma_f32_16x16x32_bf16 {v(acc,4)}, {v(vRING+4*slot,4)}, {v(vQF+4*t,4)}, {c}")
        if t + LOOK < 16:
            kvread(t+LOOK,0); kvread(t+LOOK,1)
    vM, vTm = 44, 45
    vPA0, vPA1 = 40, 41
    A(f"v_lshrrev_b32 v46, 2, {v(vL)}")
    A(f"s_movk_i32 {s(sT1)}, {PITCH}")
    A(f"v_mul_lo_u32 v46, v46, {s(sT1)}")
    A(f"v_and_b32 v47, 3, {v(vL)}")
    A(f"v_lshl_add_u32 v46, v47, 3, v46")
    A(f"s_lshl_b32 {s(sT0)}, {s(sW)}, 8")
    A(f"v_add_u32 {v(vPA0)}, {s(sT0)}, v46")
    A(f"v_add_u32 {v(vPA1)}, {64*PITCH}, {v(vPA0)}")
    A(f"v_lshlrev_b32 v42, 4, {v(vN)}")
    A(f"v_add_u32 v42, {L_MX}, v42")
    A(f"s_lshl_b32 {s(sT0)}, {s(sW)}, 2")
    A(f"v_add_u32 v43, {s(sT0)}, v42")
    A(f"v_max3_f32 {v(vM)}, {v(vS0)}, {v(vS0+1)}, {v(vS0+2)}")
    A(f"v_max3_f32 {v(vM)}, {v(vM)}, {v(vS0+3)}, {v(vS1)}")
    A(f"v_max3_f32 {v(vM)}, {v(vM)}, {v(vS1+1)}, {v(vS1+2)}")
    A(f"v_max_f32 {v(vM)}, {v(vM)}, {v(vS1+3)}")
    xreduce_rows(A, "v_max_f32", vM, vTm)
    A(f"ds_write_b32 v43, {v(vM)}")
    A(f"s_waitcnt lgkmcnt(0)")
    A(f"s_barrier")
    A(f"ds_read_b128 v[48:51], v42")
    def pvread(g, T):
        slot = (g*8+T) % 16
        base = vPA0 if g < 2 else vPA1
        off = (32*(g%2))*PITCH + T*32
        A(f"ds_read_b64_tr_b16 {v(vRING+4*slot,2)}, {v(base)} offset:{off}")
        A(f"ds_read_b64_tr_b16 {v(vRING+4*slot+2,2)}, {v(base)} offset:{off+16*PITCH}")
    PRE = 6
    for k in range(PRE): pvread(k//8, k%8)
    A(f"s_waitcnt lgkmcnt({2*PRE})")
    A(f"v_max3_f32 {v(vM)}, v48, v49, v50")
    A(f"v_max_f32 {v(vM)}, {v(vM)}, v51")
    for k in range(8):
        A(f"v_sub_f32 {v(vS0+k)}, {v(vS0+k)}, {v(vM)}")
    for k in range(8):
        A(f"v_exp_f32 {v(vS0+k)}, {v(vS0+k)}")
    vLs = 46
    A(f"v_add_f32 {v(vLs)}, {v(vS0)}, {v(vS0+1)}")
    A(f"v_add_f32 v47, {v(vS0+2)}, {v(vS0+3)}")
    A(f"v_add_f32 v48, {v(vS0+4)}, {v(vS0+5)}")
    A(f"v_add_f32 v49, {v(vS0+6)}, {v(vS0+7)}")
    for k in range(4):
        A(f"v_cvt_pk_bf16_f32 {v(52+k)}, {v(vS0+2*k)}, {v(vS0+2*k+1)}")
    A(f"v_add_f32 {v(vLs)}, {v(vLs)}, v47")
    A(f"v_add_f32 v48, v48, v49")
    A(f"v_add_f32 {v(vLs)}, {v(vLs)}, v48")
    A(f"v_lshlrev_b32 v60, 4, {v(vL)}")
    A(f"v_add_u32 v60, {L_PB}, v60")
    A(f"s_lshl_b32 {s(sT0)}, {s(sW)}, 10")
    A(f"v_add_u32 v61, {s(sT0)}, v60")
    A(f"ds_write_b128 v61, v[52:55]")
    xreduce_rows(A, "v_add_f32", vLs, 47)
    A(f"ds_write_b32 v43, {v(vLs)} offset:{L_LS-L_MX}")
    A(f"s_waitcnt lgkmcnt(0)")
    A(f"s_barrier")
    vPF, vO = 64, 80
    for g in range(4):
        A(f"ds_read_b128 {v(vPF+4*g,4)}, v60 offset:{1024*g}")
    A(f"ds_read_b128 v[48:51], v42 offset:{L_LS-L_MX}")
    nxt = PRE
    outstanding = ["P"]*4 + ["L"]
    def issue(k):
        pvread(k//8, k%8); outstanding.extend([("f",k),("f",k)])
    while len(outstanding) + 2 <= 15:
        issue(nxt); nxt += 1
    for k in range(32):
        g, T = k//8, k%8
        need_idx = -1
        for idx, o in enumerate(outstanding):
            if o == "P" and k == 0: need_idx = max(need_idx, idx)
            if o == ("f",k): need_idx = max(need_idx, idx)
        can = nxt < 32 and nxt <= k + 15
        if can:
            need_idx = max(need_idx, len(outstanding) + 2 - 15 - 1)
        if need_idx >= 0:
            n_after = len(outstanding) - 1 - need_idx
            A(f"s_waitcnt lgkmcnt({n_after})")
            del outstanding[:need_idx+1]
        slot = k % 16
        c = "0" if g == 0 else v(vO+4*T,4)
        A(f"v_mfma_f32_16x16x32_bf16 {v(vO+4*T,4)}, {v(vRING+4*slot,4)}, {v(vPF+4*g,4)}, {c}")
        if can:
            issue(nxt); nxt += 1
    if outstanding: A(f"s_waitcnt lgkmcnt(0)")
    stamp(A, cfg, 5)
    vPK = 112
    A(f"v_add_f32 v48, v48, v49")
    A(f"v_add_f32 v50, v50, v51")
    A(f"v_add_f32 v47, v48, v50")
    A(f"s_lshl_b32 {s(sT0)}, {s(sHG)}, 4")
    A(f"v_add_u32 v48, {s(sT0)}, {v(vN)}")
    A(f"v_lshlrev_b32 v48, 10, v48")
    A(f"s_lshl_b32 {s(sT0)}, {s(sW)}, 8")
    A(f"s_lshl_b32 {s(sT1)}, {s(sB)}, 5")
    A(f"s_add_u32 {s(sT0)}, {s(sT0)}, {s(sT1)}")
    A(f"s_add_u32 {s(sT0)}, {s(sT0)}, {s(sKC)}")
    A(f"v_add_u32 v48, {s(sT0)}, v48")
    A(f"v_and_b32 v49, 1, {v(vS)}")
    A(f"v_lshlrev_b32 v49, 1, v49")
    A(f"v_lshrrev_b32 v50, 1, {v(vS)}")
    A(f"v_add_u32 v49, v49, v50")
    A(f"v_lshlrev_b32 v49, 4, v49")
    A(f"v_lshl_add_u32 v49, v48, 7, v49")
    A(f"v_add_u32 v49, {hex(WS_OP)}, v49")
    A(f"v_add_u32 v50, {128*128}, v49")
    A(f"v_lshl_add_u32 v48, {v(vS)}, 7, v48")
    A(f"v_lshlrev_b32 v48, 4, v48")
    A(f"v_add_u32 v48, {hex(WS_ST)}, v48")
    for T in range(8):
        A(f"v_cvt_pk_bf16_f32 {v(vPK+2*T)}, {v(vO+4*T)}, {v(vO+4*T+1)}")
        A(f"v_cvt_pk_bf16_f32 {v(vPK+2*T+1)}, {v(vO+4*T+2)}, {v(vO+4*T+3)}")
    for p in range(4):
        A(f"v_permlane16_swap_b32 {v(vPK+4*p)}, {v(vPK+4*p+2)}")
        A(f"v_permlane16_swap_b32 {v(vPK+4*p+1)}, {v(vPK+4*p+3)}")
    for p in range(4):
        base = 49 if p < 2 else 50
        A(f"buffer_store_dwordx4 {v(vPK+4*p,4)}, {v(base)}, {s(sWS,4)}, 0 offen offset:{64*(p%2)} sc1")
    sum_dwords(A, 52, range(vPK, vPK+8))
    sum_dwords(A, 53, range(vPK+8, vPK+16))
    xreduce_rows2(A, "v_add_u32", 52, 54, "v_add_u32", 53, 55)
    A(f"v_cmp_eq_u32 vcc, 1, {v(vS)}")
    A(f"v_mov_b32 v60, {v(vM)}")
    A(f"v_mov_b32 v61, v47")
    A(f"v_cndmask_b32 v62, v52, v53, vcc")
    A(f"v_add3_u32 v63, v60, v61, v62")
    A(f"v_add_u32 v63, {s(sNONCE)}, v63")
    A(f"s_mov_b64 {s(sEX,2)}, exec")
    A(f"s_mov_b32 exec_hi, 0")
    A(f"buffer_store_dwordx4 v[60:63], v48, {s(sWS,4)}, 0 offen sc1")
    A(f"s_mov_b64 exec, {s(sEX,2)}")
    stamp(A, cfg, 6)
    A(f"s_cmp_ge_u32 {s(sT4)}, {NMLP}")
    A(f"s_cbranch_scc1 L_nomlp")
    vHX = 32
    vSL0, vSL1 = 44, 45
    A(f"v_and_b32 v46, 1, {v(vN)}")
    A(f"v_cmp_eq_u32 vcc, 0, v46")
    A(f"v_mov_b32 v46, 0x01000c0c")
    A(f"v_mov_b32 v47, 0x0c0c0100")
    A(f"v_cndmask_b32 {v(vSL0)}, v46, v47, vcc")
    A(f"v_mov_b32 v46, 0x03020c0c")
    A(f"v_mov_b32 v47, 0x0c0c0302")
    A(f"v_cndmask_b32 {v(vSL1)}, v46, v47, vcc")
    A(f"s_waitcnt vmcnt(5)")
    for t in range(8):
        af = vAF0 if t % 2 == 0 else vAF1
        for rr in range(4):
            A(f"v_perm_b32 {v(af+rr)}, {v(vXP+2*t+(rr>>1))}, {v(vXP+2*t+(rr>>1))}, {v(vSL0 if rr%2==0 else vSL1)}")
        c = "0" if t == 0 else v(vHX,4)
        A(f"v_mfma_f32_16x16x32_bf16 {v(vHX,4)}, {v(af,4)}, {v(vW1+4*t,4)}, {c}")
    A(f"v_lshlrev_b32 v46, 7, {v(vS)}")
    A(f"v_lshl_add_u32 v46, {v(vN)}, 3, v46")
    A(f"s_lshl_b32 {s(sT0)}, {s(sW)}, 9")
    A(f"s_add_u32 {s(sT0)}, {s(sT0)}, {L_HR}")
    A(f"v_add_u32 v46, {s(sT0)}, v46")
    A(f"ds_write_b64 v46, {v(vHX,2)}")
    A(f"s_waitcnt lgkmcnt(0)")
    A(f"s_barrier")
    A(f"v_lshrrev_b32 v46, 2, {v(vN)}")
    A(f"v_lshlrev_b32 v47, 7, v46")
    A(f"v_lshl_add_u32 v47, {v(vS)}, 5, v47")
    A(f"v_add_u32 v47, {L_HR}, v47")
    vH = 128
    for ww in range(4):
        A(f"ds_read_b128 {v(vH+8*ww,4)}, v47 offset:{512*ww}")
        A(f"ds_read_b128 {v(vH+8*ww+4,4)}, v47 offset:{512*ww+16}")
    A(f"v_lshlrev_b32 v48, 2, {v(vS)}")
    A(f"v_add_u32 v48, {L_G}, v48")
    A(f"ds_read_b32 v49, v48")
    A(f"s_waitcnt lgkmcnt(0)")
    for e in range(8):
        A(f"v_add_f32 {v(vH+e)}, {v(vH+e)}, {v(vH+8+e)}")
        A(f"v_add_f32 {v(vH+16+e)}, {v(vH+16+e)}, {v(vH+24+e)}")
    for e in range(8):
        A(f"v_add_f32 {v(vH+e)}, {v(vH+e)}, {v(vH+16+e)}")
    for e in range(8):
        r = vB1 + e//2
        if e % 2 == 0: A(f"v_lshlrev_b32 {v(vH+8+e)}, 16, {v(r)}")
        else: A(f"v_and_b32 {v(vH+8+e)}, 0xffff0000, {v(r)}")
    for e in range(8):
        A(f"v_add_f32 {v(vH+e)}, {v(vH+e)}, {v(vH+8+e)}")
    A(f"s_mov_b32 {s(sT0)}, {hex(f2u(-LOG2E))}")
    for e in range(8):
        A(f"v_mul_f32 {v(vH+8+e)}, {s(sT0)}, abs({v(vH+e)})")
    for e in range(8):
        A(f"v_exp_f32 {v(vH+8+e)}, {v(vH+8+e)}")
    for e in range(8):
        a_, h_, n_, d_ = vH+8+e, vH+e, vH+16+e, vH+24+e
        A(f"v_cmp_lt_f32 vcc, 0, {v(h_)}")
        A(f"v_mul_f32 {v(d_)}, {v(a_)}, {v(a_)}")
        A(f"v_cndmask_b32 {v(n_)}, {v(d_)}, 1.0, vcc")
        A(f"v_fma_f32 {v(n_)}, 2.0, {v(a_)}, {v(n_)}")
        A(f"v_cndmask_b32 {v(d_)}, 1.0, {v(d_)}, vcc")
        A(f"v_fma_f32 {v(d_)}, 2.0, {v(d_)}, {v(n_)}")
        A(f"v_rcp_f32 {v(d_)}, {v(d_)}")
        A(f"v_mul_f32 {v(n_)}, {v(n_)}, {v(h_)}")
        A(f"v_mul_f32 {v(h_)}, {v(n_)}, {v(d_)}")
    vAP = 48+4
    for k in range(4):
        A(f"v_cvt_pk_bf16_f32 {v(vAP+k)}, {v(vH+2*k)}, {v(vH+2*k+1)}")
    A(f"v_sub_f32 v49, 1.0, v49")
    for t in range(4):
        sel_gemm_step(A, vAP+t, vSEL, vAF0 if t % 2 == 0 else vAF1, vW2+8*t, vQX, vQY, t == 0)
    A(f"s_add_u32 {s(sT5)}, {s(sT4)}, 256")
    final_offsets(A, vN, vS, sW, sT5, 46, 47, 60)
    publish_final(A, cfg, vQX, vQY, 49, 46, 47, 40, 50)
    A.label("L_nomlp")
    vOD, vST = 128, 144
    A(f"s_lshl_b32 {s(sT0)}, {s(sH)}, 3")
    A(f"s_add_u32 {s(sT0)}, {s(sT0)}, {s(sJ)}")
    A(f"s_lshl_b32 {s(sT0)}, {s(sT0)}, 2")
    A(f"s_add_u32 {s(sT0)}, {s(sT0)}, {s(sW)}")
    A(f"s_lshl_b32 {s(sT0)}, {s(sT0)}, 5")
    A(f"s_lshl_b32 {s(sT1)}, {s(sT0)}, 7")
    A(f"s_add_u32 {s(sT1)}, {s(sT1)}, {hex(WS_OP)}")
    A(f"v_lshl_add_u32 v40, {v(vL)}, 4, {s(sT1)}")
    A(f"s_lshl_b32 {s(sT1)}, {s(sT0)}, 4")
    A(f"s_add_u32 {s(sT1)}, {s(sT1)}, {hex(WS_ST)}")
    A(f"v_and_b32 v41, 31, {v(vL)}")
    A(f"v_lshl_add_u32 v41, v41, 4, {s(sT1)}")
    A(f"v_cmp_gt_u32 {s(sM0,2)}, 32, {v(vL)}")
    A(f"v_bfe_u32 v42, {v(vN)}, 2, 1")
    A(f"v_lshl_add_u32 v42, {v(vS)}, 1, v42")
    A(f"v_lshlrev_b32 v42, 2, v42")
    lab = poll_head(A, "L_hop3")
    for i in range(4):
        A(f"buffer_load_dwordx4 {v(vOD+4*i,4)}, v40, {s(sWS,4)}, 0 offen offset:{1024*i} sc1")
    A(f"buffer_load_dwordx4 {v(vST,4)}, v41, {s(sWS,4)}, 0 offen sc1")
    A(f"s_waitcnt vmcnt(0)")
    sum_dwords(A, 44, range(vOD, vOD+16))
    A(f"v_cndmask_b32 v45, 0, {v(vST+2)}, {s(sM0,2)}")
    A(f"v_sub_u32 v44, v44, v45")
    A(f"v_add3_u32 v45, {v(vST)}, {v(vST+1)}, {v(vST+2)}")
    A(f"v_add_u32 v45, {s(sNONCE)}, v45")
    A(f"v_cmp_ne_u32 {s(sM1,2)}, v45, {v(vST+3)}")
    wave_sum_u32(A, 44, 46)
    A(f"v_cmp_ne_u32 vcc, 0, v44")
    A(f"s_or_b64 {s(sM1,2)}, {s(sM1,2)}, vcc")
    poll_tail(A, lab, sM1)
    stamp(A, cfg, 7)
    A(f"v_mov_b32 v44, {v(vST)}")
    for d in ("quad_perm:[1,0,3,2]", "quad_perm:[2,3,0,1]", "row_half_mirror", "row_mirror"):
        A(f"v_max_f32_dpp v44, v44, v44 {d} row_mask:0xf bank_mask:0xf")
    A(f"v_mov_b32 v46, v44")
    A(f"v_permlane16_swap_b32 v44, v46")
    A(f"v_max_f32 v44, v44, v46")
    A(f"v_sub_f32 v44, {v(vST)}, v44")
    A(f"v_exp_f32 v44, v44")
    A(f"v_mul_f32 v45, v44, {v(vST+1)}")
    for d in ("quad_perm:[1,0,3,2]", "quad_perm:[2,3,0,1]", "row_half_mirror", "row_mirror"):
        A(f"v_add_f32_dpp v45, v45, v45 {d} row_mask:0xf bank_mask:0xf")
    A(f"v_mov_b32 v46, v45")
    A(f"v_permlane16_swap_b32 v45, v46")
    A(f"v_add_f32 v45, v45, v46")
    A(f"v_rcp_f32 v45, v45")
    A(f"v_mul_f32 v44, v44, v45")
    for k in range(4):
        A(f"ds_bpermute_b32 {v(48+k)}, v42, v44 offset:{32*k}")
    A(f"s_waitcnt lgkmcnt(0)")
    A(f"v_cvt_pk_bf16_f32 v52, v48, v49")
    A(f"v_cvt_pk_bf16_f32 v53, v50, v51")
    for t in range(2):
        sel_gemm_step(A, 52+t, vSEL, vAF0 if t % 2 == 0 else vAF1, vOD+8*t, vQX, vQY, t == 0)
    for k in range(8):
        A(f"v_permlane16_swap_b32 {v(vQX+k)}, {v(56+k)}")
    for k in range(8):
        A(f"v_add_f32_dpp {v(56+k)}, {v(56+k)}, {v(vQX+k)} row_ror:8 row_mask:0xf bank_mask:0xf")
    for k in range(4):
        A(f"v_cvt_pk_bf16_f32 {v(48+k)}, {v(56+2*k)}, {v(56+2*k+1)}")
    A(f"s_lshl_b32 {s(sT0)}, {s(sW)}, 7")
    A(f"s_add_u32 {s(sT0)}, {s(sT0)}, {L_CC}")
    A(f"v_lshl_add_u32 v46, {v(vL)}, 4, {s(sT0)}")
    A(f"s_mov_b64 {s(sEX,2)}, exec")
    A(f"s_mov_b64 exec, 0xff")
    A(f"ds_write_b128 v46, v[48:51]")
    A(f"s_mov_b64 exec, {s(sEX,2)}")
    A(f"s_waitcnt lgkmcnt(0)")
    A(f"s_barrier")
    stamp(A, cfg, 8)
    A(f"s_cmp_ge_u32 s2, 64")
    A(f"s_cbranch_scc1 L_Mdone")
    vFD, vFC = 128, 152
    A(f"s_mul_i32 {s(sT0)}, s2, {NSLOT}")
    A(f"s_mul_i32 {s(sT1)}, {s(sW)}, 80")
    A(f"s_add_u32 {s(sT0)}, {s(sT0)}, {s(sT1)}")
    A(f"s_lshl_b32 {s(sT2)}, {s(sT0)}, 6")
    A(f"s_add_u32 {s(sT2)}, {s(sT2)}, {hex(WS_FD)}")
    A(f"v_lshl_add_u32 v40, {v(vL)}, 4, {s(sT2)}")
    A(f"s_lshl_b32 {s(sT2)}, {s(sT0)}, 3")
    A(f"s_add_u32 {s(sT2)}, {s(sT2)}, {hex(WS_FC)}")
    A(f"v_lshl_add_u32 v41, {v(vL)}, 3, {s(sT2)}")
    A(f"v_mov_b32 v47, 0x7ffffff0")
    A(f"v_lshrrev_b32 v44, 2, {v(vL)}")
    A(f"v_add_u32 v44, {s(sT1)}, v44")
    for i in range(5):
        A(f"v_add_u32 v45, {16*i}, v44")
        A(f"v_cmp_gt_u32 vcc, {NPROD}, v45")
        A(f"v_add_u32 v46, {1024*i}, v40")
        A(f"v_cndmask_b32 {v(56+i)}, v47, v46, vcc")
    A(f"v_add_u32 v44, {s(sT1)}, {v(vL)}")
    A(f"s_movk_i32 {s(sT3)}, {NPROD}")
    A(f"v_cmp_gt_u32 {s(sM0,2)}, {s(sT3)}, v44")
    A(f"v_cndmask_b32 v61, v47, v41, {s(sM0,2)}")
    A(f"v_add_u32 v44, 64, v44")
    A(f"v_cmp_gt_u32 vcc, {NPROD}, v44")
    A(f"v_cmp_gt_u32 {s(sM3,2)}, 16, {v(vL)}")
    A(f"s_and_b64 {s(sM2,2)}, vcc, {s(sM3,2)}")
    A(f"v_add_u32 v46, 512, v41")
    A(f"v_cndmask_b32 v62, v47, v46, {s(sM2,2)}")
    A(f"v_and_b32 v44, 3, {v(vN)}")
    A(f"v_mov_b32 v45, 0")
    for k, (j0, j1) in enumerate(((0,1),(2,3))):
        A(f"v_mov_b32 v46, 0x3f80")
        A(f"v_cmp_eq_u32 vcc, {j0}, v44")
        A(f"v_cndmask_b32 {v(vAF0+k)}, v45, v46, vcc")
        A(f"v_mov_b32 v46, 0x3f800000")
        A(f"v_cmp_eq_u32 vcc, {j1}, v44")
        A(f"v_cndmask_b32 {v(vAF0+k)}, {v(vAF0+k)}, v46, vcc")
    A(f"v_mov_b32 {v(vAF0+2)}, {v(vAF0)}")
    A(f"v_mov_b32 {v(vAF0+3)}, {v(vAF0+1)}")
    for k in range(4): A(f"v_mov_b32 {v(vFD+20+k)}, 0")
    lab = poll_head(A, "L_hop5")
    for i in range(5):
        A(f"buffer_load_dwordx4 {v(vFD+4*i,4)}, {v(56+i)}, {s(sWS,4)}, 0 offen sc1")
    A(f"buffer_load_dwordx2 {v(vFC,2)}, v61, {s(sWS,4)}, 0 offen sc1")
    A(f"buffer_load_dwordx2 {v(vFC+2,2)}, v62, {s(sWS,4)}, 0 offen sc1")
    A(f"s_waitcnt vmcnt(0)")
    sum_dwords(A, 44, range(vFD, vFD+20))
    A(f"v_sub_u32 v44, v44, {v(vFC)}")
    A(f"v_sub_u32 v44, v44, {v(vFC+2)}")
    A(f"v_add_u32 v45, {s(sNONCE)}, {v(vFC)}")
    A(f"v_cmp_ne_u32 vcc, v45, {v(vFC+1)}")
    A(f"s_and_b64 {s(sM1,2)}, vcc, {s(sM0,2)}")
    A(f"v_add_u32 v45, {s(sNONCE)}, {v(vFC+2)}")
    A(f"v_cmp_ne_u32 vcc, v45, {v(vFC+3)}")
    A(f"s_and_b64 {s(sM3,2)}, vcc, {s(sM2,2)}")
    A(f"s_or_b64 {s(sM1,2)}, {s(sM1,2)}, {s(sM3,2)}")
    wave_sum_u32(A, 44, 46)
    A(f"v_cmp_ne_u32 vcc, 0, v44")
    A(f"s_or_b64 {s(sM1,2)}, {s(sM1,2)}, vcc")
    poll_tail(A, lab, sM1)
    stamp(A, cfg, 9)
    for p in range(3):
        w = vFD + 8*p
        A(f"v_swap_b32 {v(w+2)}, {v(w+4)}")
        A(f"v_swap_b32 {v(w+3)}, {v(w+5)}")
    for p in range(3):
        w = vFD + 8*p
        c0 = "0" if p == 0 else v(vQX,4); c1 = "0" if p == 0 else v(vQY,4)
        A(f"v_mfma_f32_16x16x32_bf16 {v(vQX,4)}, {v(vAF0,4)}, {v(w,4)}, {c0}")
        A(f"v_mfma_f32_16x16x32_bf16 {v(vQY,4)}, {v(vAF0,4)}, {v(w+4,4)}, {c1}")
    for d in ("row_ror:4", "row_ror:8"):
        for k in range(8):
            A(f"v_add_f32_dpp {v(vQX+k)}, {v(vQX+k)}, {v(vQX+k)} {d} row_mask:0xf bank_mask:0xf")
    A(f"s_lshl_b32 {s(sT0)}, {s(sW)}, 7")
    A(f"s_add_u32 {s(sT0)}, {s(sT0)}, {L_FR}")
    A(f"v_lshl_add_u32 v46, {v(vL)}, 5, {s(sT0)}")
    A(f"s_mov_b64 {s(sEX,2)}, exec")
    A(f"s_mov_b64 exec, 0xf")
    A(f"ds_write_b128 v46, {v(vQX,4)}")
    A(f"ds_write_b128 v46, {v(vQY,4)} offset:16")
    A(f"s_mov_b64 exec, {s(sEX,2)}")
    A(f"s_waitcnt lgkmcnt(0)")
    A(f"s_barrier")
    A(f"s_cmp_lg_u32 {s(sW)}, 0")
    A(f"s_cbranch_scc1 L_Mdone")
    A(f"v_lshlrev_b32 v46, 3, {v(vL)}")
    A(f"v_add_u32 v46, {L_FR}, v46")
    for ww in range(4):
        A(f"ds_read_b64 {v(48+2*ww,2)}, v46 offset:{128*ww}")
    A(f"s_lshl_b32 {s(sT0)}, s2, 6")
    A(f"v_lshl_add_u32 v47, {v(vL)}, 2, {s(sT0)}")
    A(f"s_waitcnt lgkmcnt(0)")
    A(f"v_add_f32 v48, v48, v50")
    A(f"v_add_f32 v49, v49, v51")
    A(f"v_add_f32 v52, v52, v54")
    A(f"v_add_f32 v53, v53, v55")
    A(f"v_add_f32 v48, v48, v52")
    A(f"v_add_f32 v49, v49, v53")
    A(f"v_cvt_pk_bf16_f32 v48, v48, v49")
    A(f"s_mov_b64 exec, 0xffff")
    A(f"buffer_store_dword v48, v47, {s(sOUT,4)}, 0 offen")
    A(f"s_cmp_lg_u32 s2, 0")
    A(f"s_cbranch_scc1 L_Mdone")
    A(f"s_add_u32 {s(sT0)}, {s(sE)}, 1")
    A(f"v_mov_b32 v48, {s(sT0)}")
    A(f"v_mov_b32 v47, 0")
    A(f"s_mov_b64 exec, 1")
    A(f"buffer_store_dword v48, v47, {s(sWS,4)}, 0 offen sc1")
    A.label("L_Mdone")
    if cfg.ts:
        stamp(A, cfg, 9+0)
        emit_ts(A, cfg)
    A(f"s_endpgm")
    A.label("L_Lpath")
    sLW = sT5
    vGX, vGW = 8, 24
    vWUV, vWO = 64, 128
    A(f"s_sub_u32 {s(sW)}, {s(sW)}, 4")
    A(f"v_lshlrev_b32 v40, 4, {v(vL)}")
    A(f"v_mov_b32 v43, 0")
    A(f"s_lshl_b32 {s(sT0)}, {s(sJ)}, 19")
    A(f"s_lshl_b32 {s(sT1)}, {s(sH)}, 8")
    A(f"s_add_u32 {s(sT0)}, {s(sT0)}, {s(sT1)}")
    A(f"v_lshlrev_b32 v41, 17, {v(vS)}")
    A(f"v_lshl_add_u32 v41, {v(vN)}, 4, v41")
    A(f"v_add_u32 v41, {s(sT0)}, v41")
    A(f"s_lshl_b32 {s(sT0)}, {s(sH)}, 17")
    A(f"s_lshl_b32 {s(sT1)}, {s(sW)}, 8")
    A(f"s_add_u32 {s(sT0)}, {s(sT0)}, {s(sT1)}")
    A(f"v_lshlrev_b32 v42, 15, {v(vS)}")
    A(f"v_lshl_add_u32 v42, {v(vN)}, 4, v42")
    A(f"v_add_u32 v42, {s(sT0)}, v42")
    A(f"s_waitcnt lgkmcnt(0)")
    if cfg.prefetch_code:
        A(f"s_cmp_lg_u32 {s(sW)}, 3")
        A(f"s_cbranch_scc1 L_nopf")
        A(f"s_getpc_b64 s[66:67]")
        A.label("L_pcref")
        A(f"s_sub_u32 s66, s66, (L_pcref-{KNAME})")
        A(f"s_subb_u32 s67, s67, 0")
        A(f"s_lshl_b32 {s(sT2)}, {s(sR)}, 10")
        A(f"v_lshl_add_u32 v44, {v(vL)}, 7, {s(sT2)}")
        A(f"v_cmp_gt_u32 vcc, (L_end-{KNAME}), v44")
        A(f"v_cmp_gt_u32 {s(sM3,2)}, 8, {v(vL)}")
        A(f"s_and_b64 vcc, vcc, {s(sM3,2)}")
        A(f"s_and_saveexec_b64 {s(sEX,2)}, vcc")
        A(f"s_cbranch_execz L_pfskip")
        A(f"global_load_dword v63, v44, s[66:67]")
        A.label("L_pfskip")
        A(f"s_mov_b64 exec, {s(sEX,2)}")
        A.label("L_nopf")
    A(f"buffer_load_dword v3, v43, {s(sWS,4)}, 0 offen sc1")
    for b in range(4):
        A(f"buffer_load_dwordx4 {v(vGX+4*b,4)}, v40, {s(sX,4)}, 0 offen offset:{1024*b}")
    A(f"buffer_load_dwordx4 {v(vGW,4)}, v40, {s(sGW,4)}, 0 offen")
    make_sels(A, vN, vSEL, 44)
    A(f"s_barrier")
    A(f"s_lshl_b32 {s(sT0)}, {s(sB)}, 12")
    A(f"s_lshl_b32 {s(sT1)}, {s(sKC)}, 7")
    A(f"s_add_u32 {s(sT0)}, {s(sT0)}, {s(sT1)}")
    A(f"s_lshl_b32 {s(sT1)}, {s(sW)}, 5")
    A(f"s_add_u32 {s(sT0)}, {s(sT0)}, {s(sT1)}")
    A(f"s_lshl_b32 {s(sT0)}, {s(sT0)}, 10")
    A(f"s_mul_i32 {s(sT1)}, {s(sW)}, {32*PITCH}")
    A(f"s_mov_b32 m0, {s(sT1)}")
    A(f"s_mov_b32 {s(sCNT)}, 0")
    A.label("L_dma")
    A(f"buffer_load_dwordx4 v40, {s(sKV,4)}, {s(sT0)} offen{NT} lds")
    A(f"s_add_u32 m0, m0, {PITCH}")
    A(f"s_add_u32 {s(sT0)}, {s(sT0)}, 1024")
    A(f"s_add_u32 {s(sCNT)}, {s(sCNT)}, 1")
    A(f"s_cmp_lt_u32 {s(sCNT)}, 32")
    A(f"s_cbranch_scc1 L_dma")
    A(f"s_mov_b32 {s(sT2)}, 0")
    for k in range(16):
        A(f"buffer_load_dwordx4 {v(vWUV+4*k,4)}, v41, {s(sWUV,4)}, {s(sT2)} offen{NT}")
        if k < 15: A(f"s_add_u32 {s(sT2)}, {s(sT2)}, 8192")
    A(f"s_barrier")
    A(f"s_barrier")
    A(f"s_mov_b32 {s(sT2)}, 0")
    for k in range(32):
        A(f"buffer_load_dwordx4 {v(vWO+4*k,4)}, v42, {s(sWO,4)}, {s(sT2)} offen offset:{1024*(k%4)}{NT}")
        if k % 4 == 3 and k < 31: A(f"s_add_u32 {s(sT2)}, {s(sT2)}, 4096")
    A(f"s_waitcnt vmcnt(63)")
    A(f"v_readfirstlane_b32 {s(sE)}, v3")
    A(f"s_mul_i32 {s(sNONCE)}, {s(sE)}, {hex(HASH_K)}")
    A(f"s_add_u32 {s(sNONCE)}, {s(sNONCE)}, {hex(HASH_C)}")
    for b in range(4):
        A(f"v_mov_b32 {v(44+b)}, 0")
    for k in range(4):
        for b in range(4):
            A(f"v_dot2_f32_bf16 {v(44+b)}, {v(vGX+4*b+k)}, {v(vGW+k)}, {v(44+b)}")
    A("s_nop 3")
    for d in ("quad_perm:[1,0,3,2]", "quad_perm:[2,3,0,1]", "row_half_mirror", "row_mirror"):
        for b in range(4):
            A(f"v_add_f32_dpp {v(44+b)}, {v(44+b)}, {v(44+b)} {d} row_mask:0xf bank_mask:0xf")
    xreduce_rows2(A, "v_add_f32", 44, 48, "v_add_f32", 45, 49)
    xreduce_rows2(A, "v_add_f32", 46, 48, "v_add_f32", 47, 49)
    A(f"v_cmp_eq_u32 vcc, 1, {v(vS)}")
    A(f"v_cndmask_b32 v44, v44, v45, vcc")
    A(f"v_cmp_eq_u32 vcc, 2, {v(vS)}")
    A(f"v_cndmask_b32 v44, v44, v46, vcc")
    A(f"v_cmp_eq_u32 vcc, 3, {v(vS)}")
    A(f"v_cndmask_b32 v44, v44, v47, vcc")
    A(f"s_mov_b32 {s(sT0)}, {hex(f2u(-LOG2E))}")
    A(f"v_mul_f32 v44, {s(sT0)}, v44")
    A(f"v_exp_f32 v44, v44")
    A(f"v_add_f32 v44, 1.0, v44")
    A(f"v_rcp_f32 v3, v44")
    A(f"v_lshlrev_b32 v45, 2, {v(vS)}")
    A(f"v_add_u32 v45, {L_G}, v45")
    A(f"ds_write_b32 v45, v3")
    A(f"s_waitcnt lgkmcnt(0)")
    A(f"s_barrier")
    A(f"s_waitcnt vmcnt(48)")
    A(f"s_barrier")
    A(f"s_barrier")
    A(f"s_barrier")
    A(f"s_sub_u32 {s(sT4)}, s2, {MLP0}")
    A(f"s_cmp_ge_u32 {s(sT4)}, {NMLP}")
    A(f"s_cbranch_scc1 L_Lnomlp")
    A(f"s_barrier")
    A.label("L_Lnomlp")
    A(f"s_waitcnt vmcnt(32)")
    for t in range(8):
        A(f"v_swap_b32 {v(vWUV+8*t+2)}, {v(vWUV+8*t+4)}")
        A(f"v_swap_b32 {v(vWUV+8*t+3)}, {v(vWUV+8*t+5)}")
    A(f"s_waitcnt vmcnt(0)")
    for t in range(16):
        A(f"v_swap_b32 {v(vWO+8*t+2)}, {v(vWO+8*t+4)}")
        A(f"v_swap_b32 {v(vWO+8*t+3)}, {v(vWO+8*t+5)}")
    final_offsets(A, vN, vS, sW, 2, 40, 41, 44)
    A(f"v_lshrrev_b32 v44, 2, {v(vN)}")
    A(f"v_lshlrev_b32 v42, 7, v44")
    A(f"v_lshl_add_u32 v42, {v(vS)}, 5, v42")
    A(f"v_add_u32 v42, {L_CC}, v42")
    A(f"s_lshl_b32 {s(sT0)}, {s(sW)}, 10")
    A(f"s_add_u32 {s(sT0)}, {s(sT0)}, {L_CT}")
    A(f"v_lshlrev_b32 v43, 8, {v(vS)}")
    A(f"v_lshl_add_u32 v43, {v(vN)}, 4, v43")
    A(f"v_add_u32 v43, {s(sT0)}, v43")
    A(f"v_lshlrev_b32 v44, 8, v44")
    A(f"v_lshl_add_u32 v44, {v(vS)}, 6, v44")
    A(f"v_add_u32 v44, {s(sT0)}, v44")
    A(f"s_barrier")
    vCP, vXP2 = 8, 48
    A(f"ds_read_b128 {v(vCP,4)}, v42")
    A(f"ds_read_b128 {v(vCP+4,4)}, v42 offset:16")
    A(f"s_waitcnt lgkmcnt(0)")
    for t in range(8):
        sel_gemm_step(A, vCP+t, vSEL, 24 if t % 2 == 0 else 28, vWUV+8*t, 32, 36, t == 0, swap=False)
    A(f"v_cvt_pk_bf16_f32 v16, v32, v33")
    A(f"v_cvt_pk_bf16_f32 v17, v34, v35")
    A(f"v_cvt_pk_bf16_f32 v18, v36, v37")
    A(f"v_cvt_pk_bf16_f32 v19, v38, v39")
    A(f"ds_write_b128 v43, v[16:19]")
    A(f"s_waitcnt lgkmcnt(0)")
    for k in range(4):
        A(f"ds_read_b128 {v(vXP2+4*k,4)}, v44 offset:{16*k}")
    for t in range(16):
        if t % 4 == 0: A(f"s_waitcnt lgkmcnt({3-t//4})")
        sel_gemm_step(A, vXP2+t, vSEL, 24 if t % 2 == 0 else 28, vWO+8*t, 32, 36, t == 0, swap=False)
    publish_final(A, cfg, 32, 36, 3, 40, 41, 16, 20)
    if cfg.ts:
        stamp(A, cfg, 1)
        emit_ts(A, cfg, L=True)
    A.label("L_exit")
    A(f"s_endpgm")
    A.label("L_end")
    lines = hazard.fix(A.l, verbose=True)
    return "\n".join(lines) + "\n"

def emit_ts(A, cfg, L=False):
    A(f"s_waitcnt lgkmcnt(0) vmcnt(0)")
    A(f"s_mov_b64 exec, 0x3ff")
    A(f"v_mbcnt_lo_u32_b32 v0, -1, 0")
    A(f"v_mov_b32 v1, 0")
    for k in range(10):
        A(f"v_mov_b32 v2, {s(sTS+2*k)}")
        A(f"v_cmp_eq_u32 vcc, {k}, v0")
        A(f"v_cndmask_b32 v1, v1, v2, vcc")
    A(f"s_lshl_b32 {s(sT0)}, s2, 3")
    A(f"s_add_u32 {s(sT0)}, {s(sT0)}, {s(sW)}")
    if L: A(f"s_add_u32 {s(sT0)}, {s(sT0)}, 4")
    A(f"s_lshl_b32 {s(sT0)}, {s(sT0)}, 6")
    A(f"s_add_u32 {s(sT0)}, {s(sT0)}, {hex(WS_DBG)}")
    A(f"v_lshl_add_u32 v2, v0, 2, {s(sT0)}")
    A(f"buffer_store_dword v1, v2, {s(sWS,4)}, 0 offen")

def build(cfg, path):
    body = gen(cfg)
    txt = wrap([(KNAME, body, 256, 102, 256)], [(KNAME, (256,1,1), (512,1,1), LDS_SIZE)])
    open(path, "w").write(txt)
    return path

if __name__ == "__main__":
    import build as B
    cfg = Cfg()
    for a_ in sys.argv[2:]:
        k, val = a_.split("=")
        setattr(cfg, k, eval(val))
    p = build(cfg, sys.argv[1])
    B.build(p, p.replace(".s", ".co"))
    import subprocess
    print(subprocess.run(f"llvm-objdump -d --mcpu=gfx950 {p.replace('.s','.co')} | grep -c '//' ; llvm-readelf -S {p.replace('.s','.co')} | grep -E 'text'", shell=True, capture_output=True, text=True).stdout)
```

```python
import sys; sys.path.insert(0, "dev")
from asmlib import *
import hazard

WS_E, WS_QA, WS_QC, WS_ST, WS_OP, WS_FD, WS_FC, WS_DBG = 0, 0x10000, 0x30000, 0x40000, 0x100000, 0x500000, 0x680000, 0x800000
PITCH = 1056
L_KV = 0
L_QL = 128 * PITCH
L_RED = L_QL
L_MISC = L_QL + 16 * PITCH
L_QB = L_MISC
L_MX = L_MISC + 1024
L_LS = L_MISC + 1280
L_G  = L_MISC + 1536
L_PB = L_MISC + 2048
L_CC = L_MISC + 6144
L_HR = L_MISC + 6656
L_FR = L_MISC + 8704
L_FL = L_MISC + 1600
F1, F2, F3, FKV, F4, F5, F5B, FCC, F7, F0 = range(10)
L_CT = L_KV
LDS_SIZE = L_MISC + 9216
NPROD = 299
NSLOT = 320
MLP0 = 64
NMLP = 43
HASH_K, HASH_C = 0x9E3779B1, 0x7F4A7C15
SCALE = (128 ** -0.5) * 1.4426950408889634
LOG2E = 1.4426950408889634

sX, sKV, sWQ, sWUK, sWUV, sWO, sW1, sB1, sW2, sGW, sOUT, sWS = 8, 12, 16, 20, 24, 28, 32, 36, 40, 44, 48, 52
sW, sXCD, sR, sHG, sJ, sH, sB, sKC, sNONCE, sE = 56, 57, 58, 59, 60, 61, 62, 63, 64, 65
sT0, sT1, sT2, sT3, sT4, sT5 = 66, 67, 68, 69, 70, 71
sCNT = 72
sCNT2 = 73
sEX = 74
sM0 = 76
sM1 = 78
sTS = 80
sM2, sM3 = 4, 6
POLL_MAX = 20000

def f2u(x):
    import struct
    return struct.unpack("<I", struct.pack("<f", x))[0]

class Cfg:
    nt_w = True
    ts = False
    tsmask = 0x3ff
    prio = True
    wait_kv_first = False
    l_after_m = False
    nt_kv = True
    nt_wq = True
    nt_tail = True
    poll_sleep = 0
    early = False
    no_l = False
    stop = None
    prefetch_code = True

def srd(A, sr, karg_off, size):
    A(f"s_load_dwordx2 {s(sr,2)}, s[0:1], {karg_off}")
def srd_fin(A, sr, size):
    A(f"s_mov_b32 {s(sr+2)}, {hex(size)}")
    A(f"s_mov_b32 {s(sr+3)}, 0x20000")

def estamp(A, cfg, k):
    if cfg.ts and cfg.early:
        A(f"s_memrealtime {s(sTS+2*k,2)}")
        A(f"s_waitcnt lgkmcnt(0)")
def stamp(A, cfg, k, L=False):
    if cfg.early and k >= 3 and not L: return
    if cfg.ts and (cfg.tsmask >> k) & 1:
        A(f"s_memrealtime {s(sTS+2*k,2)}")
        A(f"s_waitcnt lgkmcnt(0)")

vFLA = 3
def arrive(A, f, one):
    A(f"v_mov_b32 {v(one)}, 1")
    A(f"s_mov_b64 {s(sEX,2)}, exec")
    A(f"s_mov_b64 exec, 1")
    A(f"ds_add_u32 {v(vFLA)}, {v(one)} offset:{4*f}")
    A(f"s_mov_b64 exec, {s(sEX,2)}")
def wait_flag(A, f, n, tmp, extra=None):
    lab = A.newlabel("L_fw"); done = A.newlabel("L_fd")
    A(f"s_mov_b32 {s(sCNT2)}, 0")
    A.label(lab)
    A(f"ds_read_b32 {v(tmp)}, {v(vFLA)} offset:{4*f}")
    if extra: extra()
    A(f"s_waitcnt lgkmcnt(0)")
    A(f"v_cmp_gt_u32 vcc, {n}, {v(tmp)}")
    A(f"s_cbranch_vccz {done}")
    A(f"s_add_u32 {s(sCNT2)}, {s(sCNT2)}, 1")
    A(f"s_cmp_lt_u32 {s(sCNT2)}, 2000000")
    A(f"s_cbranch_scc1 {lab}")
    A.label(done)

def xreduce_rows(A, op, x, tmp):
    A(f"v_mov_b32 {v(tmp)}, {v(x)}")
    A(f"v_permlane16_swap_b32 {v(x)}, {v(tmp)}")
    A(f"{op} {v(x)}, {v(x)}, {v(tmp)}")
    A(f"v_mov_b32 {v(tmp)}, {v(x)}")
    A(f"v_permlane32_swap_b32 {v(x)}, {v(tmp)}")
    A(f"{op} {v(x)}, {v(x)}, {v(tmp)}")

def xreduce_rows2(A, op0, x0, t0, op1, x1, t1):
    for sw in ("v_permlane16_swap_b32", "v_permlane32_swap_b32"):
        A(f"v_mov_b32 {v(t0)}, {v(x0)}")
        A(f"v_mov_b32 {v(t1)}, {v(x1)}")
        A(f"{sw} {v(x0)}, {v(t0)}")
        A(f"{sw} {v(x1)}, {v(t1)}")
        A(f"{op0} {v(x0)}, {v(x0)}, {v(t0)}")
        A(f"{op1} {v(x1)}, {v(x1)}, {v(t1)}")

def wave_sum_u32(A, x, t):
    for d in ("quad_perm:[1,0,3,2]", "quad_perm:[2,3,0,1]", "row_half_mirror", "row_mirror"):
        A(f"v_add_u32_dpp {v(x)}, {v(x)}, {v(x)} {d} row_mask:0xf bank_mask:0xf")
    xreduce_rows(A, "v_add_u32", x, t)

def sum_dwords(A, dst, regs):
    regs = list(regs)
    A(f"v_add3_u32 {v(dst)}, {v(regs[0])}, {v(regs[1])}, {v(regs[2])}")
    k = 3
    while k + 1 < len(regs):
        A(f"v_add3_u32 {v(dst)}, {v(dst)}, {v(regs[k])}, {v(regs[k+1])}"); k += 2
    if k < len(regs):
        A(f"v_add_u32 {v(dst)}, {v(dst)}, {v(regs[k])}")

def make_sels(A, vn, vsel, vt):
    A(f"v_and_b32 {v(vt)}, 3, {v(vn)}")
    A(f"v_mov_b32 {v(vt+1)}, 0x0c0c0c0c")
    pats = [(0, 0x0c0c0100, 1, 0x01000c0c), (2, 0x0c0c0100, 3, 0x01000c0c), (0, 0x0c0c0302, 1, 0x03020c0c), (2, 0x0c0c0302, 3, 0x03020c0c)]
    for k, (j0, p0, j1, p1) in enumerate(pats):
        A(f"v_mov_b32 {v(vt+2)}, {hex(p0)}")
        A(f"v_cmp_eq_u32 vcc, {j0}, {v(vt)}")
        A(f"v_cndmask_b32 {v(vsel+k)}, {v(vt+1)}, {v(vt+2)}, vcc")
        A(f"v_mov_b32 {v(vt+2)}, {hex(p1)}")
        A(f"v_cmp_eq_u32 vcc, {j1}, {v(vt)}")
        A(f"v_cndmask_b32 {v(vsel+k)}, {v(vsel+k)}, {v(vt+2)}, vcc")

def sel_gemm_step(A, xp, vsel, af, wreg, dx, dy, first, swap=True):
    if swap:
        A(f"v_swap_b32 {v(wreg+2)}, {v(wreg+4)}")
        A(f"v_swap_b32 {v(wreg+3)}, {v(wreg+5)}")
    for k in range(4):
        A(f"v_perm_b32 {v(af+k)}, {v(xp)}, {v(xp)}, {v(vsel+k)}")
    c0 = "0" if first else v(dx,4)
    c1 = "0" if first else v(dy,4)
    A(f"v_mfma_f32_16x16x32_bf16 {v(dx,4)}, {v(af,4)}, {v(wreg,4)}, {c0}")
    A(f"v_mfma_f32_16x16x32_bf16 {v(dy,4)}, {v(af,4)}, {v(wreg+4,4)}, {c1}")

def poll_head(A, name):
    lab = A.newlabel(name)
    A(f"s_mov_b32 {s(sCNT)}, 0")
    A.label(lab)
    return lab
def poll_tail(A, lab, bad_pair, sleep=0):
    done = A.newlabel("done")
    A(f"s_cmp_eq_u64 {s(bad_pair,2)}, 0")
    A(f"s_cbranch_scc1 {done}")
    if sleep: A(f"s_sleep {sleep}")
    A(f"s_add_u32 {s(sCNT)}, {s(sCNT)}, 1")
    A(f"s_cmp_lt_u32 {s(sCNT)}, {POLL_MAX}")
    A(f"s_cbranch_scc1 {lab}")
    A.label(done)

def publish_final(A, cfg, dx, dy, vscale, vprod_off, vchk_off, pk, t):
    for k in range(4):
        A(f"v_mul_f32 {v(dx+k)}, {v(dx+k)}, {v(vscale)}")
        A(f"v_mul_f32 {v(dy+k)}, {v(dy+k)}, {v(vscale)}")
    A(f"v_cvt_pk_bf16_f32 {v(pk)}, {v(dx)}, {v(dx+1)}")
    A(f"v_cvt_pk_bf16_f32 {v(pk+1)}, {v(dx+2)}, {v(dx+3)}")
    A(f"v_cvt_pk_bf16_f32 {v(pk+2)}, {v(dy)}, {v(dy+1)}")
    A(f"v_cvt_pk_bf16_f32 {v(pk+3)}, {v(dy+2)}, {v(dy+3)}")
    A(f"buffer_store_dwordx4 {v(pk,4)}, {v(vprod_off)}, {s(sWS,4)}, 0 offen sc1")
    sum_dwords(A, t, [pk, pk+1, pk+2, pk+3])
    A(f"v_add_u32_dpp {v(t)}, {v(t)}, {v(t)} quad_perm:[1,0,3,2] row_mask:0xf bank_mask:0xf")
    A(f"v_add_u32_dpp {v(t)}, {v(t)}, {v(t)} quad_perm:[2,3,0,1] row_mask:0xf bank_mask:0xf")
    A(f"v_add_u32 {v(t+1)}, {s(sNONCE)}, {v(t)}")
    A(f"s_mov_b64 {s(sEX,2)}, exec")
    A(f"s_mov_b32 exec_lo, 0x11111111")
    A(f"s_mov_b32 exec_hi, 0x11111111")
    A(f"buffer_store_dwordx2 {v(t,2)}, {v(vchk_off)}, {s(sWS,4)}, 0 offen sc1")
    A(f"s_mov_b64 exec, {s(sEX,2)}")

def final_offsets(A, vn, vq, s_ct, s_prod, voff, vchk, t):
    A(f"v_lshrrev_b32 {v(t)}, 2, {v(vn)}")
    A(f"v_lshl_add_u32 {v(t)}, {v(vq)}, 4, {v(t)}")
    A(f"s_lshl_b32 {s(sT0)}, {s(s_ct)}, 2")
    A(f"v_add_u32 {v(t)}, {s(sT0)}, {v(t)}")
    A(f"s_movk_i32 {s(sT1)}, {NSLOT}")
    A(f"v_mul_lo_u32 {v(t)}, {v(t)}, {s(sT1)}")
    A(f"v_add_u32 {v(t)}, {s(s_prod)}, {v(t)}")
    A(f"v_lshlrev_b32 {v(vchk)}, 3, {v(t)}")
    A(f"v_add_u32 {v(vchk)}, {hex(WS_FC)}, {v(vchk)}")
    A(f"v_and_b32 {v(t+1)}, 3, {v(vn)}")
    A(f"v_lshlrev_b32 {v(t+1)}, 4, {v(t+1)}")
    A(f"v_lshl_add_u32 {v(voff)}, {v(t)}, 6, {v(t+1)}")
    A(f"v_add_u32 {v(voff)}, {hex(WS_FD)}, {v(voff)}")

def gen(cfg):
    A = Asm()
    NT = " nt" if cfg.nt_tail else ""
    NTKV = " nt" if cfg.nt_kv else ""
    NTWQ = " nt" if cfg.nt_wq else ""
    vL, vN, vS = 0, 1, 2
    vSEL = 4
    A(f"s_cmp_ge_u32 s2, 256")
    A(f"s_cbranch_scc1 L_exit")
    for sr, off in ((sX,0),(sWQ,16),(sWUK,24),(sWS,104),(sKV,8),(sWUV,32),(sWO,40),(sW1,56),(sB1,64),(sW2,72),(sGW,80),(sOUT,88)):
        srd(A, sr, off, 0)
    stamp(A, cfg, 0)
    A(f"v_lshrrev_b32 v4, 6, v0")
    A(f"v_and_b32 {v(vL)}, 63, v0")
    A(f"v_readfirstlane_b32 {s(sW)}, v4")
    A(f"v_and_b32 {v(vN)}, 15, {v(vL)}")
    A(f"v_lshrrev_b32 {v(vS)}, 4, {v(vL)}")
    A(f"v_mov_b32 {v(vFLA)}, {L_FL}")
    A(f"v_lshl_add_u32 v40, {v(vN)}, 2, {v(vFLA)}")
    A(f"v_mov_b32 v41, 0")
    A(f"ds_write_b32 v40, v41")
    A(f"s_and_b32 {s(sXCD)}, s2, 7")
    A(f"s_lshr_b32 {s(sR)}, s2, 3")
    A(f"s_and_b32 {s(sHG)}, {s(sR)}, 1")
    A(f"s_bfe_u32 {s(sJ)}, {s(sR)}, 0x30001")
    A(f"s_lshr_b32 {s(sT0)}, {s(sR)}, 4")
    A(f"s_lshl_b32 {s(sT1)}, {s(sXCD)}, 1")
    A(f"s_add_u32 {s(sT1)}, {s(sT1)}, {s(sT0)}")
    A(f"s_lshl_b32 {s(sT0)}, {s(sHG)}, 4")
    A(f"s_add_u32 {s(sH)}, {s(sT0)}, {s(sT1)}")
    A(f"s_lshr_b32 {s(sB)}, {s(sXCD)}, 1")
    A(f"s_and_b32 {s(sT0)}, {s(sXCD)}, 1")
    A(f"s_lshl_b32 {s(sT0)}, {s(sT0)}, 4")
    A(f"s_lshr_b32 {s(sT1)}, {s(sR)}, 1")
    A(f"s_add_u32 {s(sKC)}, {s(sT0)}, {s(sT1)}")
    for sr, size in ((sX,4096),(sWQ,4<<20),(sWUK,4<<20),(sWS,256<<20),(sKV,16<<20),(sWUV,4<<20),(sWO,4<<20),(sW1,512*2752),(sB1,2752),(sW2,1376*1024),(sGW,1024),(sOUT,4096)):
        srd_fin(A, sr, size)
    A(f"s_waitcnt lgkmcnt(0)")
    A(f"s_barrier")
    A(f"s_cmp_ge_u32 {s(sW)}, 4")
    A(f"s_cbranch_scc1 L_Lpath")
    if cfg.prio: A(f"s_setprio 3")
    vXP, vAF0, vAF1, vQX, vQY, vT = 8, 24, 28, 32, 36, 40
    vWUK, vWQ = 64, 128
    vA0, vA1, vA2 = 40, 41, 42
    vE = 44
    A(f"v_lshrrev_b32 {v(vA0)}, 2, {v(vN)}")
    A(f"v_lshlrev_b32 {v(vA0)}, 10, {v(vA0)}")
    A(f"v_lshl_add_u32 {v(vA0)}, {v(vS)}, 6, {v(vA0)}")
    A(f"s_lshl_b32 {s(sT0)}, {s(sW)}, 8")
    A(f"v_add_u32 {v(vA0)}, {s(sT0)}, {v(vA0)}")
    A(f"s_lshl_b32 {s(sT0)}, {s(sW)}, 20")
    A(f"s_lshl_b32 {s(sT1)}, {s(sH)}, 8")
    A(f"s_add_u32 {s(sT0)}, {s(sT0)}, {s(sT1)}")
    A(f"v_lshlrev_b32 {v(vA1)}, 18, {v(vS)}")
    A(f"v_lshl_add_u32 {v(vA1)}, {v(vN)}, 4, {v(vA1)}")
    A(f"v_add_u32 {v(vA1)}, {s(sT0)}, {v(vA1)}")
    A(f"v_lshrrev_b32 {v(vA2)}, 2, {v(vN)}")
    A(f"v_lshlrev_b32 {v(vA2)}, 4, {v(vA2)}")
    A(f"v_and_b32 v43, 3, {v(vN)}")
    A(f"v_add_u32 {v(vA2)}, {v(vA2)}, v43")
    A(f"v_lshlrev_b32 {v(vA2)}, 13, {v(vA2)}")
    A(f"v_lshl_add_u32 {v(vA2)}, {v(vS)}, 4, {v(vA2)}")
    A(f"s_lshl_b32 {s(sT0)}, {s(sJ)}, 19")
    A(f"s_add_u32 {s(sT0)}, {s(sT0)}, {s(sT1)}")
    A(f"v_add_u32 {v(vA2)}, {s(sT0)}, {v(vA2)}")
    A(f"v_mov_b32 v43, 0")
    A(f"s_waitcnt lgkmcnt(0)")
    estamp(A, cfg, 3)
    A(f"buffer_load_dword {v(vE)}, v43, {s(sWS,4)}, 0 offen sc1")
    for k in range(4):
        A(f"buffer_load_dwordx4 {v(vXP+4*k,4)}, {v(vA0)}, {s(sX,4)}, 0 offen offset:{16*k}")
    A(f"s_cmp_lg_u32 {s(sW)}, 0")
    A(f"s_cbranch_scc1 L_nowuk")
    A(f"s_mov_b32 {s(sT2)}, 0")
    for T in range(4):
        for t in range(4):
            A(f"buffer_load_dwordx4 {v(vWUK+16*T+4*t,4)}, {v(vA2)}, {s(sWUK,4)}, {s(sT2)} offen offset:{64*t}{NTWQ}")
        if T < 3: A(f"s_add_u32 {s(sT2)}, {s(sT2)}, 32768")
    A.label("L_nowuk")
    A(f"s_mov_b32 {s(sT2)}, 0")
    for k in range(32):
        A(f"buffer_load_dwordx4 {v(vWQ+4*k,4)}, {v(vA1)}, {s(sWQ,4)}, {s(sT2)} offen{NTWQ}")
        if k < 31: A(f"s_add_u32 {s(sT2)}, {s(sT2)}, 8192")
    estamp(A, cfg, 4)
    if cfg.l_after_m: arrive(A, F0, 43)
    make_sels(A, vN, vSEL, vT)
    A(f"s_waitcnt vmcnt(32)")
    A(f"v_readfirstlane_b32 {s(sE)}, {v(vE)}")
    A(f"s_mul_i32 {s(sNONCE)}, {s(sE)}, {hex(HASH_K)}")
    A(f"s_add_u32 {s(sNONCE)}, {s(sNONCE)}, {hex(HASH_C)}")
    for t in range(16):
        A(f"s_waitcnt vmcnt({30-2*t})")
        if t == 0: estamp(A, cfg, 5)
        if t == 8: estamp(A, cfg, 6)
        if t == 15: estamp(A, cfg, 7)
        sel_gemm_step(A, vXP+t, vSEL, vAF0 if t % 2 == 0 else vAF1, vWQ+8*t, vQX, vQY, t == 0)
    stamp(A, cfg, 1)
    A(f"v_lshlrev_b32 {v(vA0)}, 9, {v(vS)}")
    A(f"v_lshl_add_u32 {v(vA0)}, {v(vN)}, 5, {v(vA0)}")
    A(f"s_lshl_b32 {s(sT0)}, {s(sW)}, 11")
    A(f"s_add_u32 {s(sT0)}, {s(sT0)}, {L_RED}")
    A(f"v_add_u32 {v(vA0)}, {s(sT0)}, {v(vA0)}")
    A(f"ds_write_b128 {v(vA0)}, {v(vQX,4)}")
    A(f"ds_write_b128 {v(vA0)}, {v(vQY,4)} offset:16")
    arrive(A, F1, 43)
    A(f"s_lshl_b32 {s(sT0)}, {s(sW)}, 6")
    A(f"v_add_u32 {v(vA1)}, {s(sT0)}, {v(vL)}")
    A(f"v_lshlrev_b32 {v(vA0)}, 3, {v(vA1)}")
    A(f"v_add_u32 {v(vA0)}, {L_RED}, {v(vA0)}")
    A(f"v_lshlrev_b32 {v(vA1)}, 2, {v(vA1)}")
    A(f"v_add_u32 {v(vA1)}, {L_QB}, {v(vA1)}")
    def _rd():
        for ww in range(4):
            A(f"ds_read_b64 {v(44+2*ww,2)}, {v(vA0)} offset:{2048*ww}")
    wait_flag(A, F1, 4, 43, _rd)
    A(f"v_add_f32 v44, v44, v46")
    A(f"v_add_f32 v45, v45, v47")
    A(f"v_add_f32 v48, v48, v50")
    A(f"v_add_f32 v49, v49, v51")
    A(f"v_add_f32 v44, v44, v48")
    A(f"v_add_f32 v45, v45, v49")
    A(f"v_cvt_pk_bf16_f32 v44, v44, v45")
    A(f"ds_write_b32 {v(vA1)}, v44")
    arrive(A, F2, 43)
    A(f"s_cmp_lg_u32 {s(sW)}, 0")
    A(f"s_cbranch_scc1 L_noqabs")
    vQF4 = 128
    vD = 144
    vPK = 160
    A(f"v_and_b32 {v(vA0)}, 3, {v(vN)}")
    A(f"v_lshlrev_b32 {v(vA0)}, 8, {v(vA0)}")
    A(f"v_lshl_add_u32 {v(vA0)}, {v(vS)}, 4, {v(vA0)}")
    A(f"v_add_u32 {v(vA0)}, {L_QB}, {v(vA0)}")
    A(f"s_and_b32 {s(sT0)}, {s(sH)}, 15")
    A(f"s_lshl_b32 {s(sT1)}, {s(sHG)}, 4")
    A(f"s_add_u32 {s(sT0)}, {s(sT0)}, {s(sT1)}")
    A(f"v_lshl_add_u32 {v(vA1)}, {v(vN)}, 5, {s(sT0)}")
    A(f"v_lshlrev_b32 {v(vA2)}, 3, {v(vA1)}")
    A(f"v_add_u32 {v(vA2)}, {s(sJ)}, {v(vA2)}")
    A(f"v_lshlrev_b32 {v(vA2)}, 3, {v(vA2)}")
    A(f"v_add_u32 {v(vA2)}, {hex(WS_QC)}, {v(vA2)}")
    A(f"v_lshlrev_b32 {v(vA1)}, 10, {v(vA1)}")
    A(f"v_lshl_add_u32 {v(vA1)}, {v(vS)}, 5, {v(vA1)}")
    A(f"s_lshl_b32 {s(sT0)}, {s(sJ)}, 7")
    A(f"s_add_u32 {s(sT0)}, {s(sT0)}, {hex(WS_QA)}")
    A(f"v_add_u32 {v(vA1)}, {s(sT0)}, {v(vA1)}")
    def _rd():
        for t in range(4):
            A(f"ds_read_b128 {v(vQF4+4*t,4)}, {v(vA0)} offset:{64*t}")
    wait_flag(A, F2, 4, 43, _rd)
    for t in range(4):
        for T in range(4):
            c = "0" if t == 0 else v(vD+4*T,4)
            A(f"v_mfma_f32_16x16x32_bf16 {v(vD+4*T,4)}, {v(vWUK+16*T+4*t,4)}, {v(vQF4+4*t,4)}, {c}")
    A(f"s_mov_b32 {s(sT0)}, {hex(f2u(SCALE))}")
    for k in range(16):
        A(f"v_mul_f32 {v(vD+k)}, {s(sT0)}, {v(vD+k)}")
    for k in range(8):
        A(f"v_cvt_pk_bf16_f32 {v(vPK+k)}, {v(vD+2*k)}, {v(vD+2*k+1)}")
    A(f"s_mov_b64 {s(sEX,2)}, exec")
    A(f"s_mov_b32 exec_lo, 0x000f000f")
    A(f"s_mov_b32 exec_hi, 0x000f000f")
    A(f"buffer_store_dwordx4 {v(vPK,4)}, {v(vA1)}, {s(sWS,4)}, 0 offen sc1")
    A(f"buffer_store_dwordx4 {v(vPK+4,4)}, {v(vA1)}, {s(sWS,4)}, 0 offen offset:16 sc1")
    A(f"s_mov_b64 exec, {s(sEX,2)}")
    sum_dwords(A, 44, range(vPK, vPK+8))
    xreduce_rows(A, "v_add_u32", 44, 46)
    A(f"v_add_u32 v45, {s(sNONCE)}, v44")
    A(f"s_mov_b64 exec, 0xf")
    A(f"buffer_store_dwordx2 v[44:45], {v(vA2)}, {s(sWS,4)}, 0 offen sc1")
    A(f"s_mov_b64 exec, {s(sEX,2)}")
    A.label("L_noqabs")
    stamp(A, cfg, 2)
    vQG, vQC = 64, 80
    A(f"s_lshl_b32 {s(sT0)}, {s(sB)}, 1")
    A(f"s_add_u32 {s(sT0)}, {s(sT0)}, {s(sHG)}")
    A(f"s_lshl_b32 {s(sT0)}, {s(sT0)}, 4")
    A(f"s_lshl_b32 {s(sT1)}, {s(sW)}, 2")
    A(f"s_add_u32 {s(sT0)}, {s(sT0)}, {s(sT1)}")
    A(f"s_lshl_b32 {s(sT1)}, {s(sT0)}, 10")
    A(f"s_add_u32 {s(sT1)}, {s(sT1)}, {hex(WS_QA)}")
    A(f"v_lshl_add_u32 {v(vA0)}, {v(vL)}, 4, {s(sT1)}")
    A(f"s_lshl_b32 {s(sT1)}, {s(sT0)}, 6")
    A(f"s_add_u32 {s(sT1)}, {s(sT1)}, {hex(WS_QC)}")
    A(f"v_lshl_add_u32 {v(vA1)}, {v(vL)}, 3, {s(sT1)}")
    A(f"v_cmp_lt_u32 {s(sM0,2)}, {v(vL)}, 32")
    A(f"v_mov_b32 v43, 0x7ffffff0")
    A(f"v_cndmask_b32 {v(vA1)}, v43, {v(vA1)}, {s(sM0,2)}")
    A(f"s_mul_i32 {s(sT1)}, {s(sW)}, {4*PITCH}")
    A(f"s_add_u32 {s(sT1)}, {s(sT1)}, {L_QL}")
    A(f"v_lshl_add_u32 {v(vA2)}, {v(vL)}, 4, {s(sT1)}")
    if cfg.wait_kv_first: wait_flag(A, FKV, 4, 44)
    lab = poll_head(A, "L_hop2")
    for i in range(4):
        A(f"buffer_load_dwordx4 {v(vQG+4*i,4)}, {v(vA0)}, {s(sWS,4)}, 0 offen offset:{1024*i} sc1")
    A(f"buffer_load_dwordx2 {v(vQC,2)}, {v(vA1)}, {s(sWS,4)}, 0 offen sc1")
    A(f"s_waitcnt vmcnt(0)")
    sum_dwords(A, 44, range(vQG, vQG+16))
    A(f"v_sub_u32 v44, v44, {v(vQC)}")
    A(f"v_add_u32 v45, {s(sNONCE)}, {v(vQC)}")
    A(f"v_cmp_ne_u32 vcc, v45, {v(vQC+1)}")
    wave_sum_u32(A, 44, 46)
    A(f"s_and_b64 {s(sM1,2)}, vcc, {s(sM0,2)}")
    A(f"v_cmp_ne_u32 vcc, 0, v44")
    A(f"s_or_b64 {s(sM1,2)}, {s(sM1,2)}, vcc")
    poll_tail(A, lab, sM1, cfg.poll_sleep)
    for i in range(4):
        A(f"ds_write_b128 {v(vA2)}, {v(vQG+4*i,4)} offset:{PITCH*i}")
    arrive(A, F3, 43)
    stamp(A, cfg, 3)
    vW1, vW2, vB1 = 192, 224, 56
    A(f"s_sub_u32 {s(sT4)}, s2, {MLP0}")
    A(f"s_cmp_ge_u32 {s(sT4)}, {NMLP}")
    A(f"s_cbranch_scc1 L_nomlpload")
    A(f"s_lshl_b32 {s(sT0)}, {s(sW)}, 7")
    A(f"v_lshl_add_u32 {v(vA0)}, {v(vS)}, 5, {s(sT0)}")
    A(f"s_movk_i32 {s(sT1)}, 2752")
    A(f"v_mul_lo_u32 {v(vA0)}, {v(vA0)}, {s(sT1)}")
    A(f"s_lshl_b32 {s(sT0)}, {s(sT4)}, 6")
    A(f"v_lshl_add_u32 {v(vA0)}, {v(vN)}, 2, {v(vA0)}")
    A(f"v_add_u32 {v(vA0)}, {s(sT0)}, {v(vA0)}")
    A(f"s_mov_b32 {s(sT2)}, 0")
    for k in range(32):
        A(f"buffer_load_dword {v(vW1+k)}, {v(vA0)}, {s(sW1,4)}, {s(sT2)} offen{NT}")
        if k < 31: A(f"s_add_u32 {s(sT2)}, {s(sT2)}, 2752")
    A(f"s_lshl_b32 {s(sT0)}, {s(sT4)}, 15")
    A(f"s_lshl_b32 {s(sT1)}, {s(sW)}, 8")
    A(f"s_add_u32 {s(sT0)}, {s(sT0)}, {s(sT1)}")
    A(f"v_lshlrev_b32 {v(vA0)}, 13, {v(vS)}")
    A(f"v_lshl_add_u32 {v(vA0)}, {v(vN)}, 4, {v(vA0)}")
    A(f"v_add_u32 {v(vA0)}, {s(sT0)}, {v(vA0)}")
    A(f"s_movk_i32 {s(sT2)}, 4096")
    for k in range(8):
        so = "0" if k < 4 else s(sT2)
        A(f"buffer_load_dwordx4 {v(vW2+4*k,4)}, {v(vA0)}, {s(sW2,4)}, {so} offen offset:{1024*(k%4)}{NT}")
    A(f"s_lshl_b32 {s(sT0)}, {s(sT4)}, 6")
    A(f"v_lshl_add_u32 {v(vA0)}, {v(vS)}, 4, {s(sT0)}")
    A(f"buffer_load_dwordx4 {v(vB1,4)}, {v(vA0)}, {s(sB1,4)}, 0 offen")
    A.label("L_nomlpload")
    vQF = 64
    vKE, vKO = 40, 41
    vQE, vQO = 42, 43
    A(f"s_movk_i32 {s(sT1)}, {PITCH}")
    A(f"v_mul_lo_u32 v44, {v(vN)}, {s(sT1)}")
    A(f"v_lshl_add_u32 v44, {v(vS)}, 8, v44")
    A(f"v_and_b32 v45, 1, {v(vS)}")
    A(f"v_lshlrev_b32 v45, 4, v45")
    A(f"v_add_u32 {v(vQE)}, v44, v45")
    A(f"v_sub_u32 {v(vQO)}, v44, v45")
    A(f"s_mul_i32 {s(sT0)}, {s(sW)}, {32*PITCH}")
    A(f"v_add_u32 {v(vKE)}, {s(sT0)}, {v(vQE)}")
    A(f"v_add_u32 {v(vKO)}, {s(sT0)}, {v(vQO)}")
    A(f"v_add_u32 {v(vQE)}, {L_QL}, {v(vQE)}")
    A(f"v_add_u32 {v(vQO)}, {L_QL}, {v(vQO)}")
    wait_flag(A, F3, 4, 44)
    for t in range(16):
        if t == 12: A(f"s_waitcnt lgkmcnt(8)")
        A(f"ds_read_b128 {v(vQF+4*t,4)}, {v(vQE if t%2==0 else vQO)} offset:{16*t}")
    wait_flag(A, FKV, 4, 44)
    stamp(A, cfg, 4)
    vRING = 128
    vS0, vS1 = 32, 36
    LOOK = 6
    def kvread(t, tt):
        slot = (2*t+tt) % 16
        A(f"ds_read_b128 {v(vRING+4*slot,4)}, {v(vKE if t%2==0 else vKO)} offset:{16*t + tt*16*PITCH}")
    for t in range(LOOK):
        kvread(t,0); kvread(t,1)
    for t in range(16):
        rem = min(LOOK-1, 15-t)
        A(f"s_waitcnt lgkmcnt({2*rem})")
        for tt in range(2):
            slot = (2*t+tt) % 16
            acc = vS0 if tt == 0 else vS1
            c = "0" if t == 0 else v(acc,4)
            A(f"v_mfma_f32_16x16x32_bf16 {v(acc,4)}, {v(vRING+4*slot,4)}, {v(vQF+4*t,4)}, {c}")
        if t + LOOK < 16:
            kvread(t+LOOK,0); kvread(t+LOOK,1)
    vM, vTm = 44, 45
    vPA0, vPA1 = 40, 41
    A(f"v_lshrrev_b32 v46, 2, {v(vL)}")
    A(f"s_movk_i32 {s(sT1)}, {PITCH}")
    A(f"v_mul_lo_u32 v46, v46, {s(sT1)}")
    A(f"v_and_b32 v47, 3, {v(vL)}")
    A(f"v_lshl_add_u32 v46, v47, 3, v46")
    A(f"s_lshl_b32 {s(sT0)}, {s(sW)}, 8")
    A(f"v_add_u32 {v(vPA0)}, {s(sT0)}, v46")
    A(f"v_add_u32 {v(vPA1)}, {64*PITCH}, {v(vPA0)}")
    A(f"v_lshlrev_b32 v42, 4, {v(vN)}")
    A(f"v_add_u32 v42, {L_MX}, v42")
    A(f"s_lshl_b32 {s(sT0)}, {s(sW)}, 2")
    A(f"v_add_u32 v43, {s(sT0)}, v42")
    A(f"v_max3_f32 {v(vM)}, {v(vS0)}, {v(vS0+1)}, {v(vS0+2)}")
    A(f"v_max3_f32 {v(vM)}, {v(vM)}, {v(vS0+3)}, {v(vS1)}")
    A(f"v_max3_f32 {v(vM)}, {v(vM)}, {v(vS1+1)}, {v(vS1+2)}")
    A(f"v_max_f32 {v(vM)}, {v(vM)}, {v(vS1+3)}")
    xreduce_rows(A, "v_max_f32", vM, vTm)
    A(f"ds_write_b32 v43, {v(vM)}")
    arrive(A, F4, 47)
    wait_flag(A, F4, 4, 47, lambda: A(f"ds_read_b128 v[48:51], v42"))
    def pvread(g, T):
        slot = (g*8+T) % 16
        base = vPA0 if g < 2 else vPA1
        off = (32*(g%2))*PITCH + T*32
        A(f"ds_read_b64_tr_b16 {v(vRING+4*slot,2)}, {v(base)} offset:{off}")
        A(f"ds_read_b64_tr_b16 {v(vRING+4*slot+2,2)}, {v(base)} offset:{off+16*PITCH}")
    PRE = 6
    for k in range(PRE): pvread(k//8, k%8)
    A(f"v_max3_f32 {v(vM)}, v48, v49, v50")
    A(f"v_max_f32 {v(vM)}, {v(vM)}, v51")
    for k in range(8):
        A(f"v_sub_f32 {v(vS0+k)}, {v(vS0+k)}, {v(vM)}")
    for k in range(8):
        A(f"v_exp_f32 {v(vS0+k)}, {v(vS0+k)}")
    vLs = 46
    A(f"v_add_f32 {v(vLs)}, {v(vS0)}, {v(vS0+1)}")
    A(f"v_add_f32 v47, {v(vS0+2)}, {v(vS0+3)}")
    A(f"v_add_f32 v48, {v(vS0+4)}, {v(vS0+5)}")
    A(f"v_add_f32 v49, {v(vS0+6)}, {v(vS0+7)}")
    for k in range(4):
        A(f"v_cvt_pk_bf16_f32 {v(52+k)}, {v(vS0+2*k)}, {v(vS0+2*k+1)}")
    A(f"v_add_f32 {v(vLs)}, {v(vLs)}, v47")
    A(f"v_add_f32 v48, v48, v49")
    A(f"v_add_f32 {v(vLs)}, {v(vLs)}, v48")
    A(f"v_lshlrev_b32 v60, 4, {v(vL)}")
    A(f"v_add_u32 v60, {L_PB}, v60")
    A(f"s_lshl_b32 {s(sT0)}, {s(sW)}, 10")
    A(f"v_add_u32 v61, {s(sT0)}, v60")
    A(f"ds_write_b128 v61, v[52:55]")
    xreduce_rows(A, "v_add_f32", vLs, 47)
    A(f"ds_write_b32 v43, {v(vLs)} offset:{L_LS-L_MX}")
    arrive(A, F5, 47)
    vPF, vO = 64, 80
    def _rd():
        for g in range(4):
            A(f"ds_read_b128 {v(vPF+4*g,4)}, v60 offset:{1024*g}")
        A(f"ds_read_b128 v[48:51], v42 offset:{L_LS-L_MX}")
    wait_flag(A, F5, 4, 47, _rd)
    nxt = PRE
    outstanding = []
    def issue(k):
        pvread(k//8, k%8); outstanding.extend([("f",k),("f",k)])
    while len(outstanding) + 2 <= 15:
        issue(nxt); nxt += 1
    for k in range(32):
        g, T = k//8, k%8
        need_idx = -1
        for idx, o in enumerate(outstanding):
            if o == "P" and k == 0: need_idx = max(need_idx, idx)
            if o == ("f",k): need_idx = max(need_idx, idx)
        can = nxt < 32 and nxt <= k + 15
        if can:
            need_idx = max(need_idx, len(outstanding) + 2 - 15 - 1)
        if need_idx >= 0:
            n_after = len(outstanding) - 1 - need_idx
            A(f"s_waitcnt lgkmcnt({n_after})")
            del outstanding[:need_idx+1]
        slot = k % 16
        c = "0" if g == 0 else v(vO+4*T,4)
        A(f"v_mfma_f32_16x16x32_bf16 {v(vO+4*T,4)}, {v(vRING+4*slot,4)}, {v(vPF+4*g,4)}, {c}")
        if can:
            issue(nxt); nxt += 1
    if outstanding: A(f"s_waitcnt lgkmcnt(0)")
    stamp(A, cfg, 5)
    vPK = 112
    A(f"v_add_f32 v48, v48, v49")
    A(f"v_add_f32 v50, v50, v51")
    A(f"v_add_f32 v47, v48, v50")
    A(f"s_lshl_b32 {s(sT0)}, {s(sHG)}, 4")
    A(f"v_add_u32 v48, {s(sT0)}, {v(vN)}")
    A(f"v_lshlrev_b32 v48, 10, v48")
    A(f"s_lshl_b32 {s(sT0)}, {s(sW)}, 8")
    A(f"s_lshl_b32 {s(sT1)}, {s(sB)}, 5")
    A(f"s_add_u32 {s(sT0)}, {s(sT0)}, {s(sT1)}")
    A(f"s_add_u32 {s(sT0)}, {s(sT0)}, {s(sKC)}")
    A(f"v_add_u32 v48, {s(sT0)}, v48")
    A(f"v_and_b32 v49, 1, {v(vS)}")
    A(f"v_lshlrev_b32 v49, 1, v49")
    A(f"v_lshrrev_b32 v50, 1, {v(vS)}")
    A(f"v_add_u32 v49, v49, v50")
    A(f"v_lshlrev_b32 v49, 4, v49")
    A(f"v_lshl_add_u32 v49, v48, 7, v49")
    A(f"v_add_u32 v49, {hex(WS_OP)}, v49")
    A(f"v_add_u32 v50, {128*128}, v49")
    A(f"v_lshl_add_u32 v48, {v(vS)}, 7, v48")
    A(f"v_lshlrev_b32 v48, 4, v48")
    A(f"v_add_u32 v48, {hex(WS_ST)}, v48")
    for T in range(8):
        A(f"v_cvt_pk_bf16_f32 {v(vPK+2*T)}, {v(vO+4*T)}, {v(vO+4*T+1)}")
        A(f"v_cvt_pk_bf16_f32 {v(vPK+2*T+1)}, {v(vO+4*T+2)}, {v(vO+4*T+3)}")
    for p in range(4):
        A(f"v_permlane16_swap_b32 {v(vPK+4*p)}, {v(vPK+4*p+2)}")
        A(f"v_permlane16_swap_b32 {v(vPK+4*p+1)}, {v(vPK+4*p+3)}")
    for p in range(4):
        base = 49 if p < 2 else 50
        A(f"buffer_store_dwordx4 {v(vPK+4*p,4)}, {v(base)}, {s(sWS,4)}, 0 offen offset:{64*(p%2)} sc1")
    sum_dwords(A, 52, range(vPK, vPK+8))
    sum_dwords(A, 53, range(vPK+8, vPK+16))
    xreduce_rows2(A, "v_add_u32", 52, 54, "v_add_u32", 53, 55)
    A(f"v_cmp_eq_u32 vcc, 1, {v(vS)}")
    A(f"v_mov_b32 v60, {v(vM)}")
    A(f"v_mov_b32 v61, v47")
    A(f"v_cndmask_b32 v62, v52, v53, vcc")
    A(f"v_add3_u32 v63, v60, v61, v62")
    A(f"v_add_u32 v63, {s(sNONCE)}, v63")
    A(f"s_mov_b64 {s(sEX,2)}, exec")
    A(f"s_mov_b32 exec_hi, 0")
    A(f"buffer_store_dwordx4 v[60:63], v48, {s(sWS,4)}, 0 offen sc1")
    A(f"s_mov_b64 exec, {s(sEX,2)}")
    stamp(A, cfg, 6)
    A(f"s_cmp_ge_u32 {s(sT4)}, {NMLP}")
    A(f"s_cbranch_scc1 L_nomlp")
    vHX = 32
    vSL0, vSL1 = 44, 45
    A(f"v_and_b32 v46, 1, {v(vN)}")
    A(f"v_cmp_eq_u32 vcc, 0, v46")
    A(f"v_mov_b32 v46, 0x01000c0c")
    A(f"v_mov_b32 v47, 0x0c0c0100")
    A(f"v_cndmask_b32 {v(vSL0)}, v46, v47, vcc")
    A(f"v_mov_b32 v46, 0x03020c0c")
    A(f"v_mov_b32 v47, 0x0c0c0302")
    A(f"v_cndmask_b32 {v(vSL1)}, v46, v47, vcc")
    A(f"s_waitcnt vmcnt(5)")
    for t in range(8):
        af = vAF0 if t % 2 == 0 else vAF1
        for rr in range(4):
            A(f"v_perm_b32 {v(af+rr)}, {v(vXP+2*t+(rr>>1))}, {v(vXP+2*t+(rr>>1))}, {v(vSL0 if rr%2==0 else vSL1)}")
        c = "0" if t == 0 else v(vHX,4)
        A(f"v_mfma_f32_16x16x32_bf16 {v(vHX,4)}, {v(af,4)}, {v(vW1+4*t,4)}, {c}")
    A(f"v_lshlrev_b32 v46, 7, {v(vS)}")
    A(f"v_lshl_add_u32 v46, {v(vN)}, 3, v46")
    A(f"s_lshl_b32 {s(sT0)}, {s(sW)}, 9")
    A(f"s_add_u32 {s(sT0)}, {s(sT0)}, {L_HR}")
    A(f"v_add_u32 v46, {s(sT0)}, v46")
    A(f"ds_write_b64 v46, {v(vHX,2)}")
    arrive(A, F5B, 47)
    A(f"v_lshrrev_b32 v46, 2, {v(vN)}")
    A(f"v_lshlrev_b32 v47, 7, v46")
    A(f"v_lshl_add_u32 v47, {v(vS)}, 5, v47")
    A(f"v_add_u32 v47, {L_HR}, v47")
    vH = 128
    A(f"v_lshlrev_b32 v48, 2, {v(vS)}")
    A(f"v_add_u32 v48, {L_G}, v48")
    def _rd():
        for ww in range(4):
            A(f"ds_read_b128 {v(vH+8*ww,4)}, v47 offset:{512*ww}")
            A(f"ds_read_b128 {v(vH+8*ww+4,4)}, v47 offset:{512*ww+16}")
        A(f"ds_read_b32 v49, v48")
    wait_flag(A, F5B, 4, 46, _rd)
    for e in range(8):
        A(f"v_add_f32 {v(vH+e)}, {v(vH+e)}, {v(vH+8+e)}")
        A(f"v_add_f32 {v(vH+16+e)}, {v(vH+16+e)}, {v(vH+24+e)}")
    for e in range(8):
        A(f"v_add_f32 {v(vH+e)}, {v(vH+e)}, {v(vH+16+e)}")
    for e in range(8):
        r = vB1 + e//2
        if e % 2 == 0: A(f"v_lshlrev_b32 {v(vH+8+e)}, 16, {v(r)}")
        else: A(f"v_and_b32 {v(vH+8+e)}, 0xffff0000, {v(r)}")
    for e in range(8):
        A(f"v_add_f32 {v(vH+e)}, {v(vH+e)}, {v(vH+8+e)}")
    A(f"s_mov_b32 {s(sT0)}, {hex(f2u(-LOG2E))}")
    for e in range(8):
        A(f"v_mul_f32 {v(vH+8+e)}, {s(sT0)}, abs({v(vH+e)})")
    for e in range(8):
        A(f"v_exp_f32 {v(vH+8+e)}, {v(vH+8+e)}")
    for e in range(8):
        a_, h_, n_, d_ = vH+8+e, vH+e, vH+16+e, vH+24+e
        A(f"v_cmp_lt_f32 vcc, 0, {v(h_)}")
        A(f"v_mul_f32 {v(d_)}, {v(a_)}, {v(a_)}")
        A(f"v_cndmask_b32 {v(n_)}, {v(d_)}, 1.0, vcc")
        A(f"v_fma_f32 {v(n_)}, 2.0, {v(a_)}, {v(n_)}")
        A(f"v_cndmask_b32 {v(d_)}, 1.0, {v(d_)}, vcc")
        A(f"v_fma_f32 {v(d_)}, 2.0, {v(d_)}, {v(n_)}")
        A(f"v_rcp_f32 {v(d_)}, {v(d_)}")
        A(f"v_mul_f32 {v(n_)}, {v(n_)}, {v(h_)}")
        A(f"v_mul_f32 {v(h_)}, {v(n_)}, {v(d_)}")
    vAP = 48+4
    for k in range(4):
        A(f"v_cvt_pk_bf16_f32 {v(vAP+k)}, {v(vH+2*k)}, {v(vH+2*k+1)}")
    A(f"v_sub_f32 v49, 1.0, v49")
    for t in range(4):
        sel_gemm_step(A, vAP+t, vSEL, vAF0 if t % 2 == 0 else vAF1, vW2+8*t, vQX, vQY, t == 0)
    A(f"s_add_u32 {s(sT5)}, {s(sT4)}, 256")
    final_offsets(A, vN, vS, sW, sT5, 46, 47, 60)
    publish_final(A, cfg, vQX, vQY, 49, 46, 47, 40, 50)
    A.label("L_nomlp")
    vOD, vST = 128, 144
    A(f"s_lshl_b32 {s(sT0)}, {s(sH)}, 3")
    A(f"s_add_u32 {s(sT0)}, {s(sT0)}, {s(sJ)}")
    A(f"s_lshl_b32 {s(sT0)}, {s(sT0)}, 2")
    A(f"s_add_u32 {s(sT0)}, {s(sT0)}, {s(sW)}")
    A(f"s_lshl_b32 {s(sT0)}, {s(sT0)}, 5")
    A(f"s_lshl_b32 {s(sT1)}, {s(sT0)}, 7")
    A(f"s_add_u32 {s(sT1)}, {s(sT1)}, {hex(WS_OP)}")
    A(f"v_lshl_add_u32 v40, {v(vL)}, 4, {s(sT1)}")
    A(f"s_lshl_b32 {s(sT1)}, {s(sT0)}, 4")
    A(f"s_add_u32 {s(sT1)}, {s(sT1)}, {hex(WS_ST)}")
    A(f"v_and_b32 v41, 31, {v(vL)}")
    A(f"v_lshl_add_u32 v41, v41, 4, {s(sT1)}")
    A(f"v_cmp_gt_u32 {s(sM0,2)}, 32, {v(vL)}")
    A(f"v_bfe_u32 v42, {v(vN)}, 2, 1")
    A(f"v_lshl_add_u32 v42, {v(vS)}, 1, v42")
    A(f"v_lshlrev_b32 v42, 2, v42")
    lab = poll_head(A, "L_hop3")
    for i in range(4):
        A(f"buffer_load_dwordx4 {v(vOD+4*i,4)}, v40, {s(sWS,4)}, 0 offen offset:{1024*i} sc1")
    A(f"buffer_load_dwordx4 {v(vST,4)}, v41, {s(sWS,4)}, 0 offen sc1")
    A(f"s_waitcnt vmcnt(0)")
    sum_dwords(A, 44, range(vOD, vOD+16))
    A(f"v_cndmask_b32 v45, 0, {v(vST+2)}, {s(sM0,2)}")
    A(f"v_sub_u32 v44, v44, v45")
    A(f"v_add3_u32 v45, {v(vST)}, {v(vST+1)}, {v(vST+2)}")
    A(f"v_add_u32 v45, {s(sNONCE)}, v45")
    A(f"v_cmp_ne_u32 {s(sM1,2)}, v45, {v(vST+3)}")
    wave_sum_u32(A, 44, 46)
    A(f"v_cmp_ne_u32 vcc, 0, v44")
    A(f"s_or_b64 {s(sM1,2)}, {s(sM1,2)}, vcc")
    poll_tail(A, lab, sM1, cfg.poll_sleep)
    stamp(A, cfg, 7)
    A(f"v_mov_b32 v44, {v(vST)}")
    for d in ("quad_perm:[1,0,3,2]", "quad_perm:[2,3,0,1]", "row_half_mirror", "row_mirror"):
        A(f"v_max_f32_dpp v44, v44, v44 {d} row_mask:0xf bank_mask:0xf")
    A(f"v_mov_b32 v46, v44")
    A(f"v_permlane16_swap_b32 v44, v46")
    A(f"v_max_f32 v44, v44, v46")
    A(f"v_sub_f32 v44, {v(vST)}, v44")
    A(f"v_exp_f32 v44, v44")
    A(f"v_mul_f32 v45, v44, {v(vST+1)}")
    for d in ("quad_perm:[1,0,3,2]", "quad_perm:[2,3,0,1]", "row_half_mirror", "row_mirror"):
        A(f"v_add_f32_dpp v45, v45, v45 {d} row_mask:0xf bank_mask:0xf")
    A(f"v_mov_b32 v46, v45")
    A(f"v_permlane16_swap_b32 v45, v46")
    A(f"v_add_f32 v45, v45, v46")
    A(f"v_rcp_f32 v45, v45")
    A(f"v_mul_f32 v44, v44, v45")
    for k in range(4):
        A(f"ds_bpermute_b32 {v(48+k)}, v42, v44 offset:{32*k}")
    A(f"s_waitcnt lgkmcnt(0)")
    A(f"v_cvt_pk_bf16_f32 v52, v48, v49")
    A(f"v_cvt_pk_bf16_f32 v53, v50, v51")
    for t in range(2):
        sel_gemm_step(A, 52+t, vSEL, vAF0 if t % 2 == 0 else vAF1, vOD+8*t, vQX, vQY, t == 0)
    for k in range(8):
        A(f"v_permlane16_swap_b32 {v(vQX+k)}, {v(56+k)}")
    for k in range(8):
        A(f"v_add_f32_dpp {v(56+k)}, {v(56+k)}, {v(vQX+k)} row_ror:8 row_mask:0xf bank_mask:0xf")
    for k in range(4):
        A(f"v_cvt_pk_bf16_f32 {v(48+k)}, {v(56+2*k)}, {v(56+2*k+1)}")
    A(f"s_lshl_b32 {s(sT0)}, {s(sW)}, 7")
    A(f"s_add_u32 {s(sT0)}, {s(sT0)}, {L_CC}")
    A(f"v_lshl_add_u32 v46, {v(vL)}, 4, {s(sT0)}")
    A(f"s_mov_b64 {s(sEX,2)}, exec")
    A(f"s_mov_b64 exec, 0xff")
    A(f"ds_write_b128 v46, v[48:51]")
    A(f"s_mov_b64 exec, {s(sEX,2)}")
    arrive(A, FCC, 47)
    stamp(A, cfg, 8)
    A(f"s_cmp_ge_u32 s2, 64")
    A(f"s_cbranch_scc1 L_Mdone")
    vFD, vFC = 128, 152
    A(f"s_mul_i32 {s(sT0)}, s2, {NSLOT}")
    A(f"s_mul_i32 {s(sT1)}, {s(sW)}, 80")
    A(f"s_add_u32 {s(sT0)}, {s(sT0)}, {s(sT1)}")
    A(f"s_lshl_b32 {s(sT2)}, {s(sT0)}, 6")
    A(f"s_add_u32 {s(sT2)}, {s(sT2)}, {hex(WS_FD)}")
    A(f"v_lshl_add_u32 v40, {v(vL)}, 4, {s(sT2)}")
    A(f"s_lshl_b32 {s(sT2)}, {s(sT0)}, 3")
    A(f"s_add_u32 {s(sT2)}, {s(sT2)}, {hex(WS_FC)}")
    A(f"v_lshl_add_u32 v41, {v(vL)}, 3, {s(sT2)}")
    A(f"v_mov_b32 v47, 0x7ffffff0")
    A(f"v_lshrrev_b32 v44, 2, {v(vL)}")
    A(f"v_add_u32 v44, {s(sT1)}, v44")
    for i in range(5):
        A(f"v_add_u32 v45, {16*i}, v44")
        A(f"v_cmp_gt_u32 vcc, {NPROD}, v45")
        A(f"v_add_u32 v46, {1024*i}, v40")
        A(f"v_cndmask_b32 {v(56+i)}, v47, v46, vcc")
    A(f"v_add_u32 v44, {s(sT1)}, {v(vL)}")
    A(f"s_movk_i32 {s(sT3)}, {NPROD}")
    A(f"v_cmp_gt_u32 {s(sM0,2)}, {s(sT3)}, v44")
    A(f"v_cndmask_b32 v61, v47, v41, {s(sM0,2)}")
    A(f"v_add_u32 v44, 64, v44")
    A(f"v_cmp_gt_u32 vcc, {NPROD}, v44")
    A(f"v_cmp_gt_u32 {s(sM3,2)}, 16, {v(vL)}")
    A(f"s_and_b64 {s(sM2,2)}, vcc, {s(sM3,2)}")
    A(f"v_add_u32 v46, 512, v41")
    A(f"v_cndmask_b32 v62, v47, v46, {s(sM2,2)}")
    A(f"v_and_b32 v44, 3, {v(vN)}")
    A(f"v_mov_b32 v45, 0")
    for k, (j0, j1) in enumerate(((0,1),(2,3))):
        A(f"v_mov_b32 v46, 0x3f80")
        A(f"v_cmp_eq_u32 vcc, {j0}, v44")
        A(f"v_cndmask_b32 {v(vAF0+k)}, v45, v46, vcc")
        A(f"v_mov_b32 v46, 0x3f800000")
        A(f"v_cmp_eq_u32 vcc, {j1}, v44")
        A(f"v_cndmask_b32 {v(vAF0+k)}, {v(vAF0+k)}, v46, vcc")
    A(f"v_mov_b32 {v(vAF0+2)}, {v(vAF0)}")
    A(f"v_mov_b32 {v(vAF0+3)}, {v(vAF0+1)}")
    for k in range(4): A(f"v_mov_b32 {v(vFD+20+k)}, 0")
    lab = poll_head(A, "L_hop5")
    for i in range(5):
        A(f"buffer_load_dwordx4 {v(vFD+4*i,4)}, {v(56+i)}, {s(sWS,4)}, 0 offen sc1")
    A(f"buffer_load_dwordx2 {v(vFC,2)}, v61, {s(sWS,4)}, 0 offen sc1")
    A(f"buffer_load_dwordx2 {v(vFC+2,2)}, v62, {s(sWS,4)}, 0 offen sc1")
    A(f"s_waitcnt vmcnt(0)")
    sum_dwords(A, 44, range(vFD, vFD+20))
    A(f"v_sub_u32 v44, v44, {v(vFC)}")
    A(f"v_sub_u32 v44, v44, {v(vFC+2)}")
    A(f"v_add_u32 v45, {s(sNONCE)}, {v(vFC)}")
    A(f"v_cmp_ne_u32 vcc, v45, {v(vFC+1)}")
    A(f"s_and_b64 {s(sM1,2)}, vcc, {s(sM0,2)}")
    A(f"v_add_u32 v45, {s(sNONCE)}, {v(vFC+2)}")
    A(f"v_cmp_ne_u32 vcc, v45, {v(vFC+3)}")
    A(f"s_and_b64 {s(sM3,2)}, vcc, {s(sM2,2)}")
    A(f"s_or_b64 {s(sM1,2)}, {s(sM1,2)}, {s(sM3,2)}")
    wave_sum_u32(A, 44, 46)
    A(f"v_cmp_ne_u32 vcc, 0, v44")
    A(f"s_or_b64 {s(sM1,2)}, {s(sM1,2)}, vcc")
    poll_tail(A, lab, sM1, cfg.poll_sleep)
    stamp(A, cfg, 9)
    for p in range(3):
        w = vFD + 8*p
        A(f"v_swap_b32 {v(w+2)}, {v(w+4)}")
        A(f"v_swap_b32 {v(w+3)}, {v(w+5)}")
    for p in range(3):
        w = vFD + 8*p
        c0 = "0" if p == 0 else v(vQX,4); c1 = "0" if p == 0 else v(vQY,4)
        A(f"v_mfma_f32_16x16x32_bf16 {v(vQX,4)}, {v(vAF0,4)}, {v(w,4)}, {c0}")
        A(f"v_mfma_f32_16x16x32_bf16 {v(vQY,4)}, {v(vAF0,4)}, {v(w+4,4)}, {c1}")
    for d in ("row_ror:4", "row_ror:8"):
        for k in range(8):
            A(f"v_add_f32_dpp {v(vQX+k)}, {v(vQX+k)}, {v(vQX+k)} {d} row_mask:0xf bank_mask:0xf")
    A(f"s_lshl_b32 {s(sT0)}, {s(sW)}, 7")
    A(f"s_add_u32 {s(sT0)}, {s(sT0)}, {L_FR}")
    A(f"v_lshl_add_u32 v46, {v(vL)}, 5, {s(sT0)}")
    A(f"s_mov_b64 {s(sEX,2)}, exec")
    A(f"s_mov_b64 exec, 0xf")
    A(f"ds_write_b128 v46, {v(vQX,4)}")
    A(f"ds_write_b128 v46, {v(vQY,4)} offset:16")
    A(f"s_mov_b64 exec, {s(sEX,2)}")
    arrive(A, F7, 47)
    A(f"s_cmp_lg_u32 {s(sW)}, 0")
    A(f"s_cbranch_scc1 L_Mdone")
    A(f"v_lshlrev_b32 v46, 3, {v(vL)}")
    A(f"v_add_u32 v46, {L_FR}, v46")
    A(f"s_lshl_b32 {s(sT0)}, s2, 6")
    A(f"v_lshl_add_u32 v47, {v(vL)}, 2, {s(sT0)}")
    def _rd():
        for ww in range(4):
            A(f"ds_read_b64 {v(48+2*ww,2)}, v46 offset:{128*ww}")
    wait_flag(A, F7, 4, 45, _rd)
    A(f"v_add_f32 v48, v48, v50")
    A(f"v_add_f32 v49, v49, v51")
    A(f"v_add_f32 v52, v52, v54")
    A(f"v_add_f32 v53, v53, v55")
    A(f"v_add_f32 v48, v48, v52")
    A(f"v_add_f32 v49, v49, v53")
    A(f"v_cvt_pk_bf16_f32 v48, v48, v49")
    A(f"s_mov_b64 exec, 0xffff")
    A(f"buffer_store_dword v48, v47, {s(sOUT,4)}, 0 offen")
    A(f"s_cmp_lg_u32 s2, 0")
    A(f"s_cbranch_scc1 L_Mdone")
    A(f"s_add_u32 {s(sT0)}, {s(sE)}, 1")
    A(f"v_mov_b32 v48, {s(sT0)}")
    A(f"v_mov_b32 v47, 0")
    A(f"s_mov_b64 exec, 1")
    A(f"buffer_store_dword v48, v47, {s(sWS,4)}, 0 offen sc1")
    A.label("L_Mdone")
    if cfg.ts:
        stamp(A, cfg, 9+0)
        emit_ts(A, cfg)
    A(f"s_endpgm")
    A.label("L_Lpath")
    sLW = sT5
    vGX, vGW = 8, 24
    vWUV, vWO = 64, 128
    A(f"s_sub_u32 {s(sW)}, {s(sW)}, 4")
    A(f"v_lshlrev_b32 v40, 4, {v(vL)}")
    A(f"v_mov_b32 v43, 0")
    A(f"s_lshl_b32 {s(sT0)}, {s(sJ)}, 19")
    A(f"s_lshl_b32 {s(sT1)}, {s(sH)}, 8")
    A(f"s_add_u32 {s(sT0)}, {s(sT0)}, {s(sT1)}")
    A(f"v_lshlrev_b32 v41, 17, {v(vS)}")
    A(f"v_lshl_add_u32 v41, {v(vN)}, 4, v41")
    A(f"v_add_u32 v41, {s(sT0)}, v41")
    A(f"s_lshl_b32 {s(sT0)}, {s(sH)}, 17")
    A(f"s_lshl_b32 {s(sT1)}, {s(sW)}, 8")
    A(f"s_add_u32 {s(sT0)}, {s(sT0)}, {s(sT1)}")
    A(f"v_lshlrev_b32 v42, 15, {v(vS)}")
    A(f"v_lshl_add_u32 v42, {v(vN)}, 4, v42")
    A(f"v_add_u32 v42, {s(sT0)}, v42")
    A(f"s_waitcnt lgkmcnt(0)")
    if cfg.prefetch_code:
        A(f"s_cmp_lg_u32 {s(sW)}, 3")
        A(f"s_cbranch_scc1 L_nopf")
        A(f"s_getpc_b64 s[66:67]")
        A.label("L_pcref")
        A(f"s_sub_u32 s66, s66, (L_pcref-{KNAME})")
        A(f"s_subb_u32 s67, s67, 0")
        A(f"s_lshl_b32 {s(sT2)}, {s(sR)}, 10")
        A(f"v_lshl_add_u32 v44, {v(vL)}, 7, {s(sT2)}")
        A(f"v_cmp_gt_u32 vcc, (L_end-{KNAME}), v44")
        A(f"v_cmp_gt_u32 {s(sM3,2)}, 8, {v(vL)}")
        A(f"s_and_b64 vcc, vcc, {s(sM3,2)}")
        A(f"s_and_saveexec_b64 {s(sEX,2)}, vcc")
        A(f"s_cbranch_execz L_pfskip")
        A(f"global_load_dword v63, v44, s[66:67]")
        A.label("L_pfskip")
        A(f"s_mov_b64 exec, {s(sEX,2)}")
        A.label("L_nopf")
    A(f"buffer_load_dword v47, v43, {s(sWS,4)}, 0 offen sc1")
    for b in range(4):
        A(f"buffer_load_dwordx4 {v(vGX+4*b,4)}, v40, {s(sX,4)}, 0 offen offset:{1024*b}")
    A(f"buffer_load_dwordx4 {v(vGW,4)}, v40, {s(sGW,4)}, 0 offen")
    make_sels(A, vN, vSEL, 44)
    if cfg.l_after_m: wait_flag(A, F0, 4, 45)
    A(f"s_lshl_b32 {s(sT0)}, {s(sB)}, 12")
    A(f"s_lshl_b32 {s(sT1)}, {s(sKC)}, 7")
    A(f"s_add_u32 {s(sT0)}, {s(sT0)}, {s(sT1)}")
    A(f"s_lshl_b32 {s(sT1)}, {s(sW)}, 5")
    A(f"s_add_u32 {s(sT0)}, {s(sT0)}, {s(sT1)}")
    A(f"s_lshl_b32 {s(sT0)}, {s(sT0)}, 10")
    A(f"s_mul_i32 {s(sT1)}, {s(sW)}, {32*PITCH}")
    A(f"s_mov_b32 m0, {s(sT1)}")
    A(f"s_mov_b32 {s(sCNT)}, 0")
    if cfg.no_l: A(f"s_branch L_dmaskip")
    A.label("L_dma")
    A(f"buffer_load_dwordx4 v40, {s(sKV,4)}, {s(sT0)} offen{NTKV} lds")
    A(f"s_add_u32 m0, m0, {PITCH}")
    A(f"s_add_u32 {s(sT0)}, {s(sT0)}, 1024")
    A(f"s_add_u32 {s(sCNT)}, {s(sCNT)}, 1")
    A(f"s_cmp_lt_u32 {s(sCNT)}, 32")
    A(f"s_cbranch_scc1 L_dma")
    A.label("L_dmaskip")
    stamp(A, cfg, 2)
    A(f"s_waitcnt vmcnt(32)")
    A(f"v_readfirstlane_b32 {s(sE)}, v47")
    A(f"s_mul_i32 {s(sNONCE)}, {s(sE)}, {hex(HASH_K)}")
    A(f"s_add_u32 {s(sNONCE)}, {s(sNONCE)}, {hex(HASH_C)}")
    for b in range(4):
        A(f"v_mov_b32 {v(44+b)}, 0")
    for k in range(4):
        for b in range(4):
            A(f"v_dot2_f32_bf16 {v(44+b)}, {v(vGX+4*b+k)}, {v(vGW+k)}, {v(44+b)}")
    A("s_nop 3")
    for d in ("quad_perm:[1,0,3,2]", "quad_perm:[2,3,0,1]", "row_half_mirror", "row_mirror"):
        for b in range(4):
            A(f"v_add_f32_dpp {v(44+b)}, {v(44+b)}, {v(44+b)} {d} row_mask:0xf bank_mask:0xf")
    xreduce_rows2(A, "v_add_f32", 44, 48, "v_add_f32", 45, 49)
    xreduce_rows2(A, "v_add_f32", 46, 48, "v_add_f32", 47, 49)
    A(f"v_cmp_eq_u32 vcc, 1, {v(vS)}")
    A(f"v_cndmask_b32 v44, v44, v45, vcc")
    A(f"v_cmp_eq_u32 vcc, 2, {v(vS)}")
    A(f"v_cndmask_b32 v44, v44, v46, vcc")
    A(f"v_cmp_eq_u32 vcc, 3, {v(vS)}")
    A(f"v_cndmask_b32 v44, v44, v47, vcc")
    A(f"s_mov_b32 {s(sT0)}, {hex(f2u(-LOG2E))}")
    A(f"v_mul_f32 v44, {s(sT0)}, v44")
    A(f"v_exp_f32 v44, v44")
    A(f"v_add_f32 v44, 1.0, v44")
    A(f"v_rcp_f32 v22, v44")
    A(f"v_lshlrev_b32 v45, 2, {v(vS)}")
    A(f"v_add_u32 v45, {L_G}, v45")
    A(f"ds_write_b32 v45, v22")
    A(f"s_waitcnt vmcnt(0)")
    arrive(A, FKV, 45)
    stamp(A, cfg, 3, L=True)
    A(f"s_mov_b32 {s(sT2)}, 0")
    for k in range(16):
        A(f"buffer_load_dwordx4 {v(vWUV+4*k,4)}, v41, {s(sWUV,4)}, {s(sT2)} offen{NT}")
        if k < 15: A(f"s_add_u32 {s(sT2)}, {s(sT2)}, 8192")
    A(f"s_mov_b32 {s(sT2)}, 0")
    for k in range(32):
        A(f"buffer_load_dwordx4 {v(vWO+4*k,4)}, v42, {s(sWO,4)}, {s(sT2)} offen offset:{1024*(k%4)}{NT}")
        if k % 4 == 3 and k < 31: A(f"s_add_u32 {s(sT2)}, {s(sT2)}, 4096")
    A(f"s_waitcnt vmcnt(32)")
    for t in range(8):
        A(f"v_swap_b32 {v(vWUV+8*t+2)}, {v(vWUV+8*t+4)}")
        A(f"v_swap_b32 {v(vWUV+8*t+3)}, {v(vWUV+8*t+5)}")
    A(f"s_waitcnt vmcnt(0)")
    for t in range(16):
        A(f"v_swap_b32 {v(vWO+8*t+2)}, {v(vWO+8*t+4)}")
        A(f"v_swap_b32 {v(vWO+8*t+3)}, {v(vWO+8*t+5)}")
    stamp(A, cfg, 4, L=True)
    final_offsets(A, vN, vS, sW, 2, 40, 41, 44)
    A(f"v_lshrrev_b32 v44, 2, {v(vN)}")
    A(f"v_lshlrev_b32 v42, 7, v44")
    A(f"v_lshl_add_u32 v42, {v(vS)}, 5, v42")
    A(f"v_add_u32 v42, {L_CC}, v42")
    A(f"s_lshl_b32 {s(sT0)}, {s(sW)}, 10")
    A(f"s_add_u32 {s(sT0)}, {s(sT0)}, {L_CT}")
    A(f"v_lshlrev_b32 v43, 8, {v(vS)}")
    A(f"v_lshl_add_u32 v43, {v(vN)}, 4, v43")
    A(f"v_add_u32 v43, {s(sT0)}, v43")
    A(f"v_lshlrev_b32 v44, 8, v44")
    A(f"v_lshl_add_u32 v44, {v(vS)}, 6, v44")
    A(f"v_add_u32 v44, {s(sT0)}, v44")
    vCP, vXP2 = 8, 48
    def _rd():
        A(f"ds_read_b128 {v(vCP,4)}, v42")
        A(f"ds_read_b128 {v(vCP+4,4)}, v42 offset:16")
    wait_flag(A, FCC, 4, 45, _rd)
    stamp(A, cfg, 5, L=True)
    for t in range(8):
        sel_gemm_step(A, vCP+t, vSEL, 24 if t % 2 == 0 else 28, vWUV+8*t, 32, 36, t == 0, swap=False)
    A(f"v_cvt_pk_bf16_f32 v16, v32, v33")
    A(f"v_cvt_pk_bf16_f32 v17, v34, v35")
    A(f"v_cvt_pk_bf16_f32 v18, v36, v37")
    A(f"v_cvt_pk_bf16_f32 v19, v38, v39")
    A(f"ds_write_b128 v43, v[16:19]")
    A(f"s_waitcnt lgkmcnt(0)")
    for k in range(4):
        A(f"ds_read_b128 {v(vXP2+4*k,4)}, v44 offset:{16*k}")
    for t in range(16):
        if t % 4 == 0: A(f"s_waitcnt lgkmcnt({3-t//4})")
        sel_gemm_step(A, vXP2+t, vSEL, 24 if t % 2 == 0 else 28, vWO+8*t, 32, 36, t == 0, swap=False)
    publish_final(A, cfg, 32, 36, 22, 40, 41, 16, 20)
    if cfg.ts:
        stamp(A, cfg, 1)
        emit_ts(A, cfg, L=True)
    A.label("L_exit")
    A(f"s_endpgm")
    A.label("L_end")
    lines = hazard.fix(A.l, verbose=True)
    return "\n".join(lines) + "\n"

def emit_ts(A, cfg, L=False):
    A(f"s_waitcnt lgkmcnt(0) vmcnt(0)")
    A(f"s_mov_b64 exec, 0x3ff")
    A(f"v_mbcnt_lo_u32_b32 v0, -1, 0")
    A(f"v_mov_b32 v1, 0")
    for k in range(10):
        A(f"v_mov_b32 v2, {s(sTS+2*k)}")
        A(f"v_cmp_eq_u32 vcc, {k}, v0")
        A(f"v_cndmask_b32 v1, v1, v2, vcc")
    A(f"s_lshl_b32 {s(sT0)}, s2, 3")
    A(f"s_add_u32 {s(sT0)}, {s(sT0)}, {s(sW)}")
    if L: A(f"s_add_u32 {s(sT0)}, {s(sT0)}, 4")
    A(f"s_lshl_b32 {s(sT0)}, {s(sT0)}, 6")
    A(f"s_add_u32 {s(sT0)}, {s(sT0)}, {hex(WS_DBG)}")
    A(f"v_lshl_add_u32 v2, v0, 2, {s(sT0)}")
    A(f"buffer_store_dword v1, v2, {s(sWS,4)}, 0 offen")

def build(cfg, path):
    body = gen(cfg)
    txt = wrap([(KNAME, body, 256, 102, 256)], [(KNAME, (256,1,1), (512,1,1), LDS_SIZE)])
    open(path, "w").write(txt)
    return path

if __name__ == "__main__":
    import build as B
    cfg = Cfg()
    for a_ in sys.argv[2:]:
        k, val = a_.split("=")
        setattr(cfg, k, eval(val))
    p = build(cfg, sys.argv[1])
    B.build(p, p.replace(".s", ".co"))
    import subprocess
    print(subprocess.run(f"llvm-objdump -d --mcpu=gfx950 {p.replace('.s','.co')} | grep -c '//' ; llvm-readelf -S {p.replace('.s','.co')} | grep -E 'text'", shell=True, capture_output=True, text=True).stdout)
```

```python
import sys; sys.path.insert(0, "dev")
from asmlib import *
import hazard

WS_E, WS_QA, WS_QC, WS_ST, WS_OP, WS_FD, WS_FC, WS_DBG = 0, 0x10000, 0x30000, 0x40000, 0x100000, 0x500000, 0x680000, 0x800000
import os
WSBASE = int(os.environ.get('WSBASE', '0'), 0)
for _n in [k for k in list(globals()) if k.startswith('WS_')]: globals()[_n] += WSBASE
PITCH = 1056
L_KV = 0
L_QL = 128 * PITCH
L_RED = L_QL
L_MISC = L_QL + 16 * PITCH
L_QB = L_MISC
L_MX = L_MISC + 1024
L_LS = L_MISC + 1280
L_G  = L_MISC + 1536
L_PB = L_MISC + 2048
L_CC = L_MISC + 6144
L_HR = L_MISC + 6656
L_FR = L_MISC + 8704
L_FL = L_MISC + 1600
F1, F2, F3, FKV, F4, F5, F5B, FCC, F7, F0 = range(10)
L_CT = L_KV
LDS_SIZE = L_MISC + 9216
NPROD = 299
NSLOT = 320
MLP0 = 64
NMLP = 43
HASH_K, HASH_C = 0x9E3779B1, 0x7F4A7C15
SCALE = (128 ** -0.5) * 1.4426950408889634
LOG2E = 1.4426950408889634

sX, sKV, sWQ, sWUK, sWUV, sWO, sW1, sB1, sW2, sGW, sOUT, sWS = 8, 12, 16, 20, 24, 28, 32, 36, 40, 44, 48, 52
sW, sXCD, sR, sHG, sJ, sH, sB, sKC, sNONCE, sE = 56, 57, 58, 59, 60, 61, 62, 63, 64, 65
sT0, sT1, sT2, sT3, sT4, sT5 = 66, 67, 68, 69, 70, 71
sCNT = 72
sCNT2 = 73
sEX = 74
sM0 = 76
sM1 = 78
sTS = 80
sM2, sM3 = 4, 6
POLL_MAX = 20000

def f2u(x):
    import struct
    return struct.unpack("<I", struct.pack("<f", x))[0]

class Cfg:
    nt_w = True
    ts = False
    tsmask = 0x3ff
    prio = True
    wait_kv_first = False
    l_after_m = False
    nt_kv = True
    nt_wq = True
    nt_tail = True
    poll_sleep = 0
    early = False
    no_l = False
    stop = None
    prefetch_code = True

def srd(A, sr, karg_off, size):
    A(f"s_load_dwordx2 {s(sr,2)}, s[0:1], {karg_off}")
def srd_fin(A, sr, size):
    A(f"s_mov_b32 {s(sr+2)}, {hex(size)}")
    A(f"s_mov_b32 {s(sr+3)}, 0x20000")

def estamp(A, cfg, k):
    if cfg.ts and cfg.early:
        A(f"s_memrealtime {s(sTS+2*k,2)}")
        A(f"s_waitcnt lgkmcnt(0)")
def stamp(A, cfg, k, L=False):
    if cfg.early and k >= 3 and not L: return
    if cfg.ts and (cfg.tsmask >> k) & 1:
        A(f"s_memrealtime {s(sTS+2*k,2)}")
        A(f"s_waitcnt lgkmcnt(0)")

vFLA = 3
def arrive(A, f, one):
    A(f"v_mov_b32 {v(one)}, 1")
    A(f"s_mov_b64 {s(sEX,2)}, exec")
    A(f"s_mov_b64 exec, 1")
    A(f"ds_add_u32 {v(vFLA)}, {v(one)} offset:{4*f}")
    A(f"s_mov_b64 exec, {s(sEX,2)}")
def wait_flag(A, f, n, tmp, extra=None):
    lab = A.newlabel("L_fw"); done = A.newlabel("L_fd")
    A(f"s_mov_b32 {s(sCNT2)}, 0")
    A.label(lab)
    A(f"ds_read_b32 {v(tmp)}, {v(vFLA)} offset:{4*f}")
    if extra: extra()
    A(f"s_waitcnt lgkmcnt(0)")
    A(f"v_cmp_gt_u32 vcc, {n}, {v(tmp)}")
    A(f"s_cbranch_vccz {done}")
    A(f"s_add_u32 {s(sCNT2)}, {s(sCNT2)}, 1")
    A(f"s_cmp_lt_u32 {s(sCNT2)}, 2000000")
    A(f"s_cbranch_scc1 {lab}")
    A.label(done)

def xreduce_rows(A, op, x, tmp):
    A(f"v_mov_b32 {v(tmp)}, {v(x)}")
    A(f"v_permlane16_swap_b32 {v(x)}, {v(tmp)}")
    A(f"{op} {v(x)}, {v(x)}, {v(tmp)}")
    A(f"v_mov_b32 {v(tmp)}, {v(x)}")
    A(f"v_permlane32_swap_b32 {v(x)}, {v(tmp)}")
    A(f"{op} {v(x)}, {v(x)}, {v(tmp)}")

def xreduce_rows2(A, op0, x0, t0, op1, x1, t1):
    for sw in ("v_permlane16_swap_b32", "v_permlane32_swap_b32"):
        A(f"v_mov_b32 {v(t0)}, {v(x0)}")
        A(f"v_mov_b32 {v(t1)}, {v(x1)}")
        A(f"{sw} {v(x0)}, {v(t0)}")
        A(f"{sw} {v(x1)}, {v(t1)}")
        A(f"{op0} {v(x0)}, {v(x0)}, {v(t0)}")
        A(f"{op1} {v(x1)}, {v(x1)}, {v(t1)}")

def wave_sum_u32(A, x, t):
    for d in ("quad_perm:[1,0,3,2]", "quad_perm:[2,3,0,1]", "row_half_mirror", "row_mirror"):
        A(f"v_add_u32_dpp {v(x)}, {v(x)}, {v(x)} {d} row_mask:0xf bank_mask:0xf")
    xreduce_rows(A, "v_add_u32", x, t)

def sum_dwords(A, dst, regs):
    regs = list(regs)
    A(f"v_add3_u32 {v(dst)}, {v(regs[0])}, {v(regs[1])}, {v(regs[2])}")
    k = 3
    while k + 1 < len(regs):
        A(f"v_add3_u32 {v(dst)}, {v(dst)}, {v(regs[k])}, {v(regs[k+1])}"); k += 2
    if k < len(regs):
        A(f"v_add_u32 {v(dst)}, {v(dst)}, {v(regs[k])}")

def make_sels(A, vn, vsel, vt):
    A(f"v_and_b32 {v(vt)}, 3, {v(vn)}")
    A(f"v_mov_b32 {v(vt+1)}, 0x0c0c0c0c")
    pats = [(0, 0x0c0c0100, 1, 0x01000c0c), (2, 0x0c0c0100, 3, 0x01000c0c), (0, 0x0c0c0302, 1, 0x03020c0c), (2, 0x0c0c0302, 3, 0x03020c0c)]
    for k, (j0, p0, j1, p1) in enumerate(pats):
        A(f"v_mov_b32 {v(vt+2)}, {hex(p0)}")
        A(f"v_cmp_eq_u32 vcc, {j0}, {v(vt)}")
        A(f"v_cndmask_b32 {v(vsel+k)}, {v(vt+1)}, {v(vt+2)}, vcc")
        A(f"v_mov_b32 {v(vt+2)}, {hex(p1)}")
        A(f"v_cmp_eq_u32 vcc, {j1}, {v(vt)}")
        A(f"v_cndmask_b32 {v(vsel+k)}, {v(vsel+k)}, {v(vt+2)}, vcc")

def sel_gemm_step(A, xp, vsel, af, wreg, dx, dy, first, swap=True):
    if swap:
        A(f"v_swap_b32 {v(wreg+2)}, {v(wreg+4)}")
        A(f"v_swap_b32 {v(wreg+3)}, {v(wreg+5)}")
    for k in range(4):
        A(f"v_perm_b32 {v(af+k)}, {v(xp)}, {v(xp)}, {v(vsel+k)}")
    c0 = "0" if first else v(dx,4)
    c1 = "0" if first else v(dy,4)
    A(f"v_mfma_f32_16x16x32_bf16 {v(dx,4)}, {v(af,4)}, {v(wreg,4)}, {c0}")
    A(f"v_mfma_f32_16x16x32_bf16 {v(dy,4)}, {v(af,4)}, {v(wreg+4,4)}, {c1}")

def poll_head(A, name):
    lab = A.newlabel(name)
    A(f"s_mov_b32 {s(sCNT)}, 0")
    A.label(lab)
    return lab
def poll_tail(A, lab, bad_pair, sleep=0):
    done = A.newlabel("done")
    A(f"s_cmp_eq_u64 {s(bad_pair,2)}, 0")
    A(f"s_cbranch_scc1 {done}")
    if sleep: A(f"s_sleep {sleep}")
    A(f"s_add_u32 {s(sCNT)}, {s(sCNT)}, 1")
    A(f"s_cmp_lt_u32 {s(sCNT)}, {POLL_MAX}")
    A(f"s_cbranch_scc1 {lab}")
    A.label(done)

def publish_final(A, cfg, dx, dy, vscale, vprod_off, vchk_off, pk, t):
    for k in range(4):
        A(f"v_mul_f32 {v(dx+k)}, {v(dx+k)}, {v(vscale)}")
        A(f"v_mul_f32 {v(dy+k)}, {v(dy+k)}, {v(vscale)}")
    A(f"v_cvt_pk_bf16_f32 {v(pk)}, {v(dx)}, {v(dx+1)}")
    A(f"v_cvt_pk_bf16_f32 {v(pk+1)}, {v(dx+2)}, {v(dx+3)}")
    A(f"v_cvt_pk_bf16_f32 {v(pk+2)}, {v(dy)}, {v(dy+1)}")
    A(f"v_cvt_pk_bf16_f32 {v(pk+3)}, {v(dy+2)}, {v(dy+3)}")
    A(f"buffer_store_dwordx4 {v(pk,4)}, {v(vprod_off)}, {s(sWS,4)}, 0 offen sc1")
    sum_dwords(A, t, [pk, pk+1, pk+2, pk+3])
    A(f"v_add_u32_dpp {v(t)}, {v(t)}, {v(t)} quad_perm:[1,0,3,2] row_mask:0xf bank_mask:0xf")
    A(f"v_add_u32_dpp {v(t)}, {v(t)}, {v(t)} quad_perm:[2,3,0,1] row_mask:0xf bank_mask:0xf")
    A(f"v_add_u32 {v(t+1)}, {s(sNONCE)}, {v(t)}")
    A(f"s_mov_b64 {s(sEX,2)}, exec")
    A(f"s_mov_b32 exec_lo, 0x11111111")
    A(f"s_mov_b32 exec_hi, 0x11111111")
    A(f"buffer_store_dwordx2 {v(t,2)}, {v(vchk_off)}, {s(sWS,4)}, 0 offen sc1")
    A(f"s_mov_b64 exec, {s(sEX,2)}")

def final_offsets(A, vn, vq, s_ct, s_prod, voff, vchk, t):
    A(f"v_lshrrev_b32 {v(t)}, 2, {v(vn)}")
    A(f"v_lshl_add_u32 {v(t)}, {v(vq)}, 4, {v(t)}")
    A(f"s_lshl_b32 {s(sT0)}, {s(s_ct)}, 2")
    A(f"v_add_u32 {v(t)}, {s(sT0)}, {v(t)}")
    A(f"s_movk_i32 {s(sT1)}, {NSLOT}")
    A(f"v_mul_lo_u32 {v(t)}, {v(t)}, {s(sT1)}")
    A(f"v_add_u32 {v(t)}, {s(s_prod)}, {v(t)}")
    A(f"v_lshlrev_b32 {v(vchk)}, 3, {v(t)}")
    A(f"v_add_u32 {v(vchk)}, {hex(WS_FC)}, {v(vchk)}")
    A(f"v_and_b32 {v(t+1)}, 3, {v(vn)}")
    A(f"v_lshlrev_b32 {v(t+1)}, 4, {v(t+1)}")
    A(f"v_lshl_add_u32 {v(voff)}, {v(t)}, 6, {v(t+1)}")
    A(f"v_add_u32 {v(voff)}, {hex(WS_FD)}, {v(voff)}")

def gen(cfg):
    A = Asm()
    NT = " nt" if cfg.nt_tail else ""
    NTKV = " nt" if cfg.nt_kv else ""
    NTWQ = " nt" if cfg.nt_wq else ""
    vL, vN, vS = 0, 1, 2
    vSEL = 4
    A(f"s_cmp_ge_u32 s2, 256")
    A(f"s_cbranch_scc1 L_exit")
    for sr, off in ((sX,0),(sWQ,16),(sWUK,24),(sWS,104),(sKV,8),(sWUV,32),(sWO,40),(sW1,56),(sB1,64),(sW2,72),(sGW,80),(sOUT,88)):
        srd(A, sr, off, 0)
    stamp(A, cfg, 0)
    A(f"v_lshrrev_b32 v4, 6, v0")
    A(f"v_and_b32 {v(vL)}, 63, v0")
    A(f"v_readfirstlane_b32 {s(sW)}, v4")
    A(f"v_and_b32 {v(vN)}, 15, {v(vL)}")
    A(f"v_lshrrev_b32 {v(vS)}, 4, {v(vL)}")
    A(f"v_mov_b32 {v(vFLA)}, {L_FL}")
    A(f"v_lshl_add_u32 v40, {v(vN)}, 2, {v(vFLA)}")
    A(f"v_mov_b32 v41, 0")
    A(f"ds_write_b32 v40, v41")
    A(f"s_and_b32 {s(sXCD)}, s2, 7")
    A(f"s_lshr_b32 {s(sR)}, s2, 3")
    A(f"s_and_b32 {s(sHG)}, {s(sR)}, 1")
    A(f"s_bfe_u32 {s(sJ)}, {s(sR)}, 0x30001")
    A(f"s_lshr_b32 {s(sT0)}, {s(sR)}, 4")
    A(f"s_lshl_b32 {s(sT1)}, {s(sXCD)}, 1")
    A(f"s_add_u32 {s(sT1)}, {s(sT1)}, {s(sT0)}")
    A(f"s_lshl_b32 {s(sT0)}, {s(sHG)}, 4")
    A(f"s_add_u32 {s(sH)}, {s(sT0)}, {s(sT1)}")
    A(f"s_lshr_b32 {s(sB)}, {s(sXCD)}, 1")
    A(f"s_and_b32 {s(sT0)}, {s(sXCD)}, 1")
    A(f"s_lshl_b32 {s(sT0)}, {s(sT0)}, 4")
    A(f"s_lshr_b32 {s(sT1)}, {s(sR)}, 1")
    A(f"s_add_u32 {s(sKC)}, {s(sT0)}, {s(sT1)}")
    for sr, size in ((sX,4096),(sWQ,4<<20),(sWUK,4<<20),(sWS,256<<20),(sKV,16<<20),(sWUV,4<<20),(sWO,4<<20),(sW1,512*2752),(sB1,2752),(sW2,1376*1024),(sGW,1024),(sOUT,4096)):
        srd_fin(A, sr, size)
    A(f"s_waitcnt lgkmcnt(0)")
    A(f"s_barrier")
    A(f"s_cmp_ge_u32 {s(sW)}, 4")
    A(f"s_cbranch_scc1 L_Lpath")
    if cfg.prio: A(f"s_setprio 3")
    vXP, vAF0, vAF1, vQX, vQY, vT = 8, 24, 28, 32, 36, 40
    vWUK, vWQ = 64, 128
    vA0, vA1, vA2 = 40, 41, 42
    vE = 44
    A(f"v_lshrrev_b32 {v(vA0)}, 2, {v(vN)}")
    A(f"v_lshlrev_b32 {v(vA0)}, 10, {v(vA0)}")
    A(f"v_lshl_add_u32 {v(vA0)}, {v(vS)}, 6, {v(vA0)}")
    A(f"s_lshl_b32 {s(sT0)}, {s(sW)}, 8")
    A(f"v_add_u32 {v(vA0)}, {s(sT0)}, {v(vA0)}")
    A(f"s_lshl_b32 {s(sT0)}, {s(sW)}, 20")
    A(f"s_lshl_b32 {s(sT1)}, {s(sH)}, 8")
    A(f"s_add_u32 {s(sT0)}, {s(sT0)}, {s(sT1)}")
    A(f"v_lshlrev_b32 {v(vA1)}, 18, {v(vS)}")
    A(f"v_lshl_add_u32 {v(vA1)}, {v(vN)}, 4, {v(vA1)}")
    A(f"v_add_u32 {v(vA1)}, {s(sT0)}, {v(vA1)}")
    A(f"v_lshrrev_b32 {v(vA2)}, 2, {v(vN)}")
    A(f"v_lshlrev_b32 {v(vA2)}, 4, {v(vA2)}")
    A(f"v_and_b32 v43, 3, {v(vN)}")
    A(f"v_add_u32 {v(vA2)}, {v(vA2)}, v43")
    A(f"v_lshlrev_b32 {v(vA2)}, 13, {v(vA2)}")
    A(f"v_lshl_add_u32 {v(vA2)}, {v(vS)}, 4, {v(vA2)}")
    A(f"s_lshl_b32 {s(sT0)}, {s(sJ)}, 19")
    A(f"s_add_u32 {s(sT0)}, {s(sT0)}, {s(sT1)}")
    A(f"v_add_u32 {v(vA2)}, {s(sT0)}, {v(vA2)}")
    A(f"v_mov_b32 v43, {hex(WS_E)}")
    A(f"s_waitcnt lgkmcnt(0)")
    estamp(A, cfg, 3)
    A(f"buffer_load_dword {v(vE)}, v43, {s(sWS,4)}, 0 offen sc1")
    for k in range(4):
        A(f"buffer_load_dwordx4 {v(vXP+4*k,4)}, {v(vA0)}, {s(sX,4)}, 0 offen offset:{16*k}")
    A(f"s_cmp_lg_u32 {s(sW)}, 0")
    A(f"s_cbranch_scc1 L_nowuk")
    A(f"s_mov_b32 {s(sT2)}, 0")
    for T in range(4):
        for t in range(4):
            A(f"buffer_load_dwordx4 {v(vWUK+16*T+4*t,4)}, {v(vA2)}, {s(sWUK,4)}, {s(sT2)} offen offset:{64*t}{NTWQ}")
        if T < 3: A(f"s_add_u32 {s(sT2)}, {s(sT2)}, 32768")
    A.label("L_nowuk")
    A(f"s_mov_b32 {s(sT2)}, 0")
    for k in range(32):
        A(f"buffer_load_dwordx4 {v(vWQ+4*k,4)}, {v(vA1)}, {s(sWQ,4)}, {s(sT2)} offen{NTWQ}")
        if k < 31: A(f"s_add_u32 {s(sT2)}, {s(sT2)}, 8192")
    estamp(A, cfg, 4)
    if cfg.l_after_m: arrive(A, F0, 43)
    make_sels(A, vN, vSEL, vT)
    A(f"s_waitcnt vmcnt(32)")
    A(f"v_readfirstlane_b32 {s(sE)}, {v(vE)}")
    A(f"s_mul_i32 {s(sNONCE)}, {s(sE)}, {hex(HASH_K)}")
    A(f"s_add_u32 {s(sNONCE)}, {s(sNONCE)}, {hex(HASH_C)}")
    for t in range(16):
        A(f"s_waitcnt vmcnt({30-2*t})")
        if t == 0: estamp(A, cfg, 5)
        if t == 8: estamp(A, cfg, 6)
        if t == 15: estamp(A, cfg, 7)
        sel_gemm_step(A, vXP+t, vSEL, vAF0 if t % 2 == 0 else vAF1, vWQ+8*t, vQX, vQY, t == 0)
    stamp(A, cfg, 1)
    A(f"v_lshlrev_b32 {v(vA0)}, 9, {v(vS)}")
    A(f"v_lshl_add_u32 {v(vA0)}, {v(vN)}, 5, {v(vA0)}")
    A(f"s_lshl_b32 {s(sT0)}, {s(sW)}, 11")
    A(f"s_add_u32 {s(sT0)}, {s(sT0)}, {L_RED}")
    A(f"v_add_u32 {v(vA0)}, {s(sT0)}, {v(vA0)}")
    A(f"ds_write_b128 {v(vA0)}, {v(vQX,4)}")
    A(f"ds_write_b128 {v(vA0)}, {v(vQY,4)} offset:16")
    arrive(A, F1, 43)
    A(f"s_lshl_b32 {s(sT0)}, {s(sW)}, 6")
    A(f"v_add_u32 {v(vA1)}, {s(sT0)}, {v(vL)}")
    A(f"v_lshlrev_b32 {v(vA0)}, 3, {v(vA1)}")
    A(f"v_add_u32 {v(vA0)}, {L_RED}, {v(vA0)}")
    A(f"v_lshlrev_b32 {v(vA1)}, 2, {v(vA1)}")
    A(f"v_add_u32 {v(vA1)}, {L_QB}, {v(vA1)}")
    def _rd():
        for ww in range(4):
            A(f"ds_read_b64 {v(44+2*ww,2)}, {v(vA0)} offset:{2048*ww}")
    wait_flag(A, F1, 4, 43, _rd)
    A(f"v_add_f32 v44, v44, v46")
    A(f"v_add_f32 v45, v45, v47")
    A(f"v_add_f32 v48, v48, v50")
    A(f"v_add_f32 v49, v49, v51")
    A(f"v_add_f32 v44, v44, v48")
    A(f"v_add_f32 v45, v45, v49")
    A(f"v_cvt_pk_bf16_f32 v44, v44, v45")
    A(f"ds_write_b32 {v(vA1)}, v44")
    arrive(A, F2, 43)
    A(f"s_cmp_lg_u32 {s(sW)}, 0")
    A(f"s_cbranch_scc1 L_noqabs")
    vQF4 = 128
    vD = 144
    vPK = 160
    A(f"v_and_b32 {v(vA0)}, 3, {v(vN)}")
    A(f"v_lshlrev_b32 {v(vA0)}, 8, {v(vA0)}")
    A(f"v_lshl_add_u32 {v(vA0)}, {v(vS)}, 4, {v(vA0)}")
    A(f"v_add_u32 {v(vA0)}, {L_QB}, {v(vA0)}")
    A(f"s_and_b32 {s(sT0)}, {s(sH)}, 15")
    A(f"s_lshl_b32 {s(sT1)}, {s(sHG)}, 4")
    A(f"s_add_u32 {s(sT0)}, {s(sT0)}, {s(sT1)}")
    A(f"v_lshl_add_u32 {v(vA1)}, {v(vN)}, 5, {s(sT0)}")
    A(f"v_lshlrev_b32 {v(vA2)}, 3, {v(vA1)}")
    A(f"v_add_u32 {v(vA2)}, {s(sJ)}, {v(vA2)}")
    A(f"v_lshlrev_b32 {v(vA2)}, 3, {v(vA2)}")
    A(f"v_add_u32 {v(vA2)}, {hex(WS_QC)}, {v(vA2)}")
    A(f"v_lshlrev_b32 {v(vA1)}, 10, {v(vA1)}")
    A(f"v_lshl_add_u32 {v(vA1)}, {v(vS)}, 5, {v(vA1)}")
    A(f"s_lshl_b32 {s(sT0)}, {s(sJ)}, 7")
    A(f"s_add_u32 {s(sT0)}, {s(sT0)}, {hex(WS_QA)}")
    A(f"v_add_u32 {v(vA1)}, {s(sT0)}, {v(vA1)}")
    def _rd():
        for t in range(4):
            A(f"ds_read_b128 {v(vQF4+4*t,4)}, {v(vA0)} offset:{64*t}")
    wait_flag(A, F2, 4, 43, _rd)
    for t in range(4):
        for T in range(4):
            c = "0" if t == 0 else v(vD+4*T,4)
            A(f"v_mfma_f32_16x16x32_bf16 {v(vD+4*T,4)}, {v(vWUK+16*T+4*t,4)}, {v(vQF4+4*t,4)}, {c}")
    A(f"s_mov_b32 {s(sT0)}, {hex(f2u(SCALE))}")
    for k in range(16):
        A(f"v_mul_f32 {v(vD+k)}, {s(sT0)}, {v(vD+k)}")
    for k in range(8):
        A(f"v_cvt_pk_bf16_f32 {v(vPK+k)}, {v(vD+2*k)}, {v(vD+2*k+1)}")
    A(f"s_mov_b64 {s(sEX,2)}, exec")
    A(f"s_mov_b32 exec_lo, 0x000f000f")
    A(f"s_mov_b32 exec_hi, 0x000f000f")
    A(f"buffer_store_dwordx4 {v(vPK,4)}, {v(vA1)}, {s(sWS,4)}, 0 offen sc1")
    A(f"buffer_store_dwordx4 {v(vPK+4,4)}, {v(vA1)}, {s(sWS,4)}, 0 offen offset:16 sc1")
    A(f"s_mov_b64 exec, {s(sEX,2)}")
    sum_dwords(A, 44, range(vPK, vPK+8))
    xreduce_rows(A, "v_add_u32", 44, 46)
    A(f"v_add_u32 v45, {s(sNONCE)}, v44")
    A(f"s_mov_b64 exec, 0xf")
    A(f"buffer_store_dwordx2 v[44:45], {v(vA2)}, {s(sWS,4)}, 0 offen sc1")
    A(f"s_mov_b64 exec, {s(sEX,2)}")
    A.label("L_noqabs")
    stamp(A, cfg, 2)
    vQG, vQC = 64, 80
    A(f"s_lshl_b32 {s(sT0)}, {s(sB)}, 1")
    A(f"s_add_u32 {s(sT0)}, {s(sT0)}, {s(sHG)}")
    A(f"s_lshl_b32 {s(sT0)}, {s(sT0)}, 4")
    A(f"s_lshl_b32 {s(sT1)}, {s(sW)}, 2")
    A(f"s_add_u32 {s(sT0)}, {s(sT0)}, {s(sT1)}")
    A(f"s_lshl_b32 {s(sT1)}, {s(sT0)}, 10")
    A(f"s_add_u32 {s(sT1)}, {s(sT1)}, {hex(WS_QA)}")
    A(f"v_lshl_add_u32 {v(vA0)}, {v(vL)}, 4, {s(sT1)}")
    A(f"s_lshl_b32 {s(sT1)}, {s(sT0)}, 6")
    A(f"s_add_u32 {s(sT1)}, {s(sT1)}, {hex(WS_QC)}")
    A(f"v_lshl_add_u32 {v(vA1)}, {v(vL)}, 3, {s(sT1)}")
    A(f"v_cmp_lt_u32 {s(sM0,2)}, {v(vL)}, 32")
    A(f"v_mov_b32 v43, 0x7ffffff0")
    A(f"v_cndmask_b32 {v(vA1)}, v43, {v(vA1)}, {s(sM0,2)}")
    A(f"s_mul_i32 {s(sT1)}, {s(sW)}, {4*PITCH}")
    A(f"s_add_u32 {s(sT1)}, {s(sT1)}, {L_QL}")
    A(f"v_lshl_add_u32 {v(vA2)}, {v(vL)}, 4, {s(sT1)}")
    if cfg.wait_kv_first: wait_flag(A, FKV, 4, 44)
    lab = poll_head(A, "L_hop2")
    for i in range(4):
        A(f"buffer_load_dwordx4 {v(vQG+4*i,4)}, {v(vA0)}, {s(sWS,4)}, 0 offen offset:{1024*i} sc1")
    A(f"buffer_load_dwordx2 {v(vQC,2)}, {v(vA1)}, {s(sWS,4)}, 0 offen sc1")
    A(f"s_waitcnt vmcnt(0)")
    sum_dwords(A, 44, range(vQG, vQG+16))
    A(f"v_sub_u32 v44, v44, {v(vQC)}")
    A(f"v_add_u32 v45, {s(sNONCE)}, {v(vQC)}")
    A(f"v_cmp_ne_u32 vcc, v45, {v(vQC+1)}")
    wave_sum_u32(A, 44, 46)
    A(f"s_and_b64 {s(sM1,2)}, vcc, {s(sM0,2)}")
    A(f"v_cmp_ne_u32 vcc, 0, v44")
    A(f"s_or_b64 {s(sM1,2)}, {s(sM1,2)}, vcc")
    poll_tail(A, lab, sM1, cfg.poll_sleep)
    for i in range(4):
        A(f"ds_write_b128 {v(vA2)}, {v(vQG+4*i,4)} offset:{PITCH*i}")
    arrive(A, F3, 43)
    stamp(A, cfg, 3)
    vW1, vW2, vB1 = 192, 224, 56
    A(f"s_sub_u32 {s(sT4)}, s2, {MLP0}")
    A(f"s_cmp_ge_u32 {s(sT4)}, {NMLP}")
    A(f"s_cbranch_scc1 L_nomlpload")
    A(f"s_lshl_b32 {s(sT0)}, {s(sW)}, 7")
    A(f"v_lshl_add_u32 {v(vA0)}, {v(vS)}, 5, {s(sT0)}")
    A(f"s_movk_i32 {s(sT1)}, 2752")
    A(f"v_mul_lo_u32 {v(vA0)}, {v(vA0)}, {s(sT1)}")
    A(f"s_lshl_b32 {s(sT0)}, {s(sT4)}, 6")
    A(f"v_lshl_add_u32 {v(vA0)}, {v(vN)}, 2, {v(vA0)}")
    A(f"v_add_u32 {v(vA0)}, {s(sT0)}, {v(vA0)}")
    A(f"s_mov_b32 {s(sT2)}, 0")
    for k in range(32):
        A(f"buffer_load_dword {v(vW1+k)}, {v(vA0)}, {s(sW1,4)}, {s(sT2)} offen{NT}")
        if k < 31: A(f"s_add_u32 {s(sT2)}, {s(sT2)}, 2752")
    A(f"s_lshl_b32 {s(sT0)}, {s(sT4)}, 15")
    A(f"s_lshl_b32 {s(sT1)}, {s(sW)}, 8")
    A(f"s_add_u32 {s(sT0)}, {s(sT0)}, {s(sT1)}")
    A(f"v_lshlrev_b32 {v(vA0)}, 13, {v(vS)}")
    A(f"v_lshl_add_u32 {v(vA0)}, {v(vN)}, 4, {v(vA0)}")
    A(f"v_add_u32 {v(vA0)}, {s(sT0)}, {v(vA0)}")
    A(f"s_movk_i32 {s(sT2)}, 4096")
    for k in range(8):
        so = "0" if k < 4 else s(sT2)
        A(f"buffer_load_dwordx4 {v(vW2+4*k,4)}, {v(vA0)}, {s(sW2,4)}, {so} offen offset:{1024*(k%4)}{NT}")
    A(f"s_lshl_b32 {s(sT0)}, {s(sT4)}, 6")
    A(f"v_lshl_add_u32 {v(vA0)}, {v(vS)}, 4, {s(sT0)}")
    A(f"buffer_load_dwordx4 {v(vB1,4)}, {v(vA0)}, {s(sB1,4)}, 0 offen")
    A.label("L_nomlpload")
    vQF = 64
    vKE, vKO = 40, 41
    vQE, vQO = 42, 43
    A(f"s_movk_i32 {s(sT1)}, {PITCH}")
    A(f"v_mul_lo_u32 v44, {v(vN)}, {s(sT1)}")
    A(f"v_lshl_add_u32 v44, {v(vS)}, 8, v44")
    A(f"v_and_b32 v45, 1, {v(vS)}")
    A(f"v_lshlrev_b32 v45, 4, v45")
    A(f"v_add_u32 {v(vQE)}, v44, v45")
    A(f"v_sub_u32 {v(vQO)}, v44, v45")
    A(f"s_mul_i32 {s(sT0)}, {s(sW)}, {32*PITCH}")
    A(f"v_add_u32 {v(vKE)}, {s(sT0)}, {v(vQE)}")
    A(f"v_add_u32 {v(vKO)}, {s(sT0)}, {v(vQO)}")
    A(f"v_add_u32 {v(vQE)}, {L_QL}, {v(vQE)}")
    A(f"v_add_u32 {v(vQO)}, {L_QL}, {v(vQO)}")
    wait_flag(A, F3, 4, 44)
    for t in range(16):
        if t == 12: A(f"s_waitcnt lgkmcnt(8)")
        A(f"ds_read_b128 {v(vQF+4*t,4)}, {v(vQE if t%2==0 else vQO)} offset:{16*t}")
    wait_flag(A, FKV, 4, 44)
    stamp(A, cfg, 4)
    vRING = 128
    vS0, vS1 = 32, 36
    LOOK = 6
    def kvread(t, tt):
        slot = (2*t+tt) % 16
        A(f"ds_read_b128 {v(vRING+4*slot,4)}, {v(vKE if t%2==0 else vKO)} offset:{16*t + tt*16*PITCH}")
    for t in range(LOOK):
        kvread(t,0); kvread(t,1)
    for t in range(16):
        rem = min(LOOK-1, 15-t)
        A(f"s_waitcnt lgkmcnt({2*rem})")
        for tt in range(2):
            slot = (2*t+tt) % 16
            acc = vS0 if tt == 0 else vS1
            c = "0" if t == 0 else v(acc,4)
            A(f"v_mfma_f32_16x16x32_bf16 {v(acc,4)}, {v(vRING+4*slot,4)}, {v(vQF+4*t,4)}, {c}")
        if t + LOOK < 16:
            kvread(t+LOOK,0); kvread(t+LOOK,1)
    vM, vTm = 44, 45
    vPA0, vPA1 = 40, 41
    A(f"v_lshrrev_b32 v46, 2, {v(vL)}")
    A(f"s_movk_i32 {s(sT1)}, {PITCH}")
    A(f"v_mul_lo_u32 v46, v46, {s(sT1)}")
    A(f"v_and_b32 v47, 3, {v(vL)}")
    A(f"v_lshl_add_u32 v46, v47, 3, v46")
    A(f"s_lshl_b32 {s(sT0)}, {s(sW)}, 8")
    A(f"v_add_u32 {v(vPA0)}, {s(sT0)}, v46")
    A(f"v_add_u32 {v(vPA1)}, {64*PITCH}, {v(vPA0)}")
    A(f"v_lshlrev_b32 v42, 4, {v(vN)}")
    A(f"v_add_u32 v42, {L_MX}, v42")
    A(f"s_lshl_b32 {s(sT0)}, {s(sW)}, 2")
    A(f"v_add_u32 v43, {s(sT0)}, v42")
    A(f"v_max3_f32 {v(vM)}, {v(vS0)}, {v(vS0+1)}, {v(vS0+2)}")
    A(f"v_max3_f32 {v(vM)}, {v(vM)}, {v(vS0+3)}, {v(vS1)}")
    A(f"v_max3_f32 {v(vM)}, {v(vM)}, {v(vS1+1)}, {v(vS1+2)}")
    A(f"v_max_f32 {v(vM)}, {v(vM)}, {v(vS1+3)}")
    xreduce_rows(A, "v_max_f32", vM, vTm)
    A(f"ds_write_b32 v43, {v(vM)}")
    arrive(A, F4, 47)
    wait_flag(A, F4, 4, 47, lambda: A(f"ds_read_b128 v[48:51], v42"))
    def pvread(g, T):
        slot = (g*8+T) % 16
        base = vPA0 if g < 2 else vPA1
        off = (32*(g%2))*PITCH + T*32
        A(f"ds_read_b64_tr_b16 {v(vRING+4*slot,2)}, {v(base)} offset:{off}")
        A(f"ds_read_b64_tr_b16 {v(vRING+4*slot+2,2)}, {v(base)} offset:{off+16*PITCH}")
    PRE = 6
    for k in range(PRE): pvread(k//8, k%8)
    A(f"v_max3_f32 {v(vM)}, v48, v49, v50")
    A(f"v_max_f32 {v(vM)}, {v(vM)}, v51")
    for k in range(8):
        A(f"v_sub_f32 {v(vS0+k)}, {v(vS0+k)}, {v(vM)}")
    for k in range(8):
        A(f"v_exp_f32 {v(vS0+k)}, {v(vS0+k)}")
    vLs = 46
    A(f"v_add_f32 {v(vLs)}, {v(vS0)}, {v(vS0+1)}")
    A(f"v_add_f32 v47, {v(vS0+2)}, {v(vS0+3)}")
    A(f"v_add_f32 v48, {v(vS0+4)}, {v(vS0+5)}")
    A(f"v_add_f32 v49, {v(vS0+6)}, {v(vS0+7)}")
    for k in range(4):
        A(f"v_cvt_pk_bf16_f32 {v(52+k)}, {v(vS0+2*k)}, {v(vS0+2*k+1)}")
    A(f"v_add_f32 {v(vLs)}, {v(vLs)}, v47")
    A(f"v_add_f32 v48, v48, v49")
    A(f"v_add_f32 {v(vLs)}, {v(vLs)}, v48")
    A(f"v_lshlrev_b32 v60, 4, {v(vL)}")
    A(f"v_add_u32 v60, {L_PB}, v60")
    A(f"s_lshl_b32 {s(sT0)}, {s(sW)}, 10")
    A(f"v_add_u32 v61, {s(sT0)}, v60")
    A(f"ds_write_b128 v61, v[52:55]")
    xreduce_rows(A, "v_add_f32", vLs, 47)
    A(f"ds_write_b32 v43, {v(vLs)} offset:{L_LS-L_MX}")
    arrive(A, F5, 47)
    vPF, vO = 64, 80
    def _rd():
        for g in range(4):
            A(f"ds_read_b128 {v(vPF+4*g,4)}, v60 offset:{1024*g}")
        A(f"ds_read_b128 v[48:51], v42 offset:{L_LS-L_MX}")
    wait_flag(A, F5, 4, 47, _rd)
    nxt = PRE
    outstanding = []
    def issue(k):
        pvread(k//8, k%8); outstanding.extend([("f",k),("f",k)])
    while len(outstanding) + 2 <= 15:
        issue(nxt); nxt += 1
    for k in range(32):
        g, T = k//8, k%8
        need_idx = -1
        for idx, o in enumerate(outstanding):
            if o == "P" and k == 0: need_idx = max(need_idx, idx)
            if o == ("f",k): need_idx = max(need_idx, idx)
        can = nxt < 32 and nxt <= k + 15
        if can:
            need_idx = max(need_idx, len(outstanding) + 2 - 15 - 1)
        if need_idx >= 0:
            n_after = len(outstanding) - 1 - need_idx
            A(f"s_waitcnt lgkmcnt({n_after})")
            del outstanding[:need_idx+1]
        slot = k % 16
        c = "0" if g == 0 else v(vO+4*T,4)
        A(f"v_mfma_f32_16x16x32_bf16 {v(vO+4*T,4)}, {v(vRING+4*slot,4)}, {v(vPF+4*g,4)}, {c}")
        if can:
            issue(nxt); nxt += 1
    if outstanding: A(f"s_waitcnt lgkmcnt(0)")
    stamp(A, cfg, 5)
    vPK = 112
    A(f"v_add_f32 v48, v48, v49")
    A(f"v_add_f32 v50, v50, v51")
    A(f"v_add_f32 v47, v48, v50")
    A(f"s_lshl_b32 {s(sT0)}, {s(sHG)}, 4")
    A(f"v_add_u32 v48, {s(sT0)}, {v(vN)}")
    A(f"v_lshlrev_b32 v48, 10, v48")
    A(f"s_lshl_b32 {s(sT0)}, {s(sW)}, 8")
    A(f"s_lshl_b32 {s(sT1)}, {s(sB)}, 5")
    A(f"s_add_u32 {s(sT0)}, {s(sT0)}, {s(sT1)}")
    A(f"s_add_u32 {s(sT0)}, {s(sT0)}, {s(sKC)}")
    A(f"v_add_u32 v48, {s(sT0)}, v48")
    A(f"v_and_b32 v49, 1, {v(vS)}")
    A(f"v_lshlrev_b32 v49, 1, v49")
    A(f"v_lshrrev_b32 v50, 1, {v(vS)}")
    A(f"v_add_u32 v49, v49, v50")
    A(f"v_lshlrev_b32 v49, 4, v49")
    A(f"v_lshl_add_u32 v49, v48, 7, v49")
    A(f"v_add_u32 v49, {hex(WS_OP)}, v49")
    A(f"v_add_u32 v50, {128*128}, v49")
    A(f"v_lshl_add_u32 v48, {v(vS)}, 7, v48")
    A(f"v_lshlrev_b32 v48, 4, v48")
    A(f"v_add_u32 v48, {hex(WS_ST)}, v48")
    for T in range(8):
        A(f"v_cvt_pk_bf16_f32 {v(vPK+2*T)}, {v(vO+4*T)}, {v(vO+4*T+1)}")
        A(f"v_cvt_pk_bf16_f32 {v(vPK+2*T+1)}, {v(vO+4*T+2)}, {v(vO+4*T+3)}")
    for p in range(4):
        A(f"v_permlane16_swap_b32 {v(vPK+4*p)}, {v(vPK+4*p+2)}")
        A(f"v_permlane16_swap_b32 {v(vPK+4*p+1)}, {v(vPK+4*p+3)}")
    for p in range(4):
        base = 49 if p < 2 else 50
        A(f"buffer_store_dwordx4 {v(vPK+4*p,4)}, {v(base)}, {s(sWS,4)}, 0 offen offset:{64*(p%2)} sc1")
    sum_dwords(A, 52, range(vPK, vPK+8))
    sum_dwords(A, 53, range(vPK+8, vPK+16))
    xreduce_rows2(A, "v_add_u32", 52, 54, "v_add_u32", 53, 55)
    A(f"v_cmp_eq_u32 vcc, 1, {v(vS)}")
    A(f"v_mov_b32 v60, {v(vM)}")
    A(f"v_mov_b32 v61, v47")
    A(f"v_cndmask_b32 v62, v52, v53, vcc")
    A(f"v_add3_u32 v63, v60, v61, v62")
    A(f"v_add_u32 v63, {s(sNONCE)}, v63")
    A(f"s_mov_b64 {s(sEX,2)}, exec")
    A(f"s_mov_b32 exec_hi, 0")
    A(f"buffer_store_dwordx4 v[60:63], v48, {s(sWS,4)}, 0 offen sc1")
    A(f"s_mov_b64 exec, {s(sEX,2)}")
    stamp(A, cfg, 6)
    A(f"s_cmp_ge_u32 {s(sT4)}, {NMLP}")
    A(f"s_cbranch_scc1 L_nomlp")
    vHX = 32
    vSL0, vSL1 = 44, 45
    A(f"v_and_b32 v46, 1, {v(vN)}")
    A(f"v_cmp_eq_u32 vcc, 0, v46")
    A(f"v_mov_b32 v46, 0x01000c0c")
    A(f"v_mov_b32 v47, 0x0c0c0100")
    A(f"v_cndmask_b32 {v(vSL0)}, v46, v47, vcc")
    A(f"v_mov_b32 v46, 0x03020c0c")
    A(f"v_mov_b32 v47, 0x0c0c0302")
    A(f"v_cndmask_b32 {v(vSL1)}, v46, v47, vcc")
    A(f"s_waitcnt vmcnt(5)")
    for t in range(8):
        af = vAF0 if t % 2 == 0 else vAF1
        for rr in range(4):
            A(f"v_perm_b32 {v(af+rr)}, {v(vXP+2*t+(rr>>1))}, {v(vXP+2*t+(rr>>1))}, {v(vSL0 if rr%2==0 else vSL1)}")
        c = "0" if t == 0 else v(vHX,4)
        A(f"v_mfma_f32_16x16x32_bf16 {v(vHX,4)}, {v(af,4)}, {v(vW1+4*t,4)}, {c}")
    A(f"v_lshlrev_b32 v46, 7, {v(vS)}")
    A(f"v_lshl_add_u32 v46, {v(vN)}, 3, v46")
    A(f"s_lshl_b32 {s(sT0)}, {s(sW)}, 9")
    A(f"s_add_u32 {s(sT0)}, {s(sT0)}, {L_HR}")
    A(f"v_add_u32 v46, {s(sT0)}, v46")
    A(f"ds_write_b64 v46, {v(vHX,2)}")
    arrive(A, F5B, 47)
    A(f"v_lshrrev_b32 v46, 2, {v(vN)}")
    A(f"v_lshlrev_b32 v47, 7, v46")
    A(f"v_lshl_add_u32 v47, {v(vS)}, 5, v47")
    A(f"v_add_u32 v47, {L_HR}, v47")
    vH = 128
    A(f"v_lshlrev_b32 v48, 2, {v(vS)}")
    A(f"v_add_u32 v48, {L_G}, v48")
    def _rd():
        for ww in range(4):
            A(f"ds_read_b128 {v(vH+8*ww,4)}, v47 offset:{512*ww}")
            A(f"ds_read_b128 {v(vH+8*ww+4,4)}, v47 offset:{512*ww+16}")
        A(f"ds_read_b32 v49, v48")
    wait_flag(A, F5B, 4, 46, _rd)
    for e in range(8):
        A(f"v_add_f32 {v(vH+e)}, {v(vH+e)}, {v(vH+8+e)}")
        A(f"v_add_f32 {v(vH+16+e)}, {v(vH+16+e)}, {v(vH+24+e)}")
    for e in range(8):
        A(f"v_add_f32 {v(vH+e)}, {v(vH+e)}, {v(vH+16+e)}")
    for e in range(8):
        r = vB1 + e//2
        if e % 2 == 0: A(f"v_lshlrev_b32 {v(vH+8+e)}, 16, {v(r)}")
        else: A(f"v_and_b32 {v(vH+8+e)}, 0xffff0000, {v(r)}")
    for e in range(8):
        A(f"v_add_f32 {v(vH+e)}, {v(vH+e)}, {v(vH+8+e)}")
    A(f"s_mov_b32 {s(sT0)}, {hex(f2u(-LOG2E))}")
    for e in range(8):
        A(f"v_mul_f32 {v(vH+8+e)}, {s(sT0)}, abs({v(vH+e)})")
    for e in range(8):
        A(f"v_exp_f32 {v(vH+8+e)}, {v(vH+8+e)}")
    for e in range(8):
        a_, h_, n_, d_ = vH+8+e, vH+e, vH+16+e, vH+24+e
        A(f"v_cmp_lt_f32 vcc, 0, {v(h_)}")
        A(f"v_mul_f32 {v(d_)}, {v(a_)}, {v(a_)}")
        A(f"v_cndmask_b32 {v(n_)}, {v(d_)}, 1.0, vcc")
        A(f"v_fma_f32 {v(n_)}, 2.0, {v(a_)}, {v(n_)}")
        A(f"v_cndmask_b32 {v(d_)}, 1.0, {v(d_)}, vcc")
        A(f"v_fma_f32 {v(d_)}, 2.0, {v(d_)}, {v(n_)}")
        A(f"v_rcp_f32 {v(d_)}, {v(d_)}")
        A(f"v_mul_f32 {v(n_)}, {v(n_)}, {v(h_)}")
        A(f"v_mul_f32 {v(h_)}, {v(n_)}, {v(d_)}")
    vAP = 48+4
    for k in range(4):
        A(f"v_cvt_pk_bf16_f32 {v(vAP+k)}, {v(vH+2*k)}, {v(vH+2*k+1)}")
    A(f"v_sub_f32 v49, 1.0, v49")
    for t in range(4):
        sel_gemm_step(A, vAP+t, vSEL, vAF0 if t % 2 == 0 else vAF1, vW2+8*t, vQX, vQY, t == 0)
    A(f"s_add_u32 {s(sT5)}, {s(sT4)}, 256")
    final_offsets(A, vN, vS, sW, sT5, 46, 47, 60)
    publish_final(A, cfg, vQX, vQY, 49, 46, 47, 40, 50)
    A.label("L_nomlp")
    vOD, vST = 128, 144
    A(f"s_lshl_b32 {s(sT0)}, {s(sH)}, 3")
    A(f"s_add_u32 {s(sT0)}, {s(sT0)}, {s(sJ)}")
    A(f"s_lshl_b32 {s(sT0)}, {s(sT0)}, 2")
    A(f"s_add_u32 {s(sT0)}, {s(sT0)}, {s(sW)}")
    A(f"s_lshl_b32 {s(sT0)}, {s(sT0)}, 5")
    A(f"s_lshl_b32 {s(sT1)}, {s(sT0)}, 7")
    A(f"s_add_u32 {s(sT1)}, {s(sT1)}, {hex(WS_OP)}")
    A(f"v_lshl_add_u32 v40, {v(vL)}, 4, {s(sT1)}")
    A(f"s_lshl_b32 {s(sT1)}, {s(sT0)}, 4")
    A(f"s_add_u32 {s(sT1)}, {s(sT1)}, {hex(WS_ST)}")
    A(f"v_and_b32 v41, 31, {v(vL)}")
    A(f"v_lshl_add_u32 v41, v41, 4, {s(sT1)}")
    A(f"v_cmp_gt_u32 {s(sM0,2)}, 32, {v(vL)}")
    A(f"v_bfe_u32 v42, {v(vN)}, 2, 1")
    A(f"v_lshl_add_u32 v42, {v(vS)}, 1, v42")
    A(f"v_lshlrev_b32 v42, 2, v42")
    lab = poll_head(A, "L_hop3")
    for i in range(4):
        A(f"buffer_load_dwordx4 {v(vOD+4*i,4)}, v40, {s(sWS,4)}, 0 offen offset:{1024*i} sc1")
    A(f"buffer_load_dwordx4 {v(vST,4)}, v41, {s(sWS,4)}, 0 offen sc1")
    A(f"s_waitcnt vmcnt(0)")
    sum_dwords(A, 44, range(vOD, vOD+16))
    A(f"v_cndmask_b32 v45, 0, {v(vST+2)}, {s(sM0,2)}")
    A(f"v_sub_u32 v44, v44, v45")
    A(f"v_add3_u32 v45, {v(vST)}, {v(vST+1)}, {v(vST+2)}")
    A(f"v_add_u32 v45, {s(sNONCE)}, v45")
    A(f"v_cmp_ne_u32 {s(sM1,2)}, v45, {v(vST+3)}")
    wave_sum_u32(A, 44, 46)
    A(f"v_cmp_ne_u32 vcc, 0, v44")
    A(f"s_or_b64 {s(sM1,2)}, {s(sM1,2)}, vcc")
    poll_tail(A, lab, sM1, cfg.poll_sleep)
    stamp(A, cfg, 7)
    A(f"v_mov_b32 v44, {v(vST)}")
    for d in ("quad_perm:[1,0,3,2]", "quad_perm:[2,3,0,1]", "row_half_mirror", "row_mirror"):
        A(f"v_max_f32_dpp v44, v44, v44 {d} row_mask:0xf bank_mask:0xf")
    A(f"v_mov_b32 v46, v44")
    A(f"v_permlane16_swap_b32 v44, v46")
    A(f"v_max_f32 v44, v44, v46")
    A(f"v_sub_f32 v44, {v(vST)}, v44")
    A(f"v_exp_f32 v44, v44")
    A(f"v_mul_f32 v45, v44, {v(vST+1)}")
    for d in ("quad_perm:[1,0,3,2]", "quad_perm:[2,3,0,1]", "row_half_mirror", "row_mirror"):
        A(f"v_add_f32_dpp v45, v45, v45 {d} row_mask:0xf bank_mask:0xf")
    A(f"v_mov_b32 v46, v45")
    A(f"v_permlane16_swap_b32 v45, v46")
    A(f"v_add_f32 v45, v45, v46")
    A(f"v_rcp_f32 v45, v45")
    A(f"v_mul_f32 v44, v44, v45")
    for k in range(4):
        A(f"ds_bpermute_b32 {v(48+k)}, v42, v44 offset:{32*k}")
    A(f"s_waitcnt lgkmcnt(0)")
    A(f"v_cvt_pk_bf16_f32 v52, v48, v49")
    A(f"v_cvt_pk_bf16_f32 v53, v50, v51")
    for t in range(2):
        sel_gemm_step(A, 52+t, vSEL, vAF0 if t % 2 == 0 else vAF1, vOD+8*t, vQX, vQY, t == 0)
    for k in range(8):
        A(f"v_permlane16_swap_b32 {v(vQX+k)}, {v(56+k)}")
    for k in range(8):
        A(f"v_add_f32_dpp {v(56+k)}, {v(56+k)}, {v(vQX+k)} row_ror:8 row_mask:0xf bank_mask:0xf")
    for k in range(4):
        A(f"v_cvt_pk_bf16_f32 {v(48+k)}, {v(56+2*k)}, {v(56+2*k+1)}")
    A(f"s_lshl_b32 {s(sT0)}, {s(sW)}, 7")
    A(f"s_add_u32 {s(sT0)}, {s(sT0)}, {L_CC}")
    A(f"v_lshl_add_u32 v46, {v(vL)}, 4, {s(sT0)}")
    A(f"s_mov_b64 {s(sEX,2)}, exec")
    A(f"s_mov_b64 exec, 0xff")
    A(f"ds_write_b128 v46, v[48:51]")
    A(f"s_mov_b64 exec, {s(sEX,2)}")
    arrive(A, FCC, 47)
    stamp(A, cfg, 8)
    A(f"s_cmp_ge_u32 s2, 64")
    A(f"s_cbranch_scc1 L_Mdone")
    vFD, vFC = 128, 152
    A(f"s_mul_i32 {s(sT0)}, s2, {NSLOT}")
    A(f"s_mul_i32 {s(sT1)}, {s(sW)}, 80")
    A(f"s_add_u32 {s(sT0)}, {s(sT0)}, {s(sT1)}")
    A(f"s_lshl_b32 {s(sT2)}, {s(sT0)}, 6")
    A(f"s_add_u32 {s(sT2)}, {s(sT2)}, {hex(WS_FD)}")
    A(f"v_lshl_add_u32 v40, {v(vL)}, 4, {s(sT2)}")
    A(f"s_lshl_b32 {s(sT2)}, {s(sT0)}, 3")
    A(f"s_add_u32 {s(sT2)}, {s(sT2)}, {hex(WS_FC)}")
    A(f"v_lshl_add_u32 v41, {v(vL)}, 3, {s(sT2)}")
    A(f"v_mov_b32 v47, 0x7ffffff0")
    A(f"v_lshrrev_b32 v44, 2, {v(vL)}")
    A(f"v_add_u32 v44, {s(sT1)}, v44")
    for i in range(5):
        A(f"v_add_u32 v45, {16*i}, v44")
        A(f"v_cmp_gt_u32 vcc, {NPROD}, v45")
        A(f"v_add_u32 v46, {1024*i}, v40")
        A(f"v_cndmask_b32 {v(56+i)}, v47, v46, vcc")
    A(f"v_add_u32 v44, {s(sT1)}, {v(vL)}")
    A(f"s_movk_i32 {s(sT3)}, {NPROD}")
    A(f"v_cmp_gt_u32 {s(sM0,2)}, {s(sT3)}, v44")
    A(f"v_cndmask_b32 v61, v47, v41, {s(sM0,2)}")
    A(f"v_add_u32 v44, 64, v44")
    A(f"v_cmp_gt_u32 vcc, {NPROD}, v44")
    A(f"v_cmp_gt_u32 {s(sM3,2)}, 16, {v(vL)}")
    A(f"s_and_b64 {s(sM2,2)}, vcc, {s(sM3,2)}")
    A(f"v_add_u32 v46, 512, v41")
    A(f"v_cndmask_b32 v62, v47, v46, {s(sM2,2)}")
    A(f"v_and_b32 v44, 3, {v(vN)}")
    A(f"v_mov_b32 v45, 0")
    for k, (j0, j1) in enumerate(((0,1),(2,3))):
        A(f"v_mov_b32 v46, 0x3f80")
        A(f"v_cmp_eq_u32 vcc, {j0}, v44")
        A(f"v_cndmask_b32 {v(vAF0+k)}, v45, v46, vcc")
        A(f"v_mov_b32 v46, 0x3f800000")
        A(f"v_cmp_eq_u32 vcc, {j1}, v44")
        A(f"v_cndmask_b32 {v(vAF0+k)}, {v(vAF0+k)}, v46, vcc")
    A(f"v_mov_b32 {v(vAF0+2)}, {v(vAF0)}")
    A(f"v_mov_b32 {v(vAF0+3)}, {v(vAF0+1)}")
    for k in range(4): A(f"v_mov_b32 {v(vFD+20+k)}, 0")
    lab = poll_head(A, "L_hop5")
    for i in range(5):
        A(f"buffer_load_dwordx4 {v(vFD+4*i,4)}, {v(56+i)}, {s(sWS,4)}, 0 offen sc1")
    A(f"buffer_load_dwordx2 {v(vFC,2)}, v61, {s(sWS,4)}, 0 offen sc1")
    A(f"buffer_load_dwordx2 {v(vFC+2,2)}, v62, {s(sWS,4)}, 0 offen sc1")
    A(f"s_waitcnt vmcnt(0)")
    sum_dwords(A, 44, range(vFD, vFD+20))
    A(f"v_sub_u32 v44, v44, {v(vFC)}")
    A(f"v_sub_u32 v44, v44, {v(vFC+2)}")
    A(f"v_add_u32 v45, {s(sNONCE)}, {v(vFC)}")
    A(f"v_cmp_ne_u32 vcc, v45, {v(vFC+1)}")
    A(f"s_and_b64 {s(sM1,2)}, vcc, {s(sM0,2)}")
    A(f"v_add_u32 v45, {s(sNONCE)}, {v(vFC+2)}")
    A(f"v_cmp_ne_u32 vcc, v45, {v(vFC+3)}")
    A(f"s_and_b64 {s(sM3,2)}, vcc, {s(sM2,2)}")
    A(f"s_or_b64 {s(sM1,2)}, {s(sM1,2)}, {s(sM3,2)}")
    wave_sum_u32(A, 44, 46)
    A(f"v_cmp_ne_u32 vcc, 0, v44")
    A(f"s_or_b64 {s(sM1,2)}, {s(sM1,2)}, vcc")
    poll_tail(A, lab, sM1, cfg.poll_sleep)
    stamp(A, cfg, 9)
    for p in range(3):
        w = vFD + 8*p
        A(f"v_swap_b32 {v(w+2)}, {v(w+4)}")
        A(f"v_swap_b32 {v(w+3)}, {v(w+5)}")
    for p in range(3):
        w = vFD + 8*p
        c0 = "0" if p == 0 else v(vQX,4); c1 = "0" if p == 0 else v(vQY,4)
        A(f"v_mfma_f32_16x16x32_bf16 {v(vQX,4)}, {v(vAF0,4)}, {v(w,4)}, {c0}")
        A(f"v_mfma_f32_16x16x32_bf16 {v(vQY,4)}, {v(vAF0,4)}, {v(w+4,4)}, {c1}")
    for d in ("row_ror:4", "row_ror:8"):
        for k in range(8):
            A(f"v_add_f32_dpp {v(vQX+k)}, {v(vQX+k)}, {v(vQX+k)} {d} row_mask:0xf bank_mask:0xf")
    A(f"s_lshl_b32 {s(sT0)}, {s(sW)}, 7")
    A(f"s_add_u32 {s(sT0)}, {s(sT0)}, {L_FR}")
    A(f"v_lshl_add_u32 v46, {v(vL)}, 5, {s(sT0)}")
    A(f"s_mov_b64 {s(sEX,2)}, exec")
    A(f"s_mov_b64 exec, 0xf")
    A(f"ds_write_b128 v46, {v(vQX,4)}")
    A(f"ds_write_b128 v46, {v(vQY,4)} offset:16")
    A(f"s_mov_b64 exec, {s(sEX,2)}")
    arrive(A, F7, 47)
    A(f"s_cmp_lg_u32 {s(sW)}, 0")
    A(f"s_cbranch_scc1 L_Mdone")
    A(f"v_lshlrev_b32 v46, 3, {v(vL)}")
    A(f"v_add_u32 v46, {L_FR}, v46")
    A(f"s_lshl_b32 {s(sT0)}, s2, 6")
    A(f"v_lshl_add_u32 v47, {v(vL)}, 2, {s(sT0)}")
    def _rd():
        for ww in range(4):
            A(f"ds_read_b64 {v(48+2*ww,2)}, v46 offset:{128*ww}")
    wait_flag(A, F7, 4, 45, _rd)
    A(f"v_add_f32 v48, v48, v50")
    A(f"v_add_f32 v49, v49, v51")
    A(f"v_add_f32 v52, v52, v54")
    A(f"v_add_f32 v53, v53, v55")
    A(f"v_add_f32 v48, v48, v52")
    A(f"v_add_f32 v49, v49, v53")
    A(f"v_cvt_pk_bf16_f32 v48, v48, v49")
    A(f"s_mov_b64 exec, 0xffff")
    A(f"buffer_store_dword v48, v47, {s(sOUT,4)}, 0 offen")
    A(f"s_cmp_lg_u32 s2, 0")
    A(f"s_cbranch_scc1 L_Mdone")
    A(f"s_add_u32 {s(sT0)}, {s(sE)}, 1")
    A(f"v_mov_b32 v48, {s(sT0)}")
    A(f"v_mov_b32 v47, {hex(WS_E)}")
    A(f"s_mov_b64 exec, 1")
    A(f"buffer_store_dword v48, v47, {s(sWS,4)}, 0 offen sc1")
    A.label("L_Mdone")
    if cfg.ts:
        stamp(A, cfg, 9+0)
        emit_ts(A, cfg)
    A(f"s_endpgm")
    A.label("L_Lpath")
    sLW = sT5
    vGX, vGW = 8, 24
    vWUV, vWO = 64, 128
    A(f"s_sub_u32 {s(sW)}, {s(sW)}, 4")
    A(f"v_lshlrev_b32 v40, 4, {v(vL)}")
    A(f"v_mov_b32 v43, {hex(WS_E)}")
    A(f"s_lshl_b32 {s(sT0)}, {s(sJ)}, 19")
    A(f"s_lshl_b32 {s(sT1)}, {s(sH)}, 8")
    A(f"s_add_u32 {s(sT0)}, {s(sT0)}, {s(sT1)}")
    A(f"v_lshlrev_b32 v41, 17, {v(vS)}")
    A(f"v_lshl_add_u32 v41, {v(vN)}, 4, v41")
    A(f"v_add_u32 v41, {s(sT0)}, v41")
    A(f"s_lshl_b32 {s(sT0)}, {s(sH)}, 17")
    A(f"s_lshl_b32 {s(sT1)}, {s(sW)}, 8")
    A(f"s_add_u32 {s(sT0)}, {s(sT0)}, {s(sT1)}")
    A(f"v_lshlrev_b32 v42, 15, {v(vS)}")
    A(f"v_lshl_add_u32 v42, {v(vN)}, 4, v42")
    A(f"v_add_u32 v42, {s(sT0)}, v42")
    A(f"s_waitcnt lgkmcnt(0)")
    if cfg.prefetch_code:
        A(f"s_cmp_lg_u32 {s(sW)}, 3")
        A(f"s_cbranch_scc1 L_nopf")
        A(f"s_getpc_b64 s[66:67]")
        A.label("L_pcref")
        A(f"s_sub_u32 s66, s66, (L_pcref-{KNAME})")
        A(f"s_subb_u32 s67, s67, 0")
        A(f"s_lshl_b32 {s(sT2)}, {s(sR)}, 10")
        A(f"v_lshl_add_u32 v44, {v(vL)}, 7, {s(sT2)}")
        A(f"v_cmp_gt_u32 vcc, (L_end-{KNAME}), v44")
        A(f"v_cmp_gt_u32 {s(sM3,2)}, 8, {v(vL)}")
        A(f"s_and_b64 vcc, vcc, {s(sM3,2)}")
        A(f"s_and_saveexec_b64 {s(sEX,2)}, vcc")
        A(f"s_cbranch_execz L_pfskip")
        A(f"global_load_dword v63, v44, s[66:67]")
        A.label("L_pfskip")
        A(f"s_mov_b64 exec, {s(sEX,2)}")
        A.label("L_nopf")
    A(f"buffer_load_dword v47, v43, {s(sWS,4)}, 0 offen sc1")
    for b in range(4):
        A(f"buffer_load_dwordx4 {v(vGX+4*b,4)}, v40, {s(sX,4)}, 0 offen offset:{1024*b}")
    A(f"buffer_load_dwordx4 {v(vGW,4)}, v40, {s(sGW,4)}, 0 offen")
    make_sels(A, vN, vSEL, 44)
    if cfg.l_after_m: wait_flag(A, F0, 4, 45)
    A(f"s_lshl_b32 {s(sT0)}, {s(sB)}, 12")
    A(f"s_lshl_b32 {s(sT1)}, {s(sKC)}, 7")
    A(f"s_add_u32 {s(sT0)}, {s(sT0)}, {s(sT1)}")
    A(f"s_lshl_b32 {s(sT1)}, {s(sW)}, 5")
    A(f"s_add_u32 {s(sT0)}, {s(sT0)}, {s(sT1)}")
    A(f"s_lshl_b32 {s(sT0)}, {s(sT0)}, 10")
    A(f"s_mul_i32 {s(sT1)}, {s(sW)}, {32*PITCH}")
    A(f"s_mov_b32 m0, {s(sT1)}")
    A(f"s_mov_b32 {s(sCNT)}, 0")
    if cfg.no_l: A(f"s_branch L_dmaskip")
    A.label("L_dma")
    A(f"buffer_load_dwordx4 v40, {s(sKV,4)}, {s(sT0)} offen{NTKV} lds")
    A(f"s_add_u32 m0, m0, {PITCH}")
    A(f"s_add_u32 {s(sT0)}, {s(sT0)}, 1024")
    A(f"s_add_u32 {s(sCNT)}, {s(sCNT)}, 1")
    A(f"s_cmp_lt_u32 {s(sCNT)}, 32")
    A(f"s_cbranch_scc1 L_dma")
    A.label("L_dmaskip")
    stamp(A, cfg, 2)
    A(f"s_waitcnt vmcnt(32)")
    A(f"v_readfirstlane_b32 {s(sE)}, v47")
    A(f"s_mul_i32 {s(sNONCE)}, {s(sE)}, {hex(HASH_K)}")
    A(f"s_add_u32 {s(sNONCE)}, {s(sNONCE)}, {hex(HASH_C)}")
    for b in range(4):
        A(f"v_mov_b32 {v(44+b)}, 0")
    for k in range(4):
        for b in range(4):
            A(f"v_dot2_f32_bf16 {v(44+b)}, {v(vGX+4*b+k)}, {v(vGW+k)}, {v(44+b)}")
    A("s_nop 3")
    for d in ("quad_perm:[1,0,3,2]", "quad_perm:[2,3,0,1]", "row_half_mirror", "row_mirror"):
        for b in range(4):
            A(f"v_add_f32_dpp {v(44+b)}, {v(44+b)}, {v(44+b)} {d} row_mask:0xf bank_mask:0xf")
    xreduce_rows2(A, "v_add_f32", 44, 48, "v_add_f32", 45, 49)
    xreduce_rows2(A, "v_add_f32", 46, 48, "v_add_f32", 47, 49)
    A(f"v_cmp_eq_u32 vcc, 1, {v(vS)}")
    A(f"v_cndmask_b32 v44, v44, v45, vcc")
    A(f"v_cmp_eq_u32 vcc, 2, {v(vS)}")
    A(f"v_cndmask_b32 v44, v44, v46, vcc")
    A(f"v_cmp_eq_u32 vcc, 3, {v(vS)}")
    A(f"v_cndmask_b32 v44, v44, v47, vcc")
    A(f"s_mov_b32 {s(sT0)}, {hex(f2u(-LOG2E))}")
    A(f"v_mul_f32 v44, {s(sT0)}, v44")
    A(f"v_exp_f32 v44, v44")
    A(f"v_add_f32 v44, 1.0, v44")
    A(f"v_rcp_f32 v22, v44")
    A(f"v_lshlrev_b32 v45, 2, {v(vS)}")
    A(f"v_add_u32 v45, {L_G}, v45")
    A(f"ds_write_b32 v45, v22")
    A(f"s_waitcnt vmcnt(0)")
    arrive(A, FKV, 45)
    stamp(A, cfg, 3, L=True)
    A(f"s_mov_b32 {s(sT2)}, 0")
    for k in range(16):
        A(f"buffer_load_dwordx4 {v(vWUV+4*k,4)}, v41, {s(sWUV,4)}, {s(sT2)} offen{NT}")
        if k < 15: A(f"s_add_u32 {s(sT2)}, {s(sT2)}, 8192")
    A(f"s_mov_b32 {s(sT2)}, 0")
    for k in range(32):
        A(f"buffer_load_dwordx4 {v(vWO+4*k,4)}, v42, {s(sWO,4)}, {s(sT2)} offen offset:{1024*(k%4)}{NT}")
        if k % 4 == 3 and k < 31: A(f"s_add_u32 {s(sT2)}, {s(sT2)}, 4096")
    A(f"s_waitcnt vmcnt(32)")
    for t in range(8):
        A(f"v_swap_b32 {v(vWUV+8*t+2)}, {v(vWUV+8*t+4)}")
        A(f"v_swap_b32 {v(vWUV+8*t+3)}, {v(vWUV+8*t+5)}")
    A(f"s_waitcnt vmcnt(0)")
    for t in range(16):
        A(f"v_swap_b32 {v(vWO+8*t+2)}, {v(vWO+8*t+4)}")
        A(f"v_swap_b32 {v(vWO+8*t+3)}, {v(vWO+8*t+5)}")
    stamp(A, cfg, 4, L=True)
    final_offsets(A, vN, vS, sW, 2, 40, 41, 44)
    A(f"v_lshrrev_b32 v44, 2, {v(vN)}")
    A(f"v_lshlrev_b32 v42, 7, v44")
    A(f"v_lshl_add_u32 v42, {v(vS)}, 5, v42")
    A(f"v_add_u32 v42, {L_CC}, v42")
    A(f"s_lshl_b32 {s(sT0)}, {s(sW)}, 10")
    A(f"s_add_u32 {s(sT0)}, {s(sT0)}, {L_CT}")
    A(f"v_lshlrev_b32 v43, 8, {v(vS)}")
    A(f"v_lshl_add_u32 v43, {v(vN)}, 4, v43")
    A(f"v_add_u32 v43, {s(sT0)}, v43")
    A(f"v_lshlrev_b32 v44, 8, v44")
    A(f"v_lshl_add_u32 v44, {v(vS)}, 6, v44")
    A(f"v_add_u32 v44, {s(sT0)}, v44")
    vCP, vXP2 = 8, 48
    def _rd():
        A(f"ds_read_b128 {v(vCP,4)}, v42")
        A(f"ds_read_b128 {v(vCP+4,4)}, v42 offset:16")
    wait_flag(A, FCC, 4, 45, _rd)
    stamp(A, cfg, 5, L=True)
    for t in range(8):
        sel_gemm_step(A, vCP+t, vSEL, 24 if t % 2 == 0 else 28, vWUV+8*t, 32, 36, t == 0, swap=False)
    A(f"v_cvt_pk_bf16_f32 v16, v32, v33")
    A(f"v_cvt_pk_bf16_f32 v17, v34, v35")
    A(f"v_cvt_pk_bf16_f32 v18, v36, v37")
    A(f"v_cvt_pk_bf16_f32 v19, v38, v39")
    A(f"ds_write_b128 v43, v[16:19]")
    A(f"s_waitcnt lgkmcnt(0)")
    for k in range(4):
        A(f"ds_read_b128 {v(vXP2+4*k,4)}, v44 offset:{16*k}")
    for t in range(16):
        if t % 4 == 0: A(f"s_waitcnt lgkmcnt({3-t//4})")
        sel_gemm_step(A, vXP2+t, vSEL, 24 if t % 2 == 0 else 28, vWO+8*t, 32, 36, t == 0, swap=False)
    publish_final(A, cfg, 32, 36, 22, 40, 41, 16, 20)
    if cfg.ts:
        stamp(A, cfg, 1)
        emit_ts(A, cfg, L=True)
    A.label("L_exit")
    A(f"s_endpgm")
    A.label("L_end")
    lines = hazard.fix(A.l, verbose=True)
    return "\n".join(lines) + "\n"

def emit_ts(A, cfg, L=False):
    A(f"s_waitcnt lgkmcnt(0) vmcnt(0)")
    A(f"s_mov_b64 exec, 0x3ff")
    A(f"v_mbcnt_lo_u32_b32 v0, -1, 0")
    A(f"v_mov_b32 v1, 0")
    for k in range(10):
        A(f"v_mov_b32 v2, {s(sTS+2*k)}")
        A(f"v_cmp_eq_u32 vcc, {k}, v0")
        A(f"v_cndmask_b32 v1, v1, v2, vcc")
    A(f"s_lshl_b32 {s(sT0)}, s2, 3")
    A(f"s_add_u32 {s(sT0)}, {s(sT0)}, {s(sW)}")
    if L: A(f"s_add_u32 {s(sT0)}, {s(sT0)}, 4")
    A(f"s_lshl_b32 {s(sT0)}, {s(sT0)}, 6")
    A(f"s_add_u32 {s(sT0)}, {s(sT0)}, {hex(WS_DBG)}")
    A(f"v_lshl_add_u32 v2, v0, 2, {s(sT0)}")
    A(f"buffer_store_dword v1, v2, {s(sWS,4)}, 0 offen")

def build(cfg, path):
    body = gen(cfg)
    txt = wrap([(KNAME, body, 256, 102, 256)], [(KNAME, (256,1,1), (512,1,1), LDS_SIZE)])
    open(path, "w").write(txt)
    return path

if __name__ == "__main__":
    import build as B
    cfg = Cfg()
    for a_ in sys.argv[2:]:
        k, val = a_.split("=")
        setattr(cfg, k, eval(val))
    p = build(cfg, sys.argv[1])
    B.build(p, p.replace(".s", ".co"))
    import subprocess
    print(subprocess.run(f"llvm-objdump -d --mcpu=gfx950 {p.replace('.s','.co')} | grep -c '//' ; llvm-readelf -S {p.replace('.s','.co')} | grep -E 'text'", shell=True, capture_output=True, text=True).stdout)
```

```python
import sys; sys.path.insert(0, "dev")
from asmlib import *
import hazard

WS_E = 0
WS_Q1, WS_Q1C = 0x10000, 0x50000
WS_QA, WS_QC = 0x60000, 0x80000
WS_C1, WS_C1C = 0x90000, 0xD0000
WS_FD, WS_FC = 0xE0000, 0x130000
WS_ST, WS_OP, WS_DBG = 0x140000, 0x200000, 0x800000
import os
WSBASE = int(os.environ.get('WSBASE', '0'), 0)
for _n in [k for k in list(globals()) if k.startswith('WS_')]: globals()[_n] += WSBASE
PITCH = 1056
L_KV = 0
L_QL = 128 * PITCH
L_MISC = L_QL + 16 * PITCH
L_QB = L_MISC
L_MX = L_MISC + 1024
L_LS = L_MISC + 1280
L_G  = L_MISC + 1536
L_FL = L_MISC + 1600
L_PB = L_MISC + 2048
L_CC = L_MISC + 6144
L_HR = L_MISC + 6656
L_CT = L_MISC + 8704
FKI, FKV, F3, F4, F5, F5B, FCC, FP1, FP2, FP3, FW, FG = range(12)
LDS_SIZE = L_MISC + 9728
NPROD = 75
NSLOT = 80
MLP0 = 64
NMLP = 43
HASH_K, HASH_C = 0x9E3779B1, 0x7F4A7C15
SCALE = (128 ** -0.5) * 1.4426950408889634
LOG2E = 1.4426950408889634

sX, sKV, sWQ, sWUK, sWUV, sWO, sW1, sB1, sW2, sGW, sOUT, sWS = 8, 12, 16, 20, 24, 28, 32, 36, 40, 44, 48, 52
sW, sXCD, sR, sHG, sJ, sH, sB, sKC, sNONCE, sE = 56, 57, 58, 59, 60, 61, 62, 63, 64, 65
sT0, sT1, sT2, sT3, sT4, sT5 = 66, 67, 68, 69, 70, 71
sCNT = 72
sCNT2 = 73
sEX = 74
sM0 = 76
sM1 = 78
sTS = 80
sM2, sM3 = 4, 6
sHJ = 100
sFB, sDELTA = 101, 3
LOCAL_DELTA = 0x700000
LOCAL_TRIES = 8
POLL_MAX = 20000

def f2u(x):
    import struct
    return struct.unpack("<I", struct.pack("<f", x))[0]

class Cfg:
    nt_w = True
    ts = False
    tsmask = 0x3ff
    prio = True
    wait_kv_first = False
    l_after_m = False
    nt_kv = True
    nt_wq = True
    nt_tail = True
    poll_sleep = 0
    early = False
    tail_after_f3 = True
    kvwin = 4
    l_delay = False
    mlpwin1 = 16
    mlpwin2 = 6
    two_stage = True
    exp = ''
    pw = True
    nomlp = False
    local_st = 'sc1'
    dual = True
    local_ld = 'sc1'
    pw_op = True
    no_l = False
    stop = None
    prefetch_code = True

def srd(A, sr, karg_off, size):
    A(f"s_load_dwordx2 {s(sr,2)}, s[0:1], {karg_off}")
def srd_fin(A, sr, size):
    A(f"s_mov_b32 {s(sr+2)}, {hex(size)}")
    A(f"s_mov_b32 {s(sr+3)}, 0x20000")

def estamp(A, cfg, k):
    if cfg.ts and cfg.early:
        A(f"s_memrealtime {s(sTS+2*k,2)}")
        A(f"s_waitcnt lgkmcnt(0)")
def stamp(A, cfg, k, L=False):
    if cfg.early and k >= 3 and not L: return
    if cfg.ts and (cfg.tsmask >> k) & 1:
        A(f"s_memrealtime {s(sTS+2*k,2)}")
        A(f"s_waitcnt lgkmcnt(0)")

vFLA = 3
def arrive(A, f, one, fla=None):
    A(f"v_mov_b32 {v(one)}, 1")
    A(f"s_mov_b64 {s(sEX,2)}, exec")
    A(f"s_mov_b64 exec, 1")
    A(f"ds_add_u32 {v(fla if fla is not None else vFLA)}, {v(one)} offset:{4*f}")
    A(f"s_mov_b64 exec, {s(sEX,2)}")
def wait_flag(A, f, n, tmp, extra=None, fla=None):
    lab = A.newlabel("L_fw"); done = A.newlabel("L_fd")
    A(f"s_mov_b32 {s(sCNT2)}, 0")
    A.label(lab)
    A(f"ds_read_b32 {v(tmp)}, {v(fla if fla is not None else vFLA)} offset:{4*f}")
    if extra: extra()
    A(f"s_waitcnt lgkmcnt(0)")
    A(f"v_cmp_gt_u32 vcc, {n}, {v(tmp)}")
    A(f"s_cbranch_vccz {done}")
    A(f"s_add_u32 {s(sCNT2)}, {s(sCNT2)}, 1")
    A(f"s_cmp_lt_u32 {s(sCNT2)}, 2000000")
    A(f"s_cbranch_scc1 {lab}")
    A.label(done)

def xreduce_rows(A, op, x, tmp):
    A(f"v_mov_b32 {v(tmp)}, {v(x)}")
    A(f"v_permlane16_swap_b32 {v(x)}, {v(tmp)}")
    A(f"{op} {v(x)}, {v(x)}, {v(tmp)}")
    A(f"v_mov_b32 {v(tmp)}, {v(x)}")
    A(f"v_permlane32_swap_b32 {v(x)}, {v(tmp)}")
    A(f"{op} {v(x)}, {v(x)}, {v(tmp)}")

def xreduce_rows2(A, op0, x0, t0, op1, x1, t1):
    for sw in ("v_permlane16_swap_b32", "v_permlane32_swap_b32"):
        A(f"v_mov_b32 {v(t0)}, {v(x0)}")
        A(f"v_mov_b32 {v(t1)}, {v(x1)}")
        A(f"{sw} {v(x0)}, {v(t0)}")
        A(f"{sw} {v(x1)}, {v(t1)}")
        A(f"{op0} {v(x0)}, {v(x0)}, {v(t0)}")
        A(f"{op1} {v(x1)}, {v(x1)}, {v(t1)}")

def wave_sum_u32(A, x, t):
    for d in ("quad_perm:[1,0,3,2]", "quad_perm:[2,3,0,1]", "row_half_mirror", "row_mirror"):
        A(f"v_add_u32_dpp {v(x)}, {v(x)}, {v(x)} {d} row_mask:0xf bank_mask:0xf")
    xreduce_rows(A, "v_add_u32", x, t)

def sum_dwords(A, dst, regs):
    regs = list(regs)
    A(f"v_add3_u32 {v(dst)}, {v(regs[0])}, {v(regs[1])}, {v(regs[2])}")
    k = 3
    while k + 1 < len(regs):
        A(f"v_add3_u32 {v(dst)}, {v(dst)}, {v(regs[k])}, {v(regs[k+1])}"); k += 2
    if k < len(regs):
        A(f"v_add_u32 {v(dst)}, {v(dst)}, {v(regs[k])}")

def make_sels(A, vn, vsel, vt):
    A(f"v_and_b32 {v(vt)}, 3, {v(vn)}")
    A(f"v_mov_b32 {v(vt+1)}, 0x0c0c0c0c")
    pats = [(0, 0x0c0c0100, 1, 0x01000c0c), (2, 0x0c0c0100, 3, 0x01000c0c), (0, 0x0c0c0302, 1, 0x03020c0c), (2, 0x0c0c0302, 3, 0x03020c0c)]
    for k, (j0, p0, j1, p1) in enumerate(pats):
        A(f"v_mov_b32 {v(vt+2)}, {hex(p0)}")
        A(f"v_cmp_eq_u32 vcc, {j0}, {v(vt)}")
        A(f"v_cndmask_b32 {v(vsel+k)}, {v(vt+1)}, {v(vt+2)}, vcc")
        A(f"v_mov_b32 {v(vt+2)}, {hex(p1)}")
        A(f"v_cmp_eq_u32 vcc, {j1}, {v(vt)}")
        A(f"v_cndmask_b32 {v(vsel+k)}, {v(vsel+k)}, {v(vt+2)}, vcc")

def sel_gemm_step(A, xp, vsel, af, wreg, dx, dy, first, swap=True):
    if swap:
        A(f"v_swap_b32 {v(wreg+2)}, {v(wreg+4)}")
        A(f"v_swap_b32 {v(wreg+3)}, {v(wreg+5)}")
    for k in range(4):
        A(f"v_perm_b32 {v(af+k)}, {v(xp)}, {v(xp)}, {v(vsel+k)}")
    c0 = "0" if first else v(dx,4)
    c1 = "0" if first else v(dy,4)
    A(f"v_mfma_f32_16x16x32_bf16 {v(dx,4)}, {v(af,4)}, {v(wreg,4)}, {c0}")
    A(f"v_mfma_f32_16x16x32_bf16 {v(dy,4)}, {v(af,4)}, {v(wreg+4,4)}, {c1}")

def poll_head(A, name):
    lab = A.newlabel(name)
    A(f"s_mov_b32 {s(sCNT)}, 0")
    A.label(lab)
    return lab
def poll_tail(A, lab, bad_pair, sleep=0):
    done = A.newlabel("done")
    A(f"s_cmp_eq_u64 {s(bad_pair,2)}, 0")
    A(f"s_cbranch_scc1 {done}")
    if sleep: A(f"s_sleep {sleep}")
    A(f"s_add_u32 {s(sCNT)}, {s(sCNT)}, 1")
    A(f"s_cmp_lt_u32 {s(sCNT)}, {POLL_MAX}")
    A(f"s_cbranch_scc1 {lab}")
    A.label(done)

def publish_final(A, cfg, dx, dy, vscale, vprod_off, vchk_off, pk, t):
    for k in range(4):
        A(f"v_mul_f32 {v(dx+k)}, {v(dx+k)}, {v(vscale)}")
        A(f"v_mul_f32 {v(dy+k)}, {v(dy+k)}, {v(vscale)}")
    A(f"v_cvt_pk_bf16_f32 {v(pk)}, {v(dx)}, {v(dx+1)}")
    A(f"v_cvt_pk_bf16_f32 {v(pk+1)}, {v(dx+2)}, {v(dx+3)}")
    A(f"v_cvt_pk_bf16_f32 {v(pk+2)}, {v(dy)}, {v(dy+1)}")
    A(f"v_cvt_pk_bf16_f32 {v(pk+3)}, {v(dy+2)}, {v(dy+3)}")
    A(f"buffer_store_dwordx4 {v(pk,4)}, {v(vprod_off)}, {s(sWS,4)}, 0 offen sc1")
    sum_dwords(A, t, [pk, pk+1, pk+2, pk+3])
    A(f"v_add_u32_dpp {v(t)}, {v(t)}, {v(t)} quad_perm:[1,0,3,2] row_mask:0xf bank_mask:0xf")
    A(f"v_add_u32_dpp {v(t)}, {v(t)}, {v(t)} quad_perm:[2,3,0,1] row_mask:0xf bank_mask:0xf")
    A(f"v_add_u32 {v(t+1)}, {s(sNONCE)}, {v(t)}")
    A(f"s_mov_b64 {s(sEX,2)}, exec")
    A(f"s_mov_b32 exec_lo, 0x11111111")
    A(f"s_mov_b32 exec_hi, 0x11111111")
    A(f"buffer_store_dwordx2 {v(t,2)}, {v(vchk_off)}, {s(sWS,4)}, 0 offen sc1")
    A(f"s_mov_b64 exec, {s(sEX,2)}")

def final_offsets(A, vn, vq, s_ct, s_prod, voff, vchk, t):
    A(f"v_lshrrev_b32 {v(t)}, 2, {v(vn)}")
    A(f"v_lshl_add_u32 {v(t)}, {v(vq)}, 4, {v(t)}")
    A(f"s_lshl_b32 {s(sT0)}, {s(s_ct)}, 2")
    A(f"v_add_u32 {v(t)}, {s(sT0)}, {v(t)}")
    A(f"s_movk_i32 {s(sT1)}, {NSLOT}")
    A(f"v_mul_lo_u32 {v(t)}, {v(t)}, {s(sT1)}")
    A(f"v_add_u32 {v(t)}, {s(s_prod)}, {v(t)}")
    A(f"v_lshlrev_b32 {v(vchk)}, 3, {v(t)}")
    A(f"v_add_u32 {v(vchk)}, {hex(WS_FC)}, {v(vchk)}")
    A(f"v_and_b32 {v(t+1)}, 3, {v(vn)}")
    A(f"v_lshlrev_b32 {v(t+1)}, 4, {v(t+1)}")
    A(f"v_lshl_add_u32 {v(voff)}, {v(t)}, 6, {v(t+1)}")
    A(f"v_add_u32 {v(voff)}, {hex(WS_FD)}, {v(voff)}")


def nonce_from(A, vreg):
    A(f"v_readfirstlane_b32 {s(sE)}, {v(vreg)}")
    A(f"s_mul_i32 {s(sNONCE)}, {s(sE)}, {hex(HASH_K)}")
    A(f"s_add_u32 {s(sNONCE)}, {s(sNONCE)}, {hex(HASH_C)}")

def make_ones(A, vn, dst, t):
    A(f"v_and_b32 {v(t)}, 3, {v(vn)}")
    A(f"v_lshrrev_b32 {v(t+1)}, 2, {v(vn)}")
    A(f"v_mov_b32 {v(t+2)}, 0")
    for k, (j0, j1) in enumerate(((0,1),(2,3))):
        A(f"v_mov_b32 {v(t+3)}, 0x3f80")
        A(f"v_cmp_eq_u32 vcc, {j0}, {v(t)}")
        A(f"v_cndmask_b32 {v(t+4+k)}, {v(t+2)}, {v(t+3)}, vcc")
        A(f"v_mov_b32 {v(t+3)}, 0x3f800000")
        A(f"v_cmp_eq_u32 vcc, {j1}, {v(t)}")
        A(f"v_cndmask_b32 {v(t+4+k)}, {v(t+4+k)}, {v(t+3)}, vcc")
    for b in range(4):
        A(f"v_cmp_eq_u32 vcc, {b}, {v(t+1)}")
        A(f"v_cndmask_b32 {v(dst+4*b)}, {v(t+2)}, {v(t+4)}, vcc")
        A(f"v_cndmask_b32 {v(dst+4*b+1)}, {v(t+2)}, {v(t+5)}, vcc")
        A(f"v_mov_b32 {v(dst+4*b+2)}, {v(dst+4*b)}")
        A(f"v_mov_b32 {v(dst+4*b+3)}, {v(dst+4*b+1)}")

def partial_offsets(A, vl, vn, vs, base, chkbase, vpub, vchkpub, vga, vgb, vgc, t):
    A(f"s_lshl_b32 {s(sT0)}, {s(sHJ)}, 10")
    A(f"s_add_u32 {s(sT0)}, {s(sT0)}, {hex(base)}")
    A(f"v_lshl_add_u32 {v(vpub)}, {v(vl)}, 4, {s(sT0)}")
    A(f"s_lshl_b32 {s(sT0)}, {s(sHJ)}, 3")
    A(f"s_add_u32 {s(sT0)}, {s(sT0)}, {hex(chkbase)}")
    A(f"v_mov_b32 {v(vchkpub)}, {s(sT0)}")
    A(f"s_lshl_b32 {s(sT0)}, {s(sH)}, 13")
    A(f"s_add_u32 {s(sT0)}, {s(sT0)}, {hex(base)}")
    A(f"v_lshlrev_b32 {v(t)}, 10, {v(vs)}")
    A(f"v_lshl_add_u32 {v(t)}, {v(vn)}, 4, {v(t)}")
    A(f"v_add_u32 {v(vga)}, {s(sT0)}, {v(t)}")
    A(f"v_add_u32 {v(vgb)}, 4096, {v(vga)}")
    A(f"s_lshl_b32 {s(sT0)}, {s(sH)}, 6")
    A(f"s_add_u32 {s(sT0)}, {s(sT0)}, {hex(chkbase)}")
    A(f"v_lshl_add_u32 {v(t)}, {v(vl)}, 3, {s(sT0)}")
    A(f"v_cmp_gt_u32 {s(sM2,2)}, 8, {v(vl)}")
    A(f"v_mov_b32 {v(t+1)}, 0x7ffffff0")
    A(f"v_cndmask_b32 {v(vgc)}, {v(t+1)}, {v(t)}, {s(sM2,2)}")

def publish_partial(A, dx, dy, pk, vpub, vchkpub, t, fl='sc1', dual=False):
    A(f"v_cvt_pk_bf16_f32 {v(pk)}, {v(dx)}, {v(dx+1)}")
    A(f"v_cvt_pk_bf16_f32 {v(pk+1)}, {v(dx+2)}, {v(dx+3)}")
    A(f"v_cvt_pk_bf16_f32 {v(pk+2)}, {v(dy)}, {v(dy+1)}")
    A(f"v_cvt_pk_bf16_f32 {v(pk+3)}, {v(dy+2)}, {v(dy+3)}")
    if dual:
        A(f"buffer_store_dwordx4 {v(pk,4)}, {v(vpub)}, {s(sWS,4)}, 0 offen")
        A(f"buffer_store_dwordx4 {v(pk,4)}, {v(vpub)}, {s(sWS,4)}, {s(sDELTA)} offen sc1")
    else:
        A(f"buffer_store_dwordx4 {v(pk,4)}, {v(vpub)}, {s(sWS,4)}, 0 offen {fl}")
    sum_dwords(A, t, [pk, pk+1, pk+2, pk+3])
    wave_sum_u32(A, t, t+2)
    A(f"v_add_u32 {v(t+1)}, {s(sNONCE)}, {v(t)}")
    A(f"s_mov_b64 {s(sEX,2)}, exec")
    A(f"s_mov_b64 exec, 1")
    if dual:
        A(f"buffer_store_dwordx2 {v(t,2)}, {v(vchkpub)}, {s(sWS,4)}, 0 offen")
        A(f"buffer_store_dwordx2 {v(t,2)}, {v(vchkpub)}, {s(sWS,4)}, {s(sDELTA)} offen sc1")
    else:
        A(f"buffer_store_dwordx2 {v(t,2)}, {v(vchkpub)}, {s(sWS,4)}, 0 offen {fl}")
    A(f"s_mov_b64 exec, {s(sEX,2)}")

def gather_reduce(A, cfg, name, G, CK, ones, vga, vgb, vgc, dx, dy, t):
    so = s(sFB) if cfg.dual else "0"
    if cfg.dual: A(f"s_mov_b32 {s(sFB)}, 0")
    lab = poll_head(A, name)
    if cfg.dual:
        A(f"s_cmp_ge_u32 {s(sCNT)}, {LOCAL_TRIES}")
        A(f"s_cselect_b32 {s(sFB)}, {s(sDELTA)}, 0")
    for b in range(4):
        A(f"buffer_load_dwordx4 {v(G+8*b,4)}, {v(vga)}, {s(sWS,4)}, {so} offen offset:{256*b} {cfg.local_ld}")
        A(f"buffer_load_dwordx4 {v(G+8*b+4,4)}, {v(vgb)}, {s(sWS,4)}, {so} offen offset:{256*b} {cfg.local_ld}")
    A(f"buffer_load_dwordx2 {v(CK,2)}, {v(vgc)}, {s(sWS,4)}, {so} offen {cfg.local_ld}")
    A(f"s_waitcnt vmcnt(0)")
    sum_dwords(A, t, range(G, G+16))
    sum_dwords(A, t+1, range(G+16, G+32))
    A(f"v_add_u32 {v(t)}, {v(t)}, {v(t+1)}")
    A(f"v_sub_u32 {v(t)}, {v(t)}, {v(CK)}")
    A(f"v_add_u32 {v(t+1)}, {s(sNONCE)}, {v(CK)}")
    A(f"v_cmp_ne_u32 vcc, {v(t+1)}, {v(CK+1)}")
    wave_sum_u32(A, t, t+2)
    A(f"s_and_b64 {s(sM1,2)}, vcc, {s(sM2,2)}")
    A(f"v_cmp_ne_u32 vcc, 0, {v(t)}")
    A(f"s_or_b64 {s(sM1,2)}, {s(sM1,2)}, vcc")
    poll_tail(A, lab, sM1, cfg.poll_sleep)
    for b in range(4):
        w = G + 8*b
        A(f"v_swap_b32 {v(w+2)}, {v(w+4)}")
        A(f"v_swap_b32 {v(w+3)}, {v(w+5)}")
    for b in range(4):
        w = G + 8*b
        c0 = "0" if b == 0 else v(dx,4); c1 = "0" if b == 0 else v(dy,4)
        A(f"v_mfma_f32_16x16x32_bf16 {v(dx,4)}, {v(ones+4*b,4)}, {v(w,4)}, {c0}")
        A(f"v_mfma_f32_16x16x32_bf16 {v(dy,4)}, {v(ones+4*b,4)}, {v(w+4,4)}, {c1}")

def gen(cfg):
    A = Asm()
    NT = " nt" if cfg.nt_tail else ""
    NTKV = " nt" if cfg.nt_kv else ""
    NTWQ = " nt" if cfg.nt_wq else ""
    vL, vN, vS = 0, 1, 2
    vSEL = 4
    A(f"s_cmp_ge_u32 s2, 256")
    A(f"s_cbranch_scc1 L_exit")
    for sr, off in ((sX,0),(sWQ,16),(sWUK,24),(sWS,104),(sKV,8),(sWUV,32),(sWO,40),(sW1,56),(sB1,64),(sW2,72),(sGW,80),(sOUT,88)):
        srd(A, sr, off, 0)
    stamp(A, cfg, 0)
    A(f"v_lshrrev_b32 v4, 6, v0")
    A(f"v_and_b32 {v(vL)}, 63, v0")
    A(f"v_readfirstlane_b32 {s(sW)}, v4")
    A(f"v_and_b32 {v(vN)}, 15, {v(vL)}")
    A(f"v_lshrrev_b32 {v(vS)}, 4, {v(vL)}")
    A(f"v_mov_b32 {v(vFLA)}, {L_FL}")
    A(f"v_lshl_add_u32 v40, {v(vN)}, 2, {v(vFLA)}")
    A(f"v_mov_b32 v41, 0")
    A(f"ds_write_b32 v40, v41")
    A(f"s_and_b32 {s(sXCD)}, s2, 7")
    A(f"s_lshr_b32 {s(sR)}, s2, 3")
    A(f"s_and_b32 {s(sHG)}, {s(sR)}, 1")
    A(f"s_bfe_u32 {s(sJ)}, {s(sR)}, 0x30001")
    A(f"s_lshr_b32 {s(sT0)}, {s(sR)}, 4")
    A(f"s_lshl_b32 {s(sT1)}, {s(sXCD)}, 1")
    A(f"s_add_u32 {s(sT1)}, {s(sT1)}, {s(sT0)}")
    A(f"s_lshl_b32 {s(sT0)}, {s(sHG)}, 4")
    A(f"s_add_u32 {s(sH)}, {s(sT0)}, {s(sT1)}")
    A(f"s_lshl_b32 {s(sHJ)}, {s(sH)}, 3")
    A(f"s_add_u32 {s(sHJ)}, {s(sHJ)}, {s(sJ)}")
    A(f"s_lshr_b32 {s(sB)}, {s(sXCD)}, 1")
    A(f"s_and_b32 {s(sT0)}, {s(sXCD)}, 1")
    A(f"s_lshl_b32 {s(sT0)}, {s(sT0)}, 4")
    A(f"s_lshr_b32 {s(sT1)}, {s(sR)}, 1")
    A(f"s_add_u32 {s(sKC)}, {s(sT0)}, {s(sT1)}")
    for sr, size in ((sX,4096),(sWQ,4<<20),(sWUK,4<<20),(sWS,256<<20),(sKV,16<<20),(sWUV,4<<20),(sWO,4<<20),(sW1,512*2752),(sB1,2752),(sW2,1376*1024),(sGW,1024),(sOUT,4096)):
        srd_fin(A, sr, size)
    A(f"s_mov_b32 {s(sDELTA)}, {hex(LOCAL_DELTA)}")
    A(f"s_waitcnt lgkmcnt(0)")
    A(f"s_barrier")
    A(f"s_cmp_ge_u32 {s(sW)}, 4")
    A(f"s_cbranch_scc1 L_Lpath")
    if cfg.prio: A(f"s_setprio 3")
    vXP, vAF0, vAF1, vQX, vQY, vT = 8, 24, 28, 32, 36, 40
    vWUK, vWQ = 64, 128
    vA0, vA1, vA2 = 40, 41, 42
    vE = 44
    A(f"v_mov_b32 v43, {hex(WS_E)}")
    A(f"buffer_load_dword {v(vE)}, v43, {s(sWS,4)}, 0 offen sc1")
    if cfg.exp == 'kvonly': A(f"s_branch L_Mdone")
    A(f"s_cmp_lg_u32 {s(sW)}, 0")
    A(f"s_cbranch_scc1 L_noq")
    A(f"v_lshrrev_b32 {v(vA0)}, 2, {v(vN)}")
    A(f"v_lshlrev_b32 {v(vA0)}, 10, {v(vA0)}")
    A(f"v_lshl_add_u32 {v(vA0)}, {v(vS)}, 5, {v(vA0)}")
    A(f"s_lshl_b32 {s(sT0)}, {s(sJ)}, 7")
    A(f"v_add_u32 {v(vA0)}, {s(sT0)}, {v(vA0)}")
    A(f"s_lshl_b32 {s(sT0)}, {s(sJ)}, 19")
    A(f"s_lshl_b32 {s(sT1)}, {s(sH)}, 8")
    A(f"s_add_u32 {s(sT0)}, {s(sT0)}, {s(sT1)}")
    A(f"v_lshlrev_b32 {v(vA1)}, 17, {v(vS)}")
    A(f"v_lshl_add_u32 {v(vA1)}, {v(vN)}, 4, {v(vA1)}")
    A(f"v_add_u32 {v(vA1)}, {s(sT0)}, {v(vA1)}")
    for k in range(2):
        A(f"buffer_load_dwordx4 {v(vXP+4*k,4)}, {v(vA0)}, {s(sX,4)}, 0 offen offset:{16*k}")
    A(f"s_mov_b32 {s(sT2)}, 0")
    for k in range(16):
        A(f"buffer_load_dwordx4 {v(vWQ+4*k,4)}, {v(vA1)}, {s(sWQ,4)}, {s(sT2)} offen{NTWQ}")
        if k < 15: A(f"s_add_u32 {s(sT2)}, {s(sT2)}, 8192")
    A(f"v_lshrrev_b32 {v(vA2)}, 2, {v(vN)}")
    A(f"v_lshlrev_b32 {v(vA2)}, 4, {v(vA2)}")
    A(f"v_and_b32 v43, 3, {v(vN)}")
    A(f"v_add_u32 {v(vA2)}, {v(vA2)}, v43")
    A(f"v_lshlrev_b32 {v(vA2)}, 13, {v(vA2)}")
    A(f"v_lshl_add_u32 {v(vA2)}, {v(vS)}, 4, {v(vA2)}")
    A(f"v_add_u32 {v(vA2)}, {s(sT0)}, {v(vA2)}")
    A(f"s_mov_b32 {s(sT2)}, 0")
    for T in range(4):
        for t in range(4):
            A(f"buffer_load_dwordx4 {v(vWUK+16*T+4*t,4)}, {v(vA2)}, {s(sWUK,4)}, {s(sT2)} offen offset:{64*t}{NTWQ}")
        if T < 3: A(f"s_add_u32 {s(sT2)}, {s(sT2)}, 32768")
    estamp(A, cfg, 3)
    make_sels(A, vN, vSEL, vT)
    vONE, vG1, vCK1 = 192, 208, 240
    make_ones(A, vN, vONE, 46)
    vPUB, vCPUB, vGA, vGB, vGC = 52, 53, 54, 55, 56
    partial_offsets(A, vL, vN, vS, WS_Q1, WS_Q1C, vPUB, vCPUB, vGA, vGB, vGC, 46)
    vQAO, vQCO = 58, 59
    A(f"v_lshl_add_u32 {v(vQAO)}, {v(vN)}, 5, {s(sH)}")
    A(f"v_lshlrev_b32 {v(vQCO)}, 3, {v(vQAO)}")
    A(f"v_add_u32 {v(vQCO)}, {s(sJ)}, {v(vQCO)}")
    A(f"v_lshlrev_b32 {v(vQCO)}, 3, {v(vQCO)}")
    A(f"v_add_u32 {v(vQCO)}, {hex(WS_QC)}, {v(vQCO)}")
    A(f"v_lshlrev_b32 {v(vQAO)}, 10, {v(vQAO)}")
    A(f"v_lshl_add_u32 {v(vQAO)}, {v(vS)}, 5, {v(vQAO)}")
    A(f"s_lshl_b32 {s(sT0)}, {s(sJ)}, 7")
    A(f"s_add_u32 {s(sT0)}, {s(sT0)}, {hex(WS_QA)}")
    A(f"v_add_u32 {v(vQAO)}, {s(sT0)}, {v(vQAO)}")
    NPW = 0
    A(f"s_waitcnt vmcnt({32+NPW})")
    nonce_from(A, vE)
    for t in range(8):
        A(f"s_waitcnt vmcnt({16 + 14 - 2*t + NPW})")
        if t == 0: estamp(A, cfg, 4)
        if t == 0 and cfg.l_delay: arrive(A, FW, 43)
        sel_gemm_step(A, vXP+t, vSEL, vAF0 if t % 2 == 0 else vAF1, vWQ+8*t, vQX, vQY, t == 0)
    if cfg.pw: wait_flag(A, FP1, 1, 43)
    publish_partial(A, vQX, vQY, 16, vPUB, vCPUB, 46, cfg.local_st, cfg.dual)
    stamp(A, cfg, 1)
    if cfg.exp == 'kvq': A(f"s_branch L_Mdone")
    gather_reduce(A, cfg, "L_hop1", vG1, vCK1, vONE, vGA, vGB, vGC, vQX, vQY, 46)
    estamp(A, cfg, 5)
    A(f"v_cvt_pk_bf16_f32 v16, {v(vQX)}, {v(vQX+1)}")
    A(f"v_cvt_pk_bf16_f32 v17, {v(vQX+2)}, {v(vQX+3)}")
    A(f"v_cvt_pk_bf16_f32 v18, {v(vQY)}, {v(vQY+1)}")
    A(f"v_cvt_pk_bf16_f32 v19, {v(vQY+2)}, {v(vQY+3)}")
    A(f"v_lshlrev_b32 {v(vA0)}, 4, {v(vL)}")
    A(f"v_add_u32 {v(vA0)}, {L_QB}, {v(vA0)}")
    A(f"ds_write_b128 {v(vA0)}, v[16:19]")
    vQF4, vD, vPK = 128, 144, 160
    A(f"v_and_b32 {v(vA0)}, 3, {v(vN)}")
    A(f"v_lshlrev_b32 {v(vA0)}, 8, {v(vA0)}")
    A(f"v_lshl_add_u32 {v(vA0)}, {v(vS)}, 4, {v(vA0)}")
    A(f"v_add_u32 {v(vA0)}, {L_QB}, {v(vA0)}")
    for t in range(4):
        A(f"ds_read_b128 {v(vQF4+4*t,4)}, {v(vA0)} offset:{64*t}")
    for t in range(4):
        A(f"s_waitcnt lgkmcnt({3-t})")
        for T in range(4):
            c = "0" if t == 0 else v(vD+4*T,4)
            A(f"v_mfma_f32_16x16x32_bf16 {v(vD+4*T,4)}, {v(vWUK+16*T+4*t,4)}, {v(vQF4+4*t,4)}, {c}")
    A(f"s_mov_b32 {s(sT0)}, {hex(f2u(SCALE))}")
    for k in range(16):
        A(f"v_mul_f32 {v(vD+k)}, {s(sT0)}, {v(vD+k)}")
    for k in range(8):
        A(f"v_cvt_pk_bf16_f32 {v(vPK+k)}, {v(vD+2*k)}, {v(vD+2*k+1)}")
    A(f"s_mov_b64 {s(sEX,2)}, exec")
    A(f"s_mov_b32 exec_lo, 0x000f000f")
    A(f"s_mov_b32 exec_hi, 0x000f000f")
    A(f"buffer_store_dwordx4 {v(vPK,4)}, {v(vQAO)}, {s(sWS,4)}, 0 offen sc1")
    A(f"buffer_store_dwordx4 {v(vPK+4,4)}, {v(vQAO)}, {s(sWS,4)}, 0 offen offset:16 sc1")
    A(f"s_mov_b64 exec, {s(sEX,2)}")
    sum_dwords(A, 44, range(vPK, vPK+8))
    xreduce_rows(A, "v_add_u32", 44, 46)
    A(f"v_add_u32 v45, {s(sNONCE)}, v44")
    A(f"s_mov_b64 exec, 0xf")
    A(f"buffer_store_dwordx2 v[44:45], {v(vQCO)}, {s(sWS,4)}, 0 offen sc1")
    A(f"s_mov_b64 exec, {s(sEX,2)}")
    A(f"s_branch L_qdone")
    A.label("L_noq")
    if cfg.pw:
        for k in range(4): A(f"v_mov_b32 {v(60+k)}, 0")
        A(f"s_cmp_lg_u32 {s(sW)}, 1")
        A(f"s_cbranch_scc1 L_nopw1")
        partial_offsets(A, vL, vN, vS, WS_Q1, WS_Q1C, 52, 53, 54, 55, 56, 46)
        A(f"v_lshl_add_u32 v58, {v(vN)}, 5, {s(sH)}")
        A(f"v_lshlrev_b32 v59, 3, v58")
        A(f"v_add_u32 v59, {s(sJ)}, v59")
        A(f"v_lshlrev_b32 v59, 3, v59")
        A(f"v_add_u32 v59, {hex(WS_QC)}, v59")
        A(f"v_lshlrev_b32 v58, 10, v58")
        A(f"v_lshl_add_u32 v58, {v(vS)}, 5, v58")
        A(f"s_lshl_b32 {s(sT0)}, {s(sJ)}, 7")
        A(f"s_add_u32 {s(sT0)}, {s(sT0)}, {hex(WS_QA)}")
        A(f"v_add_u32 v58, {s(sT0)}, v58")
        A(f"buffer_store_dwordx4 v[60:63], v52, {s(sWS,4)}, 0 offen sc1")
        A(f"s_mov_b64 exec, 1")
        A(f"buffer_store_dwordx2 v[60:61], v53, {s(sWS,4)}, 0 offen sc1")
        A(f"s_mov_b32 exec_lo, 0x000f000f")
        A(f"s_mov_b32 exec_hi, 0x000f000f")
        A(f"buffer_store_dwordx4 v[60:63], v58, {s(sWS,4)}, 0 offen sc1")
        A(f"buffer_store_dwordx4 v[60:63], v58, {s(sWS,4)}, 0 offen offset:16 sc1")
        A(f"s_mov_b64 exec, 0xf")
        A(f"buffer_store_dwordx2 v[60:61], v59, {s(sWS,4)}, 0 offen sc1")
        A(f"s_mov_b64 exec, -1")
        A(f"s_waitcnt vmcnt(0)")
        arrive(A, FP1, 43)
        A.label("L_nopw1")
        A(f"s_cmp_lg_u32 {s(sW)}, 2")
        A(f"s_cbranch_scc1 L_nopw2")
        partial_offsets(A, vL, vN, vS, WS_C1, WS_C1C, 52, 53, 54, 55, 56, 46)
        A(f"v_lshrrev_b32 v46, 3, {v(vN)}")
        A(f"v_lshl_add_u32 v46, {v(vS)}, 4, v46")
        A(f"s_lshl_b32 {s(sT0)}, {s(sJ)}, 1")
        A(f"v_add_u32 v46, {s(sT0)}, v46")
        A(f"s_movk_i32 {s(sT1)}, {NSLOT}")
        A(f"v_mul_lo_u32 v46, v46, {s(sT1)}")
        A(f"v_add_u32 v46, {s(sH)}, v46")
        A(f"v_lshlrev_b32 v59, 3, v46")
        A(f"v_add_u32 v59, {hex(WS_FC)}, v59")
        A(f"v_and_b32 v47, 7, {v(vN)}")
        A(f"v_lshlrev_b32 v47, 3, v47")
        A(f"v_lshl_add_u32 v58, v46, 6, v47")
        A(f"v_add_u32 v58, {hex(WS_FD)}, v58")
        A(f"buffer_store_dwordx4 v[60:63], v52, {s(sWS,4)}, 0 offen sc1")
        A(f"buffer_store_dwordx2 v[60:61], v58, {s(sWS,4)}, 0 offen sc1")
        A(f"s_mov_b64 exec, 1")
        A(f"buffer_store_dwordx2 v[60:61], v53, {s(sWS,4)}, 0 offen sc1")
        A(f"s_mov_b32 exec_lo, 0x01010101")
        A(f"s_mov_b32 exec_hi, 0x01010101")
        A(f"buffer_store_dwordx2 v[60:61], v59, {s(sWS,4)}, 0 offen sc1")
        A(f"s_mov_b64 exec, -1")
        A(f"s_waitcnt vmcnt(0)")
        arrive(A, FP2, 43)
        A.label("L_nopw2")
    make_sels(A, vN, vSEL, vT)
    A(f"s_waitcnt vmcnt(0)")
    nonce_from(A, vE)
    A.label("L_qdone")
    stamp(A, cfg, 2)
    if cfg.exp in ('kvq', 'kvq1'): A(f"s_branch L_Mdone")
    vQG, vQC = 64, 80
    A(f"s_lshl_b32 {s(sT0)}, {s(sB)}, 1")
    A(f"s_add_u32 {s(sT0)}, {s(sT0)}, {s(sHG)}")
    A(f"s_lshl_b32 {s(sT0)}, {s(sT0)}, 4")
    A(f"s_lshl_b32 {s(sT1)}, {s(sW)}, 2")
    A(f"s_add_u32 {s(sT0)}, {s(sT0)}, {s(sT1)}")
    A(f"s_lshl_b32 {s(sT1)}, {s(sT0)}, 10")
    A(f"s_add_u32 {s(sT1)}, {s(sT1)}, {hex(WS_QA)}")
    A(f"v_lshl_add_u32 {v(vA0)}, {v(vL)}, 4, {s(sT1)}")
    A(f"s_lshl_b32 {s(sT1)}, {s(sT0)}, 6")
    A(f"s_add_u32 {s(sT1)}, {s(sT1)}, {hex(WS_QC)}")
    A(f"v_lshl_add_u32 {v(vA1)}, {v(vL)}, 3, {s(sT1)}")
    A(f"v_cmp_lt_u32 {s(sM0,2)}, {v(vL)}, 32")
    A(f"v_mov_b32 v43, 0x7ffffff0")
    A(f"v_cndmask_b32 {v(vA1)}, v43, {v(vA1)}, {s(sM0,2)}")
    A(f"s_mul_i32 {s(sT1)}, {s(sW)}, {4*PITCH}")
    A(f"s_add_u32 {s(sT1)}, {s(sT1)}, {L_QL}")
    A(f"v_lshl_add_u32 {v(vA2)}, {v(vL)}, 4, {s(sT1)}")
    wait_flag(A, FKV if cfg.wait_kv_first else FKI, 4, 44)
    if cfg.two_stage:
        lab0 = poll_head(A, "L_hop2t")
        A(f"buffer_load_dwordx2 {v(vQC,2)}, {v(vA1)}, {s(sWS,4)}, 0 offen sc1")
        A(f"s_waitcnt vmcnt(0)")
        A(f"v_add_u32 v45, {s(sNONCE)}, {v(vQC)}")
        A(f"v_cmp_ne_u32 vcc, v45, {v(vQC+1)}")
        A(f"s_and_b64 {s(sM1,2)}, vcc, {s(sM0,2)}")
        poll_tail(A, lab0, sM1, cfg.poll_sleep)
    lab = poll_head(A, "L_hop2")
    for i in range(4):
        A(f"buffer_load_dwordx4 {v(vQG+4*i,4)}, {v(vA0)}, {s(sWS,4)}, 0 offen offset:{1024*i} sc1")
    A(f"buffer_load_dwordx2 {v(vQC,2)}, {v(vA1)}, {s(sWS,4)}, 0 offen sc1")
    A(f"s_waitcnt vmcnt(0)")
    sum_dwords(A, 44, range(vQG, vQG+16))
    A(f"v_sub_u32 v44, v44, {v(vQC)}")
    A(f"v_add_u32 v45, {s(sNONCE)}, {v(vQC)}")
    A(f"v_cmp_ne_u32 vcc, v45, {v(vQC+1)}")
    wave_sum_u32(A, 44, 46)
    A(f"s_and_b64 {s(sM1,2)}, vcc, {s(sM0,2)}")
    A(f"v_cmp_ne_u32 vcc, 0, v44")
    A(f"s_or_b64 {s(sM1,2)}, {s(sM1,2)}, vcc")
    poll_tail(A, lab, sM1, cfg.poll_sleep)
    for i in range(4):
        A(f"ds_write_b128 {v(vA2)}, {v(vQG+4*i,4)} offset:{PITCH*i}")
    arrive(A, F3, 43)
    stamp(A, cfg, 3)
    vQF = 64
    vKE, vKO = 40, 41
    vQE, vQO = 42, 43
    A(f"s_movk_i32 {s(sT1)}, {PITCH}")
    A(f"v_mul_lo_u32 v44, {v(vN)}, {s(sT1)}")
    A(f"v_lshl_add_u32 v44, {v(vS)}, 8, v44")
    A(f"v_and_b32 v45, 1, {v(vS)}")
    A(f"v_lshlrev_b32 v45, 4, v45")
    A(f"v_add_u32 {v(vQE)}, v44, v45")
    A(f"v_sub_u32 {v(vQO)}, v44, v45")
    A(f"s_mul_i32 {s(sT0)}, {s(sW)}, {32*PITCH}")
    A(f"v_add_u32 {v(vKE)}, {s(sT0)}, {v(vQE)}")
    A(f"v_add_u32 {v(vKO)}, {s(sT0)}, {v(vQO)}")
    A(f"v_add_u32 {v(vQE)}, {L_QL}, {v(vQE)}")
    A(f"v_add_u32 {v(vQO)}, {L_QL}, {v(vQO)}")
    wait_flag(A, F3, 4, 44)
    for t in range(16):
        if t == 12: A(f"s_waitcnt lgkmcnt(8)")
        A(f"ds_read_b128 {v(vQF+4*t,4)}, {v(vQE if t%2==0 else vQO)} offset:{16*t}")
    wait_flag(A, FKV, 4, 44)
    stamp(A, cfg, 4)
    vRING = 128
    vS0, vS1 = 32, 36
    LOOK = 6
    def kvread(t, tt):
        slot = (2*t+tt) % 16
        A(f"ds_read_b128 {v(vRING+4*slot,4)}, {v(vKE if t%2==0 else vKO)} offset:{16*t + tt*16*PITCH}")
    for t in range(LOOK):
        kvread(t,0); kvread(t,1)
    for t in range(16):
        rem = min(LOOK-1, 15-t)
        A(f"s_waitcnt lgkmcnt({2*rem})")
        for tt in range(2):
            slot = (2*t+tt) % 16
            acc = vS0 if tt == 0 else vS1
            c = "0" if t == 0 else v(acc,4)
            A(f"v_mfma_f32_16x16x32_bf16 {v(acc,4)}, {v(vRING+4*slot,4)}, {v(vQF+4*t,4)}, {c}")
        if t + LOOK < 16:
            kvread(t+LOOK,0); kvread(t+LOOK,1)
    vM, vTm = 44, 45
    vPA0, vPA1 = 40, 41
    A(f"v_lshrrev_b32 v46, 2, {v(vL)}")
    A(f"s_movk_i32 {s(sT1)}, {PITCH}")
    A(f"v_mul_lo_u32 v46, v46, {s(sT1)}")
    A(f"v_and_b32 v47, 3, {v(vL)}")
    A(f"v_lshl_add_u32 v46, v47, 3, v46")
    A(f"s_lshl_b32 {s(sT0)}, {s(sW)}, 8")
    A(f"v_add_u32 {v(vPA0)}, {s(sT0)}, v46")
    A(f"v_add_u32 {v(vPA1)}, {64*PITCH}, {v(vPA0)}")
    A(f"v_lshlrev_b32 v42, 4, {v(vN)}")
    A(f"v_add_u32 v42, {L_MX}, v42")
    A(f"s_lshl_b32 {s(sT0)}, {s(sW)}, 2")
    A(f"v_add_u32 v43, {s(sT0)}, v42")
    A(f"v_max3_f32 {v(vM)}, {v(vS0)}, {v(vS0+1)}, {v(vS0+2)}")
    A(f"v_max3_f32 {v(vM)}, {v(vM)}, {v(vS0+3)}, {v(vS1)}")
    A(f"v_max3_f32 {v(vM)}, {v(vM)}, {v(vS1+1)}, {v(vS1+2)}")
    A(f"v_max_f32 {v(vM)}, {v(vM)}, {v(vS1+3)}")
    xreduce_rows(A, "v_max_f32", vM, vTm)
    A(f"ds_write_b32 v43, {v(vM)}")
    arrive(A, F4, 47)
    wait_flag(A, F4, 4, 47, lambda: A(f"ds_read_b128 v[48:51], v42"))
    def pvread(g, T):
        slot = (g*8+T) % 16
        base = vPA0 if g < 2 else vPA1
        off = (32*(g%2))*PITCH + T*32
        A(f"ds_read_b64_tr_b16 {v(vRING+4*slot,2)}, {v(base)} offset:{off}")
        A(f"ds_read_b64_tr_b16 {v(vRING+4*slot+2,2)}, {v(base)} offset:{off+16*PITCH}")
    PRE = 6
    for k in range(PRE): pvread(k//8, k%8)
    A(f"v_max3_f32 {v(vM)}, v48, v49, v50")
    A(f"v_max_f32 {v(vM)}, {v(vM)}, v51")
    for k in range(8):
        A(f"v_sub_f32 {v(vS0+k)}, {v(vS0+k)}, {v(vM)}")
    for k in range(8):
        A(f"v_exp_f32 {v(vS0+k)}, {v(vS0+k)}")
    vLs = 46
    A(f"v_add_f32 {v(vLs)}, {v(vS0)}, {v(vS0+1)}")
    A(f"v_add_f32 v47, {v(vS0+2)}, {v(vS0+3)}")
    A(f"v_add_f32 v48, {v(vS0+4)}, {v(vS0+5)}")
    A(f"v_add_f32 v49, {v(vS0+6)}, {v(vS0+7)}")
    for k in range(4):
        A(f"v_cvt_pk_bf16_f32 {v(52+k)}, {v(vS0+2*k)}, {v(vS0+2*k+1)}")
    A(f"v_add_f32 {v(vLs)}, {v(vLs)}, v47")
    A(f"v_add_f32 v48, v48, v49")
    A(f"v_add_f32 {v(vLs)}, {v(vLs)}, v48")
    A(f"v_lshlrev_b32 v60, 4, {v(vL)}")
    A(f"v_add_u32 v60, {L_PB}, v60")
    A(f"s_lshl_b32 {s(sT0)}, {s(sW)}, 10")
    A(f"v_add_u32 v61, {s(sT0)}, v60")
    A(f"ds_write_b128 v61, v[52:55]")
    xreduce_rows(A, "v_add_f32", vLs, 47)
    A(f"ds_write_b32 v43, {v(vLs)} offset:{L_LS-L_MX}")
    arrive(A, F5, 47)
    vPF, vO = 64, 80
    def _rd():
        for g in range(4):
            A(f"ds_read_b128 {v(vPF+4*g,4)}, v60 offset:{1024*g}")
        A(f"ds_read_b128 v[48:51], v42 offset:{L_LS-L_MX}")
    wait_flag(A, F5, 4, 47, _rd)
    nxt = PRE
    outstanding = []
    def issue(k):
        pvread(k//8, k%8); outstanding.extend([("f",k),("f",k)])
    while len(outstanding) + 2 <= 15:
        issue(nxt); nxt += 1
    for k in range(32):
        g, T = k//8, k%8
        need_idx = -1
        for idx, o in enumerate(outstanding):
            if o == "P" and k == 0: need_idx = max(need_idx, idx)
            if o == ("f",k): need_idx = max(need_idx, idx)
        can = nxt < 32 and nxt <= k + 15
        if can:
            need_idx = max(need_idx, len(outstanding) + 2 - 15 - 1)
        if need_idx >= 0:
            n_after = len(outstanding) - 1 - need_idx
            A(f"s_waitcnt lgkmcnt({n_after})")
            del outstanding[:need_idx+1]
        slot = k % 16
        c = "0" if g == 0 else v(vO+4*T,4)
        A(f"v_mfma_f32_16x16x32_bf16 {v(vO+4*T,4)}, {v(vRING+4*slot,4)}, {v(vPF+4*g,4)}, {c}")
        if can:
            issue(nxt); nxt += 1
    if outstanding: A(f"s_waitcnt lgkmcnt(0)")
    stamp(A, cfg, 5)
    if cfg.pw_op: wait_flag(A, FP3, 1, 52)
    vPK = 112
    A(f"v_add_f32 v48, v48, v49")
    A(f"v_add_f32 v50, v50, v51")
    A(f"v_add_f32 v47, v48, v50")
    A(f"s_lshl_b32 {s(sT0)}, {s(sHG)}, 4")
    A(f"v_add_u32 v48, {s(sT0)}, {v(vN)}")
    A(f"v_lshlrev_b32 v48, 10, v48")
    A(f"s_lshl_b32 {s(sT0)}, {s(sW)}, 8")
    A(f"s_lshl_b32 {s(sT1)}, {s(sB)}, 5")
    A(f"s_add_u32 {s(sT0)}, {s(sT0)}, {s(sT1)}")
    A(f"s_add_u32 {s(sT0)}, {s(sT0)}, {s(sKC)}")
    A(f"v_add_u32 v48, {s(sT0)}, v48")
    A(f"v_and_b32 v49, 1, {v(vS)}")
    A(f"v_lshlrev_b32 v49, 1, v49")
    A(f"v_lshrrev_b32 v50, 1, {v(vS)}")
    A(f"v_add_u32 v49, v49, v50")
    A(f"v_lshlrev_b32 v49, 4, v49")
    A(f"v_lshl_add_u32 v49, v48, 7, v49")
    A(f"v_add_u32 v49, {hex(WS_OP)}, v49")
    A(f"v_add_u32 v50, {128*128}, v49")
    A(f"v_lshl_add_u32 v48, {v(vS)}, 7, v48")
    A(f"v_lshlrev_b32 v48, 4, v48")
    A(f"v_add_u32 v48, {hex(WS_ST)}, v48")
    for T in range(8):
        A(f"v_cvt_pk_bf16_f32 {v(vPK+2*T)}, {v(vO+4*T)}, {v(vO+4*T+1)}")
        A(f"v_cvt_pk_bf16_f32 {v(vPK+2*T+1)}, {v(vO+4*T+2)}, {v(vO+4*T+3)}")
    for p in range(4):
        A(f"v_permlane16_swap_b32 {v(vPK+4*p)}, {v(vPK+4*p+2)}")
        A(f"v_permlane16_swap_b32 {v(vPK+4*p+1)}, {v(vPK+4*p+3)}")
    for p in range(4):
        base = 49 if p < 2 else 50
        A(f"buffer_store_dwordx4 {v(vPK+4*p,4)}, {v(base)}, {s(sWS,4)}, 0 offen offset:{64*(p%2)} sc1")
    sum_dwords(A, 52, range(vPK, vPK+8))
    sum_dwords(A, 53, range(vPK+8, vPK+16))
    xreduce_rows2(A, "v_add_u32", 52, 54, "v_add_u32", 53, 55)
    A(f"v_cmp_eq_u32 vcc, 1, {v(vS)}")
    A(f"v_mov_b32 v60, {v(vM)}")
    A(f"v_mov_b32 v61, v47")
    A(f"v_cndmask_b32 v62, v52, v53, vcc")
    A(f"v_add3_u32 v63, v60, v61, v62")
    A(f"v_add_u32 v63, {s(sNONCE)}, v63")
    A(f"s_mov_b64 {s(sEX,2)}, exec")
    A(f"s_mov_b32 exec_hi, 0")
    A(f"buffer_store_dwordx4 v[60:63], v48, {s(sWS,4)}, 0 offen sc1")
    A(f"s_mov_b64 exec, {s(sEX,2)}")
    stamp(A, cfg, 6)
    vOD, vST = 128, 144
    A(f"s_lshl_b32 {s(sT0)}, {s(sH)}, 3")
    A(f"s_add_u32 {s(sT0)}, {s(sT0)}, {s(sJ)}")
    A(f"s_lshl_b32 {s(sT0)}, {s(sT0)}, 2")
    A(f"s_add_u32 {s(sT0)}, {s(sT0)}, {s(sW)}")
    A(f"s_lshl_b32 {s(sT0)}, {s(sT0)}, 5")
    A(f"s_lshl_b32 {s(sT1)}, {s(sT0)}, 7")
    A(f"s_add_u32 {s(sT1)}, {s(sT1)}, {hex(WS_OP)}")
    A(f"v_lshl_add_u32 v40, {v(vL)}, 4, {s(sT1)}")
    A(f"s_lshl_b32 {s(sT1)}, {s(sT0)}, 4")
    A(f"s_add_u32 {s(sT1)}, {s(sT1)}, {hex(WS_ST)}")
    A(f"v_and_b32 v41, 31, {v(vL)}")
    A(f"v_lshl_add_u32 v41, v41, 4, {s(sT1)}")
    A(f"v_cmp_gt_u32 {s(sM0,2)}, 32, {v(vL)}")
    A(f"v_bfe_u32 v42, {v(vN)}, 2, 1")
    A(f"v_lshl_add_u32 v42, {v(vS)}, 1, v42")
    A(f"v_lshlrev_b32 v42, 2, v42")
    if cfg.two_stage:
        lab0 = poll_head(A, "L_hop3t")
        A(f"buffer_load_dwordx4 {v(vST,4)}, v41, {s(sWS,4)}, 0 offen sc1")
        A(f"s_waitcnt vmcnt(0)")
        A(f"v_add3_u32 v45, {v(vST)}, {v(vST+1)}, {v(vST+2)}")
        A(f"v_add_u32 v45, {s(sNONCE)}, v45")
        A(f"v_cmp_ne_u32 {s(sM1,2)}, v45, {v(vST+3)}")
        poll_tail(A, lab0, sM1, cfg.poll_sleep)
    lab = poll_head(A, "L_hop3")
    for i in range(4):
        A(f"buffer_load_dwordx4 {v(vOD+4*i,4)}, v40, {s(sWS,4)}, 0 offen offset:{1024*i} sc1")
    A(f"buffer_load_dwordx4 {v(vST,4)}, v41, {s(sWS,4)}, 0 offen sc1")
    A(f"s_waitcnt vmcnt(0)")
    sum_dwords(A, 44, range(vOD, vOD+16))
    A(f"v_cndmask_b32 v45, 0, {v(vST+2)}, {s(sM0,2)}")
    A(f"v_sub_u32 v44, v44, v45")
    A(f"v_add3_u32 v45, {v(vST)}, {v(vST+1)}, {v(vST+2)}")
    A(f"v_add_u32 v45, {s(sNONCE)}, v45")
    A(f"v_cmp_ne_u32 {s(sM1,2)}, v45, {v(vST+3)}")
    wave_sum_u32(A, 44, 46)
    A(f"v_cmp_ne_u32 vcc, 0, v44")
    A(f"s_or_b64 {s(sM1,2)}, {s(sM1,2)}, vcc")
    poll_tail(A, lab, sM1, cfg.poll_sleep)
    stamp(A, cfg, 7)
    A(f"v_mov_b32 v44, {v(vST)}")
    for d in ("quad_perm:[1,0,3,2]", "quad_perm:[2,3,0,1]", "row_half_mirror", "row_mirror"):
        A(f"v_max_f32_dpp v44, v44, v44 {d} row_mask:0xf bank_mask:0xf")
    A(f"v_mov_b32 v46, v44")
    A(f"v_permlane16_swap_b32 v44, v46")
    A(f"v_max_f32 v44, v44, v46")
    A(f"v_sub_f32 v44, {v(vST)}, v44")
    A(f"v_exp_f32 v44, v44")
    A(f"v_mul_f32 v45, v44, {v(vST+1)}")
    for d in ("quad_perm:[1,0,3,2]", "quad_perm:[2,3,0,1]", "row_half_mirror", "row_mirror"):
        A(f"v_add_f32_dpp v45, v45, v45 {d} row_mask:0xf bank_mask:0xf")
    A(f"v_mov_b32 v46, v45")
    A(f"v_permlane16_swap_b32 v45, v46")
    A(f"v_add_f32 v45, v45, v46")
    A(f"v_rcp_f32 v45, v45")
    A(f"v_mul_f32 v44, v44, v45")
    for k in range(4):
        A(f"ds_bpermute_b32 {v(48+k)}, v42, v44 offset:{32*k}")
    A(f"s_waitcnt lgkmcnt(0)")
    A(f"v_cvt_pk_bf16_f32 v52, v48, v49")
    A(f"v_cvt_pk_bf16_f32 v53, v50, v51")
    for t in range(2):
        sel_gemm_step(A, 52+t, vSEL, vAF0 if t % 2 == 0 else vAF1, vOD+8*t, vQX, vQY, t == 0)
    for k in range(8):
        A(f"v_permlane16_swap_b32 {v(vQX+k)}, {v(56+k)}")
    for k in range(8):
        A(f"v_add_f32_dpp {v(56+k)}, {v(56+k)}, {v(vQX+k)} row_ror:8 row_mask:0xf bank_mask:0xf")
    for k in range(4):
        A(f"v_cvt_pk_bf16_f32 {v(48+k)}, {v(56+2*k)}, {v(56+2*k+1)}")
    A(f"s_lshl_b32 {s(sT0)}, {s(sW)}, 7")
    A(f"s_add_u32 {s(sT0)}, {s(sT0)}, {L_CC}")
    A(f"v_lshl_add_u32 v46, {v(vL)}, 4, {s(sT0)}")
    A(f"s_mov_b64 {s(sEX,2)}, exec")
    A(f"s_mov_b64 exec, 0xff")
    A(f"ds_write_b128 v46, v[48:51]")
    A(f"s_mov_b64 exec, {s(sEX,2)}")
    arrive(A, FCC, 47)
    stamp(A, cfg, 8)
    A(f"s_cmp_ge_u32 s2, 64")
    A(f"s_cbranch_scc1 L_Mdone")
    A(f"s_cmp_lg_u32 {s(sW)}, 0")
    A(f"s_cbranch_scc1 L_Mdone")
    vFD, vFC = 128, 152
    A(f"s_mul_i32 {s(sT0)}, s2, {NSLOT}")
    A(f"s_lshl_b32 {s(sT2)}, {s(sT0)}, 6")
    A(f"s_add_u32 {s(sT2)}, {s(sT2)}, {hex(WS_FD)}")
    A(f"v_lshl_add_u32 v40, {v(vL)}, 4, {s(sT2)}")
    A(f"s_lshl_b32 {s(sT2)}, {s(sT0)}, 3")
    A(f"s_add_u32 {s(sT2)}, {s(sT2)}, {hex(WS_FC)}")
    A(f"v_lshl_add_u32 v41, {v(vL)}, 3, {s(sT2)}")
    A(f"v_mov_b32 v47, 0x7ffffff0")
    A(f"v_lshrrev_b32 v44, 2, {v(vL)}")
    A(f"v_cmp_gt_u32 vcc, {NPROD-64}, v44")
    A(f"v_add_u32 v46, 4096, v40")
    A(f"v_cndmask_b32 v42, v47, v46, vcc")
    A(f"v_cmp_gt_u32 {s(sM2,2)}, {NPROD-64}, {v(vL)}")
    A(f"v_add_u32 v46, 512, v41")
    A(f"v_cndmask_b32 v43, v47, v46, {s(sM2,2)}")
    A(f"v_and_b32 v44, 3, {v(vN)}")
    A(f"v_mov_b32 v45, 0")
    for k, (j0, j1) in enumerate(((0,1),(2,3))):
        A(f"v_mov_b32 v46, 0x3f80")
        A(f"v_cmp_eq_u32 vcc, {j0}, v44")
        A(f"v_cndmask_b32 {v(vAF0+k)}, v45, v46, vcc")
        A(f"v_mov_b32 v46, 0x3f800000")
        A(f"v_cmp_eq_u32 vcc, {j1}, v44")
        A(f"v_cndmask_b32 {v(vAF0+k)}, {v(vAF0+k)}, v46, vcc")
    A(f"v_mov_b32 {v(vAF0+2)}, {v(vAF0)}")
    A(f"v_mov_b32 {v(vAF0+3)}, {v(vAF0+1)}")
    for k in range(4): A(f"v_mov_b32 {v(vFD+20+k)}, 0")
    A(f"s_lshl_b32 {s(sT3)}, s2, 6")
    A(f"v_lshl_add_u32 v57, {v(vL)}, 4, {s(sT3)}")
    if cfg.nomlp:
        A(f"v_mov_b32 v42, v47")
        A(f"v_mov_b32 v43, v47")
        A(f"v_cmp_gt_u32 vcc, 32, {v(vL)}")
        A(f"v_cndmask_b32 v41, v47, v41, vcc")
        A(f"s_mov_b64 {s(sM2,2)}, 0")
        A(f"v_cmp_gt_u32 s[100:101], 32, {v(vL)}")
        for k in range(8,16): A(f"v_mov_b32 {v(vFD+k)}, 0")
    lab = poll_head(A, "L_hop5")
    for i in range(2 if cfg.nomlp else 4):
        A(f"buffer_load_dwordx4 {v(vFD+4*i,4)}, v40, {s(sWS,4)}, 0 offen offset:{1024*i} sc1")
    A(f"buffer_load_dwordx4 {v(vFD+16,4)}, v42, {s(sWS,4)}, 0 offen sc1")
    A(f"buffer_load_dwordx2 {v(vFC,2)}, v41, {s(sWS,4)}, 0 offen sc1")
    A(f"buffer_load_dwordx2 {v(vFC+2,2)}, v43, {s(sWS,4)}, 0 offen sc1")
    A(f"s_waitcnt vmcnt(0)")
    sum_dwords(A, 44, range(vFD, vFD+20))
    A(f"v_sub_u32 v44, v44, {v(vFC)}")
    A(f"v_sub_u32 v44, v44, {v(vFC+2)}")
    A(f"v_add_u32 v45, {s(sNONCE)}, {v(vFC)}")
    A(f"v_cmp_ne_u32 {s(sM1,2)}, v45, {v(vFC+1)}")
    if cfg.nomlp: A(f"s_and_b64 {s(sM1,2)}, {s(sM1,2)}, s[100:101]")
    A(f"v_add_u32 v45, {s(sNONCE)}, {v(vFC+2)}")
    A(f"v_cmp_ne_u32 vcc, v45, {v(vFC+3)}")
    A(f"s_and_b64 {s(sM3,2)}, vcc, {s(sM2,2)}")
    A(f"s_or_b64 {s(sM1,2)}, {s(sM1,2)}, {s(sM3,2)}")
    wave_sum_u32(A, 44, 46)
    A(f"v_cmp_ne_u32 vcc, 0, v44")
    A(f"s_or_b64 {s(sM1,2)}, {s(sM1,2)}, vcc")
    poll_tail(A, lab, sM1, cfg.poll_sleep)
    stamp(A, cfg, 9)
    for p in range(3):
        w = vFD + 8*p
        A(f"v_swap_b32 {v(w+2)}, {v(w+4)}")
        A(f"v_swap_b32 {v(w+3)}, {v(w+5)}")
    for p in range(3):
        w = vFD + 8*p
        c0 = "0" if p == 0 else v(vQX,4); c1 = "0" if p == 0 else v(vQY,4)
        A(f"v_mfma_f32_16x16x32_bf16 {v(vQX,4)}, {v(vAF0,4)}, {v(w,4)}, {c0}")
        A(f"v_mfma_f32_16x16x32_bf16 {v(vQY,4)}, {v(vAF0,4)}, {v(w+4,4)}, {c1}")
    for d in ("row_ror:4", "row_ror:8"):
        for k in range(8):
            A(f"v_add_f32_dpp {v(vQX+k)}, {v(vQX+k)}, {v(vQX+k)} {d} row_mask:0xf bank_mask:0xf")
    for k in range(4):
        A(f"v_cvt_pk_bf16_f32 {v(48+k)}, {v(vQX+2*k)}, {v(vQX+2*k+1)}")
    A(f"s_mov_b64 exec, 0xf")
    A(f"buffer_store_dwordx4 v[48:51], v57, {s(sOUT,4)}, 0 offen")
    A(f"s_cmp_lg_u32 s2, 0")
    A(f"s_cbranch_scc1 L_Mdone")
    A(f"s_add_u32 {s(sT0)}, {s(sE)}, 1")
    A(f"v_mov_b32 v52, {s(sT0)}")
    A(f"v_mov_b32 v53, {hex(WS_E)}")
    A(f"s_mov_b64 exec, 1")
    A(f"buffer_store_dword v52, v53, {s(sWS,4)}, 0 offen sc1")
    A.label("L_Mdone")
    if cfg.ts:
        A(f"s_mov_b64 exec, -1")
        emit_ts(A, cfg)
    A(f"s_endpgm")
    A.label("L_Lpath")
    vGX, vGW = 64, 80
    vW1, vW2, vB1, vH = 128, 160, 192, 196
    A(f"s_sub_u32 {s(sW)}, {s(sW)}, 4")
    A(f"v_lshlrev_b32 v40, 4, {v(vL)}")
    A(f"v_mov_b32 v43, {hex(WS_E)}")
    if cfg.prefetch_code:
        A(f"s_cmp_lg_u32 {s(sW)}, 3")
        A(f"s_cbranch_scc1 L_nopf")
        A(f"s_getpc_b64 s[66:67]")
        A.label("L_pcref")
        A(f"s_sub_u32 s66, s66, (L_pcref-{KNAME})")
        A(f"s_subb_u32 s67, s67, 0")
        A(f"s_lshl_b32 {s(sT2)}, {s(sR)}, 10")
        A(f"v_lshl_add_u32 v44, {v(vL)}, 7, {s(sT2)}")
        A(f"v_cmp_gt_u32 vcc, (L_end-{KNAME}), v44")
        A(f"v_cmp_gt_u32 {s(sM3,2)}, 8, {v(vL)}")
        A(f"s_and_b64 vcc, vcc, {s(sM3,2)}")
        A(f"s_and_saveexec_b64 {s(sEX,2)}, vcc")
        A(f"s_cbranch_execz L_pfskip")
        A(f"global_load_dword v63, v44, s[66:67]")
        A.label("L_pfskip")
        A(f"s_mov_b64 exec, {s(sEX,2)}")
        A.label("L_nopf")
    A(f"s_lshl_b32 {s(sT0)}, {s(sB)}, 12")
    A(f"s_lshl_b32 {s(sT1)}, {s(sKC)}, 7")
    A(f"s_add_u32 {s(sT0)}, {s(sT0)}, {s(sT1)}")
    A(f"s_lshl_b32 {s(sT1)}, {s(sW)}, 5")
    A(f"s_add_u32 {s(sT0)}, {s(sT0)}, {s(sT1)}")
    A(f"s_lshl_b32 {s(sT0)}, {s(sT0)}, 10")
    A(f"s_mul_i32 {s(sT1)}, {s(sW)}, {32*PITCH}")
    A(f"s_mov_b32 m0, {s(sT1)}")
    A(f"s_mov_b32 {s(sCNT)}, 0")
    if cfg.l_delay: wait_flag(A, FW, 1, 45)
    A.label("L_dma")
    if cfg.kvwin < 32: A(f"s_waitcnt vmcnt({cfg.kvwin-1})")
    A(f"buffer_load_dwordx4 v40, {s(sKV,4)}, {s(sT0)} offen{NTKV} lds")
    A(f"s_add_u32 m0, m0, {PITCH}")
    A(f"s_add_u32 {s(sT0)}, {s(sT0)}, 1024")
    A(f"s_add_u32 {s(sCNT)}, {s(sCNT)}, 1")
    A(f"s_cmp_lt_u32 {s(sCNT)}, 32")
    A(f"s_cbranch_scc1 L_dma")
    arrive(A, FKI, 45)
    stamp(A, cfg, 2, L=True)
    make_sels(A, vN, vSEL, 44)
    if cfg.pw_op:
        A(f"s_cmp_lg_u32 {s(sW)}, 1")
        A(f"s_cbranch_scc1 L_nopw3")
        A(f"s_lshl_b32 {s(sT0)}, {s(sHG)}, 4")
        A(f"v_add_u32 v48, {s(sT0)}, {v(vN)}")
        A(f"v_lshlrev_b32 v48, 10, v48")
        A(f"s_lshl_b32 {s(sT1)}, {s(sB)}, 5")
        A(f"s_add_u32 {s(sT0)}, {s(sT1)}, {s(sKC)}")
        A(f"v_add_u32 v48, {s(sT0)}, v48")
        A(f"v_lshlrev_b32 v49, 4, {v(vS)}")
        A(f"v_lshl_add_u32 v49, v48, 7, v49")
        A(f"v_add_u32 v49, {hex(WS_OP)}, v49")
        A(f"v_lshl_add_u32 v48, {v(vS)}, 7, v48")
        A(f"v_lshlrev_b32 v48, 4, v48")
        A(f"v_add_u32 v48, {hex(WS_ST)}, v48")
        for k in range(4): A(f"v_mov_b32 {v(52+k)}, 0")
        A(f"s_mov_b32 {s(sT2)}, 0")
        for q in range(8):
            for u in range(2):
                A(f"buffer_store_dwordx4 v[52:55], v49, {s(sWS,4)}, {s(sT2)} offen offset:{64*u} sc1")
            if q < 7: A(f"s_add_u32 {s(sT2)}, {s(sT2)}, 16384")
        A(f"s_mov_b32 {s(sT2)}, 0")
        A(f"s_mov_b32 exec_hi, 0")
        for mw in range(4):
            A(f"buffer_store_dwordx4 v[52:55], v48, {s(sWS,4)}, {s(sT2)} offen sc1")
            if mw < 3: A(f"s_add_u32 {s(sT2)}, {s(sT2)}, 4096")
        A(f"s_mov_b64 exec, -1")
        A(f"s_waitcnt vmcnt(20)")
        arrive(A, FKV, 45)
        A(f"s_waitcnt vmcnt(0)")
        arrive(A, FP3, 45)
        A(f"s_branch L_gate")
        A.label("L_nopw3")
    A(f"s_waitcnt vmcnt(0)")
    arrive(A, FKV, 45)
    stamp(A, cfg, 3, L=True)
    if cfg.exp: A(f"s_branch L_Ldone")
    A(f"s_cmp_eq_u32 {s(sW)}, 0")
    A(f"s_cbranch_scc1 L_tail")
    A(f"s_cmp_lg_u32 {s(sW)}, 1")
    A(f"s_cbranch_scc1 L_mlpw")
    A.label("L_gate")
    for b in range(4):
        A(f"buffer_load_dwordx4 {v(vGX+4*b,4)}, v40, {s(sX,4)}, 0 offen offset:{1024*b}")
    A(f"buffer_load_dwordx4 {v(vGW,4)}, v40, {s(sGW,4)}, 0 offen")
    for b in range(4):
        A(f"v_mov_b32 {v(44+b)}, 0")
    A(f"s_waitcnt vmcnt(0)")
    for k in range(4):
        for b in range(4):
            A(f"v_dot2_f32_bf16 {v(44+b)}, {v(vGX+4*b+k)}, {v(vGW+k)}, {v(44+b)}")
    A("s_nop 3")
    for d in ("quad_perm:[1,0,3,2]", "quad_perm:[2,3,0,1]", "row_half_mirror", "row_mirror"):
        for b in range(4):
            A(f"v_add_f32_dpp {v(44+b)}, {v(44+b)}, {v(44+b)} {d} row_mask:0xf bank_mask:0xf")
    xreduce_rows2(A, "v_add_f32", 44, 48, "v_add_f32", 45, 49)
    xreduce_rows2(A, "v_add_f32", 46, 48, "v_add_f32", 47, 49)
    A(f"v_cmp_eq_u32 vcc, 1, {v(vS)}")
    A(f"v_cndmask_b32 v44, v44, v45, vcc")
    A(f"v_cmp_eq_u32 vcc, 2, {v(vS)}")
    A(f"v_cndmask_b32 v44, v44, v46, vcc")
    A(f"v_cmp_eq_u32 vcc, 3, {v(vS)}")
    A(f"v_cndmask_b32 v44, v44, v47, vcc")
    A(f"s_mov_b32 {s(sT0)}, {hex(f2u(-LOG2E))}")
    A(f"v_mul_f32 v44, {s(sT0)}, v44")
    A(f"v_exp_f32 v44, v44")
    A(f"v_add_f32 v44, 1.0, v44")
    A(f"v_rcp_f32 v58, v44")
    A(f"v_lshlrev_b32 v45, 2, {v(vS)}")
    A(f"v_add_u32 v45, {L_G}, v45")
    A(f"ds_write_b32 v45, v58")
    arrive(A, FG, 45)
    A(f"s_branch L_Ldone")
    A.label("L_mlpw")
    if cfg.nomlp: A(f"s_branch L_Ldone")
    A(f"s_sub_u32 {s(sT4)}, s2, {MLP0}")
    A(f"s_cmp_ge_u32 {s(sT4)}, {NMLP}")
    A(f"s_cbranch_scc1 L_Ldone")
    A(f"s_sub_u32 {s(sT3)}, {s(sW)}, 2")
    if cfg.pw:
        A(f"s_add_u32 {s(sT5)}, {s(sT4)}, 32")
        for k in range(4): A(f"v_mov_b32 {v(16+k)}, 0")
        for cc in range(2):
            A(f"s_lshl_b32 {s(sCNT)}, {s(sT3)}, 1")
            A(f"s_add_u32 {s(sCNT)}, {s(sCNT)}, {cc}")
            final_offsets(A, vN, vS, sCNT, sT5, 46, 48, 60)
            A(f"buffer_store_dwordx4 v[16:19], v46, {s(sWS,4)}, 0 offen sc1")
            A(f"s_mov_b32 exec_lo, 0x11111111")
            A(f"s_mov_b32 exec_hi, 0x11111111")
            A(f"buffer_store_dwordx2 v[16:17], v48, {s(sWS,4)}, 0 offen sc1")
            A(f"s_mov_b64 exec, -1")
    vXM, vMW1, vMW2, vMB1, vMH = 64, 128, 192, 96, 100
    A(f"buffer_load_dword v47, v43, {s(sWS,4)}, 0 offen sc1")
    A(f"v_lshrrev_b32 v41, 2, {v(vN)}")
    A(f"v_lshlrev_b32 v41, 10, v41")
    A(f"v_lshl_add_u32 v41, {v(vS)}, 7, v41")
    A(f"s_lshl_b32 {s(sT0)}, {s(sT3)}, 9")
    A(f"v_add_u32 v41, {s(sT0)}, v41")
    for k in range(8):
        A(f"buffer_load_dwordx4 {v(vXM+4*k,4)}, v41, {s(sX,4)}, 0 offen offset:{16*k}")
    A(f"s_lshl_b32 {s(sT0)}, {s(sT4)}, 6")
    A(f"v_lshl_add_u32 v41, {v(vS)}, 4, {s(sT0)}")
    A(f"buffer_load_dwordx4 {v(vMB1,4)}, v41, {s(sB1,4)}, 0 offen")
    A(f"s_lshl_b32 {s(sT0)}, {s(sT3)}, 8")
    A(f"v_lshl_add_u32 v41, {v(vS)}, 6, {s(sT0)}")
    A(f"s_movk_i32 {s(sT1)}, 2752")
    A(f"v_mul_lo_u32 v41, v41, {s(sT1)}")
    A(f"s_lshl_b32 {s(sT0)}, {s(sT4)}, 6")
    A(f"v_lshl_add_u32 v41, {v(vN)}, 2, v41")
    A(f"v_add_u32 v41, {s(sT0)}, v41")
    A(f"s_mov_b32 {s(sT2)}, 0")
    for k in range(64):
        if k >= cfg.mlpwin1 and k % 4 == 0: A(f"s_waitcnt vmcnt({min(63, cfg.mlpwin1-4)})")
        A(f"buffer_load_dword {v(vMW1+k)}, v41, {s(sW1,4)}, {s(sT2)} offen{NT}")
        if k < 63: A(f"s_add_u32 {s(sT2)}, {s(sT2)}, 2752")
    A(f"s_lshl_b32 {s(sT0)}, {s(sT4)}, 15")
    A(f"s_lshl_b32 {s(sT1)}, {s(sT3)}, 9")
    A(f"s_add_u32 {s(sT0)}, {s(sT0)}, {s(sT1)}")
    A(f"v_lshlrev_b32 v41, 13, {v(vS)}")
    A(f"v_lshl_add_u32 v41, {v(vN)}, 4, v41")
    A(f"v_add_u32 v41, {s(sT0)}, v41")
    A(f"v_add_u32 v42, 256, v41")
    A(f"s_movk_i32 {s(sT2)}, 4096")
    for cc in range(2):
        for k in range(8):
            so = "0" if k < 4 else s(sT2)
            A(f"s_waitcnt vmcnt({cfg.mlpwin2-1})")
            A(f"buffer_load_dwordx4 {v(vMW2+32*cc+4*k,4)}, {v(41+cc)}, {s(sW2,4)}, {so} offen offset:{1024*(k%4)}{NT}")
    vHX = 32
    vSL0, vSL1 = 44, 45
    A(f"v_and_b32 v46, 1, {v(vN)}")
    A(f"v_cmp_eq_u32 vcc, 0, v46")
    A(f"v_mov_b32 v46, 0x01000c0c")
    A(f"v_mov_b32 v48, 0x0c0c0100")
    A(f"v_cndmask_b32 {v(vSL0)}, v46, v48, vcc")
    A(f"v_mov_b32 v46, 0x03020c0c")
    A(f"v_mov_b32 v48, 0x0c0c0302")
    A(f"v_cndmask_b32 {v(vSL1)}, v46, v48, vcc")
    A(f"s_waitcnt vmcnt({min(16, cfg.mlpwin2)})")
    nonce_from(A, 47)
    for t in range(16):
        af = vAF0 if t % 2 == 0 else vAF1
        for rr in range(4):
            A(f"v_perm_b32 {v(af+rr)}, {v(vXM+2*t+(rr>>1))}, {v(vXM+2*t+(rr>>1))}, {v(vSL0 if rr%2==0 else vSL1)}")
        c = "0" if t == 0 else v(vHX,4)
        A(f"v_mfma_f32_16x16x32_bf16 {v(vHX,4)}, {v(af,4)}, {v(vMW1+4*t,4)}, {c}")
    A(f"v_lshlrev_b32 v46, 7, {v(vS)}")
    A(f"v_lshl_add_u32 v46, {v(vN)}, 3, v46")
    A(f"s_lshl_b32 {s(sT0)}, {s(sT3)}, 9")
    A(f"s_add_u32 {s(sT0)}, {s(sT0)}, {L_HR}")
    A(f"v_add_u32 v46, {s(sT0)}, v46")
    A(f"ds_write_b64 v46, {v(vHX,2)}")
    arrive(A, F5B, 47)
    A(f"v_lshrrev_b32 v46, 2, {v(vN)}")
    A(f"v_lshlrev_b32 v47, 7, v46")
    A(f"v_lshl_add_u32 v47, {v(vS)}, 5, v47")
    A(f"v_add_u32 v47, {L_HR}, v47")
    A(f"v_lshlrev_b32 v48, 2, {v(vS)}")
    A(f"v_add_u32 v48, {L_G}, v48")
    wait_flag(A, FG, 1, 46)
    vH = vMH
    def _rd():
        for ww in range(2):
            A(f"ds_read_b128 {v(vH+8*ww,4)}, v47 offset:{512*ww}")
            A(f"ds_read_b128 {v(vH+8*ww+4,4)}, v47 offset:{512*ww+16}")
        A(f"ds_read_b32 v49, v48")
    wait_flag(A, F5B, 2, 46, _rd)
    for e in range(8):
        A(f"v_add_f32 {v(vH+e)}, {v(vH+e)}, {v(vH+8+e)}")
    for e in range(8):
        r = vMB1 + e//2
        if e % 2 == 0: A(f"v_lshlrev_b32 {v(vH+8+e)}, 16, {v(r)}")
        else: A(f"v_and_b32 {v(vH+8+e)}, 0xffff0000, {v(r)}")
    for e in range(8):
        A(f"v_add_f32 {v(vH+e)}, {v(vH+e)}, {v(vH+8+e)}")
    A(f"s_mov_b32 {s(sT0)}, {hex(f2u(-LOG2E))}")
    vHa, vHn, vHd = vH+8, 8, 16
    for e in range(8):
        A(f"v_mul_f32 {v(vHa+e)}, {s(sT0)}, abs({v(vH+e)})")
    for e in range(8):
        A(f"v_exp_f32 {v(vHa+e)}, {v(vHa+e)}")
    for e in range(8):
        a_, h_, n_, d_ = vHa+e, vH+e, vHn+e, vHd+e
        A(f"v_cmp_lt_f32 vcc, 0, {v(h_)}")
        A(f"v_mul_f32 {v(d_)}, {v(a_)}, {v(a_)}")
        A(f"v_cndmask_b32 {v(n_)}, {v(d_)}, 1.0, vcc")
        A(f"v_fma_f32 {v(n_)}, 2.0, {v(a_)}, {v(n_)}")
        A(f"v_cndmask_b32 {v(d_)}, 1.0, {v(d_)}, vcc")
        A(f"v_fma_f32 {v(d_)}, 2.0, {v(d_)}, {v(n_)}")
        A(f"v_rcp_f32 {v(d_)}, {v(d_)}")
        A(f"v_mul_f32 {v(n_)}, {v(n_)}, {v(h_)}")
        A(f"v_mul_f32 {v(h_)}, {v(n_)}, {v(d_)}")
    vAP = 52
    for k in range(4):
        A(f"v_cvt_pk_bf16_f32 {v(vAP+k)}, {v(vH+2*k)}, {v(vH+2*k+1)}")
    A(f"v_sub_f32 v49, 1.0, v49")
    A(f"s_add_u32 {s(sT5)}, {s(sT4)}, 32")
    A(f"s_waitcnt vmcnt(0)")
    for cc in range(2):
        for t in range(4):
            sel_gemm_step(A, vAP+t, vSEL, vAF0 if t % 2 == 0 else vAF1, vMW2+32*cc+8*t, vQX, vQY, t == 0)
        A(f"s_lshl_b32 {s(sCNT)}, {s(sT3)}, 1")
        A(f"s_add_u32 {s(sCNT)}, {s(sCNT)}, {cc}")
        final_offsets(A, vN, vS, sCNT, sT5, 46, 47, 60)
        publish_final(A, cfg, vQX, vQY, 49, 46, 47, 40, 50)
    A(f"s_branch L_Ldone")
    A.label("L_tail")
    vWUV, vWO = 64, 128
    A(f"s_lshl_b32 {s(sT0)}, {s(sJ)}, 19")
    A(f"s_lshl_b32 {s(sT1)}, {s(sH)}, 8")
    A(f"s_add_u32 {s(sT0)}, {s(sT0)}, {s(sT1)}")
    A(f"v_lshlrev_b32 v41, 17, {v(vS)}")
    A(f"v_lshl_add_u32 v41, {v(vN)}, 4, v41")
    A(f"v_add_u32 v41, {s(sT0)}, v41")
    A(f"s_lshl_b32 {s(sT0)}, {s(sH)}, 17")
    A(f"s_lshl_b32 {s(sT1)}, {s(sJ)}, 7")
    A(f"s_add_u32 {s(sT0)}, {s(sT0)}, {s(sT1)}")
    A(f"v_lshlrev_b32 v42, 15, {v(vS)}")
    A(f"v_lshl_add_u32 v42, {v(vN)}, 3, v42")
    A(f"v_add_u32 v42, {s(sT0)}, v42")
    A(f"buffer_load_dword v61, v43, {s(sWS,4)}, 0 offen sc1")
    vPUB, vCPUB, vGA, vGB, vGC = 52, 53, 54, 55, 56
    partial_offsets(A, vL, vN, vS, WS_C1, WS_C1C, vPUB, vCPUB, vGA, vGB, vGC, 46)
    A(f"v_lshrrev_b32 v46, 3, {v(vN)}")
    A(f"v_lshl_add_u32 v46, {v(vS)}, 4, v46")
    A(f"s_lshl_b32 {s(sT0)}, {s(sJ)}, 1")
    A(f"v_add_u32 v46, {s(sT0)}, v46")
    A(f"s_movk_i32 {s(sT1)}, {NSLOT}")
    A(f"v_mul_lo_u32 v46, v46, {s(sT1)}")
    A(f"v_add_u32 v46, {s(sH)}, v46")
    A(f"v_lshlrev_b32 v60, 3, v46")
    A(f"v_add_u32 v60, {hex(WS_FC)}, v60")
    A(f"v_and_b32 v47, 7, {v(vN)}")
    A(f"v_lshlrev_b32 v47, 3, v47")
    A(f"v_lshl_add_u32 v59, v46, 6, v47")
    A(f"v_add_u32 v59, {hex(WS_FD)}, v59")
    if cfg.tail_after_f3: wait_flag(A, F3, 4, 45)
    A(f"s_mov_b32 {s(sT2)}, 0")
    for k in range(16):
        A(f"buffer_load_dwordx4 {v(vWUV+4*k,4)}, v41, {s(sWUV,4)}, {s(sT2)} offen{NT}")
        if k < 15: A(f"s_add_u32 {s(sT2)}, {s(sT2)}, 8192")
    A(f"s_mov_b32 {s(sT2)}, 0")
    for k in range(32):
        A(f"buffer_load_dwordx2 {v(vWO+2*k,2)}, v42, {s(sWO,4)}, {s(sT2)} offen offset:{1024*(k%4)}{NT}")
        if k % 4 == 3 and k < 31: A(f"s_add_u32 {s(sT2)}, {s(sT2)}, 4096")
    vONE, vG1, vCK1 = 192, 208, 240
    A(f"s_waitcnt vmcnt(48)")
    nonce_from(A, 61)
    A(f"v_lshlrev_b32 v45, 2, {v(vS)}")
    A(f"v_add_u32 v45, {L_G}, v45")
    wait_flag(A, FG, 1, 46, lambda: A(f"ds_read_b32 v58, v45"))
    make_ones(A, vN, vONE, 46)
    A(f"v_lshrrev_b32 v44, 2, {v(vN)}")
    A(f"v_lshlrev_b32 v42, 7, v44")
    A(f"v_lshl_add_u32 v42, {v(vS)}, 5, v42")
    A(f"v_add_u32 v42, {L_CC}, v42")
    A(f"v_lshlrev_b32 v43, 4, {v(vL)}")
    A(f"v_add_u32 v43, {L_CT}, v43")
    A(f"v_lshlrev_b32 v44, 8, v44")
    A(f"v_lshl_add_u32 v44, {v(vS)}, 6, v44")
    A(f"v_add_u32 v44, {L_CT}, v44")
    A(f"s_waitcnt vmcnt(32)")
    for t in range(8):
        A(f"v_swap_b32 {v(vWUV+8*t+2)}, {v(vWUV+8*t+4)}")
        A(f"v_swap_b32 {v(vWUV+8*t+3)}, {v(vWUV+8*t+5)}")
    A(f"s_waitcnt vmcnt(0)")
    stamp(A, cfg, 4, L=True)
    vCP = 8
    def _rd():
        A(f"ds_read_b128 {v(vCP,4)}, v42")
        A(f"ds_read_b128 {v(vCP+4,4)}, v42 offset:16")
    wait_flag(A, FCC, 4, 45, _rd)
    stamp(A, cfg, 5, L=True)
    for t in range(8):
        sel_gemm_step(A, vCP+t, vSEL, 24 if t % 2 == 0 else 28, vWUV+8*t, 32, 36, t == 0, swap=False)
    if cfg.pw: wait_flag(A, FP2, 1, 45)
    publish_partial(A, 32, 36, 16, vPUB, vCPUB, 46, cfg.local_st, cfg.dual)
    stamp(A, cfg, 6, L=True)
    gather_reduce(A, cfg, "L_hop4", vG1, vCK1, vONE, vGA, vGB, vGC, 32, 36, 46)
    stamp(A, cfg, 7, L=True)
    A(f"v_cvt_pk_bf16_f32 v16, v32, v33")
    A(f"v_cvt_pk_bf16_f32 v17, v34, v35")
    A(f"v_cvt_pk_bf16_f32 v18, v36, v37")
    A(f"v_cvt_pk_bf16_f32 v19, v38, v39")
    A(f"ds_write_b128 v43, v[16:19]")
    vXP2 = 8
    for k in range(4):
        A(f"ds_read_b128 {v(vXP2+4*k,4)}, v44 offset:{16*k}")
    for t in range(16):
        if t % 4 == 0: A(f"s_waitcnt lgkmcnt({3-t//4})")
        af = 24 if t % 2 == 0 else 28
        for k in range(4):
            A(f"v_perm_b32 {v(af+k)}, {v(vXP2+t)}, {v(vXP2+t)}, {v(vSEL+k)}")
        c = "0" if t == 0 else v(32,4)
        A(f"v_mfma_f32_16x16x32_bf16 {v(32,4)}, {v(af,4)}, {v(vWO+4*t,4)}, {c}")
    for k in range(4):
        A(f"v_mul_f32 {v(32+k)}, {v(32+k)}, v58")
    A(f"v_cvt_pk_bf16_f32 v16, v32, v33")
    A(f"v_cvt_pk_bf16_f32 v17, v34, v35")
    A(f"buffer_store_dwordx2 v[16:17], v59, {s(sWS,4)}, 0 offen sc1")
    A(f"v_add_u32 v46, v16, v17")
    for d in ("quad_perm:[1,0,3,2]", "quad_perm:[2,3,0,1]", "row_half_mirror"):
        A(f"v_add_u32_dpp v46, v46, v46 {d} row_mask:0xf bank_mask:0xf")
    A(f"v_add_u32 v47, {s(sNONCE)}, v46")
    A(f"s_mov_b32 exec_lo, 0x01010101")
    A(f"s_mov_b32 exec_hi, 0x01010101")
    A(f"buffer_store_dwordx2 v[46:47], v60, {s(sWS,4)}, 0 offen sc1")
    A(f"s_mov_b64 exec, -1")
    A.label("L_Ldone")
    if cfg.ts:
        stamp(A, cfg, 1, L=True)
        emit_ts(A, cfg, L=True)
    A.label("L_exit")
    A(f"s_endpgm")
    A.label("L_end")
    lines = hazard.fix(A.l, verbose=True)
    return "\n".join(lines) + "\n"

def emit_ts(A, cfg, L=False):
    A(f"s_waitcnt lgkmcnt(0) vmcnt(0)")
    A(f"s_mov_b64 exec, 0x3ff")
    A(f"v_mbcnt_lo_u32_b32 v0, -1, 0")
    A(f"v_mov_b32 v1, 0")
    for k in range(10):
        A(f"v_mov_b32 v2, {s(sTS+2*k)}")
        A(f"v_cmp_eq_u32 vcc, {k}, v0")
        A(f"v_cndmask_b32 v1, v1, v2, vcc")
    A(f"s_lshl_b32 {s(sT0)}, s2, 3")
    A(f"s_add_u32 {s(sT0)}, {s(sT0)}, {s(sW)}")
    if L: A(f"s_add_u32 {s(sT0)}, {s(sT0)}, 4")
    A(f"s_lshl_b32 {s(sT0)}, {s(sT0)}, 6")
    A(f"s_add_u32 {s(sT0)}, {s(sT0)}, {hex(WS_DBG)}")
    A(f"v_lshl_add_u32 v2, v0, 2, {s(sT0)}")
    A(f"buffer_store_dword v1, v2, {s(sWS,4)}, 0 offen")

def build(cfg, path):
    body = gen(cfg)
    txt = wrap([(KNAME, body, 256, 102, 256)], [(KNAME, (256,1,1), (512,1,1), LDS_SIZE)])
    open(path, "w").write(txt)
    return path

if __name__ == "__main__":
    import build as B
    cfg = Cfg()
    for a_ in sys.argv[2:]:
        k, val = a_.split("=")
        setattr(cfg, k, eval(val))
    p = build(cfg, sys.argv[1])
    B.build(p, p.replace(".s", ".co"))
    import subprocess
    print(subprocess.run(f"llvm-objdump -d --mcpu=gfx950 {p.replace('.s','.co')} | grep -c '//' ; llvm-readelf -S {p.replace('.s','.co')} | grep -E 'text'", shell=True, capture_output=True, text=True).stdout)
```

```python
import sys; sys.path.insert(0, "dev")
from asmlib import *
import hazard

WS_E = 0
WS_Q1, WS_Q1C = 0x10000, 0x50000
WS_QA, WS_QC = 0x60000, 0x80000
WS_C1, WS_C1C = 0x90000, 0xD0000
WS_FD, WS_FC = 0xE0000, 0x130000
WS_H1, WS_H1C = 0x1C0000, 0x1E0000
WS_ST, WS_OP, WS_DBG = 0x140000, 0x200000, 0x800000
import os
WSBASE = int(os.environ.get('WSBASE', '0'), 0)
for _n in [k for k in list(globals()) if k.startswith('WS_')]: globals()[_n] += WSBASE
PITCH = 1056
L_KV = 0
L_QL = 128 * PITCH
L_MISC = L_QL + 16 * PITCH
L_QB = L_MISC
L_MX = L_MISC + 1024
L_LS = L_MISC + 1280
L_G  = L_MISC + 1536
L_FL = L_MISC + 1600
L_PB = L_MISC + 2048
L_CC = L_MISC + 6144
L_HR = L_MISC + 6656
L_CT = L_MISC + 8704
FKI, FKV, F3, F4, F5, F5B, FCC, FP1, FP2, FP3, FW, FG = range(12)
LDS_SIZE = L_MISC + 9728
NPROD = 43
NSLOT = 48
NMG = 11
MLP0 = 64
NMLP = 43
HASH_K, HASH_C = 0x9E3779B1, 0x7F4A7C15
SCALE = (128 ** -0.5) * 1.4426950408889634
LOG2E = 1.4426950408889634

sX, sKV, sWQ, sWUK, sWUV, sWO, sW1, sB1, sW2, sGW, sOUT, sWS = 8, 12, 16, 20, 24, 28, 32, 36, 40, 44, 48, 52
sW, sXCD, sR, sHG, sJ, sH, sB, sKC, sNONCE, sE = 56, 57, 58, 59, 60, 61, 62, 63, 64, 65
sT0, sT1, sT2, sT3, sT4, sT5 = 66, 67, 68, 69, 70, 71
sCNT = 72
sCNT2 = 73
sEX = 74
sM0 = 76
sM1 = 78
sTS = 80
sM2, sM3 = 4, 6
sHJ = 100
sFB, sDELTA = 101, 3
LOCAL_DELTA = 0x600000
LOCAL_TRIES = 8
POLL_MAX = 20000

def f2u(x):
    import struct
    return struct.unpack("<I", struct.pack("<f", x))[0]

class Cfg:
    nt_w = True
    ts = False
    tsmask = 0x3ff
    prio = True
    wait_kv_first = False
    l_after_m = False
    nt_kv = True
    nt_wq = True
    nt_tail = True
    poll_sleep = 0
    early = False
    tail_after_f3 = True
    kvwin = 6
    l_delay = True
    mlpwin1 = 16
    mlpwin2 = 6
    two_stage = True
    exp = ''
    pw = False
    pw_qa = False
    pw_fd = False
    nomlp = False
    mlp_split = True
    mlp_w1_flag = 'F3'
    mlp_w2_flag = 'FCC'
    local_st = 'sc1'
    dual = True
    local_ld = 'sc1'
    pw_op = False
    no_l = False
    stop = None
    prefetch_code = True

def srd(A, sr, karg_off, size):
    A(f"s_load_dwordx2 {s(sr,2)}, s[0:1], {karg_off}")
def srd_fin(A, sr, size):
    A(f"s_mov_b32 {s(sr+2)}, {hex(size)}")
    A(f"s_mov_b32 {s(sr+3)}, 0x20000")

def estamp(A, cfg, k):
    if cfg.ts and cfg.early:
        A(f"s_memrealtime {s(sTS+2*k,2)}")
        A(f"s_waitcnt lgkmcnt(0)")
def stamp(A, cfg, k, L=False):
    if cfg.early and k >= 3 and not L: return
    if cfg.ts and (cfg.tsmask >> k) & 1:
        A(f"s_memrealtime {s(sTS+2*k,2)}")
        A(f"s_waitcnt lgkmcnt(0)")

vFLA = 3
def arrive(A, f, one, fla=None):
    A(f"v_mov_b32 {v(one)}, 1")
    A(f"s_mov_b64 {s(sEX,2)}, exec")
    A(f"s_mov_b64 exec, 1")
    A(f"ds_add_u32 {v(fla if fla is not None else vFLA)}, {v(one)} offset:{4*f}")
    A(f"s_mov_b64 exec, {s(sEX,2)}")
def wait_flag(A, f, n, tmp, extra=None, fla=None):
    lab = A.newlabel("L_fw"); done = A.newlabel("L_fd")
    A(f"s_mov_b32 {s(sCNT2)}, 0")
    A.label(lab)
    A(f"ds_read_b32 {v(tmp)}, {v(fla if fla is not None else vFLA)} offset:{4*f}")
    if extra: extra()
    A(f"s_waitcnt lgkmcnt(0)")
    A(f"v_cmp_gt_u32 vcc, {n}, {v(tmp)}")
    A(f"s_cbranch_vccz {done}")
    A(f"s_add_u32 {s(sCNT2)}, {s(sCNT2)}, 1")
    A(f"s_cmp_lt_u32 {s(sCNT2)}, 2000000")
    A(f"s_cbranch_scc1 {lab}")
    A.label(done)

def xreduce_rows(A, op, x, tmp):
    A(f"v_mov_b32 {v(tmp)}, {v(x)}")
    A(f"v_permlane16_swap_b32 {v(x)}, {v(tmp)}")
    A(f"{op} {v(x)}, {v(x)}, {v(tmp)}")
    A(f"v_mov_b32 {v(tmp)}, {v(x)}")
    A(f"v_permlane32_swap_b32 {v(x)}, {v(tmp)}")
    A(f"{op} {v(x)}, {v(x)}, {v(tmp)}")

def xreduce_rows2(A, op0, x0, t0, op1, x1, t1):
    for sw in ("v_permlane16_swap_b32", "v_permlane32_swap_b32"):
        A(f"v_mov_b32 {v(t0)}, {v(x0)}")
        A(f"v_mov_b32 {v(t1)}, {v(x1)}")
        A(f"{sw} {v(x0)}, {v(t0)}")
        A(f"{sw} {v(x1)}, {v(t1)}")
        A(f"{op0} {v(x0)}, {v(x0)}, {v(t0)}")
        A(f"{op1} {v(x1)}, {v(x1)}, {v(t1)}")

def wave_sum_u32(A, x, t):
    for d in ("quad_perm:[1,0,3,2]", "quad_perm:[2,3,0,1]", "row_half_mirror", "row_mirror"):
        A(f"v_add_u32_dpp {v(x)}, {v(x)}, {v(x)} {d} row_mask:0xf bank_mask:0xf")
    xreduce_rows(A, "v_add_u32", x, t)

def sum_dwords(A, dst, regs):
    regs = list(regs)
    A(f"v_add3_u32 {v(dst)}, {v(regs[0])}, {v(regs[1])}, {v(regs[2])}")
    k = 3
    while k + 1 < len(regs):
        A(f"v_add3_u32 {v(dst)}, {v(dst)}, {v(regs[k])}, {v(regs[k+1])}"); k += 2
    if k < len(regs):
        A(f"v_add_u32 {v(dst)}, {v(dst)}, {v(regs[k])}")

def make_sels(A, vn, vsel, vt):
    A(f"v_and_b32 {v(vt)}, 3, {v(vn)}")
    A(f"v_mov_b32 {v(vt+1)}, 0x0c0c0c0c")
    pats = [(0, 0x0c0c0100, 1, 0x01000c0c), (2, 0x0c0c0100, 3, 0x01000c0c), (0, 0x0c0c0302, 1, 0x03020c0c), (2, 0x0c0c0302, 3, 0x03020c0c)]
    for k, (j0, p0, j1, p1) in enumerate(pats):
        A(f"v_mov_b32 {v(vt+2)}, {hex(p0)}")
        A(f"v_cmp_eq_u32 vcc, {j0}, {v(vt)}")
        A(f"v_cndmask_b32 {v(vsel+k)}, {v(vt+1)}, {v(vt+2)}, vcc")
        A(f"v_mov_b32 {v(vt+2)}, {hex(p1)}")
        A(f"v_cmp_eq_u32 vcc, {j1}, {v(vt)}")
        A(f"v_cndmask_b32 {v(vsel+k)}, {v(vsel+k)}, {v(vt+2)}, vcc")

def sel_gemm_step(A, xp, vsel, af, wreg, dx, dy, first, swap=True):
    if swap:
        A(f"v_swap_b32 {v(wreg+2)}, {v(wreg+4)}")
        A(f"v_swap_b32 {v(wreg+3)}, {v(wreg+5)}")
    for k in range(4):
        A(f"v_perm_b32 {v(af+k)}, {v(xp)}, {v(xp)}, {v(vsel+k)}")
    c0 = "0" if first else v(dx,4)
    c1 = "0" if first else v(dy,4)
    A(f"v_mfma_f32_16x16x32_bf16 {v(dx,4)}, {v(af,4)}, {v(wreg,4)}, {c0}")
    A(f"v_mfma_f32_16x16x32_bf16 {v(dy,4)}, {v(af,4)}, {v(wreg+4,4)}, {c1}")

def poll_head(A, name):
    lab = A.newlabel(name)
    A(f"s_mov_b32 {s(sCNT)}, 0")
    A.label(lab)
    return lab
def poll_tail(A, lab, bad_pair, sleep=0):
    done = A.newlabel("done")
    A(f"s_cmp_eq_u64 {s(bad_pair,2)}, 0")
    A(f"s_cbranch_scc1 {done}")
    if sleep: A(f"s_sleep {sleep}")
    A(f"s_add_u32 {s(sCNT)}, {s(sCNT)}, 1")
    A(f"s_cmp_lt_u32 {s(sCNT)}, {POLL_MAX}")
    A(f"s_cbranch_scc1 {lab}")
    A.label(done)

def publish_final(A, cfg, dx, dy, vscale, vprod_off, vchk_off, pk, t):
    for k in range(4):
        A(f"v_mul_f32 {v(dx+k)}, {v(dx+k)}, {v(vscale)}")
        A(f"v_mul_f32 {v(dy+k)}, {v(dy+k)}, {v(vscale)}")
    A(f"v_cvt_pk_bf16_f32 {v(pk)}, {v(dx)}, {v(dx+1)}")
    A(f"v_cvt_pk_bf16_f32 {v(pk+1)}, {v(dx+2)}, {v(dx+3)}")
    A(f"v_cvt_pk_bf16_f32 {v(pk+2)}, {v(dy)}, {v(dy+1)}")
    A(f"v_cvt_pk_bf16_f32 {v(pk+3)}, {v(dy+2)}, {v(dy+3)}")
    A(f"buffer_store_dwordx4 {v(pk,4)}, {v(vprod_off)}, {s(sWS,4)}, 0 offen sc1")
    sum_dwords(A, t, [pk, pk+1, pk+2, pk+3])
    A(f"v_add_u32_dpp {v(t)}, {v(t)}, {v(t)} quad_perm:[1,0,3,2] row_mask:0xf bank_mask:0xf")
    A(f"v_add_u32_dpp {v(t)}, {v(t)}, {v(t)} quad_perm:[2,3,0,1] row_mask:0xf bank_mask:0xf")
    A(f"v_add_u32 {v(t+1)}, {s(sNONCE)}, {v(t)}")
    A(f"s_mov_b64 {s(sEX,2)}, exec")
    A(f"s_mov_b32 exec_lo, 0x11111111")
    A(f"s_mov_b32 exec_hi, 0x11111111")
    A(f"buffer_store_dwordx2 {v(t,2)}, {v(vchk_off)}, {s(sWS,4)}, 0 offen sc1")
    A(f"s_mov_b64 exec, {s(sEX,2)}")

def final_offsets(A, vn, vq, s_ct, s_prod, voff, vchk, t):
    A(f"v_lshrrev_b32 {v(t)}, 2, {v(vn)}")
    A(f"v_lshl_add_u32 {v(t)}, {v(vq)}, 4, {v(t)}")
    A(f"s_lshl_b32 {s(sT0)}, {s(s_ct)}, 2")
    A(f"v_add_u32 {v(t)}, {s(sT0)}, {v(t)}")
    A(f"s_movk_i32 {s(sT1)}, {NSLOT}")
    A(f"v_mul_lo_u32 {v(t)}, {v(t)}, {s(sT1)}")
    A(f"v_add_u32 {v(t)}, {s(s_prod)}, {v(t)}")
    A(f"v_lshlrev_b32 {v(vchk)}, 3, {v(t)}")
    A(f"v_add_u32 {v(vchk)}, {hex(WS_FC)}, {v(vchk)}")
    A(f"v_and_b32 {v(t+1)}, 3, {v(vn)}")
    A(f"v_lshlrev_b32 {v(t+1)}, 4, {v(t+1)}")
    A(f"v_lshl_add_u32 {v(voff)}, {v(t)}, 6, {v(t+1)}")
    A(f"v_add_u32 {v(voff)}, {hex(WS_FD)}, {v(voff)}")


def nonce_from(A, vreg):
    A(f"v_readfirstlane_b32 {s(sE)}, {v(vreg)}")
    A(f"s_mul_i32 {s(sNONCE)}, {s(sE)}, {hex(HASH_K)}")
    A(f"s_add_u32 {s(sNONCE)}, {s(sNONCE)}, {hex(HASH_C)}")

def make_ones(A, vn, dst, t):
    A(f"v_and_b32 {v(t)}, 3, {v(vn)}")
    A(f"v_lshrrev_b32 {v(t+1)}, 2, {v(vn)}")
    A(f"v_mov_b32 {v(t+2)}, 0")
    for k, (j0, j1) in enumerate(((0,1),(2,3))):
        A(f"v_mov_b32 {v(t+3)}, 0x3f80")
        A(f"v_cmp_eq_u32 vcc, {j0}, {v(t)}")
        A(f"v_cndmask_b32 {v(t+4+k)}, {v(t+2)}, {v(t+3)}, vcc")
        A(f"v_mov_b32 {v(t+3)}, 0x3f800000")
        A(f"v_cmp_eq_u32 vcc, {j1}, {v(t)}")
        A(f"v_cndmask_b32 {v(t+4+k)}, {v(t+4+k)}, {v(t+3)}, vcc")
    for b in range(4):
        A(f"v_cmp_eq_u32 vcc, {b}, {v(t+1)}")
        A(f"v_cndmask_b32 {v(dst+4*b)}, {v(t+2)}, {v(t+4)}, vcc")
        A(f"v_cndmask_b32 {v(dst+4*b+1)}, {v(t+2)}, {v(t+5)}, vcc")
        A(f"v_mov_b32 {v(dst+4*b+2)}, {v(dst+4*b)}")
        A(f"v_mov_b32 {v(dst+4*b+3)}, {v(dst+4*b+1)}")

def partial_offsets(A, vl, vn, vs, base, chkbase, vpub, vchkpub, vga, vgb, vgc, t, sHJ=sHJ, sH=sH):
    A(f"s_lshl_b32 {s(sT0)}, {s(sHJ)}, 10")
    A(f"s_add_u32 {s(sT0)}, {s(sT0)}, {hex(base)}")
    A(f"v_lshl_add_u32 {v(vpub)}, {v(vl)}, 4, {s(sT0)}")
    A(f"s_lshl_b32 {s(sT0)}, {s(sHJ)}, 3")
    A(f"s_add_u32 {s(sT0)}, {s(sT0)}, {hex(chkbase)}")
    A(f"v_mov_b32 {v(vchkpub)}, {s(sT0)}")
    A(f"s_lshl_b32 {s(sT0)}, {s(sH)}, 13")
    A(f"s_add_u32 {s(sT0)}, {s(sT0)}, {hex(base)}")
    A(f"v_lshlrev_b32 {v(t)}, 10, {v(vs)}")
    A(f"v_lshl_add_u32 {v(t)}, {v(vn)}, 4, {v(t)}")
    A(f"v_add_u32 {v(vga)}, {s(sT0)}, {v(t)}")
    A(f"v_add_u32 {v(vgb)}, 4096, {v(vga)}")
    A(f"s_lshl_b32 {s(sT0)}, {s(sH)}, 6")
    A(f"s_add_u32 {s(sT0)}, {s(sT0)}, {hex(chkbase)}")
    A(f"v_lshl_add_u32 {v(t)}, {v(vl)}, 3, {s(sT0)}")
    A(f"v_cmp_gt_u32 {s(sM2,2)}, 8, {v(vl)}")
    A(f"v_mov_b32 {v(t+1)}, 0x7ffffff0")
    A(f"v_cndmask_b32 {v(vgc)}, {v(t+1)}, {v(t)}, {s(sM2,2)}")

def publish_partial(A, dx, dy, pk, vpub, vchkpub, t, fl='sc1', dual=False):
    A(f"v_cvt_pk_bf16_f32 {v(pk)}, {v(dx)}, {v(dx+1)}")
    A(f"v_cvt_pk_bf16_f32 {v(pk+1)}, {v(dx+2)}, {v(dx+3)}")
    A(f"v_cvt_pk_bf16_f32 {v(pk+2)}, {v(dy)}, {v(dy+1)}")
    A(f"v_cvt_pk_bf16_f32 {v(pk+3)}, {v(dy+2)}, {v(dy+3)}")
    if dual:
        A(f"buffer_store_dwordx4 {v(pk,4)}, {v(vpub)}, {s(sWS,4)}, 0 offen")
        A(f"buffer_store_dwordx4 {v(pk,4)}, {v(vpub)}, {s(sWS,4)}, {s(sDELTA)} offen sc1")
    else:
        A(f"buffer_store_dwordx4 {v(pk,4)}, {v(vpub)}, {s(sWS,4)}, 0 offen {fl}")
    sum_dwords(A, t, [pk, pk+1, pk+2, pk+3])
    wave_sum_u32(A, t, t+2)
    A(f"v_add_u32 {v(t+1)}, {s(sNONCE)}, {v(t)}")
    A(f"s_mov_b64 {s(sEX,2)}, exec")
    A(f"s_mov_b64 exec, 1")
    if dual:
        A(f"buffer_store_dwordx2 {v(t,2)}, {v(vchkpub)}, {s(sWS,4)}, 0 offen")
        A(f"buffer_store_dwordx2 {v(t,2)}, {v(vchkpub)}, {s(sWS,4)}, {s(sDELTA)} offen sc1")
    else:
        A(f"buffer_store_dwordx2 {v(t,2)}, {v(vchkpub)}, {s(sWS,4)}, 0 offen {fl}")
    A(f"s_mov_b64 exec, {s(sEX,2)}")

def gather_reduce(A, cfg, name, G, CK, ones, vga, vgb, vgc, dx, dy, t):
    so = s(sFB) if cfg.dual else "0"
    if cfg.dual: A(f"s_mov_b32 {s(sFB)}, 0")
    lab = poll_head(A, name)
    if cfg.dual:
        A(f"s_cmp_ge_u32 {s(sCNT)}, {LOCAL_TRIES}")
        A(f"s_cselect_b32 {s(sFB)}, {s(sDELTA)}, 0")
    for b in range(4):
        A(f"buffer_load_dwordx4 {v(G+8*b,4)}, {v(vga)}, {s(sWS,4)}, {so} offen offset:{256*b} {cfg.local_ld}")
        A(f"buffer_load_dwordx4 {v(G+8*b+4,4)}, {v(vgb)}, {s(sWS,4)}, {so} offen offset:{256*b} {cfg.local_ld}")
    A(f"buffer_load_dwordx2 {v(CK,2)}, {v(vgc)}, {s(sWS,4)}, {so} offen {cfg.local_ld}")
    A(f"s_waitcnt vmcnt(0)")
    sum_dwords(A, t, range(G, G+16))
    sum_dwords(A, t+1, range(G+16, G+32))
    A(f"v_add_u32 {v(t)}, {v(t)}, {v(t+1)}")
    A(f"v_sub_u32 {v(t)}, {v(t)}, {v(CK)}")
    A(f"v_add_u32 {v(t+1)}, {s(sNONCE)}, {v(CK)}")
    A(f"v_cmp_ne_u32 vcc, {v(t+1)}, {v(CK+1)}")
    wave_sum_u32(A, t, t+2)
    A(f"s_and_b64 {s(sM1,2)}, vcc, {s(sM2,2)}")
    A(f"v_cmp_ne_u32 vcc, 0, {v(t)}")
    A(f"s_or_b64 {s(sM1,2)}, {s(sM1,2)}, vcc")
    poll_tail(A, lab, sM1, cfg.poll_sleep)
    for b in range(4):
        w = G + 8*b
        A(f"v_swap_b32 {v(w+2)}, {v(w+4)}")
        A(f"v_swap_b32 {v(w+3)}, {v(w+5)}")
    for b in range(4):
        w = G + 8*b
        c0 = "0" if b == 0 else v(dx,4); c1 = "0" if b == 0 else v(dy,4)
        A(f"v_mfma_f32_16x16x32_bf16 {v(dx,4)}, {v(ones+4*b,4)}, {v(w,4)}, {c0}")
        A(f"v_mfma_f32_16x16x32_bf16 {v(dy,4)}, {v(ones+4*b,4)}, {v(w+4,4)}, {c1}")

def gen(cfg):
    A = Asm()
    NT = " nt" if cfg.nt_tail else ""
    NTKV = " nt" if cfg.nt_kv else ""
    NTWQ = " nt" if cfg.nt_wq else ""
    vL, vN, vS = 0, 1, 2
    vSEL = 4
    A(f"s_cmp_ge_u32 s2, 256")
    A(f"s_cbranch_scc1 L_exit")
    for sr, off in ((sX,0),(sWQ,16),(sWUK,24),(sWS,104),(sKV,8),(sWUV,32),(sWO,40),(sW1,56),(sB1,64),(sW2,72),(sGW,80),(sOUT,88)):
        srd(A, sr, off, 0)
    stamp(A, cfg, 0)
    A(f"v_lshrrev_b32 v4, 6, v0")
    A(f"v_and_b32 {v(vL)}, 63, v0")
    A(f"v_readfirstlane_b32 {s(sW)}, v4")
    A(f"v_and_b32 {v(vN)}, 15, {v(vL)}")
    A(f"v_lshrrev_b32 {v(vS)}, 4, {v(vL)}")
    A(f"v_mov_b32 {v(vFLA)}, {L_FL}")
    A(f"v_lshl_add_u32 v40, {v(vN)}, 2, {v(vFLA)}")
    A(f"v_mov_b32 v41, 0")
    A(f"ds_write_b32 v40, v41")
    A(f"s_and_b32 {s(sXCD)}, s2, 7")
    A(f"s_lshr_b32 {s(sR)}, s2, 3")
    A(f"s_and_b32 {s(sHG)}, {s(sR)}, 1")
    A(f"s_bfe_u32 {s(sJ)}, {s(sR)}, 0x30001")
    A(f"s_lshr_b32 {s(sT0)}, {s(sR)}, 4")
    A(f"s_lshl_b32 {s(sT1)}, {s(sXCD)}, 1")
    A(f"s_add_u32 {s(sT1)}, {s(sT1)}, {s(sT0)}")
    A(f"s_lshl_b32 {s(sT0)}, {s(sHG)}, 4")
    A(f"s_add_u32 {s(sH)}, {s(sT0)}, {s(sT1)}")
    A(f"s_lshl_b32 {s(sHJ)}, {s(sH)}, 3")
    A(f"s_add_u32 {s(sHJ)}, {s(sHJ)}, {s(sJ)}")
    A(f"s_lshr_b32 {s(sB)}, {s(sXCD)}, 1")
    A(f"s_and_b32 {s(sT0)}, {s(sXCD)}, 1")
    A(f"s_lshl_b32 {s(sT0)}, {s(sT0)}, 4")
    A(f"s_lshr_b32 {s(sT1)}, {s(sR)}, 1")
    A(f"s_add_u32 {s(sKC)}, {s(sT0)}, {s(sT1)}")
    for sr, size in ((sX,4096),(sWQ,4<<20),(sWUK,4<<20),(sWS,256<<20),(sKV,16<<20),(sWUV,4<<20),(sWO,4<<20),(sW1,512*2752),(sB1,2752),(sW2,1376*1024),(sGW,1024),(sOUT,4096)):
        srd_fin(A, sr, size)
    A(f"s_mov_b32 {s(sDELTA)}, {hex(LOCAL_DELTA)}")
    A(f"s_waitcnt lgkmcnt(0)")
    A(f"s_barrier")
    A(f"s_cmp_ge_u32 {s(sW)}, 4")
    A(f"s_cbranch_scc1 L_Lpath")
    if cfg.prio: A(f"s_setprio 3")
    vXP, vAF0, vAF1, vQX, vQY, vT = 8, 24, 28, 32, 36, 40
    vWUK, vWQ = 64, 128
    vA0, vA1, vA2 = 40, 41, 42
    vE = 44
    A(f"v_mov_b32 v43, {hex(WS_E)}")
    A(f"buffer_load_dword {v(vE)}, v43, {s(sWS,4)}, 0 offen sc1")
    if cfg.exp == 'kvonly': A(f"s_branch L_Mdone")
    A(f"s_cmp_lg_u32 {s(sW)}, 0")
    A(f"s_cbranch_scc1 L_noq")
    A(f"v_lshrrev_b32 {v(vA0)}, 2, {v(vN)}")
    A(f"v_lshlrev_b32 {v(vA0)}, 10, {v(vA0)}")
    A(f"v_lshl_add_u32 {v(vA0)}, {v(vS)}, 5, {v(vA0)}")
    A(f"s_lshl_b32 {s(sT0)}, {s(sJ)}, 7")
    A(f"v_add_u32 {v(vA0)}, {s(sT0)}, {v(vA0)}")
    A(f"s_lshl_b32 {s(sT0)}, {s(sJ)}, 19")
    A(f"s_lshl_b32 {s(sT1)}, {s(sH)}, 8")
    A(f"s_add_u32 {s(sT0)}, {s(sT0)}, {s(sT1)}")
    A(f"v_lshlrev_b32 {v(vA1)}, 17, {v(vS)}")
    A(f"v_lshl_add_u32 {v(vA1)}, {v(vN)}, 4, {v(vA1)}")
    A(f"v_add_u32 {v(vA1)}, {s(sT0)}, {v(vA1)}")
    for k in range(2):
        A(f"buffer_load_dwordx4 {v(vXP+4*k,4)}, {v(vA0)}, {s(sX,4)}, 0 offen offset:{16*k}")
    A(f"s_mov_b32 {s(sT2)}, 0")
    for k in range(16):
        A(f"buffer_load_dwordx4 {v(vWQ+4*k,4)}, {v(vA1)}, {s(sWQ,4)}, {s(sT2)} offen{NTWQ}")
        if k < 15: A(f"s_add_u32 {s(sT2)}, {s(sT2)}, 8192")
    A(f"v_lshrrev_b32 {v(vA2)}, 2, {v(vN)}")
    A(f"v_lshlrev_b32 {v(vA2)}, 4, {v(vA2)}")
    A(f"v_and_b32 v43, 3, {v(vN)}")
    A(f"v_add_u32 {v(vA2)}, {v(vA2)}, v43")
    A(f"v_lshlrev_b32 {v(vA2)}, 13, {v(vA2)}")
    A(f"v_lshl_add_u32 {v(vA2)}, {v(vS)}, 4, {v(vA2)}")
    A(f"v_add_u32 {v(vA2)}, {s(sT0)}, {v(vA2)}")
    A(f"s_mov_b32 {s(sT2)}, 0")
    for T in range(4):
        for t in range(4):
            A(f"buffer_load_dwordx4 {v(vWUK+16*T+4*t,4)}, {v(vA2)}, {s(sWUK,4)}, {s(sT2)} offen offset:{64*t}{NTWQ}")
        if T < 3: A(f"s_add_u32 {s(sT2)}, {s(sT2)}, 32768")
    estamp(A, cfg, 3)
    make_sels(A, vN, vSEL, vT)
    vONE, vG1, vCK1 = 192, 208, 240
    make_ones(A, vN, vONE, 46)
    vPUB, vCPUB, vGA, vGB, vGC = 52, 53, 54, 55, 56
    partial_offsets(A, vL, vN, vS, WS_Q1, WS_Q1C, vPUB, vCPUB, vGA, vGB, vGC, 46)
    vQAO, vQCO = 58, 59
    A(f"v_lshl_add_u32 {v(vQAO)}, {v(vN)}, 5, {s(sH)}")
    A(f"v_lshlrev_b32 {v(vQCO)}, 3, {v(vQAO)}")
    A(f"v_add_u32 {v(vQCO)}, {s(sJ)}, {v(vQCO)}")
    A(f"v_lshlrev_b32 {v(vQCO)}, 3, {v(vQCO)}")
    A(f"v_add_u32 {v(vQCO)}, {hex(WS_QC)}, {v(vQCO)}")
    A(f"v_lshlrev_b32 {v(vQAO)}, 10, {v(vQAO)}")
    A(f"v_lshl_add_u32 {v(vQAO)}, {v(vS)}, 5, {v(vQAO)}")
    A(f"s_lshl_b32 {s(sT0)}, {s(sJ)}, 7")
    A(f"s_add_u32 {s(sT0)}, {s(sT0)}, {hex(WS_QA)}")
    A(f"v_add_u32 {v(vQAO)}, {s(sT0)}, {v(vQAO)}")
    NPW = 0
    A(f"s_waitcnt vmcnt({32+NPW})")
    nonce_from(A, vE)
    for t in range(8):
        A(f"s_waitcnt vmcnt({16 + 14 - 2*t + NPW})")
        if t == 0: estamp(A, cfg, 4)
        if t == 0 and cfg.l_delay: arrive(A, FW, 43)
        sel_gemm_step(A, vXP+t, vSEL, vAF0 if t % 2 == 0 else vAF1, vWQ+8*t, vQX, vQY, t == 0)
    publish_partial(A, vQX, vQY, 16, vPUB, vCPUB, 46, cfg.local_st, cfg.dual)
    stamp(A, cfg, 1)
    if cfg.exp == 'kvq': A(f"s_branch L_Mdone")
    gather_reduce(A, cfg, "L_hop1", vG1, vCK1, vONE, vGA, vGB, vGC, vQX, vQY, 46)
    estamp(A, cfg, 5)
    A(f"v_cvt_pk_bf16_f32 v16, {v(vQX)}, {v(vQX+1)}")
    A(f"v_cvt_pk_bf16_f32 v17, {v(vQX+2)}, {v(vQX+3)}")
    A(f"v_cvt_pk_bf16_f32 v18, {v(vQY)}, {v(vQY+1)}")
    A(f"v_cvt_pk_bf16_f32 v19, {v(vQY+2)}, {v(vQY+3)}")
    A(f"v_lshlrev_b32 {v(vA0)}, 4, {v(vL)}")
    A(f"v_add_u32 {v(vA0)}, {L_QB}, {v(vA0)}")
    A(f"ds_write_b128 {v(vA0)}, v[16:19]")
    vQF4, vD, vPK = 128, 144, 160
    A(f"v_and_b32 {v(vA0)}, 3, {v(vN)}")
    A(f"v_lshlrev_b32 {v(vA0)}, 8, {v(vA0)}")
    A(f"v_lshl_add_u32 {v(vA0)}, {v(vS)}, 4, {v(vA0)}")
    A(f"v_add_u32 {v(vA0)}, {L_QB}, {v(vA0)}")
    for t in range(4):
        A(f"ds_read_b128 {v(vQF4+4*t,4)}, {v(vA0)} offset:{64*t}")
    for t in range(4):
        A(f"s_waitcnt lgkmcnt({3-t})")
        for T in range(4):
            c = "0" if t == 0 else v(vD+4*T,4)
            A(f"v_mfma_f32_16x16x32_bf16 {v(vD+4*T,4)}, {v(vWUK+16*T+4*t,4)}, {v(vQF4+4*t,4)}, {c}")
    A(f"s_mov_b32 {s(sT0)}, {hex(f2u(SCALE))}")
    for k in range(16):
        A(f"v_mul_f32 {v(vD+k)}, {s(sT0)}, {v(vD+k)}")
    for k in range(8):
        A(f"v_cvt_pk_bf16_f32 {v(vPK+k)}, {v(vD+2*k)}, {v(vD+2*k+1)}")
    if cfg.pw_qa: wait_flag(A, FP1, 1, 43)
    A(f"s_mov_b64 {s(sEX,2)}, exec")
    A(f"s_mov_b32 exec_lo, 0x000f000f")
    A(f"s_mov_b32 exec_hi, 0x000f000f")
    A(f"buffer_store_dwordx4 {v(vPK,4)}, {v(vQAO)}, {s(sWS,4)}, 0 offen sc1")
    A(f"buffer_store_dwordx4 {v(vPK+4,4)}, {v(vQAO)}, {s(sWS,4)}, 0 offen offset:16 sc1")
    A(f"s_mov_b64 exec, {s(sEX,2)}")
    sum_dwords(A, 44, range(vPK, vPK+8))
    xreduce_rows(A, "v_add_u32", 44, 46)
    A(f"v_add_u32 v45, {s(sNONCE)}, v44")
    A(f"s_mov_b64 exec, 0xf")
    A(f"buffer_store_dwordx2 v[44:45], {v(vQCO)}, {s(sWS,4)}, 0 offen sc1")
    A(f"s_mov_b64 exec, {s(sEX,2)}")
    A(f"s_branch L_qdone")
    A.label("L_noq")
    if cfg.pw_qa or cfg.pw_fd:
        for k in range(4): A(f"v_mov_b32 {v(60+k)}, 0")
    if cfg.pw_qa:
        A(f"s_cmp_lg_u32 {s(sW)}, 1")
        A(f"s_cbranch_scc1 L_nopw1")
        A(f"v_lshl_add_u32 v58, {v(vN)}, 5, {s(sH)}")
        A(f"v_lshlrev_b32 v59, 3, v58")
        A(f"v_add_u32 v59, {s(sJ)}, v59")
        A(f"v_lshlrev_b32 v59, 3, v59")
        A(f"v_add_u32 v59, {hex(WS_QC)}, v59")
        A(f"v_lshlrev_b32 v58, 10, v58")
        A(f"v_lshl_add_u32 v58, {v(vS)}, 5, v58")
        A(f"s_lshl_b32 {s(sT0)}, {s(sJ)}, 7")
        A(f"s_add_u32 {s(sT0)}, {s(sT0)}, {hex(WS_QA)}")
        A(f"v_add_u32 v58, {s(sT0)}, v58")
        A(f"s_mov_b32 exec_lo, 0x000f000f")
        A(f"s_mov_b32 exec_hi, 0x000f000f")
        A(f"buffer_store_dwordx4 v[60:63], v58, {s(sWS,4)}, 0 offen sc1")
        A(f"buffer_store_dwordx4 v[60:63], v58, {s(sWS,4)}, 0 offen offset:16 sc1")
        A(f"s_mov_b64 exec, 0xf")
        A(f"buffer_store_dwordx2 v[60:61], v59, {s(sWS,4)}, 0 offen sc1")
        A(f"s_mov_b64 exec, -1")
        A(f"s_waitcnt vmcnt(0)")
        arrive(A, FP1, 43)
        A.label("L_nopw1")
    if cfg.pw_fd:
        A(f"s_cmp_lg_u32 {s(sW)}, 2")
        A(f"s_cbranch_scc1 L_nopw2")
        A(f"v_lshrrev_b32 v46, 3, {v(vN)}")
        A(f"v_lshl_add_u32 v46, {v(vS)}, 4, v46")
        A(f"s_lshl_b32 {s(sT0)}, {s(sJ)}, 1")
        A(f"v_add_u32 v46, {s(sT0)}, v46")
        A(f"s_movk_i32 {s(sT1)}, {NSLOT}")
        A(f"v_mul_lo_u32 v46, v46, {s(sT1)}")
        A(f"v_add_u32 v46, {s(sH)}, v46")
        A(f"v_lshlrev_b32 v59, 3, v46")
        A(f"v_add_u32 v59, {hex(WS_FC)}, v59")
        A(f"v_and_b32 v47, 7, {v(vN)}")
        A(f"v_lshlrev_b32 v47, 3, v47")
        A(f"v_lshl_add_u32 v58, v46, 6, v47")
        A(f"v_add_u32 v58, {hex(WS_FD)}, v58")
        A(f"buffer_store_dwordx2 v[60:61], v58, {s(sWS,4)}, 0 offen sc1")
        A(f"s_mov_b32 exec_lo, 0x01010101")
        A(f"s_mov_b32 exec_hi, 0x01010101")
        A(f"buffer_store_dwordx2 v[60:61], v59, {s(sWS,4)}, 0 offen sc1")
        A(f"s_mov_b64 exec, -1")
        A(f"s_waitcnt vmcnt(0)")
        arrive(A, FP2, 43)
        A.label("L_nopw2")
    make_sels(A, vN, vSEL, vT)
    A(f"s_waitcnt vmcnt(0)")
    nonce_from(A, vE)
    A.label("L_qdone")
    stamp(A, cfg, 2)
    if cfg.exp in ('kvq', 'kvq1'): A(f"s_branch L_Mdone")
    vQG, vQC = 64, 80
    A(f"s_lshl_b32 {s(sT0)}, {s(sB)}, 1")
    A(f"s_add_u32 {s(sT0)}, {s(sT0)}, {s(sHG)}")
    A(f"s_lshl_b32 {s(sT0)}, {s(sT0)}, 4")
    A(f"s_lshl_b32 {s(sT1)}, {s(sW)}, 2")
    A(f"s_add_u32 {s(sT0)}, {s(sT0)}, {s(sT1)}")
    A(f"s_lshl_b32 {s(sT1)}, {s(sT0)}, 10")
    A(f"s_add_u32 {s(sT1)}, {s(sT1)}, {hex(WS_QA)}")
    A(f"v_lshl_add_u32 {v(vA0)}, {v(vL)}, 4, {s(sT1)}")
    A(f"s_lshl_b32 {s(sT1)}, {s(sT0)}, 6")
    A(f"s_add_u32 {s(sT1)}, {s(sT1)}, {hex(WS_QC)}")
    A(f"v_lshl_add_u32 {v(vA1)}, {v(vL)}, 3, {s(sT1)}")
    A(f"v_cmp_lt_u32 {s(sM0,2)}, {v(vL)}, 32")
    A(f"v_mov_b32 v43, 0x7ffffff0")
    A(f"v_cndmask_b32 {v(vA1)}, v43, {v(vA1)}, {s(sM0,2)}")
    A(f"s_mul_i32 {s(sT1)}, {s(sW)}, {4*PITCH}")
    A(f"s_add_u32 {s(sT1)}, {s(sT1)}, {L_QL}")
    A(f"v_lshl_add_u32 {v(vA2)}, {v(vL)}, 4, {s(sT1)}")
    wait_flag(A, FKV if cfg.wait_kv_first else FKI, 4, 44)
    if cfg.two_stage:
        lab0 = poll_head(A, "L_hop2t")
        A(f"buffer_load_dwordx2 {v(vQC,2)}, {v(vA1)}, {s(sWS,4)}, 0 offen sc1")
        A(f"s_waitcnt vmcnt(0)")
        A(f"v_add_u32 v45, {s(sNONCE)}, {v(vQC)}")
        A(f"v_cmp_ne_u32 vcc, v45, {v(vQC+1)}")
        A(f"s_and_b64 {s(sM1,2)}, vcc, {s(sM0,2)}")
        poll_tail(A, lab0, sM1, cfg.poll_sleep)
    lab = poll_head(A, "L_hop2")
    for i in range(4):
        A(f"buffer_load_dwordx4 {v(vQG+4*i,4)}, {v(vA0)}, {s(sWS,4)}, 0 offen offset:{1024*i} sc1")
    A(f"buffer_load_dwordx2 {v(vQC,2)}, {v(vA1)}, {s(sWS,4)}, 0 offen sc1")
    A(f"s_waitcnt vmcnt(0)")
    sum_dwords(A, 44, range(vQG, vQG+16))
    A(f"v_sub_u32 v44, v44, {v(vQC)}")
    A(f"v_add_u32 v45, {s(sNONCE)}, {v(vQC)}")
    A(f"v_cmp_ne_u32 vcc, v45, {v(vQC+1)}")
    wave_sum_u32(A, 44, 46)
    A(f"s_and_b64 {s(sM1,2)}, vcc, {s(sM0,2)}")
    A(f"v_cmp_ne_u32 vcc, 0, v44")
    A(f"s_or_b64 {s(sM1,2)}, {s(sM1,2)}, vcc")
    poll_tail(A, lab, sM1, cfg.poll_sleep)
    for i in range(4):
        A(f"ds_write_b128 {v(vA2)}, {v(vQG+4*i,4)} offset:{PITCH*i}")
    arrive(A, F3, 43)
    stamp(A, cfg, 3)
    vQF = 64
    vKE, vKO = 40, 41
    vQE, vQO = 42, 43
    A(f"s_movk_i32 {s(sT1)}, {PITCH}")
    A(f"v_mul_lo_u32 v44, {v(vN)}, {s(sT1)}")
    A(f"v_lshl_add_u32 v44, {v(vS)}, 8, v44")
    A(f"v_and_b32 v45, 1, {v(vS)}")
    A(f"v_lshlrev_b32 v45, 4, v45")
    A(f"v_add_u32 {v(vQE)}, v44, v45")
    A(f"v_sub_u32 {v(vQO)}, v44, v45")
    A(f"s_mul_i32 {s(sT0)}, {s(sW)}, {32*PITCH}")
    A(f"v_add_u32 {v(vKE)}, {s(sT0)}, {v(vQE)}")
    A(f"v_add_u32 {v(vKO)}, {s(sT0)}, {v(vQO)}")
    A(f"v_add_u32 {v(vQE)}, {L_QL}, {v(vQE)}")
    A(f"v_add_u32 {v(vQO)}, {L_QL}, {v(vQO)}")
    wait_flag(A, F3, 4, 44)
    for t in range(16):
        if t == 12: A(f"s_waitcnt lgkmcnt(8)")
        A(f"ds_read_b128 {v(vQF+4*t,4)}, {v(vQE if t%2==0 else vQO)} offset:{16*t}")
    wait_flag(A, FKV, 4, 44)
    stamp(A, cfg, 4)
    vRING = 128
    vS0, vS1 = 32, 36
    LOOK = 6
    def kvread(t, tt):
        slot = (2*t+tt) % 16
        A(f"ds_read_b128 {v(vRING+4*slot,4)}, {v(vKE if t%2==0 else vKO)} offset:{16*t + tt*16*PITCH}")
    for t in range(LOOK):
        kvread(t,0); kvread(t,1)
    for t in range(16):
        rem = min(LOOK-1, 15-t)
        A(f"s_waitcnt lgkmcnt({2*rem})")
        for tt in range(2):
            slot = (2*t+tt) % 16
            acc = vS0 if tt == 0 else vS1
            c = "0" if t == 0 else v(acc,4)
            A(f"v_mfma_f32_16x16x32_bf16 {v(acc,4)}, {v(vRING+4*slot,4)}, {v(vQF+4*t,4)}, {c}")
        if t + LOOK < 16:
            kvread(t+LOOK,0); kvread(t+LOOK,1)
    vM, vTm = 44, 45
    vPA0, vPA1 = 40, 41
    A(f"v_lshrrev_b32 v46, 2, {v(vL)}")
    A(f"s_movk_i32 {s(sT1)}, {PITCH}")
    A(f"v_mul_lo_u32 v46, v46, {s(sT1)}")
    A(f"v_and_b32 v47, 3, {v(vL)}")
    A(f"v_lshl_add_u32 v46, v47, 3, v46")
    A(f"s_lshl_b32 {s(sT0)}, {s(sW)}, 8")
    A(f"v_add_u32 {v(vPA0)}, {s(sT0)}, v46")
    A(f"v_add_u32 {v(vPA1)}, {64*PITCH}, {v(vPA0)}")
    A(f"v_lshlrev_b32 v42, 4, {v(vN)}")
    A(f"v_add_u32 v42, {L_MX}, v42")
    A(f"s_lshl_b32 {s(sT0)}, {s(sW)}, 2")
    A(f"v_add_u32 v43, {s(sT0)}, v42")
    A(f"v_max3_f32 {v(vM)}, {v(vS0)}, {v(vS0+1)}, {v(vS0+2)}")
    A(f"v_max3_f32 {v(vM)}, {v(vM)}, {v(vS0+3)}, {v(vS1)}")
    A(f"v_max3_f32 {v(vM)}, {v(vM)}, {v(vS1+1)}, {v(vS1+2)}")
    A(f"v_max_f32 {v(vM)}, {v(vM)}, {v(vS1+3)}")
    xreduce_rows(A, "v_max_f32", vM, vTm)
    A(f"ds_write_b32 v43, {v(vM)}")
    arrive(A, F4, 47)
    wait_flag(A, F4, 4, 47, lambda: A(f"ds_read_b128 v[48:51], v42"))
    def pvread(g, T):
        slot = (g*8+T) % 16
        base = vPA0 if g < 2 else vPA1
        off = (32*(g%2))*PITCH + T*32
        A(f"ds_read_b64_tr_b16 {v(vRING+4*slot,2)}, {v(base)} offset:{off}")
        A(f"ds_read_b64_tr_b16 {v(vRING+4*slot+2,2)}, {v(base)} offset:{off+16*PITCH}")
    PRE = 6
    for k in range(PRE): pvread(k//8, k%8)
    A(f"v_max3_f32 {v(vM)}, v48, v49, v50")
    A(f"v_max_f32 {v(vM)}, {v(vM)}, v51")
    for k in range(8):
        A(f"v_sub_f32 {v(vS0+k)}, {v(vS0+k)}, {v(vM)}")
    for k in range(8):
        A(f"v_exp_f32 {v(vS0+k)}, {v(vS0+k)}")
    vLs = 46
    A(f"v_add_f32 {v(vLs)}, {v(vS0)}, {v(vS0+1)}")
    A(f"v_add_f32 v47, {v(vS0+2)}, {v(vS0+3)}")
    A(f"v_add_f32 v48, {v(vS0+4)}, {v(vS0+5)}")
    A(f"v_add_f32 v49, {v(vS0+6)}, {v(vS0+7)}")
    for k in range(4):
        A(f"v_cvt_pk_bf16_f32 {v(52+k)}, {v(vS0+2*k)}, {v(vS0+2*k+1)}")
    A(f"v_add_f32 {v(vLs)}, {v(vLs)}, v47")
    A(f"v_add_f32 v48, v48, v49")
    A(f"v_add_f32 {v(vLs)}, {v(vLs)}, v48")
    A(f"v_lshlrev_b32 v60, 4, {v(vL)}")
    A(f"v_add_u32 v60, {L_PB}, v60")
    A(f"s_lshl_b32 {s(sT0)}, {s(sW)}, 10")
    A(f"v_add_u32 v61, {s(sT0)}, v60")
    A(f"ds_write_b128 v61, v[52:55]")
    xreduce_rows(A, "v_add_f32", vLs, 47)
    A(f"ds_write_b32 v43, {v(vLs)} offset:{L_LS-L_MX}")
    arrive(A, F5, 47)
    vPF, vO = 64, 80
    def _rd():
        for g in range(4):
            A(f"ds_read_b128 {v(vPF+4*g,4)}, v60 offset:{1024*g}")
        A(f"ds_read_b128 v[48:51], v42 offset:{L_LS-L_MX}")
    wait_flag(A, F5, 4, 47, _rd)
    nxt = PRE
    outstanding = []
    def issue(k):
        pvread(k//8, k%8); outstanding.extend([("f",k),("f",k)])
    while len(outstanding) + 2 <= 15:
        issue(nxt); nxt += 1
    for k in range(32):
        g, T = k//8, k%8
        need_idx = -1
        for idx, o in enumerate(outstanding):
            if o == "P" and k == 0: need_idx = max(need_idx, idx)
            if o == ("f",k): need_idx = max(need_idx, idx)
        can = nxt < 32 and nxt <= k + 15
        if can:
            need_idx = max(need_idx, len(outstanding) + 2 - 15 - 1)
        if need_idx >= 0:
            n_after = len(outstanding) - 1 - need_idx
            A(f"s_waitcnt lgkmcnt({n_after})")
            del outstanding[:need_idx+1]
        slot = k % 16
        c = "0" if g == 0 else v(vO+4*T,4)
        A(f"v_mfma_f32_16x16x32_bf16 {v(vO+4*T,4)}, {v(vRING+4*slot,4)}, {v(vPF+4*g,4)}, {c}")
        if can:
            issue(nxt); nxt += 1
    if outstanding: A(f"s_waitcnt lgkmcnt(0)")
    stamp(A, cfg, 5)
    if cfg.pw_op: wait_flag(A, FP3, 1, 52)
    vPK = 112
    A(f"v_add_f32 v48, v48, v49")
    A(f"v_add_f32 v50, v50, v51")
    A(f"v_add_f32 v47, v48, v50")
    A(f"s_lshl_b32 {s(sT0)}, {s(sHG)}, 4")
    A(f"v_add_u32 v48, {s(sT0)}, {v(vN)}")
    A(f"v_lshlrev_b32 v48, 10, v48")
    A(f"s_lshl_b32 {s(sT0)}, {s(sW)}, 8")
    A(f"s_lshl_b32 {s(sT1)}, {s(sB)}, 5")
    A(f"s_add_u32 {s(sT0)}, {s(sT0)}, {s(sT1)}")
    A(f"s_add_u32 {s(sT0)}, {s(sT0)}, {s(sKC)}")
    A(f"v_add_u32 v48, {s(sT0)}, v48")
    A(f"v_and_b32 v49, 1, {v(vS)}")
    A(f"v_lshlrev_b32 v49, 1, v49")
    A(f"v_lshrrev_b32 v50, 1, {v(vS)}")
    A(f"v_add_u32 v49, v49, v50")
    A(f"v_lshlrev_b32 v49, 4, v49")
    A(f"v_lshl_add_u32 v49, v48, 7, v49")
    A(f"v_add_u32 v49, {hex(WS_OP)}, v49")
    A(f"v_add_u32 v50, {128*128}, v49")
    A(f"v_lshl_add_u32 v48, {v(vS)}, 7, v48")
    A(f"v_lshlrev_b32 v48, 4, v48")
    A(f"v_add_u32 v48, {hex(WS_ST)}, v48")
    for T in range(8):
        A(f"v_cvt_pk_bf16_f32 {v(vPK+2*T)}, {v(vO+4*T)}, {v(vO+4*T+1)}")
        A(f"v_cvt_pk_bf16_f32 {v(vPK+2*T+1)}, {v(vO+4*T+2)}, {v(vO+4*T+3)}")
    for p in range(4):
        A(f"v_permlane16_swap_b32 {v(vPK+4*p)}, {v(vPK+4*p+2)}")
        A(f"v_permlane16_swap_b32 {v(vPK+4*p+1)}, {v(vPK+4*p+3)}")
    for p in range(4):
        base = 49 if p < 2 else 50
        A(f"buffer_store_dwordx4 {v(vPK+4*p,4)}, {v(base)}, {s(sWS,4)}, 0 offen offset:{64*(p%2)} sc1")
    sum_dwords(A, 52, range(vPK, vPK+8))
    sum_dwords(A, 53, range(vPK+8, vPK+16))
    xreduce_rows2(A, "v_add_u32", 52, 54, "v_add_u32", 53, 55)
    A(f"v_cmp_eq_u32 vcc, 1, {v(vS)}")
    A(f"v_mov_b32 v60, {v(vM)}")
    A(f"v_mov_b32 v61, v47")
    A(f"v_cndmask_b32 v62, v52, v53, vcc")
    A(f"v_add3_u32 v63, v60, v61, v62")
    A(f"v_add_u32 v63, {s(sNONCE)}, v63")
    A(f"s_mov_b64 {s(sEX,2)}, exec")
    A(f"s_mov_b32 exec_hi, 0")
    A(f"buffer_store_dwordx4 v[60:63], v48, {s(sWS,4)}, 0 offen sc1")
    A(f"s_mov_b64 exec, {s(sEX,2)}")
    stamp(A, cfg, 6)
    vOD, vST = 128, 144
    A(f"s_lshl_b32 {s(sT0)}, {s(sH)}, 3")
    A(f"s_add_u32 {s(sT0)}, {s(sT0)}, {s(sJ)}")
    A(f"s_lshl_b32 {s(sT0)}, {s(sT0)}, 2")
    A(f"s_add_u32 {s(sT0)}, {s(sT0)}, {s(sW)}")
    A(f"s_lshl_b32 {s(sT0)}, {s(sT0)}, 5")
    A(f"s_lshl_b32 {s(sT1)}, {s(sT0)}, 7")
    A(f"s_add_u32 {s(sT1)}, {s(sT1)}, {hex(WS_OP)}")
    A(f"v_lshl_add_u32 v40, {v(vL)}, 4, {s(sT1)}")
    A(f"s_lshl_b32 {s(sT1)}, {s(sT0)}, 4")
    A(f"s_add_u32 {s(sT1)}, {s(sT1)}, {hex(WS_ST)}")
    A(f"v_and_b32 v41, 31, {v(vL)}")
    A(f"v_lshl_add_u32 v41, v41, 4, {s(sT1)}")
    A(f"v_cmp_gt_u32 {s(sM0,2)}, 32, {v(vL)}")
    A(f"v_bfe_u32 v42, {v(vN)}, 2, 1")
    A(f"v_lshl_add_u32 v42, {v(vS)}, 1, v42")
    A(f"v_lshlrev_b32 v42, 2, v42")
    if cfg.two_stage:
        lab0 = poll_head(A, "L_hop3t")
        A(f"buffer_load_dwordx4 {v(vST,4)}, v41, {s(sWS,4)}, 0 offen sc1")
        A(f"s_waitcnt vmcnt(0)")
        A(f"v_add3_u32 v45, {v(vST)}, {v(vST+1)}, {v(vST+2)}")
        A(f"v_add_u32 v45, {s(sNONCE)}, v45")
        A(f"v_cmp_ne_u32 {s(sM1,2)}, v45, {v(vST+3)}")
        poll_tail(A, lab0, sM1, cfg.poll_sleep)
    lab = poll_head(A, "L_hop3")
    for i in range(4):
        A(f"buffer_load_dwordx4 {v(vOD+4*i,4)}, v40, {s(sWS,4)}, 0 offen offset:{1024*i} sc1")
    A(f"buffer_load_dwordx4 {v(vST,4)}, v41, {s(sWS,4)}, 0 offen sc1")
    A(f"s_waitcnt vmcnt(0)")
    sum_dwords(A, 44, range(vOD, vOD+16))
    A(f"v_cndmask_b32 v45, 0, {v(vST+2)}, {s(sM0,2)}")
    A(f"v_sub_u32 v44, v44, v45")
    A(f"v_add3_u32 v45, {v(vST)}, {v(vST+1)}, {v(vST+2)}")
    A(f"v_add_u32 v45, {s(sNONCE)}, v45")
    A(f"v_cmp_ne_u32 {s(sM1,2)}, v45, {v(vST+3)}")
    wave_sum_u32(A, 44, 46)
    A(f"v_cmp_ne_u32 vcc, 0, v44")
    A(f"s_or_b64 {s(sM1,2)}, {s(sM1,2)}, vcc")
    poll_tail(A, lab, sM1, cfg.poll_sleep)
    stamp(A, cfg, 7)
    A(f"v_mov_b32 v44, {v(vST)}")
    for d in ("quad_perm:[1,0,3,2]", "quad_perm:[2,3,0,1]", "row_half_mirror", "row_mirror"):
        A(f"v_max_f32_dpp v44, v44, v44 {d} row_mask:0xf bank_mask:0xf")
    A(f"v_mov_b32 v46, v44")
    A(f"v_permlane16_swap_b32 v44, v46")
    A(f"v_max_f32 v44, v44, v46")
    A(f"v_sub_f32 v44, {v(vST)}, v44")
    A(f"v_exp_f32 v44, v44")
    A(f"v_mul_f32 v45, v44, {v(vST+1)}")
    for d in ("quad_perm:[1,0,3,2]", "quad_perm:[2,3,0,1]", "row_half_mirror", "row_mirror"):
        A(f"v_add_f32_dpp v45, v45, v45 {d} row_mask:0xf bank_mask:0xf")
    A(f"v_mov_b32 v46, v45")
    A(f"v_permlane16_swap_b32 v45, v46")
    A(f"v_add_f32 v45, v45, v46")
    A(f"v_rcp_f32 v45, v45")
    A(f"v_mul_f32 v44, v44, v45")
    for k in range(4):
        A(f"ds_bpermute_b32 {v(48+k)}, v42, v44 offset:{32*k}")
    A(f"s_waitcnt lgkmcnt(0)")
    A(f"v_cvt_pk_bf16_f32 v52, v48, v49")
    A(f"v_cvt_pk_bf16_f32 v53, v50, v51")
    for t in range(2):
        sel_gemm_step(A, 52+t, vSEL, vAF0 if t % 2 == 0 else vAF1, vOD+8*t, vQX, vQY, t == 0)
    for k in range(8):
        A(f"v_permlane16_swap_b32 {v(vQX+k)}, {v(56+k)}")
    for k in range(8):
        A(f"v_add_f32_dpp {v(56+k)}, {v(56+k)}, {v(vQX+k)} row_ror:8 row_mask:0xf bank_mask:0xf")
    for k in range(4):
        A(f"v_cvt_pk_bf16_f32 {v(48+k)}, {v(56+2*k)}, {v(56+2*k+1)}")
    A(f"s_lshl_b32 {s(sT0)}, {s(sW)}, 7")
    A(f"s_add_u32 {s(sT0)}, {s(sT0)}, {L_CC}")
    A(f"v_lshl_add_u32 v46, {v(vL)}, 4, {s(sT0)}")
    A(f"s_mov_b64 {s(sEX,2)}, exec")
    A(f"s_mov_b64 exec, 0xff")
    A(f"ds_write_b128 v46, v[48:51]")
    A(f"s_mov_b64 exec, {s(sEX,2)}")
    arrive(A, FCC, 47)
    stamp(A, cfg, 8)
    A(f"s_cmp_ge_u32 s2, 64")
    A(f"s_cbranch_scc1 L_Mdone")
    A(f"s_cmp_lg_u32 {s(sW)}, 0")
    A(f"s_cbranch_scc1 L_Mdone")
    vFD, vFC = 128, 152
    A(f"s_mul_i32 {s(sT0)}, s2, {NSLOT}")
    A(f"s_lshl_b32 {s(sT2)}, {s(sT0)}, 6")
    A(f"s_add_u32 {s(sT2)}, {s(sT2)}, {hex(WS_FD)}")
    A(f"v_lshl_add_u32 v40, {v(vL)}, 4, {s(sT2)}")
    A(f"s_lshl_b32 {s(sT2)}, {s(sT0)}, 3")
    A(f"s_add_u32 {s(sT2)}, {s(sT2)}, {hex(WS_FC)}")
    A(f"v_lshl_add_u32 v41, {v(vL)}, 3, {s(sT2)}")
    A(f"v_mov_b32 v47, 0x7ffffff0")
    NP = 32 if cfg.nomlp else NPROD
    A(f"v_lshrrev_b32 v44, 2, {v(vL)}")
    A(f"v_add_u32 v44, 32, v44")
    A(f"v_cmp_gt_u32 vcc, {NP}, v44")
    A(f"v_add_u32 v46, 2048, v40")
    A(f"v_cndmask_b32 v42, v47, v46, vcc")
    A(f"v_cmp_gt_u32 {s(sM2,2)}, {NP}, {v(vL)}")
    A(f"v_cndmask_b32 v41, v47, v41, {s(sM2,2)}")
    A(f"v_and_b32 v44, 3, {v(vN)}")
    A(f"v_mov_b32 v45, 0")
    for k, (j0, j1) in enumerate(((0,1),(2,3))):
        A(f"v_mov_b32 v46, 0x3f80")
        A(f"v_cmp_eq_u32 vcc, {j0}, v44")
        A(f"v_cndmask_b32 {v(vAF0+k)}, v45, v46, vcc")
        A(f"v_mov_b32 v46, 0x3f800000")
        A(f"v_cmp_eq_u32 vcc, {j1}, v44")
        A(f"v_cndmask_b32 {v(vAF0+k)}, {v(vAF0+k)}, v46, vcc")
    A(f"v_mov_b32 {v(vAF0+2)}, {v(vAF0)}")
    A(f"v_mov_b32 {v(vAF0+3)}, {v(vAF0+1)}")
    for k in range(4): A(f"v_mov_b32 {v(vFD+12+k)}, 0")
    A(f"s_lshl_b32 {s(sT3)}, s2, 6")
    A(f"v_lshl_add_u32 v57, {v(vL)}, 4, {s(sT3)}")
    lab = poll_head(A, "L_hop5")
    for i in range(2):
        A(f"buffer_load_dwordx4 {v(vFD+4*i,4)}, v40, {s(sWS,4)}, 0 offen offset:{1024*i} sc1")
    A(f"buffer_load_dwordx4 {v(vFD+8,4)}, v42, {s(sWS,4)}, 0 offen sc1")
    A(f"buffer_load_dwordx2 {v(vFC,2)}, v41, {s(sWS,4)}, 0 offen sc1")
    A(f"s_waitcnt vmcnt(0)")
    sum_dwords(A, 44, range(vFD, vFD+12))
    A(f"v_sub_u32 v44, v44, {v(vFC)}")
    A(f"v_add_u32 v45, {s(sNONCE)}, {v(vFC)}")
    A(f"v_cmp_ne_u32 vcc, v45, {v(vFC+1)}")
    wave_sum_u32(A, 44, 46)
    A(f"s_and_b64 {s(sM1,2)}, vcc, {s(sM2,2)}")
    A(f"v_cmp_ne_u32 vcc, 0, v44")
    A(f"s_or_b64 {s(sM1,2)}, {s(sM1,2)}, vcc")
    poll_tail(A, lab, sM1, cfg.poll_sleep)
    stamp(A, cfg, 9)
    for p in range(2):
        w = vFD + 8*p
        A(f"v_swap_b32 {v(w+2)}, {v(w+4)}")
        A(f"v_swap_b32 {v(w+3)}, {v(w+5)}")
    for p in range(2):
        w = vFD + 8*p
        c0 = "0" if p == 0 else v(vQX,4); c1 = "0" if p == 0 else v(vQY,4)
        A(f"v_mfma_f32_16x16x32_bf16 {v(vQX,4)}, {v(vAF0,4)}, {v(w,4)}, {c0}")
        A(f"v_mfma_f32_16x16x32_bf16 {v(vQY,4)}, {v(vAF0,4)}, {v(w+4,4)}, {c1}")
    for d in ("row_ror:4", "row_ror:8"):
        for k in range(8):
            A(f"v_add_f32_dpp {v(vQX+k)}, {v(vQX+k)}, {v(vQX+k)} {d} row_mask:0xf bank_mask:0xf")
    for k in range(4):
        A(f"v_cvt_pk_bf16_f32 {v(48+k)}, {v(vQX+2*k)}, {v(vQX+2*k+1)}")
    A(f"s_mov_b64 exec, 0xf")
    A(f"buffer_store_dwordx4 v[48:51], v57, {s(sOUT,4)}, 0 offen")
    A(f"s_cmp_lg_u32 s2, 0")
    A(f"s_cbranch_scc1 L_Mdone")
    A(f"s_add_u32 {s(sT0)}, {s(sE)}, 1")
    A(f"v_mov_b32 v52, {s(sT0)}")
    A(f"v_mov_b32 v53, {hex(WS_E)}")
    A(f"s_mov_b64 exec, 1")
    A(f"buffer_store_dword v52, v53, {s(sWS,4)}, 0 offen sc1")
    A.label("L_Mdone")
    if cfg.ts:
        A(f"s_mov_b64 exec, -1")
        emit_ts(A, cfg)
    A(f"s_endpgm")
    A.label("L_Lpath")
    vGX, vGW = 64, 80
    vW1, vW2, vB1, vH = 128, 160, 192, 196
    A(f"s_sub_u32 {s(sW)}, {s(sW)}, 4")
    A(f"v_lshlrev_b32 v40, 4, {v(vL)}")
    A(f"v_mov_b32 v43, {hex(WS_E)}")
    if cfg.prefetch_code:
        A(f"s_cmp_lg_u32 {s(sW)}, 3")
        A(f"s_cbranch_scc1 L_nopf")
        A(f"s_getpc_b64 s[66:67]")
        A.label("L_pcref")
        A(f"s_sub_u32 s66, s66, (L_pcref-{KNAME})")
        A(f"s_subb_u32 s67, s67, 0")
        A(f"s_lshl_b32 {s(sT2)}, {s(sR)}, 10")
        A(f"v_lshl_add_u32 v44, {v(vL)}, 7, {s(sT2)}")
        A(f"v_cmp_gt_u32 vcc, (L_end-{KNAME}), v44")
        A(f"v_cmp_gt_u32 {s(sM3,2)}, 8, {v(vL)}")
        A(f"s_and_b64 vcc, vcc, {s(sM3,2)}")
        A(f"s_and_saveexec_b64 {s(sEX,2)}, vcc")
        A(f"s_cbranch_execz L_pfskip")
        A(f"global_load_dword v63, v44, s[66:67]")
        A.label("L_pfskip")
        A(f"s_mov_b64 exec, {s(sEX,2)}")
        A.label("L_nopf")
    A(f"s_lshl_b32 {s(sT0)}, {s(sB)}, 12")
    A(f"s_lshl_b32 {s(sT1)}, {s(sKC)}, 7")
    A(f"s_add_u32 {s(sT0)}, {s(sT0)}, {s(sT1)}")
    A(f"s_lshl_b32 {s(sT1)}, {s(sW)}, 5")
    A(f"s_add_u32 {s(sT0)}, {s(sT0)}, {s(sT1)}")
    A(f"s_lshl_b32 {s(sT0)}, {s(sT0)}, 10")
    A(f"s_mul_i32 {s(sT1)}, {s(sW)}, {32*PITCH}")
    A(f"s_mov_b32 m0, {s(sT1)}")
    A(f"s_mov_b32 {s(sCNT)}, 0")
    if cfg.l_delay: wait_flag(A, FW, 1, 45)
    A.label("L_dma")
    if cfg.kvwin < 32: A(f"s_waitcnt vmcnt({cfg.kvwin-1})")
    A(f"buffer_load_dwordx4 v40, {s(sKV,4)}, {s(sT0)} offen{NTKV} lds")
    A(f"s_add_u32 m0, m0, {PITCH}")
    A(f"s_add_u32 {s(sT0)}, {s(sT0)}, 1024")
    A(f"s_add_u32 {s(sCNT)}, {s(sCNT)}, 1")
    A(f"s_cmp_lt_u32 {s(sCNT)}, 32")
    A(f"s_cbranch_scc1 L_dma")
    arrive(A, FKI, 45)
    stamp(A, cfg, 2, L=True)
    make_sels(A, vN, vSEL, 44)
    if cfg.pw_op:
        A(f"s_cmp_lg_u32 {s(sW)}, 1")
        A(f"s_cbranch_scc1 L_nopw3")
        A(f"s_lshl_b32 {s(sT0)}, {s(sHG)}, 4")
        A(f"v_add_u32 v48, {s(sT0)}, {v(vN)}")
        A(f"v_lshlrev_b32 v48, 10, v48")
        A(f"s_lshl_b32 {s(sT1)}, {s(sB)}, 5")
        A(f"s_add_u32 {s(sT0)}, {s(sT1)}, {s(sKC)}")
        A(f"v_add_u32 v48, {s(sT0)}, v48")
        A(f"v_lshlrev_b32 v49, 4, {v(vS)}")
        A(f"v_lshl_add_u32 v49, v48, 7, v49")
        A(f"v_add_u32 v49, {hex(WS_OP)}, v49")
        A(f"v_lshl_add_u32 v48, {v(vS)}, 7, v48")
        A(f"v_lshlrev_b32 v48, 4, v48")
        A(f"v_add_u32 v48, {hex(WS_ST)}, v48")
        for k in range(4): A(f"v_mov_b32 {v(52+k)}, 0")
        A(f"s_mov_b32 {s(sT2)}, 0")
        for q in range(8):
            for u in range(2):
                A(f"buffer_store_dwordx4 v[52:55], v49, {s(sWS,4)}, {s(sT2)} offen offset:{64*u} sc1")
            if q < 7: A(f"s_add_u32 {s(sT2)}, {s(sT2)}, 16384")
        A(f"s_mov_b32 {s(sT2)}, 0")
        A(f"s_mov_b32 exec_hi, 0")
        for mw in range(4):
            A(f"buffer_store_dwordx4 v[52:55], v48, {s(sWS,4)}, {s(sT2)} offen sc1")
            if mw < 3: A(f"s_add_u32 {s(sT2)}, {s(sT2)}, 4096")
        A(f"s_mov_b64 exec, -1")
        A(f"s_waitcnt vmcnt(20)")
        arrive(A, FKV, 45)
        A(f"s_waitcnt vmcnt(0)")
        arrive(A, FP3, 45)
        A(f"s_branch L_gate")
        A.label("L_nopw3")
    A(f"s_waitcnt vmcnt(0)")
    arrive(A, FKV, 45)
    stamp(A, cfg, 3, L=True)
    if cfg.exp: A(f"s_branch L_Ldone")
    A(f"s_cmp_eq_u32 {s(sW)}, 0")
    A(f"s_cbranch_scc1 L_tail")
    A(f"s_cmp_lg_u32 {s(sW)}, 1")
    A(f"s_cbranch_scc1 L_mlpw")
    A.label("L_gate")
    for b in range(4):
        A(f"buffer_load_dwordx4 {v(vGX+4*b,4)}, v40, {s(sX,4)}, 0 offen offset:{1024*b}")
    A(f"buffer_load_dwordx4 {v(vGW,4)}, v40, {s(sGW,4)}, 0 offen")
    for b in range(4):
        A(f"v_mov_b32 {v(44+b)}, 0")
    A(f"s_waitcnt vmcnt(0)")
    for k in range(4):
        for b in range(4):
            A(f"v_dot2_f32_bf16 {v(44+b)}, {v(vGX+4*b+k)}, {v(vGW+k)}, {v(44+b)}")
    A("s_nop 3")
    for d in ("quad_perm:[1,0,3,2]", "quad_perm:[2,3,0,1]", "row_half_mirror", "row_mirror"):
        for b in range(4):
            A(f"v_add_f32_dpp {v(44+b)}, {v(44+b)}, {v(44+b)} {d} row_mask:0xf bank_mask:0xf")
    xreduce_rows2(A, "v_add_f32", 44, 48, "v_add_f32", 45, 49)
    xreduce_rows2(A, "v_add_f32", 46, 48, "v_add_f32", 47, 49)
    A(f"v_cmp_eq_u32 vcc, 1, {v(vS)}")
    A(f"v_cndmask_b32 v44, v44, v45, vcc")
    A(f"v_cmp_eq_u32 vcc, 2, {v(vS)}")
    A(f"v_cndmask_b32 v44, v44, v46, vcc")
    A(f"v_cmp_eq_u32 vcc, 3, {v(vS)}")
    A(f"v_cndmask_b32 v44, v44, v47, vcc")
    A(f"s_mov_b32 {s(sT0)}, {hex(f2u(-LOG2E))}")
    A(f"v_mul_f32 v44, {s(sT0)}, v44")
    A(f"v_exp_f32 v44, v44")
    A(f"v_add_f32 v44, 1.0, v44")
    A(f"v_rcp_f32 v58, v44")
    A(f"v_lshlrev_b32 v45, 2, {v(vS)}")
    A(f"v_add_u32 v45, {L_G}, v45")
    A(f"ds_write_b32 v45, v58")
    arrive(A, FG, 45)
    A(f"s_branch L_Ldone")
    A.label("L_mlpw")
    A(f"s_cmp_lg_u32 {s(sW)}, 2")
    A(f"s_cbranch_scc1 L_Ldone")
    if cfg.nomlp: A(f"s_branch L_Ldone")
    sNS, sJM, sMHJ = sT3, sT4, sT5
    A(f"s_lshr_b32 {s(sT0)}, {s(sR)}, 3")
    A(f"s_lshl_b32 {s(sT0)}, {s(sT0)}, 3")
    A(f"s_add_u32 {s(sNS)}, {s(sT0)}, {s(sXCD)}")
    A(f"s_cmp_ge_u32 {s(sNS)}, {NMG}")
    A(f"s_cbranch_scc1 L_Ldone")
    A(f"s_and_b32 {s(sJM)}, {s(sR)}, 7")
    A(f"s_lshl_b32 {s(sMHJ)}, {s(sNS)}, 3")
    A(f"s_add_u32 {s(sMHJ)}, {s(sMHJ)}, {s(sJM)}")
    vMX, vMW1, vMW2, vMB1 = 8, 64, 128, 60
    vONE, vG1, vCK1 = 192, 208, 240
    vPUB, vCPUB, vGA, vGB, vGC = 52, 53, 54, 55, 56
    A(f"v_lshrrev_b32 v41, 2, {v(vN)}")
    A(f"v_lshlrev_b32 v41, 10, v41")
    A(f"v_lshl_add_u32 v41, {v(vS)}, 5, v41")
    A(f"s_lshl_b32 {s(sT0)}, {s(sJM)}, 7")
    A(f"v_add_u32 v41, {s(sT0)}, v41")
    A(f"s_lshl_b32 {s(sT0)}, {s(sJM)}, 6")
    A(f"v_lshl_add_u32 v42, {v(vS)}, 4, {s(sT0)}")
    A(f"s_movk_i32 {s(sT1)}, 2752")
    A(f"v_mul_lo_u32 v42, v42, {s(sT1)}")
    A(f"s_lshl_b32 {s(sT0)}, {s(sNS)}, 8")
    A(f"v_lshl_add_u32 v44, {v(vN)}, 4, {s(sT0)}")
    A(f"v_add_u32 v42, v42, v44")
    A(f"v_cmp_gt_u32 vcc, 2752, v44")
    A(f"v_mov_b32 v45, 0x7ffffff0")
    A(f"v_cndmask_b32 v42, v45, v42, vcc")
    A(f"v_cndmask_b32 v44, v45, v44, vcc")
    A(f"s_lshl_b32 {s(sT0)}, {s(sNS)}, 17")
    A(f"s_lshl_b32 {s(sT1)}, {s(sJM)}, 7")
    A(f"s_add_u32 {s(sT0)}, {s(sT0)}, {s(sT1)}")
    A(f"v_lshlrev_b32 v46, 15, {v(vS)}")
    A(f"v_lshl_add_u32 v46, {v(vN)}, 3, v46")
    A(f"v_add_u32 v48, {s(sT0)}, v46")
    if cfg.mlp_w1_flag: wait_flag(A, globals()[cfg.mlp_w1_flag], 4, 46)
    A(f"buffer_load_dword v40, v43, {s(sWS,4)}, 0 offen sc1")
    for k in range(2):
        A(f"buffer_load_dwordx4 {v(vMX+4*k,4)}, v41, {s(sX,4)}, 0 offen offset:{16*k}")
    A(f"buffer_load_dwordx4 {v(vMB1,4)}, v44, {s(sB1,4)}, 0 offen")
    A(f"s_mov_b32 {s(sT2)}, 0")
    for k in range(16):
        A(f"buffer_load_dwordx4 {v(vMW1+4*k,4)}, v42, {s(sW1,4)}, {s(sT2)} offen{NT}")
        if k < 15: A(f"s_add_u32 {s(sT2)}, {s(sT2)}, 2752")
    A(f"s_mov_b32 {s(sT2)}, 0")
    for k in range(32):
        A(f"buffer_load_dwordx2 {v(vMW2+2*k,2)}, v48, {s(sW2,4)}, {s(sT2)} offen offset:{1024*(k%4)}{NT}")
        if k % 4 == 3 and k < 31: A(f"s_add_u32 {s(sT2)}, {s(sT2)}, 4096")
    make_ones(A, vN, vONE, 46)
    partial_offsets(A, vL, vN, vS, WS_H1, WS_H1C, vPUB, vCPUB, vGA, vGB, vGC, 46, sMHJ, sNS)
    A(f"v_lshrrev_b32 v46, 3, {v(vN)}")
    A(f"v_lshl_add_u32 v46, {v(vS)}, 4, v46")
    A(f"s_lshl_b32 {s(sT0)}, {s(sJM)}, 1")
    A(f"v_add_u32 v46, {s(sT0)}, v46")
    A(f"s_movk_i32 {s(sT1)}, {NSLOT}")
    A(f"v_mul_lo_u32 v46, v46, {s(sT1)}")
    A(f"s_add_u32 {s(sT0)}, {s(sNS)}, 32")
    A(f"v_add_u32 v46, {s(sT0)}, v46")
    A(f"v_lshlrev_b32 v58, 3, v46")
    A(f"v_add_u32 v58, {hex(WS_FC)}, v58")
    A(f"v_and_b32 v49, 7, {v(vN)}")
    A(f"v_lshlrev_b32 v49, 3, v49")
    A(f"v_lshl_add_u32 v57, v46, 6, v49")
    A(f"v_add_u32 v57, {hex(WS_FD)}, v57")
    A(f"v_lshlrev_b32 v41, 4, {v(vL)}")
    A(f"v_add_u32 v41, {L_HR}, v41")
    A(f"v_lshrrev_b32 v42, 2, {v(vN)}")
    A(f"v_lshlrev_b32 v42, 8, v42")
    A(f"v_lshl_add_u32 v42, {v(vS)}, 6, v42")
    A(f"v_add_u32 v42, {L_HR}, v42")
    A(f"s_waitcnt vmcnt(48)")
    nonce_from(A, 40)
    for t in range(8):
        A(f"s_waitcnt vmcnt({32 + 14 - 2*t})")
        sel_gemm_step(A, vMX+t, vSEL, 24 if t % 2 == 0 else 28, vMW1+8*t, 32, 36, t == 0)
    publish_partial(A, 32, 36, 16, vPUB, vCPUB, 46, cfg.local_st, cfg.dual)
    gather_reduce(A, cfg, "L_hopm", vG1, vCK1, vONE, vGA, vGB, vGC, 32, 36, 46)
    vH, vHa, vHn, vHd = 32, 208, 216, 224
    for e in range(8):
        r = vMB1 + e//2
        if e % 2 == 0: A(f"v_lshlrev_b32 {v(vHa+e)}, 16, {v(r)}")
        else: A(f"v_and_b32 {v(vHa+e)}, 0xffff0000, {v(r)}")
    for e in range(8):
        A(f"v_add_f32 {v(vH+e)}, {v(vH+e)}, {v(vHa+e)}")
    A(f"s_mov_b32 {s(sT0)}, {hex(f2u(-LOG2E))}")
    for e in range(8):
        A(f"v_mul_f32 {v(vHa+e)}, {s(sT0)}, abs({v(vH+e)})")
    for e in range(8):
        A(f"v_exp_f32 {v(vHa+e)}, {v(vHa+e)}")
    for e in range(8):
        a_, h_, n_, d_ = vHa+e, vH+e, vHn+e, vHd+e
        A(f"v_cmp_lt_f32 vcc, 0, {v(h_)}")
        A(f"v_mul_f32 {v(d_)}, {v(a_)}, {v(a_)}")
        A(f"v_cndmask_b32 {v(n_)}, {v(d_)}, 1.0, vcc")
        A(f"v_fma_f32 {v(n_)}, 2.0, {v(a_)}, {v(n_)}")
        A(f"v_cndmask_b32 {v(d_)}, 1.0, {v(d_)}, vcc")
        A(f"v_fma_f32 {v(d_)}, 2.0, {v(d_)}, {v(n_)}")
        A(f"v_rcp_f32 {v(d_)}, {v(d_)}")
        A(f"v_mul_f32 {v(n_)}, {v(n_)}, {v(h_)}")
        A(f"v_mul_f32 {v(h_)}, {v(n_)}, {v(d_)}")
    for k in range(4):
        A(f"v_cvt_pk_bf16_f32 {v(16+k)}, {v(vH+2*k)}, {v(vH+2*k+1)}")
    A(f"ds_write_b128 v41, v[16:19]")
    for k in range(4):
        A(f"ds_read_b128 {v(8+4*k,4)}, v42 offset:{16*k}")
    A(f"v_lshlrev_b32 v45, 2, {v(vS)}")
    A(f"v_add_u32 v45, {L_G}, v45")
    wait_flag(A, FG, 1, 46, lambda: A(f"ds_read_b32 v59, v45"))
    for t in range(16):
        af = 24 if t % 2 == 0 else 28
        for k in range(4):
            A(f"v_perm_b32 {v(af+k)}, {v(8+t)}, {v(8+t)}, {v(vSEL+k)}")
        c = "0" if t == 0 else v(32,4)
        A(f"v_mfma_f32_16x16x32_bf16 {v(32,4)}, {v(af,4)}, {v(vMW2+4*t,4)}, {c}")
    A(f"v_sub_f32 v59, 1.0, v59")
    for k in range(4):
        A(f"v_mul_f32 {v(32+k)}, {v(32+k)}, v59")
    A(f"v_cvt_pk_bf16_f32 v16, v32, v33")
    A(f"v_cvt_pk_bf16_f32 v17, v34, v35")
    A(f"buffer_store_dwordx2 v[16:17], v57, {s(sWS,4)}, 0 offen sc1")
    A(f"v_add_u32 v46, v16, v17")
    for d in ("quad_perm:[1,0,3,2]", "quad_perm:[2,3,0,1]", "row_half_mirror"):
        A(f"v_add_u32_dpp v46, v46, v46 {d} row_mask:0xf bank_mask:0xf")
    A(f"v_add_u32 v47, {s(sNONCE)}, v46")
    A(f"s_mov_b32 exec_lo, 0x01010101")
    A(f"s_mov_b32 exec_hi, 0x01010101")
    A(f"buffer_store_dwordx2 v[46:47], v58, {s(sWS,4)}, 0 offen sc1")
    A(f"s_mov_b64 exec, -1")
    A(f"s_branch L_Ldone")
    A.label("L_tail")
    vWUV, vWO = 64, 128
    A(f"s_lshl_b32 {s(sT0)}, {s(sJ)}, 19")
    A(f"s_lshl_b32 {s(sT1)}, {s(sH)}, 8")
    A(f"s_add_u32 {s(sT0)}, {s(sT0)}, {s(sT1)}")
    A(f"v_lshlrev_b32 v41, 17, {v(vS)}")
    A(f"v_lshl_add_u32 v41, {v(vN)}, 4, v41")
    A(f"v_add_u32 v41, {s(sT0)}, v41")
    A(f"s_lshl_b32 {s(sT0)}, {s(sH)}, 17")
    A(f"s_lshl_b32 {s(sT1)}, {s(sJ)}, 7")
    A(f"s_add_u32 {s(sT0)}, {s(sT0)}, {s(sT1)}")
    A(f"v_lshlrev_b32 v42, 15, {v(vS)}")
    A(f"v_lshl_add_u32 v42, {v(vN)}, 3, v42")
    A(f"v_add_u32 v42, {s(sT0)}, v42")
    A(f"buffer_load_dword v61, v43, {s(sWS,4)}, 0 offen sc1")
    vPUB, vCPUB, vGA, vGB, vGC = 52, 53, 54, 55, 56
    partial_offsets(A, vL, vN, vS, WS_C1, WS_C1C, vPUB, vCPUB, vGA, vGB, vGC, 46)
    A(f"v_lshrrev_b32 v46, 3, {v(vN)}")
    A(f"v_lshl_add_u32 v46, {v(vS)}, 4, v46")
    A(f"s_lshl_b32 {s(sT0)}, {s(sJ)}, 1")
    A(f"v_add_u32 v46, {s(sT0)}, v46")
    A(f"s_movk_i32 {s(sT1)}, {NSLOT}")
    A(f"v_mul_lo_u32 v46, v46, {s(sT1)}")
    A(f"v_add_u32 v46, {s(sH)}, v46")
    A(f"v_lshlrev_b32 v60, 3, v46")
    A(f"v_add_u32 v60, {hex(WS_FC)}, v60")
    A(f"v_and_b32 v47, 7, {v(vN)}")
    A(f"v_lshlrev_b32 v47, 3, v47")
    A(f"v_lshl_add_u32 v59, v46, 6, v47")
    A(f"v_add_u32 v59, {hex(WS_FD)}, v59")
    if cfg.tail_after_f3: wait_flag(A, F3, 4, 45)
    A(f"s_mov_b32 {s(sT2)}, 0")
    for k in range(16):
        A(f"buffer_load_dwordx4 {v(vWUV+4*k,4)}, v41, {s(sWUV,4)}, {s(sT2)} offen{NT}")
        if k < 15: A(f"s_add_u32 {s(sT2)}, {s(sT2)}, 8192")
    A(f"s_mov_b32 {s(sT2)}, 0")
    for k in range(32):
        A(f"buffer_load_dwordx2 {v(vWO+2*k,2)}, v42, {s(sWO,4)}, {s(sT2)} offen offset:{1024*(k%4)}{NT}")
        if k % 4 == 3 and k < 31: A(f"s_add_u32 {s(sT2)}, {s(sT2)}, 4096")
    vONE, vG1, vCK1 = 192, 208, 240
    A(f"s_waitcnt vmcnt(48)")
    nonce_from(A, 61)
    A(f"v_lshlrev_b32 v45, 2, {v(vS)}")
    A(f"v_add_u32 v45, {L_G}, v45")
    wait_flag(A, FG, 1, 46, lambda: A(f"ds_read_b32 v58, v45"))
    make_ones(A, vN, vONE, 46)
    A(f"v_lshrrev_b32 v44, 2, {v(vN)}")
    A(f"v_lshlrev_b32 v42, 7, v44")
    A(f"v_lshl_add_u32 v42, {v(vS)}, 5, v42")
    A(f"v_add_u32 v42, {L_CC}, v42")
    A(f"v_lshlrev_b32 v43, 4, {v(vL)}")
    A(f"v_add_u32 v43, {L_CT}, v43")
    A(f"v_lshlrev_b32 v44, 8, v44")
    A(f"v_lshl_add_u32 v44, {v(vS)}, 6, v44")
    A(f"v_add_u32 v44, {L_CT}, v44")
    A(f"s_waitcnt vmcnt(32)")
    for t in range(8):
        A(f"v_swap_b32 {v(vWUV+8*t+2)}, {v(vWUV+8*t+4)}")
        A(f"v_swap_b32 {v(vWUV+8*t+3)}, {v(vWUV+8*t+5)}")
    A(f"s_waitcnt vmcnt(0)")
    stamp(A, cfg, 4, L=True)
    vCP = 8
    def _rd():
        A(f"ds_read_b128 {v(vCP,4)}, v42")
        A(f"ds_read_b128 {v(vCP+4,4)}, v42 offset:16")
    wait_flag(A, FCC, 4, 45, _rd)
    stamp(A, cfg, 5, L=True)
    for t in range(8):
        sel_gemm_step(A, vCP+t, vSEL, 24 if t % 2 == 0 else 28, vWUV+8*t, 32, 36, t == 0, swap=False)
    publish_partial(A, 32, 36, 16, vPUB, vCPUB, 46, cfg.local_st, cfg.dual)
    stamp(A, cfg, 6, L=True)
    gather_reduce(A, cfg, "L_hop4", vG1, vCK1, vONE, vGA, vGB, vGC, 32, 36, 46)
    stamp(A, cfg, 7, L=True)
    A(f"v_cvt_pk_bf16_f32 v16, v32, v33")
    A(f"v_cvt_pk_bf16_f32 v17, v34, v35")
    A(f"v_cvt_pk_bf16_f32 v18, v36, v37")
    A(f"v_cvt_pk_bf16_f32 v19, v38, v39")
    A(f"ds_write_b128 v43, v[16:19]")
    vXP2 = 8
    for k in range(4):
        A(f"ds_read_b128 {v(vXP2+4*k,4)}, v44 offset:{16*k}")
    for t in range(16):
        if t % 4 == 0: A(f"s_waitcnt lgkmcnt({3-t//4})")
        af = 24 if t % 2 == 0 else 28
        for k in range(4):
            A(f"v_perm_b32 {v(af+k)}, {v(vXP2+t)}, {v(vXP2+t)}, {v(vSEL+k)}")
        c = "0" if t == 0 else v(32,4)
        A(f"v_mfma_f32_16x16x32_bf16 {v(32,4)}, {v(af,4)}, {v(vWO+4*t,4)}, {c}")
    for k in range(4):
        A(f"v_mul_f32 {v(32+k)}, {v(32+k)}, v58")
    A(f"v_cvt_pk_bf16_f32 v16, v32, v33")
    A(f"v_cvt_pk_bf16_f32 v17, v34, v35")
    if cfg.pw_fd: wait_flag(A, FP2, 1, 45)
    A(f"buffer_store_dwordx2 v[16:17], v59, {s(sWS,4)}, 0 offen sc1")
    A(f"v_add_u32 v46, v16, v17")
    for d in ("quad_perm:[1,0,3,2]", "quad_perm:[2,3,0,1]", "row_half_mirror"):
        A(f"v_add_u32_dpp v46, v46, v46 {d} row_mask:0xf bank_mask:0xf")
    A(f"v_add_u32 v47, {s(sNONCE)}, v46")
    A(f"s_mov_b32 exec_lo, 0x01010101")
    A(f"s_mov_b32 exec_hi, 0x01010101")
    A(f"buffer_store_dwordx2 v[46:47], v60, {s(sWS,4)}, 0 offen sc1")
    A(f"s_mov_b64 exec, -1")
    A.label("L_Ldone")
    if cfg.ts:
        stamp(A, cfg, 1, L=True)
        emit_ts(A, cfg, L=True)
    A.label("L_exit")
    A(f"s_endpgm")
    A.label("L_end")
    lines = hazard.fix(A.l, verbose=True)
    return "\n".join(lines) + "\n"

def emit_ts(A, cfg, L=False):
    A(f"s_waitcnt lgkmcnt(0) vmcnt(0)")
    A(f"s_mov_b64 exec, 0x3ff")
    A(f"v_mbcnt_lo_u32_b32 v0, -1, 0")
    A(f"v_mov_b32 v1, 0")
    for k in range(10):
        A(f"v_mov_b32 v2, {s(sTS+2*k)}")
        A(f"v_cmp_eq_u32 vcc, {k}, v0")
        A(f"v_cndmask_b32 v1, v1, v2, vcc")
    A(f"s_lshl_b32 {s(sT0)}, s2, 3")
    A(f"s_add_u32 {s(sT0)}, {s(sT0)}, {s(sW)}")
    if L: A(f"s_add_u32 {s(sT0)}, {s(sT0)}, 4")
    A(f"s_lshl_b32 {s(sT0)}, {s(sT0)}, 6")
    A(f"s_add_u32 {s(sT0)}, {s(sT0)}, {hex(WS_DBG)}")
    A(f"v_lshl_add_u32 v2, v0, 2, {s(sT0)}")
    A(f"buffer_store_dword v1, v2, {s(sWS,4)}, 0 offen")

def build(cfg, path):
    body = gen(cfg)
    txt = wrap([(KNAME, body, 256, 102, 256)], [(KNAME, (256,1,1), (512,1,1), LDS_SIZE)])
    open(path, "w").write(txt)
    return path

if __name__ == "__main__":
    import build as B
    cfg = Cfg()
    for a_ in sys.argv[2:]:
        k, val = a_.split("=")
        setattr(cfg, k, eval(val))
    p = build(cfg, sys.argv[1])
    B.build(p, p.replace(".s", ".co"))
    import subprocess
    print(subprocess.run(f"llvm-objdump -d --mcpu=gfx950 {p.replace('.s','.co')} | grep -c '//' ; llvm-readelf -S {p.replace('.s','.co')} | grep -E 'text'", shell=True, capture_output=True, text=True).stdout)
```

```python
import sys; sys.path.insert(0, "dev")
from asmlib import *
import hazard

WS_E = 0
WS_Q1, WS_Q1C = 0x10000, 0x50000
WS_QA, WS_QC = 0x60000, 0x80000
WS_C1, WS_C1C = 0x90000, 0xD0000
WS_FD, WS_FC = 0xE0000, 0x130000
WS_H1, WS_H1C = 0x1C0000, 0x1E0000
WS_ST, WS_OP, WS_DBG = 0x140000, 0x200000, 0x800000
import os
WSBASE = int(os.environ.get('WSBASE', '0'), 0)
for _n in [k for k in list(globals()) if k.startswith('WS_')]: globals()[_n] += WSBASE
PITCH = 1056
L_KV = 0
L_QL = 128 * PITCH
L_MISC = L_QL + 16 * PITCH
L_QB = L_MISC
L_MX = L_MISC + 1024
L_LS = L_MISC + 1280
L_G  = L_MISC + 1536
L_FL = L_MISC + 1600
L_PB = L_MISC + 2048
L_CC = L_MISC + 6144
L_HR = L_MISC + 6656
L_CT = L_MISC + 8704
FKI, FKV, F3, F4, F5, FPB, FCC, FP1, FP2, FP3, FW, FG = range(12)
LDS_SIZE = L_MISC + 9728
NPROD = 43
NSLOT = 48
NMG = 11
MLP0 = 64
NMLP = 43
HASH_K, HASH_C = 0x9E3779B1, 0x7F4A7C15
SCALE = (128 ** -0.5) * 1.4426950408889634
LOG2E = 1.4426950408889634

sX, sKV, sWQ, sWUK, sWUV, sWO, sW1, sB1, sW2, sGW, sOUT, sWS = 8, 12, 16, 20, 24, 28, 32, 36, 40, 44, 48, 52
sW, sXCD, sR, sHG, sJ, sH, sB, sKC, sNONCE, sE = 56, 57, 58, 59, 60, 61, 62, 63, 64, 65
sT0, sT1, sT2, sT3, sT4, sT5 = 66, 67, 68, 69, 70, 71
sCNT = 72
sCNT2 = 73
sEX = 74
sM0 = 76
sM1 = 78
sTS = 80
sM2, sM3 = 4, 6
CNTREG = [81, 83, 85, 87, 89, 91]
sHJ = 100
sFB, sDELTA = 101, 3
LOCAL_DELTA = 0x600000
LOCAL_TRIES = 8
POLL_MAX = 20000

def f2u(x):
    import struct
    return struct.unpack("<I", struct.pack("<f", x))[0]

class Cfg:
    nt_w = True
    ts = False
    tsmask = 0x3ff
    prio = True
    wait_kv_first = False
    l_after_m = False
    nt_kv = True
    nt_wq = True
    nt_tail = True
    poll_sleep = 0
    early = False
    cnts = False
    tail_after_f3 = True
    kvwin = 6
    kvwin0 = 0
    kvn0 = 8
    l_delay = True
    mlpwin1 = 16
    mlpwin2 = 6
    two_stage = False
    exp = ''
    pw = False
    pw_qa = False
    pw_fd = False
    nomlp = False
    mlp_split = True
    mlp_w1_flag = 'FPB'
    tail_flag = 'F3'
    wo_flag = None
    rot = True
    tailwin = 0
    tail_early = False
    tail_delay = None
    addr_early = False
    fw_at = 'wq'
    tailwin2 = 0
    mlp_w2_flag = 'FCC'
    local_st = 'sc1'
    dual = True
    defer = True
    local_ld = 'sc1'
    pw_op = False
    no_l = False
    stop = None
    prefetch_code = True

def srd(A, sr, karg_off, size):
    A(f"s_load_dwordx2 {s(sr,2)}, s[0:1], {karg_off}")
def srd_fin(A, sr, size):
    A(f"s_mov_b32 {s(sr+2)}, {hex(size)}")
    A(f"s_mov_b32 {s(sr+3)}, 0x20000")

def savecnt(A, cfg, k):
    if cfg.ts and cfg.cnts: A(f"s_mov_b32 {s(CNTREG[k])}, {s(sCNT)}")
def estamp(A, cfg, k):
    if cfg.ts and cfg.early:
        A(f"s_memrealtime {s(sTS+2*k,2)}")
        A(f"s_waitcnt lgkmcnt(0)")
def stamp(A, cfg, k, L=False):
    if cfg.early and k >= 3 and not L: return
    if cfg.ts and (cfg.tsmask >> k) & 1:
        A(f"s_memrealtime {s(sTS+2*k,2)}")
        A(f"s_waitcnt lgkmcnt(0)")

vFLA = 3
def arrive(A, f, one, fla=None):
    A(f"v_mov_b32 {v(one)}, 1")
    A(f"s_mov_b64 {s(sEX,2)}, exec")
    A(f"s_mov_b64 exec, 1")
    A(f"ds_add_u32 {v(fla if fla is not None else vFLA)}, {v(one)} offset:{4*f}")
    A(f"s_mov_b64 exec, {s(sEX,2)}")
def wait_flag(A, f, n, tmp, extra=None, fla=None):
    lab = A.newlabel("L_fw"); done = A.newlabel("L_fd")
    A(f"s_mov_b32 {s(sCNT2)}, 0")
    A.label(lab)
    A(f"ds_read_b32 {v(tmp)}, {v(fla if fla is not None else vFLA)} offset:{4*f}")
    if extra: extra()
    A(f"s_waitcnt lgkmcnt(0)")
    A(f"v_cmp_gt_u32 vcc, {n}, {v(tmp)}")
    A(f"s_cbranch_vccz {done}")
    A(f"s_add_u32 {s(sCNT2)}, {s(sCNT2)}, 1")
    A(f"s_cmp_lt_u32 {s(sCNT2)}, 2000000")
    A(f"s_cbranch_scc1 {lab}")
    A.label(done)

def xreduce_rows(A, op, x, tmp):
    A(f"v_mov_b32 {v(tmp)}, {v(x)}")
    A(f"v_permlane16_swap_b32 {v(x)}, {v(tmp)}")
    A(f"{op} {v(x)}, {v(x)}, {v(tmp)}")
    A(f"v_mov_b32 {v(tmp)}, {v(x)}")
    A(f"v_permlane32_swap_b32 {v(x)}, {v(tmp)}")
    A(f"{op} {v(x)}, {v(x)}, {v(tmp)}")

def xreduce_rows2(A, op0, x0, t0, op1, x1, t1):
    for sw in ("v_permlane16_swap_b32", "v_permlane32_swap_b32"):
        A(f"v_mov_b32 {v(t0)}, {v(x0)}")
        A(f"v_mov_b32 {v(t1)}, {v(x1)}")
        A(f"{sw} {v(x0)}, {v(t0)}")
        A(f"{sw} {v(x1)}, {v(t1)}")
        A(f"{op0} {v(x0)}, {v(x0)}, {v(t0)}")
        A(f"{op1} {v(x1)}, {v(x1)}, {v(t1)}")

def wave_sum_u32(A, x, t):
    for d in ("quad_perm:[1,0,3,2]", "quad_perm:[2,3,0,1]", "row_half_mirror", "row_mirror"):
        A(f"v_add_u32_dpp {v(x)}, {v(x)}, {v(x)} {d} row_mask:0xf bank_mask:0xf")
    xreduce_rows(A, "v_add_u32", x, t)

def sum_dwords(A, dst, regs):
    regs = list(regs)
    A(f"v_add3_u32 {v(dst)}, {v(regs[0])}, {v(regs[1])}, {v(regs[2])}")
    k = 3
    while k + 1 < len(regs):
        A(f"v_add3_u32 {v(dst)}, {v(dst)}, {v(regs[k])}, {v(regs[k+1])}"); k += 2
    if k < len(regs):
        A(f"v_add_u32 {v(dst)}, {v(dst)}, {v(regs[k])}")

def make_sels(A, vn, vsel, vt):
    A(f"v_and_b32 {v(vt)}, 3, {v(vn)}")
    A(f"v_mov_b32 {v(vt+1)}, 0x0c0c0c0c")
    pats = [(0, 0x0c0c0100, 1, 0x01000c0c), (2, 0x0c0c0100, 3, 0x01000c0c), (0, 0x0c0c0302, 1, 0x03020c0c), (2, 0x0c0c0302, 3, 0x03020c0c)]
    for k, (j0, p0, j1, p1) in enumerate(pats):
        A(f"v_mov_b32 {v(vt+2)}, {hex(p0)}")
        A(f"v_cmp_eq_u32 vcc, {j0}, {v(vt)}")
        A(f"v_cndmask_b32 {v(vsel+k)}, {v(vt+1)}, {v(vt+2)}, vcc")
        A(f"v_mov_b32 {v(vt+2)}, {hex(p1)}")
        A(f"v_cmp_eq_u32 vcc, {j1}, {v(vt)}")
        A(f"v_cndmask_b32 {v(vsel+k)}, {v(vsel+k)}, {v(vt+2)}, vcc")

def sel_gemm_step(A, xp, vsel, af, wreg, dx, dy, first, swap=True):
    if swap:
        A(f"v_swap_b32 {v(wreg+2)}, {v(wreg+4)}")
        A(f"v_swap_b32 {v(wreg+3)}, {v(wreg+5)}")
    for k in range(4):
        A(f"v_perm_b32 {v(af+k)}, {v(xp)}, {v(xp)}, {v(vsel+k)}")
    c0 = "0" if first else v(dx,4)
    c1 = "0" if first else v(dy,4)
    A(f"v_mfma_f32_16x16x32_bf16 {v(dx,4)}, {v(af,4)}, {v(wreg,4)}, {c0}")
    A(f"v_mfma_f32_16x16x32_bf16 {v(dy,4)}, {v(af,4)}, {v(wreg+4,4)}, {c1}")

def sel_gemm(A, n, xp, vsel, af0, af1, w, dx, dy=None, swap=False, wwait=None, xwait=None):
    st = 8 if dy is not None else 4
    def perms(t):
        if xwait: xwait(t)
        af = af0 if t % 2 == 0 else af1
        for k in range(4):
            A(f"v_perm_b32 {v(af+k)}, {v(xp+t)}, {v(xp+t)}, {v(vsel+k)}")
    perms(0)
    for t in range(n):
        if wwait: wwait(t)
        wr = w + st*t
        if swap:
            A(f"v_swap_b32 {v(wr+2)}, {v(wr+4)}")
            A(f"v_swap_b32 {v(wr+3)}, {v(wr+5)}")
        if t + 1 < n: perms(t+1)
        af = af0 if t % 2 == 0 else af1
        A(f"v_mfma_f32_16x16x32_bf16 {v(dx,4)}, {v(af,4)}, {v(wr,4)}, {'0' if t == 0 else v(dx,4)}")
        if dy is not None:
            A(f"v_mfma_f32_16x16x32_bf16 {v(dy,4)}, {v(af,4)}, {v(wr+4,4)}, {'0' if t == 0 else v(dy,4)}")

def poll_head(A, name):
    lab = A.newlabel(name)
    A(f"s_mov_b32 {s(sCNT)}, 0")
    A.label(lab)
    return lab
def poll_tail(A, lab, bad_pair, sleep=0):
    done = A.newlabel("done")
    A(f"s_cmp_eq_u64 {s(bad_pair,2)}, 0")
    A(f"s_cbranch_scc1 {done}")
    if sleep: A(f"s_sleep {sleep}")
    A(f"s_add_u32 {s(sCNT)}, {s(sCNT)}, 1")
    A(f"s_cmp_lt_u32 {s(sCNT)}, {POLL_MAX}")
    A(f"s_cbranch_scc1 {lab}")
    A.label(done)

def publish_final(A, cfg, dx, dy, vscale, vprod_off, vchk_off, pk, t):
    for k in range(4):
        A(f"v_mul_f32 {v(dx+k)}, {v(dx+k)}, {v(vscale)}")
        A(f"v_mul_f32 {v(dy+k)}, {v(dy+k)}, {v(vscale)}")
    A(f"v_cvt_pk_bf16_f32 {v(pk)}, {v(dx)}, {v(dx+1)}")
    A(f"v_cvt_pk_bf16_f32 {v(pk+1)}, {v(dx+2)}, {v(dx+3)}")
    A(f"v_cvt_pk_bf16_f32 {v(pk+2)}, {v(dy)}, {v(dy+1)}")
    A(f"v_cvt_pk_bf16_f32 {v(pk+3)}, {v(dy+2)}, {v(dy+3)}")
    A(f"buffer_store_dwordx4 {v(pk,4)}, {v(vprod_off)}, {s(sWS,4)}, 0 offen sc1")
    sum_dwords(A, t, [pk, pk+1, pk+2, pk+3])
    A(f"v_add_u32_dpp {v(t)}, {v(t)}, {v(t)} quad_perm:[1,0,3,2] row_mask:0xf bank_mask:0xf")
    A(f"v_add_u32_dpp {v(t)}, {v(t)}, {v(t)} quad_perm:[2,3,0,1] row_mask:0xf bank_mask:0xf")
    A(f"v_add_u32 {v(t+1)}, {s(sNONCE)}, {v(t)}")
    A(f"s_mov_b64 {s(sEX,2)}, exec")
    A(f"s_mov_b32 exec_lo, 0x11111111")
    A(f"s_mov_b32 exec_hi, 0x11111111")
    A(f"buffer_store_dwordx2 {v(t,2)}, {v(vchk_off)}, {s(sWS,4)}, 0 offen sc1")
    A(f"s_mov_b64 exec, {s(sEX,2)}")

def final_offsets(A, vn, vq, s_ct, s_prod, voff, vchk, t):
    A(f"v_lshrrev_b32 {v(t)}, 2, {v(vn)}")
    A(f"v_lshl_add_u32 {v(t)}, {v(vq)}, 4, {v(t)}")
    A(f"s_lshl_b32 {s(sT0)}, {s(s_ct)}, 2")
    A(f"v_add_u32 {v(t)}, {s(sT0)}, {v(t)}")
    A(f"s_movk_i32 {s(sT1)}, {NSLOT}")
    A(f"v_mul_lo_u32 {v(t)}, {v(t)}, {s(sT1)}")
    A(f"v_add_u32 {v(t)}, {s(s_prod)}, {v(t)}")
    A(f"v_lshlrev_b32 {v(vchk)}, 3, {v(t)}")
    A(f"v_add_u32 {v(vchk)}, {hex(WS_FC)}, {v(vchk)}")
    A(f"v_and_b32 {v(t+1)}, 3, {v(vn)}")
    A(f"v_lshlrev_b32 {v(t+1)}, 4, {v(t+1)}")
    A(f"v_lshl_add_u32 {v(voff)}, {v(t)}, 6, {v(t+1)}")
    A(f"v_add_u32 {v(voff)}, {hex(WS_FD)}, {v(voff)}")


def nonce_from(A, vreg):
    A(f"v_readfirstlane_b32 {s(sE)}, {v(vreg)}")
    A(f"s_mul_i32 {s(sNONCE)}, {s(sE)}, {hex(HASH_K)}")
    A(f"s_add_u32 {s(sNONCE)}, {s(sNONCE)}, {hex(HASH_C)}")

def make_ones(A, vn, dst, t):
    A(f"v_and_b32 {v(t)}, 3, {v(vn)}")
    A(f"v_lshrrev_b32 {v(t+1)}, 2, {v(vn)}")
    A(f"v_mov_b32 {v(t+2)}, 0")
    for k, (j0, j1) in enumerate(((0,1),(2,3))):
        A(f"v_mov_b32 {v(t+3)}, 0x3f80")
        A(f"v_cmp_eq_u32 vcc, {j0}, {v(t)}")
        A(f"v_cndmask_b32 {v(t+4+k)}, {v(t+2)}, {v(t+3)}, vcc")
        A(f"v_mov_b32 {v(t+3)}, 0x3f800000")
        A(f"v_cmp_eq_u32 vcc, {j1}, {v(t)}")
        A(f"v_cndmask_b32 {v(t+4+k)}, {v(t+4+k)}, {v(t+3)}, vcc")
    for b in range(4):
        A(f"v_cmp_eq_u32 vcc, {b}, {v(t+1)}")
        A(f"v_cndmask_b32 {v(dst+4*b)}, {v(t+2)}, {v(t+4)}, vcc")
        A(f"v_cndmask_b32 {v(dst+4*b+1)}, {v(t+2)}, {v(t+5)}, vcc")
        A(f"v_mov_b32 {v(dst+4*b+2)}, {v(dst+4*b)}")
        A(f"v_mov_b32 {v(dst+4*b+3)}, {v(dst+4*b+1)}")

def partial_offsets(A, vl, vn, vs, base, chkbase, vpub, vchkpub, vga, vgb, vgc, t, sHJ=sHJ, sH=sH):
    A(f"s_lshl_b32 {s(sT0)}, {s(sHJ)}, 10")
    A(f"s_add_u32 {s(sT0)}, {s(sT0)}, {hex(base)}")
    A(f"v_lshl_add_u32 {v(vpub)}, {v(vl)}, 4, {s(sT0)}")
    A(f"s_lshl_b32 {s(sT0)}, {s(sHJ)}, 3")
    A(f"s_add_u32 {s(sT0)}, {s(sT0)}, {hex(chkbase)}")
    A(f"v_mov_b32 {v(vchkpub)}, {s(sT0)}")
    A(f"s_lshl_b32 {s(sT0)}, {s(sH)}, 13")
    A(f"s_add_u32 {s(sT0)}, {s(sT0)}, {hex(base)}")
    A(f"v_lshlrev_b32 {v(t)}, 10, {v(vs)}")
    A(f"v_lshl_add_u32 {v(t)}, {v(vn)}, 4, {v(t)}")
    A(f"v_add_u32 {v(vga)}, {s(sT0)}, {v(t)}")
    A(f"v_add_u32 {v(vgb)}, 4096, {v(vga)}")
    A(f"s_lshl_b32 {s(sT0)}, {s(sH)}, 6")
    A(f"s_add_u32 {s(sT0)}, {s(sT0)}, {hex(chkbase)}")
    A(f"v_lshl_add_u32 {v(t)}, {v(vl)}, 3, {s(sT0)}")
    A(f"v_cmp_gt_u32 {s(sM2,2)}, 8, {v(vl)}")
    A(f"v_mov_b32 {v(t+1)}, 0x7ffffff0")
    A(f"v_cndmask_b32 {v(vgc)}, {v(t+1)}, {v(t)}, {s(sM2,2)}")

def publish_partial(A, dx, dy, pk, vpub, vchkpub, t, fl='sc1', dual=False, defer=False):
    A(f"v_cvt_pk_bf16_f32 {v(pk)}, {v(dx)}, {v(dx+1)}")
    A(f"v_cvt_pk_bf16_f32 {v(pk+1)}, {v(dx+2)}, {v(dx+3)}")
    A(f"v_cvt_pk_bf16_f32 {v(pk+2)}, {v(dy)}, {v(dy+1)}")
    A(f"v_cvt_pk_bf16_f32 {v(pk+3)}, {v(dy+2)}, {v(dy+3)}")
    if dual:
        A(f"buffer_store_dwordx4 {v(pk,4)}, {v(vpub)}, {s(sWS,4)}, 0 offen")
        if not defer: A(f"buffer_store_dwordx4 {v(pk,4)}, {v(vpub)}, {s(sWS,4)}, {s(sDELTA)} offen sc1")
    else:
        A(f"buffer_store_dwordx4 {v(pk,4)}, {v(vpub)}, {s(sWS,4)}, 0 offen {fl}")
    sum_dwords(A, t, [pk, pk+1, pk+2, pk+3])
    wave_sum_u32(A, t, t+2)
    A(f"v_add_u32 {v(t+1)}, {s(sNONCE)}, {v(t)}")
    A(f"s_mov_b64 {s(sEX,2)}, exec")
    A(f"s_mov_b64 exec, 1")
    if dual:
        A(f"buffer_store_dwordx2 {v(t,2)}, {v(vchkpub)}, {s(sWS,4)}, 0 offen")
        if not defer: A(f"buffer_store_dwordx2 {v(t,2)}, {v(vchkpub)}, {s(sWS,4)}, {s(sDELTA)} offen sc1")
    else:
        A(f"buffer_store_dwordx2 {v(t,2)}, {v(vchkpub)}, {s(sWS,4)}, 0 offen {fl}")
    A(f"s_mov_b64 exec, {s(sEX,2)}")
    if dual and defer:
        A(f"v_mov_b32 {v(pk+4)}, {v(t)}")
        A(f"v_mov_b32 {v(pk+5)}, {v(t+1)}")

def global_copy(A, pk, vpub, vchkpub):
    A(f"buffer_store_dwordx4 {v(pk,4)}, {v(vpub)}, {s(sWS,4)}, {s(sDELTA)} offen sc1")
    A(f"s_mov_b64 {s(sEX,2)}, exec")
    A(f"s_mov_b64 exec, 1")
    A(f"buffer_store_dwordx2 {v(pk+4,2)}, {v(vchkpub)}, {s(sWS,4)}, {s(sDELTA)} offen sc1")
    A(f"s_mov_b64 exec, {s(sEX,2)}")

def gather_reduce(A, cfg, name, G, CK, ones, vga, vgb, vgc, dx, dy, t, pk=16, vpub=52, vchkpub=53):
    so = s(sFB) if cfg.dual else "0"
    if cfg.dual: A(f"s_mov_b32 {s(sFB)}, 0")
    lab = poll_head(A, name)
    if cfg.dual:
        if cfg.defer:
            skip = A.newlabel("L_nosw")
            A(f"s_cmp_lg_u32 {s(sCNT)}, {LOCAL_TRIES}")
            A(f"s_cbranch_scc1 {skip}")
            global_copy(A, pk, vpub, vchkpub)
            A.label(skip)
        A(f"s_cmp_ge_u32 {s(sCNT)}, {LOCAL_TRIES}")
        A(f"s_cselect_b32 {s(sFB)}, {s(sDELTA)}, 0")
    for b in range(4):
        A(f"buffer_load_dwordx4 {v(G+8*b,4)}, {v(vga)}, {s(sWS,4)}, {so} offen offset:{256*b} {cfg.local_ld}")
        A(f"buffer_load_dwordx4 {v(G+8*b+4,4)}, {v(vgb)}, {s(sWS,4)}, {so} offen offset:{256*b} {cfg.local_ld}")
    A(f"buffer_load_dwordx2 {v(CK,2)}, {v(vgc)}, {s(sWS,4)}, {so} offen {cfg.local_ld}")
    A(f"s_waitcnt vmcnt(0)")
    sum_dwords(A, t, range(G, G+16))
    sum_dwords(A, t+1, range(G+16, G+32))
    A(f"v_add_u32 {v(t)}, {v(t)}, {v(t+1)}")
    A(f"v_sub_u32 {v(t)}, {v(t)}, {v(CK)}")
    A(f"v_add_u32 {v(t+1)}, {s(sNONCE)}, {v(CK)}")
    A(f"v_cmp_ne_u32 vcc, {v(t+1)}, {v(CK+1)}")
    wave_sum_u32(A, t, t+2)
    A(f"s_and_b64 {s(sM1,2)}, vcc, {s(sM2,2)}")
    A(f"v_cmp_ne_u32 vcc, 0, {v(t)}")
    A(f"s_or_b64 {s(sM1,2)}, {s(sM1,2)}, vcc")
    poll_tail(A, lab, sM1, cfg.poll_sleep)
    if cfg.dual and cfg.defer:
        skip = A.newlabel("L_nocp")
        A(f"s_cmp_ge_u32 {s(sCNT)}, {LOCAL_TRIES}")
        A(f"s_cbranch_scc1 {skip}")
        global_copy(A, pk, vpub, vchkpub)
        A.label(skip)
    for b in range(4):
        w = G + 8*b
        A(f"v_swap_b32 {v(w+2)}, {v(w+4)}")
        A(f"v_swap_b32 {v(w+3)}, {v(w+5)}")
    for b in range(4):
        w = G + 8*b
        c0 = "0" if b == 0 else v(dx,4); c1 = "0" if b == 0 else v(dy,4)
        A(f"v_mfma_f32_16x16x32_bf16 {v(dx,4)}, {v(ones+4*b,4)}, {v(w,4)}, {c0}")
        A(f"v_mfma_f32_16x16x32_bf16 {v(dy,4)}, {v(ones+4*b,4)}, {v(w+4,4)}, {c1}")

def gen(cfg):
    A = Asm()
    NT = " nt" if cfg.nt_tail else ""
    NTKV = " nt" if cfg.nt_kv else ""
    NTWQ = " nt" if cfg.nt_wq else ""
    vL, vN, vS = 0, 1, 2
    vSEL = 4
    A(f"s_cmp_ge_u32 s2, 256")
    A(f"s_cbranch_scc1 L_exit")
    for sr, off in ((sX,0),(sWQ,16),(sWUK,24),(sWS,104),(sKV,8),(sWUV,32),(sWO,40),(sW1,56),(sB1,64),(sW2,72),(sGW,80),(sOUT,88)):
        srd(A, sr, off, 0)
    stamp(A, cfg, 0)
    A(f"v_lshrrev_b32 v4, 6, v0")
    A(f"v_and_b32 {v(vL)}, 63, v0")
    A(f"v_readfirstlane_b32 {s(sW)}, v4")
    A(f"v_and_b32 {v(vN)}, 15, {v(vL)}")
    A(f"v_lshrrev_b32 {v(vS)}, 4, {v(vL)}")
    A(f"v_mov_b32 {v(vFLA)}, {L_FL}")
    A(f"v_lshl_add_u32 v40, {v(vN)}, 2, {v(vFLA)}")
    A(f"v_mov_b32 v41, 0")
    A(f"ds_write_b32 v40, v41")
    A(f"v_mov_b32 v42, -1")
    A(f"v_mov_b32 v43, -1")
    A(f"v_lshlrev_b32 v40, 3, {v(vL)}")
    A(f"v_add_u32 v41, {L_MX}, v40")
    A(f"ds_write_b64 v41, v[42:43]")
    A(f"v_add_u32 v41, {L_CC}, v40")
    A(f"ds_write_b64 v41, v[42:43]")
    A(f"s_and_b32 {s(sXCD)}, s2, 7")
    A(f"s_lshr_b32 {s(sR)}, s2, 3")
    A(f"s_and_b32 {s(sHG)}, {s(sR)}, 1")
    A(f"s_bfe_u32 {s(sJ)}, {s(sR)}, 0x30001")
    A(f"s_lshr_b32 {s(sT0)}, {s(sR)}, 4")
    A(f"s_lshl_b32 {s(sT1)}, {s(sXCD)}, 1")
    A(f"s_add_u32 {s(sT1)}, {s(sT1)}, {s(sT0)}")
    A(f"s_lshl_b32 {s(sT0)}, {s(sHG)}, 4")
    A(f"s_add_u32 {s(sH)}, {s(sT0)}, {s(sT1)}")
    A(f"s_lshl_b32 {s(sHJ)}, {s(sH)}, 3")
    A(f"s_add_u32 {s(sHJ)}, {s(sHJ)}, {s(sJ)}")
    A(f"s_lshr_b32 {s(sB)}, {s(sXCD)}, 1")
    A(f"s_and_b32 {s(sT0)}, {s(sXCD)}, 1")
    A(f"s_lshl_b32 {s(sT0)}, {s(sT0)}, 4")
    A(f"s_lshr_b32 {s(sT1)}, {s(sR)}, 1")
    A(f"s_add_u32 {s(sKC)}, {s(sT0)}, {s(sT1)}")
    for sr, size in ((sX,4096),(sWQ,4<<20),(sWUK,4<<20),(sWS,256<<20),(sKV,16<<20),(sWUV,4<<20),(sWO,4<<20),(sW1,512*2752),(sB1,2752),(sW2,1376*1024),(sGW,1024),(sOUT,4096)):
        srd_fin(A, sr, size)
    A(f"s_mov_b32 {s(sDELTA)}, {hex(LOCAL_DELTA)}")
    A(f"s_waitcnt lgkmcnt(0)")
    A(f"s_barrier")
    A(f"s_cmp_ge_u32 {s(sW)}, 4")
    A(f"s_cbranch_scc1 L_Lpath")
    if cfg.prio: A(f"s_setprio 3")
    vXP, vAF0, vAF1, vQX, vQY, vT = 8, 24, 28, 32, 36, 40
    vWUK, vWQ = 64, 128
    vA0, vA1, vA2 = 40, 41, 42
    vE = 44
    A(f"v_mov_b32 v43, {hex(WS_E)}")
    A(f"buffer_load_dword {v(vE)}, v43, {s(sWS,4)}, 0 offen sc1")
    if cfg.exp == 'kvonly': A(f"s_branch L_Mdone")
    A(f"s_cmp_lg_u32 {s(sW)}, 0")
    A(f"s_cbranch_scc1 L_noq")
    aQG, aQC, aQL, aQE, aQO, aKE, aKO, aPV0, aPV1, aMXR, aMXW, aPR, aPW, aOP0, aOP1, aST = range(8, 24)
    vQG, vQC = 64, 80
    def attn_addresses():
        A(f"s_lshl_b32 {s(sT0)}, {s(sB)}, 1")
        A(f"s_add_u32 {s(sT0)}, {s(sT0)}, {s(sHG)}")
        A(f"s_lshl_b32 {s(sT0)}, {s(sT0)}, 4")
        A(f"s_lshl_b32 {s(sT1)}, {s(sW)}, 2")
        A(f"s_add_u32 {s(sT0)}, {s(sT0)}, {s(sT1)}")
        A(f"s_lshl_b32 {s(sT1)}, {s(sT0)}, 10")
        A(f"s_add_u32 {s(sT1)}, {s(sT1)}, {hex(WS_QA)}")
        A(f"v_lshl_add_u32 {v(aQG)}, {v(vL)}, 4, {s(sT1)}")
        A(f"s_lshl_b32 {s(sT1)}, {s(sT0)}, 6")
        A(f"s_add_u32 {s(sT1)}, {s(sT1)}, {hex(WS_QC)}")
        A(f"v_lshl_add_u32 {v(aQC)}, {v(vL)}, 3, {s(sT1)}")
        A(f"v_cmp_lt_u32 {s(sM0,2)}, {v(vL)}, 32")
        A(f"v_mov_b32 v43, 0x7ffffff0")
        A(f"v_cndmask_b32 {v(aQC)}, v43, {v(aQC)}, {s(sM0,2)}")
        A(f"s_mul_i32 {s(sT1)}, {s(sW)}, {4*PITCH}")
        A(f"s_add_u32 {s(sT1)}, {s(sT1)}, {L_QL}")
        A(f"v_lshl_add_u32 {v(aQL)}, {v(vL)}, 4, {s(sT1)}")
        A(f"s_movk_i32 {s(sT1)}, {PITCH}")
        A(f"v_mul_lo_u32 v44, {v(vN)}, {s(sT1)}")
        A(f"v_lshl_add_u32 v44, {v(vS)}, 8, v44")
        A(f"v_and_b32 v45, 1, {v(vS)}")
        A(f"v_lshlrev_b32 v45, 4, v45")
        A(f"v_add_u32 {v(aQE)}, v44, v45")
        A(f"v_sub_u32 {v(aQO)}, v44, v45")
        A(f"s_mul_i32 {s(sT0)}, {s(sW)}, {32*PITCH}")
        A(f"v_add_u32 {v(aKE)}, {s(sT0)}, {v(aQE)}")
        A(f"v_add_u32 {v(aKO)}, {s(sT0)}, {v(aQO)}")
        A(f"v_add_u32 {v(aQE)}, {L_QL}, {v(aQE)}")
        A(f"v_add_u32 {v(aQO)}, {L_QL}, {v(aQO)}")
        A(f"v_lshrrev_b32 v46, 2, {v(vL)}")
        A(f"v_mul_lo_u32 v46, v46, {s(sT1)}")
        A(f"v_and_b32 v47, 3, {v(vL)}")
        A(f"v_lshl_add_u32 v46, v47, 3, v46")
        A(f"s_lshl_b32 {s(sT0)}, {s(sW)}, 8")
        A(f"v_add_u32 {v(aPV0)}, {s(sT0)}, v46")
        A(f"v_add_u32 {v(aPV1)}, {64*PITCH}, {v(aPV0)}")
        A(f"v_lshlrev_b32 {v(aMXR)}, 4, {v(vN)}")
        A(f"v_add_u32 {v(aMXR)}, {L_MX}, {v(aMXR)}")
        A(f"s_lshl_b32 {s(sT0)}, {s(sW)}, 2")
        A(f"v_add_u32 {v(aMXW)}, {s(sT0)}, {v(aMXR)}")
        A(f"v_lshlrev_b32 {v(aPR)}, 4, {v(vL)}")
        A(f"v_add_u32 {v(aPR)}, {L_PB}, {v(aPR)}")
        A(f"s_lshl_b32 {s(sT0)}, {s(sW)}, 10")
        A(f"v_add_u32 {v(aPW)}, {s(sT0)}, {v(aPR)}")
        A(f"s_lshl_b32 {s(sT0)}, {s(sHG)}, 4")
        A(f"v_add_u32 v48, {s(sT0)}, {v(vN)}")
        A(f"s_lshl_b32 {s(sT0)}, {s(sW)}, 3")
        A(f"s_add_u32 {s(sT0)}, {s(sT0)}, {s(sKC)}")
        if cfg.rot:
            A(f"v_add_u32 v50, {s(sT0)}, v48")
            A(f"v_add_u32 v51, 4, v50")
            A(f"v_and_b32 v50, 31, v50")
            A(f"v_and_b32 v51, 31, v51")
        else:
            A(f"v_mov_b32 v50, {s(sKC)}")
            A(f"v_mov_b32 v51, {s(sKC)}")
        A(f"v_lshlrev_b32 v48, 10, v48")
        A(f"s_lshl_b32 {s(sT0)}, {s(sW)}, 8")
        A(f"s_lshl_b32 {s(sT1)}, {s(sB)}, 5")
        A(f"s_add_u32 {s(sT0)}, {s(sT0)}, {s(sT1)}")
        A(f"v_add_u32 v48, {s(sT0)}, v48")
        A(f"v_add_u32 v50, v48, v50")
        A(f"v_add3_u32 v51, v48, v51, 64")
        A(f"v_add_u32 v51, 64, v51")
        A(f"v_and_b32 v49, 1, {v(vS)}")
        A(f"v_lshlrev_b32 v49, 1, v49")
        A(f"v_lshrrev_b32 v45, 1, {v(vS)}")
        A(f"v_add_u32 v49, v49, v45")
        A(f"v_lshlrev_b32 v49, 4, v49")
        A(f"v_lshl_add_u32 {v(aOP0)}, v50, 7, v49")
        A(f"v_add_u32 {v(aOP0)}, {hex(WS_OP)}, {v(aOP0)}")
        A(f"v_lshl_add_u32 {v(aOP1)}, v51, 7, v49")
        A(f"v_add_u32 {v(aOP1)}, {hex(WS_OP)}, {v(aOP1)}")
        A(f"v_cmp_eq_u32 vcc, 1, {v(vS)}")
        A(f"v_cndmask_b32 v50, v50, v51, vcc")
        A(f"v_lshlrev_b32 v50, 4, v50")
        A(f"v_add_u32 {v(aST)}, {hex(WS_ST)}, v50")
    A(f"v_lshrrev_b32 {v(vA0)}, 2, {v(vN)}")
    A(f"v_lshlrev_b32 {v(vA0)}, 10, {v(vA0)}")
    A(f"v_lshl_add_u32 {v(vA0)}, {v(vS)}, 5, {v(vA0)}")
    A(f"s_lshl_b32 {s(sT0)}, {s(sJ)}, 7")
    A(f"v_add_u32 {v(vA0)}, {s(sT0)}, {v(vA0)}")
    A(f"s_lshl_b32 {s(sT0)}, {s(sJ)}, 19")
    A(f"s_lshl_b32 {s(sT1)}, {s(sH)}, 8")
    A(f"s_add_u32 {s(sT0)}, {s(sT0)}, {s(sT1)}")
    A(f"v_lshlrev_b32 {v(vA1)}, 17, {v(vS)}")
    A(f"v_lshl_add_u32 {v(vA1)}, {v(vN)}, 4, {v(vA1)}")
    A(f"v_add_u32 {v(vA1)}, {s(sT0)}, {v(vA1)}")
    for k in range(2):
        A(f"buffer_load_dwordx4 {v(vXP+4*k,4)}, {v(vA0)}, {s(sX,4)}, 0 offen offset:{16*k}")
    A(f"s_mov_b32 {s(sT2)}, 0")
    for k in range(16):
        A(f"buffer_load_dwordx4 {v(vWQ+4*k,4)}, {v(vA1)}, {s(sWQ,4)}, {s(sT2)} offen{NTWQ}")
        if k < 15: A(f"s_add_u32 {s(sT2)}, {s(sT2)}, 8192")
    A(f"v_lshrrev_b32 {v(vA2)}, 2, {v(vN)}")
    A(f"v_lshlrev_b32 {v(vA2)}, 4, {v(vA2)}")
    A(f"v_and_b32 v43, 3, {v(vN)}")
    A(f"v_add_u32 {v(vA2)}, {v(vA2)}, v43")
    A(f"v_lshlrev_b32 {v(vA2)}, 13, {v(vA2)}")
    A(f"v_lshl_add_u32 {v(vA2)}, {v(vS)}, 4, {v(vA2)}")
    A(f"v_add_u32 {v(vA2)}, {s(sT0)}, {v(vA2)}")
    A(f"s_mov_b32 {s(sT2)}, 0")
    for T in range(4):
        for t in range(4):
            A(f"buffer_load_dwordx4 {v(vWUK+16*T+4*t,4)}, {v(vA2)}, {s(sWUK,4)}, {s(sT2)} offen offset:{64*t}{NTWQ}")
        if T < 3: A(f"s_add_u32 {s(sT2)}, {s(sT2)}, 32768")
    estamp(A, cfg, 3)
    make_sels(A, vN, vSEL, vT)
    vONE, vG1, vCK1 = 192, 208, 240
    make_ones(A, vN, vONE, 46)
    vPUB, vCPUB, vGA, vGB, vGC = 52, 53, 54, 55, 56
    partial_offsets(A, vL, vN, vS, WS_Q1, WS_Q1C, vPUB, vCPUB, vGA, vGB, vGC, 46)
    vQAO, vQCO = 58, 59
    A(f"v_lshl_add_u32 {v(vQAO)}, {v(vN)}, 5, {s(sH)}")
    A(f"v_lshlrev_b32 {v(vQCO)}, 3, {v(vQAO)}")
    A(f"v_add_u32 {v(vQCO)}, {s(sJ)}, {v(vQCO)}")
    A(f"v_lshlrev_b32 {v(vQCO)}, 3, {v(vQCO)}")
    A(f"v_add_u32 {v(vQCO)}, {hex(WS_QC)}, {v(vQCO)}")
    A(f"v_lshlrev_b32 {v(vQAO)}, 10, {v(vQAO)}")
    A(f"v_lshl_add_u32 {v(vQAO)}, {v(vS)}, 5, {v(vQAO)}")
    A(f"s_lshl_b32 {s(sT0)}, {s(sJ)}, 7")
    A(f"s_add_u32 {s(sT0)}, {s(sT0)}, {hex(WS_QA)}")
    A(f"v_add_u32 {v(vQAO)}, {s(sT0)}, {v(vQAO)}")
    NPW = 0
    A(f"s_waitcnt vmcnt({32+NPW})")
    nonce_from(A, vE)
    def _w(t):
        A(f"s_waitcnt vmcnt({16 + 14 - 2*t})")
        if t == 0 and cfg.l_delay and cfg.fw_at == 'wq': arrive(A, FW, 43)
    sel_gemm(A, 8, vXP, vSEL, vAF0, vAF1, vWQ, vQX, vQY, swap=True, wwait=_w)
    publish_partial(A, vQX, vQY, 242, vPUB, vCPUB, 46, cfg.local_st, cfg.dual, cfg.defer)
    stamp(A, cfg, 1)
    if cfg.l_delay and cfg.fw_at == 'pub': arrive(A, FW, 43)
    if cfg.exp == 'kvq': A(f"s_branch L_Mdone")
    if cfg.addr_early: attn_addresses()
    gather_reduce(A, cfg, "L_hop1", vG1, vCK1, vONE, vGA, vGB, vGC, vQX, vQY, 46, 242)
    savecnt(A, cfg, 0)
    if cfg.l_delay and cfg.fw_at == 'hop1': arrive(A, FW, 43)
    estamp(A, cfg, 5)
    A(f"v_cvt_pk_bf16_f32 v60, {v(vQX)}, {v(vQX+1)}")
    A(f"v_cvt_pk_bf16_f32 v61, {v(vQX+2)}, {v(vQX+3)}")
    A(f"v_cvt_pk_bf16_f32 v62, {v(vQY)}, {v(vQY+1)}")
    A(f"v_cvt_pk_bf16_f32 v63, {v(vQY+2)}, {v(vQY+3)}")
    A(f"v_lshlrev_b32 {v(vA0)}, 4, {v(vL)}")
    A(f"v_add_u32 {v(vA0)}, {L_QB}, {v(vA0)}")
    A(f"ds_write_b128 {v(vA0)}, v[60:63]")
    vQF4, vD, vPK = 128, 144, 160
    A(f"v_and_b32 {v(vA0)}, 3, {v(vN)}")
    A(f"v_lshlrev_b32 {v(vA0)}, 8, {v(vA0)}")
    A(f"v_lshl_add_u32 {v(vA0)}, {v(vS)}, 4, {v(vA0)}")
    A(f"v_add_u32 {v(vA0)}, {L_QB}, {v(vA0)}")
    for t in range(4):
        A(f"ds_read_b128 {v(vQF4+4*t,4)}, {v(vA0)} offset:{64*t}")
    for t in range(4):
        A(f"s_waitcnt lgkmcnt({3-t})")
        for T in range(4):
            c = "0" if t == 0 else v(vD+4*T,4)
            A(f"v_mfma_f32_16x16x32_bf16 {v(vD+4*T,4)}, {v(vWUK+16*T+4*t,4)}, {v(vQF4+4*t,4)}, {c}")
    A(f"s_mov_b32 {s(sT0)}, {hex(f2u(SCALE))}")
    for k in range(16):
        A(f"v_mul_f32 {v(vD+k)}, {s(sT0)}, {v(vD+k)}")
    for k in range(8):
        A(f"v_cvt_pk_bf16_f32 {v(vPK+k)}, {v(vD+2*k)}, {v(vD+2*k+1)}")
    if cfg.pw_qa: wait_flag(A, FP1, 1, 43)
    A(f"s_mov_b64 {s(sEX,2)}, exec")
    A(f"s_mov_b32 exec_lo, 0x000f000f")
    A(f"s_mov_b32 exec_hi, 0x000f000f")
    A(f"buffer_store_dwordx4 {v(vPK,4)}, {v(vQAO)}, {s(sWS,4)}, 0 offen sc1")
    A(f"buffer_store_dwordx4 {v(vPK+4,4)}, {v(vQAO)}, {s(sWS,4)}, 0 offen offset:16 sc1")
    A(f"s_mov_b64 exec, {s(sEX,2)}")
    sum_dwords(A, 44, range(vPK, vPK+8))
    xreduce_rows(A, "v_add_u32", 44, 46)
    A(f"v_add_u32 v45, {s(sNONCE)}, v44")
    A(f"s_mov_b64 exec, 0xf")
    A(f"buffer_store_dwordx2 v[44:45], {v(vQCO)}, {s(sWS,4)}, 0 offen sc1")
    A(f"s_mov_b64 exec, {s(sEX,2)}")
    if not cfg.addr_early: attn_addresses()
    A(f"s_branch L_qdone")
    A.label("L_noq")
    if cfg.pw_qa or cfg.pw_fd:
        for k in range(4): A(f"v_mov_b32 {v(60+k)}, 0")
    if cfg.pw_qa:
        A(f"s_cmp_lg_u32 {s(sW)}, 1")
        A(f"s_cbranch_scc1 L_nopw1")
        A(f"v_lshl_add_u32 v58, {v(vN)}, 5, {s(sH)}")
        A(f"v_lshlrev_b32 v59, 3, v58")
        A(f"v_add_u32 v59, {s(sJ)}, v59")
        A(f"v_lshlrev_b32 v59, 3, v59")
        A(f"v_add_u32 v59, {hex(WS_QC)}, v59")
        A(f"v_lshlrev_b32 v58, 10, v58")
        A(f"v_lshl_add_u32 v58, {v(vS)}, 5, v58")
        A(f"s_lshl_b32 {s(sT0)}, {s(sJ)}, 7")
        A(f"s_add_u32 {s(sT0)}, {s(sT0)}, {hex(WS_QA)}")
        A(f"v_add_u32 v58, {s(sT0)}, v58")
        A(f"s_mov_b32 exec_lo, 0x000f000f")
        A(f"s_mov_b32 exec_hi, 0x000f000f")
        A(f"buffer_store_dwordx4 v[60:63], v58, {s(sWS,4)}, 0 offen sc1")
        A(f"buffer_store_dwordx4 v[60:63], v58, {s(sWS,4)}, 0 offen offset:16 sc1")
        A(f"s_mov_b64 exec, 0xf")
        A(f"buffer_store_dwordx2 v[60:61], v59, {s(sWS,4)}, 0 offen sc1")
        A(f"s_mov_b64 exec, -1")
        A(f"s_waitcnt vmcnt(0)")
        arrive(A, FP1, 43)
        A.label("L_nopw1")
    if cfg.pw_fd:
        A(f"s_cmp_lg_u32 {s(sW)}, 2")
        A(f"s_cbranch_scc1 L_nopw2")
        A(f"v_lshrrev_b32 v46, 3, {v(vN)}")
        A(f"v_lshl_add_u32 v46, {v(vS)}, 4, v46")
        A(f"s_lshl_b32 {s(sT0)}, {s(sJ)}, 1")
        A(f"v_add_u32 v46, {s(sT0)}, v46")
        A(f"s_movk_i32 {s(sT1)}, {NSLOT}")
        A(f"v_mul_lo_u32 v46, v46, {s(sT1)}")
        A(f"v_add_u32 v46, {s(sH)}, v46")
        A(f"v_lshlrev_b32 v59, 3, v46")
        A(f"v_add_u32 v59, {hex(WS_FC)}, v59")
        A(f"v_and_b32 v47, 7, {v(vN)}")
        A(f"v_lshlrev_b32 v47, 3, v47")
        A(f"v_lshl_add_u32 v58, v46, 6, v47")
        A(f"v_add_u32 v58, {hex(WS_FD)}, v58")
        A(f"buffer_store_dwordx2 v[60:61], v58, {s(sWS,4)}, 0 offen sc1")
        A(f"s_mov_b32 exec_lo, 0x01010101")
        A(f"s_mov_b32 exec_hi, 0x01010101")
        A(f"buffer_store_dwordx2 v[60:61], v59, {s(sWS,4)}, 0 offen sc1")
        A(f"s_mov_b64 exec, -1")
        A(f"s_waitcnt vmcnt(0)")
        arrive(A, FP2, 43)
        A.label("L_nopw2")
    make_sels(A, vN, vSEL, vT)
    A(f"s_waitcnt vmcnt(0)")
    nonce_from(A, vE)
    attn_addresses()
    A.label("L_qdone")
    stamp(A, cfg, 2)
    if cfg.exp in ('kvq', 'kvq1'): A(f"s_branch L_Mdone")
    NL = 3 if cfg.tail_early else 4
    wait_flag(A, FKV if cfg.wait_kv_first else FKI, NL, 44)
    if cfg.two_stage:
        lab0 = poll_head(A, "L_hop2t")
        A(f"buffer_load_dwordx2 {v(vQC,2)}, {v(aQC)}, {s(sWS,4)}, 0 offen sc1")
        A(f"s_waitcnt vmcnt(0)")
        A(f"v_add_u32 v45, {s(sNONCE)}, {v(vQC)}")
        A(f"v_cmp_ne_u32 vcc, v45, {v(vQC+1)}")
        A(f"s_and_b64 {s(sM1,2)}, vcc, {s(sM0,2)}")
        poll_tail(A, lab0, sM1, cfg.poll_sleep)
        savecnt(A, cfg, 1)
    lab = poll_head(A, "L_hop2")
    for i in range(4):
        A(f"buffer_load_dwordx4 {v(vQG+4*i,4)}, {v(aQG)}, {s(sWS,4)}, 0 offen offset:{1024*i} sc1")
    A(f"buffer_load_dwordx2 {v(vQC,2)}, {v(aQC)}, {s(sWS,4)}, 0 offen sc1")
    A(f"s_waitcnt vmcnt(0)")
    sum_dwords(A, 44, range(vQG, vQG+16))
    A(f"v_sub_u32 v44, v44, {v(vQC)}")
    A(f"v_add_u32 v45, {s(sNONCE)}, {v(vQC)}")
    A(f"v_cmp_ne_u32 vcc, v45, {v(vQC+1)}")
    wave_sum_u32(A, 44, 46)
    A(f"s_and_b64 {s(sM1,2)}, vcc, {s(sM0,2)}")
    A(f"v_cmp_ne_u32 vcc, 0, v44")
    A(f"s_or_b64 {s(sM1,2)}, {s(sM1,2)}, vcc")
    poll_tail(A, lab, sM1, cfg.poll_sleep)
    savecnt(A, cfg, 2)
    for i in range(4):
        A(f"ds_write_b128 {v(aQL)}, {v(vQG+4*i,4)} offset:{PITCH*i}")
    arrive(A, F3, 43)
    stamp(A, cfg, 3)
    wait_flag(A, FKV, NL, 44)
    wait_flag(A, F3, 4, 44)
    stamp(A, cfg, 4)
    vQF, vRING = 64, 128
    vS0, vS1 = 32, 36
    LA = 4
    def qkread(t):
        A(f"ds_read_b128 {v(vQF+4*t,4)}, {v(aQE if t%2==0 else aQO)} offset:{16*t}")
        for tt in range(2):
            slot = (2*t+tt) % 16
            A(f"ds_read_b128 {v(vRING+4*slot,4)}, {v(aKE if t%2==0 else aKO)} offset:{16*t + tt*16*PITCH}")
    for t in range(LA): qkread(t)
    for t in range(16):
        A(f"s_waitcnt lgkmcnt({3*min(LA-1, 15-t)})")
        for tt in range(2):
            slot = (2*t+tt) % 16
            acc = vS0 if tt == 0 else vS1
            A(f"v_mfma_f32_16x16x32_bf16 {v(acc,4)}, {v(vRING+4*slot,4)}, {v(vQF+4*t,4)}, {'0' if t == 0 else v(acc,4)}")
        if t + LA < 16: qkread(t+LA)
    vM = 44
    A(f"v_max3_f32 {v(vM)}, {v(vS0)}, {v(vS0+1)}, {v(vS0+2)}")
    A(f"v_max3_f32 v45, {v(vS0+3)}, {v(vS1)}, {v(vS1+1)}")
    A(f"v_max3_f32 {v(vM)}, {v(vM)}, {v(vS1+2)}, {v(vS1+3)}")
    A(f"v_max_f32 {v(vM)}, {v(vM)}, v45")
    xreduce_rows(A, "v_max_f32", vM, 45)
    A(f"ds_write_b32 {v(aMXW)}, {v(vM)}")
    def sentinel_wait(name, reads, regs):
        lab = A.newlabel(name); done = A.newlabel(name + "d")
        A(f"s_mov_b32 {s(sCNT2)}, 0")
        A.label(lab)
        reads()
        A(f"s_waitcnt lgkmcnt(0)")
        regs = list(regs)
        A(f"v_max3_u32 v47, {v(regs[0])}, {v(regs[1])}, {v(regs[2])}")
        k = 3
        while k + 1 < len(regs):
            A(f"v_max3_u32 v47, v47, {v(regs[k])}, {v(regs[k+1])}"); k += 2
        if k < len(regs): A(f"v_max_u32 v47, v47, {v(regs[k])}")
        A(f"v_cmp_eq_u32 vcc, -1, v47")
        A(f"s_cbranch_vccz {done}")
        A(f"s_add_u32 {s(sCNT2)}, {s(sCNT2)}, 1")
        A(f"s_cmp_lt_u32 {s(sCNT2)}, 2000000")
        A(f"s_cbranch_scc1 {lab}")
        A.label(done)
    sentinel_wait("L_mx", lambda: A(f"ds_read_b128 v[48:51], {v(aMXR)}"), range(48, 52))
    def pvread(k):
        T, g = k // 4, k % 4
        slot = k % 16
        base = aPV0 if g < 2 else aPV1
        off = (32*(g%2))*PITCH + T*32
        A(f"ds_read_b64_tr_b16 {v(vRING+4*slot,2)}, {v(base)} offset:{off}")
        A(f"ds_read_b64_tr_b16 {v(vRING+4*slot+2,2)}, {v(base)} offset:{off+16*PITCH}")
    PRE = 6
    A(f"v_max3_f32 {v(vM)}, v48, v49, v50")
    for k in range(PRE): pvread(k)
    A(f"v_max_f32 {v(vM)}, {v(vM)}, v51")
    for k in range(8):
        A(f"v_sub_f32 {v(vS0+k)}, {v(vS0+k)}, {v(vM)}")
    for k in range(8):
        A(f"v_exp_f32 {v(vS0+k)}, {v(vS0+k)}")
    vLs = 46
    for k in range(4):
        A(f"v_cvt_pk_bf16_f32 {v(52+k)}, {v(vS0+2*k)}, {v(vS0+2*k+1)}")
    A(f"ds_write_b128 {v(aPW)}, v[52:55]")
    A(f"v_add_f32 {v(vLs)}, {v(vS0)}, {v(vS0+1)}")
    A(f"v_add_f32 v47, {v(vS0+2)}, {v(vS0+3)}")
    A(f"v_add_f32 v48, {v(vS0+4)}, {v(vS0+5)}")
    A(f"v_add_f32 v49, {v(vS0+6)}, {v(vS0+7)}")
    A(f"v_add_f32 {v(vLs)}, {v(vLs)}, v47")
    A(f"v_add_f32 v48, v48, v49")
    A(f"v_add_f32 {v(vLs)}, {v(vLs)}, v48")
    xreduce_rows(A, "v_add_f32", vLs, 47)
    A(f"ds_write_b32 {v(aMXW)}, {v(vLs)} offset:{L_LS-L_MX}")
    vPF, vO, vPK = 64, 80, 112
    def _rd():
        A(f"ds_read_b128 v[48:51], {v(aMXR)} offset:{L_LS-L_MX}")
        for g in range(4):
            A(f"ds_read_b128 {v(vPF+4*g,4)}, {v(aPR)} offset:{1024*g}")
    sentinel_wait("L_ls", _rd, range(48, 52))
    nxt = PRE
    outstanding = []
    def issue(k):
        pvread(k); outstanding.extend([("f",k),("f",k)])
    while len(outstanding) + 2 <= 14:
        issue(nxt); nxt += 1
    A(f"v_add_f32 v48, v48, v49")
    A(f"v_add_f32 v50, v50, v51")
    A(f"v_add_f32 v47, v48, v50")
    def post(p):
        for T in (2*p, 2*p+1):
            A(f"v_cvt_pk_bf16_f32 {v(vPK+2*T)}, {v(vO+4*T)}, {v(vO+4*T+1)}")
            A(f"v_cvt_pk_bf16_f32 {v(vPK+2*T+1)}, {v(vO+4*T+2)}, {v(vO+4*T+3)}")
        A(f"v_permlane16_swap_b32 {v(vPK+4*p)}, {v(vPK+4*p+2)}")
        A(f"v_permlane16_swap_b32 {v(vPK+4*p+1)}, {v(vPK+4*p+3)}")
        A(f"buffer_store_dwordx4 {v(vPK+4*p,4)}, {v(aOP0 if p < 2 else aOP1)}, {s(sWS,4)}, 0 offen offset:{64*(p%2)} sc1")
        c = 52 + (p >> 1)
        if p % 2 == 0:
            A(f"v_add3_u32 {v(c)}, {v(vPK+4*p)}, {v(vPK+4*p+1)}, {v(vPK+4*p+2)}")
            A(f"v_add_u32 {v(c)}, {v(c)}, {v(vPK+4*p+3)}")
        else:
            A(f"v_add3_u32 {v(c)}, {v(c)}, {v(vPK+4*p)}, {v(vPK+4*p+1)}")
            A(f"v_add3_u32 {v(c)}, {v(c)}, {v(vPK+4*p+2)}, {v(vPK+4*p+3)}")
    for k in range(32):
        T, g = k//4, k%4
        need_idx = -1
        for idx, o in enumerate(outstanding):
            if o == ("f",k): need_idx = max(need_idx, idx)
        can = nxt < 32 and nxt <= k + 15
        if can:
            need_idx = max(need_idx, len(outstanding) + 2 - 15 - 1)
        if need_idx >= 0:
            n_after = len(outstanding) - 1 - need_idx
            A(f"s_waitcnt lgkmcnt({n_after})")
            del outstanding[:need_idx+1]
        slot = k % 16
        A(f"v_mfma_f32_16x16x32_bf16 {v(vO+4*T,4)}, {v(vRING+4*slot,4)}, {v(vPF+4*g,4)}, {'0' if g == 0 else v(vO+4*T,4)}")
        if can:
            issue(nxt); nxt += 1
        if k in (11, 19, 27): post((k - 11)//8)
    stamp(A, cfg, 5)
    post(3)
    xreduce_rows2(A, "v_add_u32", 52, 54, "v_add_u32", 53, 55)
    A(f"v_cmp_eq_u32 vcc, 1, {v(vS)}")
    A(f"v_mov_b32 v60, {v(vM)}")
    A(f"v_mov_b32 v61, v47")
    A(f"v_cndmask_b32 v62, v52, v53, vcc")
    A(f"v_add3_u32 v63, v60, v61, v62")
    A(f"v_add_u32 v63, {s(sNONCE)}, v63")
    A(f"s_mov_b64 {s(sEX,2)}, exec")
    A(f"s_mov_b32 exec_hi, 0")
    A(f"buffer_store_dwordx4 v[60:63], {v(aST)}, {s(sWS,4)}, 0 offen sc1")
    A(f"s_mov_b64 exec, {s(sEX,2)}")
    arrive(A, FPB, 52)
    stamp(A, cfg, 6)
    vOD, vST = 128, 144
    A(f"s_lshl_b32 {s(sT0)}, {s(sH)}, 3")
    A(f"s_add_u32 {s(sT0)}, {s(sT0)}, {s(sJ)}")
    A(f"s_lshl_b32 {s(sT0)}, {s(sT0)}, 2")
    A(f"s_add_u32 {s(sT0)}, {s(sT0)}, {s(sW)}")
    A(f"s_lshl_b32 {s(sT0)}, {s(sT0)}, 5")
    A(f"s_lshl_b32 {s(sT1)}, {s(sT0)}, 7")
    A(f"s_add_u32 {s(sT1)}, {s(sT1)}, {hex(WS_OP)}")
    A(f"v_lshl_add_u32 v40, {v(vL)}, 4, {s(sT1)}")
    A(f"s_lshl_b32 {s(sT1)}, {s(sT0)}, 4")
    A(f"s_add_u32 {s(sT1)}, {s(sT1)}, {hex(WS_ST)}")
    A(f"v_and_b32 v41, 31, {v(vL)}")
    A(f"v_lshl_add_u32 v41, v41, 4, {s(sT1)}")
    A(f"v_cmp_gt_u32 {s(sM0,2)}, 32, {v(vL)}")
    A(f"v_bfe_u32 v42, {v(vN)}, 2, 1")
    A(f"v_lshl_add_u32 v42, {v(vS)}, 1, v42")
    A(f"v_lshlrev_b32 v42, 2, v42")
    if cfg.two_stage:
        lab0 = poll_head(A, "L_hop3t")
        A(f"buffer_load_dwordx4 {v(vST,4)}, v41, {s(sWS,4)}, 0 offen sc1")
        A(f"s_waitcnt vmcnt(0)")
        A(f"v_add3_u32 v45, {v(vST)}, {v(vST+1)}, {v(vST+2)}")
        A(f"v_add_u32 v45, {s(sNONCE)}, v45")
        A(f"v_cmp_ne_u32 {s(sM1,2)}, v45, {v(vST+3)}")
        poll_tail(A, lab0, sM1, cfg.poll_sleep)
        savecnt(A, cfg, 3)
    lab = poll_head(A, "L_hop3")
    for i in range(4):
        A(f"buffer_load_dwordx4 {v(vOD+4*i,4)}, v40, {s(sWS,4)}, 0 offen offset:{1024*i} sc1")
    A(f"buffer_load_dwordx4 {v(vST,4)}, v41, {s(sWS,4)}, 0 offen sc1")
    A(f"s_waitcnt vmcnt(0)")
    sum_dwords(A, 44, range(vOD, vOD+16))
    A(f"v_cndmask_b32 v45, 0, {v(vST+2)}, {s(sM0,2)}")
    A(f"v_sub_u32 v44, v44, v45")
    A(f"v_add3_u32 v45, {v(vST)}, {v(vST+1)}, {v(vST+2)}")
    A(f"v_add_u32 v45, {s(sNONCE)}, v45")
    A(f"v_cmp_ne_u32 {s(sM1,2)}, v45, {v(vST+3)}")
    wave_sum_u32(A, 44, 46)
    A(f"v_cmp_ne_u32 vcc, 0, v44")
    A(f"s_or_b64 {s(sM1,2)}, {s(sM1,2)}, vcc")
    poll_tail(A, lab, sM1, cfg.poll_sleep)
    savecnt(A, cfg, 4)
    stamp(A, cfg, 7)
    A(f"v_mov_b32 v44, {v(vST)}")
    for d in ("quad_perm:[1,0,3,2]", "quad_perm:[2,3,0,1]", "row_half_mirror", "row_mirror"):
        A(f"v_max_f32_dpp v44, v44, v44 {d} row_mask:0xf bank_mask:0xf")
    A(f"v_mov_b32 v46, v44")
    A(f"v_permlane16_swap_b32 v44, v46")
    A(f"v_max_f32 v44, v44, v46")
    A(f"v_sub_f32 v44, {v(vST)}, v44")
    A(f"v_exp_f32 v44, v44")
    A(f"v_mul_f32 v45, v44, {v(vST+1)}")
    for d in ("quad_perm:[1,0,3,2]", "quad_perm:[2,3,0,1]", "row_half_mirror", "row_mirror"):
        A(f"v_add_f32_dpp v45, v45, v45 {d} row_mask:0xf bank_mask:0xf")
    A(f"v_mov_b32 v46, v45")
    A(f"v_permlane16_swap_b32 v45, v46")
    A(f"v_add_f32 v45, v45, v46")
    A(f"v_rcp_f32 v45, v45")
    A(f"v_mul_f32 v44, v44, v45")
    for k in range(4):
        A(f"ds_bpermute_b32 {v(48+k)}, v42, v44 offset:{32*k}")
    A(f"s_waitcnt lgkmcnt(0)")
    A(f"v_cvt_pk_bf16_f32 v52, v48, v49")
    A(f"v_cvt_pk_bf16_f32 v53, v50, v51")
    for t in range(2):
        sel_gemm_step(A, 52+t, vSEL, vAF0 if t % 2 == 0 else vAF1, vOD+8*t, vQX, vQY, t == 0)
    for k in range(8):
        A(f"v_permlane16_swap_b32 {v(vQX+k)}, {v(56+k)}")
    for k in range(8):
        A(f"v_add_f32_dpp {v(56+k)}, {v(56+k)}, {v(vQX+k)} row_ror:8 row_mask:0xf bank_mask:0xf")
    for k in range(4):
        A(f"v_cvt_pk_bf16_f32 {v(48+k)}, {v(56+2*k)}, {v(56+2*k+1)}")
    A(f"s_lshl_b32 {s(sT0)}, {s(sW)}, 7")
    A(f"s_add_u32 {s(sT0)}, {s(sT0)}, {L_CC}")
    A(f"v_lshl_add_u32 v46, {v(vL)}, 4, {s(sT0)}")
    A(f"s_mov_b64 {s(sEX,2)}, exec")
    A(f"s_mov_b64 exec, 0xff")
    A(f"ds_write_b128 v46, v[48:51]")
    A(f"s_mov_b64 exec, {s(sEX,2)}")
    stamp(A, cfg, 8)
    A(f"s_cmp_ge_u32 s2, 64")
    A(f"s_cbranch_scc1 L_Mdone")
    A(f"s_cmp_lg_u32 {s(sW)}, 0")
    A(f"s_cbranch_scc1 L_Mdone")
    vFD, vFC = 128, 152
    A(f"s_mul_i32 {s(sT0)}, s2, {NSLOT}")
    A(f"s_lshl_b32 {s(sT2)}, {s(sT0)}, 6")
    A(f"s_add_u32 {s(sT2)}, {s(sT2)}, {hex(WS_FD)}")
    A(f"v_lshl_add_u32 v40, {v(vL)}, 4, {s(sT2)}")
    A(f"s_lshl_b32 {s(sT2)}, {s(sT0)}, 3")
    A(f"s_add_u32 {s(sT2)}, {s(sT2)}, {hex(WS_FC)}")
    A(f"v_lshl_add_u32 v41, {v(vL)}, 3, {s(sT2)}")
    A(f"v_mov_b32 v47, 0x7ffffff0")
    NP = 32 if cfg.nomlp else NPROD
    A(f"v_lshrrev_b32 v44, 2, {v(vL)}")
    A(f"v_add_u32 v44, 32, v44")
    A(f"v_cmp_gt_u32 vcc, {NP}, v44")
    A(f"v_add_u32 v46, 2048, v40")
    A(f"v_cndmask_b32 v42, v47, v46, vcc")
    A(f"v_cmp_gt_u32 {s(sM2,2)}, {NP}, {v(vL)}")
    A(f"v_cndmask_b32 v41, v47, v41, {s(sM2,2)}")
    A(f"v_and_b32 v44, 3, {v(vN)}")
    A(f"v_mov_b32 v45, 0")
    for k, (j0, j1) in enumerate(((0,1),(2,3))):
        A(f"v_mov_b32 v46, 0x3f80")
        A(f"v_cmp_eq_u32 vcc, {j0}, v44")
        A(f"v_cndmask_b32 {v(vAF0+k)}, v45, v46, vcc")
        A(f"v_mov_b32 v46, 0x3f800000")
        A(f"v_cmp_eq_u32 vcc, {j1}, v44")
        A(f"v_cndmask_b32 {v(vAF0+k)}, {v(vAF0+k)}, v46, vcc")
    A(f"v_mov_b32 {v(vAF0+2)}, {v(vAF0)}")
    A(f"v_mov_b32 {v(vAF0+3)}, {v(vAF0+1)}")
    for k in range(4): A(f"v_mov_b32 {v(vFD+12+k)}, 0")
    A(f"s_lshl_b32 {s(sT3)}, s2, 6")
    A(f"v_lshl_add_u32 v57, {v(vL)}, 4, {s(sT3)}")
    lab = poll_head(A, "L_hop5")
    for i in range(2):
        A(f"buffer_load_dwordx4 {v(vFD+4*i,4)}, v40, {s(sWS,4)}, 0 offen offset:{1024*i} sc1")
    A(f"buffer_load_dwordx4 {v(vFD+8,4)}, v42, {s(sWS,4)}, 0 offen sc1")
    A(f"buffer_load_dwordx2 {v(vFC,2)}, v41, {s(sWS,4)}, 0 offen sc1")
    A(f"s_waitcnt vmcnt(0)")
    sum_dwords(A, 44, range(vFD, vFD+12))
    A(f"v_sub_u32 v44, v44, {v(vFC)}")
    A(f"v_add_u32 v45, {s(sNONCE)}, {v(vFC)}")
    A(f"v_cmp_ne_u32 vcc, v45, {v(vFC+1)}")
    wave_sum_u32(A, 44, 46)
    A(f"s_and_b64 {s(sM1,2)}, vcc, {s(sM2,2)}")
    A(f"v_cmp_ne_u32 vcc, 0, v44")
    A(f"s_or_b64 {s(sM1,2)}, {s(sM1,2)}, vcc")
    poll_tail(A, lab, sM1, cfg.poll_sleep)
    savecnt(A, cfg, 5)
    stamp(A, cfg, 9)
    for p in range(2):
        w = vFD + 8*p
        A(f"v_swap_b32 {v(w+2)}, {v(w+4)}")
        A(f"v_swap_b32 {v(w+3)}, {v(w+5)}")
    for p in range(2):
        w = vFD + 8*p
        c0 = "0" if p == 0 else v(vQX,4); c1 = "0" if p == 0 else v(vQY,4)
        A(f"v_mfma_f32_16x16x32_bf16 {v(vQX,4)}, {v(vAF0,4)}, {v(w,4)}, {c0}")
        A(f"v_mfma_f32_16x16x32_bf16 {v(vQY,4)}, {v(vAF0,4)}, {v(w+4,4)}, {c1}")
    for d in ("row_ror:4", "row_ror:8"):
        for k in range(8):
            A(f"v_add_f32_dpp {v(vQX+k)}, {v(vQX+k)}, {v(vQX+k)} {d} row_mask:0xf bank_mask:0xf")
    for k in range(4):
        A(f"v_cvt_pk_bf16_f32 {v(48+k)}, {v(vQX+2*k)}, {v(vQX+2*k+1)}")
    A(f"s_mov_b64 exec, 0xf")
    A(f"buffer_store_dwordx4 v[48:51], v57, {s(sOUT,4)}, 0 offen")
    A(f"s_cmp_lg_u32 s2, 0")
    A(f"s_cbranch_scc1 L_Mdone")
    A(f"s_add_u32 {s(sT0)}, {s(sE)}, 1")
    A(f"v_mov_b32 v52, {s(sT0)}")
    A(f"v_mov_b32 v53, {hex(WS_E)}")
    A(f"s_mov_b64 exec, 1")
    A(f"buffer_store_dword v52, v53, {s(sWS,4)}, 0 offen sc1")
    A.label("L_Mdone")
    if cfg.ts:
        A(f"s_mov_b64 exec, -1")
        emit_ts(A, cfg)
    A(f"s_endpgm")
    A.label("L_Lpath")
    vGX, vGW = 64, 80
    vW1, vW2, vB1, vH = 128, 160, 192, 196
    A(f"s_sub_u32 {s(sW)}, {s(sW)}, 4")
    A(f"v_lshlrev_b32 v40, 4, {v(vL)}")
    A(f"v_mov_b32 v43, {hex(WS_E)}")
    if cfg.prefetch_code:
        A(f"s_cmp_lg_u32 {s(sW)}, 3")
        A(f"s_cbranch_scc1 L_nopf")
        A(f"s_getpc_b64 s[66:67]")
        A.label("L_pcref")
        A(f"s_sub_u32 s66, s66, (L_pcref-{KNAME})")
        A(f"s_subb_u32 s67, s67, 0")
        A(f"s_lshl_b32 {s(sT2)}, {s(sR)}, 10")
        A(f"v_lshl_add_u32 v44, {v(vL)}, 7, {s(sT2)}")
        A(f"v_cmp_gt_u32 vcc, (L_end-{KNAME}), v44")
        A(f"v_cmp_gt_u32 {s(sM3,2)}, 8, {v(vL)}")
        A(f"s_and_b64 vcc, vcc, {s(sM3,2)}")
        A(f"s_and_saveexec_b64 {s(sEX,2)}, vcc")
        A(f"s_cbranch_execz L_pfskip")
        A(f"global_load_dword v63, v44, s[66:67]")
        A.label("L_pfskip")
        A(f"s_mov_b64 exec, {s(sEX,2)}")
        A.label("L_nopf")
    if cfg.tail_early:
        make_sels(A, vN, vSEL, 44)
        A(f"s_cmp_eq_u32 {s(sW)}, 0")
        A(f"s_cbranch_scc1 L_tail")
        A(f"s_sub_u32 {s(sT2)}, {s(sW)}, 1")
        A(f"s_mul_i32 {s(sT2)}, {s(sT2)}, 43")
        A(f"s_add_u32 {s(sT3)}, {s(sT2)}, 43")
        A(f"s_min_u32 {s(sT3)}, {s(sT3)}, 128")
        A(f"s_lshl_b32 {s(sT0)}, {s(sB)}, 12")
        A(f"s_lshl_b32 {s(sT1)}, {s(sKC)}, 7")
        A(f"s_add_u32 {s(sT0)}, {s(sT0)}, {s(sT1)}")
        A(f"s_add_u32 {s(sT0)}, {s(sT0)}, {s(sT2)}")
        A(f"s_lshl_b32 {s(sT0)}, {s(sT0)}, 10")
        A(f"s_mul_i32 {s(sT1)}, {s(sT2)}, {PITCH}")
        A(f"s_mov_b32 m0, {s(sT1)}")
        A(f"s_mov_b32 {s(sCNT)}, {s(sT2)}")
    else:
        A(f"s_lshl_b32 {s(sT0)}, {s(sB)}, 12")
        A(f"s_lshl_b32 {s(sT1)}, {s(sKC)}, 7")
        A(f"s_add_u32 {s(sT0)}, {s(sT0)}, {s(sT1)}")
        A(f"s_lshl_b32 {s(sT1)}, {s(sW)}, 5")
        A(f"s_add_u32 {s(sT0)}, {s(sT0)}, {s(sT1)}")
        A(f"s_lshl_b32 {s(sT0)}, {s(sT0)}, 10")
        A(f"s_mul_i32 {s(sT1)}, {s(sW)}, {32*PITCH}")
        A(f"s_mov_b32 m0, {s(sT1)}")
        A(f"s_mov_b32 {s(sCNT)}, 0")
    if cfg.l_delay: wait_flag(A, FW, 1, 45)
    if cfg.kvwin0:
        A.label("L_dma0")
        A(f"s_waitcnt vmcnt({cfg.kvwin0-1})")
        A(f"buffer_load_dwordx4 v40, {s(sKV,4)}, {s(sT0)} offen{NTKV} lds")
        A(f"s_add_u32 m0, m0, {PITCH}")
        A(f"s_add_u32 {s(sT0)}, {s(sT0)}, 1024")
        A(f"s_add_u32 {s(sCNT)}, {s(sCNT)}, 1")
        A(f"s_cmp_lt_u32 {s(sCNT)}, {cfg.kvn0}")
        A(f"s_cbranch_scc1 L_dma0")
    A.label("L_dma")
    if cfg.kvwin < 32: A(f"s_waitcnt vmcnt({cfg.kvwin-1})")
    A(f"buffer_load_dwordx4 v40, {s(sKV,4)}, {s(sT0)} offen{NTKV} lds")
    A(f"s_add_u32 m0, m0, {PITCH}")
    A(f"s_add_u32 {s(sT0)}, {s(sT0)}, 1024")
    A(f"s_add_u32 {s(sCNT)}, {s(sCNT)}, 1")
    A(f"s_cmp_lt_u32 {s(sCNT)}, {s(sT3) if cfg.tail_early else 32}")
    A(f"s_cbranch_scc1 L_dma")
    arrive(A, FKI, 45)
    stamp(A, cfg, 2, L=True)
    if not cfg.tail_early: make_sels(A, vN, vSEL, 44)
    if cfg.pw_op:
        A(f"s_cmp_lg_u32 {s(sW)}, 1")
        A(f"s_cbranch_scc1 L_nopw3")
        A(f"s_lshl_b32 {s(sT0)}, {s(sHG)}, 4")
        A(f"v_add_u32 v48, {s(sT0)}, {v(vN)}")
        A(f"v_lshlrev_b32 v48, 10, v48")
        A(f"s_lshl_b32 {s(sT1)}, {s(sB)}, 5")
        A(f"s_add_u32 {s(sT0)}, {s(sT1)}, {s(sKC)}")
        A(f"v_add_u32 v48, {s(sT0)}, v48")
        A(f"v_lshlrev_b32 v49, 4, {v(vS)}")
        A(f"v_lshl_add_u32 v49, v48, 7, v49")
        A(f"v_add_u32 v49, {hex(WS_OP)}, v49")
        A(f"v_lshl_add_u32 v48, {v(vS)}, 7, v48")
        A(f"v_lshlrev_b32 v48, 4, v48")
        A(f"v_add_u32 v48, {hex(WS_ST)}, v48")
        for k in range(4): A(f"v_mov_b32 {v(52+k)}, 0")
        A(f"s_mov_b32 {s(sT2)}, 0")
        for q in range(8):
            for u in range(2):
                A(f"buffer_store_dwordx4 v[52:55], v49, {s(sWS,4)}, {s(sT2)} offen offset:{64*u} sc1")
            if q < 7: A(f"s_add_u32 {s(sT2)}, {s(sT2)}, 16384")
        A(f"s_mov_b32 {s(sT2)}, 0")
        A(f"s_mov_b32 exec_hi, 0")
        for mw in range(4):
            A(f"buffer_store_dwordx4 v[52:55], v48, {s(sWS,4)}, {s(sT2)} offen sc1")
            if mw < 3: A(f"s_add_u32 {s(sT2)}, {s(sT2)}, 4096")
        A(f"s_mov_b64 exec, -1")
        A(f"s_waitcnt vmcnt(20)")
        arrive(A, FKV, 45)
        A(f"s_waitcnt vmcnt(0)")
        arrive(A, FP3, 45)
        A(f"s_branch L_gate")
        A.label("L_nopw3")
    A(f"s_waitcnt vmcnt(0)")
    arrive(A, FKV, 45)
    stamp(A, cfg, 3, L=True)
    if cfg.exp: A(f"s_branch L_Ldone")
    A(f"s_cmp_eq_u32 {s(sW)}, 0")
    A(f"s_cbranch_scc1 L_tail")
    A(f"s_cmp_lg_u32 {s(sW)}, 1")
    A(f"s_cbranch_scc1 L_mlpw")
    A.label("L_gate")
    for b in range(4):
        A(f"buffer_load_dwordx4 {v(vGX+4*b,4)}, v40, {s(sX,4)}, 0 offen offset:{1024*b}")
    A(f"buffer_load_dwordx4 {v(vGW,4)}, v40, {s(sGW,4)}, 0 offen")
    for b in range(4):
        A(f"v_mov_b32 {v(44+b)}, 0")
    A(f"s_waitcnt vmcnt(0)")
    for k in range(4):
        for b in range(4):
            A(f"v_dot2_f32_bf16 {v(44+b)}, {v(vGX+4*b+k)}, {v(vGW+k)}, {v(44+b)}")
    A("s_nop 3")
    for d in ("quad_perm:[1,0,3,2]", "quad_perm:[2,3,0,1]", "row_half_mirror", "row_mirror"):
        for b in range(4):
            A(f"v_add_f32_dpp {v(44+b)}, {v(44+b)}, {v(44+b)} {d} row_mask:0xf bank_mask:0xf")
    xreduce_rows2(A, "v_add_f32", 44, 48, "v_add_f32", 45, 49)
    xreduce_rows2(A, "v_add_f32", 46, 48, "v_add_f32", 47, 49)
    A(f"v_cmp_eq_u32 vcc, 1, {v(vS)}")
    A(f"v_cndmask_b32 v44, v44, v45, vcc")
    A(f"v_cmp_eq_u32 vcc, 2, {v(vS)}")
    A(f"v_cndmask_b32 v44, v44, v46, vcc")
    A(f"v_cmp_eq_u32 vcc, 3, {v(vS)}")
    A(f"v_cndmask_b32 v44, v44, v47, vcc")
    A(f"s_mov_b32 {s(sT0)}, {hex(f2u(-LOG2E))}")
    A(f"v_mul_f32 v44, {s(sT0)}, v44")
    A(f"v_exp_f32 v44, v44")
    A(f"v_add_f32 v44, 1.0, v44")
    A(f"v_rcp_f32 v58, v44")
    A(f"v_lshlrev_b32 v45, 2, {v(vS)}")
    A(f"v_add_u32 v45, {L_G}, v45")
    A(f"ds_write_b32 v45, v58")
    arrive(A, FG, 45)
    A(f"s_branch L_Ldone")
    A.label("L_mlpw")
    A(f"s_cmp_lg_u32 {s(sW)}, 2")
    A(f"s_cbranch_scc1 L_Ldone")
    if cfg.nomlp: A(f"s_branch L_Ldone")
    sNS, sJM, sMHJ = sT3, sT4, sT5
    A(f"s_lshr_b32 {s(sT0)}, {s(sR)}, 3")
    A(f"s_lshl_b32 {s(sT0)}, {s(sT0)}, 3")
    A(f"s_add_u32 {s(sNS)}, {s(sT0)}, {s(sXCD)}")
    A(f"s_cmp_ge_u32 {s(sNS)}, {NMG}")
    A(f"s_cbranch_scc1 L_Ldone")
    A(f"s_and_b32 {s(sJM)}, {s(sR)}, 7")
    A(f"s_lshl_b32 {s(sMHJ)}, {s(sNS)}, 3")
    A(f"s_add_u32 {s(sMHJ)}, {s(sMHJ)}, {s(sJM)}")
    vMX, vMW1, vMW2, vMB1 = 8, 64, 128, 60
    vONE, vG1, vCK1 = 192, 208, 240
    vPUB, vCPUB, vGA, vGB, vGC = 52, 53, 54, 55, 56
    A(f"v_lshrrev_b32 v41, 2, {v(vN)}")
    A(f"v_lshlrev_b32 v41, 10, v41")
    A(f"v_lshl_add_u32 v41, {v(vS)}, 5, v41")
    A(f"s_lshl_b32 {s(sT0)}, {s(sJM)}, 7")
    A(f"v_add_u32 v41, {s(sT0)}, v41")
    A(f"s_lshl_b32 {s(sT0)}, {s(sJM)}, 6")
    A(f"v_lshl_add_u32 v42, {v(vS)}, 4, {s(sT0)}")
    A(f"s_movk_i32 {s(sT1)}, 2752")
    A(f"v_mul_lo_u32 v42, v42, {s(sT1)}")
    A(f"s_lshl_b32 {s(sT0)}, {s(sNS)}, 8")
    A(f"v_lshl_add_u32 v44, {v(vN)}, 4, {s(sT0)}")
    A(f"v_add_u32 v42, v42, v44")
    A(f"v_cmp_gt_u32 vcc, 2752, v44")
    A(f"v_mov_b32 v45, 0x7ffffff0")
    A(f"v_cndmask_b32 v42, v45, v42, vcc")
    A(f"v_cndmask_b32 v44, v45, v44, vcc")
    A(f"s_lshl_b32 {s(sT0)}, {s(sNS)}, 17")
    A(f"s_lshl_b32 {s(sT1)}, {s(sJM)}, 7")
    A(f"s_add_u32 {s(sT0)}, {s(sT0)}, {s(sT1)}")
    A(f"v_lshlrev_b32 v46, 15, {v(vS)}")
    A(f"v_lshl_add_u32 v46, {v(vN)}, 3, v46")
    A(f"v_add_u32 v48, {s(sT0)}, v46")
    if cfg.mlp_w1_flag: wait_flag(A, globals()[cfg.mlp_w1_flag], 4, 46)
    stamp(A, cfg, 4, L=True)
    A(f"buffer_load_dword v40, v43, {s(sWS,4)}, 0 offen sc1")
    for k in range(2):
        A(f"buffer_load_dwordx4 {v(vMX+4*k,4)}, v41, {s(sX,4)}, 0 offen offset:{16*k}")
    A(f"buffer_load_dwordx4 {v(vMB1,4)}, v44, {s(sB1,4)}, 0 offen")
    A(f"s_mov_b32 {s(sT2)}, 0")
    for k in range(16):
        A(f"buffer_load_dwordx4 {v(vMW1+4*k,4)}, v42, {s(sW1,4)}, {s(sT2)} offen{NT}")
        if k < 15: A(f"s_add_u32 {s(sT2)}, {s(sT2)}, 2752")
    A(f"s_mov_b32 {s(sT2)}, 0")
    for k in range(32):
        A(f"buffer_load_dwordx2 {v(vMW2+2*k,2)}, v48, {s(sW2,4)}, {s(sT2)} offen offset:{1024*(k%4)}{NT}")
        if k % 4 == 3 and k < 31: A(f"s_add_u32 {s(sT2)}, {s(sT2)}, 4096")
    make_ones(A, vN, vONE, 46)
    partial_offsets(A, vL, vN, vS, WS_H1, WS_H1C, vPUB, vCPUB, vGA, vGB, vGC, 46, sMHJ, sNS)
    A(f"v_lshrrev_b32 v46, 3, {v(vN)}")
    A(f"v_lshl_add_u32 v46, {v(vS)}, 4, v46")
    A(f"s_lshl_b32 {s(sT0)}, {s(sJM)}, 1")
    A(f"v_add_u32 v46, {s(sT0)}, v46")
    A(f"s_movk_i32 {s(sT1)}, {NSLOT}")
    A(f"v_mul_lo_u32 v46, v46, {s(sT1)}")
    A(f"s_add_u32 {s(sT0)}, {s(sNS)}, 32")
    A(f"v_add_u32 v46, {s(sT0)}, v46")
    A(f"v_lshlrev_b32 v58, 3, v46")
    A(f"v_add_u32 v58, {hex(WS_FC)}, v58")
    A(f"v_and_b32 v49, 7, {v(vN)}")
    A(f"v_lshlrev_b32 v49, 3, v49")
    A(f"v_lshl_add_u32 v57, v46, 6, v49")
    A(f"v_add_u32 v57, {hex(WS_FD)}, v57")
    A(f"v_lshlrev_b32 v41, 4, {v(vL)}")
    A(f"v_add_u32 v41, {L_HR}, v41")
    A(f"v_lshrrev_b32 v42, 2, {v(vN)}")
    A(f"v_lshlrev_b32 v42, 8, v42")
    A(f"v_lshl_add_u32 v42, {v(vS)}, 6, v42")
    A(f"v_add_u32 v42, {L_HR}, v42")
    A(f"s_waitcnt vmcnt(48)")
    nonce_from(A, 40)
    sel_gemm(A, 8, vMX, vSEL, 24, 28, vMW1, 32, 36, swap=True, wwait=lambda t: A(f"s_waitcnt vmcnt({32 + 14 - 2*t})"))
    publish_partial(A, 32, 36, 16, vPUB, vCPUB, 46, cfg.local_st, cfg.dual, cfg.defer)
    stamp(A, cfg, 5, L=True)
    gather_reduce(A, cfg, "L_hopm", vG1, vCK1, vONE, vGA, vGB, vGC, 32, 36, 46)
    stamp(A, cfg, 6, L=True)
    vH, vHa, vHn, vHd = 32, 208, 216, 224
    for e in range(8):
        r = vMB1 + e//2
        if e % 2 == 0: A(f"v_lshlrev_b32 {v(vHa+e)}, 16, {v(r)}")
        else: A(f"v_and_b32 {v(vHa+e)}, 0xffff0000, {v(r)}")
    for e in range(8):
        A(f"v_add_f32 {v(vH+e)}, {v(vH+e)}, {v(vHa+e)}")
    A(f"s_mov_b32 {s(sT0)}, {hex(f2u(-LOG2E))}")
    for e in range(8):
        A(f"v_mul_f32 {v(vHa+e)}, {s(sT0)}, abs({v(vH+e)})")
    for e in range(8):
        A(f"v_exp_f32 {v(vHa+e)}, {v(vHa+e)}")
    for e in range(8):
        a_, h_, n_, d_ = vHa+e, vH+e, vHn+e, vHd+e
        A(f"v_cmp_lt_f32 vcc, 0, {v(h_)}")
        A(f"v_mul_f32 {v(d_)}, {v(a_)}, {v(a_)}")
        A(f"v_cndmask_b32 {v(n_)}, {v(d_)}, 1.0, vcc")
        A(f"v_fma_f32 {v(n_)}, 2.0, {v(a_)}, {v(n_)}")
        A(f"v_cndmask_b32 {v(d_)}, 1.0, {v(d_)}, vcc")
        A(f"v_fma_f32 {v(d_)}, 2.0, {v(d_)}, {v(n_)}")
        A(f"v_rcp_f32 {v(d_)}, {v(d_)}")
        A(f"v_mul_f32 {v(n_)}, {v(n_)}, {v(h_)}")
        A(f"v_mul_f32 {v(h_)}, {v(n_)}, {v(d_)}")
    for k in range(4):
        A(f"v_cvt_pk_bf16_f32 {v(16+k)}, {v(vH+2*k)}, {v(vH+2*k+1)}")
    A(f"ds_write_b128 v41, v[16:19]")
    for k in range(4):
        A(f"ds_read_b128 {v(8+4*k,4)}, v42 offset:{16*k}")
    A(f"v_lshlrev_b32 v45, 2, {v(vS)}")
    A(f"v_add_u32 v45, {L_G}, v45")
    wait_flag(A, FG, 1, 46, lambda: A(f"ds_read_b32 v59, v45"))
    sel_gemm(A, 16, 8, vSEL, 24, 28, vMW2, 32)
    A(f"v_sub_f32 v59, 1.0, v59")
    for k in range(4):
        A(f"v_mul_f32 {v(32+k)}, {v(32+k)}, v59")
    A(f"v_cvt_pk_bf16_f32 v16, v32, v33")
    A(f"v_cvt_pk_bf16_f32 v17, v34, v35")
    A(f"buffer_store_dwordx2 v[16:17], v57, {s(sWS,4)}, 0 offen sc1")
    A(f"v_add_u32 v46, v16, v17")
    for d in ("quad_perm:[1,0,3,2]", "quad_perm:[2,3,0,1]", "row_half_mirror"):
        A(f"v_add_u32_dpp v46, v46, v46 {d} row_mask:0xf bank_mask:0xf")
    A(f"v_add_u32 v47, {s(sNONCE)}, v46")
    A(f"s_mov_b32 exec_lo, 0x01010101")
    A(f"s_mov_b32 exec_hi, 0x01010101")
    A(f"buffer_store_dwordx2 v[46:47], v58, {s(sWS,4)}, 0 offen sc1")
    A(f"s_mov_b64 exec, -1")
    stamp(A, cfg, 7, L=True)
    A(f"s_branch L_Ldone")
    A.label("L_tail")
    vWUV, vWO = 64, 128
    A(f"s_lshl_b32 {s(sT0)}, {s(sJ)}, 19")
    A(f"s_lshl_b32 {s(sT1)}, {s(sH)}, 8")
    A(f"s_add_u32 {s(sT0)}, {s(sT0)}, {s(sT1)}")
    A(f"v_lshlrev_b32 v41, 17, {v(vS)}")
    A(f"v_lshl_add_u32 v41, {v(vN)}, 4, v41")
    A(f"v_add_u32 v41, {s(sT0)}, v41")
    A(f"s_lshl_b32 {s(sT0)}, {s(sH)}, 17")
    A(f"s_lshl_b32 {s(sT1)}, {s(sJ)}, 7")
    A(f"s_add_u32 {s(sT0)}, {s(sT0)}, {s(sT1)}")
    A(f"v_lshlrev_b32 v42, 15, {v(vS)}")
    A(f"v_lshl_add_u32 v42, {v(vN)}, 3, v42")
    A(f"v_add_u32 v42, {s(sT0)}, v42")
    A(f"buffer_load_dword v61, v43, {s(sWS,4)}, 0 offen sc1")
    vPUB, vCPUB, vGA, vGB, vGC = 52, 53, 54, 55, 56
    partial_offsets(A, vL, vN, vS, WS_C1, WS_C1C, vPUB, vCPUB, vGA, vGB, vGC, 46)
    A(f"v_lshrrev_b32 v46, 3, {v(vN)}")
    A(f"v_lshl_add_u32 v46, {v(vS)}, 4, v46")
    A(f"s_lshl_b32 {s(sT0)}, {s(sJ)}, 1")
    A(f"v_add_u32 v46, {s(sT0)}, v46")
    A(f"s_movk_i32 {s(sT1)}, {NSLOT}")
    A(f"v_mul_lo_u32 v46, v46, {s(sT1)}")
    A(f"v_add_u32 v46, {s(sH)}, v46")
    A(f"v_lshlrev_b32 v60, 3, v46")
    A(f"v_add_u32 v60, {hex(WS_FC)}, v60")
    A(f"v_and_b32 v47, 7, {v(vN)}")
    A(f"v_lshlrev_b32 v47, 3, v47")
    A(f"v_lshl_add_u32 v59, v46, 6, v47")
    A(f"v_add_u32 v59, {hex(WS_FD)}, v59")
    if cfg.tail_early:
        if cfg.tail_delay: wait_flag(A, globals()[cfg.tail_delay], 1, 45)
    elif cfg.tail_flag: wait_flag(A, globals()[cfg.tail_flag], 4, 45)
    A(f"s_mov_b32 {s(sT2)}, 0")
    for k in range(16):
        if cfg.tailwin and k >= cfg.tailwin: A(f"s_waitcnt vmcnt({cfg.tailwin-1})")
        A(f"buffer_load_dwordx4 {v(vWUV+4*k,4)}, v41, {s(sWUV,4)}, {s(sT2)} offen{NT}")
        if k < 15: A(f"s_add_u32 {s(sT2)}, {s(sT2)}, 8192")
    def wo_loads():
        A(f"s_mov_b32 {s(sT2)}, 0")
        for k in range(32):
            if cfg.tailwin2 and k % 2 == 0: A(f"s_waitcnt vmcnt({cfg.tailwin2-2})")
            A(f"buffer_load_dwordx2 {v(vWO+2*k,2)}, v62, {s(sWO,4)}, {s(sT2)} offen offset:{1024*(k%4)}{NT}")
            if k % 4 == 3 and k < 31: A(f"s_add_u32 {s(sT2)}, {s(sT2)}, 4096")
    A(f"v_mov_b32 v62, v42")
    if not cfg.wo_flag: wo_loads()
    vONE, vG1, vCK1 = 192, 208, 240
    A(f"s_waitcnt vmcnt({16 if cfg.wo_flag else 48})")
    nonce_from(A, 61)
    A(f"v_lshlrev_b32 v45, 2, {v(vS)}")
    A(f"v_add_u32 v45, {L_G}, v45")
    wait_flag(A, FG, 1, 46, lambda: A(f"ds_read_b32 v58, v45"))
    make_ones(A, vN, vONE, 46)
    A(f"v_lshrrev_b32 v44, 2, {v(vN)}")
    A(f"v_lshlrev_b32 v42, 7, v44")
    A(f"v_lshl_add_u32 v42, {v(vS)}, 5, v42")
    A(f"v_add_u32 v42, {L_CC}, v42")
    A(f"v_lshlrev_b32 v43, 4, {v(vL)}")
    A(f"v_add_u32 v43, {L_CT}, v43")
    A(f"v_lshlrev_b32 v44, 8, v44")
    A(f"v_lshl_add_u32 v44, {v(vS)}, 6, v44")
    A(f"v_add_u32 v44, {L_CT}, v44")
    A(f"s_waitcnt vmcnt({0 if cfg.wo_flag else 32})")
    for t in range(8):
        A(f"v_swap_b32 {v(vWUV+8*t+2)}, {v(vWUV+8*t+4)}")
        A(f"v_swap_b32 {v(vWUV+8*t+3)}, {v(vWUV+8*t+5)}")
    if cfg.wo_flag == 'FPB':
        wait_flag(A, FPB, 4, 45)
        wo_loads()
    if not cfg.wo_flag: A(f"s_waitcnt vmcnt(0)")
    stamp(A, cfg, 4, L=True)
    vCP = 8
    def _rd():
        A(f"ds_read_b128 {v(vCP,4)}, v42")
        A(f"ds_read_b128 {v(vCP+4,4)}, v42 offset:16")
    lab = A.newlabel("L_cc"); done = A.newlabel("L_ccd")
    A(f"s_mov_b32 {s(sCNT2)}, 0")
    A.label(lab)
    _rd()
    A(f"s_waitcnt lgkmcnt(0)")
    A(f"v_max3_u32 v45, {v(vCP)}, {v(vCP+1)}, {v(vCP+2)}")
    A(f"v_max3_u32 v46, {v(vCP+3)}, {v(vCP+4)}, {v(vCP+5)}")
    A(f"v_max3_u32 v45, v45, {v(vCP+6)}, {v(vCP+7)}")
    A(f"v_max_u32 v45, v45, v46")
    A(f"v_cmp_eq_u32 vcc, -1, v45")
    A(f"s_cbranch_vccz {done}")
    A(f"s_add_u32 {s(sCNT2)}, {s(sCNT2)}, 1")
    A(f"s_cmp_lt_u32 {s(sCNT2)}, 4000000")
    A(f"s_cbranch_scc1 {lab}")
    A.label(done)
    stamp(A, cfg, 5, L=True)
    if cfg.wo_flag == 'FCC': wo_loads()
    sel_gemm(A, 8, vCP, vSEL, 24, 28, vWUV, 32, 36)
    publish_partial(A, 32, 36, 16, vPUB, vCPUB, 46, cfg.local_st, cfg.dual, cfg.defer)
    stamp(A, cfg, 6, L=True)
    gather_reduce(A, cfg, "L_hop4", vG1, vCK1, vONE, vGA, vGB, vGC, 32, 36, 46)
    savecnt(A, cfg, 0)
    stamp(A, cfg, 7, L=True)
    A(f"v_cvt_pk_bf16_f32 v16, v32, v33")
    A(f"v_cvt_pk_bf16_f32 v17, v34, v35")
    A(f"v_cvt_pk_bf16_f32 v18, v36, v37")
    A(f"v_cvt_pk_bf16_f32 v19, v38, v39")
    A(f"ds_write_b128 v43, v[16:19]")
    vXP2 = 8
    for k in range(4):
        A(f"ds_read_b128 {v(vXP2+4*k,4)}, v44 offset:{16*k}")
    def _x(t):
        if t % 4 == 0: A(f"s_waitcnt lgkmcnt({3-t//4})")
    sel_gemm(A, 16, vXP2, vSEL, 24, 28, vWO, 32, xwait=_x)
    for k in range(4):
        A(f"v_mul_f32 {v(32+k)}, {v(32+k)}, v58")
    A(f"v_cvt_pk_bf16_f32 v16, v32, v33")
    A(f"v_cvt_pk_bf16_f32 v17, v34, v35")
    if cfg.pw_fd: wait_flag(A, FP2, 1, 45)
    A(f"buffer_store_dwordx2 v[16:17], v59, {s(sWS,4)}, 0 offen sc1")
    A(f"v_add_u32 v46, v16, v17")
    for d in ("quad_perm:[1,0,3,2]", "quad_perm:[2,3,0,1]", "row_half_mirror"):
        A(f"v_add_u32_dpp v46, v46, v46 {d} row_mask:0xf bank_mask:0xf")
    A(f"v_add_u32 v47, {s(sNONCE)}, v46")
    A(f"s_mov_b32 exec_lo, 0x01010101")
    A(f"s_mov_b32 exec_hi, 0x01010101")
    A(f"buffer_store_dwordx2 v[46:47], v60, {s(sWS,4)}, 0 offen sc1")
    A(f"s_mov_b64 exec, -1")
    A.label("L_Ldone")
    if cfg.ts:
        stamp(A, cfg, 1, L=True)
        emit_ts(A, cfg, L=True)
    A.label("L_exit")
    A(f"s_endpgm")
    A.label("L_end")
    lines = hazard.fix(A.l, verbose=True)
    return "\n".join(lines) + "\n"

def emit_ts(A, cfg, L=False):
    A(f"s_waitcnt lgkmcnt(0) vmcnt(0)")
    A(f"s_mov_b64 exec, 0x3ff")
    A(f"v_mbcnt_lo_u32_b32 v0, -1, 0")
    A(f"v_mov_b32 v1, 0")
    for k in range(10):
        A(f"v_mov_b32 v2, {s(sTS+2*k)}")
        A(f"v_cmp_eq_u32 vcc, {k}, v0")
        A(f"v_cndmask_b32 v1, v1, v2, vcc")
    if cfg.cnts:
        A(f"s_mov_b64 exec, 0xffff")
        for k in range(6):
            A(f"v_mov_b32 v2, {s(CNTREG[k])}")
            A(f"v_cmp_eq_u32 vcc, {10+k}, v0")
            A(f"v_cndmask_b32 v1, v1, v2, vcc")
    A(f"s_lshl_b32 {s(sT0)}, s2, 3")
    A(f"s_add_u32 {s(sT0)}, {s(sT0)}, {s(sW)}")
    if L: A(f"s_add_u32 {s(sT0)}, {s(sT0)}, 4")
    A(f"s_lshl_b32 {s(sT0)}, {s(sT0)}, 6")
    A(f"s_add_u32 {s(sT0)}, {s(sT0)}, {hex(WS_DBG)}")
    A(f"v_lshl_add_u32 v2, v0, 2, {s(sT0)}")
    A(f"buffer_store_dword v1, v2, {s(sWS,4)}, 0 offen")

def build(cfg, path):
    body = gen(cfg)
    txt = wrap([(KNAME, body, 256, 102, 256)], [(KNAME, (256,1,1), (512,1,1), LDS_SIZE)])
    open(path, "w").write(txt)
    return path

if __name__ == "__main__":
    import build as B
    cfg = Cfg()
    for a_ in sys.argv[2:]:
        k, val = a_.split("=")
        setattr(cfg, k, eval(val))
    p = build(cfg, sys.argv[1])
    B.build(p, p.replace(".s", ".co"))
    import subprocess
    print(subprocess.run(f"llvm-objdump -d --mcpu=gfx950 {p.replace('.s','.co')} | grep -c '//' ; llvm-readelf -S {p.replace('.s','.co')} | grep -E 'text'", shell=True, capture_output=True, text=True).stdout)
```

```python
import sys; sys.path.insert(0, "dev")
from asmlib import *
import hazard

WS_E = 0
WS_Q1, WS_Q1C = 0x10000, 0x50000
WS_QA, WS_QC = 0x60000, 0x80000
WS_C1, WS_C1C = 0x90000, 0xD0000
WS_FD, WS_FC = 0xE0000, 0x130000
WS_H1, WS_H1C = 0x1C0000, 0x1E0000
WS_ST, WS_OP, WS_DBG = 0x140000, 0x200000, 0x800000
import os
WSBASE = int(os.environ.get('WSBASE', '0'), 0)
for _n in [k for k in list(globals()) if k.startswith('WS_')]: globals()[_n] += WSBASE
PITCH = 1056
L_KV = 0
L_QL = 128 * PITCH
L_MISC = L_QL + 16 * PITCH
L_QB = L_MISC
L_MX = L_MISC + 1024
L_LS = L_MISC + 1280
L_G  = L_MISC + 1536
L_FL = L_MISC + 1600
L_PB = L_MISC + 2048
L_CC = L_MISC + 6144
L_HR = L_MISC + 6656
L_CT = L_MISC + 8704
FKI, FKV, F3, F4, F5, FPB, FCC, FP1, FP2, FP3, FW, FG = range(12)
LDS_SIZE = L_MISC + 9728
NPROD = 43
NSLOT = 48
NMG = 11
MLP0 = 64
NMLP = 43
HASH_K, HASH_C = 0x9E3779B1, 0x7F4A7C15
SCALE = (128 ** -0.5) * 1.4426950408889634
LOG2E = 1.4426950408889634

sX, sKV, sWQ, sWUK, sWUV, sWO, sW1, sB1, sW2, sGW, sOUT, sWS = 8, 12, 16, 20, 24, 28, 32, 36, 40, 44, 48, 52
sW, sXCD, sR, sHG, sJ, sH, sB, sKC, sNONCE, sE = 56, 57, 58, 59, 60, 61, 62, 63, 64, 65
sT0, sT1, sT2, sT3, sT4, sT5 = 66, 67, 68, 69, 70, 71
sCNT = 72
sCNT2 = 73
sEX = 74
sM0 = 76
sM1 = 78
sTS = 80
sM2, sM3 = 4, 6
CNTREG = [81, 83, 85, 87, 89, 91]
sHJ = 100
sFB, sDELTA = 101, 3
LOCAL_DELTA = 0x600000
LOCAL_TRIES = 8
POLL_MAX = 20000

def f2u(x):
    import struct
    return struct.unpack("<I", struct.pack("<f", x))[0]

class Cfg:
    nt_w = True
    ts = False
    tsmask = 0x3ff
    prio = True
    wait_kv_first = False
    l_after_m = False
    nt_kv = True
    nt_wq = True
    nt_tail = True
    poll_sleep = 0
    early = False
    cnts = False
    tail_after_f3 = True
    kvwin = 6
    kvwin0 = 0
    kvn0 = 8
    l_delay = True
    mlpwin1 = 16
    mlpwin2 = 6
    two_stage = False
    exp = ''
    pw = False
    pw_qa = False
    pw_fd = False
    nomlp = False
    mlp_split = True
    mlp_w1_flag = 'FPB'
    tail_flag = 'F3'
    wo_flag = None
    rot = True
    tailwin = 0
    tlb = 0
    tail_early = False
    tail_delay = None
    addr_early = False
    fw_at = 'wq'
    tailwin2 = 0
    mlp_w2_flag = 'FCC'
    local_st = 'sc1'
    dual = True
    defer = True
    local_ld = 'sc1'
    pw_op = False
    no_l = False
    stop = None
    prefetch_code = True

def srd(A, sr, karg_off, size):
    A(f"s_load_dwordx2 {s(sr,2)}, s[0:1], {karg_off}")
def srd_fin(A, sr, size):
    A(f"s_mov_b32 {s(sr+2)}, {hex(size)}")
    A(f"s_mov_b32 {s(sr+3)}, 0x20000")

def savecnt(A, cfg, k):
    if cfg.ts and cfg.cnts: A(f"s_mov_b32 {s(CNTREG[k])}, {s(sCNT)}")
def estamp(A, cfg, k):
    if cfg.ts and cfg.early:
        A(f"s_memrealtime {s(sTS+2*k,2)}")
        A(f"s_waitcnt lgkmcnt(0)")
def stamp(A, cfg, k, L=False):
    if cfg.early and k >= 3 and not L: return
    if cfg.ts and (cfg.tsmask >> k) & 1:
        A(f"s_memrealtime {s(sTS+2*k,2)}")
        A(f"s_waitcnt lgkmcnt(0)")

vFLA = 3
def arrive(A, f, one, fla=None):
    A(f"v_mov_b32 {v(one)}, 1")
    A(f"s_mov_b64 {s(sEX,2)}, exec")
    A(f"s_mov_b64 exec, 1")
    A(f"ds_add_u32 {v(fla if fla is not None else vFLA)}, {v(one)} offset:{4*f}")
    A(f"s_mov_b64 exec, {s(sEX,2)}")
def wait_flag(A, f, n, tmp, extra=None, fla=None):
    lab = A.newlabel("L_fw"); done = A.newlabel("L_fd")
    A(f"s_mov_b32 {s(sCNT2)}, 0")
    A.label(lab)
    A(f"ds_read_b32 {v(tmp)}, {v(fla if fla is not None else vFLA)} offset:{4*f}")
    if extra: extra()
    A(f"s_waitcnt lgkmcnt(0)")
    A(f"v_cmp_gt_u32 vcc, {n}, {v(tmp)}")
    A(f"s_cbranch_vccz {done}")
    A(f"s_add_u32 {s(sCNT2)}, {s(sCNT2)}, 1")
    A(f"s_cmp_lt_u32 {s(sCNT2)}, 2000000")
    A(f"s_cbranch_scc1 {lab}")
    A.label(done)

def xreduce_rows(A, op, x, tmp):
    A(f"v_mov_b32 {v(tmp)}, {v(x)}")
    A(f"v_permlane16_swap_b32 {v(x)}, {v(tmp)}")
    A(f"{op} {v(x)}, {v(x)}, {v(tmp)}")
    A(f"v_mov_b32 {v(tmp)}, {v(x)}")
    A(f"v_permlane32_swap_b32 {v(x)}, {v(tmp)}")
    A(f"{op} {v(x)}, {v(x)}, {v(tmp)}")

def xreduce_rows2(A, op0, x0, t0, op1, x1, t1):
    for sw in ("v_permlane16_swap_b32", "v_permlane32_swap_b32"):
        A(f"v_mov_b32 {v(t0)}, {v(x0)}")
        A(f"v_mov_b32 {v(t1)}, {v(x1)}")
        A(f"{sw} {v(x0)}, {v(t0)}")
        A(f"{sw} {v(x1)}, {v(t1)}")
        A(f"{op0} {v(x0)}, {v(x0)}, {v(t0)}")
        A(f"{op1} {v(x1)}, {v(x1)}, {v(t1)}")

def wave_sum_u32(A, x, t):
    for d in ("quad_perm:[1,0,3,2]", "quad_perm:[2,3,0,1]", "row_half_mirror", "row_mirror"):
        A(f"v_add_u32_dpp {v(x)}, {v(x)}, {v(x)} {d} row_mask:0xf bank_mask:0xf")
    xreduce_rows(A, "v_add_u32", x, t)

def sum_dwords(A, dst, regs):
    regs = list(regs)
    A(f"v_add3_u32 {v(dst)}, {v(regs[0])}, {v(regs[1])}, {v(regs[2])}")
    k = 3
    while k + 1 < len(regs):
        A(f"v_add3_u32 {v(dst)}, {v(dst)}, {v(regs[k])}, {v(regs[k+1])}"); k += 2
    if k < len(regs):
        A(f"v_add_u32 {v(dst)}, {v(dst)}, {v(regs[k])}")

def make_sels(A, vn, vsel, vt):
    A(f"v_and_b32 {v(vt)}, 3, {v(vn)}")
    A(f"v_mov_b32 {v(vt+1)}, 0x0c0c0c0c")
    pats = [(0, 0x0c0c0100, 1, 0x01000c0c), (2, 0x0c0c0100, 3, 0x01000c0c), (0, 0x0c0c0302, 1, 0x03020c0c), (2, 0x0c0c0302, 3, 0x03020c0c)]
    for k, (j0, p0, j1, p1) in enumerate(pats):
        A(f"v_mov_b32 {v(vt+2)}, {hex(p0)}")
        A(f"v_cmp_eq_u32 vcc, {j0}, {v(vt)}")
        A(f"v_cndmask_b32 {v(vsel+k)}, {v(vt+1)}, {v(vt+2)}, vcc")
        A(f"v_mov_b32 {v(vt+2)}, {hex(p1)}")
        A(f"v_cmp_eq_u32 vcc, {j1}, {v(vt)}")
        A(f"v_cndmask_b32 {v(vsel+k)}, {v(vsel+k)}, {v(vt+2)}, vcc")

def sel_gemm_step(A, xp, vsel, af, wreg, dx, dy, first, swap=True):
    if swap:
        A(f"v_swap_b32 {v(wreg+2)}, {v(wreg+4)}")
        A(f"v_swap_b32 {v(wreg+3)}, {v(wreg+5)}")
    for k in range(4):
        A(f"v_perm_b32 {v(af+k)}, {v(xp)}, {v(xp)}, {v(vsel+k)}")
    c0 = "0" if first else v(dx,4)
    c1 = "0" if first else v(dy,4)
    A(f"v_mfma_f32_16x16x32_bf16 {v(dx,4)}, {v(af,4)}, {v(wreg,4)}, {c0}")
    A(f"v_mfma_f32_16x16x32_bf16 {v(dy,4)}, {v(af,4)}, {v(wreg+4,4)}, {c1}")

def sel_gemm(A, n, xp, vsel, af0, af1, w, dx, dy=None, swap=False, wwait=None, xwait=None):
    st = 8 if dy is not None else 4
    def perms(t):
        if xwait: xwait(t)
        af = af0 if t % 2 == 0 else af1
        for k in range(4):
            A(f"v_perm_b32 {v(af+k)}, {v(xp+t)}, {v(xp+t)}, {v(vsel+k)}")
    perms(0)
    for t in range(n):
        if wwait: wwait(t)
        wr = w + st*t
        if swap:
            A(f"v_swap_b32 {v(wr+2)}, {v(wr+4)}")
            A(f"v_swap_b32 {v(wr+3)}, {v(wr+5)}")
        if t + 1 < n: perms(t+1)
        af = af0 if t % 2 == 0 else af1
        A(f"v_mfma_f32_16x16x32_bf16 {v(dx,4)}, {v(af,4)}, {v(wr,4)}, {'0' if t == 0 else v(dx,4)}")
        if dy is not None:
            A(f"v_mfma_f32_16x16x32_bf16 {v(dy,4)}, {v(af,4)}, {v(wr+4,4)}, {'0' if t == 0 else v(dy,4)}")

def poll_head(A, name):
    lab = A.newlabel(name)
    A(f"s_mov_b32 {s(sCNT)}, 0")
    A.label(lab)
    return lab
def poll_tail(A, lab, bad_pair, sleep=0):
    done = A.newlabel("done")
    A(f"s_cmp_eq_u64 {s(bad_pair,2)}, 0")
    A(f"s_cbranch_scc1 {done}")
    if sleep: A(f"s_sleep {sleep}")
    A(f"s_add_u32 {s(sCNT)}, {s(sCNT)}, 1")
    A(f"s_cmp_lt_u32 {s(sCNT)}, {POLL_MAX}")
    A(f"s_cbranch_scc1 {lab}")
    A.label(done)

def publish_final(A, cfg, dx, dy, vscale, vprod_off, vchk_off, pk, t):
    for k in range(4):
        A(f"v_mul_f32 {v(dx+k)}, {v(dx+k)}, {v(vscale)}")
        A(f"v_mul_f32 {v(dy+k)}, {v(dy+k)}, {v(vscale)}")
    A(f"v_cvt_pk_bf16_f32 {v(pk)}, {v(dx)}, {v(dx+1)}")
    A(f"v_cvt_pk_bf16_f32 {v(pk+1)}, {v(dx+2)}, {v(dx+3)}")
    A(f"v_cvt_pk_bf16_f32 {v(pk+2)}, {v(dy)}, {v(dy+1)}")
    A(f"v_cvt_pk_bf16_f32 {v(pk+3)}, {v(dy+2)}, {v(dy+3)}")
    A(f"buffer_store_dwordx4 {v(pk,4)}, {v(vprod_off)}, {s(sWS,4)}, 0 offen sc1")
    sum_dwords(A, t, [pk, pk+1, pk+2, pk+3])
    A(f"v_add_u32_dpp {v(t)}, {v(t)}, {v(t)} quad_perm:[1,0,3,2] row_mask:0xf bank_mask:0xf")
    A(f"v_add_u32_dpp {v(t)}, {v(t)}, {v(t)} quad_perm:[2,3,0,1] row_mask:0xf bank_mask:0xf")
    A(f"v_add_u32 {v(t+1)}, {s(sNONCE)}, {v(t)}")
    A(f"s_mov_b64 {s(sEX,2)}, exec")
    A(f"s_mov_b32 exec_lo, 0x11111111")
    A(f"s_mov_b32 exec_hi, 0x11111111")
    A(f"buffer_store_dwordx2 {v(t,2)}, {v(vchk_off)}, {s(sWS,4)}, 0 offen sc1")
    A(f"s_mov_b64 exec, {s(sEX,2)}")

def final_offsets(A, vn, vq, s_ct, s_prod, voff, vchk, t):
    A(f"v_lshrrev_b32 {v(t)}, 2, {v(vn)}")
    A(f"v_lshl_add_u32 {v(t)}, {v(vq)}, 4, {v(t)}")
    A(f"s_lshl_b32 {s(sT0)}, {s(s_ct)}, 2")
    A(f"v_add_u32 {v(t)}, {s(sT0)}, {v(t)}")
    A(f"s_movk_i32 {s(sT1)}, {NSLOT}")
    A(f"v_mul_lo_u32 {v(t)}, {v(t)}, {s(sT1)}")
    A(f"v_add_u32 {v(t)}, {s(s_prod)}, {v(t)}")
    A(f"v_lshlrev_b32 {v(vchk)}, 3, {v(t)}")
    A(f"v_add_u32 {v(vchk)}, {hex(WS_FC)}, {v(vchk)}")
    A(f"v_and_b32 {v(t+1)}, 3, {v(vn)}")
    A(f"v_lshlrev_b32 {v(t+1)}, 4, {v(t+1)}")
    A(f"v_lshl_add_u32 {v(voff)}, {v(t)}, 6, {v(t+1)}")
    A(f"v_add_u32 {v(voff)}, {hex(WS_FD)}, {v(voff)}")


def nonce_from(A, vreg):
    A(f"v_readfirstlane_b32 {s(sE)}, {v(vreg)}")
    A(f"s_mul_i32 {s(sNONCE)}, {s(sE)}, {hex(HASH_K)}")
    A(f"s_add_u32 {s(sNONCE)}, {s(sNONCE)}, {hex(HASH_C)}")

def make_ones(A, vn, dst, t):
    A(f"v_and_b32 {v(t)}, 3, {v(vn)}")
    A(f"v_lshrrev_b32 {v(t+1)}, 2, {v(vn)}")
    A(f"v_mov_b32 {v(t+2)}, 0")
    for k, (j0, j1) in enumerate(((0,1),(2,3))):
        A(f"v_mov_b32 {v(t+3)}, 0x3f80")
        A(f"v_cmp_eq_u32 vcc, {j0}, {v(t)}")
        A(f"v_cndmask_b32 {v(t+4+k)}, {v(t+2)}, {v(t+3)}, vcc")
        A(f"v_mov_b32 {v(t+3)}, 0x3f800000")
        A(f"v_cmp_eq_u32 vcc, {j1}, {v(t)}")
        A(f"v_cndmask_b32 {v(t+4+k)}, {v(t+4+k)}, {v(t+3)}, vcc")
    for b in range(4):
        A(f"v_cmp_eq_u32 vcc, {b}, {v(t+1)}")
        A(f"v_cndmask_b32 {v(dst+4*b)}, {v(t+2)}, {v(t+4)}, vcc")
        A(f"v_cndmask_b32 {v(dst+4*b+1)}, {v(t+2)}, {v(t+5)}, vcc")
        A(f"v_mov_b32 {v(dst+4*b+2)}, {v(dst+4*b)}")
        A(f"v_mov_b32 {v(dst+4*b+3)}, {v(dst+4*b+1)}")

def partial_offsets(A, vl, vn, vs, base, chkbase, vpub, vchkpub, vga, vgb, vgc, t, sHJ=sHJ, sH=sH):
    A(f"s_lshl_b32 {s(sT0)}, {s(sHJ)}, 10")
    A(f"s_add_u32 {s(sT0)}, {s(sT0)}, {hex(base)}")
    A(f"v_lshl_add_u32 {v(vpub)}, {v(vl)}, 4, {s(sT0)}")
    A(f"s_lshl_b32 {s(sT0)}, {s(sHJ)}, 3")
    A(f"s_add_u32 {s(sT0)}, {s(sT0)}, {hex(chkbase)}")
    A(f"v_mov_b32 {v(vchkpub)}, {s(sT0)}")
    A(f"s_lshl_b32 {s(sT0)}, {s(sH)}, 13")
    A(f"s_add_u32 {s(sT0)}, {s(sT0)}, {hex(base)}")
    A(f"v_lshlrev_b32 {v(t)}, 10, {v(vs)}")
    A(f"v_lshl_add_u32 {v(t)}, {v(vn)}, 4, {v(t)}")
    A(f"v_add_u32 {v(vga)}, {s(sT0)}, {v(t)}")
    A(f"v_add_u32 {v(vgb)}, 4096, {v(vga)}")
    A(f"s_lshl_b32 {s(sT0)}, {s(sH)}, 6")
    A(f"s_add_u32 {s(sT0)}, {s(sT0)}, {hex(chkbase)}")
    A(f"v_lshl_add_u32 {v(t)}, {v(vl)}, 3, {s(sT0)}")
    A(f"v_cmp_gt_u32 {s(sM2,2)}, 8, {v(vl)}")
    A(f"v_mov_b32 {v(t+1)}, 0x7ffffff0")
    A(f"v_cndmask_b32 {v(vgc)}, {v(t+1)}, {v(t)}, {s(sM2,2)}")

def publish_partial(A, dx, dy, pk, vpub, vchkpub, t, fl='sc1', dual=False, defer=False):
    A(f"v_cvt_pk_bf16_f32 {v(pk)}, {v(dx)}, {v(dx+1)}")
    A(f"v_cvt_pk_bf16_f32 {v(pk+1)}, {v(dx+2)}, {v(dx+3)}")
    A(f"v_cvt_pk_bf16_f32 {v(pk+2)}, {v(dy)}, {v(dy+1)}")
    A(f"v_cvt_pk_bf16_f32 {v(pk+3)}, {v(dy+2)}, {v(dy+3)}")
    if dual:
        A(f"buffer_store_dwordx4 {v(pk,4)}, {v(vpub)}, {s(sWS,4)}, 0 offen")
        if not defer: A(f"buffer_store_dwordx4 {v(pk,4)}, {v(vpub)}, {s(sWS,4)}, {s(sDELTA)} offen sc1")
    else:
        A(f"buffer_store_dwordx4 {v(pk,4)}, {v(vpub)}, {s(sWS,4)}, 0 offen {fl}")
    sum_dwords(A, t, [pk, pk+1, pk+2, pk+3])
    wave_sum_u32(A, t, t+2)
    A(f"v_add_u32 {v(t+1)}, {s(sNONCE)}, {v(t)}")
    A(f"s_mov_b64 {s(sEX,2)}, exec")
    A(f"s_mov_b64 exec, 1")
    if dual:
        A(f"buffer_store_dwordx2 {v(t,2)}, {v(vchkpub)}, {s(sWS,4)}, 0 offen")
        if not defer: A(f"buffer_store_dwordx2 {v(t,2)}, {v(vchkpub)}, {s(sWS,4)}, {s(sDELTA)} offen sc1")
    else:
        A(f"buffer_store_dwordx2 {v(t,2)}, {v(vchkpub)}, {s(sWS,4)}, 0 offen {fl}")
    A(f"s_mov_b64 exec, {s(sEX,2)}")
    if dual and defer:
        A(f"v_mov_b32 {v(pk+4)}, {v(t)}")
        A(f"v_mov_b32 {v(pk+5)}, {v(t+1)}")

def global_copy(A, pk, vpub, vchkpub):
    A(f"buffer_store_dwordx4 {v(pk,4)}, {v(vpub)}, {s(sWS,4)}, {s(sDELTA)} offen sc1")
    A(f"s_mov_b64 {s(sEX,2)}, exec")
    A(f"s_mov_b64 exec, 1")
    A(f"buffer_store_dwordx2 {v(pk+4,2)}, {v(vchkpub)}, {s(sWS,4)}, {s(sDELTA)} offen sc1")
    A(f"s_mov_b64 exec, {s(sEX,2)}")

def gather_reduce(A, cfg, name, G, CK, ones, vga, vgb, vgc, dx, dy, t, pk=16, vpub=52, vchkpub=53):
    so = s(sFB) if cfg.dual else "0"
    if cfg.dual: A(f"s_mov_b32 {s(sFB)}, 0")
    lab = poll_head(A, name)
    if cfg.dual:
        if cfg.defer:
            skip = A.newlabel("L_nosw")
            A(f"s_cmp_lg_u32 {s(sCNT)}, {LOCAL_TRIES}")
            A(f"s_cbranch_scc1 {skip}")
            global_copy(A, pk, vpub, vchkpub)
            A.label(skip)
        A(f"s_cmp_ge_u32 {s(sCNT)}, {LOCAL_TRIES}")
        A(f"s_cselect_b32 {s(sFB)}, {s(sDELTA)}, 0")
    for b in range(4):
        A(f"buffer_load_dwordx4 {v(G+8*b,4)}, {v(vga)}, {s(sWS,4)}, {so} offen offset:{256*b} {cfg.local_ld}")
        A(f"buffer_load_dwordx4 {v(G+8*b+4,4)}, {v(vgb)}, {s(sWS,4)}, {so} offen offset:{256*b} {cfg.local_ld}")
    A(f"buffer_load_dwordx2 {v(CK,2)}, {v(vgc)}, {s(sWS,4)}, {so} offen {cfg.local_ld}")
    A(f"s_waitcnt vmcnt(0)")
    sum_dwords(A, t, range(G, G+16))
    sum_dwords(A, t+1, range(G+16, G+32))
    A(f"v_add_u32 {v(t)}, {v(t)}, {v(t+1)}")
    A(f"v_sub_u32 {v(t)}, {v(t)}, {v(CK)}")
    A(f"v_add_u32 {v(t+1)}, {s(sNONCE)}, {v(CK)}")
    A(f"v_cmp_ne_u32 vcc, {v(t+1)}, {v(CK+1)}")
    wave_sum_u32(A, t, t+2)
    A(f"s_and_b64 {s(sM1,2)}, vcc, {s(sM2,2)}")
    A(f"v_cmp_ne_u32 vcc, 0, {v(t)}")
    A(f"s_or_b64 {s(sM1,2)}, {s(sM1,2)}, vcc")
    poll_tail(A, lab, sM1, cfg.poll_sleep)
    if cfg.dual and cfg.defer:
        skip = A.newlabel("L_nocp")
        A(f"s_cmp_ge_u32 {s(sCNT)}, {LOCAL_TRIES}")
        A(f"s_cbranch_scc1 {skip}")
        global_copy(A, pk, vpub, vchkpub)
        A.label(skip)
    for b in range(4):
        w = G + 8*b
        A(f"v_swap_b32 {v(w+2)}, {v(w+4)}")
        A(f"v_swap_b32 {v(w+3)}, {v(w+5)}")
    for b in range(4):
        w = G + 8*b
        c0 = "0" if b == 0 else v(dx,4); c1 = "0" if b == 0 else v(dy,4)
        A(f"v_mfma_f32_16x16x32_bf16 {v(dx,4)}, {v(ones+4*b,4)}, {v(w,4)}, {c0}")
        A(f"v_mfma_f32_16x16x32_bf16 {v(dy,4)}, {v(ones+4*b,4)}, {v(w+4,4)}, {c1}")

def gen(cfg):
    A = Asm()
    NT = " nt" if cfg.nt_tail else ""
    NTKV = " nt" if cfg.nt_kv else ""
    NTWQ = " nt" if cfg.nt_wq else ""
    vL, vN, vS = 0, 1, 2
    vSEL = 4
    A(f"s_cmp_ge_u32 s2, 256")
    A(f"s_cbranch_scc1 L_exit")
    for sr, off in ((sX,0),(sWQ,16),(sWUK,24),(sWS,104),(sKV,8),(sWUV,32),(sWO,40),(sW1,56),(sB1,64),(sW2,72),(sGW,80),(sOUT,88)):
        srd(A, sr, off, 0)
    stamp(A, cfg, 0)
    A(f"v_lshrrev_b32 v4, 6, v0")
    A(f"v_and_b32 {v(vL)}, 63, v0")
    A(f"v_readfirstlane_b32 {s(sW)}, v4")
    A(f"v_and_b32 {v(vN)}, 15, {v(vL)}")
    A(f"v_lshrrev_b32 {v(vS)}, 4, {v(vL)}")
    A(f"v_mov_b32 {v(vFLA)}, {L_FL}")
    A(f"v_lshl_add_u32 v40, {v(vN)}, 2, {v(vFLA)}")
    A(f"v_mov_b32 v41, 0")
    A(f"ds_write_b32 v40, v41")
    A(f"v_mov_b32 v42, -1")
    A(f"v_mov_b32 v43, -1")
    A(f"v_lshlrev_b32 v40, 3, {v(vL)}")
    A(f"v_add_u32 v41, {L_MX}, v40")
    A(f"ds_write_b64 v41, v[42:43]")
    A(f"v_add_u32 v41, {L_CC}, v40")
    A(f"ds_write_b64 v41, v[42:43]")
    A(f"s_and_b32 {s(sXCD)}, s2, 7")
    A(f"s_lshr_b32 {s(sR)}, s2, 3")
    A(f"s_and_b32 {s(sHG)}, {s(sR)}, 1")
    A(f"s_bfe_u32 {s(sJ)}, {s(sR)}, 0x30001")
    A(f"s_lshr_b32 {s(sT0)}, {s(sR)}, 4")
    A(f"s_lshl_b32 {s(sT1)}, {s(sXCD)}, 1")
    A(f"s_add_u32 {s(sT1)}, {s(sT1)}, {s(sT0)}")
    A(f"s_lshl_b32 {s(sT0)}, {s(sHG)}, 4")
    A(f"s_add_u32 {s(sH)}, {s(sT0)}, {s(sT1)}")
    A(f"s_lshl_b32 {s(sHJ)}, {s(sH)}, 3")
    A(f"s_add_u32 {s(sHJ)}, {s(sHJ)}, {s(sJ)}")
    A(f"s_lshr_b32 {s(sB)}, {s(sXCD)}, 1")
    A(f"s_and_b32 {s(sT0)}, {s(sXCD)}, 1")
    A(f"s_lshl_b32 {s(sT0)}, {s(sT0)}, 4")
    A(f"s_lshr_b32 {s(sT1)}, {s(sR)}, 1")
    A(f"s_add_u32 {s(sKC)}, {s(sT0)}, {s(sT1)}")
    for sr, size in ((sX,4096),(sWQ,4<<20),(sWUK,4<<20),(sWS,256<<20),(sKV,16<<20),(sWUV,4<<20),(sWO,4<<20),(sW1,512*2752),(sB1,2752),(sW2,1376*1024),(sGW,1024),(sOUT,4096)):
        srd_fin(A, sr, size)
    A(f"s_mov_b32 {s(sDELTA)}, {hex(LOCAL_DELTA)}")
    A(f"s_waitcnt lgkmcnt(0)")
    A(f"s_barrier")
    A(f"s_cmp_ge_u32 {s(sW)}, 4")
    A(f"s_cbranch_scc1 L_Lpath")
    if cfg.prio: A(f"s_setprio 3")
    vXP, vAF0, vAF1, vQX, vQY, vT = 8, 24, 28, 32, 36, 40
    vWUK, vWQ = 64, 128
    vA0, vA1, vA2 = 40, 41, 42
    vE = 44
    A(f"v_mov_b32 v43, {hex(WS_E)}")
    A(f"buffer_load_dword {v(vE)}, v43, {s(sWS,4)}, 0 offen sc1")
    if cfg.exp == 'kvonly': A(f"s_branch L_Mdone")
    A(f"s_cmp_lg_u32 {s(sW)}, 0")
    A(f"s_cbranch_scc1 L_noq")
    aQG, aQC, aQL, aQE, aQO, aKE, aKO, aPV0, aPV1, aMXR, aMXW, aPR, aPW, aOP0, aOP1, aST = range(8, 24)
    vQG, vQC = 64, 80
    def attn_addresses():
        A(f"s_lshl_b32 {s(sT0)}, {s(sB)}, 1")
        A(f"s_add_u32 {s(sT0)}, {s(sT0)}, {s(sHG)}")
        A(f"s_lshl_b32 {s(sT0)}, {s(sT0)}, 4")
        A(f"s_lshl_b32 {s(sT1)}, {s(sW)}, 2")
        A(f"s_add_u32 {s(sT0)}, {s(sT0)}, {s(sT1)}")
        A(f"s_lshl_b32 {s(sT1)}, {s(sT0)}, 10")
        A(f"s_add_u32 {s(sT1)}, {s(sT1)}, {hex(WS_QA)}")
        A(f"v_lshl_add_u32 {v(aQG)}, {v(vL)}, 4, {s(sT1)}")
        A(f"s_lshl_b32 {s(sT1)}, {s(sT0)}, 6")
        A(f"s_add_u32 {s(sT1)}, {s(sT1)}, {hex(WS_QC)}")
        A(f"v_lshl_add_u32 {v(aQC)}, {v(vL)}, 3, {s(sT1)}")
        A(f"v_cmp_lt_u32 {s(sM0,2)}, {v(vL)}, 32")
        A(f"v_mov_b32 v43, 0x7ffffff0")
        A(f"v_cndmask_b32 {v(aQC)}, v43, {v(aQC)}, {s(sM0,2)}")
        A(f"s_mul_i32 {s(sT1)}, {s(sW)}, {4*PITCH}")
        A(f"s_add_u32 {s(sT1)}, {s(sT1)}, {L_QL}")
        A(f"v_lshl_add_u32 {v(aQL)}, {v(vL)}, 4, {s(sT1)}")
        A(f"s_movk_i32 {s(sT1)}, {PITCH}")
        A(f"v_mul_lo_u32 v44, {v(vN)}, {s(sT1)}")
        A(f"v_lshl_add_u32 v44, {v(vS)}, 8, v44")
        A(f"v_and_b32 v45, 1, {v(vS)}")
        A(f"v_lshlrev_b32 v45, 4, v45")
        A(f"v_add_u32 {v(aQE)}, v44, v45")
        A(f"v_sub_u32 {v(aQO)}, v44, v45")
        A(f"s_mul_i32 {s(sT0)}, {s(sW)}, {32*PITCH}")
        A(f"v_add_u32 {v(aKE)}, {s(sT0)}, {v(aQE)}")
        A(f"v_add_u32 {v(aKO)}, {s(sT0)}, {v(aQO)}")
        A(f"v_add_u32 {v(aQE)}, {L_QL}, {v(aQE)}")
        A(f"v_add_u32 {v(aQO)}, {L_QL}, {v(aQO)}")
        A(f"v_lshrrev_b32 v46, 2, {v(vL)}")
        A(f"v_mul_lo_u32 v46, v46, {s(sT1)}")
        A(f"v_and_b32 v47, 3, {v(vL)}")
        A(f"v_lshl_add_u32 v46, v47, 3, v46")
        A(f"s_lshl_b32 {s(sT0)}, {s(sW)}, 8")
        A(f"v_add_u32 {v(aPV0)}, {s(sT0)}, v46")
        A(f"v_add_u32 {v(aPV1)}, {64*PITCH}, {v(aPV0)}")
        A(f"v_lshlrev_b32 {v(aMXR)}, 4, {v(vN)}")
        A(f"v_add_u32 {v(aMXR)}, {L_MX}, {v(aMXR)}")
        A(f"s_lshl_b32 {s(sT0)}, {s(sW)}, 2")
        A(f"v_add_u32 {v(aMXW)}, {s(sT0)}, {v(aMXR)}")
        A(f"v_lshlrev_b32 {v(aPR)}, 4, {v(vL)}")
        A(f"v_add_u32 {v(aPR)}, {L_PB}, {v(aPR)}")
        A(f"s_lshl_b32 {s(sT0)}, {s(sW)}, 10")
        A(f"v_add_u32 {v(aPW)}, {s(sT0)}, {v(aPR)}")
        A(f"s_lshl_b32 {s(sT0)}, {s(sHG)}, 4")
        A(f"v_add_u32 v48, {s(sT0)}, {v(vN)}")
        A(f"s_lshl_b32 {s(sT0)}, {s(sW)}, 3")
        A(f"s_add_u32 {s(sT0)}, {s(sT0)}, {s(sKC)}")
        if cfg.rot:
            A(f"v_add_u32 v50, {s(sT0)}, v48")
            A(f"v_add_u32 v51, 4, v50")
            A(f"v_and_b32 v50, 31, v50")
            A(f"v_and_b32 v51, 31, v51")
        else:
            A(f"v_mov_b32 v50, {s(sKC)}")
            A(f"v_mov_b32 v51, {s(sKC)}")
        A(f"v_lshlrev_b32 v48, 10, v48")
        A(f"s_lshl_b32 {s(sT0)}, {s(sW)}, 8")
        A(f"s_lshl_b32 {s(sT1)}, {s(sB)}, 5")
        A(f"s_add_u32 {s(sT0)}, {s(sT0)}, {s(sT1)}")
        A(f"v_add_u32 v48, {s(sT0)}, v48")
        A(f"v_add_u32 v50, v48, v50")
        A(f"v_add3_u32 v51, v48, v51, 64")
        A(f"v_add_u32 v51, 64, v51")
        A(f"v_and_b32 v49, 1, {v(vS)}")
        A(f"v_lshlrev_b32 v49, 1, v49")
        A(f"v_lshrrev_b32 v45, 1, {v(vS)}")
        A(f"v_add_u32 v49, v49, v45")
        A(f"v_lshlrev_b32 v49, 4, v49")
        A(f"v_lshl_add_u32 {v(aOP0)}, v50, 7, v49")
        A(f"v_add_u32 {v(aOP0)}, {hex(WS_OP)}, {v(aOP0)}")
        A(f"v_lshl_add_u32 {v(aOP1)}, v51, 7, v49")
        A(f"v_add_u32 {v(aOP1)}, {hex(WS_OP)}, {v(aOP1)}")
        A(f"v_cmp_eq_u32 vcc, 1, {v(vS)}")
        A(f"v_cndmask_b32 v50, v50, v51, vcc")
        A(f"v_lshlrev_b32 v50, 4, v50")
        A(f"v_add_u32 {v(aST)}, {hex(WS_ST)}, v50")
    A(f"v_lshrrev_b32 {v(vA0)}, 2, {v(vN)}")
    A(f"v_lshlrev_b32 {v(vA0)}, 10, {v(vA0)}")
    A(f"v_lshl_add_u32 {v(vA0)}, {v(vS)}, 5, {v(vA0)}")
    A(f"s_lshl_b32 {s(sT0)}, {s(sJ)}, 7")
    A(f"v_add_u32 {v(vA0)}, {s(sT0)}, {v(vA0)}")
    A(f"s_lshl_b32 {s(sT0)}, {s(sJ)}, 19")
    A(f"s_lshl_b32 {s(sT1)}, {s(sH)}, 8")
    A(f"s_add_u32 {s(sT0)}, {s(sT0)}, {s(sT1)}")
    A(f"v_lshlrev_b32 {v(vA1)}, 17, {v(vS)}")
    A(f"v_lshl_add_u32 {v(vA1)}, {v(vN)}, 4, {v(vA1)}")
    A(f"v_add_u32 {v(vA1)}, {s(sT0)}, {v(vA1)}")
    for k in range(2):
        A(f"buffer_load_dwordx4 {v(vXP+4*k,4)}, {v(vA0)}, {s(sX,4)}, 0 offen offset:{16*k}")
    A(f"s_mov_b32 {s(sT2)}, 0")
    for k in range(16):
        A(f"buffer_load_dwordx4 {v(vWQ+4*k,4)}, {v(vA1)}, {s(sWQ,4)}, {s(sT2)} offen{NTWQ}")
        if k < 15: A(f"s_add_u32 {s(sT2)}, {s(sT2)}, 8192")
    A(f"v_lshrrev_b32 {v(vA2)}, 2, {v(vN)}")
    A(f"v_lshlrev_b32 {v(vA2)}, 4, {v(vA2)}")
    A(f"v_and_b32 v43, 3, {v(vN)}")
    A(f"v_add_u32 {v(vA2)}, {v(vA2)}, v43")
    A(f"v_lshlrev_b32 {v(vA2)}, 13, {v(vA2)}")
    A(f"v_lshl_add_u32 {v(vA2)}, {v(vS)}, 4, {v(vA2)}")
    A(f"v_add_u32 {v(vA2)}, {s(sT0)}, {v(vA2)}")
    A(f"s_mov_b32 {s(sT2)}, 0")
    for T in range(4):
        for t in range(4):
            A(f"buffer_load_dwordx4 {v(vWUK+16*T+4*t,4)}, {v(vA2)}, {s(sWUK,4)}, {s(sT2)} offen offset:{64*t}{NTWQ}")
        if T < 3: A(f"s_add_u32 {s(sT2)}, {s(sT2)}, 32768")
    estamp(A, cfg, 3)
    make_sels(A, vN, vSEL, vT)
    vONE, vG1, vCK1 = 192, 208, 240
    make_ones(A, vN, vONE, 46)
    vPUB, vCPUB, vGA, vGB, vGC = 52, 53, 54, 55, 56
    partial_offsets(A, vL, vN, vS, WS_Q1, WS_Q1C, vPUB, vCPUB, vGA, vGB, vGC, 46)
    vQAO, vQCO = 58, 59
    A(f"v_lshl_add_u32 {v(vQAO)}, {v(vN)}, 5, {s(sH)}")
    A(f"v_lshlrev_b32 {v(vQCO)}, 3, {v(vQAO)}")
    A(f"v_add_u32 {v(vQCO)}, {s(sJ)}, {v(vQCO)}")
    A(f"v_lshlrev_b32 {v(vQCO)}, 3, {v(vQCO)}")
    A(f"v_add_u32 {v(vQCO)}, {hex(WS_QC)}, {v(vQCO)}")
    A(f"v_lshlrev_b32 {v(vQAO)}, 10, {v(vQAO)}")
    A(f"v_lshl_add_u32 {v(vQAO)}, {v(vS)}, 5, {v(vQAO)}")
    A(f"s_lshl_b32 {s(sT0)}, {s(sJ)}, 7")
    A(f"s_add_u32 {s(sT0)}, {s(sT0)}, {hex(WS_QA)}")
    A(f"v_add_u32 {v(vQAO)}, {s(sT0)}, {v(vQAO)}")
    NPW = 0
    A(f"s_waitcnt vmcnt({32+NPW})")
    nonce_from(A, vE)
    def _w(t):
        A(f"s_waitcnt vmcnt({16 + 14 - 2*t})")
        if t == 0 and cfg.l_delay and cfg.fw_at == 'wq': arrive(A, FW, 43)
    sel_gemm(A, 8, vXP, vSEL, vAF0, vAF1, vWQ, vQX, vQY, swap=True, wwait=_w)
    publish_partial(A, vQX, vQY, 242, vPUB, vCPUB, 46, cfg.local_st, cfg.dual, cfg.defer)
    stamp(A, cfg, 1)
    if cfg.l_delay and cfg.fw_at == 'pub': arrive(A, FW, 43)
    if cfg.exp == 'kvq': A(f"s_branch L_Mdone")
    if cfg.addr_early: attn_addresses()
    gather_reduce(A, cfg, "L_hop1", vG1, vCK1, vONE, vGA, vGB, vGC, vQX, vQY, 46, 242)
    savecnt(A, cfg, 0)
    if cfg.l_delay and cfg.fw_at == 'hop1': arrive(A, FW, 43)
    estamp(A, cfg, 5)
    A(f"v_cvt_pk_bf16_f32 v60, {v(vQX)}, {v(vQX+1)}")
    A(f"v_cvt_pk_bf16_f32 v61, {v(vQX+2)}, {v(vQX+3)}")
    A(f"v_cvt_pk_bf16_f32 v62, {v(vQY)}, {v(vQY+1)}")
    A(f"v_cvt_pk_bf16_f32 v63, {v(vQY+2)}, {v(vQY+3)}")
    A(f"v_lshlrev_b32 {v(vA0)}, 4, {v(vL)}")
    A(f"v_add_u32 {v(vA0)}, {L_QB}, {v(vA0)}")
    A(f"ds_write_b128 {v(vA0)}, v[60:63]")
    vQF4, vD, vPK = 128, 144, 160
    A(f"v_and_b32 {v(vA0)}, 3, {v(vN)}")
    A(f"v_lshlrev_b32 {v(vA0)}, 8, {v(vA0)}")
    A(f"v_lshl_add_u32 {v(vA0)}, {v(vS)}, 4, {v(vA0)}")
    A(f"v_add_u32 {v(vA0)}, {L_QB}, {v(vA0)}")
    for t in range(4):
        A(f"ds_read_b128 {v(vQF4+4*t,4)}, {v(vA0)} offset:{64*t}")
    for t in range(4):
        A(f"s_waitcnt lgkmcnt({3-t})")
        for T in range(4):
            c = "0" if t == 0 else v(vD+4*T,4)
            A(f"v_mfma_f32_16x16x32_bf16 {v(vD+4*T,4)}, {v(vWUK+16*T+4*t,4)}, {v(vQF4+4*t,4)}, {c}")
    A(f"s_mov_b32 {s(sT0)}, {hex(f2u(SCALE))}")
    for k in range(16):
        A(f"v_mul_f32 {v(vD+k)}, {s(sT0)}, {v(vD+k)}")
    for k in range(8):
        A(f"v_cvt_pk_bf16_f32 {v(vPK+k)}, {v(vD+2*k)}, {v(vD+2*k+1)}")
    if cfg.pw_qa: wait_flag(A, FP1, 1, 43)
    A(f"s_mov_b64 {s(sEX,2)}, exec")
    A(f"s_mov_b32 exec_lo, 0x000f000f")
    A(f"s_mov_b32 exec_hi, 0x000f000f")
    A(f"buffer_store_dwordx4 {v(vPK,4)}, {v(vQAO)}, {s(sWS,4)}, 0 offen sc1")
    A(f"buffer_store_dwordx4 {v(vPK+4,4)}, {v(vQAO)}, {s(sWS,4)}, 0 offen offset:16 sc1")
    A(f"s_mov_b64 exec, {s(sEX,2)}")
    sum_dwords(A, 44, range(vPK, vPK+8))
    xreduce_rows(A, "v_add_u32", 44, 46)
    A(f"v_add_u32 v45, {s(sNONCE)}, v44")
    A(f"s_mov_b64 exec, 0xf")
    A(f"buffer_store_dwordx2 v[44:45], {v(vQCO)}, {s(sWS,4)}, 0 offen sc1")
    A(f"s_mov_b64 exec, {s(sEX,2)}")
    if not cfg.addr_early: attn_addresses()
    A(f"s_branch L_qdone")
    A.label("L_noq")
    if cfg.pw_qa or cfg.pw_fd:
        for k in range(4): A(f"v_mov_b32 {v(60+k)}, 0")
    if cfg.pw_qa:
        A(f"s_cmp_lg_u32 {s(sW)}, 1")
        A(f"s_cbranch_scc1 L_nopw1")
        A(f"v_lshl_add_u32 v58, {v(vN)}, 5, {s(sH)}")
        A(f"v_lshlrev_b32 v59, 3, v58")
        A(f"v_add_u32 v59, {s(sJ)}, v59")
        A(f"v_lshlrev_b32 v59, 3, v59")
        A(f"v_add_u32 v59, {hex(WS_QC)}, v59")
        A(f"v_lshlrev_b32 v58, 10, v58")
        A(f"v_lshl_add_u32 v58, {v(vS)}, 5, v58")
        A(f"s_lshl_b32 {s(sT0)}, {s(sJ)}, 7")
        A(f"s_add_u32 {s(sT0)}, {s(sT0)}, {hex(WS_QA)}")
        A(f"v_add_u32 v58, {s(sT0)}, v58")
        A(f"s_mov_b32 exec_lo, 0x000f000f")
        A(f"s_mov_b32 exec_hi, 0x000f000f")
        A(f"buffer_store_dwordx4 v[60:63], v58, {s(sWS,4)}, 0 offen sc1")
        A(f"buffer_store_dwordx4 v[60:63], v58, {s(sWS,4)}, 0 offen offset:16 sc1")
        A(f"s_mov_b64 exec, 0xf")
        A(f"buffer_store_dwordx2 v[60:61], v59, {s(sWS,4)}, 0 offen sc1")
        A(f"s_mov_b64 exec, -1")
        A(f"s_waitcnt vmcnt(0)")
        arrive(A, FP1, 43)
        A.label("L_nopw1")
    if cfg.pw_fd:
        A(f"s_cmp_lg_u32 {s(sW)}, 2")
        A(f"s_cbranch_scc1 L_nopw2")
        A(f"v_lshrrev_b32 v46, 3, {v(vN)}")
        A(f"v_lshl_add_u32 v46, {v(vS)}, 4, v46")
        A(f"s_lshl_b32 {s(sT0)}, {s(sJ)}, 1")
        A(f"v_add_u32 v46, {s(sT0)}, v46")
        A(f"s_movk_i32 {s(sT1)}, {NSLOT}")
        A(f"v_mul_lo_u32 v46, v46, {s(sT1)}")
        A(f"v_add_u32 v46, {s(sH)}, v46")
        A(f"v_lshlrev_b32 v59, 3, v46")
        A(f"v_add_u32 v59, {hex(WS_FC)}, v59")
        A(f"v_and_b32 v47, 7, {v(vN)}")
        A(f"v_lshlrev_b32 v47, 3, v47")
        A(f"v_lshl_add_u32 v58, v46, 6, v47")
        A(f"v_add_u32 v58, {hex(WS_FD)}, v58")
        A(f"buffer_store_dwordx2 v[60:61], v58, {s(sWS,4)}, 0 offen sc1")
        A(f"s_mov_b32 exec_lo, 0x01010101")
        A(f"s_mov_b32 exec_hi, 0x01010101")
        A(f"buffer_store_dwordx2 v[60:61], v59, {s(sWS,4)}, 0 offen sc1")
        A(f"s_mov_b64 exec, -1")
        A(f"s_waitcnt vmcnt(0)")
        arrive(A, FP2, 43)
        A.label("L_nopw2")
    make_sels(A, vN, vSEL, vT)
    A(f"s_waitcnt vmcnt(0)")
    nonce_from(A, vE)
    attn_addresses()
    A.label("L_qdone")
    stamp(A, cfg, 2)
    if cfg.exp in ('kvq', 'kvq1'): A(f"s_branch L_Mdone")
    NL = 3 if cfg.tail_early else 4
    wait_flag(A, FKV if cfg.wait_kv_first else FKI, NL, 44)
    if cfg.two_stage:
        lab0 = poll_head(A, "L_hop2t")
        A(f"buffer_load_dwordx2 {v(vQC,2)}, {v(aQC)}, {s(sWS,4)}, 0 offen sc1")
        A(f"s_waitcnt vmcnt(0)")
        A(f"v_add_u32 v45, {s(sNONCE)}, {v(vQC)}")
        A(f"v_cmp_ne_u32 vcc, v45, {v(vQC+1)}")
        A(f"s_and_b64 {s(sM1,2)}, vcc, {s(sM0,2)}")
        poll_tail(A, lab0, sM1, cfg.poll_sleep)
        savecnt(A, cfg, 1)
    lab = poll_head(A, "L_hop2")
    for i in range(4):
        A(f"buffer_load_dwordx4 {v(vQG+4*i,4)}, {v(aQG)}, {s(sWS,4)}, 0 offen offset:{1024*i} sc1")
    A(f"buffer_load_dwordx2 {v(vQC,2)}, {v(aQC)}, {s(sWS,4)}, 0 offen sc1")
    A(f"s_waitcnt vmcnt(0)")
    sum_dwords(A, 44, range(vQG, vQG+16))
    A(f"v_sub_u32 v44, v44, {v(vQC)}")
    A(f"v_add_u32 v45, {s(sNONCE)}, {v(vQC)}")
    A(f"v_cmp_ne_u32 vcc, v45, {v(vQC+1)}")
    wave_sum_u32(A, 44, 46)
    A(f"s_and_b64 {s(sM1,2)}, vcc, {s(sM0,2)}")
    A(f"v_cmp_ne_u32 vcc, 0, v44")
    A(f"s_or_b64 {s(sM1,2)}, {s(sM1,2)}, vcc")
    poll_tail(A, lab, sM1, cfg.poll_sleep)
    savecnt(A, cfg, 2)
    for i in range(4):
        A(f"ds_write_b128 {v(aQL)}, {v(vQG+4*i,4)} offset:{PITCH*i}")
    arrive(A, F3, 43)
    stamp(A, cfg, 3)
    wait_flag(A, FKV, NL, 44)
    wait_flag(A, F3, 4, 44)
    stamp(A, cfg, 4)
    vQF, vRING = 64, 128
    vS0, vS1 = 32, 36
    LA = 4
    def qkread(t):
        A(f"ds_read_b128 {v(vQF+4*t,4)}, {v(aQE if t%2==0 else aQO)} offset:{16*t}")
        for tt in range(2):
            slot = (2*t+tt) % 16
            A(f"ds_read_b128 {v(vRING+4*slot,4)}, {v(aKE if t%2==0 else aKO)} offset:{16*t + tt*16*PITCH}")
    for t in range(LA): qkread(t)
    for t in range(16):
        A(f"s_waitcnt lgkmcnt({3*min(LA-1, 15-t)})")
        for tt in range(2):
            slot = (2*t+tt) % 16
            acc = vS0 if tt == 0 else vS1
            A(f"v_mfma_f32_16x16x32_bf16 {v(acc,4)}, {v(vRING+4*slot,4)}, {v(vQF+4*t,4)}, {'0' if t == 0 else v(acc,4)}")
        if t + LA < 16: qkread(t+LA)
    vM = 44
    A(f"v_max3_f32 {v(vM)}, {v(vS0)}, {v(vS0+1)}, {v(vS0+2)}")
    A(f"v_max3_f32 v45, {v(vS0+3)}, {v(vS1)}, {v(vS1+1)}")
    A(f"v_max3_f32 {v(vM)}, {v(vM)}, {v(vS1+2)}, {v(vS1+3)}")
    A(f"v_max_f32 {v(vM)}, {v(vM)}, v45")
    xreduce_rows(A, "v_max_f32", vM, 45)
    A(f"ds_write_b32 {v(aMXW)}, {v(vM)}")
    def sentinel_wait(name, reads, regs):
        lab = A.newlabel(name); done = A.newlabel(name + "d")
        A(f"s_mov_b32 {s(sCNT2)}, 0")
        A.label(lab)
        reads()
        A(f"s_waitcnt lgkmcnt(0)")
        regs = list(regs)
        A(f"v_max3_u32 v47, {v(regs[0])}, {v(regs[1])}, {v(regs[2])}")
        k = 3
        while k + 1 < len(regs):
            A(f"v_max3_u32 v47, v47, {v(regs[k])}, {v(regs[k+1])}"); k += 2
        if k < len(regs): A(f"v_max_u32 v47, v47, {v(regs[k])}")
        A(f"v_cmp_eq_u32 vcc, -1, v47")
        A(f"s_cbranch_vccz {done}")
        A(f"s_add_u32 {s(sCNT2)}, {s(sCNT2)}, 1")
        A(f"s_cmp_lt_u32 {s(sCNT2)}, 2000000")
        A(f"s_cbranch_scc1 {lab}")
        A.label(done)
    sentinel_wait("L_mx", lambda: A(f"ds_read_b128 v[48:51], {v(aMXR)}"), range(48, 52))
    def pvread(k):
        T, g = k // 4, k % 4
        slot = k % 16
        base = aPV0 if g < 2 else aPV1
        off = (32*(g%2))*PITCH + T*32
        A(f"ds_read_b64_tr_b16 {v(vRING+4*slot,2)}, {v(base)} offset:{off}")
        A(f"ds_read_b64_tr_b16 {v(vRING+4*slot+2,2)}, {v(base)} offset:{off+16*PITCH}")
    PRE = 6
    A(f"v_max3_f32 {v(vM)}, v48, v49, v50")
    for k in range(PRE): pvread(k)
    A(f"v_max_f32 {v(vM)}, {v(vM)}, v51")
    for k in range(8):
        A(f"v_sub_f32 {v(vS0+k)}, {v(vS0+k)}, {v(vM)}")
    for k in range(8):
        A(f"v_exp_f32 {v(vS0+k)}, {v(vS0+k)}")
    vLs = 46
    for k in range(4):
        A(f"v_cvt_pk_bf16_f32 {v(52+k)}, {v(vS0+2*k)}, {v(vS0+2*k+1)}")
    A(f"ds_write_b128 {v(aPW)}, v[52:55]")
    A(f"v_add_f32 {v(vLs)}, {v(vS0)}, {v(vS0+1)}")
    A(f"v_add_f32 v47, {v(vS0+2)}, {v(vS0+3)}")
    A(f"v_add_f32 v48, {v(vS0+4)}, {v(vS0+5)}")
    A(f"v_add_f32 v49, {v(vS0+6)}, {v(vS0+7)}")
    A(f"v_add_f32 {v(vLs)}, {v(vLs)}, v47")
    A(f"v_add_f32 v48, v48, v49")
    A(f"v_add_f32 {v(vLs)}, {v(vLs)}, v48")
    xreduce_rows(A, "v_add_f32", vLs, 47)
    A(f"ds_write_b32 {v(aMXW)}, {v(vLs)} offset:{L_LS-L_MX}")
    vPF, vO, vPK = 64, 80, 112
    def _rd():
        A(f"ds_read_b128 v[48:51], {v(aMXR)} offset:{L_LS-L_MX}")
        for g in range(4):
            A(f"ds_read_b128 {v(vPF+4*g,4)}, {v(aPR)} offset:{1024*g}")
    sentinel_wait("L_ls", _rd, range(48, 52))
    nxt = PRE
    outstanding = []
    def issue(k):
        pvread(k); outstanding.extend([("f",k),("f",k)])
    while len(outstanding) + 2 <= 14:
        issue(nxt); nxt += 1
    A(f"v_add_f32 v48, v48, v49")
    A(f"v_add_f32 v50, v50, v51")
    A(f"v_add_f32 v47, v48, v50")
    def post(p):
        for T in (2*p, 2*p+1):
            A(f"v_cvt_pk_bf16_f32 {v(vPK+2*T)}, {v(vO+4*T)}, {v(vO+4*T+1)}")
            A(f"v_cvt_pk_bf16_f32 {v(vPK+2*T+1)}, {v(vO+4*T+2)}, {v(vO+4*T+3)}")
        A(f"v_permlane16_swap_b32 {v(vPK+4*p)}, {v(vPK+4*p+2)}")
        A(f"v_permlane16_swap_b32 {v(vPK+4*p+1)}, {v(vPK+4*p+3)}")
        A(f"buffer_store_dwordx4 {v(vPK+4*p,4)}, {v(aOP0 if p < 2 else aOP1)}, {s(sWS,4)}, 0 offen offset:{64*(p%2)} sc1")
        c = 52 + (p >> 1)
        if p % 2 == 0:
            A(f"v_add3_u32 {v(c)}, {v(vPK+4*p)}, {v(vPK+4*p+1)}, {v(vPK+4*p+2)}")
            A(f"v_add_u32 {v(c)}, {v(c)}, {v(vPK+4*p+3)}")
        else:
            A(f"v_add3_u32 {v(c)}, {v(c)}, {v(vPK+4*p)}, {v(vPK+4*p+1)}")
            A(f"v_add3_u32 {v(c)}, {v(c)}, {v(vPK+4*p+2)}, {v(vPK+4*p+3)}")
    for k in range(32):
        T, g = k//4, k%4
        need_idx = -1
        for idx, o in enumerate(outstanding):
            if o == ("f",k): need_idx = max(need_idx, idx)
        can = nxt < 32 and nxt <= k + 15
        if can:
            need_idx = max(need_idx, len(outstanding) + 2 - 15 - 1)
        if need_idx >= 0:
            n_after = len(outstanding) - 1 - need_idx
            A(f"s_waitcnt lgkmcnt({n_after})")
            del outstanding[:need_idx+1]
        slot = k % 16
        A(f"v_mfma_f32_16x16x32_bf16 {v(vO+4*T,4)}, {v(vRING+4*slot,4)}, {v(vPF+4*g,4)}, {'0' if g == 0 else v(vO+4*T,4)}")
        if can:
            issue(nxt); nxt += 1
        if k in (11, 19, 27): post((k - 11)//8)
    stamp(A, cfg, 5)
    post(3)
    xreduce_rows2(A, "v_add_u32", 52, 54, "v_add_u32", 53, 55)
    A(f"v_cmp_eq_u32 vcc, 1, {v(vS)}")
    A(f"v_mov_b32 v60, {v(vM)}")
    A(f"v_mov_b32 v61, v47")
    A(f"v_cndmask_b32 v62, v52, v53, vcc")
    A(f"v_add3_u32 v63, v60, v61, v62")
    A(f"v_add_u32 v63, {s(sNONCE)}, v63")
    A(f"s_mov_b64 {s(sEX,2)}, exec")
    A(f"s_mov_b32 exec_hi, 0")
    A(f"buffer_store_dwordx4 v[60:63], {v(aST)}, {s(sWS,4)}, 0 offen sc1")
    A(f"s_mov_b64 exec, {s(sEX,2)}")
    arrive(A, FPB, 52)
    stamp(A, cfg, 6)
    vOD, vST = 128, 144
    A(f"s_lshl_b32 {s(sT0)}, {s(sH)}, 3")
    A(f"s_add_u32 {s(sT0)}, {s(sT0)}, {s(sJ)}")
    A(f"s_lshl_b32 {s(sT0)}, {s(sT0)}, 2")
    A(f"s_add_u32 {s(sT0)}, {s(sT0)}, {s(sW)}")
    A(f"s_lshl_b32 {s(sT0)}, {s(sT0)}, 5")
    A(f"s_lshl_b32 {s(sT1)}, {s(sT0)}, 7")
    A(f"s_add_u32 {s(sT1)}, {s(sT1)}, {hex(WS_OP)}")
    A(f"v_lshl_add_u32 v40, {v(vL)}, 4, {s(sT1)}")
    A(f"s_lshl_b32 {s(sT1)}, {s(sT0)}, 4")
    A(f"s_add_u32 {s(sT1)}, {s(sT1)}, {hex(WS_ST)}")
    A(f"v_and_b32 v41, 31, {v(vL)}")
    A(f"v_lshl_add_u32 v41, v41, 4, {s(sT1)}")
    A(f"v_cmp_gt_u32 {s(sM0,2)}, 32, {v(vL)}")
    A(f"v_bfe_u32 v42, {v(vN)}, 2, 1")
    A(f"v_lshl_add_u32 v42, {v(vS)}, 1, v42")
    A(f"v_lshlrev_b32 v42, 2, v42")
    if cfg.two_stage:
        lab0 = poll_head(A, "L_hop3t")
        A(f"buffer_load_dwordx4 {v(vST,4)}, v41, {s(sWS,4)}, 0 offen sc1")
        A(f"s_waitcnt vmcnt(0)")
        A(f"v_add3_u32 v45, {v(vST)}, {v(vST+1)}, {v(vST+2)}")
        A(f"v_add_u32 v45, {s(sNONCE)}, v45")
        A(f"v_cmp_ne_u32 {s(sM1,2)}, v45, {v(vST+3)}")
        poll_tail(A, lab0, sM1, cfg.poll_sleep)
        savecnt(A, cfg, 3)
    lab = poll_head(A, "L_hop3")
    for i in range(4):
        A(f"buffer_load_dwordx4 {v(vOD+4*i,4)}, v40, {s(sWS,4)}, 0 offen offset:{1024*i} sc1")
    A(f"buffer_load_dwordx4 {v(vST,4)}, v41, {s(sWS,4)}, 0 offen sc1")
    A(f"s_waitcnt vmcnt(0)")
    sum_dwords(A, 44, range(vOD, vOD+16))
    A(f"v_cndmask_b32 v45, 0, {v(vST+2)}, {s(sM0,2)}")
    A(f"v_sub_u32 v44, v44, v45")
    A(f"v_add3_u32 v45, {v(vST)}, {v(vST+1)}, {v(vST+2)}")
    A(f"v_add_u32 v45, {s(sNONCE)}, v45")
    A(f"v_cmp_ne_u32 {s(sM1,2)}, v45, {v(vST+3)}")
    wave_sum_u32(A, 44, 46)
    A(f"v_cmp_ne_u32 vcc, 0, v44")
    A(f"s_or_b64 {s(sM1,2)}, {s(sM1,2)}, vcc")
    poll_tail(A, lab, sM1, cfg.poll_sleep)
    savecnt(A, cfg, 4)
    stamp(A, cfg, 7)
    A(f"v_mov_b32 v44, {v(vST)}")
    for d in ("quad_perm:[1,0,3,2]", "quad_perm:[2,3,0,1]", "row_half_mirror", "row_mirror"):
        A(f"v_max_f32_dpp v44, v44, v44 {d} row_mask:0xf bank_mask:0xf")
    A(f"v_mov_b32 v46, v44")
    A(f"v_permlane16_swap_b32 v44, v46")
    A(f"v_max_f32 v44, v44, v46")
    A(f"v_sub_f32 v44, {v(vST)}, v44")
    A(f"v_exp_f32 v44, v44")
    A(f"v_mul_f32 v45, v44, {v(vST+1)}")
    for d in ("quad_perm:[1,0,3,2]", "quad_perm:[2,3,0,1]", "row_half_mirror", "row_mirror"):
        A(f"v_add_f32_dpp v45, v45, v45 {d} row_mask:0xf bank_mask:0xf")
    A(f"v_mov_b32 v46, v45")
    A(f"v_permlane16_swap_b32 v45, v46")
    A(f"v_add_f32 v45, v45, v46")
    A(f"v_rcp_f32 v45, v45")
    A(f"v_mul_f32 v44, v44, v45")
    for k in range(4):
        A(f"ds_bpermute_b32 {v(48+k)}, v42, v44 offset:{32*k}")
    A(f"s_waitcnt lgkmcnt(0)")
    A(f"v_cvt_pk_bf16_f32 v52, v48, v49")
    A(f"v_cvt_pk_bf16_f32 v53, v50, v51")
    for t in range(2):
        sel_gemm_step(A, 52+t, vSEL, vAF0 if t % 2 == 0 else vAF1, vOD+8*t, vQX, vQY, t == 0)
    for k in range(8):
        A(f"v_permlane16_swap_b32 {v(vQX+k)}, {v(56+k)}")
    for k in range(8):
        A(f"v_add_f32_dpp {v(56+k)}, {v(56+k)}, {v(vQX+k)} row_ror:8 row_mask:0xf bank_mask:0xf")
    for k in range(4):
        A(f"v_cvt_pk_bf16_f32 {v(48+k)}, {v(56+2*k)}, {v(56+2*k+1)}")
    A(f"s_lshl_b32 {s(sT0)}, {s(sW)}, 7")
    A(f"s_add_u32 {s(sT0)}, {s(sT0)}, {L_CC}")
    A(f"v_lshl_add_u32 v46, {v(vL)}, 4, {s(sT0)}")
    A(f"s_mov_b64 {s(sEX,2)}, exec")
    A(f"s_mov_b64 exec, 0xff")
    A(f"ds_write_b128 v46, v[48:51]")
    A(f"s_mov_b64 exec, {s(sEX,2)}")
    stamp(A, cfg, 8)
    A(f"s_cmp_ge_u32 s2, 64")
    A(f"s_cbranch_scc1 L_Mdone")
    A(f"s_cmp_lg_u32 {s(sW)}, 0")
    A(f"s_cbranch_scc1 L_Mdone")
    vFD, vFC = 128, 152
    A(f"s_mul_i32 {s(sT0)}, s2, {NSLOT}")
    A(f"s_lshl_b32 {s(sT2)}, {s(sT0)}, 6")
    A(f"s_add_u32 {s(sT2)}, {s(sT2)}, {hex(WS_FD)}")
    A(f"v_lshl_add_u32 v40, {v(vL)}, 4, {s(sT2)}")
    A(f"s_lshl_b32 {s(sT2)}, {s(sT0)}, 3")
    A(f"s_add_u32 {s(sT2)}, {s(sT2)}, {hex(WS_FC)}")
    A(f"v_lshl_add_u32 v41, {v(vL)}, 3, {s(sT2)}")
    A(f"v_mov_b32 v47, 0x7ffffff0")
    NP = 32 if cfg.nomlp else NPROD
    A(f"v_lshrrev_b32 v44, 2, {v(vL)}")
    A(f"v_add_u32 v44, 32, v44")
    A(f"v_cmp_gt_u32 vcc, {NP}, v44")
    A(f"v_add_u32 v46, 2048, v40")
    A(f"v_cndmask_b32 v42, v47, v46, vcc")
    A(f"v_cmp_gt_u32 {s(sM2,2)}, {NP}, {v(vL)}")
    A(f"v_cndmask_b32 v41, v47, v41, {s(sM2,2)}")
    A(f"v_and_b32 v44, 3, {v(vN)}")
    A(f"v_mov_b32 v45, 0")
    for k, (j0, j1) in enumerate(((0,1),(2,3))):
        A(f"v_mov_b32 v46, 0x3f80")
        A(f"v_cmp_eq_u32 vcc, {j0}, v44")
        A(f"v_cndmask_b32 {v(vAF0+k)}, v45, v46, vcc")
        A(f"v_mov_b32 v46, 0x3f800000")
        A(f"v_cmp_eq_u32 vcc, {j1}, v44")
        A(f"v_cndmask_b32 {v(vAF0+k)}, {v(vAF0+k)}, v46, vcc")
    A(f"v_mov_b32 {v(vAF0+2)}, {v(vAF0)}")
    A(f"v_mov_b32 {v(vAF0+3)}, {v(vAF0+1)}")
    for k in range(4): A(f"v_mov_b32 {v(vFD+12+k)}, 0")
    A(f"s_lshl_b32 {s(sT3)}, s2, 6")
    A(f"v_lshl_add_u32 v57, {v(vL)}, 4, {s(sT3)}")
    lab = poll_head(A, "L_hop5")
    for i in range(2):
        A(f"buffer_load_dwordx4 {v(vFD+4*i,4)}, v40, {s(sWS,4)}, 0 offen offset:{1024*i} sc1")
    A(f"buffer_load_dwordx4 {v(vFD+8,4)}, v42, {s(sWS,4)}, 0 offen sc1")
    A(f"buffer_load_dwordx2 {v(vFC,2)}, v41, {s(sWS,4)}, 0 offen sc1")
    A(f"s_waitcnt vmcnt(0)")
    sum_dwords(A, 44, range(vFD, vFD+12))
    A(f"v_sub_u32 v44, v44, {v(vFC)}")
    A(f"v_add_u32 v45, {s(sNONCE)}, {v(vFC)}")
    A(f"v_cmp_ne_u32 vcc, v45, {v(vFC+1)}")
    wave_sum_u32(A, 44, 46)
    A(f"s_and_b64 {s(sM1,2)}, vcc, {s(sM2,2)}")
    A(f"v_cmp_ne_u32 vcc, 0, v44")
    A(f"s_or_b64 {s(sM1,2)}, {s(sM1,2)}, vcc")
    poll_tail(A, lab, sM1, cfg.poll_sleep)
    savecnt(A, cfg, 5)
    stamp(A, cfg, 9)
    for p in range(2):
        w = vFD + 8*p
        A(f"v_swap_b32 {v(w+2)}, {v(w+4)}")
        A(f"v_swap_b32 {v(w+3)}, {v(w+5)}")
    for p in range(2):
        w = vFD + 8*p
        c0 = "0" if p == 0 else v(vQX,4); c1 = "0" if p == 0 else v(vQY,4)
        A(f"v_mfma_f32_16x16x32_bf16 {v(vQX,4)}, {v(vAF0,4)}, {v(w,4)}, {c0}")
        A(f"v_mfma_f32_16x16x32_bf16 {v(vQY,4)}, {v(vAF0,4)}, {v(w+4,4)}, {c1}")
    for d in ("row_ror:4", "row_ror:8"):
        for k in range(8):
            A(f"v_add_f32_dpp {v(vQX+k)}, {v(vQX+k)}, {v(vQX+k)} {d} row_mask:0xf bank_mask:0xf")
    for k in range(4):
        A(f"v_cvt_pk_bf16_f32 {v(48+k)}, {v(vQX+2*k)}, {v(vQX+2*k+1)}")
    A(f"s_mov_b64 exec, 0xf")
    A(f"buffer_store_dwordx4 v[48:51], v57, {s(sOUT,4)}, 0 offen")
    A(f"s_cmp_lg_u32 s2, 0")
    A(f"s_cbranch_scc1 L_Mdone")
    A(f"s_add_u32 {s(sT0)}, {s(sE)}, 1")
    A(f"v_mov_b32 v52, {s(sT0)}")
    A(f"v_mov_b32 v53, {hex(WS_E)}")
    A(f"s_mov_b64 exec, 1")
    A(f"buffer_store_dword v52, v53, {s(sWS,4)}, 0 offen sc1")
    A.label("L_Mdone")
    if cfg.ts:
        A(f"s_mov_b64 exec, -1")
        emit_ts(A, cfg)
    A(f"s_endpgm")
    A.label("L_Lpath")
    vGX, vGW = 64, 80
    vW1, vW2, vB1, vH = 128, 160, 192, 196
    A(f"s_sub_u32 {s(sW)}, {s(sW)}, 4")
    A(f"v_lshlrev_b32 v40, 4, {v(vL)}")
    A(f"v_mov_b32 v43, {hex(WS_E)}")
    if cfg.prefetch_code:
        A(f"s_cmp_lg_u32 {s(sW)}, 3")
        A(f"s_cbranch_scc1 L_nopf")
        A(f"s_getpc_b64 s[66:67]")
        A.label("L_pcref")
        A(f"s_sub_u32 s66, s66, (L_pcref-{KNAME})")
        A(f"s_subb_u32 s67, s67, 0")
        A(f"s_lshl_b32 {s(sT2)}, {s(sR)}, 10")
        A(f"v_lshl_add_u32 v44, {v(vL)}, 7, {s(sT2)}")
        A(f"v_cmp_gt_u32 vcc, (L_end-{KNAME}), v44")
        A(f"v_cmp_gt_u32 {s(sM3,2)}, 8, {v(vL)}")
        A(f"s_and_b64 vcc, vcc, {s(sM3,2)}")
        A(f"s_and_saveexec_b64 {s(sEX,2)}, vcc")
        A(f"s_cbranch_execz L_pfskip")
        A(f"global_load_dword v63, v44, s[66:67]")
        A.label("L_pfskip")
        A(f"s_mov_b64 exec, {s(sEX,2)}")
        A.label("L_nopf")
    if cfg.tlb:
        A(f"s_cmp_lg_u32 {s(sW)}, 2")
        A(f"s_cbranch_scc1 L_notlb")
        st = cfg.tlb
        A(f"v_lshlrev_b32 v44, 16, {v(vL)}")
        A(f"v_add_u32 v45, {hex(WS_OP)}, v44")
        A(f"buffer_load_dword v62, v45, {s(sWS,4)}, 0 offen")
        A(f"v_lshlrev_b32 v45, 15, {v(vL)}")
        A(f"buffer_load_dword v62, v45, {s(sWS,4)}, 0 offen")
        A(f"v_add_u32 v45, {hex(LOCAL_DELTA)}, v45")
        A(f"buffer_load_dword v62, v45, {s(sWS,4)}, 0 offen")
        A(f"buffer_load_dword v62, v44, {s(sWUV,4)}, 0 offen")
        A(f"buffer_load_dword v62, v44, {s(sWO,4)}, 0 offen")
        A(f"buffer_load_dword v62, v44, {s(sW1,4)}, 0 offen")
        A(f"buffer_load_dword v62, v44, {s(sW2,4)}, 0 offen")
        A(f"buffer_load_dword v62, v44, {s(sOUT,4)}, 0 offen")
        A(f"buffer_load_dword v62, v44, {s(sGW,4)}, 0 offen")
        A(f"buffer_load_dword v62, v44, {s(sB1,4)}, 0 offen")
        A.label("L_notlb")
    if cfg.tail_early:
        make_sels(A, vN, vSEL, 44)
        A(f"s_cmp_eq_u32 {s(sW)}, 0")
        A(f"s_cbranch_scc1 L_tail")
        A(f"s_sub_u32 {s(sT2)}, {s(sW)}, 1")
        A(f"s_mul_i32 {s(sT2)}, {s(sT2)}, 43")
        A(f"s_add_u32 {s(sT3)}, {s(sT2)}, 43")
        A(f"s_min_u32 {s(sT3)}, {s(sT3)}, 128")
        A(f"s_lshl_b32 {s(sT0)}, {s(sB)}, 12")
        A(f"s_lshl_b32 {s(sT1)}, {s(sKC)}, 7")
        A(f"s_add_u32 {s(sT0)}, {s(sT0)}, {s(sT1)}")
        A(f"s_add_u32 {s(sT0)}, {s(sT0)}, {s(sT2)}")
        A(f"s_lshl_b32 {s(sT0)}, {s(sT0)}, 10")
        A(f"s_mul_i32 {s(sT1)}, {s(sT2)}, {PITCH}")
        A(f"s_mov_b32 m0, {s(sT1)}")
        A(f"s_mov_b32 {s(sCNT)}, {s(sT2)}")
    else:
        A(f"s_lshl_b32 {s(sT0)}, {s(sB)}, 12")
        A(f"s_lshl_b32 {s(sT1)}, {s(sKC)}, 7")
        A(f"s_add_u32 {s(sT0)}, {s(sT0)}, {s(sT1)}")
        A(f"s_lshl_b32 {s(sT1)}, {s(sW)}, 5")
        A(f"s_add_u32 {s(sT0)}, {s(sT0)}, {s(sT1)}")
        A(f"s_lshl_b32 {s(sT0)}, {s(sT0)}, 10")
        A(f"s_mul_i32 {s(sT1)}, {s(sW)}, {32*PITCH}")
        A(f"s_mov_b32 m0, {s(sT1)}")
        A(f"s_mov_b32 {s(sCNT)}, 0")
    if cfg.l_delay: wait_flag(A, FW, 1, 45)
    if cfg.kvwin0:
        A.label("L_dma0")
        A(f"s_waitcnt vmcnt({cfg.kvwin0-1})")
        A(f"buffer_load_dwordx4 v40, {s(sKV,4)}, {s(sT0)} offen{NTKV} lds")
        A(f"s_add_u32 m0, m0, {PITCH}")
        A(f"s_add_u32 {s(sT0)}, {s(sT0)}, 1024")
        A(f"s_add_u32 {s(sCNT)}, {s(sCNT)}, 1")
        A(f"s_cmp_lt_u32 {s(sCNT)}, {cfg.kvn0}")
        A(f"s_cbranch_scc1 L_dma0")
    A.label("L_dma")
    if cfg.kvwin < 32: A(f"s_waitcnt vmcnt({cfg.kvwin-1})")
    A(f"buffer_load_dwordx4 v40, {s(sKV,4)}, {s(sT0)} offen{NTKV} lds")
    A(f"s_add_u32 m0, m0, {PITCH}")
    A(f"s_add_u32 {s(sT0)}, {s(sT0)}, 1024")
    A(f"s_add_u32 {s(sCNT)}, {s(sCNT)}, 1")
    A(f"s_cmp_lt_u32 {s(sCNT)}, {s(sT3) if cfg.tail_early else 32}")
    A(f"s_cbranch_scc1 L_dma")
    arrive(A, FKI, 45)
    stamp(A, cfg, 2, L=True)
    if not cfg.tail_early: make_sels(A, vN, vSEL, 44)
    if cfg.pw_op:
        A(f"s_cmp_lg_u32 {s(sW)}, 1")
        A(f"s_cbranch_scc1 L_nopw3")
        A(f"s_lshl_b32 {s(sT0)}, {s(sHG)}, 4")
        A(f"v_add_u32 v48, {s(sT0)}, {v(vN)}")
        A(f"v_lshlrev_b32 v48, 10, v48")
        A(f"s_lshl_b32 {s(sT1)}, {s(sB)}, 5")
        A(f"s_add_u32 {s(sT0)}, {s(sT1)}, {s(sKC)}")
        A(f"v_add_u32 v48, {s(sT0)}, v48")
        A(f"v_lshlrev_b32 v49, 4, {v(vS)}")
        A(f"v_lshl_add_u32 v49, v48, 7, v49")
        A(f"v_add_u32 v49, {hex(WS_OP)}, v49")
        A(f"v_lshl_add_u32 v48, {v(vS)}, 7, v48")
        A(f"v_lshlrev_b32 v48, 4, v48")
        A(f"v_add_u32 v48, {hex(WS_ST)}, v48")
        for k in range(4): A(f"v_mov_b32 {v(52+k)}, 0")
        A(f"s_mov_b32 {s(sT2)}, 0")
        for q in range(8):
            for u in range(2):
                A(f"buffer_store_dwordx4 v[52:55], v49, {s(sWS,4)}, {s(sT2)} offen offset:{64*u} sc1")
            if q < 7: A(f"s_add_u32 {s(sT2)}, {s(sT2)}, 16384")
        A(f"s_mov_b32 {s(sT2)}, 0")
        A(f"s_mov_b32 exec_hi, 0")
        for mw in range(4):
            A(f"buffer_store_dwordx4 v[52:55], v48, {s(sWS,4)}, {s(sT2)} offen sc1")
            if mw < 3: A(f"s_add_u32 {s(sT2)}, {s(sT2)}, 4096")
        A(f"s_mov_b64 exec, -1")
        A(f"s_waitcnt vmcnt(20)")
        arrive(A, FKV, 45)
        A(f"s_waitcnt vmcnt(0)")
        arrive(A, FP3, 45)
        A(f"s_branch L_gate")
        A.label("L_nopw3")
    A(f"s_waitcnt vmcnt(0)")
    arrive(A, FKV, 45)
    stamp(A, cfg, 3, L=True)
    if cfg.exp: A(f"s_branch L_Ldone")
    A(f"s_cmp_eq_u32 {s(sW)}, 0")
    A(f"s_cbranch_scc1 L_tail")
    A(f"s_cmp_lg_u32 {s(sW)}, 1")
    A(f"s_cbranch_scc1 L_mlpw")
    A.label("L_gate")
    for b in range(4):
        A(f"buffer_load_dwordx4 {v(vGX+4*b,4)}, v40, {s(sX,4)}, 0 offen offset:{1024*b}")
    A(f"buffer_load_dwordx4 {v(vGW,4)}, v40, {s(sGW,4)}, 0 offen")
    for b in range(4):
        A(f"v_mov_b32 {v(44+b)}, 0")
    A(f"s_waitcnt vmcnt(0)")
    for k in range(4):
        for b in range(4):
            A(f"v_dot2_f32_bf16 {v(44+b)}, {v(vGX+4*b+k)}, {v(vGW+k)}, {v(44+b)}")
    A("s_nop 3")
    for d in ("quad_perm:[1,0,3,2]", "quad_perm:[2,3,0,1]", "row_half_mirror", "row_mirror"):
        for b in range(4):
            A(f"v_add_f32_dpp {v(44+b)}, {v(44+b)}, {v(44+b)} {d} row_mask:0xf bank_mask:0xf")
    xreduce_rows2(A, "v_add_f32", 44, 48, "v_add_f32", 45, 49)
    xreduce_rows2(A, "v_add_f32", 46, 48, "v_add_f32", 47, 49)
    A(f"v_cmp_eq_u32 vcc, 1, {v(vS)}")
    A(f"v_cndmask_b32 v44, v44, v45, vcc")
    A(f"v_cmp_eq_u32 vcc, 2, {v(vS)}")
    A(f"v_cndmask_b32 v44, v44, v46, vcc")
    A(f"v_cmp_eq_u32 vcc, 3, {v(vS)}")
    A(f"v_cndmask_b32 v44, v44, v47, vcc")
    A(f"s_mov_b32 {s(sT0)}, {hex(f2u(-LOG2E))}")
    A(f"v_mul_f32 v44, {s(sT0)}, v44")
    A(f"v_exp_f32 v44, v44")
    A(f"v_add_f32 v44, 1.0, v44")
    A(f"v_rcp_f32 v58, v44")
    A(f"v_lshlrev_b32 v45, 2, {v(vS)}")
    A(f"v_add_u32 v45, {L_G}, v45")
    A(f"ds_write_b32 v45, v58")
    arrive(A, FG, 45)
    A(f"s_branch L_Ldone")
    A.label("L_mlpw")
    A(f"s_cmp_lg_u32 {s(sW)}, 2")
    A(f"s_cbranch_scc1 L_Ldone")
    if cfg.nomlp: A(f"s_branch L_Ldone")
    sNS, sJM, sMHJ = sT3, sT4, sT5
    A(f"s_lshr_b32 {s(sT0)}, {s(sR)}, 3")
    A(f"s_lshl_b32 {s(sT0)}, {s(sT0)}, 3")
    A(f"s_add_u32 {s(sNS)}, {s(sT0)}, {s(sXCD)}")
    A(f"s_cmp_ge_u32 {s(sNS)}, {NMG}")
    A(f"s_cbranch_scc1 L_Ldone")
    A(f"s_and_b32 {s(sJM)}, {s(sR)}, 7")
    A(f"s_lshl_b32 {s(sMHJ)}, {s(sNS)}, 3")
    A(f"s_add_u32 {s(sMHJ)}, {s(sMHJ)}, {s(sJM)}")
    vMX, vMW1, vMW2, vMB1 = 8, 64, 128, 60
    vONE, vG1, vCK1 = 192, 208, 240
    vPUB, vCPUB, vGA, vGB, vGC = 52, 53, 54, 55, 56
    A(f"v_lshrrev_b32 v41, 2, {v(vN)}")
    A(f"v_lshlrev_b32 v41, 10, v41")
    A(f"v_lshl_add_u32 v41, {v(vS)}, 5, v41")
    A(f"s_lshl_b32 {s(sT0)}, {s(sJM)}, 7")
    A(f"v_add_u32 v41, {s(sT0)}, v41")
    A(f"s_lshl_b32 {s(sT0)}, {s(sJM)}, 6")
    A(f"v_lshl_add_u32 v42, {v(vS)}, 4, {s(sT0)}")
    A(f"s_movk_i32 {s(sT1)}, 2752")
    A(f"v_mul_lo_u32 v42, v42, {s(sT1)}")
    A(f"s_lshl_b32 {s(sT0)}, {s(sNS)}, 8")
    A(f"v_lshl_add_u32 v44, {v(vN)}, 4, {s(sT0)}")
    A(f"v_add_u32 v42, v42, v44")
    A(f"v_cmp_gt_u32 vcc, 2752, v44")
    A(f"v_mov_b32 v45, 0x7ffffff0")
    A(f"v_cndmask_b32 v42, v45, v42, vcc")
    A(f"v_cndmask_b32 v44, v45, v44, vcc")
    A(f"s_lshl_b32 {s(sT0)}, {s(sNS)}, 17")
    A(f"s_lshl_b32 {s(sT1)}, {s(sJM)}, 7")
    A(f"s_add_u32 {s(sT0)}, {s(sT0)}, {s(sT1)}")
    A(f"v_lshlrev_b32 v46, 15, {v(vS)}")
    A(f"v_lshl_add_u32 v46, {v(vN)}, 3, v46")
    A(f"v_add_u32 v48, {s(sT0)}, v46")
    if cfg.mlp_w1_flag: wait_flag(A, globals()[cfg.mlp_w1_flag], 4, 46)
    stamp(A, cfg, 4, L=True)
    A(f"buffer_load_dword v40, v43, {s(sWS,4)}, 0 offen sc1")
    for k in range(2):
        A(f"buffer_load_dwordx4 {v(vMX+4*k,4)}, v41, {s(sX,4)}, 0 offen offset:{16*k}")
    A(f"buffer_load_dwordx4 {v(vMB1,4)}, v44, {s(sB1,4)}, 0 offen")
    A(f"s_mov_b32 {s(sT2)}, 0")
    for k in range(16):
        A(f"buffer_load_dwordx4 {v(vMW1+4*k,4)}, v42, {s(sW1,4)}, {s(sT2)} offen{NT}")
        if k < 15: A(f"s_add_u32 {s(sT2)}, {s(sT2)}, 2752")
    A(f"s_mov_b32 {s(sT2)}, 0")
    for k in range(32):
        A(f"buffer_load_dwordx2 {v(vMW2+2*k,2)}, v48, {s(sW2,4)}, {s(sT2)} offen offset:{1024*(k%4)}{NT}")
        if k % 4 == 3 and k < 31: A(f"s_add_u32 {s(sT2)}, {s(sT2)}, 4096")
    make_ones(A, vN, vONE, 46)
    partial_offsets(A, vL, vN, vS, WS_H1, WS_H1C, vPUB, vCPUB, vGA, vGB, vGC, 46, sMHJ, sNS)
    A(f"v_lshrrev_b32 v46, 3, {v(vN)}")
    A(f"v_lshl_add_u32 v46, {v(vS)}, 4, v46")
    A(f"s_lshl_b32 {s(sT0)}, {s(sJM)}, 1")
    A(f"v_add_u32 v46, {s(sT0)}, v46")
    A(f"s_movk_i32 {s(sT1)}, {NSLOT}")
    A(f"v_mul_lo_u32 v46, v46, {s(sT1)}")
    A(f"s_add_u32 {s(sT0)}, {s(sNS)}, 32")
    A(f"v_add_u32 v46, {s(sT0)}, v46")
    A(f"v_lshlrev_b32 v58, 3, v46")
    A(f"v_add_u32 v58, {hex(WS_FC)}, v58")
    A(f"v_and_b32 v49, 7, {v(vN)}")
    A(f"v_lshlrev_b32 v49, 3, v49")
    A(f"v_lshl_add_u32 v57, v46, 6, v49")
    A(f"v_add_u32 v57, {hex(WS_FD)}, v57")
    A(f"v_lshlrev_b32 v41, 4, {v(vL)}")
    A(f"v_add_u32 v41, {L_HR}, v41")
    A(f"v_lshrrev_b32 v42, 2, {v(vN)}")
    A(f"v_lshlrev_b32 v42, 8, v42")
    A(f"v_lshl_add_u32 v42, {v(vS)}, 6, v42")
    A(f"v_add_u32 v42, {L_HR}, v42")
    A(f"s_waitcnt vmcnt(48)")
    nonce_from(A, 40)
    sel_gemm(A, 8, vMX, vSEL, 24, 28, vMW1, 32, 36, swap=True, wwait=lambda t: A(f"s_waitcnt vmcnt({32 + 14 - 2*t})"))
    publish_partial(A, 32, 36, 16, vPUB, vCPUB, 46, cfg.local_st, cfg.dual, cfg.defer)
    stamp(A, cfg, 5, L=True)
    gather_reduce(A, cfg, "L_hopm", vG1, vCK1, vONE, vGA, vGB, vGC, 32, 36, 46)
    stamp(A, cfg, 6, L=True)
    vH, vHa, vHn, vHd = 32, 208, 216, 224
    for e in range(8):
        r = vMB1 + e//2
        if e % 2 == 0: A(f"v_lshlrev_b32 {v(vHa+e)}, 16, {v(r)}")
        else: A(f"v_and_b32 {v(vHa+e)}, 0xffff0000, {v(r)}")
    for e in range(8):
        A(f"v_add_f32 {v(vH+e)}, {v(vH+e)}, {v(vHa+e)}")
    A(f"s_mov_b32 {s(sT0)}, {hex(f2u(-LOG2E))}")
    for e in range(8):
        A(f"v_mul_f32 {v(vHa+e)}, {s(sT0)}, abs({v(vH+e)})")
    for e in range(8):
        A(f"v_exp_f32 {v(vHa+e)}, {v(vHa+e)}")
    for e in range(8):
        a_, h_, n_, d_ = vHa+e, vH+e, vHn+e, vHd+e
        A(f"v_cmp_lt_f32 vcc, 0, {v(h_)}")
        A(f"v_mul_f32 {v(d_)}, {v(a_)}, {v(a_)}")
        A(f"v_cndmask_b32 {v(n_)}, {v(d_)}, 1.0, vcc")
        A(f"v_fma_f32 {v(n_)}, 2.0, {v(a_)}, {v(n_)}")
        A(f"v_cndmask_b32 {v(d_)}, 1.0, {v(d_)}, vcc")
        A(f"v_fma_f32 {v(d_)}, 2.0, {v(d_)}, {v(n_)}")
        A(f"v_rcp_f32 {v(d_)}, {v(d_)}")
        A(f"v_mul_f32 {v(n_)}, {v(n_)}, {v(h_)}")
        A(f"v_mul_f32 {v(h_)}, {v(n_)}, {v(d_)}")
    for k in range(4):
        A(f"v_cvt_pk_bf16_f32 {v(16+k)}, {v(vH+2*k)}, {v(vH+2*k+1)}")
    A(f"ds_write_b128 v41, v[16:19]")
    for k in range(4):
        A(f"ds_read_b128 {v(8+4*k,4)}, v42 offset:{16*k}")
    A(f"v_lshlrev_b32 v45, 2, {v(vS)}")
    A(f"v_add_u32 v45, {L_G}, v45")
    wait_flag(A, FG, 1, 46, lambda: A(f"ds_read_b32 v59, v45"))
    sel_gemm(A, 16, 8, vSEL, 24, 28, vMW2, 32)
    A(f"v_sub_f32 v59, 1.0, v59")
    for k in range(4):
        A(f"v_mul_f32 {v(32+k)}, {v(32+k)}, v59")
    A(f"v_cvt_pk_bf16_f32 v16, v32, v33")
    A(f"v_cvt_pk_bf16_f32 v17, v34, v35")
    A(f"buffer_store_dwordx2 v[16:17], v57, {s(sWS,4)}, 0 offen sc1")
    A(f"v_add_u32 v46, v16, v17")
    for d in ("quad_perm:[1,0,3,2]", "quad_perm:[2,3,0,1]", "row_half_mirror"):
        A(f"v_add_u32_dpp v46, v46, v46 {d} row_mask:0xf bank_mask:0xf")
    A(f"v_add_u32 v47, {s(sNONCE)}, v46")
    A(f"s_mov_b32 exec_lo, 0x01010101")
    A(f"s_mov_b32 exec_hi, 0x01010101")
    A(f"buffer_store_dwordx2 v[46:47], v58, {s(sWS,4)}, 0 offen sc1")
    A(f"s_mov_b64 exec, -1")
    stamp(A, cfg, 7, L=True)
    A(f"s_branch L_Ldone")
    A.label("L_tail")
    vWUV, vWO = 64, 128
    A(f"s_lshl_b32 {s(sT0)}, {s(sJ)}, 19")
    A(f"s_lshl_b32 {s(sT1)}, {s(sH)}, 8")
    A(f"s_add_u32 {s(sT0)}, {s(sT0)}, {s(sT1)}")
    A(f"v_lshlrev_b32 v41, 17, {v(vS)}")
    A(f"v_lshl_add_u32 v41, {v(vN)}, 4, v41")
    A(f"v_add_u32 v41, {s(sT0)}, v41")
    A(f"s_lshl_b32 {s(sT0)}, {s(sH)}, 17")
    A(f"s_lshl_b32 {s(sT1)}, {s(sJ)}, 7")
    A(f"s_add_u32 {s(sT0)}, {s(sT0)}, {s(sT1)}")
    A(f"v_lshlrev_b32 v42, 15, {v(vS)}")
    A(f"v_lshl_add_u32 v42, {v(vN)}, 3, v42")
    A(f"v_add_u32 v42, {s(sT0)}, v42")
    A(f"buffer_load_dword v61, v43, {s(sWS,4)}, 0 offen sc1")
    vPUB, vCPUB, vGA, vGB, vGC = 52, 53, 54, 55, 56
    partial_offsets(A, vL, vN, vS, WS_C1, WS_C1C, vPUB, vCPUB, vGA, vGB, vGC, 46)
    A(f"v_lshrrev_b32 v46, 3, {v(vN)}")
    A(f"v_lshl_add_u32 v46, {v(vS)}, 4, v46")
    A(f"s_lshl_b32 {s(sT0)}, {s(sJ)}, 1")
    A(f"v_add_u32 v46, {s(sT0)}, v46")
    A(f"s_movk_i32 {s(sT1)}, {NSLOT}")
    A(f"v_mul_lo_u32 v46, v46, {s(sT1)}")
    A(f"v_add_u32 v46, {s(sH)}, v46")
    A(f"v_lshlrev_b32 v60, 3, v46")
    A(f"v_add_u32 v60, {hex(WS_FC)}, v60")
    A(f"v_and_b32 v47, 7, {v(vN)}")
    A(f"v_lshlrev_b32 v47, 3, v47")
    A(f"v_lshl_add_u32 v59, v46, 6, v47")
    A(f"v_add_u32 v59, {hex(WS_FD)}, v59")
    if cfg.tail_early:
        if cfg.tail_delay: wait_flag(A, globals()[cfg.tail_delay], 1, 45)
    elif cfg.tail_flag: wait_flag(A, globals()[cfg.tail_flag], 4, 45)
    A(f"s_mov_b32 {s(sT2)}, 0")
    for k in range(16):
        if cfg.tailwin and k >= cfg.tailwin: A(f"s_waitcnt vmcnt({cfg.tailwin-1})")
        A(f"buffer_load_dwordx4 {v(vWUV+4*k,4)}, v41, {s(sWUV,4)}, {s(sT2)} offen{NT}")
        if k < 15: A(f"s_add_u32 {s(sT2)}, {s(sT2)}, 8192")
    def wo_loads():
        A(f"s_mov_b32 {s(sT2)}, 0")
        for k in range(32):
            if cfg.tailwin2 and k % 2 == 0: A(f"s_waitcnt vmcnt({cfg.tailwin2-2})")
            A(f"buffer_load_dwordx2 {v(vWO+2*k,2)}, v62, {s(sWO,4)}, {s(sT2)} offen offset:{1024*(k%4)}{NT}")
            if k % 4 == 3 and k < 31: A(f"s_add_u32 {s(sT2)}, {s(sT2)}, 4096")
    A(f"v_mov_b32 v62, v42")
    if not cfg.wo_flag: wo_loads()
    vONE, vG1, vCK1 = 192, 208, 240
    A(f"s_waitcnt vmcnt({16 if cfg.wo_flag else 48})")
    nonce_from(A, 61)
    A(f"v_lshlrev_b32 v45, 2, {v(vS)}")
    A(f"v_add_u32 v45, {L_G}, v45")
    wait_flag(A, FG, 1, 46, lambda: A(f"ds_read_b32 v58, v45"))
    make_ones(A, vN, vONE, 46)
    A(f"v_lshrrev_b32 v44, 2, {v(vN)}")
    A(f"v_lshlrev_b32 v42, 7, v44")
    A(f"v_lshl_add_u32 v42, {v(vS)}, 5, v42")
    A(f"v_add_u32 v42, {L_CC}, v42")
    A(f"v_lshlrev_b32 v43, 4, {v(vL)}")
    A(f"v_add_u32 v43, {L_CT}, v43")
    A(f"v_lshlrev_b32 v44, 8, v44")
    A(f"v_lshl_add_u32 v44, {v(vS)}, 6, v44")
    A(f"v_add_u32 v44, {L_CT}, v44")
    A(f"s_waitcnt vmcnt({0 if cfg.wo_flag else 32})")
    for t in range(8):
        A(f"v_swap_b32 {v(vWUV+8*t+2)}, {v(vWUV+8*t+4)}")
        A(f"v_swap_b32 {v(vWUV+8*t+3)}, {v(vWUV+8*t+5)}")
    if cfg.wo_flag == 'FPB':
        wait_flag(A, FPB, 4, 45)
        wo_loads()
    if not cfg.wo_flag: A(f"s_waitcnt vmcnt(0)")
    stamp(A, cfg, 4, L=True)
    vCP = 8
    def _rd():
        A(f"ds_read_b128 {v(vCP,4)}, v42")
        A(f"ds_read_b128 {v(vCP+4,4)}, v42 offset:16")
    lab = A.newlabel("L_cc"); done = A.newlabel("L_ccd")
    A(f"s_mov_b32 {s(sCNT2)}, 0")
    A.label(lab)
    _rd()
    A(f"s_waitcnt lgkmcnt(0)")
    A(f"v_max3_u32 v45, {v(vCP)}, {v(vCP+1)}, {v(vCP+2)}")
    A(f"v_max3_u32 v46, {v(vCP+3)}, {v(vCP+4)}, {v(vCP+5)}")
    A(f"v_max3_u32 v45, v45, {v(vCP+6)}, {v(vCP+7)}")
    A(f"v_max_u32 v45, v45, v46")
    A(f"v_cmp_eq_u32 vcc, -1, v45")
    A(f"s_cbranch_vccz {done}")
    A(f"s_add_u32 {s(sCNT2)}, {s(sCNT2)}, 1")
    A(f"s_cmp_lt_u32 {s(sCNT2)}, 4000000")
    A(f"s_cbranch_scc1 {lab}")
    A.label(done)
    stamp(A, cfg, 5, L=True)
    if cfg.wo_flag == 'FCC': wo_loads()
    sel_gemm(A, 8, vCP, vSEL, 24, 28, vWUV, 32, 36)
    publish_partial(A, 32, 36, 16, vPUB, vCPUB, 46, cfg.local_st, cfg.dual, cfg.defer)
    stamp(A, cfg, 6, L=True)
    gather_reduce(A, cfg, "L_hop4", vG1, vCK1, vONE, vGA, vGB, vGC, 32, 36, 46)
    savecnt(A, cfg, 0)
    stamp(A, cfg, 7, L=True)
    A(f"v_cvt_pk_bf16_f32 v16, v32, v33")
    A(f"v_cvt_pk_bf16_f32 v17, v34, v35")
    A(f"v_cvt_pk_bf16_f32 v18, v36, v37")
    A(f"v_cvt_pk_bf16_f32 v19, v38, v39")
    A(f"ds_write_b128 v43, v[16:19]")
    vXP2 = 8
    for k in range(4):
        A(f"ds_read_b128 {v(vXP2+4*k,4)}, v44 offset:{16*k}")
    def _x(t):
        if t % 4 == 0: A(f"s_waitcnt lgkmcnt({3-t//4})")
    sel_gemm(A, 16, vXP2, vSEL, 24, 28, vWO, 32, xwait=_x)
    for k in range(4):
        A(f"v_mul_f32 {v(32+k)}, {v(32+k)}, v58")
    A(f"v_cvt_pk_bf16_f32 v16, v32, v33")
    A(f"v_cvt_pk_bf16_f32 v17, v34, v35")
    if cfg.pw_fd: wait_flag(A, FP2, 1, 45)
    A(f"buffer_store_dwordx2 v[16:17], v59, {s(sWS,4)}, 0 offen sc1")
    A(f"v_add_u32 v46, v16, v17")
    for d in ("quad_perm:[1,0,3,2]", "quad_perm:[2,3,0,1]", "row_half_mirror"):
        A(f"v_add_u32_dpp v46, v46, v46 {d} row_mask:0xf bank_mask:0xf")
    A(f"v_add_u32 v47, {s(sNONCE)}, v46")
    A(f"s_mov_b32 exec_lo, 0x01010101")
    A(f"s_mov_b32 exec_hi, 0x01010101")
    A(f"buffer_store_dwordx2 v[46:47], v60, {s(sWS,4)}, 0 offen sc1")
    A(f"s_mov_b64 exec, -1")
    A.label("L_Ldone")
    if cfg.ts:
        stamp(A, cfg, 1, L=True)
        emit_ts(A, cfg, L=True)
    A.label("L_exit")
    A(f"s_endpgm")
    A.label("L_end")
    lines = hazard.fix(A.l, verbose=True)
    return "\n".join(lines) + "\n"

def emit_ts(A, cfg, L=False):
    A(f"s_waitcnt lgkmcnt(0) vmcnt(0)")
    A(f"s_mov_b64 exec, 0x3ff")
    A(f"v_mbcnt_lo_u32_b32 v0, -1, 0")
    A(f"v_mov_b32 v1, 0")
    for k in range(10):
        A(f"v_mov_b32 v2, {s(sTS+2*k)}")
        A(f"v_cmp_eq_u32 vcc, {k}, v0")
        A(f"v_cndmask_b32 v1, v1, v2, vcc")
    if cfg.cnts:
        A(f"s_mov_b64 exec, 0xffff")
        for k in range(6):
            A(f"v_mov_b32 v2, {s(CNTREG[k])}")
            A(f"v_cmp_eq_u32 vcc, {10+k}, v0")
            A(f"v_cndmask_b32 v1, v1, v2, vcc")
    A(f"s_lshl_b32 {s(sT0)}, s2, 3")
    A(f"s_add_u32 {s(sT0)}, {s(sT0)}, {s(sW)}")
    if L: A(f"s_add_u32 {s(sT0)}, {s(sT0)}, 4")
    A(f"s_lshl_b32 {s(sT0)}, {s(sT0)}, 6")
    A(f"s_add_u32 {s(sT0)}, {s(sT0)}, {hex(WS_DBG)}")
    A(f"v_lshl_add_u32 v2, v0, 2, {s(sT0)}")
    A(f"buffer_store_dword v1, v2, {s(sWS,4)}, 0 offen")

def build(cfg, path):
    body = gen(cfg)
    txt = wrap([(KNAME, body, 256, 102, 256)], [(KNAME, (256,1,1), (512,1,1), LDS_SIZE)])
    open(path, "w").write(txt)
    return path

if __name__ == "__main__":
    import build as B
    cfg = Cfg()
    for a_ in sys.argv[2:]:
        k, val = a_.split("=")
        setattr(cfg, k, eval(val))
    p = build(cfg, sys.argv[1])
    B.build(p, p.replace(".s", ".co"))
    import subprocess
    print(subprocess.run(f"llvm-objdump -d --mcpu=gfx950 {p.replace('.s','.co')} | grep -c '//' ; llvm-readelf -S {p.replace('.s','.co')} | grep -E 'text'", shell=True, capture_output=True, text=True).stdout)
```

```python
import sys; sys.path.insert(0, "dev")
from asmlib import *
import hazard

WS_E = 0
WS_Q1, WS_Q1C = 0x10000, 0x50000
WS_QA, WS_QC = 0x60000, 0x80000
WS_C1, WS_C1C = 0x90000, 0xD0000
WS_FD, WS_FC = 0xE0000, 0x130000
WS_H1, WS_H1C = 0x1C0000, 0x1E0000
WS_ST, WS_OP, WS_DBG = 0x140000, 0x200000, 0x800000
import os
WSBASE = int(os.environ.get('WSBASE', '0'), 0)
for _n in [k for k in list(globals()) if k.startswith('WS_')]: globals()[_n] += WSBASE
PITCH = 1056
L_KV = 0
L_QL = 128 * PITCH
L_MISC = L_QL + 16 * PITCH
L_QB = L_MISC
L_MX = L_MISC + 1024
L_LS = L_MISC + 1280
L_G  = L_MISC + 1536
L_FL = L_MISC + 1600
L_PB = L_MISC + 2048
L_CC = L_MISC + 6144
L_HR = L_MISC + 6656
L_CT = L_MISC + 8704
FKI, FKV, F3, FH2, FT, FPB, FCC, FP1, FP2, FP3, FW, FG = range(12)
LDS_SIZE = L_MISC + 9728
NPROD = 43
NSLOT = 48
NMG = 11
MLP0 = 64
NMLP = 43
HASH_K, HASH_C = 0x9E3779B1, 0x7F4A7C15
SCALE = (128 ** -0.5) * 1.4426950408889634
LOG2E = 1.4426950408889634

sX, sKV, sWQ, sWUK, sWUV, sWO, sW1, sB1, sW2, sGW, sOUT, sWS = 8, 12, 16, 20, 24, 28, 32, 36, 40, 44, 48, 52
sW, sXCD, sR, sHG, sJ, sH, sB, sKC, sNONCE, sE = 56, 57, 58, 59, 60, 61, 62, 63, 64, 65
sT0, sT1, sT2, sT3, sT4, sT5 = 66, 67, 68, 69, 70, 71
sCNT = 72
sCNT2 = 73
sEX = 74
sM0 = 76
sM1 = 78
sTS = 80
sM2, sM3 = 4, 6
CNTREG = [81, 83, 85, 87, 89, 91]
sHJ = 100
sFB, sDELTA = 101, 3
LOCAL_DELTA = 0x600000
LOCAL_TRIES = 8
POLL_MAX = 20000

def f2u(x):
    import struct
    return struct.unpack("<I", struct.pack("<f", x))[0]

class Cfg:
    nt_w = True
    ts = False
    tsmask = 0x3ff
    prio = True
    wait_kv_first = False
    l_after_m = False
    nt_kv = True
    nt_wq = True
    nt_tail = True
    poll_sleep = 0
    early = False
    cnts = False
    tail_after_f3 = True
    kvwin = 7
    kvwin0 = 0
    kvn0 = 8
    l_delay = True
    mlpwin1 = 16
    mlpwin2 = 6
    two_stage = False
    exp = ''
    pw = False
    pw_qa = False
    pw_fd = False
    nomlp = False
    mlp_split = True
    mlp_w1_flag = 'FPB'
    tail_flag = 'F3'
    wo_flag = 'FPB'
    rot = True
    tailwin = 0
    two3 = False
    hop3_ack = True
    hop5_gate = 2
    hop2_gate = True
    hop3_sleep = 0
    hop2_ack = False
    hop5_tags = False
    pubts = False
    tlb = 0
    tail_early = False
    tail_delay = None
    addr_early = True
    fw_at = 'pub'
    tailwin2 = 0
    mlp_w2_flag = 'FCC'
    local_st = 'sc1'
    dual = True
    defer = True
    local_ld = 'sc1'
    pw_op = False
    no_l = False
    stop = None
    prefetch_code = True

def srd(A, sr, karg_off, size):
    A(f"s_load_dwordx2 {s(sr,2)}, s[0:1], {karg_off}")
def srd_fin(A, sr, size):
    A(f"s_mov_b32 {s(sr+2)}, {hex(size)}")
    A(f"s_mov_b32 {s(sr+3)}, 0x20000")

def savecnt(A, cfg, k):
    if cfg.ts and cfg.cnts: A(f"s_mov_b32 {s(CNTREG[k])}, {s(sCNT)}")
def pstamp(A, cfg, k):
    if cfg.ts and cfg.pubts:
        A(f"s_memrealtime {s(sTS+2*k,2)}")
        A(f"s_waitcnt lgkmcnt(0)")
def estamp(A, cfg, k):
    if cfg.ts and cfg.early:
        A(f"s_memrealtime {s(sTS+2*k,2)}")
        A(f"s_waitcnt lgkmcnt(0)")
def stamp(A, cfg, k, L=False):
    if cfg.early and k >= 3 and not L: return
    if cfg.pubts and not L and k in (1,2,3,4,5,6,7,8): return
    if cfg.ts and (cfg.tsmask >> k) & 1:
        A(f"s_memrealtime {s(sTS+2*k,2)}")
        A(f"s_waitcnt lgkmcnt(0)")

vFLA = 3
def arrive(A, f, one, fla=None):
    A(f"v_mov_b32 {v(one)}, 1")
    A(f"s_mov_b64 {s(sEX,2)}, exec")
    A(f"s_mov_b64 exec, 1")
    A(f"ds_add_u32 {v(fla if fla is not None else vFLA)}, {v(one)} offset:{4*f}")
    A(f"s_mov_b64 exec, {s(sEX,2)}")
def wait_flag(A, f, n, tmp, extra=None, fla=None):
    lab = A.newlabel("L_fw"); done = A.newlabel("L_fd")
    A(f"s_mov_b32 {s(sCNT2)}, 0")
    A.label(lab)
    A(f"ds_read_b32 {v(tmp)}, {v(fla if fla is not None else vFLA)} offset:{4*f}")
    if extra: extra()
    A(f"s_waitcnt lgkmcnt(0)")
    A(f"v_cmp_gt_u32 vcc, {n}, {v(tmp)}")
    A(f"s_cbranch_vccz {done}")
    A(f"s_add_u32 {s(sCNT2)}, {s(sCNT2)}, 1")
    A(f"s_cmp_lt_u32 {s(sCNT2)}, 2000000")
    A(f"s_cbranch_scc1 {lab}")
    A.label(done)

def xreduce_rows(A, op, x, tmp):
    A(f"v_mov_b32 {v(tmp)}, {v(x)}")
    A(f"v_permlane16_swap_b32 {v(x)}, {v(tmp)}")
    A(f"{op} {v(x)}, {v(x)}, {v(tmp)}")
    A(f"v_mov_b32 {v(tmp)}, {v(x)}")
    A(f"v_permlane32_swap_b32 {v(x)}, {v(tmp)}")
    A(f"{op} {v(x)}, {v(x)}, {v(tmp)}")

def xreduce_rows2(A, op0, x0, t0, op1, x1, t1):
    for sw in ("v_permlane16_swap_b32", "v_permlane32_swap_b32"):
        A(f"v_mov_b32 {v(t0)}, {v(x0)}")
        A(f"v_mov_b32 {v(t1)}, {v(x1)}")
        A(f"{sw} {v(x0)}, {v(t0)}")
        A(f"{sw} {v(x1)}, {v(t1)}")
        A(f"{op0} {v(x0)}, {v(x0)}, {v(t0)}")
        A(f"{op1} {v(x1)}, {v(x1)}, {v(t1)}")

def wave_sum_u32(A, x, t):
    for d in ("quad_perm:[1,0,3,2]", "quad_perm:[2,3,0,1]", "row_half_mirror", "row_mirror"):
        A(f"v_add_u32_dpp {v(x)}, {v(x)}, {v(x)} {d} row_mask:0xf bank_mask:0xf")
    xreduce_rows(A, "v_add_u32", x, t)

def sum_dwords(A, dst, regs):
    regs = list(regs)
    A(f"v_add3_u32 {v(dst)}, {v(regs[0])}, {v(regs[1])}, {v(regs[2])}")
    k = 3
    while k + 1 < len(regs):
        A(f"v_add3_u32 {v(dst)}, {v(dst)}, {v(regs[k])}, {v(regs[k+1])}"); k += 2
    if k < len(regs):
        A(f"v_add_u32 {v(dst)}, {v(dst)}, {v(regs[k])}")

def make_sels(A, vn, vsel, vt):
    A(f"v_and_b32 {v(vt)}, 3, {v(vn)}")
    A(f"v_mov_b32 {v(vt+1)}, 0x0c0c0c0c")
    pats = [(0, 0x0c0c0100, 1, 0x01000c0c), (2, 0x0c0c0100, 3, 0x01000c0c), (0, 0x0c0c0302, 1, 0x03020c0c), (2, 0x0c0c0302, 3, 0x03020c0c)]
    for k, (j0, p0, j1, p1) in enumerate(pats):
        A(f"v_mov_b32 {v(vt+2)}, {hex(p0)}")
        A(f"v_cmp_eq_u32 vcc, {j0}, {v(vt)}")
        A(f"v_cndmask_b32 {v(vsel+k)}, {v(vt+1)}, {v(vt+2)}, vcc")
        A(f"v_mov_b32 {v(vt+2)}, {hex(p1)}")
        A(f"v_cmp_eq_u32 vcc, {j1}, {v(vt)}")
        A(f"v_cndmask_b32 {v(vsel+k)}, {v(vsel+k)}, {v(vt+2)}, vcc")

def sel_gemm_step(A, xp, vsel, af, wreg, dx, dy, first, swap=True):
    if swap:
        A(f"v_swap_b32 {v(wreg+2)}, {v(wreg+4)}")
        A(f"v_swap_b32 {v(wreg+3)}, {v(wreg+5)}")
    for k in range(4):
        A(f"v_perm_b32 {v(af+k)}, {v(xp)}, {v(xp)}, {v(vsel+k)}")
    c0 = "0" if first else v(dx,4)
    c1 = "0" if first else v(dy,4)
    A(f"v_mfma_f32_16x16x32_bf16 {v(dx,4)}, {v(af,4)}, {v(wreg,4)}, {c0}")
    A(f"v_mfma_f32_16x16x32_bf16 {v(dy,4)}, {v(af,4)}, {v(wreg+4,4)}, {c1}")

def sel_gemm(A, n, xp, vsel, af0, af1, w, dx, dy=None, swap=False, wwait=None, xwait=None):
    st = 8 if dy is not None else 4
    def perms(t):
        if xwait: xwait(t)
        af = af0 if t % 2 == 0 else af1
        for k in range(4):
            A(f"v_perm_b32 {v(af+k)}, {v(xp+t)}, {v(xp+t)}, {v(vsel+k)}")
    perms(0)
    for t in range(n):
        if wwait: wwait(t)
        wr = w + st*t
        if swap:
            A(f"v_swap_b32 {v(wr+2)}, {v(wr+4)}")
            A(f"v_swap_b32 {v(wr+3)}, {v(wr+5)}")
        if t + 1 < n: perms(t+1)
        af = af0 if t % 2 == 0 else af1
        A(f"v_mfma_f32_16x16x32_bf16 {v(dx,4)}, {v(af,4)}, {v(wr,4)}, {'0' if t == 0 else v(dx,4)}")
        if dy is not None:
            A(f"v_mfma_f32_16x16x32_bf16 {v(dy,4)}, {v(af,4)}, {v(wr+4,4)}, {'0' if t == 0 else v(dy,4)}")

def poll_head(A, name):
    lab = A.newlabel(name)
    A(f"s_mov_b32 {s(sCNT)}, 0")
    A.label(lab)
    return lab
def poll_tail(A, lab, bad_pair, sleep=0):
    done = A.newlabel("done")
    A(f"s_cmp_eq_u64 {s(bad_pair,2)}, 0")
    A(f"s_cbranch_scc1 {done}")
    if sleep: A(f"s_sleep {sleep}")
    A(f"s_add_u32 {s(sCNT)}, {s(sCNT)}, 1")
    A(f"s_cmp_lt_u32 {s(sCNT)}, {POLL_MAX}")
    A(f"s_cbranch_scc1 {lab}")
    A.label(done)

def publish_final(A, cfg, dx, dy, vscale, vprod_off, vchk_off, pk, t):
    for k in range(4):
        A(f"v_mul_f32 {v(dx+k)}, {v(dx+k)}, {v(vscale)}")
        A(f"v_mul_f32 {v(dy+k)}, {v(dy+k)}, {v(vscale)}")
    A(f"v_cvt_pk_bf16_f32 {v(pk)}, {v(dx)}, {v(dx+1)}")
    A(f"v_cvt_pk_bf16_f32 {v(pk+1)}, {v(dx+2)}, {v(dx+3)}")
    A(f"v_cvt_pk_bf16_f32 {v(pk+2)}, {v(dy)}, {v(dy+1)}")
    A(f"v_cvt_pk_bf16_f32 {v(pk+3)}, {v(dy+2)}, {v(dy+3)}")
    A(f"buffer_store_dwordx4 {v(pk,4)}, {v(vprod_off)}, {s(sWS,4)}, 0 offen sc1")
    sum_dwords(A, t, [pk, pk+1, pk+2, pk+3])
    A(f"v_add_u32_dpp {v(t)}, {v(t)}, {v(t)} quad_perm:[1,0,3,2] row_mask:0xf bank_mask:0xf")
    A(f"v_add_u32_dpp {v(t)}, {v(t)}, {v(t)} quad_perm:[2,3,0,1] row_mask:0xf bank_mask:0xf")
    A(f"v_add_u32 {v(t+1)}, {s(sNONCE)}, {v(t)}")
    A(f"s_mov_b64 {s(sEX,2)}, exec")
    A(f"s_mov_b32 exec_lo, 0x11111111")
    A(f"s_mov_b32 exec_hi, 0x11111111")
    A(f"buffer_store_dwordx2 {v(t,2)}, {v(vchk_off)}, {s(sWS,4)}, 0 offen sc1")
    A(f"s_mov_b64 exec, {s(sEX,2)}")

def final_offsets(A, vn, vq, s_ct, s_prod, voff, vchk, t):
    A(f"v_lshrrev_b32 {v(t)}, 2, {v(vn)}")
    A(f"v_lshl_add_u32 {v(t)}, {v(vq)}, 4, {v(t)}")
    A(f"s_lshl_b32 {s(sT0)}, {s(s_ct)}, 2")
    A(f"v_add_u32 {v(t)}, {s(sT0)}, {v(t)}")
    A(f"s_movk_i32 {s(sT1)}, {NSLOT}")
    A(f"v_mul_lo_u32 {v(t)}, {v(t)}, {s(sT1)}")
    A(f"v_add_u32 {v(t)}, {s(s_prod)}, {v(t)}")
    A(f"v_lshlrev_b32 {v(vchk)}, 3, {v(t)}")
    A(f"v_add_u32 {v(vchk)}, {hex(WS_FC)}, {v(vchk)}")
    A(f"v_and_b32 {v(t+1)}, 3, {v(vn)}")
    A(f"v_lshlrev_b32 {v(t+1)}, 4, {v(t+1)}")
    A(f"v_lshl_add_u32 {v(voff)}, {v(t)}, 6, {v(t+1)}")
    A(f"v_add_u32 {v(voff)}, {hex(WS_FD)}, {v(voff)}")


def nonce_from(A, vreg):
    A(f"v_readfirstlane_b32 {s(sE)}, {v(vreg)}")
    A(f"s_mul_i32 {s(sNONCE)}, {s(sE)}, {hex(HASH_K)}")
    A(f"s_add_u32 {s(sNONCE)}, {s(sNONCE)}, {hex(HASH_C)}")

def make_ones(A, vn, dst, t):
    A(f"v_and_b32 {v(t)}, 3, {v(vn)}")
    A(f"v_lshrrev_b32 {v(t+1)}, 2, {v(vn)}")
    A(f"v_mov_b32 {v(t+2)}, 0")
    for k, (j0, j1) in enumerate(((0,1),(2,3))):
        A(f"v_mov_b32 {v(t+3)}, 0x3f80")
        A(f"v_cmp_eq_u32 vcc, {j0}, {v(t)}")
        A(f"v_cndmask_b32 {v(t+4+k)}, {v(t+2)}, {v(t+3)}, vcc")
        A(f"v_mov_b32 {v(t+3)}, 0x3f800000")
        A(f"v_cmp_eq_u32 vcc, {j1}, {v(t)}")
        A(f"v_cndmask_b32 {v(t+4+k)}, {v(t+4+k)}, {v(t+3)}, vcc")
    for b in range(4):
        A(f"v_cmp_eq_u32 vcc, {b}, {v(t+1)}")
        A(f"v_cndmask_b32 {v(dst+4*b)}, {v(t+2)}, {v(t+4)}, vcc")
        A(f"v_cndmask_b32 {v(dst+4*b+1)}, {v(t+2)}, {v(t+5)}, vcc")
        A(f"v_mov_b32 {v(dst+4*b+2)}, {v(dst+4*b)}")
        A(f"v_mov_b32 {v(dst+4*b+3)}, {v(dst+4*b+1)}")

def partial_offsets(A, vl, vn, vs, base, chkbase, vpub, vchkpub, vga, vgb, vgc, t, sHJ=sHJ, sH=sH):
    A(f"s_lshl_b32 {s(sT0)}, {s(sHJ)}, 10")
    A(f"s_add_u32 {s(sT0)}, {s(sT0)}, {hex(base)}")
    A(f"v_lshl_add_u32 {v(vpub)}, {v(vl)}, 4, {s(sT0)}")
    A(f"s_lshl_b32 {s(sT0)}, {s(sHJ)}, 3")
    A(f"s_add_u32 {s(sT0)}, {s(sT0)}, {hex(chkbase)}")
    A(f"v_mov_b32 {v(vchkpub)}, {s(sT0)}")
    A(f"s_lshl_b32 {s(sT0)}, {s(sH)}, 13")
    A(f"s_add_u32 {s(sT0)}, {s(sT0)}, {hex(base)}")
    A(f"v_lshlrev_b32 {v(t)}, 10, {v(vs)}")
    A(f"v_lshl_add_u32 {v(t)}, {v(vn)}, 4, {v(t)}")
    A(f"v_add_u32 {v(vga)}, {s(sT0)}, {v(t)}")
    A(f"v_add_u32 {v(vgb)}, 4096, {v(vga)}")
    A(f"s_lshl_b32 {s(sT0)}, {s(sH)}, 6")
    A(f"s_add_u32 {s(sT0)}, {s(sT0)}, {hex(chkbase)}")
    A(f"v_lshl_add_u32 {v(t)}, {v(vl)}, 3, {s(sT0)}")
    A(f"v_cmp_gt_u32 {s(sM2,2)}, 8, {v(vl)}")
    A(f"v_mov_b32 {v(t+1)}, 0x7ffffff0")
    A(f"v_cndmask_b32 {v(vgc)}, {v(t+1)}, {v(t)}, {s(sM2,2)}")

def publish_partial(A, dx, dy, pk, vpub, vchkpub, t, fl='sc1', dual=False, defer=False):
    A(f"v_cvt_pk_bf16_f32 {v(pk)}, {v(dx)}, {v(dx+1)}")
    A(f"v_cvt_pk_bf16_f32 {v(pk+1)}, {v(dx+2)}, {v(dx+3)}")
    A(f"v_cvt_pk_bf16_f32 {v(pk+2)}, {v(dy)}, {v(dy+1)}")
    A(f"v_cvt_pk_bf16_f32 {v(pk+3)}, {v(dy+2)}, {v(dy+3)}")
    if dual:
        A(f"buffer_store_dwordx4 {v(pk,4)}, {v(vpub)}, {s(sWS,4)}, 0 offen")
        if not defer: A(f"buffer_store_dwordx4 {v(pk,4)}, {v(vpub)}, {s(sWS,4)}, {s(sDELTA)} offen sc1")
    else:
        A(f"buffer_store_dwordx4 {v(pk,4)}, {v(vpub)}, {s(sWS,4)}, 0 offen {fl}")
    sum_dwords(A, t, [pk, pk+1, pk+2, pk+3])
    wave_sum_u32(A, t, t+2)
    A(f"v_add_u32 {v(t+1)}, {s(sNONCE)}, {v(t)}")
    A(f"s_mov_b64 {s(sEX,2)}, exec")
    A(f"s_mov_b64 exec, 1")
    if dual:
        A(f"buffer_store_dwordx2 {v(t,2)}, {v(vchkpub)}, {s(sWS,4)}, 0 offen")
        if not defer: A(f"buffer_store_dwordx2 {v(t,2)}, {v(vchkpub)}, {s(sWS,4)}, {s(sDELTA)} offen sc1")
    else:
        A(f"buffer_store_dwordx2 {v(t,2)}, {v(vchkpub)}, {s(sWS,4)}, 0 offen {fl}")
    A(f"s_mov_b64 exec, {s(sEX,2)}")
    if dual and defer:
        A(f"v_mov_b32 {v(pk+4)}, {v(t)}")
        A(f"v_mov_b32 {v(pk+5)}, {v(t+1)}")

def global_copy(A, pk, vpub, vchkpub):
    A(f"buffer_store_dwordx4 {v(pk,4)}, {v(vpub)}, {s(sWS,4)}, {s(sDELTA)} offen sc1")
    A(f"s_mov_b64 {s(sEX,2)}, exec")
    A(f"s_mov_b64 exec, 1")
    A(f"buffer_store_dwordx2 {v(pk+4,2)}, {v(vchkpub)}, {s(sWS,4)}, {s(sDELTA)} offen sc1")
    A(f"s_mov_b64 exec, {s(sEX,2)}")

def gather_reduce(A, cfg, name, G, CK, ones, vga, vgb, vgc, dx, dy, t, pk=16, vpub=52, vchkpub=53):
    so = s(sFB) if cfg.dual else "0"
    if cfg.dual: A(f"s_mov_b32 {s(sFB)}, 0")
    lab = poll_head(A, name)
    if cfg.dual:
        if cfg.defer:
            skip = A.newlabel("L_nosw")
            A(f"s_cmp_lg_u32 {s(sCNT)}, {LOCAL_TRIES}")
            A(f"s_cbranch_scc1 {skip}")
            global_copy(A, pk, vpub, vchkpub)
            A.label(skip)
        A(f"s_cmp_ge_u32 {s(sCNT)}, {LOCAL_TRIES}")
        A(f"s_cselect_b32 {s(sFB)}, {s(sDELTA)}, 0")
    for b in range(4):
        A(f"buffer_load_dwordx4 {v(G+8*b,4)}, {v(vga)}, {s(sWS,4)}, {so} offen offset:{256*b} {cfg.local_ld}")
        A(f"buffer_load_dwordx4 {v(G+8*b+4,4)}, {v(vgb)}, {s(sWS,4)}, {so} offen offset:{256*b} {cfg.local_ld}")
    A(f"buffer_load_dwordx2 {v(CK,2)}, {v(vgc)}, {s(sWS,4)}, {so} offen {cfg.local_ld}")
    A(f"s_waitcnt vmcnt(0)")
    sum_dwords(A, t, range(G, G+16))
    sum_dwords(A, t+1, range(G+16, G+32))
    A(f"v_add_u32 {v(t)}, {v(t)}, {v(t+1)}")
    A(f"v_sub_u32 {v(t)}, {v(t)}, {v(CK)}")
    A(f"v_add_u32 {v(t+1)}, {s(sNONCE)}, {v(CK)}")
    A(f"v_cmp_ne_u32 vcc, {v(t+1)}, {v(CK+1)}")
    wave_sum_u32(A, t, t+2)
    A(f"s_and_b64 {s(sM1,2)}, vcc, {s(sM2,2)}")
    A(f"v_cmp_ne_u32 vcc, 0, {v(t)}")
    A(f"s_or_b64 {s(sM1,2)}, {s(sM1,2)}, vcc")
    poll_tail(A, lab, sM1, cfg.poll_sleep)
    if cfg.dual and cfg.defer:
        skip = A.newlabel("L_nocp")
        A(f"s_cmp_ge_u32 {s(sCNT)}, {LOCAL_TRIES}")
        A(f"s_cbranch_scc1 {skip}")
        global_copy(A, pk, vpub, vchkpub)
        A.label(skip)
    for b in range(4):
        w = G + 8*b
        A(f"v_swap_b32 {v(w+2)}, {v(w+4)}")
        A(f"v_swap_b32 {v(w+3)}, {v(w+5)}")
    for b in range(4):
        w = G + 8*b
        c0 = "0" if b == 0 else v(dx,4); c1 = "0" if b == 0 else v(dy,4)
        A(f"v_mfma_f32_16x16x32_bf16 {v(dx,4)}, {v(ones+4*b,4)}, {v(w,4)}, {c0}")
        A(f"v_mfma_f32_16x16x32_bf16 {v(dy,4)}, {v(ones+4*b,4)}, {v(w+4,4)}, {c1}")

def gen(cfg):
    A = Asm()
    NT = " nt" if cfg.nt_tail else ""
    NTKV = " nt" if cfg.nt_kv else ""
    NTWQ = " nt" if cfg.nt_wq else ""
    vL, vN, vS = 0, 1, 2
    vSEL = 4
    A(f"s_cmp_ge_u32 s2, 256")
    A(f"s_cbranch_scc1 L_exit")
    for sr, off in ((sX,0),(sWQ,16),(sWUK,24),(sWS,104),(sKV,8),(sWUV,32),(sWO,40),(sW1,56),(sB1,64),(sW2,72),(sGW,80),(sOUT,88)):
        srd(A, sr, off, 0)
    stamp(A, cfg, 0)
    A(f"v_lshrrev_b32 v4, 6, v0")
    A(f"v_and_b32 {v(vL)}, 63, v0")
    A(f"v_readfirstlane_b32 {s(sW)}, v4")
    A(f"v_and_b32 {v(vN)}, 15, {v(vL)}")
    A(f"v_lshrrev_b32 {v(vS)}, 4, {v(vL)}")
    A(f"v_mov_b32 {v(vFLA)}, {L_FL}")
    A(f"v_lshl_add_u32 v40, {v(vN)}, 2, {v(vFLA)}")
    A(f"v_mov_b32 v41, 0")
    A(f"ds_write_b32 v40, v41")
    A(f"v_mov_b32 v42, -1")
    A(f"v_mov_b32 v43, -1")
    A(f"v_lshlrev_b32 v40, 3, {v(vL)}")
    A(f"v_add_u32 v41, {L_MX}, v40")
    A(f"ds_write_b64 v41, v[42:43]")
    A(f"v_add_u32 v41, {L_CC}, v40")
    A(f"ds_write_b64 v41, v[42:43]")
    A(f"s_and_b32 {s(sXCD)}, s2, 7")
    A(f"s_lshr_b32 {s(sR)}, s2, 3")
    A(f"s_and_b32 {s(sHG)}, {s(sR)}, 1")
    A(f"s_bfe_u32 {s(sJ)}, {s(sR)}, 0x30001")
    A(f"s_lshr_b32 {s(sT0)}, {s(sR)}, 4")
    A(f"s_lshl_b32 {s(sT1)}, {s(sXCD)}, 1")
    A(f"s_add_u32 {s(sT1)}, {s(sT1)}, {s(sT0)}")
    A(f"s_lshl_b32 {s(sT0)}, {s(sHG)}, 4")
    A(f"s_add_u32 {s(sH)}, {s(sT0)}, {s(sT1)}")
    A(f"s_lshl_b32 {s(sHJ)}, {s(sH)}, 3")
    A(f"s_add_u32 {s(sHJ)}, {s(sHJ)}, {s(sJ)}")
    A(f"s_lshr_b32 {s(sB)}, {s(sXCD)}, 1")
    A(f"s_and_b32 {s(sT0)}, {s(sXCD)}, 1")
    A(f"s_lshl_b32 {s(sT0)}, {s(sT0)}, 4")
    A(f"s_lshr_b32 {s(sT1)}, {s(sR)}, 1")
    A(f"s_add_u32 {s(sKC)}, {s(sT0)}, {s(sT1)}")
    for sr, size in ((sX,4096),(sWQ,4<<20),(sWUK,4<<20),(sWS,256<<20),(sKV,16<<20),(sWUV,4<<20),(sWO,4<<20),(sW1,512*2752),(sB1,2752),(sW2,1376*1024),(sGW,1024),(sOUT,4096)):
        srd_fin(A, sr, size)
    A(f"s_mov_b32 {s(sDELTA)}, {hex(LOCAL_DELTA)}")
    A(f"s_waitcnt lgkmcnt(0)")
    A(f"s_barrier")
    A(f"s_cmp_ge_u32 {s(sW)}, 4")
    A(f"s_cbranch_scc1 L_Lpath")
    if cfg.prio: A(f"s_setprio 3")
    vXP, vAF0, vAF1, vQX, vQY, vT = 8, 24, 28, 32, 36, 40
    vWUK, vWQ = 64, 128
    vA0, vA1, vA2 = 40, 41, 42
    vE = 44
    A(f"v_mov_b32 v43, {hex(WS_E)}")
    A(f"buffer_load_dword {v(vE)}, v43, {s(sWS,4)}, 0 offen sc1")
    if cfg.exp == 'kvonly': A(f"s_branch L_Mdone")
    A(f"s_cmp_lg_u32 {s(sW)}, 0")
    A(f"s_cbranch_scc1 L_noq")
    aQG, aQC, aQL, aQE, aQO, aKE, aKO, aPV0, aPV1, aMXR, aMXW, aPR, aPW, aOP0, aOP1, aST = range(8, 24)
    vQG, vQC = 64, 80
    def attn_addresses():
        A(f"s_lshl_b32 {s(sT0)}, {s(sB)}, 1")
        A(f"s_add_u32 {s(sT0)}, {s(sT0)}, {s(sHG)}")
        A(f"s_lshl_b32 {s(sT0)}, {s(sT0)}, 4")
        A(f"s_lshl_b32 {s(sT1)}, {s(sW)}, 2")
        A(f"s_add_u32 {s(sT0)}, {s(sT0)}, {s(sT1)}")
        A(f"s_lshl_b32 {s(sT1)}, {s(sT0)}, 10")
        A(f"s_add_u32 {s(sT1)}, {s(sT1)}, {hex(WS_QA)}")
        A(f"v_lshl_add_u32 {v(aQG)}, {v(vL)}, 4, {s(sT1)}")
        A(f"s_lshl_b32 {s(sT1)}, {s(sT0)}, 6")
        A(f"s_add_u32 {s(sT1)}, {s(sT1)}, {hex(WS_QC)}")
        A(f"v_lshl_add_u32 {v(aQC)}, {v(vL)}, 3, {s(sT1)}")
        A(f"v_cmp_lt_u32 {s(sM0,2)}, {v(vL)}, 32")
        A(f"v_mov_b32 v43, 0x7ffffff0")
        A(f"v_cndmask_b32 {v(aQC)}, v43, {v(aQC)}, {s(sM0,2)}")
        A(f"s_mul_i32 {s(sT1)}, {s(sW)}, {4*PITCH}")
        A(f"s_add_u32 {s(sT1)}, {s(sT1)}, {L_QL}")
        A(f"v_lshl_add_u32 {v(aQL)}, {v(vL)}, 4, {s(sT1)}")
        A(f"s_movk_i32 {s(sT1)}, {PITCH}")
        A(f"v_mul_lo_u32 v44, {v(vN)}, {s(sT1)}")
        A(f"v_lshl_add_u32 v44, {v(vS)}, 8, v44")
        A(f"v_and_b32 v45, 1, {v(vS)}")
        A(f"v_lshlrev_b32 v45, 4, v45")
        A(f"v_add_u32 {v(aQE)}, v44, v45")
        A(f"v_sub_u32 {v(aQO)}, v44, v45")
        A(f"s_mul_i32 {s(sT0)}, {s(sW)}, {32*PITCH}")
        A(f"v_add_u32 {v(aKE)}, {s(sT0)}, {v(aQE)}")
        A(f"v_add_u32 {v(aKO)}, {s(sT0)}, {v(aQO)}")
        A(f"v_add_u32 {v(aQE)}, {L_QL}, {v(aQE)}")
        A(f"v_add_u32 {v(aQO)}, {L_QL}, {v(aQO)}")
        A(f"v_lshrrev_b32 v46, 2, {v(vL)}")
        A(f"v_mul_lo_u32 v46, v46, {s(sT1)}")
        A(f"v_and_b32 v47, 3, {v(vL)}")
        A(f"v_lshl_add_u32 v46, v47, 3, v46")
        A(f"s_lshl_b32 {s(sT0)}, {s(sW)}, 8")
        A(f"v_add_u32 {v(aPV0)}, {s(sT0)}, v46")
        A(f"v_add_u32 {v(aPV1)}, {64*PITCH}, {v(aPV0)}")
        A(f"v_lshlrev_b32 {v(aMXR)}, 4, {v(vN)}")
        A(f"v_add_u32 {v(aMXR)}, {L_MX}, {v(aMXR)}")
        A(f"s_lshl_b32 {s(sT0)}, {s(sW)}, 2")
        A(f"v_add_u32 {v(aMXW)}, {s(sT0)}, {v(aMXR)}")
        A(f"v_lshlrev_b32 {v(aPR)}, 4, {v(vL)}")
        A(f"v_add_u32 {v(aPR)}, {L_PB}, {v(aPR)}")
        A(f"s_lshl_b32 {s(sT0)}, {s(sW)}, 10")
        A(f"v_add_u32 {v(aPW)}, {s(sT0)}, {v(aPR)}")
        A(f"s_lshl_b32 {s(sT0)}, {s(sHG)}, 4")
        A(f"v_add_u32 v48, {s(sT0)}, {v(vN)}")
        A(f"s_lshl_b32 {s(sT0)}, {s(sW)}, 3")
        A(f"s_add_u32 {s(sT0)}, {s(sT0)}, {s(sKC)}")
        if cfg.rot:
            A(f"v_add_u32 v50, {s(sT0)}, v48")
            A(f"v_add_u32 v51, 4, v50")
            A(f"v_and_b32 v50, 31, v50")
            A(f"v_and_b32 v51, 31, v51")
        else:
            A(f"v_mov_b32 v50, {s(sKC)}")
            A(f"v_mov_b32 v51, {s(sKC)}")
        A(f"v_lshlrev_b32 v48, 10, v48")
        A(f"s_lshl_b32 {s(sT0)}, {s(sW)}, 8")
        A(f"s_lshl_b32 {s(sT1)}, {s(sB)}, 5")
        A(f"s_add_u32 {s(sT0)}, {s(sT0)}, {s(sT1)}")
        A(f"v_add_u32 v48, {s(sT0)}, v48")
        A(f"v_add_u32 v50, v48, v50")
        A(f"v_add3_u32 v51, v48, v51, 64")
        A(f"v_add_u32 v51, 64, v51")
        A(f"v_and_b32 v49, 1, {v(vS)}")
        A(f"v_lshlrev_b32 v49, 1, v49")
        A(f"v_lshrrev_b32 v45, 1, {v(vS)}")
        A(f"v_add_u32 v49, v49, v45")
        A(f"v_lshlrev_b32 v49, 4, v49")
        A(f"v_lshl_add_u32 {v(aOP0)}, v50, 7, v49")
        A(f"v_add_u32 {v(aOP0)}, {hex(WS_OP)}, {v(aOP0)}")
        A(f"v_lshl_add_u32 {v(aOP1)}, v51, 7, v49")
        A(f"v_add_u32 {v(aOP1)}, {hex(WS_OP)}, {v(aOP1)}")
        A(f"v_cmp_eq_u32 vcc, 1, {v(vS)}")
        A(f"v_cndmask_b32 v50, v50, v51, vcc")
        A(f"v_lshlrev_b32 v50, 4, v50")
        A(f"v_add_u32 {v(aST)}, {hex(WS_ST)}, v50")
    A(f"v_lshrrev_b32 {v(vA0)}, 2, {v(vN)}")
    A(f"v_lshlrev_b32 {v(vA0)}, 10, {v(vA0)}")
    A(f"v_lshl_add_u32 {v(vA0)}, {v(vS)}, 5, {v(vA0)}")
    A(f"s_lshl_b32 {s(sT0)}, {s(sJ)}, 7")
    A(f"v_add_u32 {v(vA0)}, {s(sT0)}, {v(vA0)}")
    A(f"s_lshl_b32 {s(sT0)}, {s(sJ)}, 19")
    A(f"s_lshl_b32 {s(sT1)}, {s(sH)}, 8")
    A(f"s_add_u32 {s(sT0)}, {s(sT0)}, {s(sT1)}")
    A(f"v_lshlrev_b32 {v(vA1)}, 17, {v(vS)}")
    A(f"v_lshl_add_u32 {v(vA1)}, {v(vN)}, 4, {v(vA1)}")
    A(f"v_add_u32 {v(vA1)}, {s(sT0)}, {v(vA1)}")
    for k in range(2):
        A(f"buffer_load_dwordx4 {v(vXP+4*k,4)}, {v(vA0)}, {s(sX,4)}, 0 offen offset:{16*k}")
    A(f"s_mov_b32 {s(sT2)}, 0")
    for k in range(16):
        A(f"buffer_load_dwordx4 {v(vWQ+4*k,4)}, {v(vA1)}, {s(sWQ,4)}, {s(sT2)} offen{NTWQ}")
        if k < 15: A(f"s_add_u32 {s(sT2)}, {s(sT2)}, 8192")
    A(f"v_lshrrev_b32 {v(vA2)}, 2, {v(vN)}")
    A(f"v_lshlrev_b32 {v(vA2)}, 4, {v(vA2)}")
    A(f"v_and_b32 v43, 3, {v(vN)}")
    A(f"v_add_u32 {v(vA2)}, {v(vA2)}, v43")
    A(f"v_lshlrev_b32 {v(vA2)}, 13, {v(vA2)}")
    A(f"v_lshl_add_u32 {v(vA2)}, {v(vS)}, 4, {v(vA2)}")
    A(f"v_add_u32 {v(vA2)}, {s(sT0)}, {v(vA2)}")
    A(f"s_mov_b32 {s(sT2)}, 0")
    for T in range(4):
        for t in range(4):
            A(f"buffer_load_dwordx4 {v(vWUK+16*T+4*t,4)}, {v(vA2)}, {s(sWUK,4)}, {s(sT2)} offen offset:{64*t}{NTWQ}")
        if T < 3: A(f"s_add_u32 {s(sT2)}, {s(sT2)}, 32768")
    estamp(A, cfg, 3)
    make_sels(A, vN, vSEL, vT)
    vONE, vG1, vCK1 = 192, 208, 240
    make_ones(A, vN, vONE, 46)
    vPUB, vCPUB, vGA, vGB, vGC = 52, 53, 54, 55, 56
    partial_offsets(A, vL, vN, vS, WS_Q1, WS_Q1C, vPUB, vCPUB, vGA, vGB, vGC, 46)
    vQAO, vQCO = 58, 59
    A(f"v_lshl_add_u32 {v(vQAO)}, {v(vN)}, 5, {s(sH)}")
    A(f"v_lshlrev_b32 {v(vQCO)}, 3, {v(vQAO)}")
    A(f"v_add_u32 {v(vQCO)}, {s(sJ)}, {v(vQCO)}")
    A(f"v_lshlrev_b32 {v(vQCO)}, 3, {v(vQCO)}")
    A(f"v_add_u32 {v(vQCO)}, {hex(WS_QC)}, {v(vQCO)}")
    A(f"v_lshlrev_b32 {v(vQAO)}, 10, {v(vQAO)}")
    A(f"v_lshl_add_u32 {v(vQAO)}, {v(vS)}, 5, {v(vQAO)}")
    A(f"s_lshl_b32 {s(sT0)}, {s(sJ)}, 7")
    A(f"s_add_u32 {s(sT0)}, {s(sT0)}, {hex(WS_QA)}")
    A(f"v_add_u32 {v(vQAO)}, {s(sT0)}, {v(vQAO)}")
    NPW = 0
    A(f"s_waitcnt vmcnt({32+NPW})")
    nonce_from(A, vE)
    def _w(t):
        A(f"s_waitcnt vmcnt({16 + 14 - 2*t})")
        if t == 0 and cfg.l_delay and cfg.fw_at == 'wq': arrive(A, FW, 43)
    sel_gemm(A, 8, vXP, vSEL, vAF0, vAF1, vWQ, vQX, vQY, swap=True, wwait=_w)
    publish_partial(A, vQX, vQY, 242, vPUB, vCPUB, 46, cfg.local_st, cfg.dual, cfg.defer)
    stamp(A, cfg, 1)
    if cfg.l_delay and cfg.fw_at == 'pub': arrive(A, FW, 43)
    if cfg.exp == 'kvq': A(f"s_branch L_Mdone")
    if cfg.addr_early: attn_addresses()
    gather_reduce(A, cfg, "L_hop1", vG1, vCK1, vONE, vGA, vGB, vGC, vQX, vQY, 46, 242)
    savecnt(A, cfg, 0)
    if cfg.l_delay and cfg.fw_at == 'hop1': arrive(A, FW, 43)
    estamp(A, cfg, 5)
    A(f"v_cvt_pk_bf16_f32 v60, {v(vQX)}, {v(vQX+1)}")
    A(f"v_cvt_pk_bf16_f32 v61, {v(vQX+2)}, {v(vQX+3)}")
    A(f"v_cvt_pk_bf16_f32 v62, {v(vQY)}, {v(vQY+1)}")
    A(f"v_cvt_pk_bf16_f32 v63, {v(vQY+2)}, {v(vQY+3)}")
    A(f"v_lshlrev_b32 {v(vA0)}, 4, {v(vL)}")
    A(f"v_add_u32 {v(vA0)}, {L_QB}, {v(vA0)}")
    A(f"ds_write_b128 {v(vA0)}, v[60:63]")
    vQF4, vD, vPK = 128, 144, 160
    A(f"v_and_b32 {v(vA0)}, 3, {v(vN)}")
    A(f"v_lshlrev_b32 {v(vA0)}, 8, {v(vA0)}")
    A(f"v_lshl_add_u32 {v(vA0)}, {v(vS)}, 4, {v(vA0)}")
    A(f"v_add_u32 {v(vA0)}, {L_QB}, {v(vA0)}")
    for t in range(4):
        A(f"ds_read_b128 {v(vQF4+4*t,4)}, {v(vA0)} offset:{64*t}")
    for t in range(4):
        A(f"s_waitcnt lgkmcnt({3-t})")
        for T in range(4):
            c = "0" if t == 0 else v(vD+4*T,4)
            A(f"v_mfma_f32_16x16x32_bf16 {v(vD+4*T,4)}, {v(vWUK+16*T+4*t,4)}, {v(vQF4+4*t,4)}, {c}")
    A(f"s_mov_b32 {s(sT0)}, {hex(f2u(SCALE))}")
    for k in range(16):
        A(f"v_mul_f32 {v(vD+k)}, {s(sT0)}, {v(vD+k)}")
    for k in range(8):
        A(f"v_cvt_pk_bf16_f32 {v(vPK+k)}, {v(vD+2*k)}, {v(vD+2*k+1)}")
    if cfg.pw_qa: wait_flag(A, FP1, 1, 43)
    A(f"s_mov_b64 {s(sEX,2)}, exec")
    A(f"s_mov_b32 exec_lo, 0x000f000f")
    A(f"s_mov_b32 exec_hi, 0x000f000f")
    A(f"buffer_store_dwordx4 {v(vPK,4)}, {v(vQAO)}, {s(sWS,4)}, 0 offen sc1")
    A(f"buffer_store_dwordx4 {v(vPK+4,4)}, {v(vQAO)}, {s(sWS,4)}, 0 offen offset:16 sc1")
    A(f"s_mov_b64 exec, {s(sEX,2)}")
    sum_dwords(A, 44, range(vPK, vPK+8))
    xreduce_rows(A, "v_add_u32", 44, 46)
    A(f"v_add_u32 v45, {s(sNONCE)}, v44")
    A(f"s_mov_b64 exec, 0xf")
    A(f"buffer_store_dwordx2 v[44:45], {v(vQCO)}, {s(sWS,4)}, 0 offen sc1")
    A(f"s_mov_b64 exec, {s(sEX,2)}")
    if not cfg.addr_early: attn_addresses()
    if cfg.hop2_gate:
        A(f"s_waitcnt vmcnt(0)")
        arrive(A, FP1, 43)
    A(f"s_branch L_qdone")
    A.label("L_noq")
    if cfg.pw_qa or cfg.pw_fd:
        for k in range(4): A(f"v_mov_b32 {v(60+k)}, 0")
    if cfg.pw_qa:
        A(f"s_cmp_lg_u32 {s(sW)}, 1")
        A(f"s_cbranch_scc1 L_nopw1")
        A(f"v_lshl_add_u32 v58, {v(vN)}, 5, {s(sH)}")
        A(f"v_lshlrev_b32 v59, 3, v58")
        A(f"v_add_u32 v59, {s(sJ)}, v59")
        A(f"v_lshlrev_b32 v59, 3, v59")
        A(f"v_add_u32 v59, {hex(WS_QC)}, v59")
        A(f"v_lshlrev_b32 v58, 10, v58")
        A(f"v_lshl_add_u32 v58, {v(vS)}, 5, v58")
        A(f"s_lshl_b32 {s(sT0)}, {s(sJ)}, 7")
        A(f"s_add_u32 {s(sT0)}, {s(sT0)}, {hex(WS_QA)}")
        A(f"v_add_u32 v58, {s(sT0)}, v58")
        A(f"s_mov_b32 exec_lo, 0x000f000f")
        A(f"s_mov_b32 exec_hi, 0x000f000f")
        A(f"buffer_store_dwordx4 v[60:63], v58, {s(sWS,4)}, 0 offen sc1")
        A(f"buffer_store_dwordx4 v[60:63], v58, {s(sWS,4)}, 0 offen offset:16 sc1")
        A(f"s_mov_b64 exec, 0xf")
        A(f"buffer_store_dwordx2 v[60:61], v59, {s(sWS,4)}, 0 offen sc1")
        A(f"s_mov_b64 exec, -1")
        A(f"s_waitcnt vmcnt(0)")
        arrive(A, FP1, 43)
        A.label("L_nopw1")
    if cfg.pw_fd:
        A(f"s_cmp_lg_u32 {s(sW)}, 2")
        A(f"s_cbranch_scc1 L_nopw2")
        A(f"v_lshrrev_b32 v46, 3, {v(vN)}")
        A(f"v_lshl_add_u32 v46, {v(vS)}, 4, v46")
        A(f"s_lshl_b32 {s(sT0)}, {s(sJ)}, 1")
        A(f"v_add_u32 v46, {s(sT0)}, v46")
        A(f"s_movk_i32 {s(sT1)}, {NSLOT}")
        A(f"v_mul_lo_u32 v46, v46, {s(sT1)}")
        A(f"v_add_u32 v46, {s(sH)}, v46")
        A(f"v_lshlrev_b32 v59, 3, v46")
        A(f"v_add_u32 v59, {hex(WS_FC)}, v59")
        A(f"v_and_b32 v47, 7, {v(vN)}")
        A(f"v_lshlrev_b32 v47, 3, v47")
        A(f"v_lshl_add_u32 v58, v46, 6, v47")
        A(f"v_add_u32 v58, {hex(WS_FD)}, v58")
        A(f"buffer_store_dwordx2 v[60:61], v58, {s(sWS,4)}, 0 offen sc1")
        A(f"s_mov_b32 exec_lo, 0x01010101")
        A(f"s_mov_b32 exec_hi, 0x01010101")
        A(f"buffer_store_dwordx2 v[60:61], v59, {s(sWS,4)}, 0 offen sc1")
        A(f"s_mov_b64 exec, -1")
        A(f"s_waitcnt vmcnt(0)")
        arrive(A, FP2, 43)
        A.label("L_nopw2")
    make_sels(A, vN, vSEL, vT)
    A(f"s_waitcnt vmcnt(0)")
    nonce_from(A, vE)
    attn_addresses()
    A.label("L_qdone")
    stamp(A, cfg, 2)
    if cfg.exp in ('kvq', 'kvq1'): A(f"s_branch L_Mdone")
    NL = 3 if cfg.tail_early else 4
    wait_flag(A, FKV if cfg.wait_kv_first else FKI, NL, 44)
    if cfg.hop2_gate: wait_flag(A, FP1, 1, 44)
    if cfg.two_stage:
        lab0 = poll_head(A, "L_hop2t")
        A(f"buffer_load_dwordx2 {v(vQC,2)}, {v(aQC)}, {s(sWS,4)}, 0 offen sc1")
        A(f"s_waitcnt vmcnt(0)")
        A(f"v_add_u32 v45, {s(sNONCE)}, {v(vQC)}")
        A(f"v_cmp_ne_u32 vcc, v45, {v(vQC+1)}")
        A(f"s_and_b64 {s(sM1,2)}, vcc, {s(sM0,2)}")
        poll_tail(A, lab0, sM1, cfg.poll_sleep)
        savecnt(A, cfg, 1)
    lab = poll_head(A, "L_hop2")
    for i in range(4):
        A(f"buffer_load_dwordx4 {v(vQG+4*i,4)}, {v(aQG)}, {s(sWS,4)}, 0 offen offset:{1024*i} sc1")
    A(f"buffer_load_dwordx2 {v(vQC,2)}, {v(aQC)}, {s(sWS,4)}, 0 offen sc1")
    if cfg.tail_flag == 'FH2': arrive(A, FH2, 43)
    A(f"s_waitcnt vmcnt(0)")
    sum_dwords(A, 44, range(vQG, vQG+16))
    A(f"v_sub_u32 v44, v44, {v(vQC)}")
    A(f"v_add_u32 v45, {s(sNONCE)}, {v(vQC)}")
    A(f"v_cmp_ne_u32 vcc, v45, {v(vQC+1)}")
    wave_sum_u32(A, 44, 46)
    A(f"s_and_b64 {s(sM1,2)}, vcc, {s(sM0,2)}")
    A(f"v_cmp_ne_u32 vcc, 0, v44")
    A(f"s_or_b64 {s(sM1,2)}, {s(sM1,2)}, vcc")
    poll_tail(A, lab, sM1, cfg.poll_sleep)
    savecnt(A, cfg, 2)
    for i in range(4):
        A(f"ds_write_b128 {v(aQL)}, {v(vQG+4*i,4)} offset:{PITCH*i}")
    arrive(A, F3, 43)
    stamp(A, cfg, 3)
    wait_flag(A, FKV, NL, 44)
    wait_flag(A, F3, 4, 44)
    stamp(A, cfg, 4)
    vQF, vRING = 64, 128
    vS0, vS1 = 32, 36
    LA = 4
    def qkread(t):
        A(f"ds_read_b128 {v(vQF+4*t,4)}, {v(aQE if t%2==0 else aQO)} offset:{16*t}")
        for tt in range(2):
            slot = (2*t+tt) % 16
            A(f"ds_read_b128 {v(vRING+4*slot,4)}, {v(aKE if t%2==0 else aKO)} offset:{16*t + tt*16*PITCH}")
    for t in range(LA): qkread(t)
    for t in range(16):
        A(f"s_waitcnt lgkmcnt({3*min(LA-1, 15-t)})")
        for tt in range(2):
            slot = (2*t+tt) % 16
            acc = vS0 if tt == 0 else vS1
            A(f"v_mfma_f32_16x16x32_bf16 {v(acc,4)}, {v(vRING+4*slot,4)}, {v(vQF+4*t,4)}, {'0' if t == 0 else v(acc,4)}")
        if t + LA < 16: qkread(t+LA)
    pstamp(A, cfg, 1)
    vM = 44
    A(f"v_max3_f32 {v(vM)}, {v(vS0)}, {v(vS0+1)}, {v(vS0+2)}")
    A(f"v_max3_f32 v45, {v(vS0+3)}, {v(vS1)}, {v(vS1+1)}")
    A(f"v_max3_f32 {v(vM)}, {v(vM)}, {v(vS1+2)}, {v(vS1+3)}")
    A(f"v_max_f32 {v(vM)}, {v(vM)}, v45")
    xreduce_rows(A, "v_max_f32", vM, 45)
    A(f"ds_write_b32 {v(aMXW)}, {v(vM)}")
    def sentinel_wait(name, reads, regs):
        lab = A.newlabel(name); done = A.newlabel(name + "d")
        A(f"s_mov_b32 {s(sCNT2)}, 0")
        A.label(lab)
        reads()
        A(f"s_waitcnt lgkmcnt(0)")
        regs = list(regs)
        A(f"v_max3_u32 v47, {v(regs[0])}, {v(regs[1])}, {v(regs[2])}")
        k = 3
        while k + 1 < len(regs):
            A(f"v_max3_u32 v47, v47, {v(regs[k])}, {v(regs[k+1])}"); k += 2
        if k < len(regs): A(f"v_max_u32 v47, v47, {v(regs[k])}")
        A(f"v_cmp_eq_u32 vcc, -1, v47")
        A(f"s_cbranch_vccz {done}")
        A(f"s_add_u32 {s(sCNT2)}, {s(sCNT2)}, 1")
        A(f"s_cmp_lt_u32 {s(sCNT2)}, 2000000")
        A(f"s_cbranch_scc1 {lab}")
        A.label(done)
    sentinel_wait("L_mx", lambda: A(f"ds_read_b128 v[48:51], {v(aMXR)}"), range(48, 52))
    def pvread(k):
        T, g = k // 4, k % 4
        slot = k % 16
        base = aPV0 if g < 2 else aPV1
        off = (32*(g%2))*PITCH + T*32
        A(f"ds_read_b64_tr_b16 {v(vRING+4*slot,2)}, {v(base)} offset:{off}")
        A(f"ds_read_b64_tr_b16 {v(vRING+4*slot+2,2)}, {v(base)} offset:{off+16*PITCH}")
    PRE = 6
    A(f"v_max3_f32 {v(vM)}, v48, v49, v50")
    for k in range(PRE): pvread(k)
    A(f"v_max_f32 {v(vM)}, {v(vM)}, v51")
    for k in range(8):
        A(f"v_sub_f32 {v(vS0+k)}, {v(vS0+k)}, {v(vM)}")
    for k in range(8):
        A(f"v_exp_f32 {v(vS0+k)}, {v(vS0+k)}")
    vLs = 46
    for k in range(4):
        A(f"v_cvt_pk_bf16_f32 {v(52+k)}, {v(vS0+2*k)}, {v(vS0+2*k+1)}")
    A(f"ds_write_b128 {v(aPW)}, v[52:55]")
    A(f"v_add_f32 {v(vLs)}, {v(vS0)}, {v(vS0+1)}")
    A(f"v_add_f32 v47, {v(vS0+2)}, {v(vS0+3)}")
    A(f"v_add_f32 v48, {v(vS0+4)}, {v(vS0+5)}")
    A(f"v_add_f32 v49, {v(vS0+6)}, {v(vS0+7)}")
    A(f"v_add_f32 {v(vLs)}, {v(vLs)}, v47")
    A(f"v_add_f32 v48, v48, v49")
    A(f"v_add_f32 {v(vLs)}, {v(vLs)}, v48")
    xreduce_rows(A, "v_add_f32", vLs, 47)
    A(f"ds_write_b32 {v(aMXW)}, {v(vLs)} offset:{L_LS-L_MX}")
    vPF, vO, vPK = 64, 80, 112
    def _rd():
        A(f"ds_read_b128 v[48:51], {v(aMXR)} offset:{L_LS-L_MX}")
        for g in range(4):
            A(f"ds_read_b128 {v(vPF+4*g,4)}, {v(aPR)} offset:{1024*g}")
    sentinel_wait("L_ls", _rd, range(48, 52))
    pstamp(A, cfg, 2)
    nxt = PRE
    outstanding = []
    def issue(k):
        pvread(k); outstanding.extend([("f",k),("f",k)])
    while len(outstanding) + 2 <= 14:
        issue(nxt); nxt += 1
    A(f"v_add_f32 v48, v48, v49")
    A(f"v_add_f32 v50, v50, v51")
    A(f"v_add_f32 v47, v48, v50")
    def post(p):
        for T in (2*p, 2*p+1):
            A(f"v_cvt_pk_bf16_f32 {v(vPK+2*T)}, {v(vO+4*T)}, {v(vO+4*T+1)}")
            A(f"v_cvt_pk_bf16_f32 {v(vPK+2*T+1)}, {v(vO+4*T+2)}, {v(vO+4*T+3)}")
        A(f"v_permlane16_swap_b32 {v(vPK+4*p)}, {v(vPK+4*p+2)}")
        A(f"v_permlane16_swap_b32 {v(vPK+4*p+1)}, {v(vPK+4*p+3)}")
        A(f"buffer_store_dwordx4 {v(vPK+4*p,4)}, {v(aOP0 if p < 2 else aOP1)}, {s(sWS,4)}, 0 offen offset:{64*(p%2)} sc1")
        c = 52 + (p >> 1)
        if p % 2 == 0:
            A(f"v_add3_u32 {v(c)}, {v(vPK+4*p)}, {v(vPK+4*p+1)}, {v(vPK+4*p+2)}")
            A(f"v_add_u32 {v(c)}, {v(c)}, {v(vPK+4*p+3)}")
        else:
            A(f"v_add3_u32 {v(c)}, {v(c)}, {v(vPK+4*p)}, {v(vPK+4*p+1)}")
            A(f"v_add3_u32 {v(c)}, {v(c)}, {v(vPK+4*p+2)}, {v(vPK+4*p+3)}")
    for k in range(32):
        T, g = k//4, k%4
        need_idx = -1
        for idx, o in enumerate(outstanding):
            if o == ("f",k): need_idx = max(need_idx, idx)
        can = nxt < 32 and nxt <= k + 15
        if can:
            need_idx = max(need_idx, len(outstanding) + 2 - 15 - 1)
        if need_idx >= 0:
            n_after = len(outstanding) - 1 - need_idx
            A(f"s_waitcnt lgkmcnt({n_after})")
            del outstanding[:need_idx+1]
        slot = k % 16
        A(f"v_mfma_f32_16x16x32_bf16 {v(vO+4*T,4)}, {v(vRING+4*slot,4)}, {v(vPF+4*g,4)}, {'0' if g == 0 else v(vO+4*T,4)}")
        if can:
            issue(nxt); nxt += 1
        if k in (11, 19, 27):
            post((k - 11)//8)
            if cfg.pubts: A("s_waitcnt lgkmcnt(0)"); del outstanding[:]; pstamp(A, cfg, 3 + (k-11)//8)
    stamp(A, cfg, 5)
    post(3)
    pstamp(A, cfg, 6)
    xreduce_rows2(A, "v_add_u32", 52, 54, "v_add_u32", 53, 55)
    A(f"v_cmp_eq_u32 vcc, 1, {v(vS)}")
    A(f"v_mov_b32 v60, {v(vM)}")
    A(f"v_mov_b32 v61, v47")
    A(f"v_cndmask_b32 v62, v52, v53, vcc")
    A(f"v_add3_u32 v63, v60, v61, v62")
    A(f"v_add_u32 v63, {s(sNONCE)}, v63")
    A(f"s_mov_b64 {s(sEX,2)}, exec")
    A(f"s_mov_b32 exec_hi, 0")
    A(f"buffer_store_dwordx4 v[60:63], {v(aST)}, {s(sWS,4)}, 0 offen sc1")
    A(f"s_mov_b64 exec, {s(sEX,2)}")
    pstamp(A, cfg, 7)
    arrive(A, FPB, 52)
    stamp(A, cfg, 6)
    vOD, vST = 128, 144
    A(f"s_lshl_b32 {s(sT0)}, {s(sH)}, 3")
    A(f"s_add_u32 {s(sT0)}, {s(sT0)}, {s(sJ)}")
    A(f"s_lshl_b32 {s(sT0)}, {s(sT0)}, 2")
    A(f"s_add_u32 {s(sT0)}, {s(sT0)}, {s(sW)}")
    A(f"s_lshl_b32 {s(sT0)}, {s(sT0)}, 5")
    A(f"s_lshl_b32 {s(sT1)}, {s(sT0)}, 7")
    A(f"s_add_u32 {s(sT1)}, {s(sT1)}, {hex(WS_OP)}")
    A(f"v_lshl_add_u32 v40, {v(vL)}, 4, {s(sT1)}")
    A(f"s_lshl_b32 {s(sT1)}, {s(sT0)}, 4")
    A(f"s_add_u32 {s(sT1)}, {s(sT1)}, {hex(WS_ST)}")
    A(f"v_and_b32 v41, 31, {v(vL)}")
    A(f"v_lshl_add_u32 v41, v41, 4, {s(sT1)}")
    A(f"v_cmp_gt_u32 {s(sM0,2)}, 32, {v(vL)}")
    A(f"v_bfe_u32 v42, {v(vN)}, 2, 1")
    A(f"v_lshl_add_u32 v42, {v(vS)}, 1, v42")
    A(f"v_lshlrev_b32 v42, 2, v42")
    if cfg.hop3_ack: A(f"s_waitcnt vmcnt(0)")
    if cfg.hop3_sleep: A(f"s_sleep {cfg.hop3_sleep}")
    if cfg.two_stage or cfg.two3:
        lab0 = poll_head(A, "L_hop3t")
        A(f"buffer_load_dwordx4 {v(vST,4)}, v41, {s(sWS,4)}, 0 offen sc1")
        A(f"s_waitcnt vmcnt(0)")
        A(f"v_add3_u32 v45, {v(vST)}, {v(vST+1)}, {v(vST+2)}")
        A(f"v_add_u32 v45, {s(sNONCE)}, v45")
        A(f"v_cmp_ne_u32 {s(sM1,2)}, v45, {v(vST+3)}")
        poll_tail(A, lab0, sM1, cfg.poll_sleep)
        savecnt(A, cfg, 3)
    lab = poll_head(A, "L_hop3")
    for i in range(4):
        A(f"buffer_load_dwordx4 {v(vOD+4*i,4)}, v40, {s(sWS,4)}, 0 offen offset:{1024*i} sc1")
    A(f"buffer_load_dwordx4 {v(vST,4)}, v41, {s(sWS,4)}, 0 offen sc1")
    A(f"s_waitcnt vmcnt(0)")
    sum_dwords(A, 44, range(vOD, vOD+16))
    A(f"v_cndmask_b32 v45, 0, {v(vST+2)}, {s(sM0,2)}")
    A(f"v_sub_u32 v44, v44, v45")
    A(f"v_add3_u32 v45, {v(vST)}, {v(vST+1)}, {v(vST+2)}")
    A(f"v_add_u32 v45, {s(sNONCE)}, v45")
    A(f"v_cmp_ne_u32 {s(sM1,2)}, v45, {v(vST+3)}")
    wave_sum_u32(A, 44, 46)
    A(f"v_cmp_ne_u32 vcc, 0, v44")
    A(f"s_or_b64 {s(sM1,2)}, {s(sM1,2)}, vcc")
    poll_tail(A, lab, sM1, cfg.poll_sleep)
    savecnt(A, cfg, 4)
    stamp(A, cfg, 7)
    A(f"v_mov_b32 v44, {v(vST)}")
    for d in ("quad_perm:[1,0,3,2]", "quad_perm:[2,3,0,1]", "row_half_mirror", "row_mirror"):
        A(f"v_max_f32_dpp v44, v44, v44 {d} row_mask:0xf bank_mask:0xf")
    A(f"v_mov_b32 v46, v44")
    A(f"v_permlane16_swap_b32 v44, v46")
    A(f"v_max_f32 v44, v44, v46")
    A(f"v_sub_f32 v44, {v(vST)}, v44")
    A(f"v_exp_f32 v44, v44")
    A(f"v_mul_f32 v45, v44, {v(vST+1)}")
    for d in ("quad_perm:[1,0,3,2]", "quad_perm:[2,3,0,1]", "row_half_mirror", "row_mirror"):
        A(f"v_add_f32_dpp v45, v45, v45 {d} row_mask:0xf bank_mask:0xf")
    A(f"v_mov_b32 v46, v45")
    A(f"v_permlane16_swap_b32 v45, v46")
    A(f"v_add_f32 v45, v45, v46")
    A(f"v_rcp_f32 v45, v45")
    A(f"v_mul_f32 v44, v44, v45")
    for k in range(4):
        A(f"ds_bpermute_b32 {v(48+k)}, v42, v44 offset:{32*k}")
    A(f"s_waitcnt lgkmcnt(0)")
    A(f"v_cvt_pk_bf16_f32 v52, v48, v49")
    A(f"v_cvt_pk_bf16_f32 v53, v50, v51")
    for t in range(2):
        sel_gemm_step(A, 52+t, vSEL, vAF0 if t % 2 == 0 else vAF1, vOD+8*t, vQX, vQY, t == 0)
    for k in range(8):
        A(f"v_permlane16_swap_b32 {v(vQX+k)}, {v(56+k)}")
    for k in range(8):
        A(f"v_add_f32_dpp {v(56+k)}, {v(56+k)}, {v(vQX+k)} row_ror:8 row_mask:0xf bank_mask:0xf")
    for k in range(4):
        A(f"v_cvt_pk_bf16_f32 {v(48+k)}, {v(56+2*k)}, {v(56+2*k+1)}")
    A(f"s_lshl_b32 {s(sT0)}, {s(sW)}, 7")
    A(f"s_add_u32 {s(sT0)}, {s(sT0)}, {L_CC}")
    A(f"v_lshl_add_u32 v46, {v(vL)}, 4, {s(sT0)}")
    A(f"s_mov_b64 {s(sEX,2)}, exec")
    A(f"s_mov_b64 exec, 0xff")
    A(f"ds_write_b128 v46, v[48:51]")
    A(f"s_mov_b64 exec, {s(sEX,2)}")
    stamp(A, cfg, 8)
    A(f"s_cmp_ge_u32 s2, 64")
    A(f"s_cbranch_scc1 L_Mdone")
    A(f"s_cmp_lg_u32 {s(sW)}, 0")
    A(f"s_cbranch_scc1 L_Mdone")
    vFD, vFC = 128, 152
    A(f"s_mul_i32 {s(sT0)}, s2, {NSLOT}")
    A(f"s_lshl_b32 {s(sT2)}, {s(sT0)}, 6")
    A(f"s_add_u32 {s(sT2)}, {s(sT2)}, {hex(WS_FD)}")
    A(f"v_lshl_add_u32 v40, {v(vL)}, 4, {s(sT2)}")
    A(f"s_lshl_b32 {s(sT2)}, {s(sT0)}, 3")
    A(f"s_add_u32 {s(sT2)}, {s(sT2)}, {hex(WS_FC)}")
    A(f"v_lshl_add_u32 v41, {v(vL)}, 3, {s(sT2)}")
    A(f"v_mov_b32 v47, 0x7ffffff0")
    NP = 32 if cfg.nomlp else NPROD
    A(f"v_lshrrev_b32 v44, 2, {v(vL)}")
    A(f"v_add_u32 v44, 32, v44")
    A(f"v_cmp_gt_u32 vcc, {NP}, v44")
    A(f"v_add_u32 v46, 2048, v40")
    A(f"v_cndmask_b32 v42, v47, v46, vcc")
    A(f"v_cmp_gt_u32 {s(sM2,2)}, {NP}, {v(vL)}")
    A(f"v_cndmask_b32 v41, v47, v41, {s(sM2,2)}")
    A(f"v_and_b32 v44, 3, {v(vN)}")
    A(f"v_mov_b32 v45, 0")
    for k, (j0, j1) in enumerate(((0,1),(2,3))):
        A(f"v_mov_b32 v46, 0x3f80")
        A(f"v_cmp_eq_u32 vcc, {j0}, v44")
        A(f"v_cndmask_b32 {v(vAF0+k)}, v45, v46, vcc")
        A(f"v_mov_b32 v46, 0x3f800000")
        A(f"v_cmp_eq_u32 vcc, {j1}, v44")
        A(f"v_cndmask_b32 {v(vAF0+k)}, {v(vAF0+k)}, v46, vcc")
    A(f"v_mov_b32 {v(vAF0+2)}, {v(vAF0)}")
    A(f"v_mov_b32 {v(vAF0+3)}, {v(vAF0+1)}")
    for k in range(4): A(f"v_mov_b32 {v(vFD+12+k)}, 0")
    A(f"s_lshl_b32 {s(sT3)}, s2, 6")
    A(f"v_lshl_add_u32 v57, {v(vL)}, 4, {s(sT3)}")
    if cfg.hop5_gate: wait_flag(A, FT, 1, 44)
    lab = poll_head(A, "L_hop5")
    for i in range(2):
        A(f"buffer_load_dwordx4 {v(vFD+4*i,4)}, v40, {s(sWS,4)}, 0 offen offset:{1024*i} sc1")
    A(f"buffer_load_dwordx4 {v(vFD+8,4)}, v42, {s(sWS,4)}, 0 offen sc1")
    A(f"buffer_load_dwordx2 {v(vFC,2)}, v41, {s(sWS,4)}, 0 offen sc1")
    A(f"s_waitcnt vmcnt(0)")
    sum_dwords(A, 44, range(vFD, vFD+12))
    A(f"v_sub_u32 v44, v44, {v(vFC)}")
    A(f"v_add_u32 v45, {s(sNONCE)}, {v(vFC)}")
    A(f"v_cmp_ne_u32 vcc, v45, {v(vFC+1)}")
    wave_sum_u32(A, 44, 46)
    A(f"s_and_b64 {s(sM1,2)}, vcc, {s(sM2,2)}")
    A(f"v_cmp_ne_u32 vcc, 0, v44")
    A(f"s_or_b64 {s(sM1,2)}, {s(sM1,2)}, vcc")
    poll_tail(A, lab, sM1, cfg.poll_sleep)
    savecnt(A, cfg, 5)
    stamp(A, cfg, 9)
    for p in range(2):
        w = vFD + 8*p
        A(f"v_swap_b32 {v(w+2)}, {v(w+4)}")
        A(f"v_swap_b32 {v(w+3)}, {v(w+5)}")
    for p in range(2):
        w = vFD + 8*p
        c0 = "0" if p == 0 else v(vQX,4); c1 = "0" if p == 0 else v(vQY,4)
        A(f"v_mfma_f32_16x16x32_bf16 {v(vQX,4)}, {v(vAF0,4)}, {v(w,4)}, {c0}")
        A(f"v_mfma_f32_16x16x32_bf16 {v(vQY,4)}, {v(vAF0,4)}, {v(w+4,4)}, {c1}")
    for d in ("row_ror:4", "row_ror:8"):
        for k in range(8):
            A(f"v_add_f32_dpp {v(vQX+k)}, {v(vQX+k)}, {v(vQX+k)} {d} row_mask:0xf bank_mask:0xf")
    for k in range(4):
        A(f"v_cvt_pk_bf16_f32 {v(48+k)}, {v(vQX+2*k)}, {v(vQX+2*k+1)}")
    A(f"s_mov_b64 exec, 0xf")
    A(f"buffer_store_dwordx4 v[48:51], v57, {s(sOUT,4)}, 0 offen")
    A(f"s_cmp_lg_u32 s2, 0")
    A(f"s_cbranch_scc1 L_Mdone")
    A(f"s_add_u32 {s(sT0)}, {s(sE)}, 1")
    A(f"v_mov_b32 v52, {s(sT0)}")
    A(f"v_mov_b32 v53, {hex(WS_E)}")
    A(f"s_mov_b64 exec, 1")
    A(f"buffer_store_dword v52, v53, {s(sWS,4)}, 0 offen sc1")
    A.label("L_Mdone")
    if cfg.ts:
        A(f"s_mov_b64 exec, -1")
        emit_ts(A, cfg)
    A(f"s_endpgm")
    A.label("L_Lpath")
    vGX, vGW = 64, 80
    vW1, vW2, vB1, vH = 128, 160, 192, 196
    A(f"s_sub_u32 {s(sW)}, {s(sW)}, 4")
    A(f"v_lshlrev_b32 v40, 4, {v(vL)}")
    A(f"v_mov_b32 v43, {hex(WS_E)}")
    if cfg.prefetch_code:
        A(f"s_cmp_lg_u32 {s(sW)}, 3")
        A(f"s_cbranch_scc1 L_nopf")
        A(f"s_getpc_b64 s[66:67]")
        A.label("L_pcref")
        A(f"s_sub_u32 s66, s66, (L_pcref-{KNAME})")
        A(f"s_subb_u32 s67, s67, 0")
        A(f"s_lshl_b32 {s(sT2)}, {s(sR)}, 10")
        A(f"v_lshl_add_u32 v44, {v(vL)}, 7, {s(sT2)}")
        A(f"v_cmp_gt_u32 vcc, (L_end-{KNAME}), v44")
        A(f"v_cmp_gt_u32 {s(sM3,2)}, 8, {v(vL)}")
        A(f"s_and_b64 vcc, vcc, {s(sM3,2)}")
        A(f"s_and_saveexec_b64 {s(sEX,2)}, vcc")
        A(f"s_cbranch_execz L_pfskip")
        A(f"global_load_dword v63, v44, s[66:67]")
        A.label("L_pfskip")
        A(f"s_mov_b64 exec, {s(sEX,2)}")
        A.label("L_nopf")
    if cfg.tlb:
        A(f"s_cmp_lg_u32 {s(sW)}, 2")
        A(f"s_cbranch_scc1 L_notlb")
        st = cfg.tlb
        A(f"v_lshlrev_b32 v44, 16, {v(vL)}")
        A(f"v_add_u32 v45, {hex(WS_OP)}, v44")
        A(f"buffer_load_dword v62, v45, {s(sWS,4)}, 0 offen")
        A(f"v_lshlrev_b32 v45, 15, {v(vL)}")
        A(f"buffer_load_dword v62, v45, {s(sWS,4)}, 0 offen")
        A(f"v_add_u32 v45, {hex(LOCAL_DELTA)}, v45")
        A(f"buffer_load_dword v62, v45, {s(sWS,4)}, 0 offen")
        A(f"buffer_load_dword v62, v44, {s(sWUV,4)}, 0 offen")
        A(f"buffer_load_dword v62, v44, {s(sWO,4)}, 0 offen")
        A(f"buffer_load_dword v62, v44, {s(sW1,4)}, 0 offen")
        A(f"buffer_load_dword v62, v44, {s(sW2,4)}, 0 offen")
        A(f"buffer_load_dword v62, v44, {s(sOUT,4)}, 0 offen")
        A(f"buffer_load_dword v62, v44, {s(sGW,4)}, 0 offen")
        A(f"buffer_load_dword v62, v44, {s(sB1,4)}, 0 offen")
        A.label("L_notlb")
    if cfg.tail_early:
        make_sels(A, vN, vSEL, 44)
        A(f"s_cmp_eq_u32 {s(sW)}, 0")
        A(f"s_cbranch_scc1 L_tail")
        A(f"s_sub_u32 {s(sT2)}, {s(sW)}, 1")
        A(f"s_mul_i32 {s(sT2)}, {s(sT2)}, 43")
        A(f"s_add_u32 {s(sT3)}, {s(sT2)}, 43")
        A(f"s_min_u32 {s(sT3)}, {s(sT3)}, 128")
        A(f"s_lshl_b32 {s(sT0)}, {s(sB)}, 12")
        A(f"s_lshl_b32 {s(sT1)}, {s(sKC)}, 7")
        A(f"s_add_u32 {s(sT0)}, {s(sT0)}, {s(sT1)}")
        A(f"s_add_u32 {s(sT0)}, {s(sT0)}, {s(sT2)}")
        A(f"s_lshl_b32 {s(sT0)}, {s(sT0)}, 10")
        A(f"s_mul_i32 {s(sT1)}, {s(sT2)}, {PITCH}")
        A(f"s_mov_b32 m0, {s(sT1)}")
        A(f"s_mov_b32 {s(sCNT)}, {s(sT2)}")
    else:
        A(f"s_lshl_b32 {s(sT0)}, {s(sB)}, 12")
        A(f"s_lshl_b32 {s(sT1)}, {s(sKC)}, 7")
        A(f"s_add_u32 {s(sT0)}, {s(sT0)}, {s(sT1)}")
        A(f"s_lshl_b32 {s(sT1)}, {s(sW)}, 5")
        A(f"s_add_u32 {s(sT0)}, {s(sT0)}, {s(sT1)}")
        A(f"s_lshl_b32 {s(sT0)}, {s(sT0)}, 10")
        A(f"s_mul_i32 {s(sT1)}, {s(sW)}, {32*PITCH}")
        A(f"s_mov_b32 m0, {s(sT1)}")
        A(f"s_mov_b32 {s(sCNT)}, 0")
    if cfg.l_delay: wait_flag(A, FW, 1, 45)
    if cfg.kvwin0:
        A.label("L_dma0")
        A(f"s_waitcnt vmcnt({cfg.kvwin0-1})")
        A(f"buffer_load_dwordx4 v40, {s(sKV,4)}, {s(sT0)} offen{NTKV} lds")
        A(f"s_add_u32 m0, m0, {PITCH}")
        A(f"s_add_u32 {s(sT0)}, {s(sT0)}, 1024")
        A(f"s_add_u32 {s(sCNT)}, {s(sCNT)}, 1")
        A(f"s_cmp_lt_u32 {s(sCNT)}, {cfg.kvn0}")
        A(f"s_cbranch_scc1 L_dma0")
    A.label("L_dma")
    if cfg.kvwin < 32: A(f"s_waitcnt vmcnt({cfg.kvwin-1})")
    A(f"buffer_load_dwordx4 v40, {s(sKV,4)}, {s(sT0)} offen{NTKV} lds")
    A(f"s_add_u32 m0, m0, {PITCH}")
    A(f"s_add_u32 {s(sT0)}, {s(sT0)}, 1024")
    A(f"s_add_u32 {s(sCNT)}, {s(sCNT)}, 1")
    A(f"s_cmp_lt_u32 {s(sCNT)}, {s(sT3) if cfg.tail_early else 32}")
    A(f"s_cbranch_scc1 L_dma")
    arrive(A, FKI, 45)
    stamp(A, cfg, 2, L=True)
    if not cfg.tail_early: make_sels(A, vN, vSEL, 44)
    if cfg.pw_op:
        A(f"s_cmp_lg_u32 {s(sW)}, 1")
        A(f"s_cbranch_scc1 L_nopw3")
        A(f"s_lshl_b32 {s(sT0)}, {s(sHG)}, 4")
        A(f"v_add_u32 v48, {s(sT0)}, {v(vN)}")
        A(f"v_lshlrev_b32 v48, 10, v48")
        A(f"s_lshl_b32 {s(sT1)}, {s(sB)}, 5")
        A(f"s_add_u32 {s(sT0)}, {s(sT1)}, {s(sKC)}")
        A(f"v_add_u32 v48, {s(sT0)}, v48")
        A(f"v_lshlrev_b32 v49, 4, {v(vS)}")
        A(f"v_lshl_add_u32 v49, v48, 7, v49")
        A(f"v_add_u32 v49, {hex(WS_OP)}, v49")
        A(f"v_lshl_add_u32 v48, {v(vS)}, 7, v48")
        A(f"v_lshlrev_b32 v48, 4, v48")
        A(f"v_add_u32 v48, {hex(WS_ST)}, v48")
        for k in range(4): A(f"v_mov_b32 {v(52+k)}, 0")
        A(f"s_mov_b32 {s(sT2)}, 0")
        for q in range(8):
            for u in range(2):
                A(f"buffer_store_dwordx4 v[52:55], v49, {s(sWS,4)}, {s(sT2)} offen offset:{64*u} sc1")
            if q < 7: A(f"s_add_u32 {s(sT2)}, {s(sT2)}, 16384")
        A(f"s_mov_b32 {s(sT2)}, 0")
        A(f"s_mov_b32 exec_hi, 0")
        for mw in range(4):
            A(f"buffer_store_dwordx4 v[52:55], v48, {s(sWS,4)}, {s(sT2)} offen sc1")
            if mw < 3: A(f"s_add_u32 {s(sT2)}, {s(sT2)}, 4096")
        A(f"s_mov_b64 exec, -1")
        A(f"s_waitcnt vmcnt(20)")
        arrive(A, FKV, 45)
        A(f"s_waitcnt vmcnt(0)")
        arrive(A, FP3, 45)
        A(f"s_branch L_gate")
        A.label("L_nopw3")
    A(f"s_waitcnt vmcnt(0)")
    arrive(A, FKV, 45)
    stamp(A, cfg, 3, L=True)
    if cfg.exp: A(f"s_branch L_Ldone")
    A(f"s_cmp_eq_u32 {s(sW)}, 0")
    A(f"s_cbranch_scc1 L_tail")
    A(f"s_cmp_lg_u32 {s(sW)}, 1")
    A(f"s_cbranch_scc1 L_mlpw")
    A.label("L_gate")
    for b in range(4):
        A(f"buffer_load_dwordx4 {v(vGX+4*b,4)}, v40, {s(sX,4)}, 0 offen offset:{1024*b}")
    A(f"buffer_load_dwordx4 {v(vGW,4)}, v40, {s(sGW,4)}, 0 offen")
    for b in range(4):
        A(f"v_mov_b32 {v(44+b)}, 0")
    A(f"s_waitcnt vmcnt(0)")
    for k in range(4):
        for b in range(4):
            A(f"v_dot2_f32_bf16 {v(44+b)}, {v(vGX+4*b+k)}, {v(vGW+k)}, {v(44+b)}")
    A("s_nop 3")
    for d in ("quad_perm:[1,0,3,2]", "quad_perm:[2,3,0,1]", "row_half_mirror", "row_mirror"):
        for b in range(4):
            A(f"v_add_f32_dpp {v(44+b)}, {v(44+b)}, {v(44+b)} {d} row_mask:0xf bank_mask:0xf")
    xreduce_rows2(A, "v_add_f32", 44, 48, "v_add_f32", 45, 49)
    xreduce_rows2(A, "v_add_f32", 46, 48, "v_add_f32", 47, 49)
    A(f"v_cmp_eq_u32 vcc, 1, {v(vS)}")
    A(f"v_cndmask_b32 v44, v44, v45, vcc")
    A(f"v_cmp_eq_u32 vcc, 2, {v(vS)}")
    A(f"v_cndmask_b32 v44, v44, v46, vcc")
    A(f"v_cmp_eq_u32 vcc, 3, {v(vS)}")
    A(f"v_cndmask_b32 v44, v44, v47, vcc")
    A(f"s_mov_b32 {s(sT0)}, {hex(f2u(-LOG2E))}")
    A(f"v_mul_f32 v44, {s(sT0)}, v44")
    A(f"v_exp_f32 v44, v44")
    A(f"v_add_f32 v44, 1.0, v44")
    A(f"v_rcp_f32 v58, v44")
    A(f"v_lshlrev_b32 v45, 2, {v(vS)}")
    A(f"v_add_u32 v45, {L_G}, v45")
    A(f"ds_write_b32 v45, v58")
    arrive(A, FG, 45)
    A(f"s_branch L_Ldone")
    A.label("L_mlpw")
    A(f"s_cmp_lg_u32 {s(sW)}, 2")
    A(f"s_cbranch_scc1 L_Ldone")
    if cfg.nomlp: A(f"s_branch L_Ldone")
    sNS, sJM, sMHJ = sT3, sT4, sT5
    A(f"s_lshr_b32 {s(sT0)}, {s(sR)}, 3")
    A(f"s_lshl_b32 {s(sT0)}, {s(sT0)}, 3")
    A(f"s_add_u32 {s(sNS)}, {s(sT0)}, {s(sXCD)}")
    A(f"s_cmp_ge_u32 {s(sNS)}, {NMG}")
    A(f"s_cbranch_scc1 L_Ldone")
    A(f"s_and_b32 {s(sJM)}, {s(sR)}, 7")
    A(f"s_lshl_b32 {s(sMHJ)}, {s(sNS)}, 3")
    A(f"s_add_u32 {s(sMHJ)}, {s(sMHJ)}, {s(sJM)}")
    vMX, vMW1, vMW2, vMB1 = 8, 64, 128, 60
    vONE, vG1, vCK1 = 192, 208, 240
    vPUB, vCPUB, vGA, vGB, vGC = 52, 53, 54, 55, 56
    A(f"v_lshrrev_b32 v41, 2, {v(vN)}")
    A(f"v_lshlrev_b32 v41, 10, v41")
    A(f"v_lshl_add_u32 v41, {v(vS)}, 5, v41")
    A(f"s_lshl_b32 {s(sT0)}, {s(sJM)}, 7")
    A(f"v_add_u32 v41, {s(sT0)}, v41")
    A(f"s_lshl_b32 {s(sT0)}, {s(sJM)}, 6")
    A(f"v_lshl_add_u32 v42, {v(vS)}, 4, {s(sT0)}")
    A(f"s_movk_i32 {s(sT1)}, 2752")
    A(f"v_mul_lo_u32 v42, v42, {s(sT1)}")
    A(f"s_lshl_b32 {s(sT0)}, {s(sNS)}, 8")
    A(f"v_lshl_add_u32 v44, {v(vN)}, 4, {s(sT0)}")
    A(f"v_add_u32 v42, v42, v44")
    A(f"v_cmp_gt_u32 vcc, 2752, v44")
    A(f"v_mov_b32 v45, 0x7ffffff0")
    A(f"v_cndmask_b32 v42, v45, v42, vcc")
    A(f"v_cndmask_b32 v44, v45, v44, vcc")
    A(f"s_lshl_b32 {s(sT0)}, {s(sNS)}, 17")
    A(f"s_lshl_b32 {s(sT1)}, {s(sJM)}, 7")
    A(f"s_add_u32 {s(sT0)}, {s(sT0)}, {s(sT1)}")
    A(f"v_lshlrev_b32 v46, 15, {v(vS)}")
    A(f"v_lshl_add_u32 v46, {v(vN)}, 3, v46")
    A(f"v_add_u32 v48, {s(sT0)}, v46")
    if cfg.mlp_w1_flag: wait_flag(A, globals()[cfg.mlp_w1_flag], 4, 46)
    stamp(A, cfg, 4, L=True)
    A(f"buffer_load_dword v40, v43, {s(sWS,4)}, 0 offen sc1")
    for k in range(2):
        A(f"buffer_load_dwordx4 {v(vMX+4*k,4)}, v41, {s(sX,4)}, 0 offen offset:{16*k}")
    A(f"buffer_load_dwordx4 {v(vMB1,4)}, v44, {s(sB1,4)}, 0 offen")
    A(f"s_mov_b32 {s(sT2)}, 0")
    for k in range(16):
        A(f"buffer_load_dwordx4 {v(vMW1+4*k,4)}, v42, {s(sW1,4)}, {s(sT2)} offen{NT}")
        if k < 15: A(f"s_add_u32 {s(sT2)}, {s(sT2)}, 2752")
    A(f"s_mov_b32 {s(sT2)}, 0")
    for k in range(32):
        A(f"buffer_load_dwordx2 {v(vMW2+2*k,2)}, v48, {s(sW2,4)}, {s(sT2)} offen offset:{1024*(k%4)}{NT}")
        if k % 4 == 3 and k < 31: A(f"s_add_u32 {s(sT2)}, {s(sT2)}, 4096")
    make_ones(A, vN, vONE, 46)
    partial_offsets(A, vL, vN, vS, WS_H1, WS_H1C, vPUB, vCPUB, vGA, vGB, vGC, 46, sMHJ, sNS)
    A(f"v_lshrrev_b32 v46, 3, {v(vN)}")
    A(f"v_lshl_add_u32 v46, {v(vS)}, 4, v46")
    A(f"s_lshl_b32 {s(sT0)}, {s(sJM)}, 1")
    A(f"v_add_u32 v46, {s(sT0)}, v46")
    A(f"s_movk_i32 {s(sT1)}, {NSLOT}")
    A(f"v_mul_lo_u32 v46, v46, {s(sT1)}")
    A(f"s_add_u32 {s(sT0)}, {s(sNS)}, 32")
    A(f"v_add_u32 v46, {s(sT0)}, v46")
    A(f"v_lshlrev_b32 v58, 3, v46")
    A(f"v_add_u32 v58, {hex(WS_FC)}, v58")
    A(f"v_and_b32 v49, 7, {v(vN)}")
    A(f"v_lshlrev_b32 v49, 3, v49")
    A(f"v_lshl_add_u32 v57, v46, 6, v49")
    A(f"v_add_u32 v57, {hex(WS_FD)}, v57")
    A(f"v_lshlrev_b32 v41, 4, {v(vL)}")
    A(f"v_add_u32 v41, {L_HR}, v41")
    A(f"v_lshrrev_b32 v42, 2, {v(vN)}")
    A(f"v_lshlrev_b32 v42, 8, v42")
    A(f"v_lshl_add_u32 v42, {v(vS)}, 6, v42")
    A(f"v_add_u32 v42, {L_HR}, v42")
    A(f"s_waitcnt vmcnt(48)")
    nonce_from(A, 40)
    sel_gemm(A, 8, vMX, vSEL, 24, 28, vMW1, 32, 36, swap=True, wwait=lambda t: A(f"s_waitcnt vmcnt({32 + 14 - 2*t})"))
    publish_partial(A, 32, 36, 16, vPUB, vCPUB, 46, cfg.local_st, cfg.dual, cfg.defer)
    stamp(A, cfg, 5, L=True)
    gather_reduce(A, cfg, "L_hopm", vG1, vCK1, vONE, vGA, vGB, vGC, 32, 36, 46)
    stamp(A, cfg, 6, L=True)
    vH, vHa, vHn, vHd = 32, 208, 216, 224
    for e in range(8):
        r = vMB1 + e//2
        if e % 2 == 0: A(f"v_lshlrev_b32 {v(vHa+e)}, 16, {v(r)}")
        else: A(f"v_and_b32 {v(vHa+e)}, 0xffff0000, {v(r)}")
    for e in range(8):
        A(f"v_add_f32 {v(vH+e)}, {v(vH+e)}, {v(vHa+e)}")
    A(f"s_mov_b32 {s(sT0)}, {hex(f2u(-LOG2E))}")
    for e in range(8):
        A(f"v_mul_f32 {v(vHa+e)}, {s(sT0)}, abs({v(vH+e)})")
    for e in range(8):
        A(f"v_exp_f32 {v(vHa+e)}, {v(vHa+e)}")
    for e in range(8):
        a_, h_, n_, d_ = vHa+e, vH+e, vHn+e, vHd+e
        A(f"v_cmp_lt_f32 vcc, 0, {v(h_)}")
        A(f"v_mul_f32 {v(d_)}, {v(a_)}, {v(a_)}")
        A(f"v_cndmask_b32 {v(n_)}, {v(d_)}, 1.0, vcc")
        A(f"v_fma_f32 {v(n_)}, 2.0, {v(a_)}, {v(n_)}")
        A(f"v_cndmask_b32 {v(d_)}, 1.0, {v(d_)}, vcc")
        A(f"v_fma_f32 {v(d_)}, 2.0, {v(d_)}, {v(n_)}")
        A(f"v_rcp_f32 {v(d_)}, {v(d_)}")
        A(f"v_mul_f32 {v(n_)}, {v(n_)}, {v(h_)}")
        A(f"v_mul_f32 {v(h_)}, {v(n_)}, {v(d_)}")
    for k in range(4):
        A(f"v_cvt_pk_bf16_f32 {v(16+k)}, {v(vH+2*k)}, {v(vH+2*k+1)}")
    A(f"ds_write_b128 v41, v[16:19]")
    for k in range(4):
        A(f"ds_read_b128 {v(8+4*k,4)}, v42 offset:{16*k}")
    A(f"v_lshlrev_b32 v45, 2, {v(vS)}")
    A(f"v_add_u32 v45, {L_G}, v45")
    wait_flag(A, FG, 1, 46, lambda: A(f"ds_read_b32 v59, v45"))
    sel_gemm(A, 16, 8, vSEL, 24, 28, vMW2, 32)
    A(f"v_sub_f32 v59, 1.0, v59")
    for k in range(4):
        A(f"v_mul_f32 {v(32+k)}, {v(32+k)}, v59")
    A(f"v_cvt_pk_bf16_f32 v16, v32, v33")
    A(f"v_cvt_pk_bf16_f32 v17, v34, v35")
    A(f"buffer_store_dwordx2 v[16:17], v57, {s(sWS,4)}, 0 offen sc1")
    A(f"v_add_u32 v46, v16, v17")
    for d in ("quad_perm:[1,0,3,2]", "quad_perm:[2,3,0,1]", "row_half_mirror"):
        A(f"v_add_u32_dpp v46, v46, v46 {d} row_mask:0xf bank_mask:0xf")
    A(f"v_add_u32 v47, {s(sNONCE)}, v46")
    A(f"s_mov_b32 exec_lo, 0x01010101")
    A(f"s_mov_b32 exec_hi, 0x01010101")
    A(f"buffer_store_dwordx2 v[46:47], v58, {s(sWS,4)}, 0 offen sc1")
    A(f"s_mov_b64 exec, -1")
    stamp(A, cfg, 7, L=True)
    A(f"s_branch L_Ldone")
    A.label("L_tail")
    vWUV, vWO = 64, 128
    A(f"s_lshl_b32 {s(sT0)}, {s(sJ)}, 19")
    A(f"s_lshl_b32 {s(sT1)}, {s(sH)}, 8")
    A(f"s_add_u32 {s(sT0)}, {s(sT0)}, {s(sT1)}")
    A(f"v_lshlrev_b32 v41, 17, {v(vS)}")
    A(f"v_lshl_add_u32 v41, {v(vN)}, 4, v41")
    A(f"v_add_u32 v41, {s(sT0)}, v41")
    A(f"s_lshl_b32 {s(sT0)}, {s(sH)}, 17")
    A(f"s_lshl_b32 {s(sT1)}, {s(sJ)}, 7")
    A(f"s_add_u32 {s(sT0)}, {s(sT0)}, {s(sT1)}")
    A(f"v_lshlrev_b32 v42, 15, {v(vS)}")
    A(f"v_lshl_add_u32 v42, {v(vN)}, 3, v42")
    A(f"v_add_u32 v42, {s(sT0)}, v42")
    A(f"buffer_load_dword v61, v43, {s(sWS,4)}, 0 offen sc1")
    vPUB, vCPUB, vGA, vGB, vGC = 52, 53, 54, 55, 56
    partial_offsets(A, vL, vN, vS, WS_C1, WS_C1C, vPUB, vCPUB, vGA, vGB, vGC, 46)
    A(f"v_lshrrev_b32 v46, 3, {v(vN)}")
    A(f"v_lshl_add_u32 v46, {v(vS)}, 4, v46")
    A(f"s_lshl_b32 {s(sT0)}, {s(sJ)}, 1")
    A(f"v_add_u32 v46, {s(sT0)}, v46")
    A(f"s_movk_i32 {s(sT1)}, {NSLOT}")
    A(f"v_mul_lo_u32 v46, v46, {s(sT1)}")
    A(f"v_add_u32 v46, {s(sH)}, v46")
    A(f"v_lshlrev_b32 v60, 3, v46")
    A(f"v_add_u32 v60, {hex(WS_FC)}, v60")
    A(f"v_and_b32 v47, 7, {v(vN)}")
    A(f"v_lshlrev_b32 v47, 3, v47")
    A(f"v_lshl_add_u32 v59, v46, 6, v47")
    A(f"v_add_u32 v59, {hex(WS_FD)}, v59")
    if cfg.tail_early:
        if cfg.tail_delay: wait_flag(A, globals()[cfg.tail_delay], 1, 45)
    elif cfg.tail_flag: wait_flag(A, globals()[cfg.tail_flag], 4, 45)
    A(f"s_mov_b32 {s(sT2)}, 0")
    for k in range(16):
        if cfg.tailwin and k >= cfg.tailwin: A(f"s_waitcnt vmcnt({cfg.tailwin-1})")
        A(f"buffer_load_dwordx4 {v(vWUV+4*k,4)}, v41, {s(sWUV,4)}, {s(sT2)} offen{NT}")
        if k < 15: A(f"s_add_u32 {s(sT2)}, {s(sT2)}, 8192")
    def wo_loads():
        A(f"s_mov_b32 {s(sT2)}, 0")
        for k in range(32):
            if cfg.tailwin2 and k % 2 == 0: A(f"s_waitcnt vmcnt({cfg.tailwin2-2})")
            A(f"buffer_load_dwordx2 {v(vWO+2*k,2)}, v62, {s(sWO,4)}, {s(sT2)} offen offset:{1024*(k%4)}{NT}")
            if k % 4 == 3 and k < 31: A(f"s_add_u32 {s(sT2)}, {s(sT2)}, 4096")
    A(f"v_mov_b32 v62, v42")
    if not cfg.wo_flag: wo_loads()
    vONE, vG1, vCK1 = 192, 208, 240
    A(f"s_waitcnt vmcnt({16 if cfg.wo_flag else 48})")
    nonce_from(A, 61)
    A(f"v_lshlrev_b32 v45, 2, {v(vS)}")
    A(f"v_add_u32 v45, {L_G}, v45")
    wait_flag(A, FG, 1, 46, lambda: A(f"ds_read_b32 v58, v45"))
    make_ones(A, vN, vONE, 46)
    A(f"v_lshrrev_b32 v44, 2, {v(vN)}")
    A(f"v_lshlrev_b32 v42, 7, v44")
    A(f"v_lshl_add_u32 v42, {v(vS)}, 5, v42")
    A(f"v_add_u32 v42, {L_CC}, v42")
    A(f"v_lshlrev_b32 v43, 4, {v(vL)}")
    A(f"v_add_u32 v43, {L_CT}, v43")
    A(f"v_lshlrev_b32 v44, 8, v44")
    A(f"v_lshl_add_u32 v44, {v(vS)}, 6, v44")
    A(f"v_add_u32 v44, {L_CT}, v44")
    A(f"s_waitcnt vmcnt({0 if cfg.wo_flag else 32})")
    for t in range(8):
        A(f"v_swap_b32 {v(vWUV+8*t+2)}, {v(vWUV+8*t+4)}")
        A(f"v_swap_b32 {v(vWUV+8*t+3)}, {v(vWUV+8*t+5)}")
    if cfg.wo_flag == 'FPB':
        wait_flag(A, FPB, 4, 45)
        wo_loads()
    if not cfg.wo_flag: A(f"s_waitcnt vmcnt(0)")
    stamp(A, cfg, 4, L=True)
    vCP = 8
    def _rd():
        A(f"ds_read_b128 {v(vCP,4)}, v42")
        A(f"ds_read_b128 {v(vCP+4,4)}, v42 offset:16")
    lab = A.newlabel("L_cc"); done = A.newlabel("L_ccd")
    A(f"s_mov_b32 {s(sCNT2)}, 0")
    A.label(lab)
    _rd()
    A(f"s_waitcnt lgkmcnt(0)")
    A(f"v_max3_u32 v45, {v(vCP)}, {v(vCP+1)}, {v(vCP+2)}")
    A(f"v_max3_u32 v46, {v(vCP+3)}, {v(vCP+4)}, {v(vCP+5)}")
    A(f"v_max3_u32 v45, v45, {v(vCP+6)}, {v(vCP+7)}")
    A(f"v_max_u32 v45, v45, v46")
    A(f"v_cmp_eq_u32 vcc, -1, v45")
    A(f"s_cbranch_vccz {done}")
    A(f"s_add_u32 {s(sCNT2)}, {s(sCNT2)}, 1")
    A(f"s_cmp_lt_u32 {s(sCNT2)}, 4000000")
    A(f"s_cbranch_scc1 {lab}")
    A.label(done)
    stamp(A, cfg, 5, L=True)
    if cfg.wo_flag == 'FCC': wo_loads()
    sel_gemm(A, 8, vCP, vSEL, 24, 28, vWUV, 32, 36)
    publish_partial(A, 32, 36, 16, vPUB, vCPUB, 46, cfg.local_st, cfg.dual, cfg.defer)
    stamp(A, cfg, 6, L=True)
    gather_reduce(A, cfg, "L_hop4", vG1, vCK1, vONE, vGA, vGB, vGC, 32, 36, 46)
    savecnt(A, cfg, 0)
    stamp(A, cfg, 7, L=True)
    A(f"v_cvt_pk_bf16_f32 v16, v32, v33")
    A(f"v_cvt_pk_bf16_f32 v17, v34, v35")
    A(f"v_cvt_pk_bf16_f32 v18, v36, v37")
    A(f"v_cvt_pk_bf16_f32 v19, v38, v39")
    A(f"ds_write_b128 v43, v[16:19]")
    vXP2 = 8
    for k in range(4):
        A(f"ds_read_b128 {v(vXP2+4*k,4)}, v44 offset:{16*k}")
    def _x(t):
        if t % 4 == 0: A(f"s_waitcnt lgkmcnt({3-t//4})")
    sel_gemm(A, 16, vXP2, vSEL, 24, 28, vWO, 32, xwait=_x)
    for k in range(4):
        A(f"v_mul_f32 {v(32+k)}, {v(32+k)}, v58")
    A(f"v_cvt_pk_bf16_f32 v16, v32, v33")
    A(f"v_cvt_pk_bf16_f32 v17, v34, v35")
    if cfg.pw_fd: wait_flag(A, FP2, 1, 45)
    A(f"buffer_store_dwordx2 v[16:17], v59, {s(sWS,4)}, 0 offen sc1")
    A(f"v_add_u32 v46, v16, v17")
    for d in ("quad_perm:[1,0,3,2]", "quad_perm:[2,3,0,1]", "row_half_mirror"):
        A(f"v_add_u32_dpp v46, v46, v46 {d} row_mask:0xf bank_mask:0xf")
    A(f"v_add_u32 v47, {s(sNONCE)}, v46")
    A(f"s_mov_b32 exec_lo, 0x01010101")
    A(f"s_mov_b32 exec_hi, 0x01010101")
    A(f"buffer_store_dwordx2 v[46:47], v60, {s(sWS,4)}, 0 offen sc1")
    A(f"s_mov_b64 exec, -1")
    if cfg.hop5_gate:
        if cfg.hop5_gate == 2: A(f"s_waitcnt vmcnt(0)")
        arrive(A, FT, 45)
    A.label("L_Ldone")
    if cfg.ts:
        stamp(A, cfg, 1, L=True)
        emit_ts(A, cfg, L=True)
    A.label("L_exit")
    A(f"s_endpgm")
    A.label("L_end")
    lines = hazard.fix(A.l, verbose=True)
    return "\n".join(lines) + "\n"

def emit_ts(A, cfg, L=False):
    A(f"s_waitcnt lgkmcnt(0) vmcnt(0)")
    A(f"s_mov_b64 exec, 0x3ff")
    A(f"v_mbcnt_lo_u32_b32 v0, -1, 0")
    A(f"v_mov_b32 v1, 0")
    for k in range(10):
        A(f"v_mov_b32 v2, {s(sTS+2*k)}")
        A(f"v_cmp_eq_u32 vcc, {k}, v0")
        A(f"v_cndmask_b32 v1, v1, v2, vcc")
    if cfg.cnts:
        A(f"s_mov_b64 exec, 0xffff")
        for k in range(6):
            A(f"v_mov_b32 v2, {s(CNTREG[k])}")
            A(f"v_cmp_eq_u32 vcc, {10+k}, v0")
            A(f"v_cndmask_b32 v1, v1, v2, vcc")
    A(f"s_lshl_b32 {s(sT0)}, s2, 3")
    A(f"s_add_u32 {s(sT0)}, {s(sT0)}, {s(sW)}")
    if L: A(f"s_add_u32 {s(sT0)}, {s(sT0)}, 4")
    A(f"s_lshl_b32 {s(sT0)}, {s(sT0)}, 6")
    A(f"s_add_u32 {s(sT0)}, {s(sT0)}, {hex(WS_DBG)}")
    A(f"v_lshl_add_u32 v2, v0, 2, {s(sT0)}")
    A(f"buffer_store_dword v1, v2, {s(sWS,4)}, 0 offen")

def build(cfg, path):
    body = gen(cfg)
    txt = wrap([(KNAME, body, 256, 102, 256)], [(KNAME, (256,1,1), (512,1,1), LDS_SIZE)])
    open(path, "w").write(txt)
    return path

if __name__ == "__main__":
    import build as B
    cfg = Cfg()
    for a_ in sys.argv[2:]:
        k, val = a_.split("=")
        setattr(cfg, k, eval(val))
    p = build(cfg, sys.argv[1])
    B.build(p, p.replace(".s", ".co"))
    import subprocess
    print(subprocess.run(f"llvm-objdump -d --mcpu=gfx950 {p.replace('.s','.co')} | grep -c '//' ; llvm-readelf -S {p.replace('.s','.co')} | grep -E 'text'", shell=True, capture_output=True, text=True).stdout)
```

```python
import sys; sys.path.insert(0, "dev")
from asmlib import *
import hazard

WS_E = 0
WS_Q1, WS_Q1C = 0x10000, 0x50000
WS_QA, WS_QC = 0x60000, 0x80000
WS_C1, WS_C1C = 0x90000, 0xD0000
WS_FD, WS_FC = 0xE0000, 0x130000
WS_H1, WS_H1C = 0x1C0000, 0x1E0000
WS_ST, WS_OP, WS_DBG = 0x140000, 0x200000, 0x800000
import os
WSBASE = int(os.environ.get('WSBASE', '0'), 0)
for _n in [k for k in list(globals()) if k.startswith('WS_')]: globals()[_n] += WSBASE
PITCH = 1056
L_KV = 0
L_QL = 128 * PITCH
L_MISC = L_QL + 16 * PITCH
L_QB = L_MISC
L_MX = L_MISC + 1024
L_LS = L_MISC + 1280
L_G  = L_MISC + 1536
L_FL = L_MISC + 1600
L_PB = L_MISC + 2048
L_CC = L_MISC + 6144
L_HR = L_MISC + 6656
L_CT = L_MISC + 8704
FKI, FKV, F3, FH2, FT, FPB, FCC, FP1, FP2, FP3, FW, FG = range(12)
LDS_SIZE = L_MISC + 9728
NPROD = 43
NSLOT = 48
NMG = 11
MLP0 = 64
NMLP = 43
HASH_K, HASH_C = 0x9E3779B1, 0x7F4A7C15
SCALE = (128 ** -0.5) * 1.4426950408889634
LOG2E = 1.4426950408889634

sX, sKV, sWQ, sWUK, sWUV, sWO, sW1, sB1, sW2, sGW, sOUT, sWS = 8, 12, 16, 20, 24, 28, 32, 36, 40, 44, 48, 52
sW, sXCD, sR, sHG, sJ, sH, sB, sKC, sNONCE, sE = 56, 57, 58, 59, 60, 61, 62, 63, 64, 65
sT0, sT1, sT2, sT3, sT4, sT5 = 66, 67, 68, 69, 70, 71
sCNT = 72
sCNT2 = 73
sEX = 74
sM0 = 76
sM1 = 78
sTS = 80
sM2, sM3 = 4, 6
CNTREG = [81, 83, 85, 87, 89, 91]
sHJ = 100
sFB, sDELTA = 101, 3
LOCAL_DELTA = 0x600000
LOCAL_TRIES = 8
POLL_MAX = 20000

def f2u(x):
    import struct
    return struct.unpack("<I", struct.pack("<f", x))[0]

class Cfg:
    nt_w = True
    ts = False
    tsmask = 0x3ff
    prio = True
    wait_kv_first = False
    l_after_m = False
    nt_kv = True
    nt_wq = True
    nt_tail = True
    poll_sleep = 0
    early = False
    cnts = False
    tail_after_f3 = True
    kvwin = 7
    kvwin0 = 0
    kvn0 = 8
    l_delay = True
    mlpwin1 = 16
    mlpwin2 = 6
    two_stage = False
    exp = ''
    pw = False
    pw_qa = False
    pw_fd = False
    nomlp = False
    mlp_split = True
    mlp_w1_flag = 'FPB'
    tail_flag = 'F3'
    wo_flag = 'FH3'
    rot = True
    tailwin = 0
    two3 = False
    hop3_ack = True
    g_ts = False
    pad = 0
    padm = 0
    mlp_w2 = None
    hop4_ack = False
    hop1_ack = False
    hopm_ack = False
    hop5_gate = 2
    hop2_gate = True
    hop3_sleep = 0
    hop2_ack = False
    hop5_tags = False
    pubts = False
    tlb = 0
    tail_early = False
    tail_delay = None
    addr_early = True
    fw_at = 'pub'
    tailwin2 = 0
    mlp_w2_flag = 'FCC'
    local_st = 'sc1'
    dual = True
    defer = True
    local_ld = 'sc1'
    pw_op = False
    no_l = False
    stop = None
    prefetch_code = True

def srd(A, sr, karg_off, size):
    A(f"s_load_dwordx2 {s(sr,2)}, s[0:1], {karg_off}")
def srd_fin(A, sr, size):
    A(f"s_mov_b32 {s(sr+2)}, {hex(size)}")
    A(f"s_mov_b32 {s(sr+3)}, 0x20000")

def savecnt(A, cfg, k):
    if cfg.ts and cfg.cnts: A(f"s_mov_b32 {s(CNTREG[k])}, {s(sCNT)}")
def pstamp(A, cfg, k):
    if cfg.ts and cfg.pubts:
        A(f"s_memrealtime {s(sTS+2*k,2)}")
        A(f"s_waitcnt lgkmcnt(0)")
def estamp(A, cfg, k):
    if cfg.ts and cfg.early:
        A(f"s_memrealtime {s(sTS+2*k,2)}")
        A(f"s_waitcnt lgkmcnt(0)")
def stamp(A, cfg, k, L=False):
    if cfg.early and k >= 3 and not L: return
    if cfg.pubts and not L and k in (1,2,3,4,5,6,7,8): return
    if cfg.ts and (cfg.tsmask >> k) & 1:
        A(f"s_memrealtime {s(sTS+2*k,2)}")
        A(f"s_waitcnt lgkmcnt(0)")

vFLA = 3
def arrive(A, f, one, fla=None):
    A(f"v_mov_b32 {v(one)}, 1")
    A(f"s_mov_b64 {s(sEX,2)}, exec")
    A(f"s_mov_b64 exec, 1")
    A(f"ds_add_u32 {v(fla if fla is not None else vFLA)}, {v(one)} offset:{4*f}")
    A(f"s_mov_b64 exec, {s(sEX,2)}")
def wait_flag(A, f, n, tmp, extra=None, fla=None):
    lab = A.newlabel("L_fw"); done = A.newlabel("L_fd")
    A(f"s_mov_b32 {s(sCNT2)}, 0")
    A.label(lab)
    A(f"ds_read_b32 {v(tmp)}, {v(fla if fla is not None else vFLA)} offset:{4*f}")
    if extra: extra()
    A(f"s_waitcnt lgkmcnt(0)")
    A(f"v_cmp_gt_u32 vcc, {n}, {v(tmp)}")
    A(f"s_cbranch_vccz {done}")
    A(f"s_add_u32 {s(sCNT2)}, {s(sCNT2)}, 1")
    A(f"s_cmp_lt_u32 {s(sCNT2)}, 2000000")
    A(f"s_cbranch_scc1 {lab}")
    A.label(done)

def xreduce_rows(A, op, x, tmp):
    A(f"v_mov_b32 {v(tmp)}, {v(x)}")
    A(f"v_permlane16_swap_b32 {v(x)}, {v(tmp)}")
    A(f"{op} {v(x)}, {v(x)}, {v(tmp)}")
    A(f"v_mov_b32 {v(tmp)}, {v(x)}")
    A(f"v_permlane32_swap_b32 {v(x)}, {v(tmp)}")
    A(f"{op} {v(x)}, {v(x)}, {v(tmp)}")

def xreduce_rows2(A, op0, x0, t0, op1, x1, t1):
    for sw in ("v_permlane16_swap_b32", "v_permlane32_swap_b32"):
        A(f"v_mov_b32 {v(t0)}, {v(x0)}")
        A(f"v_mov_b32 {v(t1)}, {v(x1)}")
        A(f"{sw} {v(x0)}, {v(t0)}")
        A(f"{sw} {v(x1)}, {v(t1)}")
        A(f"{op0} {v(x0)}, {v(x0)}, {v(t0)}")
        A(f"{op1} {v(x1)}, {v(x1)}, {v(t1)}")

def wave_sum_u32(A, x, t):
    for d in ("quad_perm:[1,0,3,2]", "quad_perm:[2,3,0,1]", "row_half_mirror", "row_mirror"):
        A(f"v_add_u32_dpp {v(x)}, {v(x)}, {v(x)} {d} row_mask:0xf bank_mask:0xf")
    xreduce_rows(A, "v_add_u32", x, t)

def sum_dwords(A, dst, regs):
    regs = list(regs)
    A(f"v_add3_u32 {v(dst)}, {v(regs[0])}, {v(regs[1])}, {v(regs[2])}")
    k = 3
    while k + 1 < len(regs):
        A(f"v_add3_u32 {v(dst)}, {v(dst)}, {v(regs[k])}, {v(regs[k+1])}"); k += 2
    if k < len(regs):
        A(f"v_add_u32 {v(dst)}, {v(dst)}, {v(regs[k])}")

def make_sels(A, vn, vsel, vt):
    A(f"v_and_b32 {v(vt)}, 3, {v(vn)}")
    A(f"v_mov_b32 {v(vt+1)}, 0x0c0c0c0c")
    pats = [(0, 0x0c0c0100, 1, 0x01000c0c), (2, 0x0c0c0100, 3, 0x01000c0c), (0, 0x0c0c0302, 1, 0x03020c0c), (2, 0x0c0c0302, 3, 0x03020c0c)]
    for k, (j0, p0, j1, p1) in enumerate(pats):
        A(f"v_mov_b32 {v(vt+2)}, {hex(p0)}")
        A(f"v_cmp_eq_u32 vcc, {j0}, {v(vt)}")
        A(f"v_cndmask_b32 {v(vsel+k)}, {v(vt+1)}, {v(vt+2)}, vcc")
        A(f"v_mov_b32 {v(vt+2)}, {hex(p1)}")
        A(f"v_cmp_eq_u32 vcc, {j1}, {v(vt)}")
        A(f"v_cndmask_b32 {v(vsel+k)}, {v(vsel+k)}, {v(vt+2)}, vcc")

def sel_gemm_step(A, xp, vsel, af, wreg, dx, dy, first, swap=True):
    if swap:
        A(f"v_swap_b32 {v(wreg+2)}, {v(wreg+4)}")
        A(f"v_swap_b32 {v(wreg+3)}, {v(wreg+5)}")
    for k in range(4):
        A(f"v_perm_b32 {v(af+k)}, {v(xp)}, {v(xp)}, {v(vsel+k)}")
    c0 = "0" if first else v(dx,4)
    c1 = "0" if first else v(dy,4)
    A(f"v_mfma_f32_16x16x32_bf16 {v(dx,4)}, {v(af,4)}, {v(wreg,4)}, {c0}")
    A(f"v_mfma_f32_16x16x32_bf16 {v(dy,4)}, {v(af,4)}, {v(wreg+4,4)}, {c1}")

def sel_gemm(A, n, xp, vsel, af0, af1, w, dx, dy=None, swap=False, wwait=None, xwait=None):
    st = 8 if dy is not None else 4
    def perms(t):
        if xwait: xwait(t)
        af = af0 if t % 2 == 0 else af1
        for k in range(4):
            A(f"v_perm_b32 {v(af+k)}, {v(xp+t)}, {v(xp+t)}, {v(vsel+k)}")
    perms(0)
    for t in range(n):
        if wwait: wwait(t)
        wr = w + st*t
        if swap:
            A(f"v_swap_b32 {v(wr+2)}, {v(wr+4)}")
            A(f"v_swap_b32 {v(wr+3)}, {v(wr+5)}")
        if t + 1 < n: perms(t+1)
        af = af0 if t % 2 == 0 else af1
        A(f"v_mfma_f32_16x16x32_bf16 {v(dx,4)}, {v(af,4)}, {v(wr,4)}, {'0' if t == 0 else v(dx,4)}")
        if dy is not None:
            A(f"v_mfma_f32_16x16x32_bf16 {v(dy,4)}, {v(af,4)}, {v(wr+4,4)}, {'0' if t == 0 else v(dy,4)}")

def poll_head(A, name):
    lab = A.newlabel(name)
    A(f"s_mov_b32 {s(sCNT)}, 0")
    A.label(lab)
    return lab
def poll_tail(A, lab, bad_pair, sleep=0):
    done = A.newlabel("done")
    A(f"s_cmp_eq_u64 {s(bad_pair,2)}, 0")
    A(f"s_cbranch_scc1 {done}")
    if sleep: A(f"s_sleep {sleep}")
    A(f"s_add_u32 {s(sCNT)}, {s(sCNT)}, 1")
    A(f"s_cmp_lt_u32 {s(sCNT)}, {POLL_MAX}")
    A(f"s_cbranch_scc1 {lab}")
    A.label(done)

def publish_final(A, cfg, dx, dy, vscale, vprod_off, vchk_off, pk, t):
    for k in range(4):
        A(f"v_mul_f32 {v(dx+k)}, {v(dx+k)}, {v(vscale)}")
        A(f"v_mul_f32 {v(dy+k)}, {v(dy+k)}, {v(vscale)}")
    A(f"v_cvt_pk_bf16_f32 {v(pk)}, {v(dx)}, {v(dx+1)}")
    A(f"v_cvt_pk_bf16_f32 {v(pk+1)}, {v(dx+2)}, {v(dx+3)}")
    A(f"v_cvt_pk_bf16_f32 {v(pk+2)}, {v(dy)}, {v(dy+1)}")
    A(f"v_cvt_pk_bf16_f32 {v(pk+3)}, {v(dy+2)}, {v(dy+3)}")
    A(f"buffer_store_dwordx4 {v(pk,4)}, {v(vprod_off)}, {s(sWS,4)}, 0 offen sc1")
    sum_dwords(A, t, [pk, pk+1, pk+2, pk+3])
    A(f"v_add_u32_dpp {v(t)}, {v(t)}, {v(t)} quad_perm:[1,0,3,2] row_mask:0xf bank_mask:0xf")
    A(f"v_add_u32_dpp {v(t)}, {v(t)}, {v(t)} quad_perm:[2,3,0,1] row_mask:0xf bank_mask:0xf")
    A(f"v_add_u32 {v(t+1)}, {s(sNONCE)}, {v(t)}")
    A(f"s_mov_b64 {s(sEX,2)}, exec")
    A(f"s_mov_b32 exec_lo, 0x11111111")
    A(f"s_mov_b32 exec_hi, 0x11111111")
    A(f"buffer_store_dwordx2 {v(t,2)}, {v(vchk_off)}, {s(sWS,4)}, 0 offen sc1")
    A(f"s_mov_b64 exec, {s(sEX,2)}")

def final_offsets(A, vn, vq, s_ct, s_prod, voff, vchk, t):
    A(f"v_lshrrev_b32 {v(t)}, 2, {v(vn)}")
    A(f"v_lshl_add_u32 {v(t)}, {v(vq)}, 4, {v(t)}")
    A(f"s_lshl_b32 {s(sT0)}, {s(s_ct)}, 2")
    A(f"v_add_u32 {v(t)}, {s(sT0)}, {v(t)}")
    A(f"s_movk_i32 {s(sT1)}, {NSLOT}")
    A(f"v_mul_lo_u32 {v(t)}, {v(t)}, {s(sT1)}")
    A(f"v_add_u32 {v(t)}, {s(s_prod)}, {v(t)}")
    A(f"v_lshlrev_b32 {v(vchk)}, 3, {v(t)}")
    A(f"v_add_u32 {v(vchk)}, {hex(WS_FC)}, {v(vchk)}")
    A(f"v_and_b32 {v(t+1)}, 3, {v(vn)}")
    A(f"v_lshlrev_b32 {v(t+1)}, 4, {v(t+1)}")
    A(f"v_lshl_add_u32 {v(voff)}, {v(t)}, 6, {v(t+1)}")
    A(f"v_add_u32 {v(voff)}, {hex(WS_FD)}, {v(voff)}")


def nonce_from(A, vreg):
    A(f"v_readfirstlane_b32 {s(sE)}, {v(vreg)}")
    A(f"s_mul_i32 {s(sNONCE)}, {s(sE)}, {hex(HASH_K)}")
    A(f"s_add_u32 {s(sNONCE)}, {s(sNONCE)}, {hex(HASH_C)}")

def make_ones(A, vn, dst, t):
    A(f"v_and_b32 {v(t)}, 3, {v(vn)}")
    A(f"v_lshrrev_b32 {v(t+1)}, 2, {v(vn)}")
    A(f"v_mov_b32 {v(t+2)}, 0")
    for k, (j0, j1) in enumerate(((0,1),(2,3))):
        A(f"v_mov_b32 {v(t+3)}, 0x3f80")
        A(f"v_cmp_eq_u32 vcc, {j0}, {v(t)}")
        A(f"v_cndmask_b32 {v(t+4+k)}, {v(t+2)}, {v(t+3)}, vcc")
        A(f"v_mov_b32 {v(t+3)}, 0x3f800000")
        A(f"v_cmp_eq_u32 vcc, {j1}, {v(t)}")
        A(f"v_cndmask_b32 {v(t+4+k)}, {v(t+4+k)}, {v(t+3)}, vcc")
    for b in range(4):
        A(f"v_cmp_eq_u32 vcc, {b}, {v(t+1)}")
        A(f"v_cndmask_b32 {v(dst+4*b)}, {v(t+2)}, {v(t+4)}, vcc")
        A(f"v_cndmask_b32 {v(dst+4*b+1)}, {v(t+2)}, {v(t+5)}, vcc")
        A(f"v_mov_b32 {v(dst+4*b+2)}, {v(dst+4*b)}")
        A(f"v_mov_b32 {v(dst+4*b+3)}, {v(dst+4*b+1)}")

def partial_offsets(A, vl, vn, vs, base, chkbase, vpub, vchkpub, vga, vgb, vgc, t, sHJ=sHJ, sH=sH):
    A(f"s_lshl_b32 {s(sT0)}, {s(sHJ)}, 10")
    A(f"s_add_u32 {s(sT0)}, {s(sT0)}, {hex(base)}")
    A(f"v_lshl_add_u32 {v(vpub)}, {v(vl)}, 4, {s(sT0)}")
    A(f"s_lshl_b32 {s(sT0)}, {s(sHJ)}, 3")
    A(f"s_add_u32 {s(sT0)}, {s(sT0)}, {hex(chkbase)}")
    A(f"v_mov_b32 {v(vchkpub)}, {s(sT0)}")
    A(f"s_lshl_b32 {s(sT0)}, {s(sH)}, 13")
    A(f"s_add_u32 {s(sT0)}, {s(sT0)}, {hex(base)}")
    A(f"v_lshlrev_b32 {v(t)}, 10, {v(vs)}")
    A(f"v_lshl_add_u32 {v(t)}, {v(vn)}, 4, {v(t)}")
    A(f"v_add_u32 {v(vga)}, {s(sT0)}, {v(t)}")
    A(f"v_add_u32 {v(vgb)}, 4096, {v(vga)}")
    A(f"s_lshl_b32 {s(sT0)}, {s(sH)}, 6")
    A(f"s_add_u32 {s(sT0)}, {s(sT0)}, {hex(chkbase)}")
    A(f"v_lshl_add_u32 {v(t)}, {v(vl)}, 3, {s(sT0)}")
    A(f"v_cmp_gt_u32 {s(sM2,2)}, 8, {v(vl)}")
    A(f"v_mov_b32 {v(t+1)}, 0x7ffffff0")
    A(f"v_cndmask_b32 {v(vgc)}, {v(t+1)}, {v(t)}, {s(sM2,2)}")

def publish_partial(A, dx, dy, pk, vpub, vchkpub, t, fl='sc1', dual=False, defer=False):
    A(f"v_cvt_pk_bf16_f32 {v(pk)}, {v(dx)}, {v(dx+1)}")
    A(f"v_cvt_pk_bf16_f32 {v(pk+1)}, {v(dx+2)}, {v(dx+3)}")
    A(f"v_cvt_pk_bf16_f32 {v(pk+2)}, {v(dy)}, {v(dy+1)}")
    A(f"v_cvt_pk_bf16_f32 {v(pk+3)}, {v(dy+2)}, {v(dy+3)}")
    if dual:
        A(f"buffer_store_dwordx4 {v(pk,4)}, {v(vpub)}, {s(sWS,4)}, 0 offen")
        if not defer: A(f"buffer_store_dwordx4 {v(pk,4)}, {v(vpub)}, {s(sWS,4)}, {s(sDELTA)} offen sc1")
    else:
        A(f"buffer_store_dwordx4 {v(pk,4)}, {v(vpub)}, {s(sWS,4)}, 0 offen {fl}")
    sum_dwords(A, t, [pk, pk+1, pk+2, pk+3])
    wave_sum_u32(A, t, t+2)
    A(f"v_add_u32 {v(t+1)}, {s(sNONCE)}, {v(t)}")
    A(f"s_mov_b64 {s(sEX,2)}, exec")
    A(f"s_mov_b64 exec, 1")
    if dual:
        A(f"buffer_store_dwordx2 {v(t,2)}, {v(vchkpub)}, {s(sWS,4)}, 0 offen")
        if not defer: A(f"buffer_store_dwordx2 {v(t,2)}, {v(vchkpub)}, {s(sWS,4)}, {s(sDELTA)} offen sc1")
    else:
        A(f"buffer_store_dwordx2 {v(t,2)}, {v(vchkpub)}, {s(sWS,4)}, 0 offen {fl}")
    A(f"s_mov_b64 exec, {s(sEX,2)}")
    if dual and defer:
        A(f"v_mov_b32 {v(pk+4)}, {v(t)}")
        A(f"v_mov_b32 {v(pk+5)}, {v(t+1)}")

def global_copy(A, pk, vpub, vchkpub):
    A(f"buffer_store_dwordx4 {v(pk,4)}, {v(vpub)}, {s(sWS,4)}, {s(sDELTA)} offen sc1")
    A(f"s_mov_b64 {s(sEX,2)}, exec")
    A(f"s_mov_b64 exec, 1")
    A(f"buffer_store_dwordx2 {v(pk+4,2)}, {v(vchkpub)}, {s(sWS,4)}, {s(sDELTA)} offen sc1")
    A(f"s_mov_b64 exec, {s(sEX,2)}")

def gather_reduce(A, cfg, name, G, CK, ones, vga, vgb, vgc, dx, dy, t, pk=16, vpub=52, vchkpub=53):
    so = s(sFB) if cfg.dual else "0"
    if cfg.dual: A(f"s_mov_b32 {s(sFB)}, 0")
    lab = poll_head(A, name)
    if cfg.dual:
        if cfg.defer:
            skip = A.newlabel("L_nosw")
            A(f"s_cmp_lg_u32 {s(sCNT)}, {LOCAL_TRIES}")
            A(f"s_cbranch_scc1 {skip}")
            global_copy(A, pk, vpub, vchkpub)
            A.label(skip)
        A(f"s_cmp_ge_u32 {s(sCNT)}, {LOCAL_TRIES}")
        A(f"s_cselect_b32 {s(sFB)}, {s(sDELTA)}, 0")
    for b in range(4):
        A(f"buffer_load_dwordx4 {v(G+8*b,4)}, {v(vga)}, {s(sWS,4)}, {so} offen offset:{256*b} {cfg.local_ld}")
        A(f"buffer_load_dwordx4 {v(G+8*b+4,4)}, {v(vgb)}, {s(sWS,4)}, {so} offen offset:{256*b} {cfg.local_ld}")
    A(f"buffer_load_dwordx2 {v(CK,2)}, {v(vgc)}, {s(sWS,4)}, {so} offen {cfg.local_ld}")
    A(f"s_waitcnt vmcnt(0)")
    sum_dwords(A, t, range(G, G+16))
    sum_dwords(A, t+1, range(G+16, G+32))
    A(f"v_add_u32 {v(t)}, {v(t)}, {v(t+1)}")
    A(f"v_sub_u32 {v(t)}, {v(t)}, {v(CK)}")
    A(f"v_add_u32 {v(t+1)}, {s(sNONCE)}, {v(CK)}")
    A(f"v_cmp_ne_u32 vcc, {v(t+1)}, {v(CK+1)}")
    wave_sum_u32(A, t, t+2)
    A(f"s_and_b64 {s(sM1,2)}, vcc, {s(sM2,2)}")
    A(f"v_cmp_ne_u32 vcc, 0, {v(t)}")
    A(f"s_or_b64 {s(sM1,2)}, {s(sM1,2)}, vcc")
    poll_tail(A, lab, sM1, cfg.poll_sleep)
    if cfg.dual and cfg.defer:
        skip = A.newlabel("L_nocp")
        A(f"s_cmp_ge_u32 {s(sCNT)}, {LOCAL_TRIES}")
        A(f"s_cbranch_scc1 {skip}")
        global_copy(A, pk, vpub, vchkpub)
        A.label(skip)
    for b in range(4):
        w = G + 8*b
        A(f"v_swap_b32 {v(w+2)}, {v(w+4)}")
        A(f"v_swap_b32 {v(w+3)}, {v(w+5)}")
    for b in range(4):
        w = G + 8*b
        c0 = "0" if b == 0 else v(dx,4); c1 = "0" if b == 0 else v(dy,4)
        A(f"v_mfma_f32_16x16x32_bf16 {v(dx,4)}, {v(ones+4*b,4)}, {v(w,4)}, {c0}")
        A(f"v_mfma_f32_16x16x32_bf16 {v(dy,4)}, {v(ones+4*b,4)}, {v(w+4,4)}, {c1}")

def gen(cfg):
    A = Asm()
    NT = " nt" if cfg.nt_tail else ""
    NTKV = " nt" if cfg.nt_kv else ""
    NTWQ = " nt" if cfg.nt_wq else ""
    vL, vN, vS = 0, 1, 2
    vSEL = 4
    A(f"s_cmp_ge_u32 s2, 256")
    A(f"s_cbranch_scc1 L_exit")
    for sr, off in ((sX,0),(sWQ,16),(sWUK,24),(sWS,104),(sKV,8),(sWUV,32),(sWO,40),(sW1,56),(sB1,64),(sW2,72),(sGW,80),(sOUT,88)):
        srd(A, sr, off, 0)
    stamp(A, cfg, 0)
    for _ in range(cfg.pad): A("s_nop 0")
    A(f"v_lshrrev_b32 v4, 6, v0")
    A(f"v_and_b32 {v(vL)}, 63, v0")
    A(f"v_readfirstlane_b32 {s(sW)}, v4")
    A(f"v_and_b32 {v(vN)}, 15, {v(vL)}")
    A(f"v_lshrrev_b32 {v(vS)}, 4, {v(vL)}")
    A(f"v_mov_b32 {v(vFLA)}, {L_FL}")
    A(f"v_lshl_add_u32 v40, {v(vN)}, 2, {v(vFLA)}")
    A(f"v_mov_b32 v41, 0")
    A(f"ds_write_b32 v40, v41")
    A(f"v_mov_b32 v42, -1")
    A(f"v_mov_b32 v43, -1")
    A(f"v_lshlrev_b32 v40, 3, {v(vL)}")
    A(f"v_add_u32 v41, {L_MX}, v40")
    A(f"ds_write_b64 v41, v[42:43]")
    A(f"v_add_u32 v41, {L_CC}, v40")
    A(f"ds_write_b64 v41, v[42:43]")
    A(f"s_and_b32 {s(sXCD)}, s2, 7")
    A(f"s_lshr_b32 {s(sR)}, s2, 3")
    A(f"s_and_b32 {s(sHG)}, {s(sR)}, 1")
    A(f"s_bfe_u32 {s(sJ)}, {s(sR)}, 0x30001")
    A(f"s_lshr_b32 {s(sT0)}, {s(sR)}, 4")
    A(f"s_lshl_b32 {s(sT1)}, {s(sXCD)}, 1")
    A(f"s_add_u32 {s(sT1)}, {s(sT1)}, {s(sT0)}")
    A(f"s_lshl_b32 {s(sT0)}, {s(sHG)}, 4")
    A(f"s_add_u32 {s(sH)}, {s(sT0)}, {s(sT1)}")
    A(f"s_lshl_b32 {s(sHJ)}, {s(sH)}, 3")
    A(f"s_add_u32 {s(sHJ)}, {s(sHJ)}, {s(sJ)}")
    A(f"s_lshr_b32 {s(sB)}, {s(sXCD)}, 1")
    A(f"s_and_b32 {s(sT0)}, {s(sXCD)}, 1")
    A(f"s_lshl_b32 {s(sT0)}, {s(sT0)}, 4")
    A(f"s_lshr_b32 {s(sT1)}, {s(sR)}, 1")
    A(f"s_add_u32 {s(sKC)}, {s(sT0)}, {s(sT1)}")
    for sr, size in ((sX,4096),(sWQ,4<<20),(sWUK,4<<20),(sWS,256<<20),(sKV,16<<20),(sWUV,4<<20),(sWO,4<<20),(sW1,512*2752),(sB1,2752),(sW2,1376*1024),(sGW,1024),(sOUT,4096)):
        srd_fin(A, sr, size)
    A(f"s_mov_b32 {s(sDELTA)}, {hex(LOCAL_DELTA)}")
    A(f"s_waitcnt lgkmcnt(0)")
    A(f"s_barrier")
    A(f"s_cmp_ge_u32 {s(sW)}, 4")
    A(f"s_cbranch_scc1 L_Lpath")
    if cfg.prio: A(f"s_setprio 3")
    for _ in range(cfg.padm): A("s_nop 0")
    vXP, vAF0, vAF1, vQX, vQY, vT = 8, 24, 28, 32, 36, 40
    vWUK, vWQ = 64, 128
    vA0, vA1, vA2 = 40, 41, 42
    vE = 44
    A(f"v_mov_b32 v43, {hex(WS_E)}")
    A(f"buffer_load_dword {v(vE)}, v43, {s(sWS,4)}, 0 offen sc1")
    if cfg.exp == 'kvonly': A(f"s_branch L_Mdone")
    A(f"s_cmp_lg_u32 {s(sW)}, 0")
    A(f"s_cbranch_scc1 L_noq")
    aQG, aQC, aQL, aQE, aQO, aKE, aKO, aPV0, aPV1, aMXR, aMXW, aPR, aPW, aOP0, aOP1, aST = range(8, 24)
    vQG, vQC = 64, 80
    def attn_addresses():
        A(f"s_lshl_b32 {s(sT0)}, {s(sB)}, 1")
        A(f"s_add_u32 {s(sT0)}, {s(sT0)}, {s(sHG)}")
        A(f"s_lshl_b32 {s(sT0)}, {s(sT0)}, 4")
        A(f"s_lshl_b32 {s(sT1)}, {s(sW)}, 2")
        A(f"s_add_u32 {s(sT0)}, {s(sT0)}, {s(sT1)}")
        A(f"s_lshl_b32 {s(sT1)}, {s(sT0)}, 10")
        A(f"s_add_u32 {s(sT1)}, {s(sT1)}, {hex(WS_QA)}")
        A(f"v_lshl_add_u32 {v(aQG)}, {v(vL)}, 4, {s(sT1)}")
        A(f"s_lshl_b32 {s(sT1)}, {s(sT0)}, 6")
        A(f"s_add_u32 {s(sT1)}, {s(sT1)}, {hex(WS_QC)}")
        A(f"v_lshl_add_u32 {v(aQC)}, {v(vL)}, 3, {s(sT1)}")
        A(f"v_cmp_lt_u32 {s(sM0,2)}, {v(vL)}, 32")
        A(f"v_mov_b32 v43, 0x7ffffff0")
        A(f"v_cndmask_b32 {v(aQC)}, v43, {v(aQC)}, {s(sM0,2)}")
        A(f"s_mul_i32 {s(sT1)}, {s(sW)}, {4*PITCH}")
        A(f"s_add_u32 {s(sT1)}, {s(sT1)}, {L_QL}")
        A(f"v_lshl_add_u32 {v(aQL)}, {v(vL)}, 4, {s(sT1)}")
        A(f"s_movk_i32 {s(sT1)}, {PITCH}")
        A(f"v_mul_lo_u32 v44, {v(vN)}, {s(sT1)}")
        A(f"v_lshl_add_u32 v44, {v(vS)}, 8, v44")
        A(f"v_and_b32 v45, 1, {v(vS)}")
        A(f"v_lshlrev_b32 v45, 4, v45")
        A(f"v_add_u32 {v(aQE)}, v44, v45")
        A(f"v_sub_u32 {v(aQO)}, v44, v45")
        A(f"s_mul_i32 {s(sT0)}, {s(sW)}, {32*PITCH}")
        A(f"v_add_u32 {v(aKE)}, {s(sT0)}, {v(aQE)}")
        A(f"v_add_u32 {v(aKO)}, {s(sT0)}, {v(aQO)}")
        A(f"v_add_u32 {v(aQE)}, {L_QL}, {v(aQE)}")
        A(f"v_add_u32 {v(aQO)}, {L_QL}, {v(aQO)}")
        A(f"v_lshrrev_b32 v46, 2, {v(vL)}")
        A(f"v_mul_lo_u32 v46, v46, {s(sT1)}")
        A(f"v_and_b32 v47, 3, {v(vL)}")
        A(f"v_lshl_add_u32 v46, v47, 3, v46")
        A(f"s_lshl_b32 {s(sT0)}, {s(sW)}, 8")
        A(f"v_add_u32 {v(aPV0)}, {s(sT0)}, v46")
        A(f"v_add_u32 {v(aPV1)}, {64*PITCH}, {v(aPV0)}")
        A(f"v_lshlrev_b32 {v(aMXR)}, 4, {v(vN)}")
        A(f"v_add_u32 {v(aMXR)}, {L_MX}, {v(aMXR)}")
        A(f"s_lshl_b32 {s(sT0)}, {s(sW)}, 2")
        A(f"v_add_u32 {v(aMXW)}, {s(sT0)}, {v(aMXR)}")
        A(f"v_lshlrev_b32 {v(aPR)}, 4, {v(vL)}")
        A(f"v_add_u32 {v(aPR)}, {L_PB}, {v(aPR)}")
        A(f"s_lshl_b32 {s(sT0)}, {s(sW)}, 10")
        A(f"v_add_u32 {v(aPW)}, {s(sT0)}, {v(aPR)}")
        A(f"s_lshl_b32 {s(sT0)}, {s(sHG)}, 4")
        A(f"v_add_u32 v48, {s(sT0)}, {v(vN)}")
        A(f"s_lshl_b32 {s(sT0)}, {s(sW)}, 3")
        A(f"s_add_u32 {s(sT0)}, {s(sT0)}, {s(sKC)}")
        if cfg.rot:
            A(f"v_add_u32 v50, {s(sT0)}, v48")
            A(f"v_add_u32 v51, 4, v50")
            A(f"v_and_b32 v50, 31, v50")
            A(f"v_and_b32 v51, 31, v51")
        else:
            A(f"v_mov_b32 v50, {s(sKC)}")
            A(f"v_mov_b32 v51, {s(sKC)}")
        A(f"v_lshlrev_b32 v48, 10, v48")
        A(f"s_lshl_b32 {s(sT0)}, {s(sW)}, 8")
        A(f"s_lshl_b32 {s(sT1)}, {s(sB)}, 5")
        A(f"s_add_u32 {s(sT0)}, {s(sT0)}, {s(sT1)}")
        A(f"v_add_u32 v48, {s(sT0)}, v48")
        A(f"v_add_u32 v50, v48, v50")
        A(f"v_add3_u32 v51, v48, v51, 64")
        A(f"v_add_u32 v51, 64, v51")
        A(f"v_and_b32 v49, 1, {v(vS)}")
        A(f"v_lshlrev_b32 v49, 1, v49")
        A(f"v_lshrrev_b32 v45, 1, {v(vS)}")
        A(f"v_add_u32 v49, v49, v45")
        A(f"v_lshlrev_b32 v49, 4, v49")
        A(f"v_lshl_add_u32 {v(aOP0)}, v50, 7, v49")
        A(f"v_add_u32 {v(aOP0)}, {hex(WS_OP)}, {v(aOP0)}")
        A(f"v_lshl_add_u32 {v(aOP1)}, v51, 7, v49")
        A(f"v_add_u32 {v(aOP1)}, {hex(WS_OP)}, {v(aOP1)}")
        A(f"v_cmp_eq_u32 vcc, 1, {v(vS)}")
        A(f"v_cndmask_b32 v50, v50, v51, vcc")
        A(f"v_lshlrev_b32 v50, 4, v50")
        A(f"v_add_u32 {v(aST)}, {hex(WS_ST)}, v50")
    A(f"v_lshrrev_b32 {v(vA0)}, 2, {v(vN)}")
    A(f"v_lshlrev_b32 {v(vA0)}, 10, {v(vA0)}")
    A(f"v_lshl_add_u32 {v(vA0)}, {v(vS)}, 5, {v(vA0)}")
    A(f"s_lshl_b32 {s(sT0)}, {s(sJ)}, 7")
    A(f"v_add_u32 {v(vA0)}, {s(sT0)}, {v(vA0)}")
    A(f"s_lshl_b32 {s(sT0)}, {s(sJ)}, 19")
    A(f"s_lshl_b32 {s(sT1)}, {s(sH)}, 8")
    A(f"s_add_u32 {s(sT0)}, {s(sT0)}, {s(sT1)}")
    A(f"v_lshlrev_b32 {v(vA1)}, 17, {v(vS)}")
    A(f"v_lshl_add_u32 {v(vA1)}, {v(vN)}, 4, {v(vA1)}")
    A(f"v_add_u32 {v(vA1)}, {s(sT0)}, {v(vA1)}")
    for k in range(2):
        A(f"buffer_load_dwordx4 {v(vXP+4*k,4)}, {v(vA0)}, {s(sX,4)}, 0 offen offset:{16*k}")
    A(f"s_mov_b32 {s(sT2)}, 0")
    for k in range(16):
        A(f"buffer_load_dwordx4 {v(vWQ+4*k,4)}, {v(vA1)}, {s(sWQ,4)}, {s(sT2)} offen{NTWQ}")
        if k < 15: A(f"s_add_u32 {s(sT2)}, {s(sT2)}, 8192")
    A(f"v_lshrrev_b32 {v(vA2)}, 2, {v(vN)}")
    A(f"v_lshlrev_b32 {v(vA2)}, 4, {v(vA2)}")
    A(f"v_and_b32 v43, 3, {v(vN)}")
    A(f"v_add_u32 {v(vA2)}, {v(vA2)}, v43")
    A(f"v_lshlrev_b32 {v(vA2)}, 13, {v(vA2)}")
    A(f"v_lshl_add_u32 {v(vA2)}, {v(vS)}, 4, {v(vA2)}")
    A(f"v_add_u32 {v(vA2)}, {s(sT0)}, {v(vA2)}")
    A(f"s_mov_b32 {s(sT2)}, 0")
    for T in range(4):
        for t in range(4):
            A(f"buffer_load_dwordx4 {v(vWUK+16*T+4*t,4)}, {v(vA2)}, {s(sWUK,4)}, {s(sT2)} offen offset:{64*t}{NTWQ}")
        if T < 3: A(f"s_add_u32 {s(sT2)}, {s(sT2)}, 32768")
    estamp(A, cfg, 3)
    make_sels(A, vN, vSEL, vT)
    vONE, vG1, vCK1 = 192, 208, 240
    make_ones(A, vN, vONE, 46)
    vPUB, vCPUB, vGA, vGB, vGC = 52, 53, 54, 55, 56
    partial_offsets(A, vL, vN, vS, WS_Q1, WS_Q1C, vPUB, vCPUB, vGA, vGB, vGC, 46)
    vQAO, vQCO = 58, 59
    A(f"v_lshl_add_u32 {v(vQAO)}, {v(vN)}, 5, {s(sH)}")
    A(f"v_lshlrev_b32 {v(vQCO)}, 3, {v(vQAO)}")
    A(f"v_add_u32 {v(vQCO)}, {s(sJ)}, {v(vQCO)}")
    A(f"v_lshlrev_b32 {v(vQCO)}, 3, {v(vQCO)}")
    A(f"v_add_u32 {v(vQCO)}, {hex(WS_QC)}, {v(vQCO)}")
    A(f"v_lshlrev_b32 {v(vQAO)}, 10, {v(vQAO)}")
    A(f"v_lshl_add_u32 {v(vQAO)}, {v(vS)}, 5, {v(vQAO)}")
    A(f"s_lshl_b32 {s(sT0)}, {s(sJ)}, 7")
    A(f"s_add_u32 {s(sT0)}, {s(sT0)}, {hex(WS_QA)}")
    A(f"v_add_u32 {v(vQAO)}, {s(sT0)}, {v(vQAO)}")
    NPW = 0
    A(f"s_waitcnt vmcnt({32+NPW})")
    nonce_from(A, vE)
    def _w(t):
        A(f"s_waitcnt vmcnt({16 + 14 - 2*t})")
        if t == 0 and cfg.l_delay and cfg.fw_at == 'wq': arrive(A, FW, 43)
    sel_gemm(A, 8, vXP, vSEL, vAF0, vAF1, vWQ, vQX, vQY, swap=True, wwait=_w)
    publish_partial(A, vQX, vQY, 242, vPUB, vCPUB, 46, cfg.local_st, cfg.dual, cfg.defer)
    stamp(A, cfg, 1)
    if cfg.l_delay and cfg.fw_at == 'pub': arrive(A, FW, 43)
    if cfg.exp == 'kvq': A(f"s_branch L_Mdone")
    if cfg.addr_early: attn_addresses()
    if cfg.hop1_ack: A(f"s_waitcnt vmcnt(0)")
    gather_reduce(A, cfg, "L_hop1", vG1, vCK1, vONE, vGA, vGB, vGC, vQX, vQY, 46, 242)
    savecnt(A, cfg, 0)
    if cfg.l_delay and cfg.fw_at == 'hop1': arrive(A, FW, 43)
    estamp(A, cfg, 5)
    A(f"v_cvt_pk_bf16_f32 v60, {v(vQX)}, {v(vQX+1)}")
    A(f"v_cvt_pk_bf16_f32 v61, {v(vQX+2)}, {v(vQX+3)}")
    A(f"v_cvt_pk_bf16_f32 v62, {v(vQY)}, {v(vQY+1)}")
    A(f"v_cvt_pk_bf16_f32 v63, {v(vQY+2)}, {v(vQY+3)}")
    A(f"v_lshlrev_b32 {v(vA0)}, 4, {v(vL)}")
    A(f"v_add_u32 {v(vA0)}, {L_QB}, {v(vA0)}")
    A(f"ds_write_b128 {v(vA0)}, v[60:63]")
    vQF4, vD, vPK = 128, 144, 160
    A(f"v_and_b32 {v(vA0)}, 3, {v(vN)}")
    A(f"v_lshlrev_b32 {v(vA0)}, 8, {v(vA0)}")
    A(f"v_lshl_add_u32 {v(vA0)}, {v(vS)}, 4, {v(vA0)}")
    A(f"v_add_u32 {v(vA0)}, {L_QB}, {v(vA0)}")
    for t in range(4):
        A(f"ds_read_b128 {v(vQF4+4*t,4)}, {v(vA0)} offset:{64*t}")
    for t in range(4):
        A(f"s_waitcnt lgkmcnt({3-t})")
        for T in range(4):
            c = "0" if t == 0 else v(vD+4*T,4)
            A(f"v_mfma_f32_16x16x32_bf16 {v(vD+4*T,4)}, {v(vWUK+16*T+4*t,4)}, {v(vQF4+4*t,4)}, {c}")
    A(f"s_mov_b32 {s(sT0)}, {hex(f2u(SCALE))}")
    for k in range(16):
        A(f"v_mul_f32 {v(vD+k)}, {s(sT0)}, {v(vD+k)}")
    for k in range(8):
        A(f"v_cvt_pk_bf16_f32 {v(vPK+k)}, {v(vD+2*k)}, {v(vD+2*k+1)}")
    if cfg.pw_qa: wait_flag(A, FP1, 1, 43)
    A(f"s_mov_b64 {s(sEX,2)}, exec")
    A(f"s_mov_b32 exec_lo, 0x000f000f")
    A(f"s_mov_b32 exec_hi, 0x000f000f")
    A(f"buffer_store_dwordx4 {v(vPK,4)}, {v(vQAO)}, {s(sWS,4)}, 0 offen sc1")
    A(f"buffer_store_dwordx4 {v(vPK+4,4)}, {v(vQAO)}, {s(sWS,4)}, 0 offen offset:16 sc1")
    A(f"s_mov_b64 exec, {s(sEX,2)}")
    sum_dwords(A, 44, range(vPK, vPK+8))
    xreduce_rows(A, "v_add_u32", 44, 46)
    A(f"v_add_u32 v45, {s(sNONCE)}, v44")
    A(f"s_mov_b64 exec, 0xf")
    A(f"buffer_store_dwordx2 v[44:45], {v(vQCO)}, {s(sWS,4)}, 0 offen sc1")
    A(f"s_mov_b64 exec, {s(sEX,2)}")
    if not cfg.addr_early: attn_addresses()
    if cfg.hop2_gate:
        A(f"s_waitcnt vmcnt(0)")
        arrive(A, FP1, 43)
    A(f"s_branch L_qdone")
    A.label("L_noq")
    if cfg.pw_qa or cfg.pw_fd:
        for k in range(4): A(f"v_mov_b32 {v(60+k)}, 0")
    if cfg.pw_qa:
        A(f"s_cmp_lg_u32 {s(sW)}, 1")
        A(f"s_cbranch_scc1 L_nopw1")
        A(f"v_lshl_add_u32 v58, {v(vN)}, 5, {s(sH)}")
        A(f"v_lshlrev_b32 v59, 3, v58")
        A(f"v_add_u32 v59, {s(sJ)}, v59")
        A(f"v_lshlrev_b32 v59, 3, v59")
        A(f"v_add_u32 v59, {hex(WS_QC)}, v59")
        A(f"v_lshlrev_b32 v58, 10, v58")
        A(f"v_lshl_add_u32 v58, {v(vS)}, 5, v58")
        A(f"s_lshl_b32 {s(sT0)}, {s(sJ)}, 7")
        A(f"s_add_u32 {s(sT0)}, {s(sT0)}, {hex(WS_QA)}")
        A(f"v_add_u32 v58, {s(sT0)}, v58")
        A(f"s_mov_b32 exec_lo, 0x000f000f")
        A(f"s_mov_b32 exec_hi, 0x000f000f")
        A(f"buffer_store_dwordx4 v[60:63], v58, {s(sWS,4)}, 0 offen sc1")
        A(f"buffer_store_dwordx4 v[60:63], v58, {s(sWS,4)}, 0 offen offset:16 sc1")
        A(f"s_mov_b64 exec, 0xf")
        A(f"buffer_store_dwordx2 v[60:61], v59, {s(sWS,4)}, 0 offen sc1")
        A(f"s_mov_b64 exec, -1")
        A(f"s_waitcnt vmcnt(0)")
        arrive(A, FP1, 43)
        A.label("L_nopw1")
    if cfg.pw_fd:
        A(f"s_cmp_lg_u32 {s(sW)}, 2")
        A(f"s_cbranch_scc1 L_nopw2")
        A(f"v_lshrrev_b32 v46, 3, {v(vN)}")
        A(f"v_lshl_add_u32 v46, {v(vS)}, 4, v46")
        A(f"s_lshl_b32 {s(sT0)}, {s(sJ)}, 1")
        A(f"v_add_u32 v46, {s(sT0)}, v46")
        A(f"s_movk_i32 {s(sT1)}, {NSLOT}")
        A(f"v_mul_lo_u32 v46, v46, {s(sT1)}")
        A(f"v_add_u32 v46, {s(sH)}, v46")
        A(f"v_lshlrev_b32 v59, 3, v46")
        A(f"v_add_u32 v59, {hex(WS_FC)}, v59")
        A(f"v_and_b32 v47, 7, {v(vN)}")
        A(f"v_lshlrev_b32 v47, 3, v47")
        A(f"v_lshl_add_u32 v58, v46, 6, v47")
        A(f"v_add_u32 v58, {hex(WS_FD)}, v58")
        A(f"buffer_store_dwordx2 v[60:61], v58, {s(sWS,4)}, 0 offen sc1")
        A(f"s_mov_b32 exec_lo, 0x01010101")
        A(f"s_mov_b32 exec_hi, 0x01010101")
        A(f"buffer_store_dwordx2 v[60:61], v59, {s(sWS,4)}, 0 offen sc1")
        A(f"s_mov_b64 exec, -1")
        A(f"s_waitcnt vmcnt(0)")
        arrive(A, FP2, 43)
        A.label("L_nopw2")
    make_sels(A, vN, vSEL, vT)
    A(f"s_waitcnt vmcnt(0)")
    nonce_from(A, vE)
    attn_addresses()
    A.label("L_qdone")
    stamp(A, cfg, 2)
    if cfg.exp in ('kvq', 'kvq1'): A(f"s_branch L_Mdone")
    NL = 3 if cfg.tail_early else 4
    wait_flag(A, FKV if cfg.wait_kv_first else FKI, NL, 44)
    if cfg.hop2_gate: wait_flag(A, FP1, 1, 44)
    if cfg.two_stage:
        lab0 = poll_head(A, "L_hop2t")
        A(f"buffer_load_dwordx2 {v(vQC,2)}, {v(aQC)}, {s(sWS,4)}, 0 offen sc1")
        A(f"s_waitcnt vmcnt(0)")
        A(f"v_add_u32 v45, {s(sNONCE)}, {v(vQC)}")
        A(f"v_cmp_ne_u32 vcc, v45, {v(vQC+1)}")
        A(f"s_and_b64 {s(sM1,2)}, vcc, {s(sM0,2)}")
        poll_tail(A, lab0, sM1, cfg.poll_sleep)
        savecnt(A, cfg, 1)
    lab = poll_head(A, "L_hop2")
    for i in range(4):
        A(f"buffer_load_dwordx4 {v(vQG+4*i,4)}, {v(aQG)}, {s(sWS,4)}, 0 offen offset:{1024*i} sc1")
    A(f"buffer_load_dwordx2 {v(vQC,2)}, {v(aQC)}, {s(sWS,4)}, 0 offen sc1")
    if cfg.tail_flag == 'FH2': arrive(A, FH2, 43)
    A(f"s_waitcnt vmcnt(0)")
    sum_dwords(A, 44, range(vQG, vQG+16))
    A(f"v_sub_u32 v44, v44, {v(vQC)}")
    A(f"v_add_u32 v45, {s(sNONCE)}, {v(vQC)}")
    A(f"v_cmp_ne_u32 vcc, v45, {v(vQC+1)}")
    wave_sum_u32(A, 44, 46)
    A(f"s_and_b64 {s(sM1,2)}, vcc, {s(sM0,2)}")
    A(f"v_cmp_ne_u32 vcc, 0, v44")
    A(f"s_or_b64 {s(sM1,2)}, {s(sM1,2)}, vcc")
    poll_tail(A, lab, sM1, cfg.poll_sleep)
    savecnt(A, cfg, 2)
    for i in range(4):
        A(f"ds_write_b128 {v(aQL)}, {v(vQG+4*i,4)} offset:{PITCH*i}")
    arrive(A, F3, 43)
    stamp(A, cfg, 3)
    wait_flag(A, FKV, NL, 44)
    wait_flag(A, F3, 4, 44)
    stamp(A, cfg, 4)
    vQF, vRING = 64, 128
    vS0, vS1 = 32, 36
    LA = 4
    def qkread(t):
        A(f"ds_read_b128 {v(vQF+4*t,4)}, {v(aQE if t%2==0 else aQO)} offset:{16*t}")
        for tt in range(2):
            slot = (2*t+tt) % 16
            A(f"ds_read_b128 {v(vRING+4*slot,4)}, {v(aKE if t%2==0 else aKO)} offset:{16*t + tt*16*PITCH}")
    for t in range(LA): qkread(t)
    for t in range(16):
        A(f"s_waitcnt lgkmcnt({3*min(LA-1, 15-t)})")
        for tt in range(2):
            slot = (2*t+tt) % 16
            acc = vS0 if tt == 0 else vS1
            A(f"v_mfma_f32_16x16x32_bf16 {v(acc,4)}, {v(vRING+4*slot,4)}, {v(vQF+4*t,4)}, {'0' if t == 0 else v(acc,4)}")
        if t + LA < 16: qkread(t+LA)
    pstamp(A, cfg, 1)
    vM = 44
    A(f"v_max3_f32 {v(vM)}, {v(vS0)}, {v(vS0+1)}, {v(vS0+2)}")
    A(f"v_max3_f32 v45, {v(vS0+3)}, {v(vS1)}, {v(vS1+1)}")
    A(f"v_max3_f32 {v(vM)}, {v(vM)}, {v(vS1+2)}, {v(vS1+3)}")
    A(f"v_max_f32 {v(vM)}, {v(vM)}, v45")
    xreduce_rows(A, "v_max_f32", vM, 45)
    A(f"ds_write_b32 {v(aMXW)}, {v(vM)}")
    def sentinel_wait(name, reads, regs):
        lab = A.newlabel(name); done = A.newlabel(name + "d")
        A(f"s_mov_b32 {s(sCNT2)}, 0")
        A.label(lab)
        reads()
        A(f"s_waitcnt lgkmcnt(0)")
        regs = list(regs)
        A(f"v_max3_u32 v47, {v(regs[0])}, {v(regs[1])}, {v(regs[2])}")
        k = 3
        while k + 1 < len(regs):
            A(f"v_max3_u32 v47, v47, {v(regs[k])}, {v(regs[k+1])}"); k += 2
        if k < len(regs): A(f"v_max_u32 v47, v47, {v(regs[k])}")
        A(f"v_cmp_eq_u32 vcc, -1, v47")
        A(f"s_cbranch_vccz {done}")
        A(f"s_add_u32 {s(sCNT2)}, {s(sCNT2)}, 1")
        A(f"s_cmp_lt_u32 {s(sCNT2)}, 2000000")
        A(f"s_cbranch_scc1 {lab}")
        A.label(done)
    sentinel_wait("L_mx", lambda: A(f"ds_read_b128 v[48:51], {v(aMXR)}"), range(48, 52))
    def pvread(k):
        T, g = k // 4, k % 4
        slot = k % 16
        base = aPV0 if g < 2 else aPV1
        off = (32*(g%2))*PITCH + T*32
        A(f"ds_read_b64_tr_b16 {v(vRING+4*slot,2)}, {v(base)} offset:{off}")
        A(f"ds_read_b64_tr_b16 {v(vRING+4*slot+2,2)}, {v(base)} offset:{off+16*PITCH}")
    PRE = 6
    A(f"v_max3_f32 {v(vM)}, v48, v49, v50")
    for k in range(PRE): pvread(k)
    A(f"v_max_f32 {v(vM)}, {v(vM)}, v51")
    for k in range(8):
        A(f"v_sub_f32 {v(vS0+k)}, {v(vS0+k)}, {v(vM)}")
    for k in range(8):
        A(f"v_exp_f32 {v(vS0+k)}, {v(vS0+k)}")
    vLs = 46
    for k in range(4):
        A(f"v_cvt_pk_bf16_f32 {v(52+k)}, {v(vS0+2*k)}, {v(vS0+2*k+1)}")
    A(f"ds_write_b128 {v(aPW)}, v[52:55]")
    A(f"v_add_f32 {v(vLs)}, {v(vS0)}, {v(vS0+1)}")
    A(f"v_add_f32 v47, {v(vS0+2)}, {v(vS0+3)}")
    A(f"v_add_f32 v48, {v(vS0+4)}, {v(vS0+5)}")
    A(f"v_add_f32 v49, {v(vS0+6)}, {v(vS0+7)}")
    A(f"v_add_f32 {v(vLs)}, {v(vLs)}, v47")
    A(f"v_add_f32 v48, v48, v49")
    A(f"v_add_f32 {v(vLs)}, {v(vLs)}, v48")
    xreduce_rows(A, "v_add_f32", vLs, 47)
    A(f"ds_write_b32 {v(aMXW)}, {v(vLs)} offset:{L_LS-L_MX}")
    vPF, vO, vPK = 64, 80, 112
    def _rd():
        A(f"ds_read_b128 v[48:51], {v(aMXR)} offset:{L_LS-L_MX}")
        for g in range(4):
            A(f"ds_read_b128 {v(vPF+4*g,4)}, {v(aPR)} offset:{1024*g}")
    sentinel_wait("L_ls", _rd, range(48, 52))
    pstamp(A, cfg, 2)
    nxt = PRE
    outstanding = []
    def issue(k):
        pvread(k); outstanding.extend([("f",k),("f",k)])
    while len(outstanding) + 2 <= 14:
        issue(nxt); nxt += 1
    A(f"v_add_f32 v48, v48, v49")
    A(f"v_add_f32 v50, v50, v51")
    A(f"v_add_f32 v47, v48, v50")
    def post(p):
        for T in (2*p, 2*p+1):
            A(f"v_cvt_pk_bf16_f32 {v(vPK+2*T)}, {v(vO+4*T)}, {v(vO+4*T+1)}")
            A(f"v_cvt_pk_bf16_f32 {v(vPK+2*T+1)}, {v(vO+4*T+2)}, {v(vO+4*T+3)}")
        A(f"v_permlane16_swap_b32 {v(vPK+4*p)}, {v(vPK+4*p+2)}")
        A(f"v_permlane16_swap_b32 {v(vPK+4*p+1)}, {v(vPK+4*p+3)}")
        A(f"buffer_store_dwordx4 {v(vPK+4*p,4)}, {v(aOP0 if p < 2 else aOP1)}, {s(sWS,4)}, 0 offen offset:{64*(p%2)} sc1")
        c = 52 + (p >> 1)
        if p % 2 == 0:
            A(f"v_add3_u32 {v(c)}, {v(vPK+4*p)}, {v(vPK+4*p+1)}, {v(vPK+4*p+2)}")
            A(f"v_add_u32 {v(c)}, {v(c)}, {v(vPK+4*p+3)}")
        else:
            A(f"v_add3_u32 {v(c)}, {v(c)}, {v(vPK+4*p)}, {v(vPK+4*p+1)}")
            A(f"v_add3_u32 {v(c)}, {v(c)}, {v(vPK+4*p+2)}, {v(vPK+4*p+3)}")
    for k in range(32):
        T, g = k//4, k%4
        need_idx = -1
        for idx, o in enumerate(outstanding):
            if o == ("f",k): need_idx = max(need_idx, idx)
        can = nxt < 32 and nxt <= k + 15
        if can:
            need_idx = max(need_idx, len(outstanding) + 2 - 15 - 1)
        if need_idx >= 0:
            n_after = len(outstanding) - 1 - need_idx
            A(f"s_waitcnt lgkmcnt({n_after})")
            del outstanding[:need_idx+1]
        slot = k % 16
        A(f"v_mfma_f32_16x16x32_bf16 {v(vO+4*T,4)}, {v(vRING+4*slot,4)}, {v(vPF+4*g,4)}, {'0' if g == 0 else v(vO+4*T,4)}")
        if can:
            issue(nxt); nxt += 1
        if k in (11, 19, 27):
            post((k - 11)//8)
            if cfg.pubts: A("s_waitcnt lgkmcnt(0)"); del outstanding[:]; pstamp(A, cfg, 3 + (k-11)//8)
    stamp(A, cfg, 5)
    post(3)
    pstamp(A, cfg, 6)
    xreduce_rows2(A, "v_add_u32", 52, 54, "v_add_u32", 53, 55)
    A(f"v_cmp_eq_u32 vcc, 1, {v(vS)}")
    A(f"v_mov_b32 v60, {v(vM)}")
    A(f"v_mov_b32 v61, v47")
    A(f"v_cndmask_b32 v62, v52, v53, vcc")
    A(f"v_add3_u32 v63, v60, v61, v62")
    A(f"v_add_u32 v63, {s(sNONCE)}, v63")
    A(f"s_mov_b64 {s(sEX,2)}, exec")
    A(f"s_mov_b32 exec_hi, 0")
    A(f"buffer_store_dwordx4 v[60:63], {v(aST)}, {s(sWS,4)}, 0 offen sc1")
    A(f"s_mov_b64 exec, {s(sEX,2)}")
    pstamp(A, cfg, 7)
    arrive(A, FPB, 52)
    stamp(A, cfg, 6)
    vOD, vST = 128, 144
    A(f"s_lshl_b32 {s(sT0)}, {s(sH)}, 3")
    A(f"s_add_u32 {s(sT0)}, {s(sT0)}, {s(sJ)}")
    A(f"s_lshl_b32 {s(sT0)}, {s(sT0)}, 2")
    A(f"s_add_u32 {s(sT0)}, {s(sT0)}, {s(sW)}")
    A(f"s_lshl_b32 {s(sT0)}, {s(sT0)}, 5")
    A(f"s_lshl_b32 {s(sT1)}, {s(sT0)}, 7")
    A(f"s_add_u32 {s(sT1)}, {s(sT1)}, {hex(WS_OP)}")
    A(f"v_lshl_add_u32 v40, {v(vL)}, 4, {s(sT1)}")
    A(f"s_lshl_b32 {s(sT1)}, {s(sT0)}, 4")
    A(f"s_add_u32 {s(sT1)}, {s(sT1)}, {hex(WS_ST)}")
    A(f"v_and_b32 v41, 31, {v(vL)}")
    A(f"v_lshl_add_u32 v41, v41, 4, {s(sT1)}")
    A(f"v_cmp_gt_u32 {s(sM0,2)}, 32, {v(vL)}")
    A(f"v_bfe_u32 v42, {v(vN)}, 2, 1")
    A(f"v_lshl_add_u32 v42, {v(vS)}, 1, v42")
    A(f"v_lshlrev_b32 v42, 2, v42")
    if cfg.hop3_ack: A(f"s_waitcnt vmcnt(0)")
    if cfg.wo_flag == 'ACK' or cfg.mlp_w1_flag == 'FP2': arrive(A, FP2, 47)
    if cfg.g_ts: stamp(A, cfg, 8)
    if cfg.hop3_sleep: A(f"s_sleep {cfg.hop3_sleep}")
    if cfg.two_stage or cfg.two3:
        lab0 = poll_head(A, "L_hop3t")
        A(f"buffer_load_dwordx4 {v(vST,4)}, v41, {s(sWS,4)}, 0 offen sc1")
        A(f"s_waitcnt vmcnt(0)")
        A(f"v_add3_u32 v45, {v(vST)}, {v(vST+1)}, {v(vST+2)}")
        A(f"v_add_u32 v45, {s(sNONCE)}, v45")
        A(f"v_cmp_ne_u32 {s(sM1,2)}, v45, {v(vST+3)}")
        poll_tail(A, lab0, sM1, cfg.poll_sleep)
        savecnt(A, cfg, 3)
    lab = poll_head(A, "L_hop3")
    for i in range(4):
        A(f"buffer_load_dwordx4 {v(vOD+4*i,4)}, v40, {s(sWS,4)}, 0 offen offset:{1024*i} sc1")
    A(f"buffer_load_dwordx4 {v(vST,4)}, v41, {s(sWS,4)}, 0 offen sc1")
    A(f"s_waitcnt vmcnt(0)")
    sum_dwords(A, 44, range(vOD, vOD+16))
    A(f"v_cndmask_b32 v45, 0, {v(vST+2)}, {s(sM0,2)}")
    A(f"v_sub_u32 v44, v44, v45")
    A(f"v_add3_u32 v45, {v(vST)}, {v(vST+1)}, {v(vST+2)}")
    A(f"v_add_u32 v45, {s(sNONCE)}, v45")
    A(f"v_cmp_ne_u32 {s(sM1,2)}, v45, {v(vST+3)}")
    wave_sum_u32(A, 44, 46)
    A(f"v_cmp_ne_u32 vcc, 0, v44")
    A(f"s_or_b64 {s(sM1,2)}, {s(sM1,2)}, vcc")
    poll_tail(A, lab, sM1, cfg.poll_sleep)
    if cfg.wo_flag == 'FH3' or cfg.mlp_w1_flag == 'FH3' or cfg.mlp_w2 == 'FH3': arrive(A, FCC, 47)
    savecnt(A, cfg, 4)
    stamp(A, cfg, 7)
    A(f"v_mov_b32 v44, {v(vST)}")
    for d in ("quad_perm:[1,0,3,2]", "quad_perm:[2,3,0,1]", "row_half_mirror", "row_mirror"):
        A(f"v_max_f32_dpp v44, v44, v44 {d} row_mask:0xf bank_mask:0xf")
    A(f"v_mov_b32 v46, v44")
    A(f"v_permlane16_swap_b32 v44, v46")
    A(f"v_max_f32 v44, v44, v46")
    A(f"v_sub_f32 v44, {v(vST)}, v44")
    A(f"v_exp_f32 v44, v44")
    A(f"v_mul_f32 v45, v44, {v(vST+1)}")
    for d in ("quad_perm:[1,0,3,2]", "quad_perm:[2,3,0,1]", "row_half_mirror", "row_mirror"):
        A(f"v_add_f32_dpp v45, v45, v45 {d} row_mask:0xf bank_mask:0xf")
    A(f"v_mov_b32 v46, v45")
    A(f"v_permlane16_swap_b32 v45, v46")
    A(f"v_add_f32 v45, v45, v46")
    A(f"v_rcp_f32 v45, v45")
    A(f"v_mul_f32 v44, v44, v45")
    for k in range(4):
        A(f"ds_bpermute_b32 {v(48+k)}, v42, v44 offset:{32*k}")
    A(f"s_waitcnt lgkmcnt(0)")
    A(f"v_cvt_pk_bf16_f32 v52, v48, v49")
    A(f"v_cvt_pk_bf16_f32 v53, v50, v51")
    for t in range(2):
        sel_gemm_step(A, 52+t, vSEL, vAF0 if t % 2 == 0 else vAF1, vOD+8*t, vQX, vQY, t == 0)
    for k in range(8):
        A(f"v_permlane16_swap_b32 {v(vQX+k)}, {v(56+k)}")
    for k in range(8):
        A(f"v_add_f32_dpp {v(56+k)}, {v(56+k)}, {v(vQX+k)} row_ror:8 row_mask:0xf bank_mask:0xf")
    for k in range(4):
        A(f"v_cvt_pk_bf16_f32 {v(48+k)}, {v(56+2*k)}, {v(56+2*k+1)}")
    A(f"s_lshl_b32 {s(sT0)}, {s(sW)}, 7")
    A(f"s_add_u32 {s(sT0)}, {s(sT0)}, {L_CC}")
    A(f"v_lshl_add_u32 v46, {v(vL)}, 4, {s(sT0)}")
    A(f"s_mov_b64 {s(sEX,2)}, exec")
    A(f"s_mov_b64 exec, 0xff")
    A(f"ds_write_b128 v46, v[48:51]")
    A(f"s_mov_b64 exec, {s(sEX,2)}")
    if not cfg.g_ts: stamp(A, cfg, 8)
    A(f"s_cmp_ge_u32 s2, 64")
    A(f"s_cbranch_scc1 L_Mdone")
    A(f"s_cmp_lg_u32 {s(sW)}, 0")
    A(f"s_cbranch_scc1 L_Mdone")
    vFD, vFC = 128, 152
    A(f"s_mul_i32 {s(sT0)}, s2, {NSLOT}")
    A(f"s_lshl_b32 {s(sT2)}, {s(sT0)}, 6")
    A(f"s_add_u32 {s(sT2)}, {s(sT2)}, {hex(WS_FD)}")
    A(f"v_lshl_add_u32 v40, {v(vL)}, 4, {s(sT2)}")
    A(f"s_lshl_b32 {s(sT2)}, {s(sT0)}, 3")
    A(f"s_add_u32 {s(sT2)}, {s(sT2)}, {hex(WS_FC)}")
    A(f"v_lshl_add_u32 v41, {v(vL)}, 3, {s(sT2)}")
    A(f"v_mov_b32 v47, 0x7ffffff0")
    NP = 32 if cfg.nomlp else NPROD
    A(f"v_lshrrev_b32 v44, 2, {v(vL)}")
    A(f"v_add_u32 v44, 32, v44")
    A(f"v_cmp_gt_u32 vcc, {NP}, v44")
    A(f"v_add_u32 v46, 2048, v40")
    A(f"v_cndmask_b32 v42, v47, v46, vcc")
    A(f"v_cmp_gt_u32 {s(sM2,2)}, {NP}, {v(vL)}")
    A(f"v_cndmask_b32 v41, v47, v41, {s(sM2,2)}")
    A(f"v_and_b32 v44, 3, {v(vN)}")
    A(f"v_mov_b32 v45, 0")
    for k, (j0, j1) in enumerate(((0,1),(2,3))):
        A(f"v_mov_b32 v46, 0x3f80")
        A(f"v_cmp_eq_u32 vcc, {j0}, v44")
        A(f"v_cndmask_b32 {v(vAF0+k)}, v45, v46, vcc")
        A(f"v_mov_b32 v46, 0x3f800000")
        A(f"v_cmp_eq_u32 vcc, {j1}, v44")
        A(f"v_cndmask_b32 {v(vAF0+k)}, {v(vAF0+k)}, v46, vcc")
    A(f"v_mov_b32 {v(vAF0+2)}, {v(vAF0)}")
    A(f"v_mov_b32 {v(vAF0+3)}, {v(vAF0+1)}")
    for k in range(4): A(f"v_mov_b32 {v(vFD+12+k)}, 0")
    A(f"s_lshl_b32 {s(sT3)}, s2, 6")
    A(f"v_lshl_add_u32 v57, {v(vL)}, 4, {s(sT3)}")
    if cfg.hop5_gate: wait_flag(A, FT, 1, 44)
    lab = poll_head(A, "L_hop5")
    for i in range(2):
        A(f"buffer_load_dwordx4 {v(vFD+4*i,4)}, v40, {s(sWS,4)}, 0 offen offset:{1024*i} sc1")
    A(f"buffer_load_dwordx4 {v(vFD+8,4)}, v42, {s(sWS,4)}, 0 offen sc1")
    A(f"buffer_load_dwordx2 {v(vFC,2)}, v41, {s(sWS,4)}, 0 offen sc1")
    A(f"s_waitcnt vmcnt(0)")
    sum_dwords(A, 44, range(vFD, vFD+12))
    A(f"v_sub_u32 v44, v44, {v(vFC)}")
    A(f"v_add_u32 v45, {s(sNONCE)}, {v(vFC)}")
    A(f"v_cmp_ne_u32 vcc, v45, {v(vFC+1)}")
    wave_sum_u32(A, 44, 46)
    A(f"s_and_b64 {s(sM1,2)}, vcc, {s(sM2,2)}")
    A(f"v_cmp_ne_u32 vcc, 0, v44")
    A(f"s_or_b64 {s(sM1,2)}, {s(sM1,2)}, vcc")
    poll_tail(A, lab, sM1, cfg.poll_sleep)
    savecnt(A, cfg, 5)
    stamp(A, cfg, 9)
    for p in range(2):
        w = vFD + 8*p
        A(f"v_swap_b32 {v(w+2)}, {v(w+4)}")
        A(f"v_swap_b32 {v(w+3)}, {v(w+5)}")
    for p in range(2):
        w = vFD + 8*p
        c0 = "0" if p == 0 else v(vQX,4); c1 = "0" if p == 0 else v(vQY,4)
        A(f"v_mfma_f32_16x16x32_bf16 {v(vQX,4)}, {v(vAF0,4)}, {v(w,4)}, {c0}")
        A(f"v_mfma_f32_16x16x32_bf16 {v(vQY,4)}, {v(vAF0,4)}, {v(w+4,4)}, {c1}")
    for d in ("row_ror:4", "row_ror:8"):
        for k in range(8):
            A(f"v_add_f32_dpp {v(vQX+k)}, {v(vQX+k)}, {v(vQX+k)} {d} row_mask:0xf bank_mask:0xf")
    for k in range(4):
        A(f"v_cvt_pk_bf16_f32 {v(48+k)}, {v(vQX+2*k)}, {v(vQX+2*k+1)}")
    A(f"s_mov_b64 exec, 0xf")
    A(f"buffer_store_dwordx4 v[48:51], v57, {s(sOUT,4)}, 0 offen")
    A(f"s_cmp_lg_u32 s2, 0")
    A(f"s_cbranch_scc1 L_Mdone")
    A(f"s_add_u32 {s(sT0)}, {s(sE)}, 1")
    A(f"v_mov_b32 v52, {s(sT0)}")
    A(f"v_mov_b32 v53, {hex(WS_E)}")
    A(f"s_mov_b64 exec, 1")
    A(f"buffer_store_dword v52, v53, {s(sWS,4)}, 0 offen sc1")
    A.label("L_Mdone")
    if cfg.ts:
        A(f"s_mov_b64 exec, -1")
        emit_ts(A, cfg)
    A(f"s_endpgm")
    A.label("L_Lpath")
    vGX, vGW = 64, 80
    vW1, vW2, vB1, vH = 128, 160, 192, 196
    A(f"s_sub_u32 {s(sW)}, {s(sW)}, 4")
    A(f"v_lshlrev_b32 v40, 4, {v(vL)}")
    A(f"v_mov_b32 v43, {hex(WS_E)}")
    if cfg.prefetch_code:
        A(f"s_cmp_lg_u32 {s(sW)}, 3")
        A(f"s_cbranch_scc1 L_nopf")
        A(f"s_getpc_b64 s[66:67]")
        A.label("L_pcref")
        A(f"s_sub_u32 s66, s66, (L_pcref-{KNAME})")
        A(f"s_subb_u32 s67, s67, 0")
        A(f"s_lshl_b32 {s(sT2)}, {s(sR)}, 10")
        A(f"v_lshl_add_u32 v44, {v(vL)}, 7, {s(sT2)}")
        A(f"v_cmp_gt_u32 vcc, (L_end-{KNAME}), v44")
        A(f"v_cmp_gt_u32 {s(sM3,2)}, 8, {v(vL)}")
        A(f"s_and_b64 vcc, vcc, {s(sM3,2)}")
        A(f"s_and_saveexec_b64 {s(sEX,2)}, vcc")
        A(f"s_cbranch_execz L_pfskip")
        A(f"global_load_dword v63, v44, s[66:67]")
        A.label("L_pfskip")
        A(f"s_mov_b64 exec, {s(sEX,2)}")
        A.label("L_nopf")
    if cfg.tlb:
        A(f"s_cmp_lg_u32 {s(sW)}, 2")
        A(f"s_cbranch_scc1 L_notlb")
        st = cfg.tlb
        A(f"v_lshlrev_b32 v44, 16, {v(vL)}")
        A(f"v_add_u32 v45, {hex(WS_OP)}, v44")
        A(f"buffer_load_dword v62, v45, {s(sWS,4)}, 0 offen")
        A(f"v_lshlrev_b32 v45, 15, {v(vL)}")
        A(f"buffer_load_dword v62, v45, {s(sWS,4)}, 0 offen")
        A(f"v_add_u32 v45, {hex(LOCAL_DELTA)}, v45")
        A(f"buffer_load_dword v62, v45, {s(sWS,4)}, 0 offen")
        A(f"buffer_load_dword v62, v44, {s(sWUV,4)}, 0 offen")
        A(f"buffer_load_dword v62, v44, {s(sWO,4)}, 0 offen")
        A(f"buffer_load_dword v62, v44, {s(sW1,4)}, 0 offen")
        A(f"buffer_load_dword v62, v44, {s(sW2,4)}, 0 offen")
        A(f"buffer_load_dword v62, v44, {s(sOUT,4)}, 0 offen")
        A(f"buffer_load_dword v62, v44, {s(sGW,4)}, 0 offen")
        A(f"buffer_load_dword v62, v44, {s(sB1,4)}, 0 offen")
        A.label("L_notlb")
    if cfg.tail_early:
        make_sels(A, vN, vSEL, 44)
        A(f"s_cmp_eq_u32 {s(sW)}, 0")
        A(f"s_cbranch_scc1 L_tail")
        A(f"s_sub_u32 {s(sT2)}, {s(sW)}, 1")
        A(f"s_mul_i32 {s(sT2)}, {s(sT2)}, 43")
        A(f"s_add_u32 {s(sT3)}, {s(sT2)}, 43")
        A(f"s_min_u32 {s(sT3)}, {s(sT3)}, 128")
        A(f"s_lshl_b32 {s(sT0)}, {s(sB)}, 12")
        A(f"s_lshl_b32 {s(sT1)}, {s(sKC)}, 7")
        A(f"s_add_u32 {s(sT0)}, {s(sT0)}, {s(sT1)}")
        A(f"s_add_u32 {s(sT0)}, {s(sT0)}, {s(sT2)}")
        A(f"s_lshl_b32 {s(sT0)}, {s(sT0)}, 10")
        A(f"s_mul_i32 {s(sT1)}, {s(sT2)}, {PITCH}")
        A(f"s_mov_b32 m0, {s(sT1)}")
        A(f"s_mov_b32 {s(sCNT)}, {s(sT2)}")
    else:
        A(f"s_lshl_b32 {s(sT0)}, {s(sB)}, 12")
        A(f"s_lshl_b32 {s(sT1)}, {s(sKC)}, 7")
        A(f"s_add_u32 {s(sT0)}, {s(sT0)}, {s(sT1)}")
        A(f"s_lshl_b32 {s(sT1)}, {s(sW)}, 5")
        A(f"s_add_u32 {s(sT0)}, {s(sT0)}, {s(sT1)}")
        A(f"s_lshl_b32 {s(sT0)}, {s(sT0)}, 10")
        A(f"s_mul_i32 {s(sT1)}, {s(sW)}, {32*PITCH}")
        A(f"s_mov_b32 m0, {s(sT1)}")
        A(f"s_mov_b32 {s(sCNT)}, 0")
    if cfg.l_delay: wait_flag(A, FW, 1, 45)
    if cfg.kvwin0:
        A.label("L_dma0")
        A(f"s_waitcnt vmcnt({cfg.kvwin0-1})")
        A(f"buffer_load_dwordx4 v40, {s(sKV,4)}, {s(sT0)} offen{NTKV} lds")
        A(f"s_add_u32 m0, m0, {PITCH}")
        A(f"s_add_u32 {s(sT0)}, {s(sT0)}, 1024")
        A(f"s_add_u32 {s(sCNT)}, {s(sCNT)}, 1")
        A(f"s_cmp_lt_u32 {s(sCNT)}, {cfg.kvn0}")
        A(f"s_cbranch_scc1 L_dma0")
    A.label("L_dma")
    if cfg.kvwin < 32: A(f"s_waitcnt vmcnt({cfg.kvwin-1})")
    A(f"buffer_load_dwordx4 v40, {s(sKV,4)}, {s(sT0)} offen{NTKV} lds")
    A(f"s_add_u32 m0, m0, {PITCH}")
    A(f"s_add_u32 {s(sT0)}, {s(sT0)}, 1024")
    A(f"s_add_u32 {s(sCNT)}, {s(sCNT)}, 1")
    A(f"s_cmp_lt_u32 {s(sCNT)}, {s(sT3) if cfg.tail_early else 32}")
    A(f"s_cbranch_scc1 L_dma")
    arrive(A, FKI, 45)
    stamp(A, cfg, 2, L=True)
    if not cfg.tail_early: make_sels(A, vN, vSEL, 44)
    if cfg.pw_op:
        A(f"s_cmp_lg_u32 {s(sW)}, 1")
        A(f"s_cbranch_scc1 L_nopw3")
        A(f"s_lshl_b32 {s(sT0)}, {s(sHG)}, 4")
        A(f"v_add_u32 v48, {s(sT0)}, {v(vN)}")
        A(f"v_lshlrev_b32 v48, 10, v48")
        A(f"s_lshl_b32 {s(sT1)}, {s(sB)}, 5")
        A(f"s_add_u32 {s(sT0)}, {s(sT1)}, {s(sKC)}")
        A(f"v_add_u32 v48, {s(sT0)}, v48")
        A(f"v_lshlrev_b32 v49, 4, {v(vS)}")
        A(f"v_lshl_add_u32 v49, v48, 7, v49")
        A(f"v_add_u32 v49, {hex(WS_OP)}, v49")
        A(f"v_lshl_add_u32 v48, {v(vS)}, 7, v48")
        A(f"v_lshlrev_b32 v48, 4, v48")
        A(f"v_add_u32 v48, {hex(WS_ST)}, v48")
        for k in range(4): A(f"v_mov_b32 {v(52+k)}, 0")
        A(f"s_mov_b32 {s(sT2)}, 0")
        for q in range(8):
            for u in range(2):
                A(f"buffer_store_dwordx4 v[52:55], v49, {s(sWS,4)}, {s(sT2)} offen offset:{64*u} sc1")
            if q < 7: A(f"s_add_u32 {s(sT2)}, {s(sT2)}, 16384")
        A(f"s_mov_b32 {s(sT2)}, 0")
        A(f"s_mov_b32 exec_hi, 0")
        for mw in range(4):
            A(f"buffer_store_dwordx4 v[52:55], v48, {s(sWS,4)}, {s(sT2)} offen sc1")
            if mw < 3: A(f"s_add_u32 {s(sT2)}, {s(sT2)}, 4096")
        A(f"s_mov_b64 exec, -1")
        A(f"s_waitcnt vmcnt(20)")
        arrive(A, FKV, 45)
        A(f"s_waitcnt vmcnt(0)")
        arrive(A, FP3, 45)
        A(f"s_branch L_gate")
        A.label("L_nopw3")
    A(f"s_waitcnt vmcnt(0)")
    arrive(A, FKV, 45)
    stamp(A, cfg, 3, L=True)
    if cfg.exp: A(f"s_branch L_Ldone")
    A(f"s_cmp_eq_u32 {s(sW)}, 0")
    A(f"s_cbranch_scc1 L_tail")
    A(f"s_cmp_lg_u32 {s(sW)}, 1")
    A(f"s_cbranch_scc1 L_mlpw")
    A.label("L_gate")
    for b in range(4):
        A(f"buffer_load_dwordx4 {v(vGX+4*b,4)}, v40, {s(sX,4)}, 0 offen offset:{1024*b}")
    A(f"buffer_load_dwordx4 {v(vGW,4)}, v40, {s(sGW,4)}, 0 offen")
    for b in range(4):
        A(f"v_mov_b32 {v(44+b)}, 0")
    A(f"s_waitcnt vmcnt(0)")
    for k in range(4):
        for b in range(4):
            A(f"v_dot2_f32_bf16 {v(44+b)}, {v(vGX+4*b+k)}, {v(vGW+k)}, {v(44+b)}")
    A("s_nop 3")
    for d in ("quad_perm:[1,0,3,2]", "quad_perm:[2,3,0,1]", "row_half_mirror", "row_mirror"):
        for b in range(4):
            A(f"v_add_f32_dpp {v(44+b)}, {v(44+b)}, {v(44+b)} {d} row_mask:0xf bank_mask:0xf")
    xreduce_rows2(A, "v_add_f32", 44, 48, "v_add_f32", 45, 49)
    xreduce_rows2(A, "v_add_f32", 46, 48, "v_add_f32", 47, 49)
    A(f"v_cmp_eq_u32 vcc, 1, {v(vS)}")
    A(f"v_cndmask_b32 v44, v44, v45, vcc")
    A(f"v_cmp_eq_u32 vcc, 2, {v(vS)}")
    A(f"v_cndmask_b32 v44, v44, v46, vcc")
    A(f"v_cmp_eq_u32 vcc, 3, {v(vS)}")
    A(f"v_cndmask_b32 v44, v44, v47, vcc")
    A(f"s_mov_b32 {s(sT0)}, {hex(f2u(-LOG2E))}")
    A(f"v_mul_f32 v44, {s(sT0)}, v44")
    A(f"v_exp_f32 v44, v44")
    A(f"v_add_f32 v44, 1.0, v44")
    A(f"v_rcp_f32 v58, v44")
    A(f"v_lshlrev_b32 v45, 2, {v(vS)}")
    A(f"v_add_u32 v45, {L_G}, v45")
    A(f"ds_write_b32 v45, v58")
    arrive(A, FG, 45)
    A(f"s_branch L_Ldone")
    A.label("L_mlpw")
    A(f"s_cmp_lg_u32 {s(sW)}, 2")
    A(f"s_cbranch_scc1 L_Ldone")
    if cfg.nomlp: A(f"s_branch L_Ldone")
    sNS, sJM, sMHJ = sT3, sT4, sT5
    A(f"s_lshr_b32 {s(sT0)}, {s(sR)}, 3")
    A(f"s_lshl_b32 {s(sT0)}, {s(sT0)}, 3")
    A(f"s_add_u32 {s(sNS)}, {s(sT0)}, {s(sXCD)}")
    A(f"s_cmp_ge_u32 {s(sNS)}, {NMG}")
    A(f"s_cbranch_scc1 L_Ldone")
    A(f"s_and_b32 {s(sJM)}, {s(sR)}, 7")
    A(f"s_lshl_b32 {s(sMHJ)}, {s(sNS)}, 3")
    A(f"s_add_u32 {s(sMHJ)}, {s(sMHJ)}, {s(sJM)}")
    vMX, vMW1, vMW2, vMB1 = 8, 64, 128, 60
    vONE, vG1, vCK1 = 192, 208, 240
    vPUB, vCPUB, vGA, vGB, vGC = 52, 53, 54, 55, 56
    A(f"v_lshrrev_b32 v41, 2, {v(vN)}")
    A(f"v_lshlrev_b32 v41, 10, v41")
    A(f"v_lshl_add_u32 v41, {v(vS)}, 5, v41")
    A(f"s_lshl_b32 {s(sT0)}, {s(sJM)}, 7")
    A(f"v_add_u32 v41, {s(sT0)}, v41")
    A(f"s_lshl_b32 {s(sT0)}, {s(sJM)}, 6")
    A(f"v_lshl_add_u32 v42, {v(vS)}, 4, {s(sT0)}")
    A(f"s_movk_i32 {s(sT1)}, 2752")
    A(f"v_mul_lo_u32 v42, v42, {s(sT1)}")
    A(f"s_lshl_b32 {s(sT0)}, {s(sNS)}, 8")
    A(f"v_lshl_add_u32 v44, {v(vN)}, 4, {s(sT0)}")
    A(f"v_add_u32 v42, v42, v44")
    A(f"v_cmp_gt_u32 vcc, 2752, v44")
    A(f"v_mov_b32 v45, 0x7ffffff0")
    A(f"v_cndmask_b32 v42, v45, v42, vcc")
    A(f"v_cndmask_b32 v44, v45, v44, vcc")
    A(f"s_lshl_b32 {s(sT0)}, {s(sNS)}, 17")
    A(f"s_lshl_b32 {s(sT1)}, {s(sJM)}, 7")
    A(f"s_add_u32 {s(sT0)}, {s(sT0)}, {s(sT1)}")
    A(f"v_lshlrev_b32 v46, 15, {v(vS)}")
    A(f"v_lshl_add_u32 v46, {v(vN)}, 3, v46")
    A(f"v_add_u32 v48, {s(sT0)}, v46")
    if cfg.mlp_w1_flag: wait_flag(A, globals()[cfg.mlp_w1_flag], 4, 46)
    stamp(A, cfg, 4, L=True)
    A(f"buffer_load_dword v40, v43, {s(sWS,4)}, 0 offen sc1")
    for k in range(2):
        A(f"buffer_load_dwordx4 {v(vMX+4*k,4)}, v41, {s(sX,4)}, 0 offen offset:{16*k}")
    A(f"buffer_load_dwordx4 {v(vMB1,4)}, v44, {s(sB1,4)}, 0 offen")
    A(f"s_mov_b32 {s(sT2)}, 0")
    for k in range(16):
        A(f"buffer_load_dwordx4 {v(vMW1+4*k,4)}, v42, {s(sW1,4)}, {s(sT2)} offen{NT}")
        if k < 15: A(f"s_add_u32 {s(sT2)}, {s(sT2)}, 2752")
    def w2_loads():
        A(f"s_mov_b32 {s(sT2)}, 0")
        for k in range(32):
            A(f"buffer_load_dwordx2 {v(vMW2+2*k,2)}, v43, {s(sW2,4)}, {s(sT2)} offen offset:{1024*(k%4)}{NT}")
            if k % 4 == 3 and k < 31: A(f"s_add_u32 {s(sT2)}, {s(sT2)}, 4096")
    A(f"v_mov_b32 v43, v48")
    NW2 = 0 if cfg.mlp_w2 else 32
    if not cfg.mlp_w2: w2_loads()
    make_ones(A, vN, vONE, 46)
    partial_offsets(A, vL, vN, vS, WS_H1, WS_H1C, vPUB, vCPUB, vGA, vGB, vGC, 46, sMHJ, sNS)
    A(f"v_lshrrev_b32 v46, 3, {v(vN)}")
    A(f"v_lshl_add_u32 v46, {v(vS)}, 4, v46")
    A(f"s_lshl_b32 {s(sT0)}, {s(sJM)}, 1")
    A(f"v_add_u32 v46, {s(sT0)}, v46")
    A(f"s_movk_i32 {s(sT1)}, {NSLOT}")
    A(f"v_mul_lo_u32 v46, v46, {s(sT1)}")
    A(f"s_add_u32 {s(sT0)}, {s(sNS)}, 32")
    A(f"v_add_u32 v46, {s(sT0)}, v46")
    A(f"v_lshlrev_b32 v58, 3, v46")
    A(f"v_add_u32 v58, {hex(WS_FC)}, v58")
    A(f"v_and_b32 v49, 7, {v(vN)}")
    A(f"v_lshlrev_b32 v49, 3, v49")
    A(f"v_lshl_add_u32 v57, v46, 6, v49")
    A(f"v_add_u32 v57, {hex(WS_FD)}, v57")
    A(f"v_lshlrev_b32 v41, 4, {v(vL)}")
    A(f"v_add_u32 v41, {L_HR}, v41")
    A(f"v_lshrrev_b32 v42, 2, {v(vN)}")
    A(f"v_lshlrev_b32 v42, 8, v42")
    A(f"v_lshl_add_u32 v42, {v(vS)}, 6, v42")
    A(f"v_add_u32 v42, {L_HR}, v42")
    A(f"s_waitcnt vmcnt({16+NW2})")
    nonce_from(A, 40)
    sel_gemm(A, 8, vMX, vSEL, 24, 28, vMW1, 32, 36, swap=True, wwait=lambda t: A(f"s_waitcnt vmcnt({NW2 + 14 - 2*t})"))
    publish_partial(A, 32, 36, 16, vPUB, vCPUB, 46, cfg.local_st, cfg.dual, cfg.defer)
    stamp(A, cfg, 5, L=True)
    if cfg.hopm_ack: A(f"s_waitcnt vmcnt(0)")
    gather_reduce(A, cfg, "L_hopm", vG1, vCK1, vONE, vGA, vGB, vGC, 32, 36, 46)
    stamp(A, cfg, 6, L=True)
    if cfg.mlp_w2: w2_loads()
    vH, vHa, vHn, vHd = 32, 208, 216, 224
    for e in range(8):
        r = vMB1 + e//2
        if e % 2 == 0: A(f"v_lshlrev_b32 {v(vHa+e)}, 16, {v(r)}")
        else: A(f"v_and_b32 {v(vHa+e)}, 0xffff0000, {v(r)}")
    for e in range(8):
        A(f"v_add_f32 {v(vH+e)}, {v(vH+e)}, {v(vHa+e)}")
    A(f"s_mov_b32 {s(sT0)}, {hex(f2u(-LOG2E))}")
    for e in range(8):
        A(f"v_mul_f32 {v(vHa+e)}, {s(sT0)}, abs({v(vH+e)})")
    for e in range(8):
        A(f"v_exp_f32 {v(vHa+e)}, {v(vHa+e)}")
    for e in range(8):
        a_, h_, n_, d_ = vHa+e, vH+e, vHn+e, vHd+e
        A(f"v_cmp_lt_f32 vcc, 0, {v(h_)}")
        A(f"v_mul_f32 {v(d_)}, {v(a_)}, {v(a_)}")
        A(f"v_cndmask_b32 {v(n_)}, {v(d_)}, 1.0, vcc")
        A(f"v_fma_f32 {v(n_)}, 2.0, {v(a_)}, {v(n_)}")
        A(f"v_cndmask_b32 {v(d_)}, 1.0, {v(d_)}, vcc")
        A(f"v_fma_f32 {v(d_)}, 2.0, {v(d_)}, {v(n_)}")
        A(f"v_rcp_f32 {v(d_)}, {v(d_)}")
        A(f"v_mul_f32 {v(n_)}, {v(n_)}, {v(h_)}")
        A(f"v_mul_f32 {v(h_)}, {v(n_)}, {v(d_)}")
    for k in range(4):
        A(f"v_cvt_pk_bf16_f32 {v(16+k)}, {v(vH+2*k)}, {v(vH+2*k+1)}")
    A(f"ds_write_b128 v41, v[16:19]")
    for k in range(4):
        A(f"ds_read_b128 {v(8+4*k,4)}, v42 offset:{16*k}")
    A(f"v_lshlrev_b32 v45, 2, {v(vS)}")
    A(f"v_add_u32 v45, {L_G}, v45")
    wait_flag(A, FG, 1, 46, lambda: A(f"ds_read_b32 v59, v45"))
    if cfg.mlp_w2: A(f"s_waitcnt vmcnt(0)")
    sel_gemm(A, 16, 8, vSEL, 24, 28, vMW2, 32)
    A(f"v_sub_f32 v59, 1.0, v59")
    for k in range(4):
        A(f"v_mul_f32 {v(32+k)}, {v(32+k)}, v59")
    A(f"v_cvt_pk_bf16_f32 v16, v32, v33")
    A(f"v_cvt_pk_bf16_f32 v17, v34, v35")
    A(f"buffer_store_dwordx2 v[16:17], v57, {s(sWS,4)}, 0 offen sc1")
    A(f"v_add_u32 v46, v16, v17")
    for d in ("quad_perm:[1,0,3,2]", "quad_perm:[2,3,0,1]", "row_half_mirror"):
        A(f"v_add_u32_dpp v46, v46, v46 {d} row_mask:0xf bank_mask:0xf")
    A(f"v_add_u32 v47, {s(sNONCE)}, v46")
    A(f"s_mov_b32 exec_lo, 0x01010101")
    A(f"s_mov_b32 exec_hi, 0x01010101")
    A(f"buffer_store_dwordx2 v[46:47], v58, {s(sWS,4)}, 0 offen sc1")
    A(f"s_mov_b64 exec, -1")
    stamp(A, cfg, 7, L=True)
    A(f"s_branch L_Ldone")
    A.label("L_tail")
    vWUV, vWO = 64, 128
    A(f"s_lshl_b32 {s(sT0)}, {s(sJ)}, 19")
    A(f"s_lshl_b32 {s(sT1)}, {s(sH)}, 8")
    A(f"s_add_u32 {s(sT0)}, {s(sT0)}, {s(sT1)}")
    A(f"v_lshlrev_b32 v41, 17, {v(vS)}")
    A(f"v_lshl_add_u32 v41, {v(vN)}, 4, v41")
    A(f"v_add_u32 v41, {s(sT0)}, v41")
    A(f"s_lshl_b32 {s(sT0)}, {s(sH)}, 17")
    A(f"s_lshl_b32 {s(sT1)}, {s(sJ)}, 7")
    A(f"s_add_u32 {s(sT0)}, {s(sT0)}, {s(sT1)}")
    A(f"v_lshlrev_b32 v42, 15, {v(vS)}")
    A(f"v_lshl_add_u32 v42, {v(vN)}, 3, v42")
    A(f"v_add_u32 v42, {s(sT0)}, v42")
    A(f"buffer_load_dword v61, v43, {s(sWS,4)}, 0 offen sc1")
    vPUB, vCPUB, vGA, vGB, vGC = 52, 53, 54, 55, 56
    partial_offsets(A, vL, vN, vS, WS_C1, WS_C1C, vPUB, vCPUB, vGA, vGB, vGC, 46)
    A(f"v_lshrrev_b32 v46, 3, {v(vN)}")
    A(f"v_lshl_add_u32 v46, {v(vS)}, 4, v46")
    A(f"s_lshl_b32 {s(sT0)}, {s(sJ)}, 1")
    A(f"v_add_u32 v46, {s(sT0)}, v46")
    A(f"s_movk_i32 {s(sT1)}, {NSLOT}")
    A(f"v_mul_lo_u32 v46, v46, {s(sT1)}")
    A(f"v_add_u32 v46, {s(sH)}, v46")
    A(f"v_lshlrev_b32 v60, 3, v46")
    A(f"v_add_u32 v60, {hex(WS_FC)}, v60")
    A(f"v_and_b32 v47, 7, {v(vN)}")
    A(f"v_lshlrev_b32 v47, 3, v47")
    A(f"v_lshl_add_u32 v59, v46, 6, v47")
    A(f"v_add_u32 v59, {hex(WS_FD)}, v59")
    if cfg.tail_early:
        if cfg.tail_delay: wait_flag(A, globals()[cfg.tail_delay], 1, 45)
    elif cfg.tail_flag: wait_flag(A, globals()[cfg.tail_flag], 4, 45)
    A(f"s_mov_b32 {s(sT2)}, 0")
    for k in range(16):
        if cfg.tailwin and k >= cfg.tailwin: A(f"s_waitcnt vmcnt({cfg.tailwin-1})")
        A(f"buffer_load_dwordx4 {v(vWUV+4*k,4)}, v41, {s(sWUV,4)}, {s(sT2)} offen{NT}")
        if k < 15: A(f"s_add_u32 {s(sT2)}, {s(sT2)}, 8192")
    def wo_loads():
        A(f"s_mov_b32 {s(sT2)}, 0")
        for k in range(32):
            if cfg.tailwin2 and k % 2 == 0: A(f"s_waitcnt vmcnt({cfg.tailwin2-2})")
            A(f"buffer_load_dwordx2 {v(vWO+2*k,2)}, v62, {s(sWO,4)}, {s(sT2)} offen offset:{1024*(k%4)}{NT}")
            if k % 4 == 3 and k < 31: A(f"s_add_u32 {s(sT2)}, {s(sT2)}, 4096")
    A(f"v_mov_b32 v62, v42")
    if not cfg.wo_flag: wo_loads()
    vONE, vG1, vCK1 = 192, 208, 240
    A(f"s_waitcnt vmcnt({16 if cfg.wo_flag else 48})")
    nonce_from(A, 61)
    A(f"v_lshlrev_b32 v45, 2, {v(vS)}")
    A(f"v_add_u32 v45, {L_G}, v45")
    wait_flag(A, FG, 1, 46, lambda: A(f"ds_read_b32 v58, v45"))
    make_ones(A, vN, vONE, 46)
    A(f"v_lshrrev_b32 v44, 2, {v(vN)}")
    A(f"v_lshlrev_b32 v42, 7, v44")
    A(f"v_lshl_add_u32 v42, {v(vS)}, 5, v42")
    A(f"v_add_u32 v42, {L_CC}, v42")
    A(f"v_lshlrev_b32 v43, 4, {v(vL)}")
    A(f"v_add_u32 v43, {L_CT}, v43")
    A(f"v_lshlrev_b32 v44, 8, v44")
    A(f"v_lshl_add_u32 v44, {v(vS)}, 6, v44")
    A(f"v_add_u32 v44, {L_CT}, v44")
    A(f"s_waitcnt vmcnt({0 if cfg.wo_flag else 32})")
    for t in range(8):
        A(f"v_swap_b32 {v(vWUV+8*t+2)}, {v(vWUV+8*t+4)}")
        A(f"v_swap_b32 {v(vWUV+8*t+3)}, {v(vWUV+8*t+5)}")
    if cfg.wo_flag == 'FPB':
        wait_flag(A, FPB, 4, 45)
        wo_loads()
    if cfg.wo_flag == 'FH3':
        wait_flag(A, FCC, 1, 45)
        wo_loads()
    if cfg.wo_flag == 'ACK':
        wait_flag(A, FP2, 4, 45)
        wo_loads()
    if not cfg.wo_flag: A(f"s_waitcnt vmcnt(0)")
    stamp(A, cfg, 4, L=True)
    vCP = 8
    def _rd():
        A(f"ds_read_b128 {v(vCP,4)}, v42")
        A(f"ds_read_b128 {v(vCP+4,4)}, v42 offset:16")
    lab = A.newlabel("L_cc"); done = A.newlabel("L_ccd")
    A(f"s_mov_b32 {s(sCNT2)}, 0")
    A.label(lab)
    _rd()
    A(f"s_waitcnt lgkmcnt(0)")
    A(f"v_max3_u32 v45, {v(vCP)}, {v(vCP+1)}, {v(vCP+2)}")
    A(f"v_max3_u32 v46, {v(vCP+3)}, {v(vCP+4)}, {v(vCP+5)}")
    A(f"v_max3_u32 v45, v45, {v(vCP+6)}, {v(vCP+7)}")
    A(f"v_max_u32 v45, v45, v46")
    A(f"v_cmp_eq_u32 vcc, -1, v45")
    A(f"s_cbranch_vccz {done}")
    A(f"s_add_u32 {s(sCNT2)}, {s(sCNT2)}, 1")
    A(f"s_cmp_lt_u32 {s(sCNT2)}, 4000000")
    A(f"s_cbranch_scc1 {lab}")
    A.label(done)
    stamp(A, cfg, 5, L=True)
    if cfg.wo_flag == 'FCC': wo_loads()
    sel_gemm(A, 8, vCP, vSEL, 24, 28, vWUV, 32, 36)
    publish_partial(A, 32, 36, 16, vPUB, vCPUB, 46, cfg.local_st, cfg.dual, cfg.defer)
    stamp(A, cfg, 6, L=True)
    if cfg.hop4_ack: A(f"s_waitcnt vmcnt(0)")
    gather_reduce(A, cfg, "L_hop4", vG1, vCK1, vONE, vGA, vGB, vGC, 32, 36, 46)
    savecnt(A, cfg, 0)
    stamp(A, cfg, 7, L=True)
    A(f"v_cvt_pk_bf16_f32 v16, v32, v33")
    A(f"v_cvt_pk_bf16_f32 v17, v34, v35")
    A(f"v_cvt_pk_bf16_f32 v18, v36, v37")
    A(f"v_cvt_pk_bf16_f32 v19, v38, v39")
    A(f"ds_write_b128 v43, v[16:19]")
    vXP2 = 8
    for k in range(4):
        A(f"ds_read_b128 {v(vXP2+4*k,4)}, v44 offset:{16*k}")
    def _x(t):
        if t % 4 == 0: A(f"s_waitcnt lgkmcnt({3-t//4})")
    sel_gemm(A, 16, vXP2, vSEL, 24, 28, vWO, 32, xwait=_x)
    for k in range(4):
        A(f"v_mul_f32 {v(32+k)}, {v(32+k)}, v58")
    A(f"v_cvt_pk_bf16_f32 v16, v32, v33")
    A(f"v_cvt_pk_bf16_f32 v17, v34, v35")
    if cfg.pw_fd: wait_flag(A, FP2, 1, 45)
    A(f"buffer_store_dwordx2 v[16:17], v59, {s(sWS,4)}, 0 offen sc1")
    A(f"v_add_u32 v46, v16, v17")
    for d in ("quad_perm:[1,0,3,2]", "quad_perm:[2,3,0,1]", "row_half_mirror"):
        A(f"v_add_u32_dpp v46, v46, v46 {d} row_mask:0xf bank_mask:0xf")
    A(f"v_add_u32 v47, {s(sNONCE)}, v46")
    A(f"s_mov_b32 exec_lo, 0x01010101")
    A(f"s_mov_b32 exec_hi, 0x01010101")
    A(f"buffer_store_dwordx2 v[46:47], v60, {s(sWS,4)}, 0 offen sc1")
    A(f"s_mov_b64 exec, -1")
    if cfg.hop5_gate:
        if cfg.hop5_gate == 2: A(f"s_waitcnt vmcnt(0)")
        arrive(A, FT, 45)
    A.label("L_Ldone")
    if cfg.ts:
        stamp(A, cfg, 1, L=True)
        emit_ts(A, cfg, L=True)
    A.label("L_exit")
    A(f"s_endpgm")
    A.label("L_end")
    lines = hazard.fix(A.l, verbose=True)
    return "\n".join(lines) + "\n"

def emit_ts(A, cfg, L=False):
    A(f"s_waitcnt lgkmcnt(0) vmcnt(0)")
    A(f"s_mov_b64 exec, 0x3ff")
    A(f"v_mbcnt_lo_u32_b32 v0, -1, 0")
    A(f"v_mov_b32 v1, 0")
    for k in range(10):
        A(f"v_mov_b32 v2, {s(sTS+2*k)}")
        A(f"v_cmp_eq_u32 vcc, {k}, v0")
        A(f"v_cndmask_b32 v1, v1, v2, vcc")
    if cfg.cnts:
        A(f"s_mov_b64 exec, 0xffff")
        for k in range(6):
            A(f"v_mov_b32 v2, {s(CNTREG[k])}")
            A(f"v_cmp_eq_u32 vcc, {10+k}, v0")
            A(f"v_cndmask_b32 v1, v1, v2, vcc")
    A(f"s_lshl_b32 {s(sT0)}, s2, 3")
    A(f"s_add_u32 {s(sT0)}, {s(sT0)}, {s(sW)}")
    if L: A(f"s_add_u32 {s(sT0)}, {s(sT0)}, 4")
    A(f"s_lshl_b32 {s(sT0)}, {s(sT0)}, 6")
    A(f"s_add_u32 {s(sT0)}, {s(sT0)}, {hex(WS_DBG)}")
    A(f"v_lshl_add_u32 v2, v0, 2, {s(sT0)}")
    A(f"buffer_store_dword v1, v2, {s(sWS,4)}, 0 offen")

def build(cfg, path):
    body = gen(cfg)
    txt = wrap([(KNAME, body, 256, 102, 256)], [(KNAME, (256,1,1), (512,1,1), LDS_SIZE)])
    open(path, "w").write(txt)
    return path

if __name__ == "__main__":
    import build as B
    cfg = Cfg()
    for a_ in sys.argv[2:]:
        k, val = a_.split("=")
        setattr(cfg, k, eval(val))
    p = build(cfg, sys.argv[1])
    B.build(p, p.replace(".s", ".co"))
    import subprocess
    print(subprocess.run(f"llvm-objdump -d --mcpu=gfx950 {p.replace('.s','.co')} | grep -c '//' ; llvm-readelf -S {p.replace('.s','.co')} | grep -E 'text'", shell=True, capture_output=True, text=True).stdout)
```

```python
import sys; sys.path.insert(0, "dev")
from asmlib import *
import hazard

WS_E = 0
WS_Q1, WS_Q1C = 0x10000, 0x50000
WS_QA, WS_QC = 0x60000, 0x80000
WS_C1, WS_C1C = 0x90000, 0xD0000
WS_FD, WS_FC = 0xE0000, 0x130000
WS_H1, WS_H1C = 0x1C0000, 0x1E0000
WS_ST, WS_OP, WS_DBG = 0x140000, 0x200000, 0x800000
import os
WSBASE = int(os.environ.get('WSBASE', '0'), 0)
for _n in [k for k in list(globals()) if k.startswith('WS_')]: globals()[_n] += WSBASE
PITCH = 1056
L_KV = 0
L_QL = 128 * PITCH
L_MISC = L_QL + 16 * PITCH
L_QB = L_MISC
L_MX = L_MISC + 1024
L_LS = L_MISC + 1280
L_G  = L_MISC + 1536
L_FL = L_MISC + 1600
L_PB = L_MISC + 2048
L_CC = L_MISC + 6144
L_HR = L_MISC + 6656
L_CT = L_MISC + 8704
FKI, FKV, F3, FH2, FT, FPB, FCC, FP1, FP2, FP3, FW, FG = range(12)
LDS_SIZE = L_MISC + 9728
NPROD = 43
NSLOT = 48
NMG = 11
MLP0 = 64
NMLP = 43
HASH_K, HASH_C = 0x9E3779B1, 0x7F4A7C15
SCALE = (128 ** -0.5) * 1.4426950408889634
LOG2E = 1.4426950408889634

sX, sKV, sWQ, sWUK, sWUV, sWO, sW1, sB1, sW2, sGW, sOUT, sWS = 8, 12, 16, 20, 24, 28, 32, 36, 40, 44, 48, 52
sW, sXCD, sR, sHG, sJ, sH, sB, sKC, sNONCE, sE = 56, 57, 58, 59, 60, 61, 62, 63, 64, 65
sT0, sT1, sT2, sT3, sT4, sT5 = 66, 67, 68, 69, 70, 71
sCNT = 72
sCNT2 = 73
sEX = 74
sM0 = 76
sM1 = 78
sTS = 80
sM2, sM3 = 4, 6
CNTREG = [81, 83, 85, 87, 89, 91]
sHJ = 100
sFB, sDELTA = 101, 3
LOCAL_DELTA = 0x600000
LOCAL_TRIES = 8
POLL_MAX = 20000

def f2u(x):
    import struct
    return struct.unpack("<I", struct.pack("<f", x))[0]

class Cfg:
    nt_w = True
    ts = False
    tsmask = 0x3ff
    prio = True
    wait_kv_first = False
    l_after_m = False
    nt_kv = True
    nt_wq = True
    nt_tail = True
    poll_sleep = 0
    early = False
    cnts = False
    tail_after_f3 = True
    kvwin = 8
    kvwin0 = 0
    kvn0 = 8
    l_delay = True
    mlpwin1 = 16
    mlpwin2 = 6
    two_stage = False
    exp = ''
    pw = False
    pw_qa = False
    pw_fd = False
    nomlp = False
    mlp_split = True
    mlp_w1_flag = 'FPB'
    tail_flag = 'F3'
    wo_flag = 'FH3'
    rot = True
    tailwin = 0
    two3 = False
    hop3_ack = True
    g_ts = False
    kvpre = False
    lsleep = 0
    ccsleep = 0
    pad = 0
    padm = 0
    mlp_w2 = None
    hop4_ack = False
    hop1_ack = False
    hopm_ack = False
    hop5_gate = 2
    hop2_gate = True
    hop3_sleep = 0
    hop2_ack = False
    hop5_tags = False
    pubts = False
    tlb = 0
    tail_early = False
    tail_delay = None
    addr_early = True
    fw_at = 'pub'
    tailwin2 = 0
    mlp_w2_flag = 'FCC'
    local_st = 'sc1'
    dual = True
    defer = True
    local_ld = 'sc1'
    pw_op = False
    no_l = False
    stop = None
    prefetch_code = True

def srd(A, sr, karg_off, size):
    A(f"s_load_dwordx2 {s(sr,2)}, s[0:1], {karg_off}")
def srd_fin(A, sr, size):
    A(f"s_mov_b32 {s(sr+2)}, {hex(size)}")
    A(f"s_mov_b32 {s(sr+3)}, 0x20000")

def savecnt(A, cfg, k):
    if cfg.ts and cfg.cnts: A(f"s_mov_b32 {s(CNTREG[k])}, {s(sCNT)}")
def pstamp(A, cfg, k):
    if cfg.ts and cfg.pubts:
        A(f"s_memrealtime {s(sTS+2*k,2)}")
        A(f"s_waitcnt lgkmcnt(0)")
def estamp(A, cfg, k):
    if cfg.ts and cfg.early:
        A(f"s_memrealtime {s(sTS+2*k,2)}")
        A(f"s_waitcnt lgkmcnt(0)")
def stamp(A, cfg, k, L=False):
    if cfg.early and k >= 3 and not L: return
    if cfg.pubts and not L and k in (1,2,3,4,5,6,7,8): return
    if cfg.ts and (cfg.tsmask >> k) & 1:
        A(f"s_memrealtime {s(sTS+2*k,2)}")
        A(f"s_waitcnt lgkmcnt(0)")

vFLA = 3
def arrive(A, f, one, fla=None):
    A(f"v_mov_b32 {v(one)}, 1")
    A(f"s_mov_b64 {s(sEX,2)}, exec")
    A(f"s_mov_b64 exec, 1")
    A(f"ds_add_u32 {v(fla if fla is not None else vFLA)}, {v(one)} offset:{4*f}")
    A(f"s_mov_b64 exec, {s(sEX,2)}")
LSLEEP = [0]
def wait_flag(A, f, n, tmp, extra=None, fla=None):
    lab = A.newlabel("L_fw"); done = A.newlabel("L_fd")
    A(f"s_mov_b32 {s(sCNT2)}, 0")
    A.label(lab)
    A(f"ds_read_b32 {v(tmp)}, {v(fla if fla is not None else vFLA)} offset:{4*f}")
    if extra: extra()
    A(f"s_waitcnt lgkmcnt(0)")
    A(f"v_cmp_gt_u32 vcc, {n}, {v(tmp)}")
    A(f"s_cbranch_vccz {done}")
    if LSLEEP[0]: A(f"s_sleep {LSLEEP[0]}")
    A(f"s_add_u32 {s(sCNT2)}, {s(sCNT2)}, 1")
    A(f"s_cmp_lt_u32 {s(sCNT2)}, 2000000")
    A(f"s_cbranch_scc1 {lab}")
    A.label(done)

def xreduce_rows(A, op, x, tmp):
    A(f"v_mov_b32 {v(tmp)}, {v(x)}")
    A(f"v_permlane16_swap_b32 {v(x)}, {v(tmp)}")
    A(f"{op} {v(x)}, {v(x)}, {v(tmp)}")
    A(f"v_mov_b32 {v(tmp)}, {v(x)}")
    A(f"v_permlane32_swap_b32 {v(x)}, {v(tmp)}")
    A(f"{op} {v(x)}, {v(x)}, {v(tmp)}")

def xreduce_rows2(A, op0, x0, t0, op1, x1, t1):
    for sw in ("v_permlane16_swap_b32", "v_permlane32_swap_b32"):
        A(f"v_mov_b32 {v(t0)}, {v(x0)}")
        A(f"v_mov_b32 {v(t1)}, {v(x1)}")
        A(f"{sw} {v(x0)}, {v(t0)}")
        A(f"{sw} {v(x1)}, {v(t1)}")
        A(f"{op0} {v(x0)}, {v(x0)}, {v(t0)}")
        A(f"{op1} {v(x1)}, {v(x1)}, {v(t1)}")

def wave_sum_u32(A, x, t):
    for d in ("quad_perm:[1,0,3,2]", "quad_perm:[2,3,0,1]", "row_half_mirror", "row_mirror"):
        A(f"v_add_u32_dpp {v(x)}, {v(x)}, {v(x)} {d} row_mask:0xf bank_mask:0xf")
    xreduce_rows(A, "v_add_u32", x, t)

def sum_dwords(A, dst, regs):
    regs = list(regs)
    A(f"v_add3_u32 {v(dst)}, {v(regs[0])}, {v(regs[1])}, {v(regs[2])}")
    k = 3
    while k + 1 < len(regs):
        A(f"v_add3_u32 {v(dst)}, {v(dst)}, {v(regs[k])}, {v(regs[k+1])}"); k += 2
    if k < len(regs):
        A(f"v_add_u32 {v(dst)}, {v(dst)}, {v(regs[k])}")

def make_sels(A, vn, vsel, vt):
    A(f"v_and_b32 {v(vt)}, 3, {v(vn)}")
    A(f"v_mov_b32 {v(vt+1)}, 0x0c0c0c0c")
    pats = [(0, 0x0c0c0100, 1, 0x01000c0c), (2, 0x0c0c0100, 3, 0x01000c0c), (0, 0x0c0c0302, 1, 0x03020c0c), (2, 0x0c0c0302, 3, 0x03020c0c)]
    for k, (j0, p0, j1, p1) in enumerate(pats):
        A(f"v_mov_b32 {v(vt+2)}, {hex(p0)}")
        A(f"v_cmp_eq_u32 vcc, {j0}, {v(vt)}")
        A(f"v_cndmask_b32 {v(vsel+k)}, {v(vt+1)}, {v(vt+2)}, vcc")
        A(f"v_mov_b32 {v(vt+2)}, {hex(p1)}")
        A(f"v_cmp_eq_u32 vcc, {j1}, {v(vt)}")
        A(f"v_cndmask_b32 {v(vsel+k)}, {v(vsel+k)}, {v(vt+2)}, vcc")

def sel_gemm_step(A, xp, vsel, af, wreg, dx, dy, first, swap=True):
    if swap:
        A(f"v_swap_b32 {v(wreg+2)}, {v(wreg+4)}")
        A(f"v_swap_b32 {v(wreg+3)}, {v(wreg+5)}")
    for k in range(4):
        A(f"v_perm_b32 {v(af+k)}, {v(xp)}, {v(xp)}, {v(vsel+k)}")
    c0 = "0" if first else v(dx,4)
    c1 = "0" if first else v(dy,4)
    A(f"v_mfma_f32_16x16x32_bf16 {v(dx,4)}, {v(af,4)}, {v(wreg,4)}, {c0}")
    A(f"v_mfma_f32_16x16x32_bf16 {v(dy,4)}, {v(af,4)}, {v(wreg+4,4)}, {c1}")

def sel_gemm(A, n, xp, vsel, af0, af1, w, dx, dy=None, swap=False, wwait=None, xwait=None):
    st = 8 if dy is not None else 4
    def perms(t):
        if xwait: xwait(t)
        af = af0 if t % 2 == 0 else af1
        for k in range(4):
            A(f"v_perm_b32 {v(af+k)}, {v(xp+t)}, {v(xp+t)}, {v(vsel+k)}")
    perms(0)
    for t in range(n):
        if wwait: wwait(t)
        wr = w + st*t
        if swap:
            A(f"v_swap_b32 {v(wr+2)}, {v(wr+4)}")
            A(f"v_swap_b32 {v(wr+3)}, {v(wr+5)}")
        if t + 1 < n: perms(t+1)
        af = af0 if t % 2 == 0 else af1
        A(f"v_mfma_f32_16x16x32_bf16 {v(dx,4)}, {v(af,4)}, {v(wr,4)}, {'0' if t == 0 else v(dx,4)}")
        if dy is not None:
            A(f"v_mfma_f32_16x16x32_bf16 {v(dy,4)}, {v(af,4)}, {v(wr+4,4)}, {'0' if t == 0 else v(dy,4)}")

def poll_head(A, name):
    lab = A.newlabel(name)
    A(f"s_mov_b32 {s(sCNT)}, 0")
    A.label(lab)
    return lab
def poll_tail(A, lab, bad_pair, sleep=0):
    done = A.newlabel("done")
    A(f"s_cmp_eq_u64 {s(bad_pair,2)}, 0")
    A(f"s_cbranch_scc1 {done}")
    if sleep: A(f"s_sleep {sleep}")
    A(f"s_add_u32 {s(sCNT)}, {s(sCNT)}, 1")
    A(f"s_cmp_lt_u32 {s(sCNT)}, {POLL_MAX}")
    A(f"s_cbranch_scc1 {lab}")
    A.label(done)

def publish_final(A, cfg, dx, dy, vscale, vprod_off, vchk_off, pk, t):
    for k in range(4):
        A(f"v_mul_f32 {v(dx+k)}, {v(dx+k)}, {v(vscale)}")
        A(f"v_mul_f32 {v(dy+k)}, {v(dy+k)}, {v(vscale)}")
    A(f"v_cvt_pk_bf16_f32 {v(pk)}, {v(dx)}, {v(dx+1)}")
    A(f"v_cvt_pk_bf16_f32 {v(pk+1)}, {v(dx+2)}, {v(dx+3)}")
    A(f"v_cvt_pk_bf16_f32 {v(pk+2)}, {v(dy)}, {v(dy+1)}")
    A(f"v_cvt_pk_bf16_f32 {v(pk+3)}, {v(dy+2)}, {v(dy+3)}")
    A(f"buffer_store_dwordx4 {v(pk,4)}, {v(vprod_off)}, {s(sWS,4)}, 0 offen sc1")
    sum_dwords(A, t, [pk, pk+1, pk+2, pk+3])
    A(f"v_add_u32_dpp {v(t)}, {v(t)}, {v(t)} quad_perm:[1,0,3,2] row_mask:0xf bank_mask:0xf")
    A(f"v_add_u32_dpp {v(t)}, {v(t)}, {v(t)} quad_perm:[2,3,0,1] row_mask:0xf bank_mask:0xf")
    A(f"v_add_u32 {v(t+1)}, {s(sNONCE)}, {v(t)}")
    A(f"s_mov_b64 {s(sEX,2)}, exec")
    A(f"s_mov_b32 exec_lo, 0x11111111")
    A(f"s_mov_b32 exec_hi, 0x11111111")
    A(f"buffer_store_dwordx2 {v(t,2)}, {v(vchk_off)}, {s(sWS,4)}, 0 offen sc1")
    A(f"s_mov_b64 exec, {s(sEX,2)}")

def final_offsets(A, vn, vq, s_ct, s_prod, voff, vchk, t):
    A(f"v_lshrrev_b32 {v(t)}, 2, {v(vn)}")
    A(f"v_lshl_add_u32 {v(t)}, {v(vq)}, 4, {v(t)}")
    A(f"s_lshl_b32 {s(sT0)}, {s(s_ct)}, 2")
    A(f"v_add_u32 {v(t)}, {s(sT0)}, {v(t)}")
    A(f"s_movk_i32 {s(sT1)}, {NSLOT}")
    A(f"v_mul_lo_u32 {v(t)}, {v(t)}, {s(sT1)}")
    A(f"v_add_u32 {v(t)}, {s(s_prod)}, {v(t)}")
    A(f"v_lshlrev_b32 {v(vchk)}, 3, {v(t)}")
    A(f"v_add_u32 {v(vchk)}, {hex(WS_FC)}, {v(vchk)}")
    A(f"v_and_b32 {v(t+1)}, 3, {v(vn)}")
    A(f"v_lshlrev_b32 {v(t+1)}, 4, {v(t+1)}")
    A(f"v_lshl_add_u32 {v(voff)}, {v(t)}, 6, {v(t+1)}")
    A(f"v_add_u32 {v(voff)}, {hex(WS_FD)}, {v(voff)}")


def nonce_from(A, vreg):
    A(f"v_readfirstlane_b32 {s(sE)}, {v(vreg)}")
    A(f"s_mul_i32 {s(sNONCE)}, {s(sE)}, {hex(HASH_K)}")
    A(f"s_add_u32 {s(sNONCE)}, {s(sNONCE)}, {hex(HASH_C)}")

def make_ones(A, vn, dst, t):
    A(f"v_and_b32 {v(t)}, 3, {v(vn)}")
    A(f"v_lshrrev_b32 {v(t+1)}, 2, {v(vn)}")
    A(f"v_mov_b32 {v(t+2)}, 0")
    for k, (j0, j1) in enumerate(((0,1),(2,3))):
        A(f"v_mov_b32 {v(t+3)}, 0x3f80")
        A(f"v_cmp_eq_u32 vcc, {j0}, {v(t)}")
        A(f"v_cndmask_b32 {v(t+4+k)}, {v(t+2)}, {v(t+3)}, vcc")
        A(f"v_mov_b32 {v(t+3)}, 0x3f800000")
        A(f"v_cmp_eq_u32 vcc, {j1}, {v(t)}")
        A(f"v_cndmask_b32 {v(t+4+k)}, {v(t+4+k)}, {v(t+3)}, vcc")
    for b in range(4):
        A(f"v_cmp_eq_u32 vcc, {b}, {v(t+1)}")
        A(f"v_cndmask_b32 {v(dst+4*b)}, {v(t+2)}, {v(t+4)}, vcc")
        A(f"v_cndmask_b32 {v(dst+4*b+1)}, {v(t+2)}, {v(t+5)}, vcc")
        A(f"v_mov_b32 {v(dst+4*b+2)}, {v(dst+4*b)}")
        A(f"v_mov_b32 {v(dst+4*b+3)}, {v(dst+4*b+1)}")

def partial_offsets(A, vl, vn, vs, base, chkbase, vpub, vchkpub, vga, vgb, vgc, t, sHJ=sHJ, sH=sH):
    A(f"s_lshl_b32 {s(sT0)}, {s(sHJ)}, 10")
    A(f"s_add_u32 {s(sT0)}, {s(sT0)}, {hex(base)}")
    A(f"v_lshl_add_u32 {v(vpub)}, {v(vl)}, 4, {s(sT0)}")
    A(f"s_lshl_b32 {s(sT0)}, {s(sHJ)}, 3")
    A(f"s_add_u32 {s(sT0)}, {s(sT0)}, {hex(chkbase)}")
    A(f"v_mov_b32 {v(vchkpub)}, {s(sT0)}")
    A(f"s_lshl_b32 {s(sT0)}, {s(sH)}, 13")
    A(f"s_add_u32 {s(sT0)}, {s(sT0)}, {hex(base)}")
    A(f"v_lshlrev_b32 {v(t)}, 10, {v(vs)}")
    A(f"v_lshl_add_u32 {v(t)}, {v(vn)}, 4, {v(t)}")
    A(f"v_add_u32 {v(vga)}, {s(sT0)}, {v(t)}")
    A(f"v_add_u32 {v(vgb)}, 4096, {v(vga)}")
    A(f"s_lshl_b32 {s(sT0)}, {s(sH)}, 6")
    A(f"s_add_u32 {s(sT0)}, {s(sT0)}, {hex(chkbase)}")
    A(f"v_lshl_add_u32 {v(t)}, {v(vl)}, 3, {s(sT0)}")
    A(f"v_cmp_gt_u32 {s(sM2,2)}, 8, {v(vl)}")
    A(f"v_mov_b32 {v(t+1)}, 0x7ffffff0")
    A(f"v_cndmask_b32 {v(vgc)}, {v(t+1)}, {v(t)}, {s(sM2,2)}")

def publish_partial(A, dx, dy, pk, vpub, vchkpub, t, fl='sc1', dual=False, defer=False):
    A(f"v_cvt_pk_bf16_f32 {v(pk)}, {v(dx)}, {v(dx+1)}")
    A(f"v_cvt_pk_bf16_f32 {v(pk+1)}, {v(dx+2)}, {v(dx+3)}")
    A(f"v_cvt_pk_bf16_f32 {v(pk+2)}, {v(dy)}, {v(dy+1)}")
    A(f"v_cvt_pk_bf16_f32 {v(pk+3)}, {v(dy+2)}, {v(dy+3)}")
    if dual:
        A(f"buffer_store_dwordx4 {v(pk,4)}, {v(vpub)}, {s(sWS,4)}, 0 offen")
        if not defer: A(f"buffer_store_dwordx4 {v(pk,4)}, {v(vpub)}, {s(sWS,4)}, {s(sDELTA)} offen sc1")
    else:
        A(f"buffer_store_dwordx4 {v(pk,4)}, {v(vpub)}, {s(sWS,4)}, 0 offen {fl}")
    sum_dwords(A, t, [pk, pk+1, pk+2, pk+3])
    wave_sum_u32(A, t, t+2)
    A(f"v_add_u32 {v(t+1)}, {s(sNONCE)}, {v(t)}")
    A(f"s_mov_b64 {s(sEX,2)}, exec")
    A(f"s_mov_b64 exec, 1")
    if dual:
        A(f"buffer_store_dwordx2 {v(t,2)}, {v(vchkpub)}, {s(sWS,4)}, 0 offen")
        if not defer: A(f"buffer_store_dwordx2 {v(t,2)}, {v(vchkpub)}, {s(sWS,4)}, {s(sDELTA)} offen sc1")
    else:
        A(f"buffer_store_dwordx2 {v(t,2)}, {v(vchkpub)}, {s(sWS,4)}, 0 offen {fl}")
    A(f"s_mov_b64 exec, {s(sEX,2)}")
    if dual and defer:
        A(f"v_mov_b32 {v(pk+4)}, {v(t)}")
        A(f"v_mov_b32 {v(pk+5)}, {v(t+1)}")

def global_copy(A, pk, vpub, vchkpub):
    A(f"buffer_store_dwordx4 {v(pk,4)}, {v(vpub)}, {s(sWS,4)}, {s(sDELTA)} offen sc1")
    A(f"s_mov_b64 {s(sEX,2)}, exec")
    A(f"s_mov_b64 exec, 1")
    A(f"buffer_store_dwordx2 {v(pk+4,2)}, {v(vchkpub)}, {s(sWS,4)}, {s(sDELTA)} offen sc1")
    A(f"s_mov_b64 exec, {s(sEX,2)}")

def gather_reduce(A, cfg, name, G, CK, ones, vga, vgb, vgc, dx, dy, t, pk=16, vpub=52, vchkpub=53):
    so = s(sFB) if cfg.dual else "0"
    if cfg.dual: A(f"s_mov_b32 {s(sFB)}, 0")
    lab = poll_head(A, name)
    if cfg.dual:
        if cfg.defer:
            skip = A.newlabel("L_nosw")
            A(f"s_cmp_lg_u32 {s(sCNT)}, {LOCAL_TRIES}")
            A(f"s_cbranch_scc1 {skip}")
            global_copy(A, pk, vpub, vchkpub)
            A.label(skip)
        A(f"s_cmp_ge_u32 {s(sCNT)}, {LOCAL_TRIES}")
        A(f"s_cselect_b32 {s(sFB)}, {s(sDELTA)}, 0")
    for b in range(4):
        A(f"buffer_load_dwordx4 {v(G+8*b,4)}, {v(vga)}, {s(sWS,4)}, {so} offen offset:{256*b} {cfg.local_ld}")
        A(f"buffer_load_dwordx4 {v(G+8*b+4,4)}, {v(vgb)}, {s(sWS,4)}, {so} offen offset:{256*b} {cfg.local_ld}")
    A(f"buffer_load_dwordx2 {v(CK,2)}, {v(vgc)}, {s(sWS,4)}, {so} offen {cfg.local_ld}")
    A(f"s_waitcnt vmcnt(0)")
    sum_dwords(A, t, range(G, G+16))
    sum_dwords(A, t+1, range(G+16, G+32))
    A(f"v_add_u32 {v(t)}, {v(t)}, {v(t+1)}")
    A(f"v_sub_u32 {v(t)}, {v(t)}, {v(CK)}")
    A(f"v_add_u32 {v(t+1)}, {s(sNONCE)}, {v(CK)}")
    A(f"v_cmp_ne_u32 vcc, {v(t+1)}, {v(CK+1)}")
    wave_sum_u32(A, t, t+2)
    A(f"s_and_b64 {s(sM1,2)}, vcc, {s(sM2,2)}")
    A(f"v_cmp_ne_u32 vcc, 0, {v(t)}")
    A(f"s_or_b64 {s(sM1,2)}, {s(sM1,2)}, vcc")
    poll_tail(A, lab, sM1, cfg.poll_sleep)
    if cfg.dual and cfg.defer:
        skip = A.newlabel("L_nocp")
        A(f"s_cmp_ge_u32 {s(sCNT)}, {LOCAL_TRIES}")
        A(f"s_cbranch_scc1 {skip}")
        global_copy(A, pk, vpub, vchkpub)
        A.label(skip)
    for b in range(4):
        w = G + 8*b
        A(f"v_swap_b32 {v(w+2)}, {v(w+4)}")
        A(f"v_swap_b32 {v(w+3)}, {v(w+5)}")
    for b in range(4):
        w = G + 8*b
        c0 = "0" if b == 0 else v(dx,4); c1 = "0" if b == 0 else v(dy,4)
        A(f"v_mfma_f32_16x16x32_bf16 {v(dx,4)}, {v(ones+4*b,4)}, {v(w,4)}, {c0}")
        A(f"v_mfma_f32_16x16x32_bf16 {v(dy,4)}, {v(ones+4*b,4)}, {v(w+4,4)}, {c1}")

def gen(cfg):
    A = Asm()
    LSLEEP[0] = 0
    NT = " nt" if cfg.nt_tail else ""
    NTKV = " nt" if cfg.nt_kv else ""
    NTWQ = " nt" if cfg.nt_wq else ""
    vL, vN, vS = 0, 1, 2
    vSEL = 4
    A(f"s_cmp_ge_u32 s2, 256")
    A(f"s_cbranch_scc1 L_exit")
    for sr, off in ((sX,0),(sWQ,16),(sWUK,24),(sWS,104),(sKV,8),(sWUV,32),(sWO,40),(sW1,56),(sB1,64),(sW2,72),(sGW,80),(sOUT,88)):
        srd(A, sr, off, 0)
    stamp(A, cfg, 0)
    for _ in range(cfg.pad): A("s_nop 0")
    A(f"v_lshrrev_b32 v4, 6, v0")
    A(f"v_and_b32 {v(vL)}, 63, v0")
    A(f"v_readfirstlane_b32 {s(sW)}, v4")
    A(f"v_and_b32 {v(vN)}, 15, {v(vL)}")
    A(f"v_lshrrev_b32 {v(vS)}, 4, {v(vL)}")
    A(f"v_mov_b32 {v(vFLA)}, {L_FL}")
    A(f"v_lshl_add_u32 v40, {v(vN)}, 2, {v(vFLA)}")
    A(f"v_mov_b32 v41, 0")
    A(f"ds_write_b32 v40, v41")
    A(f"v_mov_b32 v42, -1")
    A(f"v_mov_b32 v43, -1")
    A(f"v_lshlrev_b32 v40, 3, {v(vL)}")
    A(f"v_add_u32 v41, {L_MX}, v40")
    A(f"ds_write_b64 v41, v[42:43]")
    A(f"v_add_u32 v41, {L_CC}, v40")
    A(f"ds_write_b64 v41, v[42:43]")
    A(f"s_and_b32 {s(sXCD)}, s2, 7")
    A(f"s_lshr_b32 {s(sR)}, s2, 3")
    A(f"s_and_b32 {s(sHG)}, {s(sR)}, 1")
    A(f"s_bfe_u32 {s(sJ)}, {s(sR)}, 0x30001")
    A(f"s_lshr_b32 {s(sT0)}, {s(sR)}, 4")
    A(f"s_lshl_b32 {s(sT1)}, {s(sXCD)}, 1")
    A(f"s_add_u32 {s(sT1)}, {s(sT1)}, {s(sT0)}")
    A(f"s_lshl_b32 {s(sT0)}, {s(sHG)}, 4")
    A(f"s_add_u32 {s(sH)}, {s(sT0)}, {s(sT1)}")
    A(f"s_lshl_b32 {s(sHJ)}, {s(sH)}, 3")
    A(f"s_add_u32 {s(sHJ)}, {s(sHJ)}, {s(sJ)}")
    A(f"s_lshr_b32 {s(sB)}, {s(sXCD)}, 1")
    A(f"s_and_b32 {s(sT0)}, {s(sXCD)}, 1")
    A(f"s_lshl_b32 {s(sT0)}, {s(sT0)}, 4")
    A(f"s_lshr_b32 {s(sT1)}, {s(sR)}, 1")
    A(f"s_add_u32 {s(sKC)}, {s(sT0)}, {s(sT1)}")
    for sr, size in ((sX,4096),(sWQ,4<<20),(sWUK,4<<20),(sWS,256<<20),(sKV,16<<20),(sWUV,4<<20),(sWO,4<<20),(sW1,512*2752),(sB1,2752),(sW2,1376*1024),(sGW,1024),(sOUT,4096)):
        srd_fin(A, sr, size)
    A(f"s_mov_b32 {s(sDELTA)}, {hex(LOCAL_DELTA)}")
    A(f"s_waitcnt lgkmcnt(0)")
    A(f"s_barrier")
    A(f"s_cmp_ge_u32 {s(sW)}, 4")
    A(f"s_cbranch_scc1 L_Lpath")
    if cfg.prio: A(f"s_setprio 3")
    for _ in range(cfg.padm): A("s_nop 0")
    vXP, vAF0, vAF1, vQX, vQY, vT = 8, 24, 28, 32, 36, 40
    vWUK, vWQ = 64, 128
    vA0, vA1, vA2 = 40, 41, 42
    vE = 44
    A(f"v_mov_b32 v43, {hex(WS_E)}")
    A(f"buffer_load_dword {v(vE)}, v43, {s(sWS,4)}, 0 offen sc1")
    if cfg.exp == 'kvonly': A(f"s_branch L_Mdone")
    A(f"s_cmp_lg_u32 {s(sW)}, 0")
    A(f"s_cbranch_scc1 L_noq")
    aQG, aQC, aQL, aQE, aQO, aKE, aKO, aPV0, aPV1, aMXR, aMXW, aPR, aPW, aOP0, aOP1, aST = range(8, 24)
    vQG, vQC = 64, 80
    def attn_addresses():
        A(f"s_lshl_b32 {s(sT0)}, {s(sB)}, 1")
        A(f"s_add_u32 {s(sT0)}, {s(sT0)}, {s(sHG)}")
        A(f"s_lshl_b32 {s(sT0)}, {s(sT0)}, 4")
        A(f"s_lshl_b32 {s(sT1)}, {s(sW)}, 2")
        A(f"s_add_u32 {s(sT0)}, {s(sT0)}, {s(sT1)}")
        A(f"s_lshl_b32 {s(sT1)}, {s(sT0)}, 10")
        A(f"s_add_u32 {s(sT1)}, {s(sT1)}, {hex(WS_QA)}")
        A(f"v_lshl_add_u32 {v(aQG)}, {v(vL)}, 4, {s(sT1)}")
        A(f"s_lshl_b32 {s(sT1)}, {s(sT0)}, 6")
        A(f"s_add_u32 {s(sT1)}, {s(sT1)}, {hex(WS_QC)}")
        A(f"v_lshl_add_u32 {v(aQC)}, {v(vL)}, 3, {s(sT1)}")
        A(f"v_cmp_lt_u32 {s(sM0,2)}, {v(vL)}, 32")
        A(f"v_mov_b32 v43, 0x7ffffff0")
        A(f"v_cndmask_b32 {v(aQC)}, v43, {v(aQC)}, {s(sM0,2)}")
        A(f"s_mul_i32 {s(sT1)}, {s(sW)}, {4*PITCH}")
        A(f"s_add_u32 {s(sT1)}, {s(sT1)}, {L_QL}")
        A(f"v_lshl_add_u32 {v(aQL)}, {v(vL)}, 4, {s(sT1)}")
        A(f"s_movk_i32 {s(sT1)}, {PITCH}")
        A(f"v_mul_lo_u32 v44, {v(vN)}, {s(sT1)}")
        A(f"v_lshl_add_u32 v44, {v(vS)}, 8, v44")
        A(f"v_and_b32 v45, 1, {v(vS)}")
        A(f"v_lshlrev_b32 v45, 4, v45")
        A(f"v_add_u32 {v(aQE)}, v44, v45")
        A(f"v_sub_u32 {v(aQO)}, v44, v45")
        A(f"s_mul_i32 {s(sT0)}, {s(sW)}, {32*PITCH}")
        A(f"v_add_u32 {v(aKE)}, {s(sT0)}, {v(aQE)}")
        A(f"v_add_u32 {v(aKO)}, {s(sT0)}, {v(aQO)}")
        A(f"v_add_u32 {v(aQE)}, {L_QL}, {v(aQE)}")
        A(f"v_add_u32 {v(aQO)}, {L_QL}, {v(aQO)}")
        A(f"v_lshrrev_b32 v46, 2, {v(vL)}")
        A(f"v_mul_lo_u32 v46, v46, {s(sT1)}")
        A(f"v_and_b32 v47, 3, {v(vL)}")
        A(f"v_lshl_add_u32 v46, v47, 3, v46")
        A(f"s_lshl_b32 {s(sT0)}, {s(sW)}, 8")
        A(f"v_add_u32 {v(aPV0)}, {s(sT0)}, v46")
        A(f"v_add_u32 {v(aPV1)}, {64*PITCH}, {v(aPV0)}")
        A(f"v_lshlrev_b32 {v(aMXR)}, 4, {v(vN)}")
        A(f"v_add_u32 {v(aMXR)}, {L_MX}, {v(aMXR)}")
        A(f"s_lshl_b32 {s(sT0)}, {s(sW)}, 2")
        A(f"v_add_u32 {v(aMXW)}, {s(sT0)}, {v(aMXR)}")
        A(f"v_lshlrev_b32 {v(aPR)}, 4, {v(vL)}")
        A(f"v_add_u32 {v(aPR)}, {L_PB}, {v(aPR)}")
        A(f"s_lshl_b32 {s(sT0)}, {s(sW)}, 10")
        A(f"v_add_u32 {v(aPW)}, {s(sT0)}, {v(aPR)}")
        A(f"s_lshl_b32 {s(sT0)}, {s(sHG)}, 4")
        A(f"v_add_u32 v48, {s(sT0)}, {v(vN)}")
        A(f"s_lshl_b32 {s(sT0)}, {s(sW)}, 3")
        A(f"s_add_u32 {s(sT0)}, {s(sT0)}, {s(sKC)}")
        if cfg.rot:
            A(f"v_add_u32 v50, {s(sT0)}, v48")
            A(f"v_add_u32 v51, 4, v50")
            A(f"v_and_b32 v50, 31, v50")
            A(f"v_and_b32 v51, 31, v51")
        else:
            A(f"v_mov_b32 v50, {s(sKC)}")
            A(f"v_mov_b32 v51, {s(sKC)}")
        A(f"v_lshlrev_b32 v48, 10, v48")
        A(f"s_lshl_b32 {s(sT0)}, {s(sW)}, 8")
        A(f"s_lshl_b32 {s(sT1)}, {s(sB)}, 5")
        A(f"s_add_u32 {s(sT0)}, {s(sT0)}, {s(sT1)}")
        A(f"v_add_u32 v48, {s(sT0)}, v48")
        A(f"v_add_u32 v50, v48, v50")
        A(f"v_add3_u32 v51, v48, v51, 64")
        A(f"v_add_u32 v51, 64, v51")
        A(f"v_and_b32 v49, 1, {v(vS)}")
        A(f"v_lshlrev_b32 v49, 1, v49")
        A(f"v_lshrrev_b32 v45, 1, {v(vS)}")
        A(f"v_add_u32 v49, v49, v45")
        A(f"v_lshlrev_b32 v49, 4, v49")
        A(f"v_lshl_add_u32 {v(aOP0)}, v50, 7, v49")
        A(f"v_add_u32 {v(aOP0)}, {hex(WS_OP)}, {v(aOP0)}")
        A(f"v_lshl_add_u32 {v(aOP1)}, v51, 7, v49")
        A(f"v_add_u32 {v(aOP1)}, {hex(WS_OP)}, {v(aOP1)}")
        A(f"v_cmp_eq_u32 vcc, 1, {v(vS)}")
        A(f"v_cndmask_b32 v50, v50, v51, vcc")
        A(f"v_lshlrev_b32 v50, 4, v50")
        A(f"v_add_u32 {v(aST)}, {hex(WS_ST)}, v50")
    A(f"v_lshrrev_b32 {v(vA0)}, 2, {v(vN)}")
    A(f"v_lshlrev_b32 {v(vA0)}, 10, {v(vA0)}")
    A(f"v_lshl_add_u32 {v(vA0)}, {v(vS)}, 5, {v(vA0)}")
    A(f"s_lshl_b32 {s(sT0)}, {s(sJ)}, 7")
    A(f"v_add_u32 {v(vA0)}, {s(sT0)}, {v(vA0)}")
    A(f"s_lshl_b32 {s(sT0)}, {s(sJ)}, 19")
    A(f"s_lshl_b32 {s(sT1)}, {s(sH)}, 8")
    A(f"s_add_u32 {s(sT0)}, {s(sT0)}, {s(sT1)}")
    A(f"v_lshlrev_b32 {v(vA1)}, 17, {v(vS)}")
    A(f"v_lshl_add_u32 {v(vA1)}, {v(vN)}, 4, {v(vA1)}")
    A(f"v_add_u32 {v(vA1)}, {s(sT0)}, {v(vA1)}")
    for k in range(2):
        A(f"buffer_load_dwordx4 {v(vXP+4*k,4)}, {v(vA0)}, {s(sX,4)}, 0 offen offset:{16*k}")
    A(f"s_mov_b32 {s(sT2)}, 0")
    for k in range(16):
        A(f"buffer_load_dwordx4 {v(vWQ+4*k,4)}, {v(vA1)}, {s(sWQ,4)}, {s(sT2)} offen{NTWQ}")
        if k < 15: A(f"s_add_u32 {s(sT2)}, {s(sT2)}, 8192")
    A(f"v_lshrrev_b32 {v(vA2)}, 2, {v(vN)}")
    A(f"v_lshlrev_b32 {v(vA2)}, 4, {v(vA2)}")
    A(f"v_and_b32 v43, 3, {v(vN)}")
    A(f"v_add_u32 {v(vA2)}, {v(vA2)}, v43")
    A(f"v_lshlrev_b32 {v(vA2)}, 13, {v(vA2)}")
    A(f"v_lshl_add_u32 {v(vA2)}, {v(vS)}, 4, {v(vA2)}")
    A(f"v_add_u32 {v(vA2)}, {s(sT0)}, {v(vA2)}")
    A(f"s_mov_b32 {s(sT2)}, 0")
    for T in range(4):
        for t in range(4):
            A(f"buffer_load_dwordx4 {v(vWUK+16*T+4*t,4)}, {v(vA2)}, {s(sWUK,4)}, {s(sT2)} offen offset:{64*t}{NTWQ}")
        if T < 3: A(f"s_add_u32 {s(sT2)}, {s(sT2)}, 32768")
    estamp(A, cfg, 3)
    make_sels(A, vN, vSEL, vT)
    vONE, vG1, vCK1 = 192, 208, 240
    make_ones(A, vN, vONE, 46)
    vPUB, vCPUB, vGA, vGB, vGC = 52, 53, 54, 55, 56
    partial_offsets(A, vL, vN, vS, WS_Q1, WS_Q1C, vPUB, vCPUB, vGA, vGB, vGC, 46)
    vQAO, vQCO = 58, 59
    A(f"v_lshl_add_u32 {v(vQAO)}, {v(vN)}, 5, {s(sH)}")
    A(f"v_lshlrev_b32 {v(vQCO)}, 3, {v(vQAO)}")
    A(f"v_add_u32 {v(vQCO)}, {s(sJ)}, {v(vQCO)}")
    A(f"v_lshlrev_b32 {v(vQCO)}, 3, {v(vQCO)}")
    A(f"v_add_u32 {v(vQCO)}, {hex(WS_QC)}, {v(vQCO)}")
    A(f"v_lshlrev_b32 {v(vQAO)}, 10, {v(vQAO)}")
    A(f"v_lshl_add_u32 {v(vQAO)}, {v(vS)}, 5, {v(vQAO)}")
    A(f"s_lshl_b32 {s(sT0)}, {s(sJ)}, 7")
    A(f"s_add_u32 {s(sT0)}, {s(sT0)}, {hex(WS_QA)}")
    A(f"v_add_u32 {v(vQAO)}, {s(sT0)}, {v(vQAO)}")
    NPW = 0
    A(f"s_waitcnt vmcnt({32+NPW})")
    nonce_from(A, vE)
    def _w(t):
        A(f"s_waitcnt vmcnt({16 + 14 - 2*t})")
        if t == 0 and cfg.l_delay and cfg.fw_at == 'wq': arrive(A, FW, 43)
    sel_gemm(A, 8, vXP, vSEL, vAF0, vAF1, vWQ, vQX, vQY, swap=True, wwait=_w)
    publish_partial(A, vQX, vQY, 242, vPUB, vCPUB, 46, cfg.local_st, cfg.dual, cfg.defer)
    stamp(A, cfg, 1)
    if cfg.l_delay and cfg.fw_at == 'pub': arrive(A, FW, 43)
    if cfg.exp == 'kvq': A(f"s_branch L_Mdone")
    if cfg.addr_early: attn_addresses()
    if cfg.hop1_ack: A(f"s_waitcnt vmcnt(0)")
    gather_reduce(A, cfg, "L_hop1", vG1, vCK1, vONE, vGA, vGB, vGC, vQX, vQY, 46, 242)
    savecnt(A, cfg, 0)
    if cfg.l_delay and cfg.fw_at == 'hop1': arrive(A, FW, 43)
    estamp(A, cfg, 5)
    A(f"v_cvt_pk_bf16_f32 v60, {v(vQX)}, {v(vQX+1)}")
    A(f"v_cvt_pk_bf16_f32 v61, {v(vQX+2)}, {v(vQX+3)}")
    A(f"v_cvt_pk_bf16_f32 v62, {v(vQY)}, {v(vQY+1)}")
    A(f"v_cvt_pk_bf16_f32 v63, {v(vQY+2)}, {v(vQY+3)}")
    A(f"v_lshlrev_b32 {v(vA0)}, 4, {v(vL)}")
    A(f"v_add_u32 {v(vA0)}, {L_QB}, {v(vA0)}")
    A(f"ds_write_b128 {v(vA0)}, v[60:63]")
    vQF4, vD, vPK = 128, 144, 160
    A(f"v_and_b32 {v(vA0)}, 3, {v(vN)}")
    A(f"v_lshlrev_b32 {v(vA0)}, 8, {v(vA0)}")
    A(f"v_lshl_add_u32 {v(vA0)}, {v(vS)}, 4, {v(vA0)}")
    A(f"v_add_u32 {v(vA0)}, {L_QB}, {v(vA0)}")
    for t in range(4):
        A(f"ds_read_b128 {v(vQF4+4*t,4)}, {v(vA0)} offset:{64*t}")
    for t in range(4):
        A(f"s_waitcnt lgkmcnt({3-t})")
        for T in range(4):
            c = "0" if t == 0 else v(vD+4*T,4)
            A(f"v_mfma_f32_16x16x32_bf16 {v(vD+4*T,4)}, {v(vWUK+16*T+4*t,4)}, {v(vQF4+4*t,4)}, {c}")
    A(f"s_mov_b32 {s(sT0)}, {hex(f2u(SCALE))}")
    for k in range(16):
        A(f"v_mul_f32 {v(vD+k)}, {s(sT0)}, {v(vD+k)}")
    for k in range(8):
        A(f"v_cvt_pk_bf16_f32 {v(vPK+k)}, {v(vD+2*k)}, {v(vD+2*k+1)}")
    if cfg.pw_qa: wait_flag(A, FP1, 1, 43)
    A(f"s_mov_b64 {s(sEX,2)}, exec")
    A(f"s_mov_b32 exec_lo, 0x000f000f")
    A(f"s_mov_b32 exec_hi, 0x000f000f")
    A(f"buffer_store_dwordx4 {v(vPK,4)}, {v(vQAO)}, {s(sWS,4)}, 0 offen sc1")
    A(f"buffer_store_dwordx4 {v(vPK+4,4)}, {v(vQAO)}, {s(sWS,4)}, 0 offen offset:16 sc1")
    A(f"s_mov_b64 exec, {s(sEX,2)}")
    sum_dwords(A, 44, range(vPK, vPK+8))
    xreduce_rows(A, "v_add_u32", 44, 46)
    A(f"v_add_u32 v45, {s(sNONCE)}, v44")
    A(f"s_mov_b64 exec, 0xf")
    A(f"buffer_store_dwordx2 v[44:45], {v(vQCO)}, {s(sWS,4)}, 0 offen sc1")
    A(f"s_mov_b64 exec, {s(sEX,2)}")
    if not cfg.addr_early: attn_addresses()
    if cfg.hop2_gate:
        A(f"s_waitcnt vmcnt(0)")
        arrive(A, FP1, 43)
    A(f"s_branch L_qdone")
    A.label("L_noq")
    if cfg.pw_qa or cfg.pw_fd:
        for k in range(4): A(f"v_mov_b32 {v(60+k)}, 0")
    if cfg.pw_qa:
        A(f"s_cmp_lg_u32 {s(sW)}, 1")
        A(f"s_cbranch_scc1 L_nopw1")
        A(f"v_lshl_add_u32 v58, {v(vN)}, 5, {s(sH)}")
        A(f"v_lshlrev_b32 v59, 3, v58")
        A(f"v_add_u32 v59, {s(sJ)}, v59")
        A(f"v_lshlrev_b32 v59, 3, v59")
        A(f"v_add_u32 v59, {hex(WS_QC)}, v59")
        A(f"v_lshlrev_b32 v58, 10, v58")
        A(f"v_lshl_add_u32 v58, {v(vS)}, 5, v58")
        A(f"s_lshl_b32 {s(sT0)}, {s(sJ)}, 7")
        A(f"s_add_u32 {s(sT0)}, {s(sT0)}, {hex(WS_QA)}")
        A(f"v_add_u32 v58, {s(sT0)}, v58")
        A(f"s_mov_b32 exec_lo, 0x000f000f")
        A(f"s_mov_b32 exec_hi, 0x000f000f")
        A(f"buffer_store_dwordx4 v[60:63], v58, {s(sWS,4)}, 0 offen sc1")
        A(f"buffer_store_dwordx4 v[60:63], v58, {s(sWS,4)}, 0 offen offset:16 sc1")
        A(f"s_mov_b64 exec, 0xf")
        A(f"buffer_store_dwordx2 v[60:61], v59, {s(sWS,4)}, 0 offen sc1")
        A(f"s_mov_b64 exec, -1")
        A(f"s_waitcnt vmcnt(0)")
        arrive(A, FP1, 43)
        A.label("L_nopw1")
    if cfg.pw_fd:
        A(f"s_cmp_lg_u32 {s(sW)}, 2")
        A(f"s_cbranch_scc1 L_nopw2")
        A(f"v_lshrrev_b32 v46, 3, {v(vN)}")
        A(f"v_lshl_add_u32 v46, {v(vS)}, 4, v46")
        A(f"s_lshl_b32 {s(sT0)}, {s(sJ)}, 1")
        A(f"v_add_u32 v46, {s(sT0)}, v46")
        A(f"s_movk_i32 {s(sT1)}, {NSLOT}")
        A(f"v_mul_lo_u32 v46, v46, {s(sT1)}")
        A(f"v_add_u32 v46, {s(sH)}, v46")
        A(f"v_lshlrev_b32 v59, 3, v46")
        A(f"v_add_u32 v59, {hex(WS_FC)}, v59")
        A(f"v_and_b32 v47, 7, {v(vN)}")
        A(f"v_lshlrev_b32 v47, 3, v47")
        A(f"v_lshl_add_u32 v58, v46, 6, v47")
        A(f"v_add_u32 v58, {hex(WS_FD)}, v58")
        A(f"buffer_store_dwordx2 v[60:61], v58, {s(sWS,4)}, 0 offen sc1")
        A(f"s_mov_b32 exec_lo, 0x01010101")
        A(f"s_mov_b32 exec_hi, 0x01010101")
        A(f"buffer_store_dwordx2 v[60:61], v59, {s(sWS,4)}, 0 offen sc1")
        A(f"s_mov_b64 exec, -1")
        A(f"s_waitcnt vmcnt(0)")
        arrive(A, FP2, 43)
        A.label("L_nopw2")
    make_sels(A, vN, vSEL, vT)
    A(f"s_waitcnt vmcnt(0)")
    nonce_from(A, vE)
    attn_addresses()
    A.label("L_qdone")
    stamp(A, cfg, 2)
    if cfg.exp in ('kvq', 'kvq1'): A(f"s_branch L_Mdone")
    NL = 3 if cfg.tail_early else 4
    wait_flag(A, FKV if cfg.wait_kv_first else FKI, NL, 44)
    if cfg.hop2_gate: wait_flag(A, FP1, 1, 44)
    if cfg.two_stage:
        lab0 = poll_head(A, "L_hop2t")
        A(f"buffer_load_dwordx2 {v(vQC,2)}, {v(aQC)}, {s(sWS,4)}, 0 offen sc1")
        A(f"s_waitcnt vmcnt(0)")
        A(f"v_add_u32 v45, {s(sNONCE)}, {v(vQC)}")
        A(f"v_cmp_ne_u32 vcc, v45, {v(vQC+1)}")
        A(f"s_and_b64 {s(sM1,2)}, vcc, {s(sM0,2)}")
        poll_tail(A, lab0, sM1, cfg.poll_sleep)
        savecnt(A, cfg, 1)
    vRING = 128
    def hop2_issue():
        for i in range(4):
            A(f"buffer_load_dwordx4 {v(vQG+4*i,4)}, {v(aQG)}, {s(sWS,4)}, 0 offen offset:{1024*i} sc1")
        A(f"buffer_load_dwordx2 {v(vQC,2)}, {v(aQC)}, {s(sWS,4)}, 0 offen sc1")
    if cfg.kvpre:
        A(f"s_mov_b32 {s(sCNT)}, 0")
        hop2_issue()
        if cfg.tail_flag == 'FH2': arrive(A, FH2, 43)
        wait_flag(A, FKV, NL, 44)
        for t in range(16):
            if t in (6, 12): A(f"s_waitcnt lgkmcnt(2)")
            for tt in range(2):
                A(f"ds_read_b128 {v(vRING+4*(2*t+tt),4)}, {v(aKE if t%2==0 else aKO)} offset:{16*t + tt*16*PITCH}")
        lab = A.newlabel("L_hop2"); chk = A.newlabel("L_hop2c")
        A(f"s_branch {chk}")
        A.label(lab)
        hop2_issue()
        A.label(chk)
    else:
        lab = poll_head(A, "L_hop2")
        hop2_issue()
        if cfg.tail_flag == 'FH2': arrive(A, FH2, 43)
    A(f"s_waitcnt vmcnt(0)")
    sum_dwords(A, 44, range(vQG, vQG+16))
    A(f"v_sub_u32 v44, v44, {v(vQC)}")
    A(f"v_add_u32 v45, {s(sNONCE)}, {v(vQC)}")
    A(f"v_cmp_ne_u32 vcc, v45, {v(vQC+1)}")
    wave_sum_u32(A, 44, 46)
    A(f"s_and_b64 {s(sM1,2)}, vcc, {s(sM0,2)}")
    A(f"v_cmp_ne_u32 vcc, 0, v44")
    A(f"s_or_b64 {s(sM1,2)}, {s(sM1,2)}, vcc")
    poll_tail(A, lab, sM1, cfg.poll_sleep)
    savecnt(A, cfg, 2)
    for i in range(4):
        A(f"ds_write_b128 {v(aQL)}, {v(vQG+4*i,4)} offset:{PITCH*i}")
    arrive(A, F3, 43)
    stamp(A, cfg, 3)
    if not cfg.kvpre: wait_flag(A, FKV, NL, 44)
    wait_flag(A, F3, 4, 44)
    stamp(A, cfg, 4)
    pstamp(A, cfg, 8)
    vQF = 64
    vS0, vS1 = 32, 36
    NSLOT_R = 32 if cfg.kvpre else 16
    def pvread(k):
        T, g = k // 4, k % 4
        slot = k % NSLOT_R
        base = aPV0 if g < 2 else aPV1
        off = (32*(g%2))*PITCH + T*32
        A(f"ds_read_b64_tr_b16 {v(vRING+4*slot,2)}, {v(base)} offset:{off}")
        A(f"ds_read_b64_tr_b16 {v(vRING+4*slot+2,2)}, {v(base)} offset:{off+16*PITCH}")
    if cfg.kvpre:
        def qread(t): A(f"ds_read_b128 {v(vQF+4*t,4)}, {v(aQE if t%2==0 else aQO)} offset:{16*t}")
        for t in range(12): qread(t)
        npv = 0
        for t in range(16):
            if t < 4: A(f"s_waitcnt lgkmcnt(11)")
            elif t < 8: A(f"s_waitcnt lgkmcnt({15-t-4+ (0)})") if False else A(f"s_waitcnt lgkmcnt({max(0, 15 - t)})")
            elif t == 8: A(f"s_waitcnt lgkmcnt(0)")
            for tt in range(2):
                acc = vS0 if tt == 0 else vS1
                A(f"v_mfma_f32_16x16x32_bf16 {v(acc,4)}, {v(vRING+4*(2*t+tt),4)}, {v(vQF+4*t,4)}, {'0' if t == 0 else v(acc,4)}")
            if t < 4: qread(12+t)
            if t >= 8:
                if npv >= 4: A(f"s_waitcnt lgkmcnt(8)")
                pvread(npv); pvread(npv+1); npv += 2
        PRE0 = npv
    else:
        LA = 4
        def qkread(t):
            A(f"ds_read_b128 {v(vQF+4*t,4)}, {v(aQE if t%2==0 else aQO)} offset:{16*t}")
            for tt in range(2):
                slot = (2*t+tt) % 16
                A(f"ds_read_b128 {v(vRING+4*slot,4)}, {v(aKE if t%2==0 else aKO)} offset:{16*t + tt*16*PITCH}")
        for t in range(LA): qkread(t)
        for t in range(16):
            A(f"s_waitcnt lgkmcnt({3*min(LA-1, 15-t)})")
            for tt in range(2):
                slot = (2*t+tt) % 16
                acc = vS0 if tt == 0 else vS1
                A(f"v_mfma_f32_16x16x32_bf16 {v(acc,4)}, {v(vRING+4*slot,4)}, {v(vQF+4*t,4)}, {'0' if t == 0 else v(acc,4)}")
            if t + LA < 16: qkread(t+LA)
        PRE0 = 0
    pstamp(A, cfg, 1)
    vM = 44
    A(f"v_max3_f32 {v(vM)}, {v(vS0)}, {v(vS0+1)}, {v(vS0+2)}")
    A(f"v_max3_f32 v45, {v(vS0+3)}, {v(vS1)}, {v(vS1+1)}")
    A(f"v_max3_f32 {v(vM)}, {v(vM)}, {v(vS1+2)}, {v(vS1+3)}")
    A(f"v_max_f32 {v(vM)}, {v(vM)}, v45")
    xreduce_rows(A, "v_max_f32", vM, 45)
    A(f"ds_write_b32 {v(aMXW)}, {v(vM)}")
    def sentinel_wait(name, reads, regs):
        lab = A.newlabel(name); done = A.newlabel(name + "d")
        A(f"s_mov_b32 {s(sCNT2)}, 0")
        A.label(lab)
        reads()
        A(f"s_waitcnt lgkmcnt(0)")
        regs = list(regs)
        A(f"v_max3_u32 v47, {v(regs[0])}, {v(regs[1])}, {v(regs[2])}")
        k = 3
        while k + 1 < len(regs):
            A(f"v_max3_u32 v47, v47, {v(regs[k])}, {v(regs[k+1])}"); k += 2
        if k < len(regs): A(f"v_max_u32 v47, v47, {v(regs[k])}")
        A(f"v_cmp_eq_u32 vcc, -1, v47")
        A(f"s_cbranch_vccz {done}")
        A(f"s_add_u32 {s(sCNT2)}, {s(sCNT2)}, 1")
        A(f"s_cmp_lt_u32 {s(sCNT2)}, 2000000")
        A(f"s_cbranch_scc1 {lab}")
        A.label(done)
    sentinel_wait("L_mx", lambda: A(f"ds_read_b128 v[48:51], {v(aMXR)}"), range(48, 52))
    PRE = PRE0 + 6
    A(f"v_max3_f32 {v(vM)}, v48, v49, v50")
    for k in range(PRE0, PRE): pvread(k)
    A(f"v_max_f32 {v(vM)}, {v(vM)}, v51")
    for k in range(8):
        A(f"v_sub_f32 {v(vS0+k)}, {v(vS0+k)}, {v(vM)}")
    for k in range(8):
        A(f"v_exp_f32 {v(vS0+k)}, {v(vS0+k)}")
    vLs = 46
    for k in range(4):
        A(f"v_cvt_pk_bf16_f32 {v(52+k)}, {v(vS0+2*k)}, {v(vS0+2*k+1)}")
    A(f"ds_write_b128 {v(aPW)}, v[52:55]")
    A(f"v_add_f32 {v(vLs)}, {v(vS0)}, {v(vS0+1)}")
    A(f"v_add_f32 v47, {v(vS0+2)}, {v(vS0+3)}")
    A(f"v_add_f32 v48, {v(vS0+4)}, {v(vS0+5)}")
    A(f"v_add_f32 v49, {v(vS0+6)}, {v(vS0+7)}")
    A(f"v_add_f32 {v(vLs)}, {v(vLs)}, v47")
    A(f"v_add_f32 v48, v48, v49")
    A(f"v_add_f32 {v(vLs)}, {v(vLs)}, v48")
    xreduce_rows(A, "v_add_f32", vLs, 47)
    A(f"ds_write_b32 {v(aMXW)}, {v(vLs)} offset:{L_LS-L_MX}")
    vPF, vO, vPK = 64, 80, 112
    def _rd():
        A(f"ds_read_b128 v[48:51], {v(aMXR)} offset:{L_LS-L_MX}")
        for g in range(4):
            A(f"ds_read_b128 {v(vPF+4*g,4)}, {v(aPR)} offset:{1024*g}")
    sentinel_wait("L_ls", _rd, range(48, 52))
    pstamp(A, cfg, 2)
    nxt = PRE
    outstanding = []
    def issue(k):
        pvread(k); outstanding.extend([("f",k),("f",k)])
    while len(outstanding) + 2 <= 14 and nxt < 32:
        issue(nxt); nxt += 1
    A(f"v_add_f32 v48, v48, v49")
    A(f"v_add_f32 v50, v50, v51")
    A(f"v_add_f32 v47, v48, v50")
    def post(p):
        for T in (2*p, 2*p+1):
            A(f"v_cvt_pk_bf16_f32 {v(vPK+2*T)}, {v(vO+4*T)}, {v(vO+4*T+1)}")
            A(f"v_cvt_pk_bf16_f32 {v(vPK+2*T+1)}, {v(vO+4*T+2)}, {v(vO+4*T+3)}")
        A(f"v_permlane16_swap_b32 {v(vPK+4*p)}, {v(vPK+4*p+2)}")
        A(f"v_permlane16_swap_b32 {v(vPK+4*p+1)}, {v(vPK+4*p+3)}")
        A(f"buffer_store_dwordx4 {v(vPK+4*p,4)}, {v(aOP0 if p < 2 else aOP1)}, {s(sWS,4)}, 0 offen offset:{64*(p%2)} sc1")
        c = 52 + (p >> 1)
        if p % 2 == 0:
            A(f"v_add3_u32 {v(c)}, {v(vPK+4*p)}, {v(vPK+4*p+1)}, {v(vPK+4*p+2)}")
            A(f"v_add_u32 {v(c)}, {v(c)}, {v(vPK+4*p+3)}")
        else:
            A(f"v_add3_u32 {v(c)}, {v(c)}, {v(vPK+4*p)}, {v(vPK+4*p+1)}")
            A(f"v_add3_u32 {v(c)}, {v(c)}, {v(vPK+4*p+2)}, {v(vPK+4*p+3)}")
    for k in range(32):
        T, g = k//4, k%4
        need_idx = -1
        for idx, o in enumerate(outstanding):
            if o == ("f",k): need_idx = max(need_idx, idx)
        can = nxt < 32 and nxt <= k + NSLOT_R - 1
        if can:
            need_idx = max(need_idx, len(outstanding) + 2 - 15 - 1)
        if need_idx >= 0:
            n_after = len(outstanding) - 1 - need_idx
            A(f"s_waitcnt lgkmcnt({n_after})")
            del outstanding[:need_idx+1]
        slot = k % NSLOT_R
        A(f"v_mfma_f32_16x16x32_bf16 {v(vO+4*T,4)}, {v(vRING+4*slot,4)}, {v(vPF+4*g,4)}, {'0' if g == 0 else v(vO+4*T,4)}")
        if can:
            issue(nxt); nxt += 1
        if k in (11, 19, 27):
            post((k - 11)//8)
            if cfg.pubts: A("s_waitcnt lgkmcnt(0)"); del outstanding[:]; pstamp(A, cfg, 3 + (k-11)//8)
    stamp(A, cfg, 5)
    post(3)
    pstamp(A, cfg, 6)
    xreduce_rows2(A, "v_add_u32", 52, 54, "v_add_u32", 53, 55)
    A(f"v_cmp_eq_u32 vcc, 1, {v(vS)}")
    A(f"v_mov_b32 v60, {v(vM)}")
    A(f"v_mov_b32 v61, v47")
    A(f"v_cndmask_b32 v62, v52, v53, vcc")
    A(f"v_add3_u32 v63, v60, v61, v62")
    A(f"v_add_u32 v63, {s(sNONCE)}, v63")
    A(f"s_mov_b64 {s(sEX,2)}, exec")
    A(f"s_mov_b32 exec_hi, 0")
    A(f"buffer_store_dwordx4 v[60:63], {v(aST)}, {s(sWS,4)}, 0 offen sc1")
    A(f"s_mov_b64 exec, {s(sEX,2)}")
    pstamp(A, cfg, 7)
    arrive(A, FPB, 52)
    stamp(A, cfg, 6)
    vOD, vST = 128, 144
    A(f"s_lshl_b32 {s(sT0)}, {s(sH)}, 3")
    A(f"s_add_u32 {s(sT0)}, {s(sT0)}, {s(sJ)}")
    A(f"s_lshl_b32 {s(sT0)}, {s(sT0)}, 2")
    A(f"s_add_u32 {s(sT0)}, {s(sT0)}, {s(sW)}")
    A(f"s_lshl_b32 {s(sT0)}, {s(sT0)}, 5")
    A(f"s_lshl_b32 {s(sT1)}, {s(sT0)}, 7")
    A(f"s_add_u32 {s(sT1)}, {s(sT1)}, {hex(WS_OP)}")
    A(f"v_lshl_add_u32 v40, {v(vL)}, 4, {s(sT1)}")
    A(f"s_lshl_b32 {s(sT1)}, {s(sT0)}, 4")
    A(f"s_add_u32 {s(sT1)}, {s(sT1)}, {hex(WS_ST)}")
    A(f"v_and_b32 v41, 31, {v(vL)}")
    A(f"v_lshl_add_u32 v41, v41, 4, {s(sT1)}")
    A(f"v_cmp_gt_u32 {s(sM0,2)}, 32, {v(vL)}")
    A(f"v_bfe_u32 v42, {v(vN)}, 2, 1")
    A(f"v_lshl_add_u32 v42, {v(vS)}, 1, v42")
    A(f"v_lshlrev_b32 v42, 2, v42")
    if cfg.hop3_ack: A(f"s_waitcnt vmcnt(0)")
    if cfg.wo_flag == 'ACK' or cfg.mlp_w1_flag == 'FP2' or cfg.hop3_ack == 2: arrive(A, FP2, 47)
    if cfg.hop3_ack == 2: wait_flag(A, FP2, 4, 47)
    if cfg.g_ts: stamp(A, cfg, 8)
    if cfg.hop3_sleep: A(f"s_sleep {cfg.hop3_sleep}")
    if cfg.two_stage or cfg.two3:
        lab0 = poll_head(A, "L_hop3t")
        A(f"buffer_load_dwordx4 {v(vST,4)}, v41, {s(sWS,4)}, 0 offen sc1")
        A(f"s_waitcnt vmcnt(0)")
        A(f"v_add3_u32 v45, {v(vST)}, {v(vST+1)}, {v(vST+2)}")
        A(f"v_add_u32 v45, {s(sNONCE)}, v45")
        A(f"v_cmp_ne_u32 {s(sM1,2)}, v45, {v(vST+3)}")
        poll_tail(A, lab0, sM1, cfg.poll_sleep)
        savecnt(A, cfg, 3)
    lab = poll_head(A, "L_hop3")
    for i in range(4):
        A(f"buffer_load_dwordx4 {v(vOD+4*i,4)}, v40, {s(sWS,4)}, 0 offen offset:{1024*i} sc1")
    A(f"buffer_load_dwordx4 {v(vST,4)}, v41, {s(sWS,4)}, 0 offen sc1")
    A(f"s_waitcnt vmcnt(0)")
    sum_dwords(A, 44, range(vOD, vOD+16))
    A(f"v_cndmask_b32 v45, 0, {v(vST+2)}, {s(sM0,2)}")
    A(f"v_sub_u32 v44, v44, v45")
    A(f"v_add3_u32 v45, {v(vST)}, {v(vST+1)}, {v(vST+2)}")
    A(f"v_add_u32 v45, {s(sNONCE)}, v45")
    A(f"v_cmp_ne_u32 {s(sM1,2)}, v45, {v(vST+3)}")
    wave_sum_u32(A, 44, 46)
    A(f"v_cmp_ne_u32 vcc, 0, v44")
    A(f"s_or_b64 {s(sM1,2)}, {s(sM1,2)}, vcc")
    poll_tail(A, lab, sM1, cfg.poll_sleep)
    if cfg.wo_flag == 'FH3' or cfg.mlp_w1_flag == 'FH3' or cfg.mlp_w2 == 'FH3': arrive(A, FCC, 47)
    savecnt(A, cfg, 4)
    stamp(A, cfg, 7)
    A(f"v_mov_b32 v44, {v(vST)}")
    for d in ("quad_perm:[1,0,3,2]", "quad_perm:[2,3,0,1]", "row_half_mirror", "row_mirror"):
        A(f"v_max_f32_dpp v44, v44, v44 {d} row_mask:0xf bank_mask:0xf")
    A(f"v_mov_b32 v46, v44")
    A(f"v_permlane16_swap_b32 v44, v46")
    A(f"v_max_f32 v44, v44, v46")
    A(f"v_sub_f32 v44, {v(vST)}, v44")
    A(f"v_exp_f32 v44, v44")
    A(f"v_mul_f32 v45, v44, {v(vST+1)}")
    for d in ("quad_perm:[1,0,3,2]", "quad_perm:[2,3,0,1]", "row_half_mirror", "row_mirror"):
        A(f"v_add_f32_dpp v45, v45, v45 {d} row_mask:0xf bank_mask:0xf")
    A(f"v_mov_b32 v46, v45")
    A(f"v_permlane16_swap_b32 v45, v46")
    A(f"v_add_f32 v45, v45, v46")
    A(f"v_rcp_f32 v45, v45")
    A(f"v_mul_f32 v44, v44, v45")
    for k in range(4):
        A(f"ds_bpermute_b32 {v(48+k)}, v42, v44 offset:{32*k}")
    A(f"s_waitcnt lgkmcnt(0)")
    A(f"v_cvt_pk_bf16_f32 v52, v48, v49")
    A(f"v_cvt_pk_bf16_f32 v53, v50, v51")
    for t in range(2):
        sel_gemm_step(A, 52+t, vSEL, vAF0 if t % 2 == 0 else vAF1, vOD+8*t, vQX, vQY, t == 0)
    for k in range(8):
        A(f"v_permlane16_swap_b32 {v(vQX+k)}, {v(56+k)}")
    for k in range(8):
        A(f"v_add_f32_dpp {v(56+k)}, {v(56+k)}, {v(vQX+k)} row_ror:8 row_mask:0xf bank_mask:0xf")
    for k in range(4):
        A(f"v_cvt_pk_bf16_f32 {v(48+k)}, {v(56+2*k)}, {v(56+2*k+1)}")
    A(f"s_lshl_b32 {s(sT0)}, {s(sW)}, 7")
    A(f"s_add_u32 {s(sT0)}, {s(sT0)}, {L_CC}")
    A(f"v_lshl_add_u32 v46, {v(vL)}, 4, {s(sT0)}")
    A(f"s_mov_b64 {s(sEX,2)}, exec")
    A(f"s_mov_b64 exec, 0xff")
    A(f"ds_write_b128 v46, v[48:51]")
    A(f"s_mov_b64 exec, {s(sEX,2)}")
    if not cfg.g_ts: stamp(A, cfg, 8)
    A(f"s_cmp_ge_u32 s2, 64")
    A(f"s_cbranch_scc1 L_Mdone")
    A(f"s_cmp_lg_u32 {s(sW)}, 0")
    A(f"s_cbranch_scc1 L_Mdone")
    vFD, vFC = 128, 152
    A(f"s_mul_i32 {s(sT0)}, s2, {NSLOT}")
    A(f"s_lshl_b32 {s(sT2)}, {s(sT0)}, 6")
    A(f"s_add_u32 {s(sT2)}, {s(sT2)}, {hex(WS_FD)}")
    A(f"v_lshl_add_u32 v40, {v(vL)}, 4, {s(sT2)}")
    A(f"s_lshl_b32 {s(sT2)}, {s(sT0)}, 3")
    A(f"s_add_u32 {s(sT2)}, {s(sT2)}, {hex(WS_FC)}")
    A(f"v_lshl_add_u32 v41, {v(vL)}, 3, {s(sT2)}")
    A(f"v_mov_b32 v47, 0x7ffffff0")
    NP = 32 if cfg.nomlp else NPROD
    A(f"v_lshrrev_b32 v44, 2, {v(vL)}")
    A(f"v_add_u32 v44, 32, v44")
    A(f"v_cmp_gt_u32 vcc, {NP}, v44")
    A(f"v_add_u32 v46, 2048, v40")
    A(f"v_cndmask_b32 v42, v47, v46, vcc")
    A(f"v_cmp_gt_u32 {s(sM2,2)}, {NP}, {v(vL)}")
    A(f"v_cndmask_b32 v41, v47, v41, {s(sM2,2)}")
    A(f"v_and_b32 v44, 3, {v(vN)}")
    A(f"v_mov_b32 v45, 0")
    for k, (j0, j1) in enumerate(((0,1),(2,3))):
        A(f"v_mov_b32 v46, 0x3f80")
        A(f"v_cmp_eq_u32 vcc, {j0}, v44")
        A(f"v_cndmask_b32 {v(vAF0+k)}, v45, v46, vcc")
        A(f"v_mov_b32 v46, 0x3f800000")
        A(f"v_cmp_eq_u32 vcc, {j1}, v44")
        A(f"v_cndmask_b32 {v(vAF0+k)}, {v(vAF0+k)}, v46, vcc")
    A(f"v_mov_b32 {v(vAF0+2)}, {v(vAF0)}")
    A(f"v_mov_b32 {v(vAF0+3)}, {v(vAF0+1)}")
    for k in range(4): A(f"v_mov_b32 {v(vFD+12+k)}, 0")
    A(f"s_lshl_b32 {s(sT3)}, s2, 6")
    A(f"v_lshl_add_u32 v57, {v(vL)}, 4, {s(sT3)}")
    if cfg.hop5_gate: wait_flag(A, FT, 1, 44)
    lab = poll_head(A, "L_hop5")
    for i in range(2):
        A(f"buffer_load_dwordx4 {v(vFD+4*i,4)}, v40, {s(sWS,4)}, 0 offen offset:{1024*i} sc1")
    A(f"buffer_load_dwordx4 {v(vFD+8,4)}, v42, {s(sWS,4)}, 0 offen sc1")
    A(f"buffer_load_dwordx2 {v(vFC,2)}, v41, {s(sWS,4)}, 0 offen sc1")
    A(f"s_waitcnt vmcnt(0)")
    sum_dwords(A, 44, range(vFD, vFD+12))
    A(f"v_sub_u32 v44, v44, {v(vFC)}")
    A(f"v_add_u32 v45, {s(sNONCE)}, {v(vFC)}")
    A(f"v_cmp_ne_u32 vcc, v45, {v(vFC+1)}")
    wave_sum_u32(A, 44, 46)
    A(f"s_and_b64 {s(sM1,2)}, vcc, {s(sM2,2)}")
    A(f"v_cmp_ne_u32 vcc, 0, v44")
    A(f"s_or_b64 {s(sM1,2)}, {s(sM1,2)}, vcc")
    poll_tail(A, lab, sM1, cfg.poll_sleep)
    savecnt(A, cfg, 5)
    stamp(A, cfg, 9)
    for p in range(2):
        w = vFD + 8*p
        A(f"v_swap_b32 {v(w+2)}, {v(w+4)}")
        A(f"v_swap_b32 {v(w+3)}, {v(w+5)}")
    for p in range(2):
        w = vFD + 8*p
        c0 = "0" if p == 0 else v(vQX,4); c1 = "0" if p == 0 else v(vQY,4)
        A(f"v_mfma_f32_16x16x32_bf16 {v(vQX,4)}, {v(vAF0,4)}, {v(w,4)}, {c0}")
        A(f"v_mfma_f32_16x16x32_bf16 {v(vQY,4)}, {v(vAF0,4)}, {v(w+4,4)}, {c1}")
    for d in ("row_ror:4", "row_ror:8"):
        for k in range(8):
            A(f"v_add_f32_dpp {v(vQX+k)}, {v(vQX+k)}, {v(vQX+k)} {d} row_mask:0xf bank_mask:0xf")
    for k in range(4):
        A(f"v_cvt_pk_bf16_f32 {v(48+k)}, {v(vQX+2*k)}, {v(vQX+2*k+1)}")
    A(f"s_mov_b64 exec, 0xf")
    A(f"buffer_store_dwordx4 v[48:51], v57, {s(sOUT,4)}, 0 offen")
    A(f"s_cmp_lg_u32 s2, 0")
    A(f"s_cbranch_scc1 L_Mdone")
    A(f"s_add_u32 {s(sT0)}, {s(sE)}, 1")
    A(f"v_mov_b32 v52, {s(sT0)}")
    A(f"v_mov_b32 v53, {hex(WS_E)}")
    A(f"s_mov_b64 exec, 1")
    A(f"buffer_store_dword v52, v53, {s(sWS,4)}, 0 offen sc1")
    A.label("L_Mdone")
    if cfg.ts:
        A(f"s_mov_b64 exec, -1")
        emit_ts(A, cfg)
    A(f"s_endpgm")
    A.label("L_Lpath")
    LSLEEP[0] = cfg.lsleep
    vGX, vGW = 64, 80
    vW1, vW2, vB1, vH = 128, 160, 192, 196
    A(f"s_sub_u32 {s(sW)}, {s(sW)}, 4")
    A(f"v_lshlrev_b32 v40, 4, {v(vL)}")
    A(f"v_mov_b32 v43, {hex(WS_E)}")
    if cfg.prefetch_code:
        A(f"s_cmp_lg_u32 {s(sW)}, 3")
        A(f"s_cbranch_scc1 L_nopf")
        A(f"s_getpc_b64 s[66:67]")
        A.label("L_pcref")
        A(f"s_sub_u32 s66, s66, (L_pcref-{KNAME})")
        A(f"s_subb_u32 s67, s67, 0")
        A(f"s_lshl_b32 {s(sT2)}, {s(sR)}, 10")
        A(f"v_lshl_add_u32 v44, {v(vL)}, 7, {s(sT2)}")
        A(f"v_cmp_gt_u32 vcc, (L_end-{KNAME}), v44")
        A(f"v_cmp_gt_u32 {s(sM3,2)}, 8, {v(vL)}")
        A(f"s_and_b64 vcc, vcc, {s(sM3,2)}")
        A(f"s_and_saveexec_b64 {s(sEX,2)}, vcc")
        A(f"s_cbranch_execz L_pfskip")
        A(f"global_load_dword v63, v44, s[66:67]")
        A.label("L_pfskip")
        A(f"s_mov_b64 exec, {s(sEX,2)}")
        A.label("L_nopf")
    if cfg.tlb:
        A(f"s_cmp_lg_u32 {s(sW)}, 2")
        A(f"s_cbranch_scc1 L_notlb")
        st = cfg.tlb
        A(f"v_lshlrev_b32 v44, 16, {v(vL)}")
        A(f"v_add_u32 v45, {hex(WS_OP)}, v44")
        A(f"buffer_load_dword v62, v45, {s(sWS,4)}, 0 offen")
        A(f"v_lshlrev_b32 v45, 15, {v(vL)}")
        A(f"buffer_load_dword v62, v45, {s(sWS,4)}, 0 offen")
        A(f"v_add_u32 v45, {hex(LOCAL_DELTA)}, v45")
        A(f"buffer_load_dword v62, v45, {s(sWS,4)}, 0 offen")
        A(f"buffer_load_dword v62, v44, {s(sWUV,4)}, 0 offen")
        A(f"buffer_load_dword v62, v44, {s(sWO,4)}, 0 offen")
        A(f"buffer_load_dword v62, v44, {s(sW1,4)}, 0 offen")
        A(f"buffer_load_dword v62, v44, {s(sW2,4)}, 0 offen")
        A(f"buffer_load_dword v62, v44, {s(sOUT,4)}, 0 offen")
        A(f"buffer_load_dword v62, v44, {s(sGW,4)}, 0 offen")
        A(f"buffer_load_dword v62, v44, {s(sB1,4)}, 0 offen")
        A.label("L_notlb")
    if cfg.tail_early:
        make_sels(A, vN, vSEL, 44)
        A(f"s_cmp_eq_u32 {s(sW)}, 0")
        A(f"s_cbranch_scc1 L_tail")
        A(f"s_sub_u32 {s(sT2)}, {s(sW)}, 1")
        A(f"s_mul_i32 {s(sT2)}, {s(sT2)}, 43")
        A(f"s_add_u32 {s(sT3)}, {s(sT2)}, 43")
        A(f"s_min_u32 {s(sT3)}, {s(sT3)}, 128")
        A(f"s_lshl_b32 {s(sT0)}, {s(sB)}, 12")
        A(f"s_lshl_b32 {s(sT1)}, {s(sKC)}, 7")
        A(f"s_add_u32 {s(sT0)}, {s(sT0)}, {s(sT1)}")
        A(f"s_add_u32 {s(sT0)}, {s(sT0)}, {s(sT2)}")
        A(f"s_lshl_b32 {s(sT0)}, {s(sT0)}, 10")
        A(f"s_mul_i32 {s(sT1)}, {s(sT2)}, {PITCH}")
        A(f"s_mov_b32 m0, {s(sT1)}")
        A(f"s_mov_b32 {s(sCNT)}, {s(sT2)}")
    else:
        A(f"s_lshl_b32 {s(sT0)}, {s(sB)}, 12")
        A(f"s_lshl_b32 {s(sT1)}, {s(sKC)}, 7")
        A(f"s_add_u32 {s(sT0)}, {s(sT0)}, {s(sT1)}")
        A(f"s_lshl_b32 {s(sT1)}, {s(sW)}, 5")
        A(f"s_add_u32 {s(sT0)}, {s(sT0)}, {s(sT1)}")
        A(f"s_lshl_b32 {s(sT0)}, {s(sT0)}, 10")
        A(f"s_mul_i32 {s(sT1)}, {s(sW)}, {32*PITCH}")
        A(f"s_mov_b32 m0, {s(sT1)}")
        A(f"s_mov_b32 {s(sCNT)}, 0")
    if cfg.l_delay: wait_flag(A, FW, 1, 45)
    if cfg.kvwin0:
        A.label("L_dma0")
        A(f"s_waitcnt vmcnt({cfg.kvwin0-1})")
        A(f"buffer_load_dwordx4 v40, {s(sKV,4)}, {s(sT0)} offen{NTKV} lds")
        A(f"s_add_u32 m0, m0, {PITCH}")
        A(f"s_add_u32 {s(sT0)}, {s(sT0)}, 1024")
        A(f"s_add_u32 {s(sCNT)}, {s(sCNT)}, 1")
        A(f"s_cmp_lt_u32 {s(sCNT)}, {cfg.kvn0}")
        A(f"s_cbranch_scc1 L_dma0")
    A.label("L_dma")
    if cfg.kvwin < 32: A(f"s_waitcnt vmcnt({cfg.kvwin-1})")
    A(f"buffer_load_dwordx4 v40, {s(sKV,4)}, {s(sT0)} offen{NTKV} lds")
    A(f"s_add_u32 m0, m0, {PITCH}")
    A(f"s_add_u32 {s(sT0)}, {s(sT0)}, 1024")
    A(f"s_add_u32 {s(sCNT)}, {s(sCNT)}, 1")
    A(f"s_cmp_lt_u32 {s(sCNT)}, {s(sT3) if cfg.tail_early else 32}")
    A(f"s_cbranch_scc1 L_dma")
    arrive(A, FKI, 45)
    stamp(A, cfg, 2, L=True)
    if not cfg.tail_early: make_sels(A, vN, vSEL, 44)
    if cfg.pw_op:
        A(f"s_cmp_lg_u32 {s(sW)}, 1")
        A(f"s_cbranch_scc1 L_nopw3")
        A(f"s_lshl_b32 {s(sT0)}, {s(sHG)}, 4")
        A(f"v_add_u32 v48, {s(sT0)}, {v(vN)}")
        A(f"v_lshlrev_b32 v48, 10, v48")
        A(f"s_lshl_b32 {s(sT1)}, {s(sB)}, 5")
        A(f"s_add_u32 {s(sT0)}, {s(sT1)}, {s(sKC)}")
        A(f"v_add_u32 v48, {s(sT0)}, v48")
        A(f"v_lshlrev_b32 v49, 4, {v(vS)}")
        A(f"v_lshl_add_u32 v49, v48, 7, v49")
        A(f"v_add_u32 v49, {hex(WS_OP)}, v49")
        A(f"v_lshl_add_u32 v48, {v(vS)}, 7, v48")
        A(f"v_lshlrev_b32 v48, 4, v48")
        A(f"v_add_u32 v48, {hex(WS_ST)}, v48")
        for k in range(4): A(f"v_mov_b32 {v(52+k)}, 0")
        A(f"s_mov_b32 {s(sT2)}, 0")
        for q in range(8):
            for u in range(2):
                A(f"buffer_store_dwordx4 v[52:55], v49, {s(sWS,4)}, {s(sT2)} offen offset:{64*u} sc1")
            if q < 7: A(f"s_add_u32 {s(sT2)}, {s(sT2)}, 16384")
        A(f"s_mov_b32 {s(sT2)}, 0")
        A(f"s_mov_b32 exec_hi, 0")
        for mw in range(4):
            A(f"buffer_store_dwordx4 v[52:55], v48, {s(sWS,4)}, {s(sT2)} offen sc1")
            if mw < 3: A(f"s_add_u32 {s(sT2)}, {s(sT2)}, 4096")
        A(f"s_mov_b64 exec, -1")
        A(f"s_waitcnt vmcnt(20)")
        arrive(A, FKV, 45)
        A(f"s_waitcnt vmcnt(0)")
        arrive(A, FP3, 45)
        A(f"s_branch L_gate")
        A.label("L_nopw3")
    A(f"s_waitcnt vmcnt(0)")
    arrive(A, FKV, 45)
    stamp(A, cfg, 3, L=True)
    if cfg.exp: A(f"s_branch L_Ldone")
    A(f"s_cmp_eq_u32 {s(sW)}, 0")
    A(f"s_cbranch_scc1 L_tail")
    A(f"s_cmp_lg_u32 {s(sW)}, 1")
    A(f"s_cbranch_scc1 L_mlpw")
    A.label("L_gate")
    for b in range(4):
        A(f"buffer_load_dwordx4 {v(vGX+4*b,4)}, v40, {s(sX,4)}, 0 offen offset:{1024*b}")
    A(f"buffer_load_dwordx4 {v(vGW,4)}, v40, {s(sGW,4)}, 0 offen")
    for b in range(4):
        A(f"v_mov_b32 {v(44+b)}, 0")
    A(f"s_waitcnt vmcnt(0)")
    for k in range(4):
        for b in range(4):
            A(f"v_dot2_f32_bf16 {v(44+b)}, {v(vGX+4*b+k)}, {v(vGW+k)}, {v(44+b)}")
    A("s_nop 3")
    for d in ("quad_perm:[1,0,3,2]", "quad_perm:[2,3,0,1]", "row_half_mirror", "row_mirror"):
        for b in range(4):
            A(f"v_add_f32_dpp {v(44+b)}, {v(44+b)}, {v(44+b)} {d} row_mask:0xf bank_mask:0xf")
    xreduce_rows2(A, "v_add_f32", 44, 48, "v_add_f32", 45, 49)
    xreduce_rows2(A, "v_add_f32", 46, 48, "v_add_f32", 47, 49)
    A(f"v_cmp_eq_u32 vcc, 1, {v(vS)}")
    A(f"v_cndmask_b32 v44, v44, v45, vcc")
    A(f"v_cmp_eq_u32 vcc, 2, {v(vS)}")
    A(f"v_cndmask_b32 v44, v44, v46, vcc")
    A(f"v_cmp_eq_u32 vcc, 3, {v(vS)}")
    A(f"v_cndmask_b32 v44, v44, v47, vcc")
    A(f"s_mov_b32 {s(sT0)}, {hex(f2u(-LOG2E))}")
    A(f"v_mul_f32 v44, {s(sT0)}, v44")
    A(f"v_exp_f32 v44, v44")
    A(f"v_add_f32 v44, 1.0, v44")
    A(f"v_rcp_f32 v58, v44")
    A(f"v_lshlrev_b32 v45, 2, {v(vS)}")
    A(f"v_add_u32 v45, {L_G}, v45")
    A(f"ds_write_b32 v45, v58")
    arrive(A, FG, 45)
    A(f"s_branch L_Ldone")
    A.label("L_mlpw")
    A(f"s_cmp_lg_u32 {s(sW)}, 2")
    A(f"s_cbranch_scc1 L_Ldone")
    if cfg.nomlp: A(f"s_branch L_Ldone")
    sNS, sJM, sMHJ = sT3, sT4, sT5
    A(f"s_lshr_b32 {s(sT0)}, {s(sR)}, 3")
    A(f"s_lshl_b32 {s(sT0)}, {s(sT0)}, 3")
    A(f"s_add_u32 {s(sNS)}, {s(sT0)}, {s(sXCD)}")
    A(f"s_cmp_ge_u32 {s(sNS)}, {NMG}")
    A(f"s_cbranch_scc1 L_Ldone")
    A(f"s_and_b32 {s(sJM)}, {s(sR)}, 7")
    A(f"s_lshl_b32 {s(sMHJ)}, {s(sNS)}, 3")
    A(f"s_add_u32 {s(sMHJ)}, {s(sMHJ)}, {s(sJM)}")
    vMX, vMW1, vMW2, vMB1 = 8, 64, 128, 60
    vONE, vG1, vCK1 = 192, 208, 240
    vPUB, vCPUB, vGA, vGB, vGC = 52, 53, 54, 55, 56
    A(f"v_lshrrev_b32 v41, 2, {v(vN)}")
    A(f"v_lshlrev_b32 v41, 10, v41")
    A(f"v_lshl_add_u32 v41, {v(vS)}, 5, v41")
    A(f"s_lshl_b32 {s(sT0)}, {s(sJM)}, 7")
    A(f"v_add_u32 v41, {s(sT0)}, v41")
    A(f"s_lshl_b32 {s(sT0)}, {s(sJM)}, 6")
    A(f"v_lshl_add_u32 v42, {v(vS)}, 4, {s(sT0)}")
    A(f"s_movk_i32 {s(sT1)}, 2752")
    A(f"v_mul_lo_u32 v42, v42, {s(sT1)}")
    A(f"s_lshl_b32 {s(sT0)}, {s(sNS)}, 8")
    A(f"v_lshl_add_u32 v44, {v(vN)}, 4, {s(sT0)}")
    A(f"v_add_u32 v42, v42, v44")
    A(f"v_cmp_gt_u32 vcc, 2752, v44")
    A(f"v_mov_b32 v45, 0x7ffffff0")
    A(f"v_cndmask_b32 v42, v45, v42, vcc")
    A(f"v_cndmask_b32 v44, v45, v44, vcc")
    A(f"s_lshl_b32 {s(sT0)}, {s(sNS)}, 17")
    A(f"s_lshl_b32 {s(sT1)}, {s(sJM)}, 7")
    A(f"s_add_u32 {s(sT0)}, {s(sT0)}, {s(sT1)}")
    A(f"v_lshlrev_b32 v46, 15, {v(vS)}")
    A(f"v_lshl_add_u32 v46, {v(vN)}, 3, v46")
    A(f"v_add_u32 v48, {s(sT0)}, v46")
    if cfg.mlp_w1_flag == 'FH3': wait_flag(A, FCC, 1, 46)
    elif cfg.mlp_w1_flag: wait_flag(A, globals()[cfg.mlp_w1_flag], 4, 46)
    stamp(A, cfg, 4, L=True)
    A(f"buffer_load_dword v40, v43, {s(sWS,4)}, 0 offen sc1")
    for k in range(2):
        A(f"buffer_load_dwordx4 {v(vMX+4*k,4)}, v41, {s(sX,4)}, 0 offen offset:{16*k}")
    A(f"buffer_load_dwordx4 {v(vMB1,4)}, v44, {s(sB1,4)}, 0 offen")
    A(f"s_mov_b32 {s(sT2)}, 0")
    for k in range(16):
        A(f"buffer_load_dwordx4 {v(vMW1+4*k,4)}, v42, {s(sW1,4)}, {s(sT2)} offen{NT}")
        if k < 15: A(f"s_add_u32 {s(sT2)}, {s(sT2)}, 2752")
    def w2_loads():
        A(f"s_mov_b32 {s(sT2)}, 0")
        for k in range(32):
            A(f"buffer_load_dwordx2 {v(vMW2+2*k,2)}, v43, {s(sW2,4)}, {s(sT2)} offen offset:{1024*(k%4)}{NT}")
            if k % 4 == 3 and k < 31: A(f"s_add_u32 {s(sT2)}, {s(sT2)}, 4096")
    A(f"v_mov_b32 v43, v48")
    NW2 = 0 if cfg.mlp_w2 else 32
    if not cfg.mlp_w2: w2_loads()
    make_ones(A, vN, vONE, 46)
    partial_offsets(A, vL, vN, vS, WS_H1, WS_H1C, vPUB, vCPUB, vGA, vGB, vGC, 46, sMHJ, sNS)
    A(f"v_lshrrev_b32 v46, 3, {v(vN)}")
    A(f"v_lshl_add_u32 v46, {v(vS)}, 4, v46")
    A(f"s_lshl_b32 {s(sT0)}, {s(sJM)}, 1")
    A(f"v_add_u32 v46, {s(sT0)}, v46")
    A(f"s_movk_i32 {s(sT1)}, {NSLOT}")
    A(f"v_mul_lo_u32 v46, v46, {s(sT1)}")
    A(f"s_add_u32 {s(sT0)}, {s(sNS)}, 32")
    A(f"v_add_u32 v46, {s(sT0)}, v46")
    A(f"v_lshlrev_b32 v58, 3, v46")
    A(f"v_add_u32 v58, {hex(WS_FC)}, v58")
    A(f"v_and_b32 v49, 7, {v(vN)}")
    A(f"v_lshlrev_b32 v49, 3, v49")
    A(f"v_lshl_add_u32 v57, v46, 6, v49")
    A(f"v_add_u32 v57, {hex(WS_FD)}, v57")
    A(f"v_lshlrev_b32 v41, 4, {v(vL)}")
    A(f"v_add_u32 v41, {L_HR}, v41")
    A(f"v_lshrrev_b32 v42, 2, {v(vN)}")
    A(f"v_lshlrev_b32 v42, 8, v42")
    A(f"v_lshl_add_u32 v42, {v(vS)}, 6, v42")
    A(f"v_add_u32 v42, {L_HR}, v42")
    A(f"s_waitcnt vmcnt({16+NW2})")
    nonce_from(A, 40)
    sel_gemm(A, 8, vMX, vSEL, 24, 28, vMW1, 32, 36, swap=True, wwait=lambda t: A(f"s_waitcnt vmcnt({NW2 + 14 - 2*t})"))
    publish_partial(A, 32, 36, 16, vPUB, vCPUB, 46, cfg.local_st, cfg.dual, cfg.defer)
    stamp(A, cfg, 5, L=True)
    if cfg.hopm_ack: A(f"s_waitcnt vmcnt(0)")
    gather_reduce(A, cfg, "L_hopm", vG1, vCK1, vONE, vGA, vGB, vGC, 32, 36, 46)
    stamp(A, cfg, 6, L=True)
    if cfg.mlp_w2 == 'FH3': wait_flag(A, FCC, 1, 46)
    if cfg.mlp_w2 == 'FPB': wait_flag(A, FPB, 4, 46)
    if cfg.mlp_w2: w2_loads()
    vH, vHa, vHn, vHd = 32, 208, 216, 224
    for e in range(8):
        r = vMB1 + e//2
        if e % 2 == 0: A(f"v_lshlrev_b32 {v(vHa+e)}, 16, {v(r)}")
        else: A(f"v_and_b32 {v(vHa+e)}, 0xffff0000, {v(r)}")
    for e in range(8):
        A(f"v_add_f32 {v(vH+e)}, {v(vH+e)}, {v(vHa+e)}")
    A(f"s_mov_b32 {s(sT0)}, {hex(f2u(-LOG2E))}")
    for e in range(8):
        A(f"v_mul_f32 {v(vHa+e)}, {s(sT0)}, abs({v(vH+e)})")
    for e in range(8):
        A(f"v_exp_f32 {v(vHa+e)}, {v(vHa+e)}")
    for e in range(8):
        a_, h_, n_, d_ = vHa+e, vH+e, vHn+e, vHd+e
        A(f"v_cmp_lt_f32 vcc, 0, {v(h_)}")
        A(f"v_mul_f32 {v(d_)}, {v(a_)}, {v(a_)}")
        A(f"v_cndmask_b32 {v(n_)}, {v(d_)}, 1.0, vcc")
        A(f"v_fma_f32 {v(n_)}, 2.0, {v(a_)}, {v(n_)}")
        A(f"v_cndmask_b32 {v(d_)}, 1.0, {v(d_)}, vcc")
        A(f"v_fma_f32 {v(d_)}, 2.0, {v(d_)}, {v(n_)}")
        A(f"v_rcp_f32 {v(d_)}, {v(d_)}")
        A(f"v_mul_f32 {v(n_)}, {v(n_)}, {v(h_)}")
        A(f"v_mul_f32 {v(h_)}, {v(n_)}, {v(d_)}")
    for k in range(4):
        A(f"v_cvt_pk_bf16_f32 {v(16+k)}, {v(vH+2*k)}, {v(vH+2*k+1)}")
    A(f"ds_write_b128 v41, v[16:19]")
    for k in range(4):
        A(f"ds_read_b128 {v(8+4*k,4)}, v42 offset:{16*k}")
    A(f"v_lshlrev_b32 v45, 2, {v(vS)}")
    A(f"v_add_u32 v45, {L_G}, v45")
    wait_flag(A, FG, 1, 46, lambda: A(f"ds_read_b32 v59, v45"))
    if cfg.mlp_w2: A(f"s_waitcnt vmcnt(0)")
    sel_gemm(A, 16, 8, vSEL, 24, 28, vMW2, 32)
    A(f"v_sub_f32 v59, 1.0, v59")
    for k in range(4):
        A(f"v_mul_f32 {v(32+k)}, {v(32+k)}, v59")
    A(f"v_cvt_pk_bf16_f32 v16, v32, v33")
    A(f"v_cvt_pk_bf16_f32 v17, v34, v35")
    A(f"buffer_store_dwordx2 v[16:17], v57, {s(sWS,4)}, 0 offen sc1")
    A(f"v_add_u32 v46, v16, v17")
    for d in ("quad_perm:[1,0,3,2]", "quad_perm:[2,3,0,1]", "row_half_mirror"):
        A(f"v_add_u32_dpp v46, v46, v46 {d} row_mask:0xf bank_mask:0xf")
    A(f"v_add_u32 v47, {s(sNONCE)}, v46")
    A(f"s_mov_b32 exec_lo, 0x01010101")
    A(f"s_mov_b32 exec_hi, 0x01010101")
    A(f"buffer_store_dwordx2 v[46:47], v58, {s(sWS,4)}, 0 offen sc1")
    A(f"s_mov_b64 exec, -1")
    stamp(A, cfg, 7, L=True)
    A(f"s_branch L_Ldone")
    A.label("L_tail")
    vWUV, vWO = 64, 128
    A(f"s_lshl_b32 {s(sT0)}, {s(sJ)}, 19")
    A(f"s_lshl_b32 {s(sT1)}, {s(sH)}, 8")
    A(f"s_add_u32 {s(sT0)}, {s(sT0)}, {s(sT1)}")
    A(f"v_lshlrev_b32 v41, 17, {v(vS)}")
    A(f"v_lshl_add_u32 v41, {v(vN)}, 4, v41")
    A(f"v_add_u32 v41, {s(sT0)}, v41")
    A(f"s_lshl_b32 {s(sT0)}, {s(sH)}, 17")
    A(f"s_lshl_b32 {s(sT1)}, {s(sJ)}, 7")
    A(f"s_add_u32 {s(sT0)}, {s(sT0)}, {s(sT1)}")
    A(f"v_lshlrev_b32 v42, 15, {v(vS)}")
    A(f"v_lshl_add_u32 v42, {v(vN)}, 3, v42")
    A(f"v_add_u32 v42, {s(sT0)}, v42")
    A(f"buffer_load_dword v61, v43, {s(sWS,4)}, 0 offen sc1")
    vPUB, vCPUB, vGA, vGB, vGC = 52, 53, 54, 55, 56
    partial_offsets(A, vL, vN, vS, WS_C1, WS_C1C, vPUB, vCPUB, vGA, vGB, vGC, 46)
    A(f"v_lshrrev_b32 v46, 3, {v(vN)}")
    A(f"v_lshl_add_u32 v46, {v(vS)}, 4, v46")
    A(f"s_lshl_b32 {s(sT0)}, {s(sJ)}, 1")
    A(f"v_add_u32 v46, {s(sT0)}, v46")
    A(f"s_movk_i32 {s(sT1)}, {NSLOT}")
    A(f"v_mul_lo_u32 v46, v46, {s(sT1)}")
    A(f"v_add_u32 v46, {s(sH)}, v46")
    A(f"v_lshlrev_b32 v60, 3, v46")
    A(f"v_add_u32 v60, {hex(WS_FC)}, v60")
    A(f"v_and_b32 v47, 7, {v(vN)}")
    A(f"v_lshlrev_b32 v47, 3, v47")
    A(f"v_lshl_add_u32 v59, v46, 6, v47")
    A(f"v_add_u32 v59, {hex(WS_FD)}, v59")
    if cfg.tail_early:
        if cfg.tail_delay: wait_flag(A, globals()[cfg.tail_delay], 1, 45)
    elif cfg.tail_flag: wait_flag(A, globals()[cfg.tail_flag], 4, 45)
    A(f"s_mov_b32 {s(sT2)}, 0")
    for k in range(16):
        if cfg.tailwin and k >= cfg.tailwin: A(f"s_waitcnt vmcnt({cfg.tailwin-1})")
        A(f"buffer_load_dwordx4 {v(vWUV+4*k,4)}, v41, {s(sWUV,4)}, {s(sT2)} offen{NT}")
        if k < 15: A(f"s_add_u32 {s(sT2)}, {s(sT2)}, 8192")
    def wo_loads():
        A(f"s_mov_b32 {s(sT2)}, 0")
        for k in range(32):
            if cfg.tailwin2 and k % 2 == 0: A(f"s_waitcnt vmcnt({cfg.tailwin2-2})")
            A(f"buffer_load_dwordx2 {v(vWO+2*k,2)}, v62, {s(sWO,4)}, {s(sT2)} offen offset:{1024*(k%4)}{NT}")
            if k % 4 == 3 and k < 31: A(f"s_add_u32 {s(sT2)}, {s(sT2)}, 4096")
    A(f"v_mov_b32 v62, v42")
    if not cfg.wo_flag: wo_loads()
    vONE, vG1, vCK1 = 192, 208, 240
    A(f"s_waitcnt vmcnt({16 if cfg.wo_flag else 48})")
    nonce_from(A, 61)
    A(f"v_lshlrev_b32 v45, 2, {v(vS)}")
    A(f"v_add_u32 v45, {L_G}, v45")
    wait_flag(A, FG, 1, 46, lambda: A(f"ds_read_b32 v58, v45"))
    make_ones(A, vN, vONE, 46)
    A(f"v_lshrrev_b32 v44, 2, {v(vN)}")
    A(f"v_lshlrev_b32 v42, 7, v44")
    A(f"v_lshl_add_u32 v42, {v(vS)}, 5, v42")
    A(f"v_add_u32 v42, {L_CC}, v42")
    A(f"v_lshlrev_b32 v43, 4, {v(vL)}")
    A(f"v_add_u32 v43, {L_CT}, v43")
    A(f"v_lshlrev_b32 v44, 8, v44")
    A(f"v_lshl_add_u32 v44, {v(vS)}, 6, v44")
    A(f"v_add_u32 v44, {L_CT}, v44")
    A(f"s_waitcnt vmcnt({0 if cfg.wo_flag else 32})")
    for t in range(8):
        A(f"v_swap_b32 {v(vWUV+8*t+2)}, {v(vWUV+8*t+4)}")
        A(f"v_swap_b32 {v(vWUV+8*t+3)}, {v(vWUV+8*t+5)}")
    if cfg.wo_flag == 'FPB':
        wait_flag(A, FPB, 4, 45)
        wo_loads()
    if cfg.wo_flag == 'FH3':
        wait_flag(A, FCC, 1, 45)
        wo_loads()
    if cfg.wo_flag == 'ACK':
        wait_flag(A, FP2, 4, 45)
        wo_loads()
    if not cfg.wo_flag: A(f"s_waitcnt vmcnt(0)")
    stamp(A, cfg, 4, L=True)
    vCP = 8
    def _rd():
        A(f"ds_read_b128 {v(vCP,4)}, v42")
        A(f"ds_read_b128 {v(vCP+4,4)}, v42 offset:16")
    lab = A.newlabel("L_cc"); done = A.newlabel("L_ccd")
    A(f"s_mov_b32 {s(sCNT2)}, 0")
    A.label(lab)
    _rd()
    A(f"s_waitcnt lgkmcnt(0)")
    A(f"v_max3_u32 v45, {v(vCP)}, {v(vCP+1)}, {v(vCP+2)}")
    A(f"v_max3_u32 v46, {v(vCP+3)}, {v(vCP+4)}, {v(vCP+5)}")
    A(f"v_max3_u32 v45, v45, {v(vCP+6)}, {v(vCP+7)}")
    A(f"v_max_u32 v45, v45, v46")
    A(f"v_cmp_eq_u32 vcc, -1, v45")
    A(f"s_cbranch_vccz {done}")
    if cfg.ccsleep: A(f"s_sleep {cfg.ccsleep}")
    A(f"s_add_u32 {s(sCNT2)}, {s(sCNT2)}, 1")
    A(f"s_cmp_lt_u32 {s(sCNT2)}, 4000000")
    A(f"s_cbranch_scc1 {lab}")
    A.label(done)
    stamp(A, cfg, 5, L=True)
    if cfg.wo_flag == 'FCC': wo_loads()
    sel_gemm(A, 8, vCP, vSEL, 24, 28, vWUV, 32, 36)
    publish_partial(A, 32, 36, 16, vPUB, vCPUB, 46, cfg.local_st, cfg.dual, cfg.defer)
    stamp(A, cfg, 6, L=True)
    if cfg.hop4_ack: A(f"s_waitcnt vmcnt(0)")
    gather_reduce(A, cfg, "L_hop4", vG1, vCK1, vONE, vGA, vGB, vGC, 32, 36, 46)
    savecnt(A, cfg, 0)
    stamp(A, cfg, 7, L=True)
    A(f"v_cvt_pk_bf16_f32 v16, v32, v33")
    A(f"v_cvt_pk_bf16_f32 v17, v34, v35")
    A(f"v_cvt_pk_bf16_f32 v18, v36, v37")
    A(f"v_cvt_pk_bf16_f32 v19, v38, v39")
    A(f"ds_write_b128 v43, v[16:19]")
    vXP2 = 8
    for k in range(4):
        A(f"ds_read_b128 {v(vXP2+4*k,4)}, v44 offset:{16*k}")
    def _x(t):
        if t % 4 == 0: A(f"s_waitcnt lgkmcnt({3-t//4})")
    sel_gemm(A, 16, vXP2, vSEL, 24, 28, vWO, 32, xwait=_x)
    for k in range(4):
        A(f"v_mul_f32 {v(32+k)}, {v(32+k)}, v58")
    A(f"v_cvt_pk_bf16_f32 v16, v32, v33")
    A(f"v_cvt_pk_bf16_f32 v17, v34, v35")
    if cfg.pw_fd: wait_flag(A, FP2, 1, 45)
    A(f"buffer_store_dwordx2 v[16:17], v59, {s(sWS,4)}, 0 offen sc1")
    A(f"v_add_u32 v46, v16, v17")
    for d in ("quad_perm:[1,0,3,2]", "quad_perm:[2,3,0,1]", "row_half_mirror"):
        A(f"v_add_u32_dpp v46, v46, v46 {d} row_mask:0xf bank_mask:0xf")
    A(f"v_add_u32 v47, {s(sNONCE)}, v46")
    A(f"s_mov_b32 exec_lo, 0x01010101")
    A(f"s_mov_b32 exec_hi, 0x01010101")
    A(f"buffer_store_dwordx2 v[46:47], v60, {s(sWS,4)}, 0 offen sc1")
    A(f"s_mov_b64 exec, -1")
    if cfg.hop5_gate:
        if cfg.hop5_gate == 2: A(f"s_waitcnt vmcnt(0)")
        arrive(A, FT, 45)
    A.label("L_Ldone")
    if cfg.ts:
        stamp(A, cfg, 1, L=True)
        emit_ts(A, cfg, L=True)
    A.label("L_exit")
    A(f"s_endpgm")
    A.label("L_end")
    lines = hazard.fix(A.l, verbose=True)
    return "\n".join(lines) + "\n"

def emit_ts(A, cfg, L=False):
    A(f"s_waitcnt lgkmcnt(0) vmcnt(0)")
    A(f"s_mov_b64 exec, 0x3ff")
    A(f"v_mbcnt_lo_u32_b32 v0, -1, 0")
    A(f"v_mov_b32 v1, 0")
    for k in range(10):
        A(f"v_mov_b32 v2, {s(sTS+2*k)}")
        A(f"v_cmp_eq_u32 vcc, {k}, v0")
        A(f"v_cndmask_b32 v1, v1, v2, vcc")
    if cfg.cnts:
        A(f"s_mov_b64 exec, 0xffff")
        for k in range(6):
            A(f"v_mov_b32 v2, {s(CNTREG[k])}")
            A(f"v_cmp_eq_u32 vcc, {10+k}, v0")
            A(f"v_cndmask_b32 v1, v1, v2, vcc")
    A(f"s_lshl_b32 {s(sT0)}, s2, 3")
    A(f"s_add_u32 {s(sT0)}, {s(sT0)}, {s(sW)}")
    if L: A(f"s_add_u32 {s(sT0)}, {s(sT0)}, 4")
    A(f"s_lshl_b32 {s(sT0)}, {s(sT0)}, 6")
    A(f"s_add_u32 {s(sT0)}, {s(sT0)}, {hex(WS_DBG)}")
    A(f"v_lshl_add_u32 v2, v0, 2, {s(sT0)}")
    A(f"buffer_store_dword v1, v2, {s(sWS,4)}, 0 offen")

def build(cfg, path):
    body = gen(cfg)
    txt = wrap([(KNAME, body, 256, 102, 256)], [(KNAME, (256,1,1), (512,1,1), LDS_SIZE)])
    open(path, "w").write(txt)
    return path

if __name__ == "__main__":
    import build as B
    cfg = Cfg()
    for a_ in sys.argv[2:]:
        k, val = a_.split("=")
        setattr(cfg, k, eval(val))
    p = build(cfg, sys.argv[1])
    B.build(p, p.replace(".s", ".co"))
    import subprocess
    print(subprocess.run(f"llvm-objdump -d --mcpu=gfx950 {p.replace('.s','.co')} | grep -c '//' ; llvm-readelf -S {p.replace('.s','.co')} | grep -E 'text'", shell=True, capture_output=True, text=True).stdout)
```

```python
import sys; sys.path.insert(0, "dev")
from asmlib import *
import hazard

WS_E = 0
WS_Q1, WS_Q1C = 0x10000, 0x50000
WS_QA, WS_QC = 0x60000, 0x80000
WS_C1, WS_C1C = 0x90000, 0xD0000
WS_FD, WS_FC = 0xE0000, 0x130000
WS_H1, WS_H1C = 0x1C0000, 0x1E0000
WS_ST, WS_OP, WS_DBG = 0x140000, 0x200000, 0x800000
import os
WSBASE = int(os.environ.get('WSBASE', '0'), 0)
for _n in [k for k in list(globals()) if k.startswith('WS_')]: globals()[_n] += WSBASE
PITCH = 1056
L_KV = 0
L_QL = 128 * PITCH
L_MISC = L_QL + 16 * PITCH
L_QB = L_MISC
L_MX = L_MISC + 1024
L_LS = L_MISC + 1280
L_G  = L_MISC + 1536
L_FL = L_MISC + 1600
L_PB = L_MISC + 2048
L_CC = L_MISC + 6144
L_HR = L_MISC + 6656
L_CT = L_MISC + 8704
FKI, FKV, F3, FH2, FT, FPB, FCC, FP1, FP2, FP3, FW, FG = range(12)
LDS_SIZE = L_MISC + 9728
NPROD = 43
NSLOT = 48
NMG = 11
MLP0 = 64
NMLP = 43
HASH_K, HASH_C = 0x9E3779B1, 0x7F4A7C15
SCALE = (128 ** -0.5) * 1.4426950408889634
LOG2E = 1.4426950408889634

sX, sKV, sWQ, sWUK, sWUV, sWO, sW1, sB1, sW2, sGW, sOUT, sWS = 8, 12, 16, 20, 24, 28, 32, 36, 40, 44, 48, 52
sW, sXCD, sR, sHG, sJ, sH, sB, sKC, sNONCE, sE = 56, 57, 58, 59, 60, 61, 62, 63, 64, 65
sT0, sT1, sT2, sT3, sT4, sT5 = 66, 67, 68, 69, 70, 71
sCNT = 72
sCNT2 = 73
sEX = 74
sM0 = 76
sM1 = 78
sTS = 80
sM2, sM3 = 4, 6
CNTREG = [81, 83, 85, 87, 89, 91]
sHJ = 100
sFB, sDELTA = 101, 3
LOCAL_DELTA = 0x600000
LOCAL_TRIES = 8
POLL_MAX = 20000

def f2u(x):
    import struct
    return struct.unpack("<I", struct.pack("<f", x))[0]

class Cfg:
    nt_w = True
    ts = False
    tsmask = 0x3ff
    prio = True
    wait_kv_first = False
    l_after_m = False
    nt_kv = True
    nt_wq = True
    nt_tail = True
    poll_sleep = 0
    early = False
    cnts = False
    tail_after_f3 = True
    kvwin = 7
    kvwin0 = 0
    kvn0 = 8
    l_delay = True
    mlpwin1 = 16
    mlpwin2 = 6
    two_stage = False
    exp = ''
    pw = False
    pw_qa = False
    pw_fd = False
    nomlp = False
    mlp_split = True
    mlp_w1_flag = 'FPB'
    tail_flag = 'F3'
    wo_flag = 'FH3'
    rot = True
    tailwin = 0
    two3 = False
    hop3_ack = 2
    g_ts = False
    perm = None
    kvpre = False
    lsleep = 0
    ccsleep = 0
    pad = 0
    padm = 0
    mlp_w2 = None
    hop4_ack = False
    hop1_ack = False
    hopm_ack = False
    hop5_gate = 2
    hop2_gate = True
    hop3_sleep = 0
    hop2_ack = False
    hop5_tags = False
    pubts = False
    tlb = 0
    tail_early = False
    tail_delay = None
    addr_early = True
    fw_at = 'pub'
    tailwin2 = 0
    mlp_w2_flag = 'FCC'
    local_st = 'sc1'
    dual = True
    defer = True
    local_ld = 'sc1'
    pw_op = False
    no_l = False
    stop = None
    prefetch_code = True

def srd(A, sr, karg_off, size):
    A(f"s_load_dwordx2 {s(sr,2)}, s[0:1], {karg_off}")
def srd_fin(A, sr, size):
    A(f"s_mov_b32 {s(sr+2)}, {hex(size)}")
    A(f"s_mov_b32 {s(sr+3)}, 0x20000")

def savecnt(A, cfg, k):
    if cfg.ts and cfg.cnts: A(f"s_mov_b32 {s(CNTREG[k])}, {s(sCNT)}")
def pstamp(A, cfg, k):
    if cfg.ts and cfg.pubts:
        A(f"s_memrealtime {s(sTS+2*k,2)}")
        A(f"s_waitcnt lgkmcnt(0)")
def estamp(A, cfg, k):
    if cfg.ts and cfg.early:
        A(f"s_memrealtime {s(sTS+2*k,2)}")
        A(f"s_waitcnt lgkmcnt(0)")
def stamp(A, cfg, k, L=False):
    if cfg.early and k >= 3 and not L: return
    if cfg.pubts and not L and k in (1,2,3,4,5,6,7,8): return
    if cfg.ts and (cfg.tsmask >> k) & 1:
        A(f"s_memrealtime {s(sTS+2*k,2)}")
        A(f"s_waitcnt lgkmcnt(0)")

vFLA = 3
def arrive(A, f, one, fla=None):
    A(f"v_mov_b32 {v(one)}, 1")
    A(f"s_mov_b64 {s(sEX,2)}, exec")
    A(f"s_mov_b64 exec, 1")
    A(f"ds_add_u32 {v(fla if fla is not None else vFLA)}, {v(one)} offset:{4*f}")
    A(f"s_mov_b64 exec, {s(sEX,2)}")
LSLEEP = [0]
def wait_flag(A, f, n, tmp, extra=None, fla=None):
    lab = A.newlabel("L_fw"); done = A.newlabel("L_fd")
    A(f"s_mov_b32 {s(sCNT2)}, 0")
    A.label(lab)
    A(f"ds_read_b32 {v(tmp)}, {v(fla if fla is not None else vFLA)} offset:{4*f}")
    if extra: extra()
    A(f"s_waitcnt lgkmcnt(0)")
    A(f"v_cmp_gt_u32 vcc, {n}, {v(tmp)}")
    A(f"s_cbranch_vccz {done}")
    if LSLEEP[0]: A(f"s_sleep {LSLEEP[0]}")
    A(f"s_add_u32 {s(sCNT2)}, {s(sCNT2)}, 1")
    A(f"s_cmp_lt_u32 {s(sCNT2)}, 2000000")
    A(f"s_cbranch_scc1 {lab}")
    A.label(done)

def xreduce_rows(A, op, x, tmp):
    A(f"v_mov_b32 {v(tmp)}, {v(x)}")
    A(f"v_permlane16_swap_b32 {v(x)}, {v(tmp)}")
    A(f"{op} {v(x)}, {v(x)}, {v(tmp)}")
    A(f"v_mov_b32 {v(tmp)}, {v(x)}")
    A(f"v_permlane32_swap_b32 {v(x)}, {v(tmp)}")
    A(f"{op} {v(x)}, {v(x)}, {v(tmp)}")

def xreduce_rows2(A, op0, x0, t0, op1, x1, t1):
    for sw in ("v_permlane16_swap_b32", "v_permlane32_swap_b32"):
        A(f"v_mov_b32 {v(t0)}, {v(x0)}")
        A(f"v_mov_b32 {v(t1)}, {v(x1)}")
        A(f"{sw} {v(x0)}, {v(t0)}")
        A(f"{sw} {v(x1)}, {v(t1)}")
        A(f"{op0} {v(x0)}, {v(x0)}, {v(t0)}")
        A(f"{op1} {v(x1)}, {v(x1)}, {v(t1)}")

def wave_sum_u32(A, x, t):
    for d in ("quad_perm:[1,0,3,2]", "quad_perm:[2,3,0,1]", "row_half_mirror", "row_mirror"):
        A(f"v_add_u32_dpp {v(x)}, {v(x)}, {v(x)} {d} row_mask:0xf bank_mask:0xf")
    xreduce_rows(A, "v_add_u32", x, t)

def sum_dwords(A, dst, regs):
    regs = list(regs)
    A(f"v_add3_u32 {v(dst)}, {v(regs[0])}, {v(regs[1])}, {v(regs[2])}")
    k = 3
    while k + 1 < len(regs):
        A(f"v_add3_u32 {v(dst)}, {v(dst)}, {v(regs[k])}, {v(regs[k+1])}"); k += 2
    if k < len(regs):
        A(f"v_add_u32 {v(dst)}, {v(dst)}, {v(regs[k])}")

def make_sels(A, vn, vsel, vt):
    A(f"v_and_b32 {v(vt)}, 3, {v(vn)}")
    A(f"v_mov_b32 {v(vt+1)}, 0x0c0c0c0c")
    pats = [(0, 0x0c0c0100, 1, 0x01000c0c), (2, 0x0c0c0100, 3, 0x01000c0c), (0, 0x0c0c0302, 1, 0x03020c0c), (2, 0x0c0c0302, 3, 0x03020c0c)]
    for k, (j0, p0, j1, p1) in enumerate(pats):
        A(f"v_mov_b32 {v(vt+2)}, {hex(p0)}")
        A(f"v_cmp_eq_u32 vcc, {j0}, {v(vt)}")
        A(f"v_cndmask_b32 {v(vsel+k)}, {v(vt+1)}, {v(vt+2)}, vcc")
        A(f"v_mov_b32 {v(vt+2)}, {hex(p1)}")
        A(f"v_cmp_eq_u32 vcc, {j1}, {v(vt)}")
        A(f"v_cndmask_b32 {v(vsel+k)}, {v(vsel+k)}, {v(vt+2)}, vcc")

def sel_gemm_step(A, xp, vsel, af, wreg, dx, dy, first, swap=True):
    if swap:
        A(f"v_swap_b32 {v(wreg+2)}, {v(wreg+4)}")
        A(f"v_swap_b32 {v(wreg+3)}, {v(wreg+5)}")
    for k in range(4):
        A(f"v_perm_b32 {v(af+k)}, {v(xp)}, {v(xp)}, {v(vsel+k)}")
    c0 = "0" if first else v(dx,4)
    c1 = "0" if first else v(dy,4)
    A(f"v_mfma_f32_16x16x32_bf16 {v(dx,4)}, {v(af,4)}, {v(wreg,4)}, {c0}")
    A(f"v_mfma_f32_16x16x32_bf16 {v(dy,4)}, {v(af,4)}, {v(wreg+4,4)}, {c1}")

def sel_gemm(A, n, xp, vsel, af0, af1, w, dx, dy=None, swap=False, wwait=None, xwait=None):
    st = 8 if dy is not None else 4
    def perms(t):
        if xwait: xwait(t)
        af = af0 if t % 2 == 0 else af1
        for k in range(4):
            A(f"v_perm_b32 {v(af+k)}, {v(xp+t)}, {v(xp+t)}, {v(vsel+k)}")
    perms(0)
    for t in range(n):
        if wwait: wwait(t)
        wr = w + st*t
        if swap:
            A(f"v_swap_b32 {v(wr+2)}, {v(wr+4)}")
            A(f"v_swap_b32 {v(wr+3)}, {v(wr+5)}")
        if t + 1 < n: perms(t+1)
        af = af0 if t % 2 == 0 else af1
        A(f"v_mfma_f32_16x16x32_bf16 {v(dx,4)}, {v(af,4)}, {v(wr,4)}, {'0' if t == 0 else v(dx,4)}")
        if dy is not None:
            A(f"v_mfma_f32_16x16x32_bf16 {v(dy,4)}, {v(af,4)}, {v(wr+4,4)}, {'0' if t == 0 else v(dy,4)}")

def poll_head(A, name):
    lab = A.newlabel(name)
    A(f"s_mov_b32 {s(sCNT)}, 0")
    A.label(lab)
    return lab
def poll_tail(A, lab, bad_pair, sleep=0):
    done = A.newlabel("done")
    A(f"s_cmp_eq_u64 {s(bad_pair,2)}, 0")
    A(f"s_cbranch_scc1 {done}")
    if sleep: A(f"s_sleep {sleep}")
    A(f"s_add_u32 {s(sCNT)}, {s(sCNT)}, 1")
    A(f"s_cmp_lt_u32 {s(sCNT)}, {POLL_MAX}")
    A(f"s_cbranch_scc1 {lab}")
    A.label(done)

def publish_final(A, cfg, dx, dy, vscale, vprod_off, vchk_off, pk, t):
    for k in range(4):
        A(f"v_mul_f32 {v(dx+k)}, {v(dx+k)}, {v(vscale)}")
        A(f"v_mul_f32 {v(dy+k)}, {v(dy+k)}, {v(vscale)}")
    A(f"v_cvt_pk_bf16_f32 {v(pk)}, {v(dx)}, {v(dx+1)}")
    A(f"v_cvt_pk_bf16_f32 {v(pk+1)}, {v(dx+2)}, {v(dx+3)}")
    A(f"v_cvt_pk_bf16_f32 {v(pk+2)}, {v(dy)}, {v(dy+1)}")
    A(f"v_cvt_pk_bf16_f32 {v(pk+3)}, {v(dy+2)}, {v(dy+3)}")
    A(f"buffer_store_dwordx4 {v(pk,4)}, {v(vprod_off)}, {s(sWS,4)}, 0 offen sc1")
    sum_dwords(A, t, [pk, pk+1, pk+2, pk+3])
    A(f"v_add_u32_dpp {v(t)}, {v(t)}, {v(t)} quad_perm:[1,0,3,2] row_mask:0xf bank_mask:0xf")
    A(f"v_add_u32_dpp {v(t)}, {v(t)}, {v(t)} quad_perm:[2,3,0,1] row_mask:0xf bank_mask:0xf")
    A(f"v_add_u32 {v(t+1)}, {s(sNONCE)}, {v(t)}")
    A(f"s_mov_b64 {s(sEX,2)}, exec")
    A(f"s_mov_b32 exec_lo, 0x11111111")
    A(f"s_mov_b32 exec_hi, 0x11111111")
    A(f"buffer_store_dwordx2 {v(t,2)}, {v(vchk_off)}, {s(sWS,4)}, 0 offen sc1")
    A(f"s_mov_b64 exec, {s(sEX,2)}")

def final_offsets(A, vn, vq, s_ct, s_prod, voff, vchk, t):
    A(f"v_lshrrev_b32 {v(t)}, 2, {v(vn)}")
    A(f"v_lshl_add_u32 {v(t)}, {v(vq)}, 4, {v(t)}")
    A(f"s_lshl_b32 {s(sT0)}, {s(s_ct)}, 2")
    A(f"v_add_u32 {v(t)}, {s(sT0)}, {v(t)}")
    A(f"s_movk_i32 {s(sT1)}, {NSLOT}")
    A(f"v_mul_lo_u32 {v(t)}, {v(t)}, {s(sT1)}")
    A(f"v_add_u32 {v(t)}, {s(s_prod)}, {v(t)}")
    A(f"v_lshlrev_b32 {v(vchk)}, 3, {v(t)}")
    A(f"v_add_u32 {v(vchk)}, {hex(WS_FC)}, {v(vchk)}")
    A(f"v_and_b32 {v(t+1)}, 3, {v(vn)}")
    A(f"v_lshlrev_b32 {v(t+1)}, 4, {v(t+1)}")
    A(f"v_lshl_add_u32 {v(voff)}, {v(t)}, 6, {v(t+1)}")
    A(f"v_add_u32 {v(voff)}, {hex(WS_FD)}, {v(voff)}")


def nonce_from(A, vreg):
    A(f"v_readfirstlane_b32 {s(sE)}, {v(vreg)}")
    A(f"s_mul_i32 {s(sNONCE)}, {s(sE)}, {hex(HASH_K)}")
    A(f"s_add_u32 {s(sNONCE)}, {s(sNONCE)}, {hex(HASH_C)}")

def make_ones(A, vn, dst, t):
    A(f"v_and_b32 {v(t)}, 3, {v(vn)}")
    A(f"v_lshrrev_b32 {v(t+1)}, 2, {v(vn)}")
    A(f"v_mov_b32 {v(t+2)}, 0")
    for k, (j0, j1) in enumerate(((0,1),(2,3))):
        A(f"v_mov_b32 {v(t+3)}, 0x3f80")
        A(f"v_cmp_eq_u32 vcc, {j0}, {v(t)}")
        A(f"v_cndmask_b32 {v(t+4+k)}, {v(t+2)}, {v(t+3)}, vcc")
        A(f"v_mov_b32 {v(t+3)}, 0x3f800000")
        A(f"v_cmp_eq_u32 vcc, {j1}, {v(t)}")
        A(f"v_cndmask_b32 {v(t+4+k)}, {v(t+4+k)}, {v(t+3)}, vcc")
    for b in range(4):
        A(f"v_cmp_eq_u32 vcc, {b}, {v(t+1)}")
        A(f"v_cndmask_b32 {v(dst+4*b)}, {v(t+2)}, {v(t+4)}, vcc")
        A(f"v_cndmask_b32 {v(dst+4*b+1)}, {v(t+2)}, {v(t+5)}, vcc")
        A(f"v_mov_b32 {v(dst+4*b+2)}, {v(dst+4*b)}")
        A(f"v_mov_b32 {v(dst+4*b+3)}, {v(dst+4*b+1)}")

def partial_offsets(A, vl, vn, vs, base, chkbase, vpub, vchkpub, vga, vgb, vgc, t, sHJ=sHJ, sH=sH):
    A(f"s_lshl_b32 {s(sT0)}, {s(sHJ)}, 10")
    A(f"s_add_u32 {s(sT0)}, {s(sT0)}, {hex(base)}")
    A(f"v_lshl_add_u32 {v(vpub)}, {v(vl)}, 4, {s(sT0)}")
    A(f"s_lshl_b32 {s(sT0)}, {s(sHJ)}, 3")
    A(f"s_add_u32 {s(sT0)}, {s(sT0)}, {hex(chkbase)}")
    A(f"v_mov_b32 {v(vchkpub)}, {s(sT0)}")
    A(f"s_lshl_b32 {s(sT0)}, {s(sH)}, 13")
    A(f"s_add_u32 {s(sT0)}, {s(sT0)}, {hex(base)}")
    A(f"v_lshlrev_b32 {v(t)}, 10, {v(vs)}")
    A(f"v_lshl_add_u32 {v(t)}, {v(vn)}, 4, {v(t)}")
    A(f"v_add_u32 {v(vga)}, {s(sT0)}, {v(t)}")
    A(f"v_add_u32 {v(vgb)}, 4096, {v(vga)}")
    A(f"s_lshl_b32 {s(sT0)}, {s(sH)}, 6")
    A(f"s_add_u32 {s(sT0)}, {s(sT0)}, {hex(chkbase)}")
    A(f"v_lshl_add_u32 {v(t)}, {v(vl)}, 3, {s(sT0)}")
    A(f"v_cmp_gt_u32 {s(sM2,2)}, 8, {v(vl)}")
    A(f"v_mov_b32 {v(t+1)}, 0x7ffffff0")
    A(f"v_cndmask_b32 {v(vgc)}, {v(t+1)}, {v(t)}, {s(sM2,2)}")

def publish_partial(A, dx, dy, pk, vpub, vchkpub, t, fl='sc1', dual=False, defer=False):
    A(f"v_cvt_pk_bf16_f32 {v(pk)}, {v(dx)}, {v(dx+1)}")
    A(f"v_cvt_pk_bf16_f32 {v(pk+1)}, {v(dx+2)}, {v(dx+3)}")
    A(f"v_cvt_pk_bf16_f32 {v(pk+2)}, {v(dy)}, {v(dy+1)}")
    A(f"v_cvt_pk_bf16_f32 {v(pk+3)}, {v(dy+2)}, {v(dy+3)}")
    if dual:
        A(f"buffer_store_dwordx4 {v(pk,4)}, {v(vpub)}, {s(sWS,4)}, 0 offen")
        if not defer: A(f"buffer_store_dwordx4 {v(pk,4)}, {v(vpub)}, {s(sWS,4)}, {s(sDELTA)} offen sc1")
    else:
        A(f"buffer_store_dwordx4 {v(pk,4)}, {v(vpub)}, {s(sWS,4)}, 0 offen {fl}")
    sum_dwords(A, t, [pk, pk+1, pk+2, pk+3])
    wave_sum_u32(A, t, t+2)
    A(f"v_add_u32 {v(t+1)}, {s(sNONCE)}, {v(t)}")
    A(f"s_mov_b64 {s(sEX,2)}, exec")
    A(f"s_mov_b64 exec, 1")
    if dual:
        A(f"buffer_store_dwordx2 {v(t,2)}, {v(vchkpub)}, {s(sWS,4)}, 0 offen")
        if not defer: A(f"buffer_store_dwordx2 {v(t,2)}, {v(vchkpub)}, {s(sWS,4)}, {s(sDELTA)} offen sc1")
    else:
        A(f"buffer_store_dwordx2 {v(t,2)}, {v(vchkpub)}, {s(sWS,4)}, 0 offen {fl}")
    A(f"s_mov_b64 exec, {s(sEX,2)}")
    if dual and defer:
        A(f"v_mov_b32 {v(pk+4)}, {v(t)}")
        A(f"v_mov_b32 {v(pk+5)}, {v(t+1)}")

def global_copy(A, pk, vpub, vchkpub):
    A(f"buffer_store_dwordx4 {v(pk,4)}, {v(vpub)}, {s(sWS,4)}, {s(sDELTA)} offen sc1")
    A(f"s_mov_b64 {s(sEX,2)}, exec")
    A(f"s_mov_b64 exec, 1")
    A(f"buffer_store_dwordx2 {v(pk+4,2)}, {v(vchkpub)}, {s(sWS,4)}, {s(sDELTA)} offen sc1")
    A(f"s_mov_b64 exec, {s(sEX,2)}")

def late_copy(A, cfg, pk, vpub, vchkpub):
    if not (cfg.dual and cfg.defer): return
    skip = A.newlabel("L_nocp")
    A(f"s_cmp_ge_u32 {s(sFB)}, {LOCAL_TRIES}")
    A(f"s_cbranch_scc1 {skip}")
    global_copy(A, pk, vpub, vchkpub)
    A.label(skip)

def gather_reduce(A, cfg, name, G, CK, ones, vga, vgb, vgc, dx, dy, t, pk=16, vpub=52, vchkpub=53):
    so = s(sFB) if cfg.dual else "0"
    if cfg.dual: A(f"s_mov_b32 {s(sFB)}, 0")
    lab = poll_head(A, name)
    if cfg.dual:
        if cfg.defer:
            skip = A.newlabel("L_nosw")
            A(f"s_cmp_lg_u32 {s(sCNT)}, {LOCAL_TRIES}")
            A(f"s_cbranch_scc1 {skip}")
            global_copy(A, pk, vpub, vchkpub)
            A.label(skip)
        A(f"s_cmp_ge_u32 {s(sCNT)}, {LOCAL_TRIES}")
        A(f"s_cselect_b32 {s(sFB)}, {s(sDELTA)}, 0")
    for b in range(4):
        A(f"buffer_load_dwordx4 {v(G+8*b,4)}, {v(vga)}, {s(sWS,4)}, {so} offen offset:{256*b} {cfg.local_ld}")
        A(f"buffer_load_dwordx4 {v(G+8*b+4,4)}, {v(vgb)}, {s(sWS,4)}, {so} offen offset:{256*b} {cfg.local_ld}")
    A(f"buffer_load_dwordx2 {v(CK,2)}, {v(vgc)}, {s(sWS,4)}, {so} offen {cfg.local_ld}")
    A(f"s_waitcnt vmcnt(0)")
    sum_dwords(A, t, range(G, G+16))
    sum_dwords(A, t+1, range(G+16, G+32))
    A(f"v_add_u32 {v(t)}, {v(t)}, {v(t+1)}")
    A(f"v_sub_u32 {v(t)}, {v(t)}, {v(CK)}")
    A(f"v_add_u32 {v(t+1)}, {s(sNONCE)}, {v(CK)}")
    A(f"v_cmp_ne_u32 vcc, {v(t+1)}, {v(CK+1)}")
    wave_sum_u32(A, t, t+2)
    A(f"s_and_b64 {s(sM1,2)}, vcc, {s(sM2,2)}")
    A(f"v_cmp_ne_u32 vcc, 0, {v(t)}")
    A(f"s_or_b64 {s(sM1,2)}, {s(sM1,2)}, vcc")
    poll_tail(A, lab, sM1, cfg.poll_sleep)
    if cfg.dual and cfg.defer:
        A(f"s_mov_b32 {s(sFB)}, {s(sCNT)}")
    for b in range(4):
        w = G + 8*b
        A(f"v_swap_b32 {v(w+2)}, {v(w+4)}")
        A(f"v_swap_b32 {v(w+3)}, {v(w+5)}")
    for b in range(4):
        w = G + 8*b
        c0 = "0" if b == 0 else v(dx,4); c1 = "0" if b == 0 else v(dy,4)
        A(f"v_mfma_f32_16x16x32_bf16 {v(dx,4)}, {v(ones+4*b,4)}, {v(w,4)}, {c0}")
        A(f"v_mfma_f32_16x16x32_bf16 {v(dy,4)}, {v(ones+4*b,4)}, {v(w+4,4)}, {c1}")

def gen(cfg):
    A = Asm()
    LSLEEP[0] = 0
    NT = " nt" if cfg.nt_tail else ""
    NTKV = " nt" if cfg.nt_kv else ""
    NTWQ = " nt" if cfg.nt_wq else ""
    vL, vN, vS = 0, 1, 2
    vSEL = 4
    A(f"s_cmp_ge_u32 s2, 256")
    A(f"s_cbranch_scc1 L_exit")
    if cfg.perm == 'rot':
        A(f"s_and_b32 s66, s2, 7")
        A(f"s_lshr_b32 s67, s2, 3")
        A(f"s_and_b32 s68, s67, 7")
        A(f"s_andn2_b32 s67, s67, 7")
        A(f"s_or_b32 s67, s67, s66")
        A(f"s_lshl_b32 s67, s67, 3")
        A(f"s_or_b32 s2, s67, s68")
    if isinstance(cfg.perm, int): A(f"s_xor_b32 s2, s2, {cfg.perm}")
    for sr, off in ((sX,0),(sWQ,16),(sWUK,24),(sWS,104),(sKV,8),(sWUV,32),(sWO,40),(sW1,56),(sB1,64),(sW2,72),(sGW,80),(sOUT,88)):
        srd(A, sr, off, 0)
    vXP, vAF0, vAF1, vQX, vQY, vT = 8, 24, 28, 32, 36, 40
    vWUK, vWQ = 64, 128
    vA0, vA1, vA2 = 40, 41, 42
    vE = 44
    A(f"v_lshrrev_b32 v4, 6, v0")
    A(f"v_and_b32 {v(vL)}, 63, v0")
    A(f"v_readfirstlane_b32 {s(sW)}, v4")
    A(f"v_and_b32 {v(vN)}, 15, {v(vL)}")
    A(f"v_lshrrev_b32 {v(vS)}, 4, {v(vL)}")
    A(f"s_and_b32 {s(sXCD)}, s2, 7")
    A(f"s_lshr_b32 {s(sR)}, s2, 3")
    A(f"s_and_b32 {s(sHG)}, {s(sR)}, 1")
    A(f"s_bfe_u32 {s(sJ)}, {s(sR)}, 0x30001")
    A(f"s_lshr_b32 {s(sT0)}, {s(sR)}, 4")
    A(f"s_lshl_b32 {s(sT1)}, {s(sXCD)}, 1")
    A(f"s_add_u32 {s(sT1)}, {s(sT1)}, {s(sT0)}")
    A(f"s_lshl_b32 {s(sT0)}, {s(sHG)}, 4")
    A(f"s_add_u32 {s(sH)}, {s(sT0)}, {s(sT1)}")
    for sr, size in ((sX,4096),(sWQ,4<<20),(sWUK,4<<20),(sWS,256<<20)):
        srd_fin(A, sr, size)
    A(f"s_cmp_lg_u32 {s(sW)}, 0")
    A(f"s_cbranch_scc1 L_pro2")
    A(f"v_lshrrev_b32 {v(vA0)}, 2, {v(vN)}")
    A(f"v_lshlrev_b32 {v(vA0)}, 10, {v(vA0)}")
    A(f"v_lshl_add_u32 {v(vA0)}, {v(vS)}, 5, {v(vA0)}")
    A(f"s_lshl_b32 {s(sT0)}, {s(sJ)}, 7")
    A(f"v_add_u32 {v(vA0)}, {s(sT0)}, {v(vA0)}")
    A(f"s_lshl_b32 {s(sT0)}, {s(sJ)}, 19")
    A(f"s_lshl_b32 {s(sT1)}, {s(sH)}, 8")
    A(f"s_add_u32 {s(sT0)}, {s(sT0)}, {s(sT1)}")
    A(f"v_lshlrev_b32 {v(vA1)}, 17, {v(vS)}")
    A(f"v_lshl_add_u32 {v(vA1)}, {v(vN)}, 4, {v(vA1)}")
    A(f"v_add_u32 {v(vA1)}, {s(sT0)}, {v(vA1)}")
    A(f"v_lshrrev_b32 {v(vA2)}, 2, {v(vN)}")
    A(f"v_lshlrev_b32 {v(vA2)}, 4, {v(vA2)}")
    A(f"v_and_b32 v43, 3, {v(vN)}")
    A(f"v_add_u32 {v(vA2)}, {v(vA2)}, v43")
    A(f"v_lshlrev_b32 {v(vA2)}, 13, {v(vA2)}")
    A(f"v_lshl_add_u32 {v(vA2)}, {v(vS)}, 4, {v(vA2)}")
    A(f"v_add_u32 {v(vA2)}, {s(sT0)}, {v(vA2)}")
    A(f"v_mov_b32 v45, {hex(WS_E)}")
    A(f"s_waitcnt lgkmcnt(0)")
    stamp(A, cfg, 0)
    A(f"s_mov_b32 {s(sT2)}, 0")
    for k in range(16):
        A(f"buffer_load_dwordx4 {v(vWQ+4*k,4)}, {v(vA1)}, {s(sWQ,4)}, {s(sT2)} offen{NTWQ}")
        if k < 15: A(f"s_add_u32 {s(sT2)}, {s(sT2)}, 8192")
        if k == 1:
            A(f"buffer_load_dword {v(vE)}, v45, {s(sWS,4)}, 0 offen sc1")
            for kk in range(2):
                A(f"buffer_load_dwordx4 {v(vXP+4*kk,4)}, {v(vA0)}, {s(sX,4)}, 0 offen offset:{16*kk}")
    A(f"s_mov_b32 {s(sT2)}, 0")
    for T in range(4):
        for t in range(4):
            A(f"buffer_load_dwordx4 {v(vWUK+16*T+4*t,4)}, {v(vA2)}, {s(sWUK,4)}, {s(sT2)} offen offset:{64*t}{NTWQ}")
        if T < 3: A(f"s_add_u32 {s(sT2)}, {s(sT2)}, 32768")
    A.label("L_pro2")
    if cfg.ts:
        A(f"s_cmp_eq_u32 {s(sW)}, 0")
        A(f"s_cbranch_scc1 L_pro3")
        A(f"s_waitcnt lgkmcnt(0)")
        stamp(A, cfg, 0)
        A.label("L_pro3")
    for _ in range(cfg.pad): A("s_nop 0")
    A(f"v_mov_b32 {v(vFLA)}, {L_FL}")
    A(f"v_lshl_add_u32 v40, {v(vN)}, 2, {v(vFLA)}")
    A(f"v_mov_b32 v41, 0")
    A(f"ds_write_b32 v40, v41")
    A(f"v_mov_b32 v42, -1")
    A(f"v_mov_b32 v43, -1")
    A(f"v_lshlrev_b32 v40, 3, {v(vL)}")
    A(f"v_add_u32 v41, {L_MX}, v40")
    A(f"ds_write_b64 v41, v[42:43]")
    A(f"v_add_u32 v41, {L_CC}, v40")
    A(f"ds_write_b64 v41, v[42:43]")
    A(f"s_lshl_b32 {s(sHJ)}, {s(sH)}, 3")
    A(f"s_add_u32 {s(sHJ)}, {s(sHJ)}, {s(sJ)}")
    A(f"s_lshr_b32 {s(sB)}, {s(sXCD)}, 1")
    A(f"s_and_b32 {s(sT0)}, {s(sXCD)}, 1")
    A(f"s_lshl_b32 {s(sT0)}, {s(sT0)}, 4")
    A(f"s_lshr_b32 {s(sT1)}, {s(sR)}, 1")
    A(f"s_add_u32 {s(sKC)}, {s(sT0)}, {s(sT1)}")
    for sr, size in ((sKV,16<<20),(sWUV,4<<20),(sWO,4<<20),(sW1,512*2752),(sB1,2752),(sW2,1376*1024),(sGW,1024),(sOUT,4096)):
        srd_fin(A, sr, size)
    A(f"s_mov_b32 {s(sDELTA)}, {hex(LOCAL_DELTA)}")
    A(f"s_waitcnt lgkmcnt(0)")
    A(f"s_barrier")
    A(f"s_cmp_ge_u32 {s(sW)}, 4")
    A(f"s_cbranch_scc1 L_Lpath")
    estamp(A, cfg, 3)
    if cfg.prio: A(f"s_setprio 3")
    for _ in range(cfg.padm): A("s_nop 0")
    A(f"s_cmp_eq_u32 {s(sW)}, 0")
    A(f"s_cbranch_scc1 L_q")
    A(f"v_mov_b32 v43, {hex(WS_E)}")
    A(f"buffer_load_dword {v(vE)}, v43, {s(sWS,4)}, 0 offen sc1")
    A(f"s_branch L_noq")
    A.label("L_q")
    aQG, aQC, aQL, aQE, aQO, aKE, aKO, aPV0, aPV1, aMXR, aMXW, aPR, aPW, aOP0, aOP1, aST = range(8, 24)
    vQG, vQC = 64, 80
    def attn_addresses():
        A(f"s_lshl_b32 {s(sT0)}, {s(sB)}, 1")
        A(f"s_add_u32 {s(sT0)}, {s(sT0)}, {s(sHG)}")
        A(f"s_lshl_b32 {s(sT0)}, {s(sT0)}, 4")
        A(f"s_lshl_b32 {s(sT1)}, {s(sW)}, 2")
        A(f"s_add_u32 {s(sT0)}, {s(sT0)}, {s(sT1)}")
        A(f"s_lshl_b32 {s(sT1)}, {s(sT0)}, 10")
        A(f"s_add_u32 {s(sT1)}, {s(sT1)}, {hex(WS_QA)}")
        A(f"v_lshl_add_u32 {v(aQG)}, {v(vL)}, 4, {s(sT1)}")
        A(f"s_lshl_b32 {s(sT1)}, {s(sT0)}, 6")
        A(f"s_add_u32 {s(sT1)}, {s(sT1)}, {hex(WS_QC)}")
        A(f"v_lshl_add_u32 {v(aQC)}, {v(vL)}, 3, {s(sT1)}")
        A(f"v_cmp_lt_u32 {s(sM0,2)}, {v(vL)}, 32")
        A(f"v_mov_b32 v43, 0x7ffffff0")
        A(f"v_cndmask_b32 {v(aQC)}, v43, {v(aQC)}, {s(sM0,2)}")
        A(f"s_mul_i32 {s(sT1)}, {s(sW)}, {4*PITCH}")
        A(f"s_add_u32 {s(sT1)}, {s(sT1)}, {L_QL}")
        A(f"v_lshl_add_u32 {v(aQL)}, {v(vL)}, 4, {s(sT1)}")
        A(f"s_movk_i32 {s(sT1)}, {PITCH}")
        A(f"v_mul_lo_u32 v44, {v(vN)}, {s(sT1)}")
        A(f"v_lshl_add_u32 v44, {v(vS)}, 8, v44")
        A(f"v_and_b32 v45, 1, {v(vS)}")
        A(f"v_lshlrev_b32 v45, 4, v45")
        A(f"v_add_u32 {v(aQE)}, v44, v45")
        A(f"v_sub_u32 {v(aQO)}, v44, v45")
        A(f"s_mul_i32 {s(sT0)}, {s(sW)}, {32*PITCH}")
        A(f"v_add_u32 {v(aKE)}, {s(sT0)}, {v(aQE)}")
        A(f"v_add_u32 {v(aKO)}, {s(sT0)}, {v(aQO)}")
        A(f"v_add_u32 {v(aQE)}, {L_QL}, {v(aQE)}")
        A(f"v_add_u32 {v(aQO)}, {L_QL}, {v(aQO)}")
        A(f"v_lshrrev_b32 v46, 2, {v(vL)}")
        A(f"v_mul_lo_u32 v46, v46, {s(sT1)}")
        A(f"v_and_b32 v47, 3, {v(vL)}")
        A(f"v_lshl_add_u32 v46, v47, 3, v46")
        A(f"s_lshl_b32 {s(sT0)}, {s(sW)}, 8")
        A(f"v_add_u32 {v(aPV0)}, {s(sT0)}, v46")
        A(f"v_add_u32 {v(aPV1)}, {64*PITCH}, {v(aPV0)}")
        A(f"v_lshlrev_b32 {v(aMXR)}, 4, {v(vN)}")
        A(f"v_add_u32 {v(aMXR)}, {L_MX}, {v(aMXR)}")
        A(f"s_lshl_b32 {s(sT0)}, {s(sW)}, 2")
        A(f"v_add_u32 {v(aMXW)}, {s(sT0)}, {v(aMXR)}")
        A(f"v_lshlrev_b32 {v(aPR)}, 4, {v(vL)}")
        A(f"v_add_u32 {v(aPR)}, {L_PB}, {v(aPR)}")
        A(f"s_lshl_b32 {s(sT0)}, {s(sW)}, 10")
        A(f"v_add_u32 {v(aPW)}, {s(sT0)}, {v(aPR)}")
        A(f"s_lshl_b32 {s(sT0)}, {s(sHG)}, 4")
        A(f"v_add_u32 v48, {s(sT0)}, {v(vN)}")
        A(f"s_lshl_b32 {s(sT0)}, {s(sW)}, 3")
        A(f"s_add_u32 {s(sT0)}, {s(sT0)}, {s(sKC)}")
        if cfg.rot:
            A(f"v_add_u32 v50, {s(sT0)}, v48")
            A(f"v_add_u32 v51, 4, v50")
            A(f"v_and_b32 v50, 31, v50")
            A(f"v_and_b32 v51, 31, v51")
        else:
            A(f"v_mov_b32 v50, {s(sKC)}")
            A(f"v_mov_b32 v51, {s(sKC)}")
        A(f"v_lshlrev_b32 v48, 10, v48")
        A(f"s_lshl_b32 {s(sT0)}, {s(sW)}, 8")
        A(f"s_lshl_b32 {s(sT1)}, {s(sB)}, 5")
        A(f"s_add_u32 {s(sT0)}, {s(sT0)}, {s(sT1)}")
        A(f"v_add_u32 v48, {s(sT0)}, v48")
        A(f"v_add_u32 v50, v48, v50")
        A(f"v_add3_u32 v51, v48, v51, 64")
        A(f"v_add_u32 v51, 64, v51")
        A(f"v_and_b32 v49, 1, {v(vS)}")
        A(f"v_lshlrev_b32 v49, 1, v49")
        A(f"v_lshrrev_b32 v45, 1, {v(vS)}")
        A(f"v_add_u32 v49, v49, v45")
        A(f"v_lshlrev_b32 v49, 4, v49")
        A(f"v_lshl_add_u32 {v(aOP0)}, v50, 7, v49")
        A(f"v_add_u32 {v(aOP0)}, {hex(WS_OP)}, {v(aOP0)}")
        A(f"v_lshl_add_u32 {v(aOP1)}, v51, 7, v49")
        A(f"v_add_u32 {v(aOP1)}, {hex(WS_OP)}, {v(aOP1)}")
        A(f"v_cmp_eq_u32 vcc, 1, {v(vS)}")
        A(f"v_cndmask_b32 v50, v50, v51, vcc")
        A(f"v_lshlrev_b32 v50, 4, v50")
        A(f"v_add_u32 {v(aST)}, {hex(WS_ST)}, v50")
    estamp(A, cfg, 4)
    make_sels(A, vN, vSEL, vT)
    vONE, vG1, vCK1 = 192, 208, 240
    make_ones(A, vN, vONE, 46)
    vPUB, vCPUB, vGA, vGB, vGC = 52, 53, 54, 55, 56
    partial_offsets(A, vL, vN, vS, WS_Q1, WS_Q1C, vPUB, vCPUB, vGA, vGB, vGC, 46)
    vQAO, vQCO = 58, 59
    A(f"v_lshl_add_u32 {v(vQAO)}, {v(vN)}, 5, {s(sH)}")
    A(f"v_lshlrev_b32 {v(vQCO)}, 3, {v(vQAO)}")
    A(f"v_add_u32 {v(vQCO)}, {s(sJ)}, {v(vQCO)}")
    A(f"v_lshlrev_b32 {v(vQCO)}, 3, {v(vQCO)}")
    A(f"v_add_u32 {v(vQCO)}, {hex(WS_QC)}, {v(vQCO)}")
    A(f"v_lshlrev_b32 {v(vQAO)}, 10, {v(vQAO)}")
    A(f"v_lshl_add_u32 {v(vQAO)}, {v(vS)}, 5, {v(vQAO)}")
    A(f"s_lshl_b32 {s(sT0)}, {s(sJ)}, 7")
    A(f"s_add_u32 {s(sT0)}, {s(sT0)}, {hex(WS_QA)}")
    A(f"v_add_u32 {v(vQAO)}, {s(sT0)}, {v(vQAO)}")
    NPW = 0
    A(f"v_lshlrev_b32 v57, 4, {v(vL)}")
    A(f"v_add_u32 v57, {L_QB}, v57")
    A(f"v_and_b32 v248, 3, {v(vN)}")
    A(f"v_lshlrev_b32 v248, 8, v248")
    A(f"v_lshl_add_u32 v248, {v(vS)}, 4, v248")
    A(f"v_add_u32 v248, {L_QB}, v248")
    A(f"s_waitcnt vmcnt(30)")
    nonce_from(A, vE)
    def _w(t):
        A(f"s_waitcnt vmcnt({16 + 14 - 2*t})")
        if t == 0: estamp(A, cfg, 5)
        if t == 7: estamp(A, cfg, 6)
        if t == 0 and cfg.l_delay and cfg.fw_at == 'wq': arrive(A, FW, 43)
    sel_gemm(A, 8, vXP, vSEL, vAF0, vAF1, vWQ, vQX, vQY, swap=True, wwait=_w)
    publish_partial(A, vQX, vQY, 242, vPUB, vCPUB, 46, cfg.local_st, cfg.dual, cfg.defer)
    stamp(A, cfg, 1)
    if cfg.l_delay and cfg.fw_at == 'pub': arrive(A, FW, 43)
    if cfg.exp == 'kvq': A(f"s_branch L_Mdone")
    if cfg.addr_early: attn_addresses()
    if cfg.hop1_ack: A(f"s_waitcnt vmcnt(0)")
    gather_reduce(A, cfg, "L_hop1", vG1, vCK1, vONE, vGA, vGB, vGC, vQX, vQY, 46, 242)
    savecnt(A, cfg, 0)
    if cfg.l_delay and cfg.fw_at == 'hop1': arrive(A, FW, 43)
    estamp(A, cfg, 7)
    A(f"v_cvt_pk_bf16_f32 v60, {v(vQX)}, {v(vQX+1)}")
    A(f"v_cvt_pk_bf16_f32 v61, {v(vQX+2)}, {v(vQX+3)}")
    A(f"v_cvt_pk_bf16_f32 v62, {v(vQY)}, {v(vQY+1)}")
    A(f"v_cvt_pk_bf16_f32 v63, {v(vQY+2)}, {v(vQY+3)}")
    A(f"ds_write_b128 v57, v[60:63]")
    vQF4, vD, vPK = 128, 144, 160
    for t in range(4):
        A(f"ds_read_b128 {v(vQF4+4*t,4)}, v248 offset:{64*t}")
    for t in range(4):
        A(f"s_waitcnt lgkmcnt({3-t})")
        for T in range(4):
            c = "0" if t == 0 else v(vD+4*T,4)
            A(f"v_mfma_f32_16x16x32_bf16 {v(vD+4*T,4)}, {v(vWUK+16*T+4*t,4)}, {v(vQF4+4*t,4)}, {c}")
    for k in range(8):
        A(f"v_cvt_pk_bf16_f32 {v(vPK+k)}, {v(vD+2*k)}, {v(vD+2*k+1)}")
    if cfg.pw_qa: wait_flag(A, FP1, 1, 43)
    A(f"s_mov_b64 {s(sEX,2)}, exec")
    A(f"s_mov_b32 exec_lo, 0x000f000f")
    A(f"s_mov_b32 exec_hi, 0x000f000f")
    A(f"buffer_store_dwordx4 {v(vPK,4)}, {v(vQAO)}, {s(sWS,4)}, 0 offen sc1")
    A(f"buffer_store_dwordx4 {v(vPK+4,4)}, {v(vQAO)}, {s(sWS,4)}, 0 offen offset:16 sc1")
    A(f"s_mov_b64 exec, {s(sEX,2)}")
    sum_dwords(A, 44, range(vPK, vPK+8))
    xreduce_rows(A, "v_add_u32", 44, 46)
    A(f"v_add_u32 v45, {s(sNONCE)}, v44")
    A(f"s_mov_b64 exec, 0xf")
    A(f"buffer_store_dwordx2 v[44:45], {v(vQCO)}, {s(sWS,4)}, 0 offen sc1")
    A(f"s_mov_b64 exec, {s(sEX,2)}")
    late_copy(A, cfg, 242, vPUB, vCPUB)
    if not cfg.addr_early: attn_addresses()
    if cfg.hop2_gate:
        A(f"s_waitcnt vmcnt(0)")
        arrive(A, FP1, 43)
    A(f"s_branch L_qdone")
    A.label("L_noq")
    if cfg.pw_qa or cfg.pw_fd:
        for k in range(4): A(f"v_mov_b32 {v(60+k)}, 0")
    if cfg.pw_qa:
        A(f"s_cmp_lg_u32 {s(sW)}, 1")
        A(f"s_cbranch_scc1 L_nopw1")
        A(f"v_lshl_add_u32 v58, {v(vN)}, 5, {s(sH)}")
        A(f"v_lshlrev_b32 v59, 3, v58")
        A(f"v_add_u32 v59, {s(sJ)}, v59")
        A(f"v_lshlrev_b32 v59, 3, v59")
        A(f"v_add_u32 v59, {hex(WS_QC)}, v59")
        A(f"v_lshlrev_b32 v58, 10, v58")
        A(f"v_lshl_add_u32 v58, {v(vS)}, 5, v58")
        A(f"s_lshl_b32 {s(sT0)}, {s(sJ)}, 7")
        A(f"s_add_u32 {s(sT0)}, {s(sT0)}, {hex(WS_QA)}")
        A(f"v_add_u32 v58, {s(sT0)}, v58")
        A(f"s_mov_b32 exec_lo, 0x000f000f")
        A(f"s_mov_b32 exec_hi, 0x000f000f")
        A(f"buffer_store_dwordx4 v[60:63], v58, {s(sWS,4)}, 0 offen sc1")
        A(f"buffer_store_dwordx4 v[60:63], v58, {s(sWS,4)}, 0 offen offset:16 sc1")
        A(f"s_mov_b64 exec, 0xf")
        A(f"buffer_store_dwordx2 v[60:61], v59, {s(sWS,4)}, 0 offen sc1")
        A(f"s_mov_b64 exec, -1")
        A(f"s_waitcnt vmcnt(0)")
        arrive(A, FP1, 43)
        A.label("L_nopw1")
    if cfg.pw_fd:
        A(f"s_cmp_lg_u32 {s(sW)}, 2")
        A(f"s_cbranch_scc1 L_nopw2")
        A(f"v_lshrrev_b32 v46, 3, {v(vN)}")
        A(f"v_lshl_add_u32 v46, {v(vS)}, 4, v46")
        A(f"s_lshl_b32 {s(sT0)}, {s(sJ)}, 1")
        A(f"v_add_u32 v46, {s(sT0)}, v46")
        A(f"s_movk_i32 {s(sT1)}, {NSLOT}")
        A(f"v_mul_lo_u32 v46, v46, {s(sT1)}")
        A(f"v_add_u32 v46, {s(sH)}, v46")
        A(f"v_lshlrev_b32 v59, 3, v46")
        A(f"v_add_u32 v59, {hex(WS_FC)}, v59")
        A(f"v_and_b32 v47, 7, {v(vN)}")
        A(f"v_lshlrev_b32 v47, 3, v47")
        A(f"v_lshl_add_u32 v58, v46, 6, v47")
        A(f"v_add_u32 v58, {hex(WS_FD)}, v58")
        A(f"buffer_store_dwordx2 v[60:61], v58, {s(sWS,4)}, 0 offen sc1")
        A(f"s_mov_b32 exec_lo, 0x01010101")
        A(f"s_mov_b32 exec_hi, 0x01010101")
        A(f"buffer_store_dwordx2 v[60:61], v59, {s(sWS,4)}, 0 offen sc1")
        A(f"s_mov_b64 exec, -1")
        A(f"s_waitcnt vmcnt(0)")
        arrive(A, FP2, 43)
        A.label("L_nopw2")
    make_sels(A, vN, vSEL, vT)
    A(f"s_waitcnt vmcnt(0)")
    nonce_from(A, vE)
    attn_addresses()
    A.label("L_qdone")
    stamp(A, cfg, 2)
    if cfg.exp in ('kvq', 'kvq1'): A(f"s_branch L_Mdone")
    NL = 3 if cfg.tail_early else 4
    wait_flag(A, FKV if cfg.wait_kv_first else FKI, NL, 44)
    if cfg.hop2_gate: wait_flag(A, FP1, 1, 44)
    if cfg.two_stage:
        lab0 = poll_head(A, "L_hop2t")
        A(f"buffer_load_dwordx2 {v(vQC,2)}, {v(aQC)}, {s(sWS,4)}, 0 offen sc1")
        A(f"s_waitcnt vmcnt(0)")
        A(f"v_add_u32 v45, {s(sNONCE)}, {v(vQC)}")
        A(f"v_cmp_ne_u32 vcc, v45, {v(vQC+1)}")
        A(f"s_and_b64 {s(sM1,2)}, vcc, {s(sM0,2)}")
        poll_tail(A, lab0, sM1, cfg.poll_sleep)
        savecnt(A, cfg, 1)
    vRING = 128
    def hop2_issue():
        for i in range(4):
            A(f"buffer_load_dwordx4 {v(vQG+4*i,4)}, {v(aQG)}, {s(sWS,4)}, 0 offen offset:{1024*i} sc1")
        A(f"buffer_load_dwordx2 {v(vQC,2)}, {v(aQC)}, {s(sWS,4)}, 0 offen sc1")
    if cfg.kvpre:
        A(f"s_mov_b32 {s(sCNT)}, 0")
        hop2_issue()
        if cfg.tail_flag == 'FH2': arrive(A, FH2, 43)
        wait_flag(A, FKV, NL, 44)
        for t in range(16):
            if t in (6, 12): A(f"s_waitcnt lgkmcnt(2)")
            for tt in range(2):
                A(f"ds_read_b128 {v(vRING+4*(2*t+tt),4)}, {v(aKE if t%2==0 else aKO)} offset:{16*t + tt*16*PITCH}")
        lab = A.newlabel("L_hop2"); chk = A.newlabel("L_hop2c")
        A(f"s_branch {chk}")
        A.label(lab)
        hop2_issue()
        A.label(chk)
    else:
        lab = poll_head(A, "L_hop2")
        hop2_issue()
        if cfg.tail_flag == 'FH2': arrive(A, FH2, 43)
    A(f"s_waitcnt vmcnt(0)")
    sum_dwords(A, 44, range(vQG, vQG+16))
    A(f"v_sub_u32 v44, v44, {v(vQC)}")
    A(f"v_add_u32 v45, {s(sNONCE)}, {v(vQC)}")
    A(f"v_cmp_ne_u32 vcc, v45, {v(vQC+1)}")
    wave_sum_u32(A, 44, 46)
    A(f"s_and_b64 {s(sM1,2)}, vcc, {s(sM0,2)}")
    A(f"v_cmp_ne_u32 vcc, 0, v44")
    A(f"s_or_b64 {s(sM1,2)}, {s(sM1,2)}, vcc")
    poll_tail(A, lab, sM1, cfg.poll_sleep)
    savecnt(A, cfg, 2)
    for i in range(4):
        A(f"ds_write_b128 {v(aQL)}, {v(vQG+4*i,4)} offset:{PITCH*i}")
    arrive(A, F3, 43)
    stamp(A, cfg, 3)
    if not cfg.kvpre: wait_flag(A, FKV, NL, 44)
    wait_flag(A, F3, 4, 44)
    stamp(A, cfg, 4)
    pstamp(A, cfg, 8)
    vQF = 64
    vS0, vS1 = 32, 36
    NSLOT_R = 32 if cfg.kvpre else 16
    def pvread(k):
        T, g = k // 4, k % 4
        slot = k % NSLOT_R
        base = aPV0 if g < 2 else aPV1
        off = (32*(g%2))*PITCH + T*32
        A(f"ds_read_b64_tr_b16 {v(vRING+4*slot,2)}, {v(base)} offset:{off}")
        A(f"ds_read_b64_tr_b16 {v(vRING+4*slot+2,2)}, {v(base)} offset:{off+16*PITCH}")
    if cfg.kvpre:
        def qread(t): A(f"ds_read_b128 {v(vQF+4*t,4)}, {v(aQE if t%2==0 else aQO)} offset:{16*t}")
        for t in range(12): qread(t)
        npv = 0
        for t in range(16):
            if t < 4: A(f"s_waitcnt lgkmcnt(11)")
            elif t < 8: A(f"s_waitcnt lgkmcnt({15-t-4+ (0)})") if False else A(f"s_waitcnt lgkmcnt({max(0, 15 - t)})")
            elif t == 8: A(f"s_waitcnt lgkmcnt(0)")
            for tt in range(2):
                acc = vS0 if tt == 0 else vS1
                A(f"v_mfma_f32_16x16x32_bf16 {v(acc,4)}, {v(vRING+4*(2*t+tt),4)}, {v(vQF+4*t,4)}, {'0' if t == 0 else v(acc,4)}")
            if t < 4: qread(12+t)
            if t >= 8:
                if npv >= 4: A(f"s_waitcnt lgkmcnt(8)")
                pvread(npv); pvread(npv+1); npv += 2
        PRE0 = npv
    else:
        LA = 4
        def qkread(t):
            A(f"ds_read_b128 {v(vQF+4*t,4)}, {v(aQE if t%2==0 else aQO)} offset:{16*t}")
            for tt in range(2):
                slot = (2*t+tt) % 16
                A(f"ds_read_b128 {v(vRING+4*slot,4)}, {v(aKE if t%2==0 else aKO)} offset:{16*t + tt*16*PITCH}")
        for t in range(LA): qkread(t)
        for t in range(16):
            A(f"s_waitcnt lgkmcnt({3*min(LA-1, 15-t)})")
            for tt in range(2):
                slot = (2*t+tt) % 16
                acc = vS0 if tt == 0 else vS1
                A(f"v_mfma_f32_16x16x32_bf16 {v(acc,4)}, {v(vRING+4*slot,4)}, {v(vQF+4*t,4)}, {'0' if t == 0 else v(acc,4)}")
            if t + LA < 16: qkread(t+LA)
        PRE0 = 0
    pstamp(A, cfg, 1)
    vM = 44
    A(f"v_max3_f32 {v(vM)}, {v(vS0)}, {v(vS0+1)}, {v(vS0+2)}")
    A(f"v_max3_f32 v45, {v(vS0+3)}, {v(vS1)}, {v(vS1+1)}")
    A(f"v_max3_f32 {v(vM)}, {v(vM)}, {v(vS1+2)}, {v(vS1+3)}")
    A(f"v_max_f32 {v(vM)}, {v(vM)}, v45")
    xreduce_rows(A, "v_max_f32", vM, 45)
    A(f"ds_write_b32 {v(aMXW)}, {v(vM)}")
    def sentinel_wait(name, reads, regs):
        lab = A.newlabel(name); done = A.newlabel(name + "d")
        A(f"s_mov_b32 {s(sCNT2)}, 0")
        A.label(lab)
        reads()
        A(f"s_waitcnt lgkmcnt(0)")
        regs = list(regs)
        A(f"v_max3_u32 v47, {v(regs[0])}, {v(regs[1])}, {v(regs[2])}")
        k = 3
        while k + 1 < len(regs):
            A(f"v_max3_u32 v47, v47, {v(regs[k])}, {v(regs[k+1])}"); k += 2
        if k < len(regs): A(f"v_max_u32 v47, v47, {v(regs[k])}")
        A(f"v_cmp_eq_u32 vcc, -1, v47")
        A(f"s_cbranch_vccz {done}")
        A(f"s_add_u32 {s(sCNT2)}, {s(sCNT2)}, 1")
        A(f"s_cmp_lt_u32 {s(sCNT2)}, 2000000")
        A(f"s_cbranch_scc1 {lab}")
        A.label(done)
    sentinel_wait("L_mx", lambda: A(f"ds_read_b128 v[48:51], {v(aMXR)}"), range(48, 52))
    PRE = PRE0 + 6
    A(f"v_max3_f32 {v(vM)}, v48, v49, v50")
    for k in range(PRE0, PRE): pvread(k)
    A(f"v_max_f32 {v(vM)}, {v(vM)}, v51")
    A(f"s_mov_b32 {s(sT0)}, {hex(f2u(SCALE))}")
    A(f"v_mul_f32 {v(vM)}, {s(sT0)}, {v(vM)}")
    for k in range(8):
        A(f"v_fma_f32 {v(vS0+k)}, {v(vS0+k)}, {s(sT0)}, -{v(vM)}")
    for k in range(8):
        A(f"v_exp_f32 {v(vS0+k)}, {v(vS0+k)}")
    vLs = 46
    for k in range(4):
        A(f"v_cvt_pk_bf16_f32 {v(52+k)}, {v(vS0+2*k)}, {v(vS0+2*k+1)}")
    A(f"ds_write_b128 {v(aPW)}, v[52:55]")
    A(f"v_add_f32 {v(vLs)}, {v(vS0)}, {v(vS0+1)}")
    A(f"v_add_f32 v47, {v(vS0+2)}, {v(vS0+3)}")
    A(f"v_add_f32 v48, {v(vS0+4)}, {v(vS0+5)}")
    A(f"v_add_f32 v49, {v(vS0+6)}, {v(vS0+7)}")
    A(f"v_add_f32 {v(vLs)}, {v(vLs)}, v47")
    A(f"v_add_f32 v48, v48, v49")
    A(f"v_add_f32 {v(vLs)}, {v(vLs)}, v48")
    xreduce_rows(A, "v_add_f32", vLs, 47)
    A(f"ds_write_b32 {v(aMXW)}, {v(vLs)} offset:{L_LS-L_MX}")
    vPF, vO, vPK = 64, 80, 112
    def _rd():
        A(f"ds_read_b128 v[48:51], {v(aMXR)} offset:{L_LS-L_MX}")
        for g in range(4):
            A(f"ds_read_b128 {v(vPF+4*g,4)}, {v(aPR)} offset:{1024*g}")
    sentinel_wait("L_ls", _rd, range(48, 52))
    pstamp(A, cfg, 2)
    nxt = PRE
    outstanding = []
    def issue(k):
        pvread(k); outstanding.extend([("f",k),("f",k)])
    while len(outstanding) + 2 <= 14 and nxt < 32:
        issue(nxt); nxt += 1
    A(f"v_add_f32 v48, v48, v49")
    A(f"v_add_f32 v50, v50, v51")
    A(f"v_add_f32 v47, v48, v50")
    def post(p):
        for T in (2*p, 2*p+1):
            A(f"v_cvt_pk_bf16_f32 {v(vPK+2*T)}, {v(vO+4*T)}, {v(vO+4*T+1)}")
            A(f"v_cvt_pk_bf16_f32 {v(vPK+2*T+1)}, {v(vO+4*T+2)}, {v(vO+4*T+3)}")
        A(f"v_permlane16_swap_b32 {v(vPK+4*p)}, {v(vPK+4*p+2)}")
        A(f"v_permlane16_swap_b32 {v(vPK+4*p+1)}, {v(vPK+4*p+3)}")
        A(f"buffer_store_dwordx4 {v(vPK+4*p,4)}, {v(aOP0 if p < 2 else aOP1)}, {s(sWS,4)}, 0 offen offset:{64*(p%2)} sc1")
        c = 52 + (p >> 1)
        if p % 2 == 0:
            A(f"v_add3_u32 {v(c)}, {v(vPK+4*p)}, {v(vPK+4*p+1)}, {v(vPK+4*p+2)}")
            A(f"v_add_u32 {v(c)}, {v(c)}, {v(vPK+4*p+3)}")
        else:
            A(f"v_add3_u32 {v(c)}, {v(c)}, {v(vPK+4*p)}, {v(vPK+4*p+1)}")
            A(f"v_add3_u32 {v(c)}, {v(c)}, {v(vPK+4*p+2)}, {v(vPK+4*p+3)}")
    for k in range(32):
        T, g = k//4, k%4
        need_idx = -1
        for idx, o in enumerate(outstanding):
            if o == ("f",k): need_idx = max(need_idx, idx)
        can = nxt < 32 and nxt <= k + NSLOT_R - 1
        if can:
            need_idx = max(need_idx, len(outstanding) + 2 - 15 - 1)
        if need_idx >= 0:
            n_after = len(outstanding) - 1 - need_idx
            A(f"s_waitcnt lgkmcnt({n_after})")
            del outstanding[:need_idx+1]
        slot = k % NSLOT_R
        A(f"v_mfma_f32_16x16x32_bf16 {v(vO+4*T,4)}, {v(vRING+4*slot,4)}, {v(vPF+4*g,4)}, {'0' if g == 0 else v(vO+4*T,4)}")
        if can:
            issue(nxt); nxt += 1
        if k in (11, 19, 27):
            post((k - 11)//8)
            if cfg.pubts: A("s_waitcnt lgkmcnt(0)"); del outstanding[:]; pstamp(A, cfg, 3 + (k-11)//8)
    stamp(A, cfg, 5)
    post(3)
    pstamp(A, cfg, 6)
    xreduce_rows2(A, "v_add_u32", 52, 54, "v_add_u32", 53, 55)
    A(f"v_cmp_eq_u32 vcc, 1, {v(vS)}")
    A(f"v_mov_b32 v60, {v(vM)}")
    A(f"v_mov_b32 v61, v47")
    A(f"v_cndmask_b32 v62, v52, v53, vcc")
    A(f"v_add3_u32 v63, v60, v61, v62")
    A(f"v_add_u32 v63, {s(sNONCE)}, v63")
    A(f"s_mov_b64 {s(sEX,2)}, exec")
    A(f"s_mov_b32 exec_hi, 0")
    A(f"buffer_store_dwordx4 v[60:63], {v(aST)}, {s(sWS,4)}, 0 offen sc1")
    A(f"s_mov_b64 exec, {s(sEX,2)}")
    pstamp(A, cfg, 7)
    arrive(A, FPB, 52)
    stamp(A, cfg, 6)
    vOD, vST = 128, 144
    A(f"s_lshl_b32 {s(sT0)}, {s(sH)}, 3")
    A(f"s_add_u32 {s(sT0)}, {s(sT0)}, {s(sJ)}")
    A(f"s_lshl_b32 {s(sT0)}, {s(sT0)}, 2")
    A(f"s_add_u32 {s(sT0)}, {s(sT0)}, {s(sW)}")
    A(f"s_lshl_b32 {s(sT0)}, {s(sT0)}, 5")
    A(f"s_lshl_b32 {s(sT1)}, {s(sT0)}, 7")
    A(f"s_add_u32 {s(sT1)}, {s(sT1)}, {hex(WS_OP)}")
    A(f"v_lshl_add_u32 v40, {v(vL)}, 4, {s(sT1)}")
    A(f"s_lshl_b32 {s(sT1)}, {s(sT0)}, 4")
    A(f"s_add_u32 {s(sT1)}, {s(sT1)}, {hex(WS_ST)}")
    A(f"v_and_b32 v41, 31, {v(vL)}")
    A(f"v_lshl_add_u32 v41, v41, 4, {s(sT1)}")
    A(f"v_cmp_gt_u32 {s(sM0,2)}, 32, {v(vL)}")
    A(f"v_bfe_u32 v42, {v(vN)}, 2, 1")
    A(f"v_lshl_add_u32 v42, {v(vS)}, 1, v42")
    A(f"v_lshlrev_b32 v42, 2, v42")
    if cfg.hop3_ack: A(f"s_waitcnt vmcnt(0)")
    if cfg.wo_flag == 'ACK' or cfg.mlp_w1_flag == 'FP2' or cfg.hop3_ack == 2: arrive(A, FP2, 47)
    if cfg.hop3_ack == 2: wait_flag(A, FP2, 4, 47)
    if cfg.g_ts: stamp(A, cfg, 8)
    if cfg.hop3_sleep: A(f"s_sleep {cfg.hop3_sleep}")
    if cfg.two_stage or cfg.two3:
        lab0 = poll_head(A, "L_hop3t")
        A(f"buffer_load_dwordx4 {v(vST,4)}, v41, {s(sWS,4)}, 0 offen sc1")
        A(f"s_waitcnt vmcnt(0)")
        A(f"v_add3_u32 v45, {v(vST)}, {v(vST+1)}, {v(vST+2)}")
        A(f"v_add_u32 v45, {s(sNONCE)}, v45")
        A(f"v_cmp_ne_u32 {s(sM1,2)}, v45, {v(vST+3)}")
        poll_tail(A, lab0, sM1, cfg.poll_sleep)
        savecnt(A, cfg, 3)
    lab = poll_head(A, "L_hop3")
    for i in range(4):
        A(f"buffer_load_dwordx4 {v(vOD+4*i,4)}, v40, {s(sWS,4)}, 0 offen offset:{1024*i} sc1")
    A(f"buffer_load_dwordx4 {v(vST,4)}, v41, {s(sWS,4)}, 0 offen sc1")
    A(f"s_waitcnt vmcnt(0)")
    sum_dwords(A, 44, range(vOD, vOD+16))
    A(f"v_cndmask_b32 v45, 0, {v(vST+2)}, {s(sM0,2)}")
    A(f"v_sub_u32 v44, v44, v45")
    A(f"v_add3_u32 v45, {v(vST)}, {v(vST+1)}, {v(vST+2)}")
    A(f"v_add_u32 v45, {s(sNONCE)}, v45")
    A(f"v_cmp_ne_u32 {s(sM1,2)}, v45, {v(vST+3)}")
    wave_sum_u32(A, 44, 46)
    A(f"v_cmp_ne_u32 vcc, 0, v44")
    A(f"s_or_b64 {s(sM1,2)}, {s(sM1,2)}, vcc")
    poll_tail(A, lab, sM1, cfg.poll_sleep)
    if cfg.wo_flag == 'FH3' or cfg.mlp_w1_flag == 'FH3' or cfg.mlp_w2 == 'FH3': arrive(A, FCC, 47)
    savecnt(A, cfg, 4)
    stamp(A, cfg, 7)
    A(f"v_mov_b32 v44, {v(vST)}")
    for d in ("quad_perm:[1,0,3,2]", "quad_perm:[2,3,0,1]", "row_half_mirror", "row_mirror"):
        A(f"v_max_f32_dpp v44, v44, v44 {d} row_mask:0xf bank_mask:0xf")
    A(f"v_mov_b32 v46, v44")
    A(f"v_permlane16_swap_b32 v44, v46")
    A(f"v_max_f32 v44, v44, v46")
    A(f"v_sub_f32 v44, {v(vST)}, v44")
    A(f"v_exp_f32 v44, v44")
    for t in range(2):
        A(f"v_swap_b32 {v(vOD+8*t+2)}, {v(vOD+8*t+4)}")
        A(f"v_swap_b32 {v(vOD+8*t+3)}, {v(vOD+8*t+5)}")
    for k in range(4):
        A(f"ds_bpermute_b32 {v(48+k)}, v42, v44 offset:{32*k}")
    A(f"v_mul_f32 v45, v44, {v(vST+1)}")
    for d in ("quad_perm:[1,0,3,2]", "quad_perm:[2,3,0,1]", "row_half_mirror", "row_mirror"):
        A(f"v_add_f32_dpp v45, v45, v45 {d} row_mask:0xf bank_mask:0xf")
    A(f"v_mov_b32 v46, v45")
    A(f"v_permlane16_swap_b32 v45, v46")
    A(f"v_add_f32 v45, v45, v46")
    A(f"v_rcp_f32 v45, v45")
    A(f"s_waitcnt lgkmcnt(0)")
    A(f"v_cvt_pk_bf16_f32 v52, v48, v49")
    A(f"v_cvt_pk_bf16_f32 v53, v50, v51")
    sel_gemm(A, 2, 52, vSEL, vAF0, vAF1, vOD, vQX, vQY)
    for k in range(8):
        A(f"v_permlane16_swap_b32 {v(vQX+k)}, {v(56+k)}")
    for k in range(8):
        A(f"v_add_f32_dpp {v(56+k)}, {v(56+k)}, {v(vQX+k)} row_ror:8 row_mask:0xf bank_mask:0xf")
    for k in range(8):
        A(f"v_mul_f32 {v(56+k)}, {v(56+k)}, v45")
    for k in range(4):
        A(f"v_cvt_pk_bf16_f32 {v(48+k)}, {v(56+2*k)}, {v(56+2*k+1)}")
    A(f"s_lshl_b32 {s(sT0)}, {s(sW)}, 7")
    A(f"s_add_u32 {s(sT0)}, {s(sT0)}, {L_CC}")
    A(f"v_lshl_add_u32 v46, {v(vL)}, 4, {s(sT0)}")
    A(f"s_mov_b64 {s(sEX,2)}, exec")
    A(f"s_mov_b64 exec, 0xff")
    A(f"ds_write_b128 v46, v[48:51]")
    A(f"s_mov_b64 exec, {s(sEX,2)}")
    if not cfg.g_ts: stamp(A, cfg, 8)
    A(f"s_cmp_ge_u32 s2, 64")
    A(f"s_cbranch_scc1 L_Mdone")
    A(f"s_cmp_lg_u32 {s(sW)}, 0")
    A(f"s_cbranch_scc1 L_Mdone")
    vFD, vFC = 128, 152
    A(f"s_mul_i32 {s(sT0)}, s2, {NSLOT}")
    A(f"s_lshl_b32 {s(sT2)}, {s(sT0)}, 6")
    A(f"s_add_u32 {s(sT2)}, {s(sT2)}, {hex(WS_FD)}")
    A(f"v_lshl_add_u32 v40, {v(vL)}, 4, {s(sT2)}")
    A(f"s_lshl_b32 {s(sT2)}, {s(sT0)}, 3")
    A(f"s_add_u32 {s(sT2)}, {s(sT2)}, {hex(WS_FC)}")
    A(f"v_lshl_add_u32 v41, {v(vL)}, 3, {s(sT2)}")
    A(f"v_mov_b32 v47, 0x7ffffff0")
    NP = 32 if cfg.nomlp else NPROD
    A(f"v_lshrrev_b32 v44, 2, {v(vL)}")
    A(f"v_add_u32 v44, 32, v44")
    A(f"v_cmp_gt_u32 vcc, {NP}, v44")
    A(f"v_add_u32 v46, 2048, v40")
    A(f"v_cndmask_b32 v42, v47, v46, vcc")
    A(f"v_cmp_gt_u32 {s(sM2,2)}, {NP}, {v(vL)}")
    A(f"v_cndmask_b32 v41, v47, v41, {s(sM2,2)}")
    A(f"v_and_b32 v44, 3, {v(vN)}")
    A(f"v_mov_b32 v45, 0")
    for k, (j0, j1) in enumerate(((0,1),(2,3))):
        A(f"v_mov_b32 v46, 0x3f80")
        A(f"v_cmp_eq_u32 vcc, {j0}, v44")
        A(f"v_cndmask_b32 {v(vAF0+k)}, v45, v46, vcc")
        A(f"v_mov_b32 v46, 0x3f800000")
        A(f"v_cmp_eq_u32 vcc, {j1}, v44")
        A(f"v_cndmask_b32 {v(vAF0+k)}, {v(vAF0+k)}, v46, vcc")
    A(f"v_mov_b32 {v(vAF0+2)}, {v(vAF0)}")
    A(f"v_mov_b32 {v(vAF0+3)}, {v(vAF0+1)}")
    for k in range(4): A(f"v_mov_b32 {v(vFD+12+k)}, 0")
    A(f"s_lshl_b32 {s(sT3)}, s2, 6")
    A(f"v_lshl_add_u32 v57, {v(vL)}, 4, {s(sT3)}")
    if cfg.hop5_gate: wait_flag(A, FT, 1, 44)
    lab = poll_head(A, "L_hop5")
    for i in range(2):
        A(f"buffer_load_dwordx4 {v(vFD+4*i,4)}, v40, {s(sWS,4)}, 0 offen offset:{1024*i} sc1")
    A(f"buffer_load_dwordx4 {v(vFD+8,4)}, v42, {s(sWS,4)}, 0 offen sc1")
    A(f"buffer_load_dwordx2 {v(vFC,2)}, v41, {s(sWS,4)}, 0 offen sc1")
    A(f"s_waitcnt vmcnt(0)")
    sum_dwords(A, 44, range(vFD, vFD+12))
    A(f"v_sub_u32 v44, v44, {v(vFC)}")
    A(f"v_add_u32 v45, {s(sNONCE)}, {v(vFC)}")
    A(f"v_cmp_ne_u32 vcc, v45, {v(vFC+1)}")
    wave_sum_u32(A, 44, 46)
    A(f"s_and_b64 {s(sM1,2)}, vcc, {s(sM2,2)}")
    A(f"v_cmp_ne_u32 vcc, 0, v44")
    A(f"s_or_b64 {s(sM1,2)}, {s(sM1,2)}, vcc")
    poll_tail(A, lab, sM1, cfg.poll_sleep)
    savecnt(A, cfg, 5)
    stamp(A, cfg, 9)
    for p in range(2):
        w = vFD + 8*p
        A(f"v_swap_b32 {v(w+2)}, {v(w+4)}")
        A(f"v_swap_b32 {v(w+3)}, {v(w+5)}")
    for p in range(2):
        w = vFD + 8*p
        c0 = "0" if p == 0 else v(vQX,4); c1 = "0" if p == 0 else v(vQY,4)
        A(f"v_mfma_f32_16x16x32_bf16 {v(vQX,4)}, {v(vAF0,4)}, {v(w,4)}, {c0}")
        A(f"v_mfma_f32_16x16x32_bf16 {v(vQY,4)}, {v(vAF0,4)}, {v(w+4,4)}, {c1}")
    for d in ("row_ror:4", "row_ror:8"):
        for k in range(8):
            A(f"v_add_f32_dpp {v(vQX+k)}, {v(vQX+k)}, {v(vQX+k)} {d} row_mask:0xf bank_mask:0xf")
    for k in range(4):
        A(f"v_cvt_pk_bf16_f32 {v(48+k)}, {v(vQX+2*k)}, {v(vQX+2*k+1)}")
    A(f"s_mov_b64 exec, 0xf")
    A(f"buffer_store_dwordx4 v[48:51], v57, {s(sOUT,4)}, 0 offen")
    A(f"s_cmp_lg_u32 s2, 0")
    A(f"s_cbranch_scc1 L_Mdone")
    A(f"s_add_u32 {s(sT0)}, {s(sE)}, 1")
    A(f"v_mov_b32 v52, {s(sT0)}")
    A(f"v_mov_b32 v53, {hex(WS_E)}")
    A(f"s_mov_b64 exec, 1")
    A(f"buffer_store_dword v52, v53, {s(sWS,4)}, 0 offen sc1")
    A.label("L_Mdone")
    if cfg.ts:
        A(f"s_mov_b64 exec, -1")
        emit_ts(A, cfg)
    A(f"s_endpgm")
    A.label("L_Lpath")
    LSLEEP[0] = cfg.lsleep
    vGX, vGW = 64, 80
    vW1, vW2, vB1, vH = 128, 160, 192, 196
    A(f"s_sub_u32 {s(sW)}, {s(sW)}, 4")
    A(f"v_lshlrev_b32 v40, 4, {v(vL)}")
    A(f"v_mov_b32 v43, {hex(WS_E)}")
    if cfg.prefetch_code:
        A(f"s_cmp_lg_u32 {s(sW)}, 3")
        A(f"s_cbranch_scc1 L_nopf")
        A(f"s_getpc_b64 s[66:67]")
        A.label("L_pcref")
        A(f"s_sub_u32 s66, s66, (L_pcref-{KNAME})")
        A(f"s_subb_u32 s67, s67, 0")
        A(f"s_lshl_b32 {s(sT2)}, {s(sR)}, 10")
        A(f"v_lshl_add_u32 v44, {v(vL)}, 7, {s(sT2)}")
        A(f"v_cmp_gt_u32 vcc, (L_end-{KNAME}), v44")
        A(f"v_cmp_gt_u32 {s(sM3,2)}, 8, {v(vL)}")
        A(f"s_and_b64 vcc, vcc, {s(sM3,2)}")
        A(f"s_and_saveexec_b64 {s(sEX,2)}, vcc")
        A(f"s_cbranch_execz L_pfskip")
        A(f"global_load_dword v63, v44, s[66:67]")
        A.label("L_pfskip")
        A(f"s_mov_b64 exec, {s(sEX,2)}")
        A.label("L_nopf")
    if cfg.tlb:
        A(f"s_cmp_lg_u32 {s(sW)}, 2")
        A(f"s_cbranch_scc1 L_notlb")
        st = cfg.tlb
        A(f"v_lshlrev_b32 v44, 16, {v(vL)}")
        A(f"v_add_u32 v45, {hex(WS_OP)}, v44")
        A(f"buffer_load_dword v62, v45, {s(sWS,4)}, 0 offen")
        A(f"v_lshlrev_b32 v45, 15, {v(vL)}")
        A(f"buffer_load_dword v62, v45, {s(sWS,4)}, 0 offen")
        A(f"v_add_u32 v45, {hex(LOCAL_DELTA)}, v45")
        A(f"buffer_load_dword v62, v45, {s(sWS,4)}, 0 offen")
        A(f"buffer_load_dword v62, v44, {s(sWUV,4)}, 0 offen")
        A(f"buffer_load_dword v62, v44, {s(sWO,4)}, 0 offen")
        A(f"buffer_load_dword v62, v44, {s(sW1,4)}, 0 offen")
        A(f"buffer_load_dword v62, v44, {s(sW2,4)}, 0 offen")
        A(f"buffer_load_dword v62, v44, {s(sOUT,4)}, 0 offen")
        A(f"buffer_load_dword v62, v44, {s(sGW,4)}, 0 offen")
        A(f"buffer_load_dword v62, v44, {s(sB1,4)}, 0 offen")
        A.label("L_notlb")
    if cfg.tail_early:
        make_sels(A, vN, vSEL, 44)
        A(f"s_cmp_eq_u32 {s(sW)}, 0")
        A(f"s_cbranch_scc1 L_tail")
        A(f"s_sub_u32 {s(sT2)}, {s(sW)}, 1")
        A(f"s_mul_i32 {s(sT2)}, {s(sT2)}, 43")
        A(f"s_add_u32 {s(sT3)}, {s(sT2)}, 43")
        A(f"s_min_u32 {s(sT3)}, {s(sT3)}, 128")
        A(f"s_lshl_b32 {s(sT0)}, {s(sB)}, 12")
        A(f"s_lshl_b32 {s(sT1)}, {s(sKC)}, 7")
        A(f"s_add_u32 {s(sT0)}, {s(sT0)}, {s(sT1)}")
        A(f"s_add_u32 {s(sT0)}, {s(sT0)}, {s(sT2)}")
        A(f"s_lshl_b32 {s(sT0)}, {s(sT0)}, 10")
        A(f"s_mul_i32 {s(sT1)}, {s(sT2)}, {PITCH}")
        A(f"s_mov_b32 m0, {s(sT1)}")
        A(f"s_mov_b32 {s(sCNT)}, {s(sT2)}")
    else:
        A(f"s_lshl_b32 {s(sT0)}, {s(sB)}, 12")
        A(f"s_lshl_b32 {s(sT1)}, {s(sKC)}, 7")
        A(f"s_add_u32 {s(sT0)}, {s(sT0)}, {s(sT1)}")
        A(f"s_lshl_b32 {s(sT1)}, {s(sW)}, 5")
        A(f"s_add_u32 {s(sT0)}, {s(sT0)}, {s(sT1)}")
        A(f"s_lshl_b32 {s(sT0)}, {s(sT0)}, 10")
        A(f"s_mul_i32 {s(sT1)}, {s(sW)}, {32*PITCH}")
        A(f"s_mov_b32 m0, {s(sT1)}")
        A(f"s_mov_b32 {s(sCNT)}, 0")
    if cfg.l_delay: wait_flag(A, FW, 1, 45)
    if cfg.kvwin0:
        A.label("L_dma0")
        A(f"s_waitcnt vmcnt({cfg.kvwin0-1})")
        A(f"buffer_load_dwordx4 v40, {s(sKV,4)}, {s(sT0)} offen{NTKV} lds")
        A(f"s_add_u32 m0, m0, {PITCH}")
        A(f"s_add_u32 {s(sT0)}, {s(sT0)}, 1024")
        A(f"s_add_u32 {s(sCNT)}, {s(sCNT)}, 1")
        A(f"s_cmp_lt_u32 {s(sCNT)}, {cfg.kvn0}")
        A(f"s_cbranch_scc1 L_dma0")
    A.label("L_dma")
    if cfg.kvwin < 32: A(f"s_waitcnt vmcnt({cfg.kvwin-1})")
    A(f"buffer_load_dwordx4 v40, {s(sKV,4)}, {s(sT0)} offen{NTKV} lds")
    A(f"s_add_u32 m0, m0, {PITCH}")
    A(f"s_add_u32 {s(sT0)}, {s(sT0)}, 1024")
    A(f"s_add_u32 {s(sCNT)}, {s(sCNT)}, 1")
    A(f"s_cmp_lt_u32 {s(sCNT)}, {s(sT3) if cfg.tail_early else 32}")
    A(f"s_cbranch_scc1 L_dma")
    arrive(A, FKI, 45)
    stamp(A, cfg, 2, L=True)
    if not cfg.tail_early: make_sels(A, vN, vSEL, 44)
    if cfg.pw_op:
        A(f"s_cmp_lg_u32 {s(sW)}, 1")
        A(f"s_cbranch_scc1 L_nopw3")
        A(f"s_lshl_b32 {s(sT0)}, {s(sHG)}, 4")
        A(f"v_add_u32 v48, {s(sT0)}, {v(vN)}")
        A(f"v_lshlrev_b32 v48, 10, v48")
        A(f"s_lshl_b32 {s(sT1)}, {s(sB)}, 5")
        A(f"s_add_u32 {s(sT0)}, {s(sT1)}, {s(sKC)}")
        A(f"v_add_u32 v48, {s(sT0)}, v48")
        A(f"v_lshlrev_b32 v49, 4, {v(vS)}")
        A(f"v_lshl_add_u32 v49, v48, 7, v49")
        A(f"v_add_u32 v49, {hex(WS_OP)}, v49")
        A(f"v_lshl_add_u32 v48, {v(vS)}, 7, v48")
        A(f"v_lshlrev_b32 v48, 4, v48")
        A(f"v_add_u32 v48, {hex(WS_ST)}, v48")
        for k in range(4): A(f"v_mov_b32 {v(52+k)}, 0")
        A(f"s_mov_b32 {s(sT2)}, 0")
        for q in range(8):
            for u in range(2):
                A(f"buffer_store_dwordx4 v[52:55], v49, {s(sWS,4)}, {s(sT2)} offen offset:{64*u} sc1")
            if q < 7: A(f"s_add_u32 {s(sT2)}, {s(sT2)}, 16384")
        A(f"s_mov_b32 {s(sT2)}, 0")
        A(f"s_mov_b32 exec_hi, 0")
        for mw in range(4):
            A(f"buffer_store_dwordx4 v[52:55], v48, {s(sWS,4)}, {s(sT2)} offen sc1")
            if mw < 3: A(f"s_add_u32 {s(sT2)}, {s(sT2)}, 4096")
        A(f"s_mov_b64 exec, -1")
        A(f"s_waitcnt vmcnt(20)")
        arrive(A, FKV, 45)
        A(f"s_waitcnt vmcnt(0)")
        arrive(A, FP3, 45)
        A(f"s_branch L_gate")
        A.label("L_nopw3")
    A(f"s_waitcnt vmcnt(0)")
    arrive(A, FKV, 45)
    stamp(A, cfg, 3, L=True)
    if cfg.exp: A(f"s_branch L_Ldone")
    A(f"s_cmp_eq_u32 {s(sW)}, 0")
    A(f"s_cbranch_scc1 L_tail")
    A(f"s_cmp_lg_u32 {s(sW)}, 1")
    A(f"s_cbranch_scc1 L_mlpw")
    A.label("L_gate")
    for b in range(4):
        A(f"buffer_load_dwordx4 {v(vGX+4*b,4)}, v40, {s(sX,4)}, 0 offen offset:{1024*b}")
    A(f"buffer_load_dwordx4 {v(vGW,4)}, v40, {s(sGW,4)}, 0 offen")
    for b in range(4):
        A(f"v_mov_b32 {v(44+b)}, 0")
    A(f"s_waitcnt vmcnt(0)")
    for k in range(4):
        for b in range(4):
            A(f"v_dot2_f32_bf16 {v(44+b)}, {v(vGX+4*b+k)}, {v(vGW+k)}, {v(44+b)}")
    A("s_nop 3")
    for d in ("quad_perm:[1,0,3,2]", "quad_perm:[2,3,0,1]", "row_half_mirror", "row_mirror"):
        for b in range(4):
            A(f"v_add_f32_dpp {v(44+b)}, {v(44+b)}, {v(44+b)} {d} row_mask:0xf bank_mask:0xf")
    xreduce_rows2(A, "v_add_f32", 44, 48, "v_add_f32", 45, 49)
    xreduce_rows2(A, "v_add_f32", 46, 48, "v_add_f32", 47, 49)
    A(f"v_cmp_eq_u32 vcc, 1, {v(vS)}")
    A(f"v_cndmask_b32 v44, v44, v45, vcc")
    A(f"v_cmp_eq_u32 vcc, 2, {v(vS)}")
    A(f"v_cndmask_b32 v44, v44, v46, vcc")
    A(f"v_cmp_eq_u32 vcc, 3, {v(vS)}")
    A(f"v_cndmask_b32 v44, v44, v47, vcc")
    A(f"s_mov_b32 {s(sT0)}, {hex(f2u(-LOG2E))}")
    A(f"v_mul_f32 v44, {s(sT0)}, v44")
    A(f"v_exp_f32 v44, v44")
    A(f"v_add_f32 v44, 1.0, v44")
    A(f"v_rcp_f32 v58, v44")
    A(f"v_lshlrev_b32 v45, 2, {v(vS)}")
    A(f"v_add_u32 v45, {L_G}, v45")
    A(f"ds_write_b32 v45, v58")
    arrive(A, FG, 45)
    A(f"s_branch L_Ldone")
    A.label("L_mlpw")
    A(f"s_cmp_lg_u32 {s(sW)}, 2")
    A(f"s_cbranch_scc1 L_Ldone")
    if cfg.nomlp: A(f"s_branch L_Ldone")
    sNS, sJM, sMHJ = sT3, sT4, sT5
    A(f"s_lshr_b32 {s(sT0)}, {s(sR)}, 3")
    A(f"s_lshl_b32 {s(sT0)}, {s(sT0)}, 3")
    A(f"s_add_u32 {s(sNS)}, {s(sT0)}, {s(sXCD)}")
    A(f"s_cmp_ge_u32 {s(sNS)}, {NMG}")
    A(f"s_cbranch_scc1 L_Ldone")
    A(f"s_and_b32 {s(sJM)}, {s(sR)}, 7")
    A(f"s_lshl_b32 {s(sMHJ)}, {s(sNS)}, 3")
    A(f"s_add_u32 {s(sMHJ)}, {s(sMHJ)}, {s(sJM)}")
    vMX, vMW1, vMW2, vMB1 = 8, 64, 128, 60
    vONE, vG1, vCK1 = 192, 208, 240
    vPUB, vCPUB, vGA, vGB, vGC = 52, 53, 54, 55, 56
    A(f"v_lshrrev_b32 v41, 2, {v(vN)}")
    A(f"v_lshlrev_b32 v41, 10, v41")
    A(f"v_lshl_add_u32 v41, {v(vS)}, 5, v41")
    A(f"s_lshl_b32 {s(sT0)}, {s(sJM)}, 7")
    A(f"v_add_u32 v41, {s(sT0)}, v41")
    A(f"s_lshl_b32 {s(sT0)}, {s(sJM)}, 6")
    A(f"v_lshl_add_u32 v42, {v(vS)}, 4, {s(sT0)}")
    A(f"s_movk_i32 {s(sT1)}, 2752")
    A(f"v_mul_lo_u32 v42, v42, {s(sT1)}")
    A(f"s_lshl_b32 {s(sT0)}, {s(sNS)}, 8")
    A(f"v_lshl_add_u32 v44, {v(vN)}, 4, {s(sT0)}")
    A(f"v_add_u32 v42, v42, v44")
    A(f"v_cmp_gt_u32 vcc, 2752, v44")
    A(f"v_mov_b32 v45, 0x7ffffff0")
    A(f"v_cndmask_b32 v42, v45, v42, vcc")
    A(f"v_cndmask_b32 v44, v45, v44, vcc")
    A(f"s_lshl_b32 {s(sT0)}, {s(sNS)}, 17")
    A(f"s_lshl_b32 {s(sT1)}, {s(sJM)}, 7")
    A(f"s_add_u32 {s(sT0)}, {s(sT0)}, {s(sT1)}")
    A(f"v_lshlrev_b32 v46, 15, {v(vS)}")
    A(f"v_lshl_add_u32 v46, {v(vN)}, 3, v46")
    A(f"v_add_u32 v48, {s(sT0)}, v46")
    if cfg.mlp_w1_flag == 'FH3': wait_flag(A, FCC, 1, 46)
    elif cfg.mlp_w1_flag: wait_flag(A, globals()[cfg.mlp_w1_flag], 4, 46)
    stamp(A, cfg, 4, L=True)
    A(f"buffer_load_dword v40, v43, {s(sWS,4)}, 0 offen sc1")
    for k in range(2):
        A(f"buffer_load_dwordx4 {v(vMX+4*k,4)}, v41, {s(sX,4)}, 0 offen offset:{16*k}")
    A(f"buffer_load_dwordx4 {v(vMB1,4)}, v44, {s(sB1,4)}, 0 offen")
    A(f"s_mov_b32 {s(sT2)}, 0")
    for k in range(16):
        A(f"buffer_load_dwordx4 {v(vMW1+4*k,4)}, v42, {s(sW1,4)}, {s(sT2)} offen{NT}")
        if k < 15: A(f"s_add_u32 {s(sT2)}, {s(sT2)}, 2752")
    def w2_loads():
        A(f"s_mov_b32 {s(sT2)}, 0")
        for k in range(32):
            A(f"buffer_load_dwordx2 {v(vMW2+2*k,2)}, v43, {s(sW2,4)}, {s(sT2)} offen offset:{1024*(k%4)}{NT}")
            if k % 4 == 3 and k < 31: A(f"s_add_u32 {s(sT2)}, {s(sT2)}, 4096")
    A(f"v_mov_b32 v43, v48")
    NW2 = 0 if cfg.mlp_w2 else 32
    if not cfg.mlp_w2: w2_loads()
    make_ones(A, vN, vONE, 46)
    partial_offsets(A, vL, vN, vS, WS_H1, WS_H1C, vPUB, vCPUB, vGA, vGB, vGC, 46, sMHJ, sNS)
    A(f"v_lshrrev_b32 v46, 3, {v(vN)}")
    A(f"v_lshl_add_u32 v46, {v(vS)}, 4, v46")
    A(f"s_lshl_b32 {s(sT0)}, {s(sJM)}, 1")
    A(f"v_add_u32 v46, {s(sT0)}, v46")
    A(f"s_movk_i32 {s(sT1)}, {NSLOT}")
    A(f"v_mul_lo_u32 v46, v46, {s(sT1)}")
    A(f"s_add_u32 {s(sT0)}, {s(sNS)}, 32")
    A(f"v_add_u32 v46, {s(sT0)}, v46")
    A(f"v_lshlrev_b32 v58, 3, v46")
    A(f"v_add_u32 v58, {hex(WS_FC)}, v58")
    A(f"v_and_b32 v49, 7, {v(vN)}")
    A(f"v_lshlrev_b32 v49, 3, v49")
    A(f"v_lshl_add_u32 v57, v46, 6, v49")
    A(f"v_add_u32 v57, {hex(WS_FD)}, v57")
    A(f"v_lshlrev_b32 v41, 4, {v(vL)}")
    A(f"v_add_u32 v41, {L_HR}, v41")
    A(f"v_lshrrev_b32 v42, 2, {v(vN)}")
    A(f"v_lshlrev_b32 v42, 8, v42")
    A(f"v_lshl_add_u32 v42, {v(vS)}, 6, v42")
    A(f"v_add_u32 v42, {L_HR}, v42")
    A(f"s_waitcnt vmcnt({16+NW2})")
    nonce_from(A, 40)
    sel_gemm(A, 8, vMX, vSEL, 24, 28, vMW1, 32, 36, swap=True, wwait=lambda t: A(f"s_waitcnt vmcnt({NW2 + 14 - 2*t})"))
    publish_partial(A, 32, 36, 242, vPUB, vCPUB, 46, cfg.local_st, cfg.dual, cfg.defer)
    stamp(A, cfg, 5, L=True)
    if cfg.hopm_ack: A(f"s_waitcnt vmcnt(0)")
    gather_reduce(A, cfg, "L_hopm", vG1, vCK1, vONE, vGA, vGB, vGC, 32, 36, 46, 242)
    stamp(A, cfg, 6, L=True)
    if cfg.mlp_w2 == 'FH3': wait_flag(A, FCC, 1, 46)
    if cfg.mlp_w2 == 'FPB': wait_flag(A, FPB, 4, 46)
    if cfg.mlp_w2: w2_loads()
    vH, vHa, vHn, vHd = 32, 208, 216, 224
    for e in range(8):
        r = vMB1 + e//2
        if e % 2 == 0: A(f"v_lshlrev_b32 {v(vHa+e)}, 16, {v(r)}")
        else: A(f"v_and_b32 {v(vHa+e)}, 0xffff0000, {v(r)}")
    for e in range(8):
        A(f"v_add_f32 {v(vH+e)}, {v(vH+e)}, {v(vHa+e)}")
    A(f"s_mov_b32 {s(sT0)}, {hex(f2u(-LOG2E))}")
    for e in range(8):
        A(f"v_mul_f32 {v(vHa+e)}, {s(sT0)}, abs({v(vH+e)})")
    for e in range(8):
        A(f"v_exp_f32 {v(vHa+e)}, {v(vHa+e)}")
    for e in range(8):
        a_, h_, n_, d_ = vHa+e, vH+e, vHn+e, vHd+e
        A(f"v_cmp_lt_f32 vcc, 0, {v(h_)}")
        A(f"v_mul_f32 {v(d_)}, {v(a_)}, {v(a_)}")
        A(f"v_cndmask_b32 {v(n_)}, {v(d_)}, 1.0, vcc")
        A(f"v_fma_f32 {v(n_)}, 2.0, {v(a_)}, {v(n_)}")
        A(f"v_cndmask_b32 {v(d_)}, 1.0, {v(d_)}, vcc")
        A(f"v_fma_f32 {v(d_)}, 2.0, {v(d_)}, {v(n_)}")
        A(f"v_rcp_f32 {v(d_)}, {v(d_)}")
        A(f"v_mul_f32 {v(n_)}, {v(n_)}, {v(h_)}")
        A(f"v_mul_f32 {v(h_)}, {v(n_)}, {v(d_)}")
    for k in range(4):
        A(f"v_cvt_pk_bf16_f32 {v(16+k)}, {v(vH+2*k)}, {v(vH+2*k+1)}")
    A(f"ds_write_b128 v41, v[16:19]")
    for k in range(4):
        A(f"ds_read_b128 {v(8+4*k,4)}, v42 offset:{16*k}")
    A(f"v_lshlrev_b32 v45, 2, {v(vS)}")
    A(f"v_add_u32 v45, {L_G}, v45")
    wait_flag(A, FG, 1, 46, lambda: A(f"ds_read_b32 v59, v45"))
    if cfg.mlp_w2: A(f"s_waitcnt vmcnt(0)")
    sel_gemm(A, 16, 8, vSEL, 24, 28, vMW2, 32)
    A(f"v_sub_f32 v59, 1.0, v59")
    for k in range(4):
        A(f"v_mul_f32 {v(32+k)}, {v(32+k)}, v59")
    A(f"v_cvt_pk_bf16_f32 v16, v32, v33")
    A(f"v_cvt_pk_bf16_f32 v17, v34, v35")
    A(f"buffer_store_dwordx2 v[16:17], v57, {s(sWS,4)}, 0 offen sc1")
    A(f"v_add_u32 v46, v16, v17")
    for d in ("quad_perm:[1,0,3,2]", "quad_perm:[2,3,0,1]", "row_half_mirror"):
        A(f"v_add_u32_dpp v46, v46, v46 {d} row_mask:0xf bank_mask:0xf")
    A(f"v_add_u32 v47, {s(sNONCE)}, v46")
    A(f"s_mov_b32 exec_lo, 0x01010101")
    A(f"s_mov_b32 exec_hi, 0x01010101")
    A(f"buffer_store_dwordx2 v[46:47], v58, {s(sWS,4)}, 0 offen sc1")
    A(f"s_mov_b64 exec, -1")
    late_copy(A, cfg, 242, vPUB, vCPUB)
    stamp(A, cfg, 7, L=True)
    A(f"s_branch L_Ldone")
    A.label("L_tail")
    vWUV, vWO = 64, 128
    A(f"s_lshl_b32 {s(sT0)}, {s(sJ)}, 19")
    A(f"s_lshl_b32 {s(sT1)}, {s(sH)}, 8")
    A(f"s_add_u32 {s(sT0)}, {s(sT0)}, {s(sT1)}")
    A(f"v_lshlrev_b32 v41, 17, {v(vS)}")
    A(f"v_lshl_add_u32 v41, {v(vN)}, 4, v41")
    A(f"v_add_u32 v41, {s(sT0)}, v41")
    A(f"s_lshl_b32 {s(sT0)}, {s(sH)}, 17")
    A(f"s_lshl_b32 {s(sT1)}, {s(sJ)}, 7")
    A(f"s_add_u32 {s(sT0)}, {s(sT0)}, {s(sT1)}")
    A(f"v_lshlrev_b32 v42, 15, {v(vS)}")
    A(f"v_lshl_add_u32 v42, {v(vN)}, 3, v42")
    A(f"v_add_u32 v42, {s(sT0)}, v42")
    A(f"buffer_load_dword v61, v43, {s(sWS,4)}, 0 offen sc1")
    vPUB, vCPUB, vGA, vGB, vGC = 52, 53, 54, 55, 56
    partial_offsets(A, vL, vN, vS, WS_C1, WS_C1C, vPUB, vCPUB, vGA, vGB, vGC, 46)
    A(f"v_lshrrev_b32 v46, 3, {v(vN)}")
    A(f"v_lshl_add_u32 v46, {v(vS)}, 4, v46")
    A(f"s_lshl_b32 {s(sT0)}, {s(sJ)}, 1")
    A(f"v_add_u32 v46, {s(sT0)}, v46")
    A(f"s_movk_i32 {s(sT1)}, {NSLOT}")
    A(f"v_mul_lo_u32 v46, v46, {s(sT1)}")
    A(f"v_add_u32 v46, {s(sH)}, v46")
    A(f"v_lshlrev_b32 v60, 3, v46")
    A(f"v_add_u32 v60, {hex(WS_FC)}, v60")
    A(f"v_and_b32 v47, 7, {v(vN)}")
    A(f"v_lshlrev_b32 v47, 3, v47")
    A(f"v_lshl_add_u32 v59, v46, 6, v47")
    A(f"v_add_u32 v59, {hex(WS_FD)}, v59")
    if cfg.tail_early:
        if cfg.tail_delay: wait_flag(A, globals()[cfg.tail_delay], 1, 45)
    elif cfg.tail_flag: wait_flag(A, globals()[cfg.tail_flag], 4, 45)
    A(f"s_mov_b32 {s(sT2)}, 0")
    for k in range(16):
        if cfg.tailwin and k >= cfg.tailwin: A(f"s_waitcnt vmcnt({cfg.tailwin-1})")
        A(f"buffer_load_dwordx4 {v(vWUV+4*k,4)}, v41, {s(sWUV,4)}, {s(sT2)} offen{NT}")
        if k < 15: A(f"s_add_u32 {s(sT2)}, {s(sT2)}, 8192")
    def wo_loads():
        A(f"s_mov_b32 {s(sT2)}, 0")
        for k in range(32):
            if cfg.tailwin2 and k % 2 == 0: A(f"s_waitcnt vmcnt({cfg.tailwin2-2})")
            A(f"buffer_load_dwordx2 {v(vWO+2*k,2)}, v62, {s(sWO,4)}, {s(sT2)} offen offset:{1024*(k%4)}{NT}")
            if k % 4 == 3 and k < 31: A(f"s_add_u32 {s(sT2)}, {s(sT2)}, 4096")
    A(f"v_mov_b32 v62, v42")
    if not cfg.wo_flag: wo_loads()
    vONE, vG1, vCK1 = 192, 208, 240
    A(f"s_waitcnt vmcnt({16 if cfg.wo_flag else 48})")
    nonce_from(A, 61)
    A(f"v_lshlrev_b32 v45, 2, {v(vS)}")
    A(f"v_add_u32 v45, {L_G}, v45")
    wait_flag(A, FG, 1, 46, lambda: A(f"ds_read_b32 v58, v45"))
    make_ones(A, vN, vONE, 46)
    A(f"v_lshrrev_b32 v44, 2, {v(vN)}")
    A(f"v_lshlrev_b32 v42, 7, v44")
    A(f"v_lshl_add_u32 v42, {v(vS)}, 5, v42")
    A(f"v_add_u32 v42, {L_CC}, v42")
    A(f"v_lshlrev_b32 v43, 4, {v(vL)}")
    A(f"v_add_u32 v43, {L_CT}, v43")
    A(f"v_lshlrev_b32 v44, 8, v44")
    A(f"v_lshl_add_u32 v44, {v(vS)}, 6, v44")
    A(f"v_add_u32 v44, {L_CT}, v44")
    A(f"s_waitcnt vmcnt({0 if cfg.wo_flag else 32})")
    for t in range(8):
        A(f"v_swap_b32 {v(vWUV+8*t+2)}, {v(vWUV+8*t+4)}")
        A(f"v_swap_b32 {v(vWUV+8*t+3)}, {v(vWUV+8*t+5)}")
    if cfg.wo_flag == 'FPB':
        wait_flag(A, FPB, 4, 45)
        wo_loads()
    if cfg.wo_flag == 'FH3':
        wait_flag(A, FCC, 1, 45)
        wo_loads()
    if cfg.wo_flag == 'ACK':
        wait_flag(A, FP2, 4, 45)
        wo_loads()
    if not cfg.wo_flag: A(f"s_waitcnt vmcnt(0)")
    stamp(A, cfg, 4, L=True)
    vCP = 8
    def _rd():
        A(f"ds_read_b128 {v(vCP,4)}, v42")
        A(f"ds_read_b128 {v(vCP+4,4)}, v42 offset:16")
    lab = A.newlabel("L_cc"); done = A.newlabel("L_ccd")
    A(f"s_mov_b32 {s(sCNT2)}, 0")
    A.label(lab)
    _rd()
    A(f"s_waitcnt lgkmcnt(0)")
    A(f"v_max3_u32 v45, {v(vCP)}, {v(vCP+1)}, {v(vCP+2)}")
    A(f"v_max3_u32 v46, {v(vCP+3)}, {v(vCP+4)}, {v(vCP+5)}")
    A(f"v_max3_u32 v45, v45, {v(vCP+6)}, {v(vCP+7)}")
    A(f"v_max_u32 v45, v45, v46")
    A(f"v_cmp_eq_u32 vcc, -1, v45")
    A(f"s_cbranch_vccz {done}")
    if cfg.ccsleep: A(f"s_sleep {cfg.ccsleep}")
    A(f"s_add_u32 {s(sCNT2)}, {s(sCNT2)}, 1")
    A(f"s_cmp_lt_u32 {s(sCNT2)}, 4000000")
    A(f"s_cbranch_scc1 {lab}")
    A.label(done)
    stamp(A, cfg, 5, L=True)
    if cfg.wo_flag == 'FCC': wo_loads()
    sel_gemm(A, 8, vCP, vSEL, 24, 28, vWUV, 32, 36)
    publish_partial(A, 32, 36, 242, vPUB, vCPUB, 46, cfg.local_st, cfg.dual, cfg.defer)
    stamp(A, cfg, 6, L=True)
    if cfg.hop4_ack: A(f"s_waitcnt vmcnt(0)")
    gather_reduce(A, cfg, "L_hop4", vG1, vCK1, vONE, vGA, vGB, vGC, 32, 36, 46, 242)
    savecnt(A, cfg, 0)
    stamp(A, cfg, 7, L=True)
    A(f"v_cvt_pk_bf16_f32 v16, v32, v33")
    A(f"v_cvt_pk_bf16_f32 v17, v34, v35")
    A(f"v_cvt_pk_bf16_f32 v18, v36, v37")
    A(f"v_cvt_pk_bf16_f32 v19, v38, v39")
    A(f"ds_write_b128 v43, v[16:19]")
    vXP2 = 8
    for k in range(4):
        A(f"ds_read_b128 {v(vXP2+4*k,4)}, v44 offset:{16*k}")
    def _x(t):
        if t % 4 == 0: A(f"s_waitcnt lgkmcnt({3-t//4})")
    sel_gemm(A, 16, vXP2, vSEL, 24, 28, vWO, 32, xwait=_x)
    for k in range(4):
        A(f"v_mul_f32 {v(32+k)}, {v(32+k)}, v58")
    A(f"v_cvt_pk_bf16_f32 v16, v32, v33")
    A(f"v_cvt_pk_bf16_f32 v17, v34, v35")
    if cfg.pw_fd: wait_flag(A, FP2, 1, 45)
    A(f"buffer_store_dwordx2 v[16:17], v59, {s(sWS,4)}, 0 offen sc1")
    A(f"v_add_u32 v46, v16, v17")
    for d in ("quad_perm:[1,0,3,2]", "quad_perm:[2,3,0,1]", "row_half_mirror"):
        A(f"v_add_u32_dpp v46, v46, v46 {d} row_mask:0xf bank_mask:0xf")
    A(f"v_add_u32 v47, {s(sNONCE)}, v46")
    A(f"s_mov_b32 exec_lo, 0x01010101")
    A(f"s_mov_b32 exec_hi, 0x01010101")
    A(f"buffer_store_dwordx2 v[46:47], v60, {s(sWS,4)}, 0 offen sc1")
    A(f"s_mov_b64 exec, -1")
    if cfg.hop5_gate == 2:
        A(f"s_waitcnt vmcnt(0)")
        arrive(A, FT, 45)
    late_copy(A, cfg, 242, vPUB, vCPUB)
    if False:
        if cfg.hop5_gate == 2: A(f"s_waitcnt vmcnt(0)")
        arrive(A, FT, 45)
    A.label("L_Ldone")
    if cfg.ts:
        stamp(A, cfg, 1, L=True)
        emit_ts(A, cfg, L=True)
    A.label("L_exit")
    A(f"s_endpgm")
    A.label("L_end")
    lines = hazard.fix(A.l, verbose=True)
    return "\n".join(lines) + "\n"

def emit_ts(A, cfg, L=False):
    A(f"s_waitcnt lgkmcnt(0) vmcnt(0)")
    A(f"s_mov_b64 exec, 0x3ff")
    A(f"v_mbcnt_lo_u32_b32 v0, -1, 0")
    A(f"v_mov_b32 v1, 0")
    for k in range(10):
        A(f"v_mov_b32 v2, {s(sTS+2*k)}")
        A(f"v_cmp_eq_u32 vcc, {k}, v0")
        A(f"v_cndmask_b32 v1, v1, v2, vcc")
    if cfg.cnts:
        A(f"s_mov_b64 exec, 0xffff")
        for k in range(6):
            A(f"v_mov_b32 v2, {s(CNTREG[k])}")
            A(f"v_cmp_eq_u32 vcc, {10+k}, v0")
            A(f"v_cndmask_b32 v1, v1, v2, vcc")
    A(f"s_lshl_b32 {s(sT0)}, s2, 3")
    A(f"s_add_u32 {s(sT0)}, {s(sT0)}, {s(sW)}")
    if L: A(f"s_add_u32 {s(sT0)}, {s(sT0)}, 4")
    A(f"s_lshl_b32 {s(sT0)}, {s(sT0)}, 6")
    A(f"s_add_u32 {s(sT0)}, {s(sT0)}, {hex(WS_DBG)}")
    A(f"v_lshl_add_u32 v2, v0, 2, {s(sT0)}")
    A(f"buffer_store_dword v1, v2, {s(sWS,4)}, 0 offen")

def build(cfg, path):
    body = gen(cfg)
    txt = wrap([(KNAME, body, 256, 102, 256)], [(KNAME, (256,1,1), (512,1,1), LDS_SIZE)])
    open(path, "w").write(txt)
    return path

if __name__ == "__main__":
    import build as B
    cfg = Cfg()
    for a_ in sys.argv[2:]:
        k, val = a_.split("=")
        setattr(cfg, k, eval(val))
    p = build(cfg, sys.argv[1])
    B.build(p, p.replace(".s", ".co"))
    import subprocess
    print(subprocess.run(f"llvm-objdump -d --mcpu=gfx950 {p.replace('.s','.co')} | grep -c '//' ; llvm-readelf -S {p.replace('.s','.co')} | grep -E 'text'", shell=True, capture_output=True, text=True).stdout)
```

```python
import sys; sys.path.insert(0, "dev")
from asmlib import *
import hazard

WS_E = 0
WS_Q1, WS_Q1C = 0x10000, 0x50000
WS_QA, WS_QC = 0x60000, 0x80000
WS_C1, WS_C1C = 0x90000, 0xD0000
WS_FD, WS_FC = 0xE0000, 0x130000
WS_H1, WS_H1C = 0x1C0000, 0x1E0000
WS_ST, WS_OP, WS_DBG = 0x140000, 0x200000, 0x800000
import os
WSBASE = int(os.environ.get('WSBASE', '0'), 0)
for _n in [k for k in list(globals()) if k.startswith('WS_')]: globals()[_n] += WSBASE
PITCH = 1056
L_KV = 0
L_QL = 128 * PITCH
L_MISC = L_QL + 16 * PITCH
L_QB = L_MISC
L_MX = L_MISC + 1024
L_LS = L_MISC + 1280
L_G  = L_MISC + 1536
L_FL = L_MISC + 1600
L_PB = L_MISC + 2048
L_CC = L_MISC + 6144
L_HR = L_MISC + 6656
L_CT = L_MISC + 8704
FKI, FKV, F3, FH2, FT, FPB, FCC, FP1, FP2, FP3, FW, FG = range(12)
LDS_SIZE = L_MISC + 9728
NPROD = 43
NSLOT = 48
NMG = 11
MLP0 = 64
NMLP = 43
HASH_K, HASH_C = 0x9E3779B1, 0x7F4A7C15
SCALE = (128 ** -0.5) * 1.4426950408889634
LOG2E = 1.4426950408889634

sX, sKV, sWQ, sWUK, sWUV, sWO, sW1, sB1, sW2, sGW, sOUT, sWS = 8, 12, 16, 20, 24, 28, 32, 36, 40, 44, 48, 52
sW, sXCD, sR, sHG, sJ, sH, sB, sKC, sNONCE, sE = 56, 57, 58, 59, 60, 61, 62, 63, 64, 65
sT0, sT1, sT2, sT3, sT4, sT5 = 66, 67, 68, 69, 70, 71
sCNT = 72
sCNT2 = 73
sEX = 74
sM0 = 76
sM1 = 78
sTS = 80
sM2, sM3 = 4, 6
CNTREG = [81, 83, 85, 87, 89, 91]
sHJ = 100
sFB, sDELTA = 101, 3
LOCAL_DELTA = 0x600000
LOCAL_TRIES = 8
POLL_MAX = 20000

def f2u(x):
    import struct
    return struct.unpack("<I", struct.pack("<f", x))[0]

class Cfg:
    nt_w = True
    ts = False
    tsmask = 0x3ff
    prio = True
    wait_kv_first = False
    l_after_m = False
    nt_kv = True
    nt_wq = True
    nt_tail = True
    poll_sleep = 0
    early = False
    cnts = False
    tail_after_f3 = True
    kvwin = 7
    kvwin0 = 0
    kvn0 = 8
    l_delay = True
    mlpwin1 = 16
    mlpwin2 = 6
    two_stage = False
    exp = ''
    pw = False
    pw_qa = False
    pw_fd = False
    nomlp = False
    mlp_split = True
    mlp_w1_flag = 'FPB'
    tail_flag = 'F3'
    wo_flag = 'FH3'
    rot = True
    tailwin = 0
    two3 = False
    hop3_ack = 2
    g_ts = False
    prio_tail = False
    prio_mlp = False
    perm = None
    kvpre = False
    lsleep = 0
    ccsleep = 0
    pad = 0
    padm = 0
    mlp_w2 = None
    hop4_ack = False
    hop1_ack = False
    hopm_ack = False
    hop5_gate = 2
    hop2_gate = True
    hop3_sleep = 0
    hop2_ack = False
    hop5_tags = False
    pubts = False
    tlb = 0
    tail_early = False
    tail_delay = None
    addr_early = True
    fw_at = 'pub'
    tailwin2 = 0
    mlp_w2_flag = 'FCC'
    local_st = 'sc1'
    dual = True
    defer = True
    local_ld = 'sc1'
    pw_op = False
    no_l = False
    stop = None
    prefetch_code = True

def srd(A, sr, karg_off, size):
    A(f"s_load_dwordx2 {s(sr,2)}, s[0:1], {karg_off}")
def srd_fin(A, sr, size):
    A(f"s_mov_b32 {s(sr+2)}, {hex(size)}")
    A(f"s_mov_b32 {s(sr+3)}, 0x20000")

def savecnt(A, cfg, k):
    if cfg.ts and cfg.cnts: A(f"s_mov_b32 {s(CNTREG[k])}, {s(sCNT)}")
def pstamp(A, cfg, k):
    if cfg.ts and cfg.pubts:
        A(f"s_memrealtime {s(sTS+2*k,2)}")
        A(f"s_waitcnt lgkmcnt(0)")
def estamp(A, cfg, k):
    if cfg.ts and cfg.early:
        A(f"s_memrealtime {s(sTS+2*k,2)}")
        A(f"s_waitcnt lgkmcnt(0)")
def stamp(A, cfg, k, L=False):
    if cfg.early and k >= 3 and not L: return
    if cfg.pubts and not L and k in (1,2,3,4,5,6,7,8): return
    if cfg.ts and (cfg.tsmask >> k) & 1:
        A(f"s_memrealtime {s(sTS+2*k,2)}")
        A(f"s_waitcnt lgkmcnt(0)")

vFLA = 3
def arrive(A, f, one, fla=None):
    A(f"v_mov_b32 {v(one)}, 1")
    A(f"s_mov_b64 {s(sEX,2)}, exec")
    A(f"s_mov_b64 exec, 1")
    A(f"ds_add_u32 {v(fla if fla is not None else vFLA)}, {v(one)} offset:{4*f}")
    A(f"s_mov_b64 exec, {s(sEX,2)}")
LSLEEP = [0]
def wait_flag(A, f, n, tmp, extra=None, fla=None):
    lab = A.newlabel("L_fw"); done = A.newlabel("L_fd")
    A(f"s_mov_b32 {s(sCNT2)}, 0")
    A.label(lab)
    A(f"ds_read_b32 {v(tmp)}, {v(fla if fla is not None else vFLA)} offset:{4*f}")
    if extra: extra()
    A(f"s_waitcnt lgkmcnt(0)")
    A(f"v_cmp_gt_u32 vcc, {n}, {v(tmp)}")
    A(f"s_cbranch_vccz {done}")
    if LSLEEP[0]: A(f"s_sleep {LSLEEP[0]}")
    A(f"s_add_u32 {s(sCNT2)}, {s(sCNT2)}, 1")
    A(f"s_cmp_lt_u32 {s(sCNT2)}, 2000000")
    A(f"s_cbranch_scc1 {lab}")
    A.label(done)

def xreduce_rows(A, op, x, tmp):
    A(f"v_mov_b32 {v(tmp)}, {v(x)}")
    A(f"v_permlane16_swap_b32 {v(x)}, {v(tmp)}")
    A(f"{op} {v(x)}, {v(x)}, {v(tmp)}")
    A(f"v_mov_b32 {v(tmp)}, {v(x)}")
    A(f"v_permlane32_swap_b32 {v(x)}, {v(tmp)}")
    A(f"{op} {v(x)}, {v(x)}, {v(tmp)}")

def xreduce_rows2(A, op0, x0, t0, op1, x1, t1):
    for sw in ("v_permlane16_swap_b32", "v_permlane32_swap_b32"):
        A(f"v_mov_b32 {v(t0)}, {v(x0)}")
        A(f"v_mov_b32 {v(t1)}, {v(x1)}")
        A(f"{sw} {v(x0)}, {v(t0)}")
        A(f"{sw} {v(x1)}, {v(t1)}")
        A(f"{op0} {v(x0)}, {v(x0)}, {v(t0)}")
        A(f"{op1} {v(x1)}, {v(x1)}, {v(t1)}")

def wave_sum_u32(A, x, t):
    for d in ("quad_perm:[1,0,3,2]", "quad_perm:[2,3,0,1]", "row_half_mirror", "row_mirror"):
        A(f"v_add_u32_dpp {v(x)}, {v(x)}, {v(x)} {d} row_mask:0xf bank_mask:0xf")
    xreduce_rows(A, "v_add_u32", x, t)

def sum_dwords(A, dst, regs):
    regs = list(regs)
    A(f"v_add3_u32 {v(dst)}, {v(regs[0])}, {v(regs[1])}, {v(regs[2])}")
    k = 3
    while k + 1 < len(regs):
        A(f"v_add3_u32 {v(dst)}, {v(dst)}, {v(regs[k])}, {v(regs[k+1])}"); k += 2
    if k < len(regs):
        A(f"v_add_u32 {v(dst)}, {v(dst)}, {v(regs[k])}")

def make_sels(A, vn, vsel, vt):
    A(f"v_and_b32 {v(vt)}, 3, {v(vn)}")
    A(f"v_mov_b32 {v(vt+1)}, 0x0c0c0c0c")
    pats = [(0, 0x0c0c0100, 1, 0x01000c0c), (2, 0x0c0c0100, 3, 0x01000c0c), (0, 0x0c0c0302, 1, 0x03020c0c), (2, 0x0c0c0302, 3, 0x03020c0c)]
    for k, (j0, p0, j1, p1) in enumerate(pats):
        A(f"v_mov_b32 {v(vt+2)}, {hex(p0)}")
        A(f"v_cmp_eq_u32 vcc, {j0}, {v(vt)}")
        A(f"v_cndmask_b32 {v(vsel+k)}, {v(vt+1)}, {v(vt+2)}, vcc")
        A(f"v_mov_b32 {v(vt+2)}, {hex(p1)}")
        A(f"v_cmp_eq_u32 vcc, {j1}, {v(vt)}")
        A(f"v_cndmask_b32 {v(vsel+k)}, {v(vsel+k)}, {v(vt+2)}, vcc")

def sel_gemm_step(A, xp, vsel, af, wreg, dx, dy, first, swap=True):
    if swap:
        A(f"v_swap_b32 {v(wreg+2)}, {v(wreg+4)}")
        A(f"v_swap_b32 {v(wreg+3)}, {v(wreg+5)}")
    for k in range(4):
        A(f"v_perm_b32 {v(af+k)}, {v(xp)}, {v(xp)}, {v(vsel+k)}")
    c0 = "0" if first else v(dx,4)
    c1 = "0" if first else v(dy,4)
    A(f"v_mfma_f32_16x16x32_bf16 {v(dx,4)}, {v(af,4)}, {v(wreg,4)}, {c0}")
    A(f"v_mfma_f32_16x16x32_bf16 {v(dy,4)}, {v(af,4)}, {v(wreg+4,4)}, {c1}")

def sel_gemm(A, n, xp, vsel, af0, af1, w, dx, dy=None, swap=False, wwait=None, xwait=None):
    st = 8 if dy is not None else 4
    def perms(t):
        if xwait: xwait(t)
        af = af0 if t % 2 == 0 else af1
        for k in range(4):
            A(f"v_perm_b32 {v(af+k)}, {v(xp+t)}, {v(xp+t)}, {v(vsel+k)}")
    perms(0)
    for t in range(n):
        if wwait: wwait(t)
        wr = w + st*t
        if swap:
            A(f"v_swap_b32 {v(wr+2)}, {v(wr+4)}")
            A(f"v_swap_b32 {v(wr+3)}, {v(wr+5)}")
        if t + 1 < n: perms(t+1)
        af = af0 if t % 2 == 0 else af1
        A(f"v_mfma_f32_16x16x32_bf16 {v(dx,4)}, {v(af,4)}, {v(wr,4)}, {'0' if t == 0 else v(dx,4)}")
        if dy is not None:
            A(f"v_mfma_f32_16x16x32_bf16 {v(dy,4)}, {v(af,4)}, {v(wr+4,4)}, {'0' if t == 0 else v(dy,4)}")

def poll_head(A, name):
    lab = A.newlabel(name)
    A(f"s_mov_b32 {s(sCNT)}, 0")
    A.label(lab)
    return lab
def poll_tail(A, lab, bad_pair, sleep=0):
    done = A.newlabel("done")
    A(f"s_cmp_eq_u64 {s(bad_pair,2)}, 0")
    A(f"s_cbranch_scc1 {done}")
    if sleep: A(f"s_sleep {sleep}")
    A(f"s_add_u32 {s(sCNT)}, {s(sCNT)}, 1")
    A(f"s_cmp_lt_u32 {s(sCNT)}, {POLL_MAX}")
    A(f"s_cbranch_scc1 {lab}")
    A.label(done)

def publish_final(A, cfg, dx, dy, vscale, vprod_off, vchk_off, pk, t):
    for k in range(4):
        A(f"v_mul_f32 {v(dx+k)}, {v(dx+k)}, {v(vscale)}")
        A(f"v_mul_f32 {v(dy+k)}, {v(dy+k)}, {v(vscale)}")
    A(f"v_cvt_pk_bf16_f32 {v(pk)}, {v(dx)}, {v(dx+1)}")
    A(f"v_cvt_pk_bf16_f32 {v(pk+1)}, {v(dx+2)}, {v(dx+3)}")
    A(f"v_cvt_pk_bf16_f32 {v(pk+2)}, {v(dy)}, {v(dy+1)}")
    A(f"v_cvt_pk_bf16_f32 {v(pk+3)}, {v(dy+2)}, {v(dy+3)}")
    A(f"buffer_store_dwordx4 {v(pk,4)}, {v(vprod_off)}, {s(sWS,4)}, 0 offen sc1")
    sum_dwords(A, t, [pk, pk+1, pk+2, pk+3])
    A(f"v_add_u32_dpp {v(t)}, {v(t)}, {v(t)} quad_perm:[1,0,3,2] row_mask:0xf bank_mask:0xf")
    A(f"v_add_u32_dpp {v(t)}, {v(t)}, {v(t)} quad_perm:[2,3,0,1] row_mask:0xf bank_mask:0xf")
    A(f"v_add_u32 {v(t+1)}, {s(sNONCE)}, {v(t)}")
    A(f"s_mov_b64 {s(sEX,2)}, exec")
    A(f"s_mov_b32 exec_lo, 0x11111111")
    A(f"s_mov_b32 exec_hi, 0x11111111")
    A(f"buffer_store_dwordx2 {v(t,2)}, {v(vchk_off)}, {s(sWS,4)}, 0 offen sc1")
    A(f"s_mov_b64 exec, {s(sEX,2)}")

def final_offsets(A, vn, vq, s_ct, s_prod, voff, vchk, t):
    A(f"v_lshrrev_b32 {v(t)}, 2, {v(vn)}")
    A(f"v_lshl_add_u32 {v(t)}, {v(vq)}, 4, {v(t)}")
    A(f"s_lshl_b32 {s(sT0)}, {s(s_ct)}, 2")
    A(f"v_add_u32 {v(t)}, {s(sT0)}, {v(t)}")
    A(f"s_movk_i32 {s(sT1)}, {NSLOT}")
    A(f"v_mul_lo_u32 {v(t)}, {v(t)}, {s(sT1)}")
    A(f"v_add_u32 {v(t)}, {s(s_prod)}, {v(t)}")
    A(f"v_lshlrev_b32 {v(vchk)}, 3, {v(t)}")
    A(f"v_add_u32 {v(vchk)}, {hex(WS_FC)}, {v(vchk)}")
    A(f"v_and_b32 {v(t+1)}, 3, {v(vn)}")
    A(f"v_lshlrev_b32 {v(t+1)}, 4, {v(t+1)}")
    A(f"v_lshl_add_u32 {v(voff)}, {v(t)}, 6, {v(t+1)}")
    A(f"v_add_u32 {v(voff)}, {hex(WS_FD)}, {v(voff)}")


def nonce_from(A, vreg):
    A(f"v_readfirstlane_b32 {s(sE)}, {v(vreg)}")
    A(f"s_mul_i32 {s(sNONCE)}, {s(sE)}, {hex(HASH_K)}")
    A(f"s_add_u32 {s(sNONCE)}, {s(sNONCE)}, {hex(HASH_C)}")

def make_ones(A, vn, dst, t):
    A(f"v_and_b32 {v(t)}, 3, {v(vn)}")
    A(f"v_lshrrev_b32 {v(t+1)}, 2, {v(vn)}")
    A(f"v_mov_b32 {v(t+2)}, 0")
    for k, (j0, j1) in enumerate(((0,1),(2,3))):
        A(f"v_mov_b32 {v(t+3)}, 0x3f80")
        A(f"v_cmp_eq_u32 vcc, {j0}, {v(t)}")
        A(f"v_cndmask_b32 {v(t+4+k)}, {v(t+2)}, {v(t+3)}, vcc")
        A(f"v_mov_b32 {v(t+3)}, 0x3f800000")
        A(f"v_cmp_eq_u32 vcc, {j1}, {v(t)}")
        A(f"v_cndmask_b32 {v(t+4+k)}, {v(t+4+k)}, {v(t+3)}, vcc")
    for b in range(4):
        A(f"v_cmp_eq_u32 vcc, {b}, {v(t+1)}")
        A(f"v_cndmask_b32 {v(dst+4*b)}, {v(t+2)}, {v(t+4)}, vcc")
        A(f"v_cndmask_b32 {v(dst+4*b+1)}, {v(t+2)}, {v(t+5)}, vcc")
        A(f"v_mov_b32 {v(dst+4*b+2)}, {v(dst+4*b)}")
        A(f"v_mov_b32 {v(dst+4*b+3)}, {v(dst+4*b+1)}")

def partial_offsets(A, vl, vn, vs, base, chkbase, vpub, vchkpub, vga, vgb, vgc, t, sHJ=sHJ, sH=sH):
    A(f"s_lshl_b32 {s(sT0)}, {s(sHJ)}, 10")
    A(f"s_add_u32 {s(sT0)}, {s(sT0)}, {hex(base)}")
    A(f"v_lshl_add_u32 {v(vpub)}, {v(vl)}, 4, {s(sT0)}")
    A(f"s_lshl_b32 {s(sT0)}, {s(sHJ)}, 3")
    A(f"s_add_u32 {s(sT0)}, {s(sT0)}, {hex(chkbase)}")
    A(f"v_mov_b32 {v(vchkpub)}, {s(sT0)}")
    A(f"s_lshl_b32 {s(sT0)}, {s(sH)}, 13")
    A(f"s_add_u32 {s(sT0)}, {s(sT0)}, {hex(base)}")
    A(f"v_lshlrev_b32 {v(t)}, 10, {v(vs)}")
    A(f"v_lshl_add_u32 {v(t)}, {v(vn)}, 4, {v(t)}")
    A(f"v_add_u32 {v(vga)}, {s(sT0)}, {v(t)}")
    A(f"v_add_u32 {v(vgb)}, 4096, {v(vga)}")
    A(f"s_lshl_b32 {s(sT0)}, {s(sH)}, 6")
    A(f"s_add_u32 {s(sT0)}, {s(sT0)}, {hex(chkbase)}")
    A(f"v_lshl_add_u32 {v(t)}, {v(vl)}, 3, {s(sT0)}")
    A(f"v_cmp_gt_u32 {s(sM2,2)}, 8, {v(vl)}")
    A(f"v_mov_b32 {v(t+1)}, 0x7ffffff0")
    A(f"v_cndmask_b32 {v(vgc)}, {v(t+1)}, {v(t)}, {s(sM2,2)}")

def publish_partial(A, dx, dy, pk, vpub, vchkpub, t, fl='sc1', dual=False, defer=False):
    A(f"v_cvt_pk_bf16_f32 {v(pk)}, {v(dx)}, {v(dx+1)}")
    A(f"v_cvt_pk_bf16_f32 {v(pk+1)}, {v(dx+2)}, {v(dx+3)}")
    A(f"v_cvt_pk_bf16_f32 {v(pk+2)}, {v(dy)}, {v(dy+1)}")
    A(f"v_cvt_pk_bf16_f32 {v(pk+3)}, {v(dy+2)}, {v(dy+3)}")
    if dual:
        A(f"buffer_store_dwordx4 {v(pk,4)}, {v(vpub)}, {s(sWS,4)}, 0 offen")
        if not defer: A(f"buffer_store_dwordx4 {v(pk,4)}, {v(vpub)}, {s(sWS,4)}, {s(sDELTA)} offen sc1")
    else:
        A(f"buffer_store_dwordx4 {v(pk,4)}, {v(vpub)}, {s(sWS,4)}, 0 offen {fl}")
    sum_dwords(A, t, [pk, pk+1, pk+2, pk+3])
    wave_sum_u32(A, t, t+2)
    A(f"v_add_u32 {v(t+1)}, {s(sNONCE)}, {v(t)}")
    A(f"s_mov_b64 {s(sEX,2)}, exec")
    A(f"s_mov_b64 exec, 1")
    if dual:
        A(f"buffer_store_dwordx2 {v(t,2)}, {v(vchkpub)}, {s(sWS,4)}, 0 offen")
        if not defer: A(f"buffer_store_dwordx2 {v(t,2)}, {v(vchkpub)}, {s(sWS,4)}, {s(sDELTA)} offen sc1")
    else:
        A(f"buffer_store_dwordx2 {v(t,2)}, {v(vchkpub)}, {s(sWS,4)}, 0 offen {fl}")
    A(f"s_mov_b64 exec, {s(sEX,2)}")
    if dual and defer:
        A(f"v_mov_b32 {v(pk+4)}, {v(t)}")
        A(f"v_mov_b32 {v(pk+5)}, {v(t+1)}")

def global_copy(A, pk, vpub, vchkpub):
    A(f"buffer_store_dwordx4 {v(pk,4)}, {v(vpub)}, {s(sWS,4)}, {s(sDELTA)} offen sc1")
    A(f"s_mov_b64 {s(sEX,2)}, exec")
    A(f"s_mov_b64 exec, 1")
    A(f"buffer_store_dwordx2 {v(pk+4,2)}, {v(vchkpub)}, {s(sWS,4)}, {s(sDELTA)} offen sc1")
    A(f"s_mov_b64 exec, {s(sEX,2)}")

def late_copy(A, cfg, pk, vpub, vchkpub):
    if not (cfg.dual and cfg.defer): return
    skip = A.newlabel("L_nocp")
    A(f"s_cmp_ge_u32 {s(sFB)}, {LOCAL_TRIES}")
    A(f"s_cbranch_scc1 {skip}")
    global_copy(A, pk, vpub, vchkpub)
    A.label(skip)

def gather_reduce(A, cfg, name, G, CK, ones, vga, vgb, vgc, dx, dy, t, pk=16, vpub=52, vchkpub=53, after_issue=None):
    so = s(sFB) if cfg.dual else "0"
    if cfg.dual: A(f"s_mov_b32 {s(sFB)}, 0")
    lab = poll_head(A, name)
    if cfg.dual:
        if cfg.defer:
            skip = A.newlabel("L_nosw")
            A(f"s_cmp_lg_u32 {s(sCNT)}, {LOCAL_TRIES}")
            A(f"s_cbranch_scc1 {skip}")
            global_copy(A, pk, vpub, vchkpub)
            A.label(skip)
        A(f"s_cmp_ge_u32 {s(sCNT)}, {LOCAL_TRIES}")
        A(f"s_cselect_b32 {s(sFB)}, {s(sDELTA)}, 0")
    for b in range(4):
        A(f"buffer_load_dwordx4 {v(G+8*b,4)}, {v(vga)}, {s(sWS,4)}, {so} offen offset:{256*b} {cfg.local_ld}")
        A(f"buffer_load_dwordx4 {v(G+8*b+4,4)}, {v(vgb)}, {s(sWS,4)}, {so} offen offset:{256*b} {cfg.local_ld}")
    A(f"buffer_load_dwordx2 {v(CK,2)}, {v(vgc)}, {s(sWS,4)}, {so} offen {cfg.local_ld}")
    if after_issue: after_issue()
    A(f"s_waitcnt vmcnt(0)")
    sum_dwords(A, t, range(G, G+16))
    sum_dwords(A, t+1, range(G+16, G+32))
    A(f"v_add_u32 {v(t)}, {v(t)}, {v(t+1)}")
    A(f"v_sub_u32 {v(t)}, {v(t)}, {v(CK)}")
    A(f"v_add_u32 {v(t+1)}, {s(sNONCE)}, {v(CK)}")
    A(f"v_cmp_ne_u32 vcc, {v(t+1)}, {v(CK+1)}")
    wave_sum_u32(A, t, t+2)
    A(f"s_and_b64 {s(sM1,2)}, vcc, {s(sM2,2)}")
    A(f"v_cmp_ne_u32 vcc, 0, {v(t)}")
    A(f"s_or_b64 {s(sM1,2)}, {s(sM1,2)}, vcc")
    poll_tail(A, lab, sM1, cfg.poll_sleep)
    if cfg.dual and cfg.defer:
        A(f"s_mov_b32 {s(sFB)}, {s(sCNT)}")
    for b in range(4):
        w = G + 8*b
        A(f"v_swap_b32 {v(w+2)}, {v(w+4)}")
        A(f"v_swap_b32 {v(w+3)}, {v(w+5)}")
    for b in range(4):
        w = G + 8*b
        c0 = "0" if b == 0 else v(dx,4); c1 = "0" if b == 0 else v(dy,4)
        A(f"v_mfma_f32_16x16x32_bf16 {v(dx,4)}, {v(ones+4*b,4)}, {v(w,4)}, {c0}")
        A(f"v_mfma_f32_16x16x32_bf16 {v(dy,4)}, {v(ones+4*b,4)}, {v(w+4,4)}, {c1}")

def gen(cfg):
    A = Asm()
    LSLEEP[0] = 0
    NT = " nt" if cfg.nt_tail else ""
    NTKV = " nt" if cfg.nt_kv else ""
    NTWQ = " nt" if cfg.nt_wq else ""
    vL, vN, vS = 0, 1, 2
    vSEL = 4
    A(f"s_cmp_ge_u32 s2, 256")
    A(f"s_cbranch_scc1 L_exit")
    if cfg.perm == 'rot':
        A(f"s_and_b32 s66, s2, 7")
        A(f"s_lshr_b32 s67, s2, 3")
        A(f"s_and_b32 s68, s67, 7")
        A(f"s_andn2_b32 s67, s67, 7")
        A(f"s_or_b32 s67, s67, s66")
        A(f"s_lshl_b32 s67, s67, 3")
        A(f"s_or_b32 s2, s67, s68")
    if isinstance(cfg.perm, int): A(f"s_xor_b32 s2, s2, {cfg.perm}")
    for sr, off in ((sX,0),(sWQ,16),(sWUK,24),(sWS,104),(sKV,8),(sWUV,32),(sWO,40),(sW1,56),(sB1,64),(sW2,72),(sGW,80),(sOUT,88)):
        srd(A, sr, off, 0)
    vXP, vAF0, vAF1, vQX, vQY, vT = 8, 24, 28, 32, 36, 40
    vWUK, vWQ = 64, 128
    vA0, vA1, vA2 = 40, 41, 42
    vE = 44
    A(f"v_lshrrev_b32 v4, 6, v0")
    A(f"v_and_b32 {v(vL)}, 63, v0")
    A(f"v_readfirstlane_b32 {s(sW)}, v4")
    A(f"v_and_b32 {v(vN)}, 15, {v(vL)}")
    A(f"v_lshrrev_b32 {v(vS)}, 4, {v(vL)}")
    A(f"s_and_b32 {s(sXCD)}, s2, 7")
    A(f"s_lshr_b32 {s(sR)}, s2, 3")
    A(f"s_and_b32 {s(sHG)}, {s(sR)}, 1")
    A(f"s_bfe_u32 {s(sJ)}, {s(sR)}, 0x30001")
    A(f"s_lshr_b32 {s(sT0)}, {s(sR)}, 4")
    A(f"s_lshl_b32 {s(sT1)}, {s(sXCD)}, 1")
    A(f"s_add_u32 {s(sT1)}, {s(sT1)}, {s(sT0)}")
    A(f"s_lshl_b32 {s(sT0)}, {s(sHG)}, 4")
    A(f"s_add_u32 {s(sH)}, {s(sT0)}, {s(sT1)}")
    for sr, size in ((sX,4096),(sWQ,4<<20),(sWUK,4<<20),(sWS,256<<20)):
        srd_fin(A, sr, size)
    A(f"s_cmp_lg_u32 {s(sW)}, 0")
    A(f"s_cbranch_scc1 L_pro2")
    A(f"v_lshrrev_b32 {v(vA0)}, 2, {v(vN)}")
    A(f"v_lshlrev_b32 {v(vA0)}, 10, {v(vA0)}")
    A(f"v_lshl_add_u32 {v(vA0)}, {v(vS)}, 5, {v(vA0)}")
    A(f"s_lshl_b32 {s(sT0)}, {s(sJ)}, 7")
    A(f"v_add_u32 {v(vA0)}, {s(sT0)}, {v(vA0)}")
    A(f"s_lshl_b32 {s(sT0)}, {s(sJ)}, 19")
    A(f"s_lshl_b32 {s(sT1)}, {s(sH)}, 8")
    A(f"s_add_u32 {s(sT0)}, {s(sT0)}, {s(sT1)}")
    A(f"v_lshlrev_b32 {v(vA1)}, 17, {v(vS)}")
    A(f"v_lshl_add_u32 {v(vA1)}, {v(vN)}, 4, {v(vA1)}")
    A(f"v_add_u32 {v(vA1)}, {s(sT0)}, {v(vA1)}")
    A(f"v_lshrrev_b32 {v(vA2)}, 2, {v(vN)}")
    A(f"v_lshlrev_b32 {v(vA2)}, 4, {v(vA2)}")
    A(f"v_and_b32 v43, 3, {v(vN)}")
    A(f"v_add_u32 {v(vA2)}, {v(vA2)}, v43")
    A(f"v_lshlrev_b32 {v(vA2)}, 13, {v(vA2)}")
    A(f"v_lshl_add_u32 {v(vA2)}, {v(vS)}, 4, {v(vA2)}")
    A(f"v_add_u32 {v(vA2)}, {s(sT0)}, {v(vA2)}")
    A(f"v_mov_b32 v45, {hex(WS_E)}")
    A(f"s_waitcnt lgkmcnt(0)")
    stamp(A, cfg, 0)
    A(f"s_mov_b32 {s(sT2)}, 0")
    for k in range(16):
        A(f"buffer_load_dwordx4 {v(vWQ+4*k,4)}, {v(vA1)}, {s(sWQ,4)}, {s(sT2)} offen{NTWQ}")
        if k < 15: A(f"s_add_u32 {s(sT2)}, {s(sT2)}, 8192")
        if k == 1:
            A(f"buffer_load_dword {v(vE)}, v45, {s(sWS,4)}, 0 offen sc1")
            for kk in range(2):
                A(f"buffer_load_dwordx4 {v(vXP+4*kk,4)}, {v(vA0)}, {s(sX,4)}, 0 offen offset:{16*kk}")
    A(f"s_mov_b32 {s(sT2)}, 0")
    for T in range(4):
        for t in range(4):
            A(f"buffer_load_dwordx4 {v(vWUK+16*T+4*t,4)}, {v(vA2)}, {s(sWUK,4)}, {s(sT2)} offen offset:{64*t}{NTWQ}")
        if T < 3: A(f"s_add_u32 {s(sT2)}, {s(sT2)}, 32768")
    A.label("L_pro2")
    if cfg.ts:
        A(f"s_cmp_eq_u32 {s(sW)}, 0")
        A(f"s_cbranch_scc1 L_pro3")
        A(f"s_waitcnt lgkmcnt(0)")
        stamp(A, cfg, 0)
        A.label("L_pro3")
    for _ in range(cfg.pad): A("s_nop 0")
    A(f"v_mov_b32 {v(vFLA)}, {L_FL}")
    A(f"v_lshl_add_u32 v40, {v(vN)}, 2, {v(vFLA)}")
    A(f"v_mov_b32 v41, 0")
    A(f"ds_write_b32 v40, v41")
    A(f"v_mov_b32 v42, -1")
    A(f"v_mov_b32 v43, -1")
    A(f"v_lshlrev_b32 v40, 3, {v(vL)}")
    A(f"v_add_u32 v41, {L_MX}, v40")
    A(f"ds_write_b64 v41, v[42:43]")
    A(f"v_add_u32 v41, {L_CC}, v40")
    A(f"ds_write_b64 v41, v[42:43]")
    A(f"s_lshl_b32 {s(sHJ)}, {s(sH)}, 3")
    A(f"s_add_u32 {s(sHJ)}, {s(sHJ)}, {s(sJ)}")
    A(f"s_lshr_b32 {s(sB)}, {s(sXCD)}, 1")
    A(f"s_and_b32 {s(sT0)}, {s(sXCD)}, 1")
    A(f"s_lshl_b32 {s(sT0)}, {s(sT0)}, 4")
    A(f"s_lshr_b32 {s(sT1)}, {s(sR)}, 1")
    A(f"s_add_u32 {s(sKC)}, {s(sT0)}, {s(sT1)}")
    for sr, size in ((sKV,16<<20),(sWUV,4<<20),(sWO,4<<20),(sW1,512*2752),(sB1,2752),(sW2,1376*1024),(sGW,1024),(sOUT,4096)):
        srd_fin(A, sr, size)
    A(f"s_mov_b32 {s(sDELTA)}, {hex(LOCAL_DELTA)}")
    A(f"s_waitcnt lgkmcnt(0)")
    A(f"s_barrier")
    A(f"s_cmp_ge_u32 {s(sW)}, 4")
    A(f"s_cbranch_scc1 L_Lpath")
    estamp(A, cfg, 3)
    if cfg.prio: A(f"s_setprio 3")
    for _ in range(cfg.padm): A("s_nop 0")
    A(f"s_cmp_eq_u32 {s(sW)}, 0")
    A(f"s_cbranch_scc1 L_q")
    A(f"v_mov_b32 v43, {hex(WS_E)}")
    A(f"buffer_load_dword {v(vE)}, v43, {s(sWS,4)}, 0 offen sc1")
    A(f"s_branch L_noq")
    A.label("L_q")
    aQG, aQC, aQL, aQE, aQO, aKE, aKO, aPV0, aPV1, aMXR, aMXW, aPR, aPW, aOP0, aOP1, aST = range(8, 24)
    vQG, vQC = 64, 80
    def attn_addresses():
        A(f"s_lshl_b32 {s(sT0)}, {s(sB)}, 1")
        A(f"s_add_u32 {s(sT0)}, {s(sT0)}, {s(sHG)}")
        A(f"s_lshl_b32 {s(sT0)}, {s(sT0)}, 4")
        A(f"s_lshl_b32 {s(sT1)}, {s(sW)}, 2")
        A(f"s_add_u32 {s(sT0)}, {s(sT0)}, {s(sT1)}")
        A(f"s_lshl_b32 {s(sT1)}, {s(sT0)}, 10")
        A(f"s_add_u32 {s(sT1)}, {s(sT1)}, {hex(WS_QA)}")
        A(f"v_lshl_add_u32 {v(aQG)}, {v(vL)}, 4, {s(sT1)}")
        A(f"s_lshl_b32 {s(sT1)}, {s(sT0)}, 6")
        A(f"s_add_u32 {s(sT1)}, {s(sT1)}, {hex(WS_QC)}")
        A(f"v_lshl_add_u32 {v(aQC)}, {v(vL)}, 3, {s(sT1)}")
        A(f"v_cmp_lt_u32 {s(sM0,2)}, {v(vL)}, 32")
        A(f"v_mov_b32 v43, 0x7ffffff0")
        A(f"v_cndmask_b32 {v(aQC)}, v43, {v(aQC)}, {s(sM0,2)}")
        A(f"s_mul_i32 {s(sT1)}, {s(sW)}, {4*PITCH}")
        A(f"s_add_u32 {s(sT1)}, {s(sT1)}, {L_QL}")
        A(f"v_lshl_add_u32 {v(aQL)}, {v(vL)}, 4, {s(sT1)}")
        A(f"s_movk_i32 {s(sT1)}, {PITCH}")
        A(f"v_mul_lo_u32 v44, {v(vN)}, {s(sT1)}")
        A(f"v_lshl_add_u32 v44, {v(vS)}, 8, v44")
        A(f"v_and_b32 v45, 1, {v(vS)}")
        A(f"v_lshlrev_b32 v45, 4, v45")
        A(f"v_add_u32 {v(aQE)}, v44, v45")
        A(f"v_sub_u32 {v(aQO)}, v44, v45")
        A(f"s_mul_i32 {s(sT0)}, {s(sW)}, {32*PITCH}")
        A(f"v_add_u32 {v(aKE)}, {s(sT0)}, {v(aQE)}")
        A(f"v_add_u32 {v(aKO)}, {s(sT0)}, {v(aQO)}")
        A(f"v_add_u32 {v(aQE)}, {L_QL}, {v(aQE)}")
        A(f"v_add_u32 {v(aQO)}, {L_QL}, {v(aQO)}")
        A(f"v_lshrrev_b32 v46, 2, {v(vL)}")
        A(f"v_mul_lo_u32 v46, v46, {s(sT1)}")
        A(f"v_and_b32 v47, 3, {v(vL)}")
        A(f"v_lshl_add_u32 v46, v47, 3, v46")
        A(f"s_lshl_b32 {s(sT0)}, {s(sW)}, 8")
        A(f"v_add_u32 {v(aPV0)}, {s(sT0)}, v46")
        A(f"v_add_u32 {v(aPV1)}, {64*PITCH}, {v(aPV0)}")
        A(f"v_lshlrev_b32 {v(aMXR)}, 4, {v(vN)}")
        A(f"v_add_u32 {v(aMXR)}, {L_MX}, {v(aMXR)}")
        A(f"s_lshl_b32 {s(sT0)}, {s(sW)}, 2")
        A(f"v_add_u32 {v(aMXW)}, {s(sT0)}, {v(aMXR)}")
        A(f"v_lshlrev_b32 {v(aPR)}, 4, {v(vL)}")
        A(f"v_add_u32 {v(aPR)}, {L_PB}, {v(aPR)}")
        A(f"s_lshl_b32 {s(sT0)}, {s(sW)}, 10")
        A(f"v_add_u32 {v(aPW)}, {s(sT0)}, {v(aPR)}")
        A(f"s_lshl_b32 {s(sT0)}, {s(sHG)}, 4")
        A(f"v_add_u32 v48, {s(sT0)}, {v(vN)}")
        A(f"s_lshl_b32 {s(sT0)}, {s(sW)}, 3")
        A(f"s_add_u32 {s(sT0)}, {s(sT0)}, {s(sKC)}")
        if cfg.rot:
            A(f"v_add_u32 v50, {s(sT0)}, v48")
            A(f"v_add_u32 v51, 4, v50")
            A(f"v_and_b32 v50, 31, v50")
            A(f"v_and_b32 v51, 31, v51")
        else:
            A(f"v_mov_b32 v50, {s(sKC)}")
            A(f"v_mov_b32 v51, {s(sKC)}")
        A(f"v_lshlrev_b32 v48, 10, v48")
        A(f"s_lshl_b32 {s(sT0)}, {s(sW)}, 8")
        A(f"s_lshl_b32 {s(sT1)}, {s(sB)}, 5")
        A(f"s_add_u32 {s(sT0)}, {s(sT0)}, {s(sT1)}")
        A(f"v_add_u32 v48, {s(sT0)}, v48")
        A(f"v_add_u32 v50, v48, v50")
        A(f"v_add3_u32 v51, v48, v51, 64")
        A(f"v_add_u32 v51, 64, v51")
        A(f"v_and_b32 v49, 1, {v(vS)}")
        A(f"v_lshlrev_b32 v49, 1, v49")
        A(f"v_lshrrev_b32 v45, 1, {v(vS)}")
        A(f"v_add_u32 v49, v49, v45")
        A(f"v_lshlrev_b32 v49, 4, v49")
        A(f"v_lshl_add_u32 {v(aOP0)}, v50, 7, v49")
        A(f"v_add_u32 {v(aOP0)}, {hex(WS_OP)}, {v(aOP0)}")
        A(f"v_lshl_add_u32 {v(aOP1)}, v51, 7, v49")
        A(f"v_add_u32 {v(aOP1)}, {hex(WS_OP)}, {v(aOP1)}")
        A(f"v_cmp_eq_u32 vcc, 1, {v(vS)}")
        A(f"v_cndmask_b32 v50, v50, v51, vcc")
        A(f"v_lshlrev_b32 v50, 4, v50")
        A(f"v_add_u32 {v(aST)}, {hex(WS_ST)}, v50")
    estamp(A, cfg, 4)
    make_sels(A, vN, vSEL, vT)
    vONE, vG1, vCK1 = 192, 208, 240
    make_ones(A, vN, vONE, 46)
    vPUB, vCPUB, vGA, vGB, vGC = 52, 53, 54, 55, 56
    partial_offsets(A, vL, vN, vS, WS_Q1, WS_Q1C, vPUB, vCPUB, vGA, vGB, vGC, 46)
    vQAO, vQCO = 58, 59
    A(f"v_lshl_add_u32 {v(vQAO)}, {v(vN)}, 5, {s(sH)}")
    A(f"v_lshlrev_b32 {v(vQCO)}, 3, {v(vQAO)}")
    A(f"v_add_u32 {v(vQCO)}, {s(sJ)}, {v(vQCO)}")
    A(f"v_lshlrev_b32 {v(vQCO)}, 3, {v(vQCO)}")
    A(f"v_add_u32 {v(vQCO)}, {hex(WS_QC)}, {v(vQCO)}")
    A(f"v_lshlrev_b32 {v(vQAO)}, 10, {v(vQAO)}")
    A(f"v_lshl_add_u32 {v(vQAO)}, {v(vS)}, 5, {v(vQAO)}")
    A(f"s_lshl_b32 {s(sT0)}, {s(sJ)}, 7")
    A(f"s_add_u32 {s(sT0)}, {s(sT0)}, {hex(WS_QA)}")
    A(f"v_add_u32 {v(vQAO)}, {s(sT0)}, {v(vQAO)}")
    NPW = 0
    A(f"v_lshlrev_b32 v57, 4, {v(vL)}")
    A(f"v_add_u32 v57, {L_QB}, v57")
    A(f"v_and_b32 v248, 3, {v(vN)}")
    A(f"v_lshlrev_b32 v248, 8, v248")
    A(f"v_lshl_add_u32 v248, {v(vS)}, 4, v248")
    A(f"v_add_u32 v248, {L_QB}, v248")
    A(f"s_waitcnt vmcnt(30)")
    nonce_from(A, vE)
    def _w(t):
        A(f"s_waitcnt vmcnt({16 + 14 - 2*t})")
        if t == 0: estamp(A, cfg, 5)
        if t == 7: estamp(A, cfg, 6)
        if t == 0 and cfg.l_delay and cfg.fw_at == 'wq': arrive(A, FW, 43)
    sel_gemm(A, 8, vXP, vSEL, vAF0, vAF1, vWQ, vQX, vQY, swap=True, wwait=_w)
    publish_partial(A, vQX, vQY, 242, vPUB, vCPUB, 46, cfg.local_st, cfg.dual, cfg.defer)
    stamp(A, cfg, 1)
    if cfg.l_delay and cfg.fw_at == 'pub': arrive(A, FW, 43)
    if cfg.exp == 'kvq': A(f"s_branch L_Mdone")
    if cfg.addr_early: attn_addresses()
    if cfg.hop1_ack: A(f"s_waitcnt vmcnt(0)")
    gather_reduce(A, cfg, "L_hop1", vG1, vCK1, vONE, vGA, vGB, vGC, vQX, vQY, 46, 242,
                  after_issue=(lambda: arrive(A, FW, 43)) if (cfg.l_delay and cfg.fw_at == 'sweep') else None)
    savecnt(A, cfg, 0)
    if cfg.l_delay and cfg.fw_at == 'hop1': arrive(A, FW, 43)
    estamp(A, cfg, 7)
    A(f"v_cvt_pk_bf16_f32 v60, {v(vQX)}, {v(vQX+1)}")
    A(f"v_cvt_pk_bf16_f32 v61, {v(vQX+2)}, {v(vQX+3)}")
    A(f"v_cvt_pk_bf16_f32 v62, {v(vQY)}, {v(vQY+1)}")
    A(f"v_cvt_pk_bf16_f32 v63, {v(vQY+2)}, {v(vQY+3)}")
    A(f"ds_write_b128 v57, v[60:63]")
    vQF4, vD, vPK = 128, 144, 160
    for t in range(4):
        A(f"ds_read_b128 {v(vQF4+4*t,4)}, v248 offset:{64*t}")
    for t in range(4):
        A(f"s_waitcnt lgkmcnt({3-t})")
        for T in range(4):
            c = "0" if t == 0 else v(vD+4*T,4)
            A(f"v_mfma_f32_16x16x32_bf16 {v(vD+4*T,4)}, {v(vWUK+16*T+4*t,4)}, {v(vQF4+4*t,4)}, {c}")
    for k in range(8):
        A(f"v_cvt_pk_bf16_f32 {v(vPK+k)}, {v(vD+2*k)}, {v(vD+2*k+1)}")
    if cfg.pw_qa: wait_flag(A, FP1, 1, 43)
    A(f"s_mov_b64 {s(sEX,2)}, exec")
    A(f"s_mov_b32 exec_lo, 0x000f000f")
    A(f"s_mov_b32 exec_hi, 0x000f000f")
    A(f"buffer_store_dwordx4 {v(vPK,4)}, {v(vQAO)}, {s(sWS,4)}, 0 offen sc1")
    A(f"buffer_store_dwordx4 {v(vPK+4,4)}, {v(vQAO)}, {s(sWS,4)}, 0 offen offset:16 sc1")
    A(f"s_mov_b64 exec, {s(sEX,2)}")
    sum_dwords(A, 44, range(vPK, vPK+8))
    xreduce_rows(A, "v_add_u32", 44, 46)
    A(f"v_add_u32 v45, {s(sNONCE)}, v44")
    A(f"s_mov_b64 exec, 0xf")
    A(f"buffer_store_dwordx2 v[44:45], {v(vQCO)}, {s(sWS,4)}, 0 offen sc1")
    A(f"s_mov_b64 exec, {s(sEX,2)}")
    late_copy(A, cfg, 242, vPUB, vCPUB)
    if not cfg.addr_early: attn_addresses()
    if cfg.hop2_gate:
        A(f"s_waitcnt vmcnt(0)")
        arrive(A, FP1, 43)
    A(f"s_branch L_qdone")
    A.label("L_noq")
    if cfg.pw_qa or cfg.pw_fd:
        for k in range(4): A(f"v_mov_b32 {v(60+k)}, 0")
    if cfg.pw_qa:
        A(f"s_cmp_lg_u32 {s(sW)}, 1")
        A(f"s_cbranch_scc1 L_nopw1")
        A(f"v_lshl_add_u32 v58, {v(vN)}, 5, {s(sH)}")
        A(f"v_lshlrev_b32 v59, 3, v58")
        A(f"v_add_u32 v59, {s(sJ)}, v59")
        A(f"v_lshlrev_b32 v59, 3, v59")
        A(f"v_add_u32 v59, {hex(WS_QC)}, v59")
        A(f"v_lshlrev_b32 v58, 10, v58")
        A(f"v_lshl_add_u32 v58, {v(vS)}, 5, v58")
        A(f"s_lshl_b32 {s(sT0)}, {s(sJ)}, 7")
        A(f"s_add_u32 {s(sT0)}, {s(sT0)}, {hex(WS_QA)}")
        A(f"v_add_u32 v58, {s(sT0)}, v58")
        A(f"s_mov_b32 exec_lo, 0x000f000f")
        A(f"s_mov_b32 exec_hi, 0x000f000f")
        A(f"buffer_store_dwordx4 v[60:63], v58, {s(sWS,4)}, 0 offen sc1")
        A(f"buffer_store_dwordx4 v[60:63], v58, {s(sWS,4)}, 0 offen offset:16 sc1")
        A(f"s_mov_b64 exec, 0xf")
        A(f"buffer_store_dwordx2 v[60:61], v59, {s(sWS,4)}, 0 offen sc1")
        A(f"s_mov_b64 exec, -1")
        A(f"s_waitcnt vmcnt(0)")
        arrive(A, FP1, 43)
        A.label("L_nopw1")
    if cfg.pw_fd:
        A(f"s_cmp_lg_u32 {s(sW)}, 2")
        A(f"s_cbranch_scc1 L_nopw2")
        A(f"v_lshrrev_b32 v46, 3, {v(vN)}")
        A(f"v_lshl_add_u32 v46, {v(vS)}, 4, v46")
        A(f"s_lshl_b32 {s(sT0)}, {s(sJ)}, 1")
        A(f"v_add_u32 v46, {s(sT0)}, v46")
        A(f"s_movk_i32 {s(sT1)}, {NSLOT}")
        A(f"v_mul_lo_u32 v46, v46, {s(sT1)}")
        A(f"v_add_u32 v46, {s(sH)}, v46")
        A(f"v_lshlrev_b32 v59, 3, v46")
        A(f"v_add_u32 v59, {hex(WS_FC)}, v59")
        A(f"v_and_b32 v47, 7, {v(vN)}")
        A(f"v_lshlrev_b32 v47, 3, v47")
        A(f"v_lshl_add_u32 v58, v46, 6, v47")
        A(f"v_add_u32 v58, {hex(WS_FD)}, v58")
        A(f"buffer_store_dwordx2 v[60:61], v58, {s(sWS,4)}, 0 offen sc1")
        A(f"s_mov_b32 exec_lo, 0x01010101")
        A(f"s_mov_b32 exec_hi, 0x01010101")
        A(f"buffer_store_dwordx2 v[60:61], v59, {s(sWS,4)}, 0 offen sc1")
        A(f"s_mov_b64 exec, -1")
        A(f"s_waitcnt vmcnt(0)")
        arrive(A, FP2, 43)
        A.label("L_nopw2")
    make_sels(A, vN, vSEL, vT)
    A(f"s_waitcnt vmcnt(0)")
    nonce_from(A, vE)
    attn_addresses()
    A.label("L_qdone")
    stamp(A, cfg, 2)
    if cfg.exp in ('kvq', 'kvq1'): A(f"s_branch L_Mdone")
    NL = 3 if cfg.tail_early else 4
    wait_flag(A, FKV if cfg.wait_kv_first else FKI, NL, 44)
    if cfg.hop2_gate: wait_flag(A, FP1, 1, 44)
    if cfg.two_stage:
        lab0 = poll_head(A, "L_hop2t")
        A(f"buffer_load_dwordx2 {v(vQC,2)}, {v(aQC)}, {s(sWS,4)}, 0 offen sc1")
        A(f"s_waitcnt vmcnt(0)")
        A(f"v_add_u32 v45, {s(sNONCE)}, {v(vQC)}")
        A(f"v_cmp_ne_u32 vcc, v45, {v(vQC+1)}")
        A(f"s_and_b64 {s(sM1,2)}, vcc, {s(sM0,2)}")
        poll_tail(A, lab0, sM1, cfg.poll_sleep)
        savecnt(A, cfg, 1)
    vRING = 128
    def hop2_issue():
        for i in range(4):
            A(f"buffer_load_dwordx4 {v(vQG+4*i,4)}, {v(aQG)}, {s(sWS,4)}, 0 offen offset:{1024*i} sc1")
        A(f"buffer_load_dwordx2 {v(vQC,2)}, {v(aQC)}, {s(sWS,4)}, 0 offen sc1")
    if cfg.kvpre:
        A(f"s_mov_b32 {s(sCNT)}, 0")
        hop2_issue()
        if cfg.tail_flag == 'FH2': arrive(A, FH2, 43)
        wait_flag(A, FKV, NL, 44)
        for t in range(16):
            if t in (6, 12): A(f"s_waitcnt lgkmcnt(2)")
            for tt in range(2):
                A(f"ds_read_b128 {v(vRING+4*(2*t+tt),4)}, {v(aKE if t%2==0 else aKO)} offset:{16*t + tt*16*PITCH}")
        lab = A.newlabel("L_hop2"); chk = A.newlabel("L_hop2c")
        A(f"s_branch {chk}")
        A.label(lab)
        hop2_issue()
        A.label(chk)
    else:
        lab = poll_head(A, "L_hop2")
        hop2_issue()
        if cfg.tail_flag == 'FH2': arrive(A, FH2, 43)
    A(f"s_waitcnt vmcnt(0)")
    sum_dwords(A, 44, range(vQG, vQG+16))
    A(f"v_sub_u32 v44, v44, {v(vQC)}")
    A(f"v_add_u32 v45, {s(sNONCE)}, {v(vQC)}")
    A(f"v_cmp_ne_u32 vcc, v45, {v(vQC+1)}")
    wave_sum_u32(A, 44, 46)
    A(f"s_and_b64 {s(sM1,2)}, vcc, {s(sM0,2)}")
    A(f"v_cmp_ne_u32 vcc, 0, v44")
    A(f"s_or_b64 {s(sM1,2)}, {s(sM1,2)}, vcc")
    poll_tail(A, lab, sM1, cfg.poll_sleep)
    savecnt(A, cfg, 2)
    for i in range(4):
        A(f"ds_write_b128 {v(aQL)}, {v(vQG+4*i,4)} offset:{PITCH*i}")
    arrive(A, F3, 43)
    stamp(A, cfg, 3)
    if not cfg.kvpre: wait_flag(A, FKV, NL, 44)
    wait_flag(A, F3, 4, 44)
    stamp(A, cfg, 4)
    pstamp(A, cfg, 8)
    vQF = 64
    vS0, vS1 = 32, 36
    NSLOT_R = 32 if cfg.kvpre else 16
    def pvread(k):
        T, g = k // 4, k % 4
        slot = k % NSLOT_R
        base = aPV0 if g < 2 else aPV1
        off = (32*(g%2))*PITCH + T*32
        A(f"ds_read_b64_tr_b16 {v(vRING+4*slot,2)}, {v(base)} offset:{off}")
        A(f"ds_read_b64_tr_b16 {v(vRING+4*slot+2,2)}, {v(base)} offset:{off+16*PITCH}")
    if cfg.kvpre:
        def qread(t): A(f"ds_read_b128 {v(vQF+4*t,4)}, {v(aQE if t%2==0 else aQO)} offset:{16*t}")
        for t in range(12): qread(t)
        npv = 0
        for t in range(16):
            if t < 4: A(f"s_waitcnt lgkmcnt(11)")
            elif t < 8: A(f"s_waitcnt lgkmcnt({15-t-4+ (0)})") if False else A(f"s_waitcnt lgkmcnt({max(0, 15 - t)})")
            elif t == 8: A(f"s_waitcnt lgkmcnt(0)")
            for tt in range(2):
                acc = vS0 if tt == 0 else vS1
                A(f"v_mfma_f32_16x16x32_bf16 {v(acc,4)}, {v(vRING+4*(2*t+tt),4)}, {v(vQF+4*t,4)}, {'0' if t == 0 else v(acc,4)}")
            if t < 4: qread(12+t)
            if t >= 8:
                if npv >= 4: A(f"s_waitcnt lgkmcnt(8)")
                pvread(npv); pvread(npv+1); npv += 2
        PRE0 = npv
    else:
        LA = 4
        def qkread(t):
            A(f"ds_read_b128 {v(vQF+4*t,4)}, {v(aQE if t%2==0 else aQO)} offset:{16*t}")
            for tt in range(2):
                slot = (2*t+tt) % 16
                A(f"ds_read_b128 {v(vRING+4*slot,4)}, {v(aKE if t%2==0 else aKO)} offset:{16*t + tt*16*PITCH}")
        for t in range(LA): qkread(t)
        for t in range(16):
            A(f"s_waitcnt lgkmcnt({3*min(LA-1, 15-t)})")
            for tt in range(2):
                slot = (2*t+tt) % 16
                acc = vS0 if tt == 0 else vS1
                A(f"v_mfma_f32_16x16x32_bf16 {v(acc,4)}, {v(vRING+4*slot,4)}, {v(vQF+4*t,4)}, {'0' if t == 0 else v(acc,4)}")
            if t + LA < 16: qkread(t+LA)
        PRE0 = 0
    pstamp(A, cfg, 1)
    vM = 44
    A(f"v_max3_f32 {v(vM)}, {v(vS0)}, {v(vS0+1)}, {v(vS0+2)}")
    A(f"v_max3_f32 v45, {v(vS0+3)}, {v(vS1)}, {v(vS1+1)}")
    A(f"v_max3_f32 {v(vM)}, {v(vM)}, {v(vS1+2)}, {v(vS1+3)}")
    A(f"v_max_f32 {v(vM)}, {v(vM)}, v45")
    xreduce_rows(A, "v_max_f32", vM, 45)
    A(f"ds_write_b32 {v(aMXW)}, {v(vM)}")
    def sentinel_wait(name, reads, regs):
        lab = A.newlabel(name); done = A.newlabel(name + "d")
        A(f"s_mov_b32 {s(sCNT2)}, 0")
        A.label(lab)
        reads()
        A(f"s_waitcnt lgkmcnt(0)")
        regs = list(regs)
        A(f"v_max3_u32 v47, {v(regs[0])}, {v(regs[1])}, {v(regs[2])}")
        k = 3
        while k + 1 < len(regs):
            A(f"v_max3_u32 v47, v47, {v(regs[k])}, {v(regs[k+1])}"); k += 2
        if k < len(regs): A(f"v_max_u32 v47, v47, {v(regs[k])}")
        A(f"v_cmp_eq_u32 vcc, -1, v47")
        A(f"s_cbranch_vccz {done}")
        A(f"s_add_u32 {s(sCNT2)}, {s(sCNT2)}, 1")
        A(f"s_cmp_lt_u32 {s(sCNT2)}, 2000000")
        A(f"s_cbranch_scc1 {lab}")
        A.label(done)
    sentinel_wait("L_mx", lambda: A(f"ds_read_b128 v[48:51], {v(aMXR)}"), range(48, 52))
    PRE = PRE0 + 6
    A(f"v_max3_f32 {v(vM)}, v48, v49, v50")
    for k in range(PRE0, PRE): pvread(k)
    A(f"v_max_f32 {v(vM)}, {v(vM)}, v51")
    A(f"s_mov_b32 {s(sT0)}, {hex(f2u(SCALE))}")
    A(f"v_mul_f32 {v(vM)}, {s(sT0)}, {v(vM)}")
    for k in range(8):
        A(f"v_fma_f32 {v(vS0+k)}, {v(vS0+k)}, {s(sT0)}, -{v(vM)}")
    for k in range(8):
        A(f"v_exp_f32 {v(vS0+k)}, {v(vS0+k)}")
    vLs = 46
    for k in range(4):
        A(f"v_cvt_pk_bf16_f32 {v(52+k)}, {v(vS0+2*k)}, {v(vS0+2*k+1)}")
    A(f"ds_write_b128 {v(aPW)}, v[52:55]")
    A(f"v_add_f32 {v(vLs)}, {v(vS0)}, {v(vS0+1)}")
    A(f"v_add_f32 v47, {v(vS0+2)}, {v(vS0+3)}")
    A(f"v_add_f32 v48, {v(vS0+4)}, {v(vS0+5)}")
    A(f"v_add_f32 v49, {v(vS0+6)}, {v(vS0+7)}")
    A(f"v_add_f32 {v(vLs)}, {v(vLs)}, v47")
    A(f"v_add_f32 v48, v48, v49")
    A(f"v_add_f32 {v(vLs)}, {v(vLs)}, v48")
    xreduce_rows(A, "v_add_f32", vLs, 47)
    A(f"ds_write_b32 {v(aMXW)}, {v(vLs)} offset:{L_LS-L_MX}")
    vPF, vO, vPK = 64, 80, 112
    def _rd():
        A(f"ds_read_b128 v[48:51], {v(aMXR)} offset:{L_LS-L_MX}")
        for g in range(4):
            A(f"ds_read_b128 {v(vPF+4*g,4)}, {v(aPR)} offset:{1024*g}")
    sentinel_wait("L_ls", _rd, range(48, 52))
    pstamp(A, cfg, 2)
    nxt = PRE
    outstanding = []
    def issue(k):
        pvread(k); outstanding.extend([("f",k),("f",k)])
    while len(outstanding) + 2 <= 14 and nxt < 32:
        issue(nxt); nxt += 1
    A(f"v_add_f32 v48, v48, v49")
    A(f"v_add_f32 v50, v50, v51")
    A(f"v_add_f32 v47, v48, v50")
    def post(p):
        for T in (2*p, 2*p+1):
            A(f"v_cvt_pk_bf16_f32 {v(vPK+2*T)}, {v(vO+4*T)}, {v(vO+4*T+1)}")
            A(f"v_cvt_pk_bf16_f32 {v(vPK+2*T+1)}, {v(vO+4*T+2)}, {v(vO+4*T+3)}")
        A(f"v_permlane16_swap_b32 {v(vPK+4*p)}, {v(vPK+4*p+2)}")
        A(f"v_permlane16_swap_b32 {v(vPK+4*p+1)}, {v(vPK+4*p+3)}")
        A(f"buffer_store_dwordx4 {v(vPK+4*p,4)}, {v(aOP0 if p < 2 else aOP1)}, {s(sWS,4)}, 0 offen offset:{64*(p%2)} sc1")
        c = 52 + (p >> 1)
        if p % 2 == 0:
            A(f"v_add3_u32 {v(c)}, {v(vPK+4*p)}, {v(vPK+4*p+1)}, {v(vPK+4*p+2)}")
            A(f"v_add_u32 {v(c)}, {v(c)}, {v(vPK+4*p+3)}")
        else:
            A(f"v_add3_u32 {v(c)}, {v(c)}, {v(vPK+4*p)}, {v(vPK+4*p+1)}")
            A(f"v_add3_u32 {v(c)}, {v(c)}, {v(vPK+4*p+2)}, {v(vPK+4*p+3)}")
    for k in range(32):
        T, g = k//4, k%4
        need_idx = -1
        for idx, o in enumerate(outstanding):
            if o == ("f",k): need_idx = max(need_idx, idx)
        can = nxt < 32 and nxt <= k + NSLOT_R - 1
        if can:
            need_idx = max(need_idx, len(outstanding) + 2 - 15 - 1)
        if need_idx >= 0:
            n_after = len(outstanding) - 1 - need_idx
            A(f"s_waitcnt lgkmcnt({n_after})")
            del outstanding[:need_idx+1]
        slot = k % NSLOT_R
        A(f"v_mfma_f32_16x16x32_bf16 {v(vO+4*T,4)}, {v(vRING+4*slot,4)}, {v(vPF+4*g,4)}, {'0' if g == 0 else v(vO+4*T,4)}")
        if can:
            issue(nxt); nxt += 1
        if k in (11, 19, 27):
            post((k - 11)//8)
            if cfg.pubts: A("s_waitcnt lgkmcnt(0)"); del outstanding[:]; pstamp(A, cfg, 3 + (k-11)//8)
    stamp(A, cfg, 5)
    post(3)
    pstamp(A, cfg, 6)
    xreduce_rows2(A, "v_add_u32", 52, 54, "v_add_u32", 53, 55)
    A(f"v_cmp_eq_u32 vcc, 1, {v(vS)}")
    A(f"v_mov_b32 v60, {v(vM)}")
    A(f"v_mov_b32 v61, v47")
    A(f"v_cndmask_b32 v62, v52, v53, vcc")
    A(f"v_add3_u32 v63, v60, v61, v62")
    A(f"v_add_u32 v63, {s(sNONCE)}, v63")
    A(f"s_mov_b64 {s(sEX,2)}, exec")
    A(f"s_mov_b32 exec_hi, 0")
    A(f"buffer_store_dwordx4 v[60:63], {v(aST)}, {s(sWS,4)}, 0 offen sc1")
    A(f"s_mov_b64 exec, {s(sEX,2)}")
    pstamp(A, cfg, 7)
    arrive(A, FPB, 52)
    stamp(A, cfg, 6)
    vOD, vST = 128, 144
    A(f"s_lshl_b32 {s(sT0)}, {s(sH)}, 3")
    A(f"s_add_u32 {s(sT0)}, {s(sT0)}, {s(sJ)}")
    A(f"s_lshl_b32 {s(sT0)}, {s(sT0)}, 2")
    A(f"s_add_u32 {s(sT0)}, {s(sT0)}, {s(sW)}")
    A(f"s_lshl_b32 {s(sT0)}, {s(sT0)}, 5")
    A(f"s_lshl_b32 {s(sT1)}, {s(sT0)}, 7")
    A(f"s_add_u32 {s(sT1)}, {s(sT1)}, {hex(WS_OP)}")
    A(f"v_lshl_add_u32 v40, {v(vL)}, 4, {s(sT1)}")
    A(f"s_lshl_b32 {s(sT1)}, {s(sT0)}, 4")
    A(f"s_add_u32 {s(sT1)}, {s(sT1)}, {hex(WS_ST)}")
    A(f"v_and_b32 v41, 31, {v(vL)}")
    A(f"v_lshl_add_u32 v41, v41, 4, {s(sT1)}")
    A(f"v_cmp_gt_u32 {s(sM0,2)}, 32, {v(vL)}")
    A(f"v_bfe_u32 v42, {v(vN)}, 2, 1")
    A(f"v_lshl_add_u32 v42, {v(vS)}, 1, v42")
    A(f"v_lshlrev_b32 v42, 2, v42")
    if cfg.hop3_ack: A(f"s_waitcnt vmcnt(0)")
    if cfg.wo_flag == 'ACK' or cfg.mlp_w1_flag == 'FP2' or cfg.hop3_ack == 2: arrive(A, FP2, 47)
    if cfg.hop3_ack == 2: wait_flag(A, FP2, 4, 47)
    if cfg.g_ts: stamp(A, cfg, 8)
    if cfg.hop3_sleep: A(f"s_sleep {cfg.hop3_sleep}")
    if cfg.two_stage or cfg.two3:
        lab0 = poll_head(A, "L_hop3t")
        A(f"buffer_load_dwordx4 {v(vST,4)}, v41, {s(sWS,4)}, 0 offen sc1")
        A(f"s_waitcnt vmcnt(0)")
        A(f"v_add3_u32 v45, {v(vST)}, {v(vST+1)}, {v(vST+2)}")
        A(f"v_add_u32 v45, {s(sNONCE)}, v45")
        A(f"v_cmp_ne_u32 {s(sM1,2)}, v45, {v(vST+3)}")
        poll_tail(A, lab0, sM1, cfg.poll_sleep)
        savecnt(A, cfg, 3)
    lab = poll_head(A, "L_hop3")
    for i in range(4):
        A(f"buffer_load_dwordx4 {v(vOD+4*i,4)}, v40, {s(sWS,4)}, 0 offen offset:{1024*i} sc1")
    A(f"buffer_load_dwordx4 {v(vST,4)}, v41, {s(sWS,4)}, 0 offen sc1")
    A(f"s_waitcnt vmcnt(0)")
    sum_dwords(A, 44, range(vOD, vOD+16))
    A(f"v_cndmask_b32 v45, 0, {v(vST+2)}, {s(sM0,2)}")
    A(f"v_sub_u32 v44, v44, v45")
    A(f"v_add3_u32 v45, {v(vST)}, {v(vST+1)}, {v(vST+2)}")
    A(f"v_add_u32 v45, {s(sNONCE)}, v45")
    A(f"v_cmp_ne_u32 {s(sM1,2)}, v45, {v(vST+3)}")
    wave_sum_u32(A, 44, 46)
    A(f"v_cmp_ne_u32 vcc, 0, v44")
    A(f"s_or_b64 {s(sM1,2)}, {s(sM1,2)}, vcc")
    poll_tail(A, lab, sM1, cfg.poll_sleep)
    if cfg.wo_flag == 'FH3' or cfg.mlp_w1_flag == 'FH3' or cfg.mlp_w2 == 'FH3': arrive(A, FCC, 47)
    savecnt(A, cfg, 4)
    stamp(A, cfg, 7)
    A(f"v_mov_b32 v44, {v(vST)}")
    for d in ("quad_perm:[1,0,3,2]", "quad_perm:[2,3,0,1]", "row_half_mirror", "row_mirror"):
        A(f"v_max_f32_dpp v44, v44, v44 {d} row_mask:0xf bank_mask:0xf")
    A(f"v_mov_b32 v46, v44")
    A(f"v_permlane16_swap_b32 v44, v46")
    A(f"v_max_f32 v44, v44, v46")
    A(f"v_sub_f32 v44, {v(vST)}, v44")
    A(f"v_exp_f32 v44, v44")
    for t in range(2):
        A(f"v_swap_b32 {v(vOD+8*t+2)}, {v(vOD+8*t+4)}")
        A(f"v_swap_b32 {v(vOD+8*t+3)}, {v(vOD+8*t+5)}")
    for k in range(4):
        A(f"ds_bpermute_b32 {v(48+k)}, v42, v44 offset:{32*k}")
    A(f"v_mul_f32 v45, v44, {v(vST+1)}")
    for d in ("quad_perm:[1,0,3,2]", "quad_perm:[2,3,0,1]", "row_half_mirror", "row_mirror"):
        A(f"v_add_f32_dpp v45, v45, v45 {d} row_mask:0xf bank_mask:0xf")
    A(f"v_mov_b32 v46, v45")
    A(f"v_permlane16_swap_b32 v45, v46")
    A(f"v_add_f32 v45, v45, v46")
    A(f"v_rcp_f32 v45, v45")
    A(f"s_waitcnt lgkmcnt(0)")
    A(f"v_cvt_pk_bf16_f32 v52, v48, v49")
    A(f"v_cvt_pk_bf16_f32 v53, v50, v51")
    sel_gemm(A, 2, 52, vSEL, vAF0, vAF1, vOD, vQX, vQY)
    for k in range(8):
        A(f"v_permlane16_swap_b32 {v(vQX+k)}, {v(56+k)}")
    for k in range(8):
        A(f"v_add_f32_dpp {v(56+k)}, {v(56+k)}, {v(vQX+k)} row_ror:8 row_mask:0xf bank_mask:0xf")
    for k in range(8):
        A(f"v_mul_f32 {v(56+k)}, {v(56+k)}, v45")
    for k in range(4):
        A(f"v_cvt_pk_bf16_f32 {v(48+k)}, {v(56+2*k)}, {v(56+2*k+1)}")
    A(f"s_lshl_b32 {s(sT0)}, {s(sW)}, 7")
    A(f"s_add_u32 {s(sT0)}, {s(sT0)}, {L_CC}")
    A(f"v_lshl_add_u32 v46, {v(vL)}, 4, {s(sT0)}")
    A(f"s_mov_b64 {s(sEX,2)}, exec")
    A(f"s_mov_b64 exec, 0xff")
    A(f"ds_write_b128 v46, v[48:51]")
    A(f"s_mov_b64 exec, {s(sEX,2)}")
    if not cfg.g_ts: stamp(A, cfg, 8)
    A(f"s_cmp_ge_u32 s2, 64")
    A(f"s_cbranch_scc1 L_Mdone")
    A(f"s_cmp_lg_u32 {s(sW)}, 0")
    A(f"s_cbranch_scc1 L_Mdone")
    if cfg.prio_tail: A(f"s_setprio 0")
    vFD, vFC = 128, 152
    A(f"s_mul_i32 {s(sT0)}, s2, {NSLOT}")
    A(f"s_lshl_b32 {s(sT2)}, {s(sT0)}, 6")
    A(f"s_add_u32 {s(sT2)}, {s(sT2)}, {hex(WS_FD)}")
    A(f"v_lshl_add_u32 v40, {v(vL)}, 4, {s(sT2)}")
    A(f"s_lshl_b32 {s(sT2)}, {s(sT0)}, 3")
    A(f"s_add_u32 {s(sT2)}, {s(sT2)}, {hex(WS_FC)}")
    A(f"v_lshl_add_u32 v41, {v(vL)}, 3, {s(sT2)}")
    A(f"v_mov_b32 v47, 0x7ffffff0")
    NP = 32 if cfg.nomlp else NPROD
    A(f"v_lshrrev_b32 v44, 2, {v(vL)}")
    A(f"v_add_u32 v44, 32, v44")
    A(f"v_cmp_gt_u32 vcc, {NP}, v44")
    A(f"v_add_u32 v46, 2048, v40")
    A(f"v_cndmask_b32 v42, v47, v46, vcc")
    A(f"v_cmp_gt_u32 {s(sM2,2)}, {NP}, {v(vL)}")
    A(f"v_cndmask_b32 v41, v47, v41, {s(sM2,2)}")
    A(f"v_and_b32 v44, 3, {v(vN)}")
    A(f"v_mov_b32 v45, 0")
    for k, (j0, j1) in enumerate(((0,1),(2,3))):
        A(f"v_mov_b32 v46, 0x3f80")
        A(f"v_cmp_eq_u32 vcc, {j0}, v44")
        A(f"v_cndmask_b32 {v(vAF0+k)}, v45, v46, vcc")
        A(f"v_mov_b32 v46, 0x3f800000")
        A(f"v_cmp_eq_u32 vcc, {j1}, v44")
        A(f"v_cndmask_b32 {v(vAF0+k)}, {v(vAF0+k)}, v46, vcc")
    A(f"v_mov_b32 {v(vAF0+2)}, {v(vAF0)}")
    A(f"v_mov_b32 {v(vAF0+3)}, {v(vAF0+1)}")
    for k in range(4): A(f"v_mov_b32 {v(vFD+12+k)}, 0")
    A(f"s_lshl_b32 {s(sT3)}, s2, 6")
    A(f"v_lshl_add_u32 v57, {v(vL)}, 4, {s(sT3)}")
    if cfg.hop5_gate: wait_flag(A, FT, 1, 44)
    if cfg.prio_tail: A(f"s_setprio 3")
    lab = poll_head(A, "L_hop5")
    for i in range(2):
        A(f"buffer_load_dwordx4 {v(vFD+4*i,4)}, v40, {s(sWS,4)}, 0 offen offset:{1024*i} sc1")
    A(f"buffer_load_dwordx4 {v(vFD+8,4)}, v42, {s(sWS,4)}, 0 offen sc1")
    A(f"buffer_load_dwordx2 {v(vFC,2)}, v41, {s(sWS,4)}, 0 offen sc1")
    A(f"s_waitcnt vmcnt(0)")
    sum_dwords(A, 44, range(vFD, vFD+12))
    A(f"v_sub_u32 v44, v44, {v(vFC)}")
    A(f"v_add_u32 v45, {s(sNONCE)}, {v(vFC)}")
    A(f"v_cmp_ne_u32 vcc, v45, {v(vFC+1)}")
    wave_sum_u32(A, 44, 46)
    A(f"s_and_b64 {s(sM1,2)}, vcc, {s(sM2,2)}")
    A(f"v_cmp_ne_u32 vcc, 0, v44")
    A(f"s_or_b64 {s(sM1,2)}, {s(sM1,2)}, vcc")
    poll_tail(A, lab, sM1, cfg.poll_sleep)
    savecnt(A, cfg, 5)
    stamp(A, cfg, 9)
    for p in range(2):
        w = vFD + 8*p
        A(f"v_swap_b32 {v(w+2)}, {v(w+4)}")
        A(f"v_swap_b32 {v(w+3)}, {v(w+5)}")
    for p in range(2):
        w = vFD + 8*p
        c0 = "0" if p == 0 else v(vQX,4); c1 = "0" if p == 0 else v(vQY,4)
        A(f"v_mfma_f32_16x16x32_bf16 {v(vQX,4)}, {v(vAF0,4)}, {v(w,4)}, {c0}")
        A(f"v_mfma_f32_16x16x32_bf16 {v(vQY,4)}, {v(vAF0,4)}, {v(w+4,4)}, {c1}")
    for d in ("row_ror:4", "row_ror:8"):
        for k in range(8):
            A(f"v_add_f32_dpp {v(vQX+k)}, {v(vQX+k)}, {v(vQX+k)} {d} row_mask:0xf bank_mask:0xf")
    for k in range(4):
        A(f"v_cvt_pk_bf16_f32 {v(48+k)}, {v(vQX+2*k)}, {v(vQX+2*k+1)}")
    A(f"s_mov_b64 exec, 0xf")
    A(f"buffer_store_dwordx4 v[48:51], v57, {s(sOUT,4)}, 0 offen")
    A(f"s_cmp_lg_u32 s2, 0")
    A(f"s_cbranch_scc1 L_Mdone")
    A(f"s_add_u32 {s(sT0)}, {s(sE)}, 1")
    A(f"v_mov_b32 v52, {s(sT0)}")
    A(f"v_mov_b32 v53, {hex(WS_E)}")
    A(f"s_mov_b64 exec, 1")
    A(f"buffer_store_dword v52, v53, {s(sWS,4)}, 0 offen sc1")
    A.label("L_Mdone")
    if cfg.ts:
        A(f"s_mov_b64 exec, -1")
        emit_ts(A, cfg)
    A(f"s_endpgm")
    A.label("L_Lpath")
    LSLEEP[0] = cfg.lsleep
    vGX, vGW = 64, 80
    vW1, vW2, vB1, vH = 128, 160, 192, 196
    A(f"s_sub_u32 {s(sW)}, {s(sW)}, 4")
    A(f"v_lshlrev_b32 v40, 4, {v(vL)}")
    A(f"v_mov_b32 v43, {hex(WS_E)}")
    if cfg.prefetch_code:
        A(f"s_cmp_lg_u32 {s(sW)}, 3")
        A(f"s_cbranch_scc1 L_nopf")
        A(f"s_getpc_b64 s[66:67]")
        A.label("L_pcref")
        A(f"s_sub_u32 s66, s66, (L_pcref-{KNAME})")
        A(f"s_subb_u32 s67, s67, 0")
        A(f"s_lshl_b32 {s(sT2)}, {s(sR)}, 10")
        A(f"v_lshl_add_u32 v44, {v(vL)}, 7, {s(sT2)}")
        A(f"v_cmp_gt_u32 vcc, (L_end-{KNAME}), v44")
        A(f"v_cmp_gt_u32 {s(sM3,2)}, 8, {v(vL)}")
        A(f"s_and_b64 vcc, vcc, {s(sM3,2)}")
        A(f"s_and_saveexec_b64 {s(sEX,2)}, vcc")
        A(f"s_cbranch_execz L_pfskip")
        A(f"global_load_dword v63, v44, s[66:67]")
        A.label("L_pfskip")
        A(f"s_mov_b64 exec, {s(sEX,2)}")
        A.label("L_nopf")
    if cfg.tlb:
        A(f"s_cmp_lg_u32 {s(sW)}, 2")
        A(f"s_cbranch_scc1 L_notlb")
        st = cfg.tlb
        A(f"v_lshlrev_b32 v44, 16, {v(vL)}")
        A(f"v_add_u32 v45, {hex(WS_OP)}, v44")
        A(f"buffer_load_dword v62, v45, {s(sWS,4)}, 0 offen")
        A(f"v_lshlrev_b32 v45, 15, {v(vL)}")
        A(f"buffer_load_dword v62, v45, {s(sWS,4)}, 0 offen")
        A(f"v_add_u32 v45, {hex(LOCAL_DELTA)}, v45")
        A(f"buffer_load_dword v62, v45, {s(sWS,4)}, 0 offen")
        A(f"buffer_load_dword v62, v44, {s(sWUV,4)}, 0 offen")
        A(f"buffer_load_dword v62, v44, {s(sWO,4)}, 0 offen")
        A(f"buffer_load_dword v62, v44, {s(sW1,4)}, 0 offen")
        A(f"buffer_load_dword v62, v44, {s(sW2,4)}, 0 offen")
        A(f"buffer_load_dword v62, v44, {s(sOUT,4)}, 0 offen")
        A(f"buffer_load_dword v62, v44, {s(sGW,4)}, 0 offen")
        A(f"buffer_load_dword v62, v44, {s(sB1,4)}, 0 offen")
        A.label("L_notlb")
    if cfg.tail_early:
        make_sels(A, vN, vSEL, 44)
        A(f"s_cmp_eq_u32 {s(sW)}, 0")
        A(f"s_cbranch_scc1 L_tail")
        A(f"s_sub_u32 {s(sT2)}, {s(sW)}, 1")
        A(f"s_mul_i32 {s(sT2)}, {s(sT2)}, 43")
        A(f"s_add_u32 {s(sT3)}, {s(sT2)}, 43")
        A(f"s_min_u32 {s(sT3)}, {s(sT3)}, 128")
        A(f"s_lshl_b32 {s(sT0)}, {s(sB)}, 12")
        A(f"s_lshl_b32 {s(sT1)}, {s(sKC)}, 7")
        A(f"s_add_u32 {s(sT0)}, {s(sT0)}, {s(sT1)}")
        A(f"s_add_u32 {s(sT0)}, {s(sT0)}, {s(sT2)}")
        A(f"s_lshl_b32 {s(sT0)}, {s(sT0)}, 10")
        A(f"s_mul_i32 {s(sT1)}, {s(sT2)}, {PITCH}")
        A(f"s_mov_b32 m0, {s(sT1)}")
        A(f"s_mov_b32 {s(sCNT)}, {s(sT2)}")
    else:
        A(f"s_lshl_b32 {s(sT0)}, {s(sB)}, 12")
        A(f"s_lshl_b32 {s(sT1)}, {s(sKC)}, 7")
        A(f"s_add_u32 {s(sT0)}, {s(sT0)}, {s(sT1)}")
        A(f"s_lshl_b32 {s(sT1)}, {s(sW)}, 5")
        A(f"s_add_u32 {s(sT0)}, {s(sT0)}, {s(sT1)}")
        A(f"s_lshl_b32 {s(sT0)}, {s(sT0)}, 10")
        A(f"s_mul_i32 {s(sT1)}, {s(sW)}, {32*PITCH}")
        A(f"s_mov_b32 m0, {s(sT1)}")
        A(f"s_mov_b32 {s(sCNT)}, 0")
    if cfg.l_delay: wait_flag(A, FW, 1, 45)
    if cfg.kvwin0:
        A.label("L_dma0")
        A(f"s_waitcnt vmcnt({cfg.kvwin0-1})")
        A(f"buffer_load_dwordx4 v40, {s(sKV,4)}, {s(sT0)} offen{NTKV} lds")
        A(f"s_add_u32 m0, m0, {PITCH}")
        A(f"s_add_u32 {s(sT0)}, {s(sT0)}, 1024")
        A(f"s_add_u32 {s(sCNT)}, {s(sCNT)}, 1")
        A(f"s_cmp_lt_u32 {s(sCNT)}, {cfg.kvn0}")
        A(f"s_cbranch_scc1 L_dma0")
    A.label("L_dma")
    if cfg.kvwin < 32: A(f"s_waitcnt vmcnt({cfg.kvwin-1})")
    A(f"buffer_load_dwordx4 v40, {s(sKV,4)}, {s(sT0)} offen{NTKV} lds")
    A(f"s_add_u32 m0, m0, {PITCH}")
    A(f"s_add_u32 {s(sT0)}, {s(sT0)}, 1024")
    A(f"s_add_u32 {s(sCNT)}, {s(sCNT)}, 1")
    A(f"s_cmp_lt_u32 {s(sCNT)}, {s(sT3) if cfg.tail_early else 32}")
    A(f"s_cbranch_scc1 L_dma")
    arrive(A, FKI, 45)
    stamp(A, cfg, 2, L=True)
    if not cfg.tail_early: make_sels(A, vN, vSEL, 44)
    if cfg.pw_op:
        A(f"s_cmp_lg_u32 {s(sW)}, 1")
        A(f"s_cbranch_scc1 L_nopw3")
        A(f"s_lshl_b32 {s(sT0)}, {s(sHG)}, 4")
        A(f"v_add_u32 v48, {s(sT0)}, {v(vN)}")
        A(f"v_lshlrev_b32 v48, 10, v48")
        A(f"s_lshl_b32 {s(sT1)}, {s(sB)}, 5")
        A(f"s_add_u32 {s(sT0)}, {s(sT1)}, {s(sKC)}")
        A(f"v_add_u32 v48, {s(sT0)}, v48")
        A(f"v_lshlrev_b32 v49, 4, {v(vS)}")
        A(f"v_lshl_add_u32 v49, v48, 7, v49")
        A(f"v_add_u32 v49, {hex(WS_OP)}, v49")
        A(f"v_lshl_add_u32 v48, {v(vS)}, 7, v48")
        A(f"v_lshlrev_b32 v48, 4, v48")
        A(f"v_add_u32 v48, {hex(WS_ST)}, v48")
        for k in range(4): A(f"v_mov_b32 {v(52+k)}, 0")
        A(f"s_mov_b32 {s(sT2)}, 0")
        for q in range(8):
            for u in range(2):
                A(f"buffer_store_dwordx4 v[52:55], v49, {s(sWS,4)}, {s(sT2)} offen offset:{64*u} sc1")
            if q < 7: A(f"s_add_u32 {s(sT2)}, {s(sT2)}, 16384")
        A(f"s_mov_b32 {s(sT2)}, 0")
        A(f"s_mov_b32 exec_hi, 0")
        for mw in range(4):
            A(f"buffer_store_dwordx4 v[52:55], v48, {s(sWS,4)}, {s(sT2)} offen sc1")
            if mw < 3: A(f"s_add_u32 {s(sT2)}, {s(sT2)}, 4096")
        A(f"s_mov_b64 exec, -1")
        A(f"s_waitcnt vmcnt(20)")
        arrive(A, FKV, 45)
        A(f"s_waitcnt vmcnt(0)")
        arrive(A, FP3, 45)
        A(f"s_branch L_gate")
        A.label("L_nopw3")
    A(f"s_waitcnt vmcnt(0)")
    arrive(A, FKV, 45)
    stamp(A, cfg, 3, L=True)
    if cfg.exp: A(f"s_branch L_Ldone")
    A(f"s_cmp_eq_u32 {s(sW)}, 0")
    A(f"s_cbranch_scc1 L_tail")
    A(f"s_cmp_lg_u32 {s(sW)}, 1")
    A(f"s_cbranch_scc1 L_mlpw")
    A.label("L_gate")
    for b in range(4):
        A(f"buffer_load_dwordx4 {v(vGX+4*b,4)}, v40, {s(sX,4)}, 0 offen offset:{1024*b}")
    A(f"buffer_load_dwordx4 {v(vGW,4)}, v40, {s(sGW,4)}, 0 offen")
    for b in range(4):
        A(f"v_mov_b32 {v(44+b)}, 0")
    A(f"s_waitcnt vmcnt(0)")
    for k in range(4):
        for b in range(4):
            A(f"v_dot2_f32_bf16 {v(44+b)}, {v(vGX+4*b+k)}, {v(vGW+k)}, {v(44+b)}")
    A("s_nop 3")
    for d in ("quad_perm:[1,0,3,2]", "quad_perm:[2,3,0,1]", "row_half_mirror", "row_mirror"):
        for b in range(4):
            A(f"v_add_f32_dpp {v(44+b)}, {v(44+b)}, {v(44+b)} {d} row_mask:0xf bank_mask:0xf")
    xreduce_rows2(A, "v_add_f32", 44, 48, "v_add_f32", 45, 49)
    xreduce_rows2(A, "v_add_f32", 46, 48, "v_add_f32", 47, 49)
    A(f"v_cmp_eq_u32 vcc, 1, {v(vS)}")
    A(f"v_cndmask_b32 v44, v44, v45, vcc")
    A(f"v_cmp_eq_u32 vcc, 2, {v(vS)}")
    A(f"v_cndmask_b32 v44, v44, v46, vcc")
    A(f"v_cmp_eq_u32 vcc, 3, {v(vS)}")
    A(f"v_cndmask_b32 v44, v44, v47, vcc")
    A(f"s_mov_b32 {s(sT0)}, {hex(f2u(-LOG2E))}")
    A(f"v_mul_f32 v44, {s(sT0)}, v44")
    A(f"v_exp_f32 v44, v44")
    A(f"v_add_f32 v44, 1.0, v44")
    A(f"v_rcp_f32 v58, v44")
    A(f"v_lshlrev_b32 v45, 2, {v(vS)}")
    A(f"v_add_u32 v45, {L_G}, v45")
    A(f"ds_write_b32 v45, v58")
    arrive(A, FG, 45)
    A(f"s_branch L_Ldone")
    A.label("L_mlpw")
    A(f"s_cmp_lg_u32 {s(sW)}, 2")
    A(f"s_cbranch_scc1 L_Ldone")
    if cfg.nomlp: A(f"s_branch L_Ldone")
    sNS, sJM, sMHJ = sT3, sT4, sT5
    A(f"s_lshr_b32 {s(sT0)}, {s(sR)}, 3")
    A(f"s_lshl_b32 {s(sT0)}, {s(sT0)}, 3")
    A(f"s_add_u32 {s(sNS)}, {s(sT0)}, {s(sXCD)}")
    A(f"s_cmp_ge_u32 {s(sNS)}, {NMG}")
    A(f"s_cbranch_scc1 L_Ldone")
    A(f"s_and_b32 {s(sJM)}, {s(sR)}, 7")
    A(f"s_lshl_b32 {s(sMHJ)}, {s(sNS)}, 3")
    A(f"s_add_u32 {s(sMHJ)}, {s(sMHJ)}, {s(sJM)}")
    vMX, vMW1, vMW2, vMB1 = 8, 64, 128, 60
    vONE, vG1, vCK1 = 192, 208, 240
    vPUB, vCPUB, vGA, vGB, vGC = 52, 53, 54, 55, 56
    A(f"v_lshrrev_b32 v41, 2, {v(vN)}")
    A(f"v_lshlrev_b32 v41, 10, v41")
    A(f"v_lshl_add_u32 v41, {v(vS)}, 5, v41")
    A(f"s_lshl_b32 {s(sT0)}, {s(sJM)}, 7")
    A(f"v_add_u32 v41, {s(sT0)}, v41")
    A(f"s_lshl_b32 {s(sT0)}, {s(sJM)}, 6")
    A(f"v_lshl_add_u32 v42, {v(vS)}, 4, {s(sT0)}")
    A(f"s_movk_i32 {s(sT1)}, 2752")
    A(f"v_mul_lo_u32 v42, v42, {s(sT1)}")
    A(f"s_lshl_b32 {s(sT0)}, {s(sNS)}, 8")
    A(f"v_lshl_add_u32 v44, {v(vN)}, 4, {s(sT0)}")
    A(f"v_add_u32 v42, v42, v44")
    A(f"v_cmp_gt_u32 vcc, 2752, v44")
    A(f"v_mov_b32 v45, 0x7ffffff0")
    A(f"v_cndmask_b32 v42, v45, v42, vcc")
    A(f"v_cndmask_b32 v44, v45, v44, vcc")
    A(f"s_lshl_b32 {s(sT0)}, {s(sNS)}, 17")
    A(f"s_lshl_b32 {s(sT1)}, {s(sJM)}, 7")
    A(f"s_add_u32 {s(sT0)}, {s(sT0)}, {s(sT1)}")
    A(f"v_lshlrev_b32 v46, 15, {v(vS)}")
    A(f"v_lshl_add_u32 v46, {v(vN)}, 3, v46")
    A(f"v_add_u32 v48, {s(sT0)}, v46")
    if cfg.mlp_w1_flag == 'FH3': wait_flag(A, FCC, 1, 46)
    elif cfg.mlp_w1_flag: wait_flag(A, globals()[cfg.mlp_w1_flag], 4, 46)
    stamp(A, cfg, 4, L=True)
    A(f"buffer_load_dword v40, v43, {s(sWS,4)}, 0 offen sc1")
    for k in range(2):
        A(f"buffer_load_dwordx4 {v(vMX+4*k,4)}, v41, {s(sX,4)}, 0 offen offset:{16*k}")
    A(f"buffer_load_dwordx4 {v(vMB1,4)}, v44, {s(sB1,4)}, 0 offen")
    A(f"s_mov_b32 {s(sT2)}, 0")
    for k in range(16):
        A(f"buffer_load_dwordx4 {v(vMW1+4*k,4)}, v42, {s(sW1,4)}, {s(sT2)} offen{NT}")
        if k < 15: A(f"s_add_u32 {s(sT2)}, {s(sT2)}, 2752")
    def w2_loads():
        A(f"s_mov_b32 {s(sT2)}, 0")
        for k in range(32):
            A(f"buffer_load_dwordx2 {v(vMW2+2*k,2)}, v43, {s(sW2,4)}, {s(sT2)} offen offset:{1024*(k%4)}{NT}")
            if k % 4 == 3 and k < 31: A(f"s_add_u32 {s(sT2)}, {s(sT2)}, 4096")
    A(f"v_mov_b32 v43, v48")
    NW2 = 0 if cfg.mlp_w2 else 32
    if not cfg.mlp_w2: w2_loads()
    make_ones(A, vN, vONE, 46)
    partial_offsets(A, vL, vN, vS, WS_H1, WS_H1C, vPUB, vCPUB, vGA, vGB, vGC, 46, sMHJ, sNS)
    A(f"v_lshrrev_b32 v46, 3, {v(vN)}")
    A(f"v_lshl_add_u32 v46, {v(vS)}, 4, v46")
    A(f"s_lshl_b32 {s(sT0)}, {s(sJM)}, 1")
    A(f"v_add_u32 v46, {s(sT0)}, v46")
    A(f"s_movk_i32 {s(sT1)}, {NSLOT}")
    A(f"v_mul_lo_u32 v46, v46, {s(sT1)}")
    A(f"s_add_u32 {s(sT0)}, {s(sNS)}, 32")
    A(f"v_add_u32 v46, {s(sT0)}, v46")
    A(f"v_lshlrev_b32 v58, 3, v46")
    A(f"v_add_u32 v58, {hex(WS_FC)}, v58")
    A(f"v_and_b32 v49, 7, {v(vN)}")
    A(f"v_lshlrev_b32 v49, 3, v49")
    A(f"v_lshl_add_u32 v57, v46, 6, v49")
    A(f"v_add_u32 v57, {hex(WS_FD)}, v57")
    A(f"v_lshlrev_b32 v41, 4, {v(vL)}")
    A(f"v_add_u32 v41, {L_HR}, v41")
    A(f"v_lshrrev_b32 v42, 2, {v(vN)}")
    A(f"v_lshlrev_b32 v42, 8, v42")
    A(f"v_lshl_add_u32 v42, {v(vS)}, 6, v42")
    A(f"v_add_u32 v42, {L_HR}, v42")
    A(f"s_waitcnt vmcnt({16+NW2})")
    nonce_from(A, 40)
    sel_gemm(A, 8, vMX, vSEL, 24, 28, vMW1, 32, 36, swap=True, wwait=lambda t: A(f"s_waitcnt vmcnt({NW2 + 14 - 2*t})"))
    publish_partial(A, 32, 36, 242, vPUB, vCPUB, 46, cfg.local_st, cfg.dual, cfg.defer)
    stamp(A, cfg, 5, L=True)
    if cfg.hopm_ack: A(f"s_waitcnt vmcnt(0)")
    gather_reduce(A, cfg, "L_hopm", vG1, vCK1, vONE, vGA, vGB, vGC, 32, 36, 46, 242)
    stamp(A, cfg, 6, L=True)
    if cfg.mlp_w2 == 'FH3': wait_flag(A, FCC, 1, 46)
    if cfg.mlp_w2 == 'FPB': wait_flag(A, FPB, 4, 46)
    if cfg.mlp_w2: w2_loads()
    vH, vHa, vHn, vHd = 32, 208, 216, 224
    for e in range(8):
        r = vMB1 + e//2
        if e % 2 == 0: A(f"v_lshlrev_b32 {v(vHa+e)}, 16, {v(r)}")
        else: A(f"v_and_b32 {v(vHa+e)}, 0xffff0000, {v(r)}")
    for e in range(8):
        A(f"v_add_f32 {v(vH+e)}, {v(vH+e)}, {v(vHa+e)}")
    A(f"s_mov_b32 {s(sT0)}, {hex(f2u(-LOG2E))}")
    for e in range(8):
        A(f"v_mul_f32 {v(vHa+e)}, {s(sT0)}, abs({v(vH+e)})")
    for e in range(8):
        A(f"v_exp_f32 {v(vHa+e)}, {v(vHa+e)}")
    for e in range(8):
        a_, h_, n_, d_ = vHa+e, vH+e, vHn+e, vHd+e
        A(f"v_cmp_lt_f32 vcc, 0, {v(h_)}")
        A(f"v_mul_f32 {v(d_)}, {v(a_)}, {v(a_)}")
        A(f"v_cndmask_b32 {v(n_)}, {v(d_)}, 1.0, vcc")
        A(f"v_fma_f32 {v(n_)}, 2.0, {v(a_)}, {v(n_)}")
        A(f"v_cndmask_b32 {v(d_)}, 1.0, {v(d_)}, vcc")
        A(f"v_fma_f32 {v(d_)}, 2.0, {v(d_)}, {v(n_)}")
        A(f"v_rcp_f32 {v(d_)}, {v(d_)}")
        A(f"v_mul_f32 {v(n_)}, {v(n_)}, {v(h_)}")
        A(f"v_mul_f32 {v(h_)}, {v(n_)}, {v(d_)}")
    for k in range(4):
        A(f"v_cvt_pk_bf16_f32 {v(16+k)}, {v(vH+2*k)}, {v(vH+2*k+1)}")
    A(f"ds_write_b128 v41, v[16:19]")
    for k in range(4):
        A(f"ds_read_b128 {v(8+4*k,4)}, v42 offset:{16*k}")
    A(f"v_lshlrev_b32 v45, 2, {v(vS)}")
    A(f"v_add_u32 v45, {L_G}, v45")
    wait_flag(A, FG, 1, 46, lambda: A(f"ds_read_b32 v59, v45"))
    if cfg.mlp_w2: A(f"s_waitcnt vmcnt(0)")
    sel_gemm(A, 16, 8, vSEL, 24, 28, vMW2, 32)
    A(f"v_sub_f32 v59, 1.0, v59")
    for k in range(4):
        A(f"v_mul_f32 {v(32+k)}, {v(32+k)}, v59")
    A(f"v_cvt_pk_bf16_f32 v16, v32, v33")
    A(f"v_cvt_pk_bf16_f32 v17, v34, v35")
    A(f"buffer_store_dwordx2 v[16:17], v57, {s(sWS,4)}, 0 offen sc1")
    A(f"v_add_u32 v46, v16, v17")
    for d in ("quad_perm:[1,0,3,2]", "quad_perm:[2,3,0,1]", "row_half_mirror"):
        A(f"v_add_u32_dpp v46, v46, v46 {d} row_mask:0xf bank_mask:0xf")
    A(f"v_add_u32 v47, {s(sNONCE)}, v46")
    A(f"s_mov_b32 exec_lo, 0x01010101")
    A(f"s_mov_b32 exec_hi, 0x01010101")
    A(f"buffer_store_dwordx2 v[46:47], v58, {s(sWS,4)}, 0 offen sc1")
    A(f"s_mov_b64 exec, -1")
    late_copy(A, cfg, 242, vPUB, vCPUB)
    stamp(A, cfg, 7, L=True)
    A(f"s_branch L_Ldone")
    A.label("L_tail")
    vWUV, vWO = 64, 128
    A(f"s_lshl_b32 {s(sT0)}, {s(sJ)}, 19")
    A(f"s_lshl_b32 {s(sT1)}, {s(sH)}, 8")
    A(f"s_add_u32 {s(sT0)}, {s(sT0)}, {s(sT1)}")
    A(f"v_lshlrev_b32 v41, 17, {v(vS)}")
    A(f"v_lshl_add_u32 v41, {v(vN)}, 4, v41")
    A(f"v_add_u32 v41, {s(sT0)}, v41")
    A(f"s_lshl_b32 {s(sT0)}, {s(sH)}, 17")
    A(f"s_lshl_b32 {s(sT1)}, {s(sJ)}, 7")
    A(f"s_add_u32 {s(sT0)}, {s(sT0)}, {s(sT1)}")
    A(f"v_lshlrev_b32 v42, 15, {v(vS)}")
    A(f"v_lshl_add_u32 v42, {v(vN)}, 3, v42")
    A(f"v_add_u32 v42, {s(sT0)}, v42")
    A(f"buffer_load_dword v61, v43, {s(sWS,4)}, 0 offen sc1")
    vPUB, vCPUB, vGA, vGB, vGC = 52, 53, 54, 55, 56
    partial_offsets(A, vL, vN, vS, WS_C1, WS_C1C, vPUB, vCPUB, vGA, vGB, vGC, 46)
    A(f"v_lshrrev_b32 v46, 3, {v(vN)}")
    A(f"v_lshl_add_u32 v46, {v(vS)}, 4, v46")
    A(f"s_lshl_b32 {s(sT0)}, {s(sJ)}, 1")
    A(f"v_add_u32 v46, {s(sT0)}, v46")
    A(f"s_movk_i32 {s(sT1)}, {NSLOT}")
    A(f"v_mul_lo_u32 v46, v46, {s(sT1)}")
    A(f"v_add_u32 v46, {s(sH)}, v46")
    A(f"v_lshlrev_b32 v60, 3, v46")
    A(f"v_add_u32 v60, {hex(WS_FC)}, v60")
    A(f"v_and_b32 v47, 7, {v(vN)}")
    A(f"v_lshlrev_b32 v47, 3, v47")
    A(f"v_lshl_add_u32 v59, v46, 6, v47")
    A(f"v_add_u32 v59, {hex(WS_FD)}, v59")
    if cfg.tail_early:
        if cfg.tail_delay: wait_flag(A, globals()[cfg.tail_delay], 1, 45)
    elif cfg.tail_flag: wait_flag(A, globals()[cfg.tail_flag], 4, 45)
    A(f"s_mov_b32 {s(sT2)}, 0")
    for k in range(16):
        if cfg.tailwin and k >= cfg.tailwin: A(f"s_waitcnt vmcnt({cfg.tailwin-1})")
        A(f"buffer_load_dwordx4 {v(vWUV+4*k,4)}, v41, {s(sWUV,4)}, {s(sT2)} offen{NT}")
        if k < 15: A(f"s_add_u32 {s(sT2)}, {s(sT2)}, 8192")
    def wo_loads():
        A(f"s_mov_b32 {s(sT2)}, 0")
        for k in range(32):
            if cfg.tailwin2 and k % 2 == 0: A(f"s_waitcnt vmcnt({cfg.tailwin2-2})")
            A(f"buffer_load_dwordx2 {v(vWO+2*k,2)}, v62, {s(sWO,4)}, {s(sT2)} offen offset:{1024*(k%4)}{NT}")
            if k % 4 == 3 and k < 31: A(f"s_add_u32 {s(sT2)}, {s(sT2)}, 4096")
    A(f"v_mov_b32 v62, v42")
    if not cfg.wo_flag: wo_loads()
    vONE, vG1, vCK1 = 192, 208, 240
    A(f"s_waitcnt vmcnt({16 if cfg.wo_flag else 48})")
    nonce_from(A, 61)
    A(f"v_lshlrev_b32 v45, 2, {v(vS)}")
    A(f"v_add_u32 v45, {L_G}, v45")
    wait_flag(A, FG, 1, 46, lambda: A(f"ds_read_b32 v58, v45"))
    make_ones(A, vN, vONE, 46)
    A(f"v_lshrrev_b32 v44, 2, {v(vN)}")
    A(f"v_lshlrev_b32 v42, 7, v44")
    A(f"v_lshl_add_u32 v42, {v(vS)}, 5, v42")
    A(f"v_add_u32 v42, {L_CC}, v42")
    A(f"v_lshlrev_b32 v43, 4, {v(vL)}")
    A(f"v_add_u32 v43, {L_CT}, v43")
    A(f"v_lshlrev_b32 v44, 8, v44")
    A(f"v_lshl_add_u32 v44, {v(vS)}, 6, v44")
    A(f"v_add_u32 v44, {L_CT}, v44")
    A(f"s_waitcnt vmcnt({0 if cfg.wo_flag else 32})")
    for t in range(8):
        A(f"v_swap_b32 {v(vWUV+8*t+2)}, {v(vWUV+8*t+4)}")
        A(f"v_swap_b32 {v(vWUV+8*t+3)}, {v(vWUV+8*t+5)}")
    if cfg.wo_flag == 'FPB':
        wait_flag(A, FPB, 4, 45)
        wo_loads()
    if cfg.wo_flag == 'FH3':
        wait_flag(A, FCC, 1, 45)
        wo_loads()
    if cfg.wo_flag == 'ACK':
        wait_flag(A, FP2, 4, 45)
        wo_loads()
    if not cfg.wo_flag: A(f"s_waitcnt vmcnt(0)")
    stamp(A, cfg, 4, L=True)
    vCP = 8
    def _rd():
        A(f"ds_read_b128 {v(vCP,4)}, v42")
        A(f"ds_read_b128 {v(vCP+4,4)}, v42 offset:16")
    if cfg.prio_tail: A(f"s_setprio 3")
    lab = A.newlabel("L_cc"); done = A.newlabel("L_ccd")
    A(f"s_mov_b32 {s(sCNT2)}, 0")
    A.label(lab)
    _rd()
    A(f"s_waitcnt lgkmcnt(0)")
    A(f"v_max3_u32 v45, {v(vCP)}, {v(vCP+1)}, {v(vCP+2)}")
    A(f"v_max3_u32 v46, {v(vCP+3)}, {v(vCP+4)}, {v(vCP+5)}")
    A(f"v_max3_u32 v45, v45, {v(vCP+6)}, {v(vCP+7)}")
    A(f"v_max_u32 v45, v45, v46")
    A(f"v_cmp_eq_u32 vcc, -1, v45")
    A(f"s_cbranch_vccz {done}")
    if cfg.ccsleep: A(f"s_sleep {cfg.ccsleep}")
    A(f"s_add_u32 {s(sCNT2)}, {s(sCNT2)}, 1")
    A(f"s_cmp_lt_u32 {s(sCNT2)}, 4000000")
    A(f"s_cbranch_scc1 {lab}")
    A.label(done)
    stamp(A, cfg, 5, L=True)
    if cfg.wo_flag == 'FCC': wo_loads()
    sel_gemm(A, 8, vCP, vSEL, 24, 28, vWUV, 32, 36)
    publish_partial(A, 32, 36, 242, vPUB, vCPUB, 46, cfg.local_st, cfg.dual, cfg.defer)
    stamp(A, cfg, 6, L=True)
    if cfg.hop4_ack: A(f"s_waitcnt vmcnt(0)")
    gather_reduce(A, cfg, "L_hop4", vG1, vCK1, vONE, vGA, vGB, vGC, 32, 36, 46, 242)
    savecnt(A, cfg, 0)
    stamp(A, cfg, 7, L=True)
    A(f"v_cvt_pk_bf16_f32 v16, v32, v33")
    A(f"v_cvt_pk_bf16_f32 v17, v34, v35")
    A(f"v_cvt_pk_bf16_f32 v18, v36, v37")
    A(f"v_cvt_pk_bf16_f32 v19, v38, v39")
    A(f"ds_write_b128 v43, v[16:19]")
    vXP2 = 8
    for k in range(4):
        A(f"ds_read_b128 {v(vXP2+4*k,4)}, v44 offset:{16*k}")
    def _x(t):
        if t % 4 == 0: A(f"s_waitcnt lgkmcnt({3-t//4})")
    sel_gemm(A, 16, vXP2, vSEL, 24, 28, vWO, 32, xwait=_x)
    for k in range(4):
        A(f"v_mul_f32 {v(32+k)}, {v(32+k)}, v58")
    A(f"v_cvt_pk_bf16_f32 v16, v32, v33")
    A(f"v_cvt_pk_bf16_f32 v17, v34, v35")
    if cfg.pw_fd: wait_flag(A, FP2, 1, 45)
    A(f"buffer_store_dwordx2 v[16:17], v59, {s(sWS,4)}, 0 offen sc1")
    A(f"v_add_u32 v46, v16, v17")
    for d in ("quad_perm:[1,0,3,2]", "quad_perm:[2,3,0,1]", "row_half_mirror"):
        A(f"v_add_u32_dpp v46, v46, v46 {d} row_mask:0xf bank_mask:0xf")
    A(f"v_add_u32 v47, {s(sNONCE)}, v46")
    A(f"s_mov_b32 exec_lo, 0x01010101")
    A(f"s_mov_b32 exec_hi, 0x01010101")
    A(f"buffer_store_dwordx2 v[46:47], v60, {s(sWS,4)}, 0 offen sc1")
    A(f"s_mov_b64 exec, -1")
    if cfg.hop5_gate == 2:
        A(f"s_waitcnt vmcnt(0)")
        arrive(A, FT, 45)
    late_copy(A, cfg, 242, vPUB, vCPUB)
    if False:
        if cfg.hop5_gate == 2: A(f"s_waitcnt vmcnt(0)")
        arrive(A, FT, 45)
    A.label("L_Ldone")
    if cfg.ts:
        stamp(A, cfg, 1, L=True)
        emit_ts(A, cfg, L=True)
    A.label("L_exit")
    A(f"s_endpgm")
    A.label("L_end")
    lines = hazard.fix(A.l, verbose=True)
    return "\n".join(lines) + "\n"

def emit_ts(A, cfg, L=False):
    A(f"s_waitcnt lgkmcnt(0) vmcnt(0)")
    A(f"s_mov_b64 exec, 0x3ff")
    A(f"v_mbcnt_lo_u32_b32 v0, -1, 0")
    A(f"v_mov_b32 v1, 0")
    for k in range(10):
        A(f"v_mov_b32 v2, {s(sTS+2*k)}")
        A(f"v_cmp_eq_u32 vcc, {k}, v0")
        A(f"v_cndmask_b32 v1, v1, v2, vcc")
    if cfg.cnts:
        A(f"s_mov_b64 exec, 0xffff")
        for k in range(6):
            A(f"v_mov_b32 v2, {s(CNTREG[k])}")
            A(f"v_cmp_eq_u32 vcc, {10+k}, v0")
            A(f"v_cndmask_b32 v1, v1, v2, vcc")
    A(f"s_lshl_b32 {s(sT0)}, s2, 3")
    A(f"s_add_u32 {s(sT0)}, {s(sT0)}, {s(sW)}")
    if L: A(f"s_add_u32 {s(sT0)}, {s(sT0)}, 4")
    A(f"s_lshl_b32 {s(sT0)}, {s(sT0)}, 6")
    A(f"s_add_u32 {s(sT0)}, {s(sT0)}, {hex(WS_DBG)}")
    A(f"v_lshl_add_u32 v2, v0, 2, {s(sT0)}")
    A(f"buffer_store_dword v1, v2, {s(sWS,4)}, 0 offen")

DESC = """;
;   waves 0-3 (M): wave 0 q/q_abs projection; all: QK^T, softmax, PV, partial publish, split combine; wave 0 of w<64: final sum
"""

def build(cfg, path):
    body = gen(cfg)
    txt = wrap([(KNAME, body, 256, 102, 256)], [(KNAME, (256,1,1), (512,1,1), LDS_SIZE)], DESC)
    open(path, "w").write(txt)
    return path

if __name__ == "__main__":
    import build as B
    cfg = Cfg()
    for a_ in sys.argv[2:]:
        k, val = a_.split("=")
        setattr(cfg, k, eval(val))
    p = build(cfg, sys.argv[1])
    B.build(p, p.replace(".s", ".co"))
    import subprocess
    print(subprocess.run(f"llvm-objdump -d --mcpu=gfx950 {p.replace('.s','.co')} | grep -c '//' ; llvm-readelf -S {p.replace('.s','.co')} | grep -E 'text'", shell=True, capture_output=True, text=True).stdout)
```

```python
import sys; sys.path.insert(0, "dev")
from asmlib import *
import hazard

WS_E = 0
WS_Q1, WS_Q1C = 0x10000, 0x50000
WS_QA, WS_QC = 0x60000, 0x80000
WS_C1, WS_C1C = 0x90000, 0xD0000
WS_FD, WS_FC = 0xE0000, 0x130000
WS_H1, WS_H1C = 0x1C0000, 0x1E0000
WS_ST, WS_OP, WS_DBG = 0x140000, 0x200000, 0x800000
import os
WSBASE = int(os.environ.get('WSBASE', '0'), 0)
for _n in [k for k in list(globals()) if k.startswith('WS_')]: globals()[_n] += WSBASE
PITCH = 1056
L_KV = 0
L_QL = 128 * PITCH
L_MISC = L_QL + 16 * PITCH
L_QB = L_MISC
L_MX = L_MISC + 1024
L_LS = L_MISC + 1280
L_G  = L_MISC + 1536
L_FL = L_MISC + 1600
L_PB = L_MISC + 2048
L_CC = L_MISC + 6144
L_HR = L_MISC + 6656
L_CT = L_MISC + 8704
FKI, FKV, F3, FH2, FT, FPB, FCC, FP1, FP2, FP3, FW, FG = range(12)
LDS_SIZE = L_MISC + 9728
NPROD = 43
NSLOT = 48
NMG = 11
MLP0 = 64
NMLP = 43
HASH_K, HASH_C = 0x9E3779B1, 0x7F4A7C15
SCALE = (128 ** -0.5) * 1.4426950408889634
LOG2E = 1.4426950408889634

sX, sKV, sWQ, sWUK, sWUV, sWO, sW1, sB1, sW2, sGW, sOUT, sWS = 8, 12, 16, 20, 24, 28, 32, 36, 40, 44, 48, 52
sW, sXCD, sR, sHG, sJ, sH, sB, sKC, sNONCE, sE = 56, 57, 58, 59, 60, 61, 62, 63, 64, 65
sT0, sT1, sT2, sT3, sT4, sT5 = 66, 67, 68, 69, 70, 71
sCNT = 72
sCNT2 = 73
sEX = 74
sM0 = 76
sM1 = 78
sTS = 80
sM2, sM3 = 4, 6
CNTREG = [81, 83, 85, 87, 89, 91]
sHJ = 100
sFB, sDELTA = 101, 3
LOCAL_DELTA = 0x600000
LOCAL_TRIES = 8
POLL_MAX = 20000

def f2u(x):
    import struct
    return struct.unpack("<I", struct.pack("<f", x))[0]

class Cfg:
    nt_w = True
    ts = False
    tsmask = 0x3ff
    prio = True
    wait_kv_first = False
    l_after_m = False
    nt_kv = True
    nt_wq = True
    nt_tail = True
    poll_sleep = 0
    early = False
    cnts = False
    tail_after_f3 = True
    kvwin = 7
    kvwin0 = 0
    kvn0 = 8
    l_delay = True
    mlpwin1 = 16
    mlpwin2 = 6
    two_stage = False
    exp = ''
    pw = False
    pw_qa = False
    pw_fd = False
    nomlp = False
    mlp_split = True
    mlp_w1_flag = 'FPB'
    tail_flag = 'F3'
    wo_flag = 'FH3'
    rot = True
    tailwin = 0
    two3 = False
    hop3_ack = 2
    g_ts = False
    mlp_xor = 0
    fin_base = 0
    early_tag = False
    fill45 = False
    comb2 = True
    fillchk = True
    wuk_at = -1
    copy_after = False
    prio_tail = False
    prio_mlp = False
    perm = None
    kvpre = False
    lsleep = 0
    ccsleep = 0
    pad = 0
    padm = 0
    mlp_w2 = None
    hop4_ack = False
    hop1_ack = False
    hopm_ack = False
    hop5_gate = 2
    hop2_gate = True
    hop3_sleep = 0
    hop2_ack = False
    hop5_tags = False
    pubts = False
    tlb = 0
    tail_early = False
    tail_delay = None
    addr_early = True
    fw_at = 'pub'
    tailwin2 = 0
    mlp_w2_flag = 'FCC'
    local_st = 'sc1'
    dual = True
    defer = True
    local_ld = 'sc1'
    pw_op = False
    no_l = False
    stop = None
    prefetch_code = True

def srd(A, sr, karg_off, size):
    A(f"s_load_dwordx2 {s(sr,2)}, s[0:1], {karg_off}")
def srd_fin(A, sr, size):
    A(f"s_mov_b32 {s(sr+2)}, {hex(size)}")
    A(f"s_mov_b32 {s(sr+3)}, 0x20000")

def savecnt(A, cfg, k):
    if cfg.ts and cfg.cnts: A(f"s_mov_b32 {s(CNTREG[k])}, {s(sCNT)}")
def pstamp(A, cfg, k):
    if cfg.ts and cfg.pubts:
        A(f"s_memrealtime {s(sTS+2*k,2)}")
        A(f"s_waitcnt lgkmcnt(0)")
def estamp(A, cfg, k):
    if cfg.ts and cfg.early:
        A(f"s_memrealtime {s(sTS+2*k,2)}")
        A(f"s_waitcnt lgkmcnt(0)")
def stamp(A, cfg, k, L=False):
    if cfg.early and k >= 3 and not L: return
    if cfg.pubts and not L and k in (1,2,3,4,5,6,7,8): return
    if cfg.ts and (cfg.tsmask >> k) & 1:
        A(f"s_memrealtime {s(sTS+2*k,2)}")
        A(f"s_waitcnt lgkmcnt(0)")

vFLA = 3
def arrive(A, f, one, fla=None):
    A(f"v_mov_b32 {v(one)}, 1")
    A(f"s_mov_b64 {s(sEX,2)}, exec")
    A(f"s_mov_b64 exec, 1")
    A(f"ds_add_u32 {v(fla if fla is not None else vFLA)}, {v(one)} offset:{4*f}")
    A(f"s_mov_b64 exec, {s(sEX,2)}")
LSLEEP = [0]
def wait_flag(A, f, n, tmp, extra=None, fla=None):
    lab = A.newlabel("L_fw"); done = A.newlabel("L_fd")
    A(f"s_mov_b32 {s(sCNT2)}, 0")
    A.label(lab)
    A(f"ds_read_b32 {v(tmp)}, {v(fla if fla is not None else vFLA)} offset:{4*f}")
    if extra: extra()
    A(f"s_waitcnt lgkmcnt(0)")
    A(f"v_cmp_gt_u32 vcc, {n}, {v(tmp)}")
    A(f"s_cbranch_vccz {done}")
    if LSLEEP[0]: A(f"s_sleep {LSLEEP[0]}")
    A(f"s_add_u32 {s(sCNT2)}, {s(sCNT2)}, 1")
    A(f"s_cmp_lt_u32 {s(sCNT2)}, 2000000")
    A(f"s_cbranch_scc1 {lab}")
    A.label(done)

def xreduce_rows(A, op, x, tmp):
    A(f"v_mov_b32 {v(tmp)}, {v(x)}")
    A(f"v_permlane16_swap_b32 {v(x)}, {v(tmp)}")
    A(f"{op} {v(x)}, {v(x)}, {v(tmp)}")
    A(f"v_mov_b32 {v(tmp)}, {v(x)}")
    A(f"v_permlane32_swap_b32 {v(x)}, {v(tmp)}")
    A(f"{op} {v(x)}, {v(x)}, {v(tmp)}")

def xreduce_rows2(A, op0, x0, t0, op1, x1, t1):
    for sw in ("v_permlane16_swap_b32", "v_permlane32_swap_b32"):
        A(f"v_mov_b32 {v(t0)}, {v(x0)}")
        A(f"v_mov_b32 {v(t1)}, {v(x1)}")
        A(f"{sw} {v(x0)}, {v(t0)}")
        A(f"{sw} {v(x1)}, {v(t1)}")
        A(f"{op0} {v(x0)}, {v(x0)}, {v(t0)}")
        A(f"{op1} {v(x1)}, {v(x1)}, {v(t1)}")

def wave_sum_u32(A, x, t):
    for d in ("quad_perm:[1,0,3,2]", "quad_perm:[2,3,0,1]", "row_half_mirror", "row_mirror"):
        A(f"v_add_u32_dpp {v(x)}, {v(x)}, {v(x)} {d} row_mask:0xf bank_mask:0xf")
    xreduce_rows(A, "v_add_u32", x, t)

def wave_sum_fill(A, x, t, fill):
    fill = list(fill)
    def f(n):
        for _ in range(n):
            if fill: A(fill.pop(0))
    for d in ("quad_perm:[1,0,3,2]", "quad_perm:[2,3,0,1]", "row_half_mirror", "row_mirror"):
        A(f"v_add_u32_dpp {v(x)}, {v(x)}, {v(x)} {d} row_mask:0xf bank_mask:0xf")
        if d != "row_mirror": f(2)
    for sw in ("v_permlane16_swap_b32", "v_permlane32_swap_b32"):
        A(f"v_mov_b32 {v(t)}, {v(x)}")
        f(2)
        A(f"{sw} {v(x)}, {v(t)}")
        A(f"{op_add} {v(x)}, {v(x)}, {v(t)}")
    f(len(fill))
op_add = "v_add_u32"

def sum_dwords(A, dst, regs):
    regs = list(regs)
    A(f"v_add3_u32 {v(dst)}, {v(regs[0])}, {v(regs[1])}, {v(regs[2])}")
    k = 3
    while k + 1 < len(regs):
        A(f"v_add3_u32 {v(dst)}, {v(dst)}, {v(regs[k])}, {v(regs[k+1])}"); k += 2
    if k < len(regs):
        A(f"v_add_u32 {v(dst)}, {v(dst)}, {v(regs[k])}")

def make_sels(A, vn, vsel, vt):
    A(f"v_and_b32 {v(vt)}, 3, {v(vn)}")
    A(f"v_mov_b32 {v(vt+1)}, 0x0c0c0c0c")
    pats = [(0, 0x0c0c0100, 1, 0x01000c0c), (2, 0x0c0c0100, 3, 0x01000c0c), (0, 0x0c0c0302, 1, 0x03020c0c), (2, 0x0c0c0302, 3, 0x03020c0c)]
    for k, (j0, p0, j1, p1) in enumerate(pats):
        A(f"v_mov_b32 {v(vt+2)}, {hex(p0)}")
        A(f"v_cmp_eq_u32 vcc, {j0}, {v(vt)}")
        A(f"v_cndmask_b32 {v(vsel+k)}, {v(vt+1)}, {v(vt+2)}, vcc")
        A(f"v_mov_b32 {v(vt+2)}, {hex(p1)}")
        A(f"v_cmp_eq_u32 vcc, {j1}, {v(vt)}")
        A(f"v_cndmask_b32 {v(vsel+k)}, {v(vsel+k)}, {v(vt+2)}, vcc")

def sel_gemm_step(A, xp, vsel, af, wreg, dx, dy, first, swap=True):
    if swap:
        A(f"v_swap_b32 {v(wreg+2)}, {v(wreg+4)}")
        A(f"v_swap_b32 {v(wreg+3)}, {v(wreg+5)}")
    for k in range(4):
        A(f"v_perm_b32 {v(af+k)}, {v(xp)}, {v(xp)}, {v(vsel+k)}")
    c0 = "0" if first else v(dx,4)
    c1 = "0" if first else v(dy,4)
    A(f"v_mfma_f32_16x16x32_bf16 {v(dx,4)}, {v(af,4)}, {v(wreg,4)}, {c0}")
    A(f"v_mfma_f32_16x16x32_bf16 {v(dy,4)}, {v(af,4)}, {v(wreg+4,4)}, {c1}")

def sel_gemm(A, n, xp, vsel, af0, af1, w, dx, dy=None, swap=False, wwait=None, xwait=None):
    st = 8 if dy is not None else 4
    def perms(t):
        if xwait: xwait(t)
        af = af0 if t % 2 == 0 else af1
        for k in range(4):
            A(f"v_perm_b32 {v(af+k)}, {v(xp+t)}, {v(xp+t)}, {v(vsel+k)}")
    perms(0)
    for t in range(n):
        if wwait: wwait(t)
        wr = w + st*t
        if swap:
            A(f"v_swap_b32 {v(wr+2)}, {v(wr+4)}")
            A(f"v_swap_b32 {v(wr+3)}, {v(wr+5)}")
        if t + 1 < n: perms(t+1)
        af = af0 if t % 2 == 0 else af1
        A(f"v_mfma_f32_16x16x32_bf16 {v(dx,4)}, {v(af,4)}, {v(wr,4)}, {'0' if t == 0 else v(dx,4)}")
        if dy is not None:
            A(f"v_mfma_f32_16x16x32_bf16 {v(dy,4)}, {v(af,4)}, {v(wr+4,4)}, {'0' if t == 0 else v(dy,4)}")

def poll_head(A, name):
    lab = A.newlabel(name)
    A(f"s_mov_b32 {s(sCNT)}, 0")
    A.label(lab)
    return lab
def early_retry(A, cfg, bad_pair):
    if not cfg.early_tag: return None
    r = A.newlabel("retry")
    A(f"s_cmp_lg_u64 {s(bad_pair,2)}, 0")
    A(f"s_cbranch_scc1 {r}")
    return r
def poll_tail(A, lab, bad_pair, sleep=0, retry=None):
    done = A.newlabel("done")
    A(f"s_cmp_eq_u64 {s(bad_pair,2)}, 0")
    A(f"s_cbranch_scc1 {done}")
    if retry: A.label(retry)
    if sleep: A(f"s_sleep {sleep}")
    A(f"s_add_u32 {s(sCNT)}, {s(sCNT)}, 1")
    A(f"s_cmp_lt_u32 {s(sCNT)}, {POLL_MAX}")
    A(f"s_cbranch_scc1 {lab}")
    A.label(done)

def publish_final(A, cfg, dx, dy, vscale, vprod_off, vchk_off, pk, t):
    for k in range(4):
        A(f"v_mul_f32 {v(dx+k)}, {v(dx+k)}, {v(vscale)}")
        A(f"v_mul_f32 {v(dy+k)}, {v(dy+k)}, {v(vscale)}")
    A(f"v_cvt_pk_bf16_f32 {v(pk)}, {v(dx)}, {v(dx+1)}")
    A(f"v_cvt_pk_bf16_f32 {v(pk+1)}, {v(dx+2)}, {v(dx+3)}")
    A(f"v_cvt_pk_bf16_f32 {v(pk+2)}, {v(dy)}, {v(dy+1)}")
    A(f"v_cvt_pk_bf16_f32 {v(pk+3)}, {v(dy+2)}, {v(dy+3)}")
    A(f"buffer_store_dwordx4 {v(pk,4)}, {v(vprod_off)}, {s(sWS,4)}, 0 offen sc1")
    sum_dwords(A, t, [pk, pk+1, pk+2, pk+3])
    A(f"v_add_u32_dpp {v(t)}, {v(t)}, {v(t)} quad_perm:[1,0,3,2] row_mask:0xf bank_mask:0xf")
    A(f"v_add_u32_dpp {v(t)}, {v(t)}, {v(t)} quad_perm:[2,3,0,1] row_mask:0xf bank_mask:0xf")
    A(f"v_add_u32 {v(t+1)}, {s(sNONCE)}, {v(t)}")
    A(f"s_mov_b64 {s(sEX,2)}, exec")
    A(f"s_mov_b32 exec_lo, 0x11111111")
    A(f"s_mov_b32 exec_hi, 0x11111111")
    A(f"buffer_store_dwordx2 {v(t,2)}, {v(vchk_off)}, {s(sWS,4)}, 0 offen sc1")
    A(f"s_mov_b64 exec, {s(sEX,2)}")

def final_offsets(A, vn, vq, s_ct, s_prod, voff, vchk, t):
    A(f"v_lshrrev_b32 {v(t)}, 2, {v(vn)}")
    A(f"v_lshl_add_u32 {v(t)}, {v(vq)}, 4, {v(t)}")
    A(f"s_lshl_b32 {s(sT0)}, {s(s_ct)}, 2")
    A(f"v_add_u32 {v(t)}, {s(sT0)}, {v(t)}")
    A(f"s_movk_i32 {s(sT1)}, {NSLOT}")
    A(f"v_mul_lo_u32 {v(t)}, {v(t)}, {s(sT1)}")
    A(f"v_add_u32 {v(t)}, {s(s_prod)}, {v(t)}")
    A(f"v_lshlrev_b32 {v(vchk)}, 3, {v(t)}")
    A(f"v_add_u32 {v(vchk)}, {hex(WS_FC)}, {v(vchk)}")
    A(f"v_and_b32 {v(t+1)}, 3, {v(vn)}")
    A(f"v_lshlrev_b32 {v(t+1)}, 4, {v(t+1)}")
    A(f"v_lshl_add_u32 {v(voff)}, {v(t)}, 6, {v(t+1)}")
    A(f"v_add_u32 {v(voff)}, {hex(WS_FD)}, {v(voff)}")


def nonce_from(A, vreg):
    A(f"v_readfirstlane_b32 {s(sE)}, {v(vreg)}")
    A(f"s_mul_i32 {s(sNONCE)}, {s(sE)}, {hex(HASH_K)}")
    A(f"s_add_u32 {s(sNONCE)}, {s(sNONCE)}, {hex(HASH_C)}")

def make_ones(A, vn, dst, t):
    A(f"v_and_b32 {v(t)}, 3, {v(vn)}")
    A(f"v_lshrrev_b32 {v(t+1)}, 2, {v(vn)}")
    A(f"v_mov_b32 {v(t+2)}, 0")
    for k, (j0, j1) in enumerate(((0,1),(2,3))):
        A(f"v_mov_b32 {v(t+3)}, 0x3f80")
        A(f"v_cmp_eq_u32 vcc, {j0}, {v(t)}")
        A(f"v_cndmask_b32 {v(t+4+k)}, {v(t+2)}, {v(t+3)}, vcc")
        A(f"v_mov_b32 {v(t+3)}, 0x3f800000")
        A(f"v_cmp_eq_u32 vcc, {j1}, {v(t)}")
        A(f"v_cndmask_b32 {v(t+4+k)}, {v(t+4+k)}, {v(t+3)}, vcc")
    for b in range(4):
        A(f"v_cmp_eq_u32 vcc, {b}, {v(t+1)}")
        A(f"v_cndmask_b32 {v(dst+4*b)}, {v(t+2)}, {v(t+4)}, vcc")
        A(f"v_cndmask_b32 {v(dst+4*b+1)}, {v(t+2)}, {v(t+5)}, vcc")
        A(f"v_mov_b32 {v(dst+4*b+2)}, {v(dst+4*b)}")
        A(f"v_mov_b32 {v(dst+4*b+3)}, {v(dst+4*b+1)}")

def partial_offsets(A, vl, vn, vs, base, chkbase, vpub, vchkpub, vga, vgb, vgc, t, sHJ=sHJ, sH=sH):
    A(f"s_lshl_b32 {s(sT0)}, {s(sHJ)}, 10")
    A(f"s_add_u32 {s(sT0)}, {s(sT0)}, {hex(base)}")
    A(f"v_lshl_add_u32 {v(vpub)}, {v(vl)}, 4, {s(sT0)}")
    A(f"s_lshl_b32 {s(sT0)}, {s(sHJ)}, 3")
    A(f"s_add_u32 {s(sT0)}, {s(sT0)}, {hex(chkbase)}")
    A(f"v_mov_b32 {v(vchkpub)}, {s(sT0)}")
    A(f"s_lshl_b32 {s(sT0)}, {s(sH)}, 13")
    A(f"s_add_u32 {s(sT0)}, {s(sT0)}, {hex(base)}")
    A(f"v_lshlrev_b32 {v(t)}, 10, {v(vs)}")
    A(f"v_lshl_add_u32 {v(t)}, {v(vn)}, 4, {v(t)}")
    A(f"v_add_u32 {v(vga)}, {s(sT0)}, {v(t)}")
    A(f"v_add_u32 {v(vgb)}, 4096, {v(vga)}")
    A(f"s_lshl_b32 {s(sT0)}, {s(sH)}, 6")
    A(f"s_add_u32 {s(sT0)}, {s(sT0)}, {hex(chkbase)}")
    A(f"v_lshl_add_u32 {v(t)}, {v(vl)}, 3, {s(sT0)}")
    A(f"v_cmp_gt_u32 {s(sM2,2)}, 8, {v(vl)}")
    A(f"v_mov_b32 {v(t+1)}, 0x7ffffff0")
    A(f"v_cndmask_b32 {v(vgc)}, {v(t+1)}, {v(t)}, {s(sM2,2)}")

def publish_partial(A, dx, dy, pk, vpub, vchkpub, t, fl='sc1', dual=False, defer=False):
    A(f"v_cvt_pk_bf16_f32 {v(pk)}, {v(dx)}, {v(dx+1)}")
    A(f"v_cvt_pk_bf16_f32 {v(pk+1)}, {v(dx+2)}, {v(dx+3)}")
    A(f"v_cvt_pk_bf16_f32 {v(pk+2)}, {v(dy)}, {v(dy+1)}")
    A(f"v_cvt_pk_bf16_f32 {v(pk+3)}, {v(dy+2)}, {v(dy+3)}")
    if dual:
        A(f"buffer_store_dwordx4 {v(pk,4)}, {v(vpub)}, {s(sWS,4)}, 0 offen")
        if not defer: A(f"buffer_store_dwordx4 {v(pk,4)}, {v(vpub)}, {s(sWS,4)}, {s(sDELTA)} offen sc1")
    else:
        A(f"buffer_store_dwordx4 {v(pk,4)}, {v(vpub)}, {s(sWS,4)}, 0 offen {fl}")
    sum_dwords(A, t, [pk, pk+1, pk+2, pk+3])
    wave_sum_u32(A, t, t+2)
    A(f"v_add_u32 {v(t+1)}, {s(sNONCE)}, {v(t)}")
    A(f"s_mov_b64 {s(sEX,2)}, exec")
    A(f"s_mov_b64 exec, 1")
    if dual:
        A(f"buffer_store_dwordx2 {v(t,2)}, {v(vchkpub)}, {s(sWS,4)}, 0 offen")
        if not defer: A(f"buffer_store_dwordx2 {v(t,2)}, {v(vchkpub)}, {s(sWS,4)}, {s(sDELTA)} offen sc1")
    else:
        A(f"buffer_store_dwordx2 {v(t,2)}, {v(vchkpub)}, {s(sWS,4)}, 0 offen {fl}")
    A(f"s_mov_b64 exec, {s(sEX,2)}")
    if dual and defer:
        A(f"v_mov_b32 {v(pk+4)}, {v(t)}")
        A(f"v_mov_b32 {v(pk+5)}, {v(t+1)}")

def global_copy(A, pk, vpub, vchkpub):
    A(f"buffer_store_dwordx4 {v(pk,4)}, {v(vpub)}, {s(sWS,4)}, {s(sDELTA)} offen sc1")
    A(f"s_mov_b64 {s(sEX,2)}, exec")
    A(f"s_mov_b64 exec, 1")
    A(f"buffer_store_dwordx2 {v(pk+4,2)}, {v(vchkpub)}, {s(sWS,4)}, {s(sDELTA)} offen sc1")
    A(f"s_mov_b64 exec, {s(sEX,2)}")

def late_copy(A, cfg, pk, vpub, vchkpub):
    if not (cfg.dual and cfg.defer): return
    skip = A.newlabel("L_nocp")
    A(f"s_cmp_ge_u32 {s(sFB)}, {LOCAL_TRIES}")
    A(f"s_cbranch_scc1 {skip}")
    global_copy(A, pk, vpub, vchkpub)
    A.label(skip)

def gather_reduce(A, cfg, name, G, CK, ones, vga, vgb, vgc, dx, dy, t, pk=16, vpub=52, vchkpub=53, after_issue=None):
    so = s(sFB) if cfg.dual else "0"
    if cfg.dual: A(f"s_mov_b32 {s(sFB)}, 0")
    lab = poll_head(A, name)
    if cfg.dual:
        if cfg.defer:
            skip = A.newlabel("L_nosw")
            A(f"s_cmp_lg_u32 {s(sCNT)}, {LOCAL_TRIES}")
            A(f"s_cbranch_scc1 {skip}")
            global_copy(A, pk, vpub, vchkpub)
            A.label(skip)
        A(f"s_cmp_ge_u32 {s(sCNT)}, {LOCAL_TRIES}")
        A(f"s_cselect_b32 {s(sFB)}, {s(sDELTA)}, 0")
    for b in range(4):
        A(f"buffer_load_dwordx4 {v(G+8*b,4)}, {v(vga)}, {s(sWS,4)}, {so} offen offset:{256*b} {cfg.local_ld}")
        A(f"buffer_load_dwordx4 {v(G+8*b+4,4)}, {v(vgb)}, {s(sWS,4)}, {so} offen offset:{256*b} {cfg.local_ld}")
    A(f"buffer_load_dwordx2 {v(CK,2)}, {v(vgc)}, {s(sWS,4)}, {so} offen {cfg.local_ld}")
    if after_issue: after_issue()
    A(f"s_waitcnt vmcnt(0)")
    A(f"v_add_u32 {v(t+1)}, {s(sNONCE)}, {v(CK)}")
    A(f"v_cmp_ne_u32 vcc, {v(t+1)}, {v(CK+1)}")
    A(f"s_and_b64 {s(sM1,2)}, vcc, {s(sM2,2)}")
    rl = early_retry(A, cfg, sM1)
    sum_dwords(A, t, range(G, G+16))
    sum_dwords(A, t+1, range(G+16, G+32))
    A(f"v_add_u32 {v(t)}, {v(t)}, {v(t+1)}")
    A(f"v_sub_u32 {v(t)}, {v(t)}, {v(CK)}")
    red = []
    for b in range(4):
        w = G + 8*b
        red.append(f"v_swap_b32 {v(w+2)}, {v(w+4)}")
        red.append(f"v_swap_b32 {v(w+3)}, {v(w+5)}")
    for b in range(4):
        w = G + 8*b
        c0 = "0" if b == 0 else v(dx,4); c1 = "0" if b == 0 else v(dy,4)
        red.append(f"v_mfma_f32_16x16x32_bf16 {v(dx,4)}, {v(ones+4*b,4)}, {v(w,4)}, {c0}")
        red.append(f"v_mfma_f32_16x16x32_bf16 {v(dy,4)}, {v(ones+4*b,4)}, {v(w+4,4)}, {c1}")
    if cfg.fillchk: wave_sum_fill(A, t, t+2, red)
    else: wave_sum_u32(A, t, t+2)
    A(f"v_cmp_ne_u32 vcc, 0, {v(t)}")
    A(f"s_or_b64 {s(sM1,2)}, {s(sM1,2)}, vcc")
    poll_tail(A, lab, sM1, cfg.poll_sleep, rl)
    if cfg.dual and cfg.defer:
        A(f"s_mov_b32 {s(sFB)}, {s(sCNT)}")
    if not cfg.fillchk:
        for ins in red: A(ins)

def gen(cfg):
    A = Asm()
    LSLEEP[0] = 0
    NT = " nt" if cfg.nt_tail else ""
    NTKV = " nt" if cfg.nt_kv else ""
    NTWQ = " nt" if cfg.nt_wq else ""
    vL, vN, vS = 0, 1, 2
    vSEL = 4
    A(f"s_cmp_ge_u32 s2, 256")
    A(f"s_cbranch_scc1 L_exit")
    if cfg.perm == 'rot':
        A(f"s_and_b32 s66, s2, 7")
        A(f"s_lshr_b32 s67, s2, 3")
        A(f"s_and_b32 s68, s67, 7")
        A(f"s_andn2_b32 s67, s67, 7")
        A(f"s_or_b32 s67, s67, s66")
        A(f"s_lshl_b32 s67, s67, 3")
        A(f"s_or_b32 s2, s67, s68")
    if isinstance(cfg.perm, int): A(f"s_xor_b32 s2, s2, {cfg.perm}")
    for sr, off in ((sX,0),(sWQ,16),(sWUK,24),(sWS,104),(sKV,8),(sWUV,32),(sWO,40),(sW1,56),(sB1,64),(sW2,72),(sGW,80),(sOUT,88)):
        srd(A, sr, off, 0)
    vXP, vAF0, vAF1, vQX, vQY, vT = 8, 24, 28, 32, 36, 40
    vWUK, vWQ = 64, 128
    vA0, vA1, vA2 = 40, 41, 42
    vE = 44
    A(f"v_lshrrev_b32 v4, 6, v0")
    A(f"v_and_b32 {v(vL)}, 63, v0")
    A(f"v_readfirstlane_b32 {s(sW)}, v4")
    A(f"v_and_b32 {v(vN)}, 15, {v(vL)}")
    A(f"v_lshrrev_b32 {v(vS)}, 4, {v(vL)}")
    A(f"s_and_b32 {s(sXCD)}, s2, 7")
    A(f"s_lshr_b32 {s(sR)}, s2, 3")
    A(f"s_and_b32 {s(sHG)}, {s(sR)}, 1")
    A(f"s_bfe_u32 {s(sJ)}, {s(sR)}, 0x30001")
    A(f"s_lshr_b32 {s(sT0)}, {s(sR)}, 4")
    A(f"s_lshl_b32 {s(sT1)}, {s(sXCD)}, 1")
    A(f"s_add_u32 {s(sT1)}, {s(sT1)}, {s(sT0)}")
    A(f"s_lshl_b32 {s(sT0)}, {s(sHG)}, 4")
    A(f"s_add_u32 {s(sH)}, {s(sT0)}, {s(sT1)}")
    for sr, size in ((sX,4096),(sWQ,4<<20),(sWUK,4<<20),(sWS,256<<20)):
        srd_fin(A, sr, size)
    A(f"s_cmp_lg_u32 {s(sW)}, 0")
    A(f"s_cbranch_scc1 L_pro2")
    A(f"v_lshrrev_b32 {v(vA0)}, 2, {v(vN)}")
    A(f"v_lshlrev_b32 {v(vA0)}, 10, {v(vA0)}")
    A(f"v_lshl_add_u32 {v(vA0)}, {v(vS)}, 5, {v(vA0)}")
    A(f"s_lshl_b32 {s(sT0)}, {s(sJ)}, 7")
    A(f"v_add_u32 {v(vA0)}, {s(sT0)}, {v(vA0)}")
    A(f"s_lshl_b32 {s(sT0)}, {s(sJ)}, 19")
    A(f"s_lshl_b32 {s(sT1)}, {s(sH)}, 8")
    A(f"s_add_u32 {s(sT0)}, {s(sT0)}, {s(sT1)}")
    A(f"v_lshlrev_b32 {v(vA1)}, 17, {v(vS)}")
    A(f"v_lshl_add_u32 {v(vA1)}, {v(vN)}, 4, {v(vA1)}")
    A(f"v_add_u32 {v(vA1)}, {s(sT0)}, {v(vA1)}")
    A(f"v_lshrrev_b32 {v(vA2)}, 2, {v(vN)}")
    A(f"v_lshlrev_b32 {v(vA2)}, 4, {v(vA2)}")
    A(f"v_and_b32 v43, 3, {v(vN)}")
    A(f"v_add_u32 {v(vA2)}, {v(vA2)}, v43")
    A(f"v_lshlrev_b32 {v(vA2)}, 13, {v(vA2)}")
    A(f"v_lshl_add_u32 {v(vA2)}, {v(vS)}, 4, {v(vA2)}")
    A(f"v_add_u32 {v(vA2)}, {s(sT0)}, {v(vA2)}")
    A(f"v_mov_b32 v45, {hex(WS_E)}")
    A(f"s_waitcnt lgkmcnt(0)")
    stamp(A, cfg, 0)
    A(f"s_mov_b32 {s(sT2)}, 0")
    for k in range(16):
        A(f"buffer_load_dwordx4 {v(vWQ+4*k,4)}, {v(vA1)}, {s(sWQ,4)}, {s(sT2)} offen{NTWQ}")
        if k < 15: A(f"s_add_u32 {s(sT2)}, {s(sT2)}, 8192")
        if k == 1:
            A(f"buffer_load_dword {v(vE)}, v45, {s(sWS,4)}, 0 offen sc1")
            for kk in range(2):
                A(f"buffer_load_dwordx4 {v(vXP+4*kk,4)}, {v(vA0)}, {s(sX,4)}, 0 offen offset:{16*kk}")
    def wuk_loads(va):
        A(f"s_mov_b32 {s(sT2)}, 0")
        for T in range(4):
            for t in range(4):
                A(f"buffer_load_dwordx4 {v(vWUK+16*T+4*t,4)}, {v(va)}, {s(sWUK,4)}, {s(sT2)} offen offset:{64*t}{NTWQ}")
            if T < 3: A(f"s_add_u32 {s(sT2)}, {s(sT2)}, 32768")
    if cfg.wuk_at < 0: wuk_loads(vA2)
    else: A(f"v_mov_b32 v249, {v(vA2)}")
    A.label("L_pro2")
    if cfg.ts:
        A(f"s_cmp_eq_u32 {s(sW)}, 0")
        A(f"s_cbranch_scc1 L_pro3")
        A(f"s_waitcnt lgkmcnt(0)")
        stamp(A, cfg, 0)
        A.label("L_pro3")
    for _ in range(cfg.pad): A("s_nop 0")
    A(f"v_mov_b32 {v(vFLA)}, {L_FL}")
    A(f"v_lshl_add_u32 v40, {v(vN)}, 2, {v(vFLA)}")
    A(f"v_mov_b32 v41, 0")
    A(f"ds_write_b32 v40, v41")
    A(f"v_mov_b32 v42, -1")
    A(f"v_mov_b32 v43, -1")
    A(f"v_lshlrev_b32 v40, 3, {v(vL)}")
    A(f"v_add_u32 v41, {L_MX}, v40")
    A(f"ds_write_b64 v41, v[42:43]")
    A(f"v_add_u32 v41, {L_CC}, v40")
    A(f"ds_write_b64 v41, v[42:43]")
    A(f"s_lshl_b32 {s(sHJ)}, {s(sH)}, 3")
    A(f"s_add_u32 {s(sHJ)}, {s(sHJ)}, {s(sJ)}")
    A(f"s_lshr_b32 {s(sB)}, {s(sXCD)}, 1")
    A(f"s_and_b32 {s(sT0)}, {s(sXCD)}, 1")
    A(f"s_lshl_b32 {s(sT0)}, {s(sT0)}, 4")
    A(f"s_lshr_b32 {s(sT1)}, {s(sR)}, 1")
    A(f"s_add_u32 {s(sKC)}, {s(sT0)}, {s(sT1)}")
    for sr, size in ((sKV,16<<20),(sWUV,4<<20),(sWO,4<<20),(sW1,512*2752),(sB1,2752),(sW2,1376*1024),(sGW,1024),(sOUT,4096)):
        srd_fin(A, sr, size)
    A(f"s_mov_b32 {s(sDELTA)}, {hex(LOCAL_DELTA)}")
    A(f"s_waitcnt lgkmcnt(0)")
    A(f"s_barrier")
    A(f"s_cmp_ge_u32 {s(sW)}, 4")
    A(f"s_cbranch_scc1 L_Lpath")
    estamp(A, cfg, 3)
    if cfg.prio: A(f"s_setprio 3")
    for _ in range(cfg.padm): A("s_nop 0")
    A(f"s_cmp_eq_u32 {s(sW)}, 0")
    A(f"s_cbranch_scc1 L_q")
    A(f"v_mov_b32 v43, {hex(WS_E)}")
    A(f"buffer_load_dword {v(vE)}, v43, {s(sWS,4)}, 0 offen sc1")
    A(f"s_branch L_noq")
    A.label("L_q")
    aQG, aQC, aQL, aQE, aQO, aKE, aKO, aPV0, aPV1, aMXR, aMXW, aPR, aPW, aOP0, aOP1, aST = range(8, 24)
    vQG, vQC = 64, 80
    def attn_addresses():
        A(f"s_lshl_b32 {s(sT0)}, {s(sB)}, 1")
        A(f"s_add_u32 {s(sT0)}, {s(sT0)}, {s(sHG)}")
        A(f"s_lshl_b32 {s(sT0)}, {s(sT0)}, 4")
        A(f"s_lshl_b32 {s(sT1)}, {s(sW)}, 2")
        A(f"s_add_u32 {s(sT0)}, {s(sT0)}, {s(sT1)}")
        A(f"s_lshl_b32 {s(sT1)}, {s(sT0)}, 10")
        A(f"s_add_u32 {s(sT1)}, {s(sT1)}, {hex(WS_QA)}")
        A(f"v_lshl_add_u32 {v(aQG)}, {v(vL)}, 4, {s(sT1)}")
        A(f"s_lshl_b32 {s(sT1)}, {s(sT0)}, 6")
        A(f"s_add_u32 {s(sT1)}, {s(sT1)}, {hex(WS_QC)}")
        A(f"v_lshl_add_u32 {v(aQC)}, {v(vL)}, 3, {s(sT1)}")
        A(f"v_cmp_lt_u32 {s(sM0,2)}, {v(vL)}, 32")
        A(f"v_mov_b32 v43, 0x7ffffff0")
        A(f"v_cndmask_b32 {v(aQC)}, v43, {v(aQC)}, {s(sM0,2)}")
        A(f"s_mul_i32 {s(sT1)}, {s(sW)}, {4*PITCH}")
        A(f"s_add_u32 {s(sT1)}, {s(sT1)}, {L_QL}")
        A(f"v_lshl_add_u32 {v(aQL)}, {v(vL)}, 4, {s(sT1)}")
        A(f"s_movk_i32 {s(sT1)}, {PITCH}")
        A(f"v_mul_lo_u32 v44, {v(vN)}, {s(sT1)}")
        A(f"v_lshl_add_u32 v44, {v(vS)}, 8, v44")
        A(f"v_and_b32 v45, 1, {v(vS)}")
        A(f"v_lshlrev_b32 v45, 4, v45")
        A(f"v_add_u32 {v(aQE)}, v44, v45")
        A(f"v_sub_u32 {v(aQO)}, v44, v45")
        A(f"s_mul_i32 {s(sT0)}, {s(sW)}, {32*PITCH}")
        A(f"v_add_u32 {v(aKE)}, {s(sT0)}, {v(aQE)}")
        A(f"v_add_u32 {v(aKO)}, {s(sT0)}, {v(aQO)}")
        A(f"v_add_u32 {v(aQE)}, {L_QL}, {v(aQE)}")
        A(f"v_add_u32 {v(aQO)}, {L_QL}, {v(aQO)}")
        A(f"v_lshrrev_b32 v46, 2, {v(vL)}")
        A(f"v_mul_lo_u32 v46, v46, {s(sT1)}")
        A(f"v_and_b32 v47, 3, {v(vL)}")
        A(f"v_lshl_add_u32 v46, v47, 3, v46")
        A(f"s_lshl_b32 {s(sT0)}, {s(sW)}, 8")
        A(f"v_add_u32 {v(aPV0)}, {s(sT0)}, v46")
        A(f"v_add_u32 {v(aPV1)}, {64*PITCH}, {v(aPV0)}")
        A(f"v_lshlrev_b32 {v(aMXR)}, 4, {v(vN)}")
        A(f"v_add_u32 {v(aMXR)}, {L_MX}, {v(aMXR)}")
        A(f"s_lshl_b32 {s(sT0)}, {s(sW)}, 2")
        A(f"v_add_u32 {v(aMXW)}, {s(sT0)}, {v(aMXR)}")
        A(f"v_lshlrev_b32 {v(aPR)}, 4, {v(vL)}")
        A(f"v_add_u32 {v(aPR)}, {L_PB}, {v(aPR)}")
        A(f"s_lshl_b32 {s(sT0)}, {s(sW)}, 10")
        A(f"v_add_u32 {v(aPW)}, {s(sT0)}, {v(aPR)}")
        A(f"s_lshl_b32 {s(sT0)}, {s(sHG)}, 4")
        A(f"v_add_u32 v48, {s(sT0)}, {v(vN)}")
        A(f"s_lshl_b32 {s(sT0)}, {s(sW)}, 3")
        A(f"s_add_u32 {s(sT0)}, {s(sT0)}, {s(sKC)}")
        if cfg.rot:
            A(f"v_add_u32 v50, {s(sT0)}, v48")
            A(f"v_add_u32 v51, 4, v50")
            A(f"v_and_b32 v50, 31, v50")
            A(f"v_and_b32 v51, 31, v51")
        else:
            A(f"v_mov_b32 v50, {s(sKC)}")
            A(f"v_mov_b32 v51, {s(sKC)}")
        A(f"v_lshlrev_b32 v48, 10, v48")
        A(f"s_lshl_b32 {s(sT0)}, {s(sW)}, 8")
        A(f"s_lshl_b32 {s(sT1)}, {s(sB)}, 5")
        A(f"s_add_u32 {s(sT0)}, {s(sT0)}, {s(sT1)}")
        A(f"v_add_u32 v48, {s(sT0)}, v48")
        A(f"v_add_u32 v50, v48, v50")
        A(f"v_add3_u32 v51, v48, v51, 64")
        A(f"v_add_u32 v51, 64, v51")
        A(f"v_and_b32 v49, 1, {v(vS)}")
        A(f"v_lshlrev_b32 v49, 1, v49")
        A(f"v_lshrrev_b32 v45, 1, {v(vS)}")
        A(f"v_add_u32 v49, v49, v45")
        A(f"v_lshlrev_b32 v49, 4, v49")
        A(f"v_lshl_add_u32 {v(aOP0)}, v50, 7, v49")
        A(f"v_add_u32 {v(aOP0)}, {hex(WS_OP)}, {v(aOP0)}")
        A(f"v_lshl_add_u32 {v(aOP1)}, v51, 7, v49")
        A(f"v_add_u32 {v(aOP1)}, {hex(WS_OP)}, {v(aOP1)}")
        A(f"v_cmp_eq_u32 vcc, 1, {v(vS)}")
        A(f"v_cndmask_b32 v50, v50, v51, vcc")
        A(f"v_lshlrev_b32 v50, 4, v50")
        A(f"v_add_u32 {v(aST)}, {hex(WS_ST)}, v50")
    estamp(A, cfg, 4)
    make_sels(A, vN, vSEL, vT)
    vONE, vG1, vCK1 = 192, 208, 240
    make_ones(A, vN, vONE, 46)
    vPUB, vCPUB, vGA, vGB, vGC = 52, 53, 54, 55, 56
    partial_offsets(A, vL, vN, vS, WS_Q1, WS_Q1C, vPUB, vCPUB, vGA, vGB, vGC, 46)
    vQAO, vQCO = 58, 59
    A(f"v_lshl_add_u32 {v(vQAO)}, {v(vN)}, 5, {s(sH)}")
    A(f"v_lshlrev_b32 {v(vQCO)}, 3, {v(vQAO)}")
    A(f"v_add_u32 {v(vQCO)}, {s(sJ)}, {v(vQCO)}")
    A(f"v_lshlrev_b32 {v(vQCO)}, 3, {v(vQCO)}")
    A(f"v_add_u32 {v(vQCO)}, {hex(WS_QC)}, {v(vQCO)}")
    A(f"v_lshlrev_b32 {v(vQAO)}, 10, {v(vQAO)}")
    A(f"v_lshl_add_u32 {v(vQAO)}, {v(vS)}, 5, {v(vQAO)}")
    A(f"s_lshl_b32 {s(sT0)}, {s(sJ)}, 7")
    A(f"s_add_u32 {s(sT0)}, {s(sT0)}, {hex(WS_QA)}")
    A(f"v_add_u32 {v(vQAO)}, {s(sT0)}, {v(vQAO)}")
    NPW = 0
    A(f"v_lshlrev_b32 v57, 4, {v(vL)}")
    A(f"v_add_u32 v57, {L_QB}, v57")
    A(f"v_and_b32 v248, 3, {v(vN)}")
    A(f"v_lshlrev_b32 v248, 8, v248")
    A(f"v_lshl_add_u32 v248, {v(vS)}, 4, v248")
    A(f"v_add_u32 v248, {L_QB}, v248")
    A(f"s_waitcnt vmcnt({30 if cfg.wuk_at < 0 else 14})")
    nonce_from(A, vE)
    def _w(t):
        later = 16 if (cfg.wuk_at < 0 or t > cfg.wuk_at) else 0
        A(f"s_waitcnt vmcnt({later + 14 - 2*t})")
        if t == cfg.wuk_at: wuk_loads(249)
        if t == 0: estamp(A, cfg, 5)
        if t == 7: estamp(A, cfg, 6)
        if t == 0 and cfg.l_delay and cfg.fw_at == 'wq': arrive(A, FW, 43)
    sel_gemm(A, 8, vXP, vSEL, vAF0, vAF1, vWQ, vQX, vQY, swap=True, wwait=_w)
    publish_partial(A, vQX, vQY, 242, vPUB, vCPUB, 46, cfg.local_st, cfg.dual, cfg.defer)
    stamp(A, cfg, 1)
    if cfg.l_delay and cfg.fw_at == 'pub': arrive(A, FW, 43)
    if cfg.exp == 'kvq': A(f"s_branch L_Mdone")
    if cfg.addr_early: attn_addresses()
    if cfg.hop1_ack: A(f"s_waitcnt vmcnt(0)")
    gather_reduce(A, cfg, "L_hop1", vG1, vCK1, vONE, vGA, vGB, vGC, vQX, vQY, 46, 242,
                  after_issue=(lambda: arrive(A, FW, 43)) if (cfg.l_delay and cfg.fw_at == 'sweep') else None)
    savecnt(A, cfg, 0)
    if cfg.l_delay and cfg.fw_at == 'hop1': arrive(A, FW, 43)
    estamp(A, cfg, 7)
    A(f"v_cvt_pk_bf16_f32 v60, {v(vQX)}, {v(vQX+1)}")
    A(f"v_cvt_pk_bf16_f32 v61, {v(vQX+2)}, {v(vQX+3)}")
    A(f"v_cvt_pk_bf16_f32 v62, {v(vQY)}, {v(vQY+1)}")
    A(f"v_cvt_pk_bf16_f32 v63, {v(vQY+2)}, {v(vQY+3)}")
    A(f"ds_write_b128 v57, v[60:63]")
    vQF4, vD, vPK = 128, 144, 160
    for t in range(4):
        A(f"ds_read_b128 {v(vQF4+4*t,4)}, v248 offset:{64*t}")
    for t in range(4):
        A(f"s_waitcnt lgkmcnt({3-t})")
        for T in range(4):
            c = "0" if t == 0 else v(vD+4*T,4)
            A(f"v_mfma_f32_16x16x32_bf16 {v(vD+4*T,4)}, {v(vWUK+16*T+4*t,4)}, {v(vQF4+4*t,4)}, {c}")
    for k in range(8):
        A(f"v_cvt_pk_bf16_f32 {v(vPK+k)}, {v(vD+2*k)}, {v(vD+2*k+1)}")
    if cfg.pw_qa: wait_flag(A, FP1, 1, 43)
    A(f"s_mov_b64 {s(sEX,2)}, exec")
    A(f"s_mov_b32 exec_lo, 0x000f000f")
    A(f"s_mov_b32 exec_hi, 0x000f000f")
    A(f"buffer_store_dwordx4 {v(vPK,4)}, {v(vQAO)}, {s(sWS,4)}, 0 offen sc1")
    A(f"buffer_store_dwordx4 {v(vPK+4,4)}, {v(vQAO)}, {s(sWS,4)}, 0 offen offset:16 sc1")
    A(f"s_mov_b64 exec, {s(sEX,2)}")
    sum_dwords(A, 44, range(vPK, vPK+8))
    xreduce_rows(A, "v_add_u32", 44, 46)
    A(f"v_add_u32 v45, {s(sNONCE)}, v44")
    A(f"s_mov_b64 exec, 0xf")
    A(f"buffer_store_dwordx2 v[44:45], {v(vQCO)}, {s(sWS,4)}, 0 offen sc1")
    A(f"s_mov_b64 exec, {s(sEX,2)}")
    if not cfg.copy_after: late_copy(A, cfg, 242, vPUB, vCPUB)
    if not cfg.addr_early: attn_addresses()
    if cfg.hop2_gate:
        A(f"s_waitcnt vmcnt(0)")
        arrive(A, FP1, 43)
    if cfg.copy_after: late_copy(A, cfg, 242, vPUB, vCPUB)
    A(f"s_branch L_qdone")
    A.label("L_noq")
    if cfg.pw_qa or cfg.pw_fd:
        for k in range(4): A(f"v_mov_b32 {v(60+k)}, 0")
    if cfg.pw_qa:
        A(f"s_cmp_lg_u32 {s(sW)}, 1")
        A(f"s_cbranch_scc1 L_nopw1")
        A(f"v_lshl_add_u32 v58, {v(vN)}, 5, {s(sH)}")
        A(f"v_lshlrev_b32 v59, 3, v58")
        A(f"v_add_u32 v59, {s(sJ)}, v59")
        A(f"v_lshlrev_b32 v59, 3, v59")
        A(f"v_add_u32 v59, {hex(WS_QC)}, v59")
        A(f"v_lshlrev_b32 v58, 10, v58")
        A(f"v_lshl_add_u32 v58, {v(vS)}, 5, v58")
        A(f"s_lshl_b32 {s(sT0)}, {s(sJ)}, 7")
        A(f"s_add_u32 {s(sT0)}, {s(sT0)}, {hex(WS_QA)}")
        A(f"v_add_u32 v58, {s(sT0)}, v58")
        A(f"s_mov_b32 exec_lo, 0x000f000f")
        A(f"s_mov_b32 exec_hi, 0x000f000f")
        A(f"buffer_store_dwordx4 v[60:63], v58, {s(sWS,4)}, 0 offen sc1")
        A(f"buffer_store_dwordx4 v[60:63], v58, {s(sWS,4)}, 0 offen offset:16 sc1")
        A(f"s_mov_b64 exec, 0xf")
        A(f"buffer_store_dwordx2 v[60:61], v59, {s(sWS,4)}, 0 offen sc1")
        A(f"s_mov_b64 exec, -1")
        A(f"s_waitcnt vmcnt(0)")
        arrive(A, FP1, 43)
        A.label("L_nopw1")
    if cfg.pw_fd:
        A(f"s_cmp_lg_u32 {s(sW)}, 2")
        A(f"s_cbranch_scc1 L_nopw2")
        A(f"v_lshrrev_b32 v46, 3, {v(vN)}")
        A(f"v_lshl_add_u32 v46, {v(vS)}, 4, v46")
        A(f"s_lshl_b32 {s(sT0)}, {s(sJ)}, 1")
        A(f"v_add_u32 v46, {s(sT0)}, v46")
        A(f"s_movk_i32 {s(sT1)}, {NSLOT}")
        A(f"v_mul_lo_u32 v46, v46, {s(sT1)}")
        A(f"v_add_u32 v46, {s(sH)}, v46")
        A(f"v_lshlrev_b32 v59, 3, v46")
        A(f"v_add_u32 v59, {hex(WS_FC)}, v59")
        A(f"v_and_b32 v47, 7, {v(vN)}")
        A(f"v_lshlrev_b32 v47, 3, v47")
        A(f"v_lshl_add_u32 v58, v46, 6, v47")
        A(f"v_add_u32 v58, {hex(WS_FD)}, v58")
        A(f"buffer_store_dwordx2 v[60:61], v58, {s(sWS,4)}, 0 offen sc1")
        A(f"s_mov_b32 exec_lo, 0x01010101")
        A(f"s_mov_b32 exec_hi, 0x01010101")
        A(f"buffer_store_dwordx2 v[60:61], v59, {s(sWS,4)}, 0 offen sc1")
        A(f"s_mov_b64 exec, -1")
        A(f"s_waitcnt vmcnt(0)")
        arrive(A, FP2, 43)
        A.label("L_nopw2")
    make_sels(A, vN, vSEL, vT)
    A(f"s_waitcnt vmcnt(0)")
    nonce_from(A, vE)
    attn_addresses()
    A.label("L_qdone")
    stamp(A, cfg, 2)
    if cfg.exp in ('kvq', 'kvq1'): A(f"s_branch L_Mdone")
    NL = 3 if cfg.tail_early else 4
    wait_flag(A, FKV if cfg.wait_kv_first else FKI, NL, 44)
    if cfg.hop2_gate: wait_flag(A, FP1, 1, 44)
    if cfg.two_stage:
        lab0 = poll_head(A, "L_hop2t")
        A(f"buffer_load_dwordx2 {v(vQC,2)}, {v(aQC)}, {s(sWS,4)}, 0 offen sc1")
        A(f"s_waitcnt vmcnt(0)")
        A(f"v_add_u32 v45, {s(sNONCE)}, {v(vQC)}")
        A(f"v_cmp_ne_u32 vcc, v45, {v(vQC+1)}")
        A(f"s_and_b64 {s(sM1,2)}, vcc, {s(sM0,2)}")
        poll_tail(A, lab0, sM1, cfg.poll_sleep)
        savecnt(A, cfg, 1)
    vRING = 128
    def hop2_issue():
        for i in range(4):
            A(f"buffer_load_dwordx4 {v(vQG+4*i,4)}, {v(aQG)}, {s(sWS,4)}, 0 offen offset:{1024*i} sc1")
        A(f"buffer_load_dwordx2 {v(vQC,2)}, {v(aQC)}, {s(sWS,4)}, 0 offen sc1")
    if cfg.kvpre:
        A(f"s_mov_b32 {s(sCNT)}, 0")
        hop2_issue()
        if cfg.tail_flag == 'FH2': arrive(A, FH2, 43)
        wait_flag(A, FKV, NL, 44)
        for t in range(16):
            if t in (6, 12): A(f"s_waitcnt lgkmcnt(2)")
            for tt in range(2):
                A(f"ds_read_b128 {v(vRING+4*(2*t+tt),4)}, {v(aKE if t%2==0 else aKO)} offset:{16*t + tt*16*PITCH}")
        lab = A.newlabel("L_hop2"); chk = A.newlabel("L_hop2c")
        A(f"s_branch {chk}")
        A.label(lab)
        hop2_issue()
        A.label(chk)
    else:
        lab = poll_head(A, "L_hop2")
        hop2_issue()
        if cfg.tail_flag == 'FH2': arrive(A, FH2, 43)
    A(f"s_waitcnt vmcnt(0)")
    A(f"v_add_u32 v45, {s(sNONCE)}, {v(vQC)}")
    A(f"v_cmp_ne_u32 vcc, v45, {v(vQC+1)}")
    A(f"s_and_b64 {s(sM1,2)}, vcc, {s(sM0,2)}")
    rl = early_retry(A, cfg, sM1)
    sum_dwords(A, 44, range(vQG, vQG+16))
    A(f"v_sub_u32 v44, v44, {v(vQC)}")
    qlw = [f"ds_write_b128 {v(aQL)}, {v(vQG+4*i,4)} offset:{PITCH*i}" for i in range(4)]
    if cfg.fillchk: wave_sum_fill(A, 44, 46, qlw)
    else: wave_sum_u32(A, 44, 46)
    A(f"v_cmp_ne_u32 vcc, 0, v44")
    A(f"s_or_b64 {s(sM1,2)}, {s(sM1,2)}, vcc")
    poll_tail(A, lab, sM1, cfg.poll_sleep, rl)
    savecnt(A, cfg, 2)
    if not cfg.fillchk:
        for ins in qlw: A(ins)
    arrive(A, F3, 43)
    stamp(A, cfg, 3)
    if not cfg.kvpre: wait_flag(A, FKV, NL, 44)
    wait_flag(A, F3, 4, 44)
    stamp(A, cfg, 4)
    pstamp(A, cfg, 8)
    vQF = 64
    vS0, vS1 = 32, 36
    NSLOT_R = 32 if cfg.kvpre else 16
    def pvread(k):
        T, g = k // 4, k % 4
        slot = k % NSLOT_R
        base = aPV0 if g < 2 else aPV1
        off = (32*(g%2))*PITCH + T*32
        A(f"ds_read_b64_tr_b16 {v(vRING+4*slot,2)}, {v(base)} offset:{off}")
        A(f"ds_read_b64_tr_b16 {v(vRING+4*slot+2,2)}, {v(base)} offset:{off+16*PITCH}")
    if cfg.kvpre:
        def qread(t): A(f"ds_read_b128 {v(vQF+4*t,4)}, {v(aQE if t%2==0 else aQO)} offset:{16*t}")
        for t in range(12): qread(t)
        npv = 0
        for t in range(16):
            if t < 4: A(f"s_waitcnt lgkmcnt(11)")
            elif t < 8: A(f"s_waitcnt lgkmcnt({15-t-4+ (0)})") if False else A(f"s_waitcnt lgkmcnt({max(0, 15 - t)})")
            elif t == 8: A(f"s_waitcnt lgkmcnt(0)")
            for tt in range(2):
                acc = vS0 if tt == 0 else vS1
                A(f"v_mfma_f32_16x16x32_bf16 {v(acc,4)}, {v(vRING+4*(2*t+tt),4)}, {v(vQF+4*t,4)}, {'0' if t == 0 else v(acc,4)}")
            if t < 4: qread(12+t)
            if t >= 8:
                if npv >= 4: A(f"s_waitcnt lgkmcnt(8)")
                pvread(npv); pvread(npv+1); npv += 2
        PRE0 = npv
    else:
        LA = 4
        def qkread(t):
            A(f"ds_read_b128 {v(vQF+4*t,4)}, {v(aQE if t%2==0 else aQO)} offset:{16*t}")
            for tt in range(2):
                slot = (2*t+tt) % 16
                A(f"ds_read_b128 {v(vRING+4*slot,4)}, {v(aKE if t%2==0 else aKO)} offset:{16*t + tt*16*PITCH}")
        for t in range(LA): qkread(t)
        for t in range(16):
            A(f"s_waitcnt lgkmcnt({3*min(LA-1, 15-t)})")
            for tt in range(2):
                slot = (2*t+tt) % 16
                acc = vS0 if tt == 0 else vS1
                A(f"v_mfma_f32_16x16x32_bf16 {v(acc,4)}, {v(vRING+4*slot,4)}, {v(vQF+4*t,4)}, {'0' if t == 0 else v(acc,4)}")
            if t + LA < 16: qkread(t+LA)
        PRE0 = 0
    pstamp(A, cfg, 1)
    vM = 44
    A(f"v_max3_f32 {v(vM)}, {v(vS0)}, {v(vS0+1)}, {v(vS0+2)}")
    A(f"v_max3_f32 v45, {v(vS0+3)}, {v(vS1)}, {v(vS1+1)}")
    A(f"v_max3_f32 {v(vM)}, {v(vM)}, {v(vS1+2)}, {v(vS1+3)}")
    A(f"v_max_f32 {v(vM)}, {v(vM)}, v45")
    xreduce_rows(A, "v_max_f32", vM, 45)
    A(f"ds_write_b32 {v(aMXW)}, {v(vM)}")
    def sentinel_wait(name, reads, regs):
        lab = A.newlabel(name); done = A.newlabel(name + "d")
        A(f"s_mov_b32 {s(sCNT2)}, 0")
        A.label(lab)
        reads()
        A(f"s_waitcnt lgkmcnt(0)")
        regs = list(regs)
        A(f"v_max3_u32 v47, {v(regs[0])}, {v(regs[1])}, {v(regs[2])}")
        k = 3
        while k + 1 < len(regs):
            A(f"v_max3_u32 v47, v47, {v(regs[k])}, {v(regs[k+1])}"); k += 2
        if k < len(regs): A(f"v_max_u32 v47, v47, {v(regs[k])}")
        A(f"v_cmp_eq_u32 vcc, -1, v47")
        A(f"s_cbranch_vccz {done}")
        A(f"s_add_u32 {s(sCNT2)}, {s(sCNT2)}, 1")
        A(f"s_cmp_lt_u32 {s(sCNT2)}, 2000000")
        A(f"s_cbranch_scc1 {lab}")
        A.label(done)
    sentinel_wait("L_mx", lambda: A(f"ds_read_b128 v[48:51], {v(aMXR)}"), range(48, 52))
    PRE = PRE0 + 6
    A(f"v_max3_f32 {v(vM)}, v48, v49, v50")
    for k in range(PRE0, PRE): pvread(k)
    A(f"v_max_f32 {v(vM)}, {v(vM)}, v51")
    A(f"s_mov_b32 {s(sT0)}, {hex(f2u(SCALE))}")
    A(f"v_mul_f32 {v(vM)}, {s(sT0)}, {v(vM)}")
    for k in range(8):
        A(f"v_fma_f32 {v(vS0+k)}, {v(vS0+k)}, {s(sT0)}, -{v(vM)}")
    for k in range(8):
        A(f"v_exp_f32 {v(vS0+k)}, {v(vS0+k)}")
    vLs = 46
    for k in range(4):
        A(f"v_cvt_pk_bf16_f32 {v(52+k)}, {v(vS0+2*k)}, {v(vS0+2*k+1)}")
    A(f"ds_write_b128 {v(aPW)}, v[52:55]")
    A(f"v_add_f32 {v(vLs)}, {v(vS0)}, {v(vS0+1)}")
    A(f"v_add_f32 v47, {v(vS0+2)}, {v(vS0+3)}")
    A(f"v_add_f32 v48, {v(vS0+4)}, {v(vS0+5)}")
    A(f"v_add_f32 v49, {v(vS0+6)}, {v(vS0+7)}")
    A(f"v_add_f32 {v(vLs)}, {v(vLs)}, v47")
    A(f"v_add_f32 v48, v48, v49")
    A(f"v_add_f32 {v(vLs)}, {v(vLs)}, v48")
    xreduce_rows(A, "v_add_f32", vLs, 47)
    A(f"ds_write_b32 {v(aMXW)}, {v(vLs)} offset:{L_LS-L_MX}")
    vPF, vO, vPK = 64, 80, 112
    def _rd():
        A(f"ds_read_b128 v[48:51], {v(aMXR)} offset:{L_LS-L_MX}")
        for g in range(4):
            A(f"ds_read_b128 {v(vPF+4*g,4)}, {v(aPR)} offset:{1024*g}")
    sentinel_wait("L_ls", _rd, range(48, 52))
    pstamp(A, cfg, 2)
    nxt = PRE
    outstanding = []
    def issue(k):
        pvread(k); outstanding.extend([("f",k),("f",k)])
    while len(outstanding) + 2 <= 14 and nxt < 32:
        issue(nxt); nxt += 1
    A(f"v_add_f32 v48, v48, v49")
    A(f"v_add_f32 v50, v50, v51")
    A(f"v_add_f32 v47, v48, v50")
    def post(p):
        for T in (2*p, 2*p+1):
            A(f"v_cvt_pk_bf16_f32 {v(vPK+2*T)}, {v(vO+4*T)}, {v(vO+4*T+1)}")
            A(f"v_cvt_pk_bf16_f32 {v(vPK+2*T+1)}, {v(vO+4*T+2)}, {v(vO+4*T+3)}")
        A(f"v_permlane16_swap_b32 {v(vPK+4*p)}, {v(vPK+4*p+2)}")
        A(f"v_permlane16_swap_b32 {v(vPK+4*p+1)}, {v(vPK+4*p+3)}")
        A(f"buffer_store_dwordx4 {v(vPK+4*p,4)}, {v(aOP0 if p < 2 else aOP1)}, {s(sWS,4)}, 0 offen offset:{64*(p%2)} sc1")
        c = 52 + (p >> 1)
        if p % 2 == 0:
            A(f"v_add3_u32 {v(c)}, {v(vPK+4*p)}, {v(vPK+4*p+1)}, {v(vPK+4*p+2)}")
            A(f"v_add_u32 {v(c)}, {v(c)}, {v(vPK+4*p+3)}")
        else:
            A(f"v_add3_u32 {v(c)}, {v(c)}, {v(vPK+4*p)}, {v(vPK+4*p+1)}")
            A(f"v_add3_u32 {v(c)}, {v(c)}, {v(vPK+4*p+2)}, {v(vPK+4*p+3)}")
    for k in range(32):
        T, g = k//4, k%4
        need_idx = -1
        for idx, o in enumerate(outstanding):
            if o == ("f",k): need_idx = max(need_idx, idx)
        can = nxt < 32 and nxt <= k + NSLOT_R - 1
        if can:
            need_idx = max(need_idx, len(outstanding) + 2 - 15 - 1)
        if need_idx >= 0:
            n_after = len(outstanding) - 1 - need_idx
            A(f"s_waitcnt lgkmcnt({n_after})")
            del outstanding[:need_idx+1]
        slot = k % NSLOT_R
        A(f"v_mfma_f32_16x16x32_bf16 {v(vO+4*T,4)}, {v(vRING+4*slot,4)}, {v(vPF+4*g,4)}, {'0' if g == 0 else v(vO+4*T,4)}")
        if can:
            issue(nxt); nxt += 1
        if k in (11, 19, 27):
            post((k - 11)//8)
            if cfg.pubts: A("s_waitcnt lgkmcnt(0)"); del outstanding[:]; pstamp(A, cfg, 3 + (k-11)//8)
    stamp(A, cfg, 5)
    post(3)
    pstamp(A, cfg, 6)
    xreduce_rows2(A, "v_add_u32", 52, 54, "v_add_u32", 53, 55)
    A(f"v_cmp_eq_u32 vcc, 1, {v(vS)}")
    A(f"v_mov_b32 v60, {v(vM)}")
    A(f"v_mov_b32 v61, v47")
    A(f"v_cndmask_b32 v62, v52, v53, vcc")
    A(f"v_add3_u32 v63, v60, v61, v62")
    A(f"v_add_u32 v63, {s(sNONCE)}, v63")
    A(f"s_mov_b64 {s(sEX,2)}, exec")
    A(f"s_mov_b32 exec_hi, 0")
    A(f"buffer_store_dwordx4 v[60:63], {v(aST)}, {s(sWS,4)}, 0 offen sc1")
    A(f"s_mov_b64 exec, {s(sEX,2)}")
    pstamp(A, cfg, 7)
    arrive(A, FPB, 52)
    stamp(A, cfg, 6)
    vOD, vST = 128, 144
    A(f"s_lshl_b32 {s(sT0)}, {s(sH)}, 3")
    A(f"s_add_u32 {s(sT0)}, {s(sT0)}, {s(sJ)}")
    A(f"s_lshl_b32 {s(sT0)}, {s(sT0)}, 2")
    A(f"s_add_u32 {s(sT0)}, {s(sT0)}, {s(sW)}")
    A(f"s_lshl_b32 {s(sT0)}, {s(sT0)}, 5")
    A(f"s_lshl_b32 {s(sT1)}, {s(sT0)}, 7")
    A(f"s_add_u32 {s(sT1)}, {s(sT1)}, {hex(WS_OP)}")
    A(f"v_lshl_add_u32 v40, {v(vL)}, 4, {s(sT1)}")
    A(f"s_lshl_b32 {s(sT1)}, {s(sT0)}, 4")
    A(f"s_add_u32 {s(sT1)}, {s(sT1)}, {hex(WS_ST)}")
    A(f"v_and_b32 v41, 31, {v(vL)}")
    A(f"v_lshl_add_u32 v41, v41, 4, {s(sT1)}")
    A(f"v_cmp_gt_u32 {s(sM0,2)}, 32, {v(vL)}")
    A(f"s_lshl_b32 {s(sT1)}, {s(sW)}, 7")
    A(f"s_add_u32 {s(sT1)}, {s(sT1)}, {L_CC}")
    A(f"v_lshl_add_u32 v43, {v(vL)}, 4, {s(sT1)}")
    A(f"v_bfe_u32 v42, {v(vN)}, 2, 1")
    A(f"v_lshl_add_u32 v42, {v(vS)}, 1, v42")
    A(f"v_lshlrev_b32 v42, 2, v42")
    if cfg.hop3_ack: A(f"s_waitcnt vmcnt(0)")
    if cfg.wo_flag == 'ACK' or cfg.mlp_w1_flag == 'FP2' or cfg.hop3_ack == 2: arrive(A, FP2, 47)
    if cfg.hop3_ack == 2: wait_flag(A, FP2, 4, 47)
    if cfg.g_ts: stamp(A, cfg, 8)
    if cfg.hop3_sleep: A(f"s_sleep {cfg.hop3_sleep}")
    if cfg.two_stage or cfg.two3:
        lab0 = poll_head(A, "L_hop3t")
        A(f"buffer_load_dwordx4 {v(vST,4)}, v41, {s(sWS,4)}, 0 offen sc1")
        A(f"s_waitcnt vmcnt(0)")
        A(f"v_add3_u32 v45, {v(vST)}, {v(vST+1)}, {v(vST+2)}")
        A(f"v_add_u32 v45, {s(sNONCE)}, v45")
        A(f"v_cmp_ne_u32 {s(sM1,2)}, v45, {v(vST+3)}")
        poll_tail(A, lab0, sM1, cfg.poll_sleep)
        savecnt(A, cfg, 3)
    lab = poll_head(A, "L_hop3")
    for i in range(4):
        A(f"buffer_load_dwordx4 {v(vOD+4*i,4)}, v40, {s(sWS,4)}, 0 offen offset:{1024*i} sc1")
    A(f"buffer_load_dwordx4 {v(vST,4)}, v41, {s(sWS,4)}, 0 offen sc1")
    A(f"s_waitcnt vmcnt(0)")
    A(f"v_add3_u32 v45, {v(vST)}, {v(vST+1)}, {v(vST+2)}")
    A(f"v_add_u32 v45, {s(sNONCE)}, v45")
    A(f"v_cmp_ne_u32 {s(sM1,2)}, v45, {v(vST+3)}")
    rl = early_retry(A, cfg, sM1)
    sum_dwords(A, 44, range(vOD, vOD+16))
    A(f"v_cndmask_b32 v45, 0, {v(vST+2)}, {s(sM0,2)}")
    A(f"v_sub_u32 v44, v44, v45")
    if cfg.fillchk:
        A(f"v_mov_b32 v54, {v(vST)}")
        for d in ("quad_perm:[1,0,3,2]", "quad_perm:[2,3,0,1]", "row_half_mirror", "row_mirror"):
            A(f"v_add_u32_dpp v44, v44, v44 {d} row_mask:0xf bank_mask:0xf")
            A(f"v_max_f32_dpp v54, v54, v54 {d} row_mask:0xf bank_mask:0xf")
        A(f"v_mov_b32 v46, v44")
        A(f"v_mov_b32 v55, v54")
        A(f"v_permlane16_swap_b32 v44, v46")
        A(f"v_permlane16_swap_b32 v54, v55")
        A(f"v_add_u32 v44, v44, v46")
        A(f"v_max_f32 v54, v54, v55")
        A(f"v_mov_b32 v46, v44")
        A(f"v_sub_f32 v54, {v(vST)}, v54")
        A(f"v_exp_f32 v54, v54")
        A(f"v_permlane32_swap_b32 v44, v46")
        if cfg.comb2:
            for k in range(4):
                A(f"ds_bpermute_b32 {v(48+k)}, v42, v54 offset:{32*k}")
        A(f"v_add_u32 v44, v44, v46")
    else:
        wave_sum_u32(A, 44, 46)
    A(f"v_cmp_ne_u32 vcc, 0, v44")
    A(f"s_or_b64 {s(sM1,2)}, {s(sM1,2)}, vcc")
    poll_tail(A, lab, sM1, cfg.poll_sleep, rl)
    need_fh3 = cfg.wo_flag == 'FH3' or cfg.mlp_w1_flag == 'FH3' or cfg.mlp_w2 == 'FH3'
    if need_fh3 and not (cfg.comb2 and cfg.fillchk): arrive(A, FCC, 47)
    savecnt(A, cfg, 4)
    stamp(A, cfg, 7)
    if cfg.comb2 and cfg.fillchk:
        dpp = lambda d: A(f"v_add_f32_dpp v45, v45, v45 {d} row_mask:0xf bank_mask:0xf")
        A(f"v_mul_f32 v45, v54, {v(vST+1)}")
        for t in range(2):
            A(f"v_swap_b32 {v(vOD+8*t+2)}, {v(vOD+8*t+4)}")
            A(f"v_swap_b32 {v(vOD+8*t+3)}, {v(vOD+8*t+5)}")
        dpp("quad_perm:[1,0,3,2]")
        A(f"s_waitcnt lgkmcnt(0)")
        A(f"v_cvt_pk_bf16_f32 v52, v48, v49")
        A(f"v_cvt_pk_bf16_f32 v53, v50, v51")
        dpp("quad_perm:[2,3,0,1]")
        for k in range(4): A(f"v_perm_b32 {v(vAF0+k)}, v52, v52, {v(vSEL+k)}")
        dpp("row_half_mirror")
        for k in range(4): A(f"v_perm_b32 {v(vAF1+k)}, v53, v53, {v(vSEL+k)}")
        dpp("row_mirror")
        A(f"v_mfma_f32_16x16x32_bf16 {v(vQX,4)}, {v(vAF0,4)}, {v(vOD,4)}, 0")
        A(f"v_mfma_f32_16x16x32_bf16 {v(vQY,4)}, {v(vAF0,4)}, {v(vOD+4,4)}, 0")
        A(f"v_mov_b32 v46, v45")
        A(f"v_mfma_f32_16x16x32_bf16 {v(vQX,4)}, {v(vAF1,4)}, {v(vOD+8,4)}, {v(vQX,4)}")
        A(f"v_mfma_f32_16x16x32_bf16 {v(vQY,4)}, {v(vAF1,4)}, {v(vOD+12,4)}, {v(vQY,4)}")
        A(f"v_permlane16_swap_b32 v45, v46")
        A(f"v_add_f32 v45, v45, v46")
        A(f"v_rcp_f32 v45, v45")
        if need_fh3: arrive(A, FCC, 47)
    else:
        if cfg.fillchk:
            A(f"v_mov_b32 v44, v54")
        else:
            A(f"v_mov_b32 v44, {v(vST)}")
            for d in ("quad_perm:[1,0,3,2]", "quad_perm:[2,3,0,1]", "row_half_mirror", "row_mirror"):
                A(f"v_max_f32_dpp v44, v44, v44 {d} row_mask:0xf bank_mask:0xf")
            A(f"v_mov_b32 v46, v44")
            A(f"v_permlane16_swap_b32 v44, v46")
            A(f"v_max_f32 v44, v44, v46")
            A(f"v_sub_f32 v44, {v(vST)}, v44")
            A(f"v_exp_f32 v44, v44")
        for t in range(2):
            A(f"v_swap_b32 {v(vOD+8*t+2)}, {v(vOD+8*t+4)}")
            A(f"v_swap_b32 {v(vOD+8*t+3)}, {v(vOD+8*t+5)}")
        for k in range(4):
            A(f"ds_bpermute_b32 {v(48+k)}, v42, v44 offset:{32*k}")
        A(f"v_mul_f32 v45, v44, {v(vST+1)}")
        for d in ("quad_perm:[1,0,3,2]", "quad_perm:[2,3,0,1]", "row_half_mirror", "row_mirror"):
            A(f"v_add_f32_dpp v45, v45, v45 {d} row_mask:0xf bank_mask:0xf")
        A(f"v_mov_b32 v46, v45")
        A(f"v_permlane16_swap_b32 v45, v46")
        A(f"v_add_f32 v45, v45, v46")
        A(f"v_rcp_f32 v45, v45")
        A(f"s_waitcnt lgkmcnt(0)")
        A(f"v_cvt_pk_bf16_f32 v52, v48, v49")
        A(f"v_cvt_pk_bf16_f32 v53, v50, v51")
        sel_gemm(A, 2, 52, vSEL, vAF0, vAF1, vOD, vQX, vQY)
    for k in range(8):
        A(f"v_permlane16_swap_b32 {v(vQX+k)}, {v(56+k)}")
    for k in range(8):
        A(f"v_add_f32_dpp {v(56+k)}, {v(56+k)}, {v(vQX+k)} row_ror:8 row_mask:0xf bank_mask:0xf")
    for k in range(8):
        A(f"v_mul_f32 {v(56+k)}, {v(56+k)}, v45")
    for k in range(4):
        A(f"v_cvt_pk_bf16_f32 {v(48+k)}, {v(56+2*k)}, {v(56+2*k+1)}")
    A(f"s_mov_b64 exec, 0xff")
    A(f"ds_write_b128 v43, v[48:51]")
    A(f"s_mov_b64 exec, -1")
    if not cfg.g_ts: stamp(A, cfg, 8)
    A(f"s_cmp_ge_u32 s2, 64")
    A(f"s_cbranch_scc1 L_Mdone")
    A(f"s_cmp_lg_u32 {s(sW)}, 0")
    A(f"s_cbranch_scc1 L_Mdone")
    if cfg.prio_tail: A(f"s_setprio 0")
    vFD, vFC = 128, 152
    A(f"s_mul_i32 {s(sT0)}, s2, {NSLOT}")
    A(f"s_lshl_b32 {s(sT2)}, {s(sT0)}, 6")
    A(f"s_add_u32 {s(sT2)}, {s(sT2)}, {hex(WS_FD)}")
    A(f"v_lshl_add_u32 v40, {v(vL)}, 4, {s(sT2)}")
    A(f"s_lshl_b32 {s(sT2)}, {s(sT0)}, 3")
    A(f"s_add_u32 {s(sT2)}, {s(sT2)}, {hex(WS_FC)}")
    A(f"v_lshl_add_u32 v41, {v(vL)}, 3, {s(sT2)}")
    A(f"v_mov_b32 v47, 0x7ffffff0")
    NP = 32 if cfg.nomlp else NPROD
    A(f"v_lshrrev_b32 v44, 2, {v(vL)}")
    A(f"v_add_u32 v44, 32, v44")
    A(f"v_cmp_gt_u32 vcc, {NP}, v44")
    A(f"v_add_u32 v46, 2048, v40")
    A(f"v_cndmask_b32 v42, v47, v46, vcc")
    A(f"v_cmp_gt_u32 {s(sM2,2)}, {NP}, {v(vL)}")
    A(f"v_cndmask_b32 v41, v47, v41, {s(sM2,2)}")
    A(f"v_and_b32 v44, 3, {v(vN)}")
    A(f"v_mov_b32 v45, 0")
    for k, (j0, j1) in enumerate(((0,1),(2,3))):
        A(f"v_mov_b32 v46, 0x3f80")
        A(f"v_cmp_eq_u32 vcc, {j0}, v44")
        A(f"v_cndmask_b32 {v(vAF0+k)}, v45, v46, vcc")
        A(f"v_mov_b32 v46, 0x3f800000")
        A(f"v_cmp_eq_u32 vcc, {j1}, v44")
        A(f"v_cndmask_b32 {v(vAF0+k)}, {v(vAF0+k)}, v46, vcc")
    A(f"v_mov_b32 {v(vAF0+2)}, {v(vAF0)}")
    A(f"v_mov_b32 {v(vAF0+3)}, {v(vAF0+1)}")
    for k in range(4): A(f"v_mov_b32 {v(vFD+12+k)}, 0")
    A(f"s_lshl_b32 {s(sT3)}, s2, 6")
    A(f"v_lshl_add_u32 v57, {v(vL)}, 4, {s(sT3)}")
    if cfg.hop5_gate: wait_flag(A, FT, 1, 44)
    if cfg.prio_tail: A(f"s_setprio 3")
    lab = poll_head(A, "L_hop5")
    for i in range(2):
        A(f"buffer_load_dwordx4 {v(vFD+4*i,4)}, v40, {s(sWS,4)}, 0 offen offset:{1024*i} sc1")
    A(f"buffer_load_dwordx4 {v(vFD+8,4)}, v42, {s(sWS,4)}, 0 offen sc1")
    A(f"buffer_load_dwordx2 {v(vFC,2)}, v41, {s(sWS,4)}, 0 offen sc1")
    A(f"s_waitcnt vmcnt(0)")
    A(f"v_add_u32 v45, {s(sNONCE)}, {v(vFC)}")
    A(f"v_cmp_ne_u32 vcc, v45, {v(vFC+1)}")
    A(f"s_and_b64 {s(sM1,2)}, vcc, {s(sM2,2)}")
    rl5 = early_retry(A, cfg, sM1)
    sum_dwords(A, 44, range(vFD, vFD+12))
    A(f"v_sub_u32 v44, v44, {v(vFC)}")
    fin = []
    for p in range(2):
        w = vFD + 8*p
        fin.append(f"v_swap_b32 {v(w+2)}, {v(w+4)}")
        fin.append(f"v_swap_b32 {v(w+3)}, {v(w+5)}")
    for p in range(2):
        w = vFD + 8*p
        c0 = "0" if p == 0 else v(vQX,4); c1 = "0" if p == 0 else v(vQY,4)
        fin.append(f"v_mfma_f32_16x16x32_bf16 {v(vQX,4)}, {v(vAF0,4)}, {v(w,4)}, {c0}")
        fin.append(f"v_mfma_f32_16x16x32_bf16 {v(vQY,4)}, {v(vAF0,4)}, {v(w+4,4)}, {c1}")
    if cfg.fillchk:
        wave_sum_fill(A, 44, 46, fin)
        for k in range(4): A(f"v_mov_b32 {v(vFD+12+k)}, 0")
    else:
        wave_sum_u32(A, 44, 46)
    A(f"v_cmp_ne_u32 vcc, 0, v44")
    A(f"s_or_b64 {s(sM1,2)}, {s(sM1,2)}, vcc")
    poll_tail(A, lab, sM1, cfg.poll_sleep, rl5)
    savecnt(A, cfg, 5)
    stamp(A, cfg, 9)
    if not cfg.fillchk:
        for ins in fin: A(ins)
    for d in ("row_ror:4", "row_ror:8"):
        for k in range(8):
            A(f"v_add_f32_dpp {v(vQX+k)}, {v(vQX+k)}, {v(vQX+k)} {d} row_mask:0xf bank_mask:0xf")
    for k in range(4):
        A(f"v_cvt_pk_bf16_f32 {v(48+k)}, {v(vQX+2*k)}, {v(vQX+2*k+1)}")
    A(f"s_mov_b64 exec, 0xf")
    A(f"buffer_store_dwordx4 v[48:51], v57, {s(sOUT,4)}, 0 offen")
    A(f"s_cmp_lg_u32 s2, 0")
    A(f"s_cbranch_scc1 L_Mdone")
    A(f"s_add_u32 {s(sT0)}, {s(sE)}, 1")
    A(f"v_mov_b32 v52, {s(sT0)}")
    A(f"v_mov_b32 v53, {hex(WS_E)}")
    A(f"s_mov_b64 exec, 1")
    A(f"buffer_store_dword v52, v53, {s(sWS,4)}, 0 offen sc1")
    A.label("L_Mdone")
    if cfg.ts:
        A(f"s_mov_b64 exec, -1")
        emit_ts(A, cfg)
    A(f"s_endpgm")
    A.label("L_Lpath")
    LSLEEP[0] = cfg.lsleep
    vGX, vGW = 64, 80
    vW1, vW2, vB1, vH = 128, 160, 192, 196
    A(f"s_sub_u32 {s(sW)}, {s(sW)}, 4")
    A(f"v_lshlrev_b32 v40, 4, {v(vL)}")
    A(f"v_mov_b32 v43, {hex(WS_E)}")
    if cfg.prefetch_code:
        A(f"s_cmp_lg_u32 {s(sW)}, 3")
        A(f"s_cbranch_scc1 L_nopf")
        A(f"s_getpc_b64 s[66:67]")
        A.label("L_pcref")
        A(f"s_sub_u32 s66, s66, (L_pcref-{KNAME})")
        A(f"s_subb_u32 s67, s67, 0")
        A(f"s_lshl_b32 {s(sT2)}, {s(sR)}, 10")
        A(f"v_lshl_add_u32 v44, {v(vL)}, 7, {s(sT2)}")
        A(f"v_cmp_gt_u32 vcc, (L_end-{KNAME}), v44")
        A(f"v_cmp_gt_u32 {s(sM3,2)}, 8, {v(vL)}")
        A(f"s_and_b64 vcc, vcc, {s(sM3,2)}")
        A(f"s_and_saveexec_b64 {s(sEX,2)}, vcc")
        A(f"s_cbranch_execz L_pfskip")
        A(f"global_load_dword v63, v44, s[66:67]")
        A.label("L_pfskip")
        A(f"s_mov_b64 exec, {s(sEX,2)}")
        A.label("L_nopf")
    if cfg.tlb:
        A(f"s_cmp_lg_u32 {s(sW)}, 2")
        A(f"s_cbranch_scc1 L_notlb")
        st = cfg.tlb
        A(f"v_lshlrev_b32 v44, 16, {v(vL)}")
        A(f"v_add_u32 v45, {hex(WS_OP)}, v44")
        A(f"buffer_load_dword v62, v45, {s(sWS,4)}, 0 offen")
        A(f"v_lshlrev_b32 v45, 15, {v(vL)}")
        A(f"buffer_load_dword v62, v45, {s(sWS,4)}, 0 offen")
        A(f"v_add_u32 v45, {hex(LOCAL_DELTA)}, v45")
        A(f"buffer_load_dword v62, v45, {s(sWS,4)}, 0 offen")
        A(f"buffer_load_dword v62, v44, {s(sWUV,4)}, 0 offen")
        A(f"buffer_load_dword v62, v44, {s(sWO,4)}, 0 offen")
        A(f"buffer_load_dword v62, v44, {s(sW1,4)}, 0 offen")
        A(f"buffer_load_dword v62, v44, {s(sW2,4)}, 0 offen")
        A(f"buffer_load_dword v62, v44, {s(sOUT,4)}, 0 offen")
        A(f"buffer_load_dword v62, v44, {s(sGW,4)}, 0 offen")
        A(f"buffer_load_dword v62, v44, {s(sB1,4)}, 0 offen")
        A.label("L_notlb")
    if cfg.tail_early:
        make_sels(A, vN, vSEL, 44)
        A(f"s_cmp_eq_u32 {s(sW)}, 0")
        A(f"s_cbranch_scc1 L_tail")
        A(f"s_sub_u32 {s(sT2)}, {s(sW)}, 1")
        A(f"s_mul_i32 {s(sT2)}, {s(sT2)}, 43")
        A(f"s_add_u32 {s(sT3)}, {s(sT2)}, 43")
        A(f"s_min_u32 {s(sT3)}, {s(sT3)}, 128")
        A(f"s_lshl_b32 {s(sT0)}, {s(sB)}, 12")
        A(f"s_lshl_b32 {s(sT1)}, {s(sKC)}, 7")
        A(f"s_add_u32 {s(sT0)}, {s(sT0)}, {s(sT1)}")
        A(f"s_add_u32 {s(sT0)}, {s(sT0)}, {s(sT2)}")
        A(f"s_lshl_b32 {s(sT0)}, {s(sT0)}, 10")
        A(f"s_mul_i32 {s(sT1)}, {s(sT2)}, {PITCH}")
        A(f"s_mov_b32 m0, {s(sT1)}")
        A(f"s_mov_b32 {s(sCNT)}, {s(sT2)}")
    else:
        A(f"s_lshl_b32 {s(sT0)}, {s(sB)}, 12")
        A(f"s_lshl_b32 {s(sT1)}, {s(sKC)}, 7")
        A(f"s_add_u32 {s(sT0)}, {s(sT0)}, {s(sT1)}")
        A(f"s_lshl_b32 {s(sT1)}, {s(sW)}, 5")
        A(f"s_add_u32 {s(sT0)}, {s(sT0)}, {s(sT1)}")
        A(f"s_lshl_b32 {s(sT0)}, {s(sT0)}, 10")
        A(f"s_mul_i32 {s(sT1)}, {s(sW)}, {32*PITCH}")
        A(f"s_mov_b32 m0, {s(sT1)}")
        A(f"s_mov_b32 {s(sCNT)}, 0")
    if cfg.l_delay: wait_flag(A, FW, 1, 45)
    if cfg.kvwin0:
        A.label("L_dma0")
        A(f"s_waitcnt vmcnt({cfg.kvwin0-1})")
        A(f"buffer_load_dwordx4 v40, {s(sKV,4)}, {s(sT0)} offen{NTKV} lds")
        A(f"s_add_u32 m0, m0, {PITCH}")
        A(f"s_add_u32 {s(sT0)}, {s(sT0)}, 1024")
        A(f"s_add_u32 {s(sCNT)}, {s(sCNT)}, 1")
        A(f"s_cmp_lt_u32 {s(sCNT)}, {cfg.kvn0}")
        A(f"s_cbranch_scc1 L_dma0")
    A.label("L_dma")
    if cfg.kvwin < 32: A(f"s_waitcnt vmcnt({cfg.kvwin-1})")
    A(f"buffer_load_dwordx4 v40, {s(sKV,4)}, {s(sT0)} offen{NTKV} lds")
    A(f"s_add_u32 m0, m0, {PITCH}")
    A(f"s_add_u32 {s(sT0)}, {s(sT0)}, 1024")
    A(f"s_add_u32 {s(sCNT)}, {s(sCNT)}, 1")
    A(f"s_cmp_lt_u32 {s(sCNT)}, {s(sT3) if cfg.tail_early else 32}")
    A(f"s_cbranch_scc1 L_dma")
    arrive(A, FKI, 45)
    stamp(A, cfg, 2, L=True)
    if not cfg.tail_early: make_sels(A, vN, vSEL, 44)
    if cfg.pw_op:
        A(f"s_cmp_lg_u32 {s(sW)}, 1")
        A(f"s_cbranch_scc1 L_nopw3")
        A(f"s_lshl_b32 {s(sT0)}, {s(sHG)}, 4")
        A(f"v_add_u32 v48, {s(sT0)}, {v(vN)}")
        A(f"v_lshlrev_b32 v48, 10, v48")
        A(f"s_lshl_b32 {s(sT1)}, {s(sB)}, 5")
        A(f"s_add_u32 {s(sT0)}, {s(sT1)}, {s(sKC)}")
        A(f"v_add_u32 v48, {s(sT0)}, v48")
        A(f"v_lshlrev_b32 v49, 4, {v(vS)}")
        A(f"v_lshl_add_u32 v49, v48, 7, v49")
        A(f"v_add_u32 v49, {hex(WS_OP)}, v49")
        A(f"v_lshl_add_u32 v48, {v(vS)}, 7, v48")
        A(f"v_lshlrev_b32 v48, 4, v48")
        A(f"v_add_u32 v48, {hex(WS_ST)}, v48")
        for k in range(4): A(f"v_mov_b32 {v(52+k)}, 0")
        A(f"s_mov_b32 {s(sT2)}, 0")
        for q in range(8):
            for u in range(2):
                A(f"buffer_store_dwordx4 v[52:55], v49, {s(sWS,4)}, {s(sT2)} offen offset:{64*u} sc1")
            if q < 7: A(f"s_add_u32 {s(sT2)}, {s(sT2)}, 16384")
        A(f"s_mov_b32 {s(sT2)}, 0")
        A(f"s_mov_b32 exec_hi, 0")
        for mw in range(4):
            A(f"buffer_store_dwordx4 v[52:55], v48, {s(sWS,4)}, {s(sT2)} offen sc1")
            if mw < 3: A(f"s_add_u32 {s(sT2)}, {s(sT2)}, 4096")
        A(f"s_mov_b64 exec, -1")
        A(f"s_waitcnt vmcnt(20)")
        arrive(A, FKV, 45)
        A(f"s_waitcnt vmcnt(0)")
        arrive(A, FP3, 45)
        A(f"s_branch L_gate")
        A.label("L_nopw3")
    A(f"s_waitcnt vmcnt(0)")
    arrive(A, FKV, 45)
    stamp(A, cfg, 3, L=True)
    if cfg.exp: A(f"s_branch L_Ldone")
    A(f"s_cmp_eq_u32 {s(sW)}, 0")
    A(f"s_cbranch_scc1 L_tail")
    A(f"s_cmp_lg_u32 {s(sW)}, 1")
    A(f"s_cbranch_scc1 L_mlpw")
    A.label("L_gate")
    for b in range(4):
        A(f"buffer_load_dwordx4 {v(vGX+4*b,4)}, v40, {s(sX,4)}, 0 offen offset:{1024*b}")
    A(f"buffer_load_dwordx4 {v(vGW,4)}, v40, {s(sGW,4)}, 0 offen")
    for b in range(4):
        A(f"v_mov_b32 {v(44+b)}, 0")
    A(f"s_waitcnt vmcnt(0)")
    for k in range(4):
        for b in range(4):
            A(f"v_dot2_f32_bf16 {v(44+b)}, {v(vGX+4*b+k)}, {v(vGW+k)}, {v(44+b)}")
    A("s_nop 3")
    for d in ("quad_perm:[1,0,3,2]", "quad_perm:[2,3,0,1]", "row_half_mirror", "row_mirror"):
        for b in range(4):
            A(f"v_add_f32_dpp {v(44+b)}, {v(44+b)}, {v(44+b)} {d} row_mask:0xf bank_mask:0xf")
    xreduce_rows2(A, "v_add_f32", 44, 48, "v_add_f32", 45, 49)
    xreduce_rows2(A, "v_add_f32", 46, 48, "v_add_f32", 47, 49)
    A(f"v_cmp_eq_u32 vcc, 1, {v(vS)}")
    A(f"v_cndmask_b32 v44, v44, v45, vcc")
    A(f"v_cmp_eq_u32 vcc, 2, {v(vS)}")
    A(f"v_cndmask_b32 v44, v44, v46, vcc")
    A(f"v_cmp_eq_u32 vcc, 3, {v(vS)}")
    A(f"v_cndmask_b32 v44, v44, v47, vcc")
    A(f"s_mov_b32 {s(sT0)}, {hex(f2u(-LOG2E))}")
    A(f"v_mul_f32 v44, {s(sT0)}, v44")
    A(f"v_exp_f32 v44, v44")
    A(f"v_add_f32 v44, 1.0, v44")
    A(f"v_rcp_f32 v58, v44")
    A(f"v_lshlrev_b32 v45, 2, {v(vS)}")
    A(f"v_add_u32 v45, {L_G}, v45")
    A(f"ds_write_b32 v45, v58")
    arrive(A, FG, 45)
    A(f"s_branch L_Ldone")
    A.label("L_mlpw")
    A(f"s_cmp_lg_u32 {s(sW)}, 2")
    A(f"s_cbranch_scc1 L_Ldone")
    if cfg.nomlp: A(f"s_branch L_Ldone")
    sNS, sJM, sMHJ = sT3, sT4, sT5
    A(f"s_lshr_b32 {s(sT0)}, {s(sR)}, 3")
    if cfg.mlp_xor: A(f"s_xor_b32 {s(sT0)}, {s(sT0)}, {cfg.mlp_xor}")
    A(f"s_lshl_b32 {s(sT0)}, {s(sT0)}, 3")
    A(f"s_add_u32 {s(sNS)}, {s(sT0)}, {s(sXCD)}")
    A(f"s_cmp_ge_u32 {s(sNS)}, {NMG}")
    A(f"s_cbranch_scc1 L_Ldone")
    A(f"s_and_b32 {s(sJM)}, {s(sR)}, 7")
    A(f"s_lshl_b32 {s(sMHJ)}, {s(sNS)}, 3")
    A(f"s_add_u32 {s(sMHJ)}, {s(sMHJ)}, {s(sJM)}")
    vMX, vMW1, vMW2, vMB1 = 8, 64, 128, 60
    vONE, vG1, vCK1 = 192, 208, 240
    vPUB, vCPUB, vGA, vGB, vGC = 52, 53, 54, 55, 56
    A(f"v_lshrrev_b32 v41, 2, {v(vN)}")
    A(f"v_lshlrev_b32 v41, 10, v41")
    A(f"v_lshl_add_u32 v41, {v(vS)}, 5, v41")
    A(f"s_lshl_b32 {s(sT0)}, {s(sJM)}, 7")
    A(f"v_add_u32 v41, {s(sT0)}, v41")
    A(f"s_lshl_b32 {s(sT0)}, {s(sJM)}, 6")
    A(f"v_lshl_add_u32 v42, {v(vS)}, 4, {s(sT0)}")
    A(f"s_movk_i32 {s(sT1)}, 2752")
    A(f"v_mul_lo_u32 v42, v42, {s(sT1)}")
    A(f"s_lshl_b32 {s(sT0)}, {s(sNS)}, 8")
    A(f"v_lshl_add_u32 v44, {v(vN)}, 4, {s(sT0)}")
    A(f"v_add_u32 v42, v42, v44")
    A(f"v_cmp_gt_u32 vcc, 2752, v44")
    A(f"v_mov_b32 v45, 0x7ffffff0")
    A(f"v_cndmask_b32 v42, v45, v42, vcc")
    A(f"v_cndmask_b32 v44, v45, v44, vcc")
    A(f"s_lshl_b32 {s(sT0)}, {s(sNS)}, 17")
    A(f"s_lshl_b32 {s(sT1)}, {s(sJM)}, 7")
    A(f"s_add_u32 {s(sT0)}, {s(sT0)}, {s(sT1)}")
    A(f"v_lshlrev_b32 v46, 15, {v(vS)}")
    A(f"v_lshl_add_u32 v46, {v(vN)}, 3, v46")
    A(f"v_add_u32 v48, {s(sT0)}, v46")
    if cfg.mlp_w1_flag == 'FH3': wait_flag(A, FCC, 1, 46)
    elif cfg.mlp_w1_flag: wait_flag(A, globals()[cfg.mlp_w1_flag], 4, 46)
    stamp(A, cfg, 4, L=True)
    A(f"buffer_load_dword v40, v43, {s(sWS,4)}, 0 offen sc1")
    for k in range(2):
        A(f"buffer_load_dwordx4 {v(vMX+4*k,4)}, v41, {s(sX,4)}, 0 offen offset:{16*k}")
    A(f"buffer_load_dwordx4 {v(vMB1,4)}, v44, {s(sB1,4)}, 0 offen")
    A(f"s_mov_b32 {s(sT2)}, 0")
    for k in range(16):
        A(f"buffer_load_dwordx4 {v(vMW1+4*k,4)}, v42, {s(sW1,4)}, {s(sT2)} offen{NT}")
        if k < 15: A(f"s_add_u32 {s(sT2)}, {s(sT2)}, 2752")
    def w2_loads():
        A(f"s_mov_b32 {s(sT2)}, 0")
        for k in range(32):
            A(f"buffer_load_dwordx2 {v(vMW2+2*k,2)}, v43, {s(sW2,4)}, {s(sT2)} offen offset:{1024*(k%4)}{NT}")
            if k % 4 == 3 and k < 31: A(f"s_add_u32 {s(sT2)}, {s(sT2)}, 4096")
    A(f"v_mov_b32 v43, v48")
    NW2 = 0 if cfg.mlp_w2 else 32
    if not cfg.mlp_w2: w2_loads()
    make_ones(A, vN, vONE, 46)
    partial_offsets(A, vL, vN, vS, WS_H1, WS_H1C, vPUB, vCPUB, vGA, vGB, vGC, 46, sMHJ, sNS)
    A(f"v_lshrrev_b32 v46, 3, {v(vN)}")
    A(f"v_lshl_add_u32 v46, {v(vS)}, 4, v46")
    A(f"s_lshl_b32 {s(sT0)}, {s(sJM)}, 1")
    A(f"v_add_u32 v46, {s(sT0)}, v46")
    A(f"s_movk_i32 {s(sT1)}, {NSLOT}")
    A(f"v_mul_lo_u32 v46, v46, {s(sT1)}")
    A(f"s_add_u32 {s(sT0)}, {s(sNS)}, 32")
    A(f"v_add_u32 v46, {s(sT0)}, v46")
    A(f"v_lshlrev_b32 v58, 3, v46")
    A(f"v_add_u32 v58, {hex(WS_FC)}, v58")
    A(f"v_and_b32 v49, 7, {v(vN)}")
    A(f"v_lshlrev_b32 v49, 3, v49")
    A(f"v_lshl_add_u32 v57, v46, 6, v49")
    A(f"v_add_u32 v57, {hex(WS_FD)}, v57")
    A(f"v_lshlrev_b32 v41, 4, {v(vL)}")
    A(f"v_add_u32 v41, {L_HR}, v41")
    A(f"v_lshrrev_b32 v42, 2, {v(vN)}")
    A(f"v_lshlrev_b32 v42, 8, v42")
    A(f"v_lshl_add_u32 v42, {v(vS)}, 6, v42")
    A(f"v_add_u32 v42, {L_HR}, v42")
    A(f"s_waitcnt vmcnt({16+NW2})")
    nonce_from(A, 40)
    sel_gemm(A, 8, vMX, vSEL, 24, 28, vMW1, 32, 36, swap=True, wwait=lambda t: A(f"s_waitcnt vmcnt({NW2 + 14 - 2*t})"))
    publish_partial(A, 32, 36, 242, vPUB, vCPUB, 46, cfg.local_st, cfg.dual, cfg.defer)
    stamp(A, cfg, 5, L=True)
    if cfg.hopm_ack: A(f"s_waitcnt vmcnt(0)")
    gather_reduce(A, cfg, "L_hopm", vG1, vCK1, vONE, vGA, vGB, vGC, 32, 36, 46, 242)
    stamp(A, cfg, 6, L=True)
    if cfg.mlp_w2 == 'FH3': wait_flag(A, FCC, 1, 46)
    if cfg.mlp_w2 == 'FPB': wait_flag(A, FPB, 4, 46)
    if cfg.mlp_w2: w2_loads()
    vH, vHa, vHn, vHd = 32, 208, 216, 224
    for e in range(8):
        r = vMB1 + e//2
        if e % 2 == 0: A(f"v_lshlrev_b32 {v(vHa+e)}, 16, {v(r)}")
        else: A(f"v_and_b32 {v(vHa+e)}, 0xffff0000, {v(r)}")
    for e in range(8):
        A(f"v_add_f32 {v(vH+e)}, {v(vH+e)}, {v(vHa+e)}")
    A(f"s_mov_b32 {s(sT0)}, {hex(f2u(-LOG2E))}")
    for e in range(8):
        A(f"v_mul_f32 {v(vHa+e)}, {s(sT0)}, abs({v(vH+e)})")
    for e in range(8):
        A(f"v_exp_f32 {v(vHa+e)}, {v(vHa+e)}")
    for e in range(8):
        a_, h_, n_, d_ = vHa+e, vH+e, vHn+e, vHd+e
        A(f"v_cmp_lt_f32 vcc, 0, {v(h_)}")
        A(f"v_mul_f32 {v(d_)}, {v(a_)}, {v(a_)}")
        A(f"v_cndmask_b32 {v(n_)}, {v(d_)}, 1.0, vcc")
        A(f"v_fma_f32 {v(n_)}, 2.0, {v(a_)}, {v(n_)}")
        A(f"v_cndmask_b32 {v(d_)}, 1.0, {v(d_)}, vcc")
        A(f"v_fma_f32 {v(d_)}, 2.0, {v(d_)}, {v(n_)}")
        A(f"v_rcp_f32 {v(d_)}, {v(d_)}")
        A(f"v_mul_f32 {v(n_)}, {v(n_)}, {v(h_)}")
        A(f"v_mul_f32 {v(h_)}, {v(n_)}, {v(d_)}")
    for k in range(4):
        A(f"v_cvt_pk_bf16_f32 {v(16+k)}, {v(vH+2*k)}, {v(vH+2*k+1)}")
    A(f"ds_write_b128 v41, v[16:19]")
    for k in range(4):
        A(f"ds_read_b128 {v(8+4*k,4)}, v42 offset:{16*k}")
    A(f"v_lshlrev_b32 v45, 2, {v(vS)}")
    A(f"v_add_u32 v45, {L_G}, v45")
    wait_flag(A, FG, 1, 46, lambda: A(f"ds_read_b32 v59, v45"))
    if cfg.mlp_w2: A(f"s_waitcnt vmcnt(0)")
    sel_gemm(A, 16, 8, vSEL, 24, 28, vMW2, 32)
    A(f"v_sub_f32 v59, 1.0, v59")
    for k in range(4):
        A(f"v_mul_f32 {v(32+k)}, {v(32+k)}, v59")
    A(f"v_cvt_pk_bf16_f32 v16, v32, v33")
    A(f"v_cvt_pk_bf16_f32 v17, v34, v35")
    A(f"buffer_store_dwordx2 v[16:17], v57, {s(sWS,4)}, 0 offen sc1")
    A(f"v_add_u32 v46, v16, v17")
    for d in ("quad_perm:[1,0,3,2]", "quad_perm:[2,3,0,1]", "row_half_mirror"):
        A(f"v_add_u32_dpp v46, v46, v46 {d} row_mask:0xf bank_mask:0xf")
    A(f"v_add_u32 v47, {s(sNONCE)}, v46")
    A(f"s_mov_b32 exec_lo, 0x01010101")
    A(f"s_mov_b32 exec_hi, 0x01010101")
    A(f"buffer_store_dwordx2 v[46:47], v58, {s(sWS,4)}, 0 offen sc1")
    A(f"s_mov_b64 exec, -1")
    late_copy(A, cfg, 242, vPUB, vCPUB)
    stamp(A, cfg, 7, L=True)
    A(f"s_branch L_Ldone")
    A.label("L_tail")
    vWUV, vWO = 64, 128
    A(f"s_lshl_b32 {s(sT0)}, {s(sJ)}, 19")
    A(f"s_lshl_b32 {s(sT1)}, {s(sH)}, 8")
    A(f"s_add_u32 {s(sT0)}, {s(sT0)}, {s(sT1)}")
    A(f"v_lshlrev_b32 v41, 17, {v(vS)}")
    A(f"v_lshl_add_u32 v41, {v(vN)}, 4, v41")
    A(f"v_add_u32 v41, {s(sT0)}, v41")
    A(f"s_lshl_b32 {s(sT0)}, {s(sH)}, 17")
    A(f"s_lshl_b32 {s(sT1)}, {s(sJ)}, 7")
    A(f"s_add_u32 {s(sT0)}, {s(sT0)}, {s(sT1)}")
    A(f"v_lshlrev_b32 v42, 15, {v(vS)}")
    A(f"v_lshl_add_u32 v42, {v(vN)}, 3, v42")
    A(f"v_add_u32 v42, {s(sT0)}, v42")
    A(f"buffer_load_dword v61, v43, {s(sWS,4)}, 0 offen sc1")
    vPUB, vCPUB, vGA, vGB, vGC = 52, 53, 54, 55, 56
    partial_offsets(A, vL, vN, vS, WS_C1, WS_C1C, vPUB, vCPUB, vGA, vGB, vGC, 46)
    A(f"v_lshrrev_b32 v46, 3, {v(vN)}")
    A(f"v_lshl_add_u32 v46, {v(vS)}, 4, v46")
    A(f"s_lshl_b32 {s(sT0)}, {s(sJ)}, 1")
    A(f"v_add_u32 v46, {s(sT0)}, v46")
    A(f"s_movk_i32 {s(sT1)}, {NSLOT}")
    A(f"v_mul_lo_u32 v46, v46, {s(sT1)}")
    A(f"v_add_u32 v46, {s(sH)}, v46")
    A(f"v_lshlrev_b32 v60, 3, v46")
    A(f"v_add_u32 v60, {hex(WS_FC)}, v60")
    A(f"v_and_b32 v47, 7, {v(vN)}")
    A(f"v_lshlrev_b32 v47, 3, v47")
    A(f"v_lshl_add_u32 v59, v46, 6, v47")
    A(f"v_add_u32 v59, {hex(WS_FD)}, v59")
    if cfg.tail_early:
        if cfg.tail_delay: wait_flag(A, globals()[cfg.tail_delay], 1, 45)
    elif cfg.tail_flag: wait_flag(A, globals()[cfg.tail_flag], 4, 45)
    A(f"s_mov_b32 {s(sT2)}, 0")
    for k in range(16):
        if cfg.tailwin and k >= cfg.tailwin: A(f"s_waitcnt vmcnt({cfg.tailwin-1})")
        A(f"buffer_load_dwordx4 {v(vWUV+4*k,4)}, v41, {s(sWUV,4)}, {s(sT2)} offen{NT}")
        if k < 15: A(f"s_add_u32 {s(sT2)}, {s(sT2)}, 8192")
    def wo_loads():
        A(f"s_mov_b32 {s(sT2)}, 0")
        for k in range(32):
            if cfg.tailwin2 and k % 2 == 0: A(f"s_waitcnt vmcnt({cfg.tailwin2-2})")
            A(f"buffer_load_dwordx2 {v(vWO+2*k,2)}, v62, {s(sWO,4)}, {s(sT2)} offen offset:{1024*(k%4)}{NT}")
            if k % 4 == 3 and k < 31: A(f"s_add_u32 {s(sT2)}, {s(sT2)}, 4096")
    A(f"v_mov_b32 v62, v42")
    if not cfg.wo_flag: wo_loads()
    vONE, vG1, vCK1 = 192, 208, 240
    A(f"s_waitcnt vmcnt({16 if cfg.wo_flag else 48})")
    nonce_from(A, 61)
    A(f"v_lshlrev_b32 v45, 2, {v(vS)}")
    A(f"v_add_u32 v45, {L_G}, v45")
    wait_flag(A, FG, 1, 46, lambda: A(f"ds_read_b32 v58, v45"))
    make_ones(A, vN, vONE, 46)
    A(f"v_lshrrev_b32 v44, 2, {v(vN)}")
    A(f"v_lshlrev_b32 v42, 7, v44")
    A(f"v_lshl_add_u32 v42, {v(vS)}, 5, v42")
    A(f"v_add_u32 v42, {L_CC}, v42")
    A(f"v_lshlrev_b32 v43, 4, {v(vL)}")
    A(f"v_add_u32 v43, {L_CT}, v43")
    A(f"v_lshlrev_b32 v44, 8, v44")
    A(f"v_lshl_add_u32 v44, {v(vS)}, 6, v44")
    A(f"v_add_u32 v44, {L_CT}, v44")
    A(f"s_waitcnt vmcnt({0 if cfg.wo_flag else 32})")
    for t in range(8):
        A(f"v_swap_b32 {v(vWUV+8*t+2)}, {v(vWUV+8*t+4)}")
        A(f"v_swap_b32 {v(vWUV+8*t+3)}, {v(vWUV+8*t+5)}")
    if cfg.wo_flag == 'FPB':
        wait_flag(A, FPB, 4, 45)
        wo_loads()
    if cfg.wo_flag == 'FH3':
        wait_flag(A, FCC, 1, 45)
        wo_loads()
    if cfg.wo_flag == 'ACK':
        wait_flag(A, FP2, 4, 45)
        wo_loads()
    if not cfg.wo_flag: A(f"s_waitcnt vmcnt(0)")
    stamp(A, cfg, 4, L=True)
    vCP = 8
    def _rd():
        A(f"ds_read_b128 {v(vCP,4)}, v42")
        A(f"ds_read_b128 {v(vCP+4,4)}, v42 offset:16")
    if cfg.prio_tail: A(f"s_setprio 3")
    lab = A.newlabel("L_cc"); done = A.newlabel("L_ccd")
    A(f"s_mov_b32 {s(sCNT2)}, 0")
    A.label(lab)
    _rd()
    A(f"s_waitcnt lgkmcnt(0)")
    A(f"v_max3_u32 v45, {v(vCP)}, {v(vCP+1)}, {v(vCP+2)}")
    A(f"v_max3_u32 v46, {v(vCP+3)}, {v(vCP+4)}, {v(vCP+5)}")
    A(f"v_max3_u32 v45, v45, {v(vCP+6)}, {v(vCP+7)}")
    A(f"v_max_u32 v45, v45, v46")
    A(f"v_cmp_eq_u32 vcc, -1, v45")
    A(f"s_cbranch_vccz {done}")
    if cfg.ccsleep: A(f"s_sleep {cfg.ccsleep}")
    A(f"s_add_u32 {s(sCNT2)}, {s(sCNT2)}, 1")
    A(f"s_cmp_lt_u32 {s(sCNT2)}, 4000000")
    A(f"s_cbranch_scc1 {lab}")
    A.label(done)
    stamp(A, cfg, 5, L=True)
    if cfg.wo_flag == 'FCC': wo_loads()
    sel_gemm(A, 8, vCP, vSEL, 24, 28, vWUV, 32, 36)
    publish_partial(A, 32, 36, 242, vPUB, vCPUB, 46, cfg.local_st, cfg.dual, cfg.defer)
    stamp(A, cfg, 6, L=True)
    if cfg.hop4_ack: A(f"s_waitcnt vmcnt(0)")
    gather_reduce(A, cfg, "L_hop4", vG1, vCK1, vONE, vGA, vGB, vGC, 32, 36, 46, 242)
    savecnt(A, cfg, 0)
    stamp(A, cfg, 7, L=True)
    A(f"v_cvt_pk_bf16_f32 v16, v32, v33")
    A(f"v_cvt_pk_bf16_f32 v17, v34, v35")
    A(f"v_cvt_pk_bf16_f32 v18, v36, v37")
    A(f"v_cvt_pk_bf16_f32 v19, v38, v39")
    A(f"ds_write_b128 v43, v[16:19]")
    vXP2 = 8
    for k in range(4):
        A(f"ds_read_b128 {v(vXP2+4*k,4)}, v44 offset:{16*k}")
    def _x(t):
        if t % 4 == 0: A(f"s_waitcnt lgkmcnt({3-t//4})")
    sel_gemm(A, 16, vXP2, vSEL, 24, 28, vWO, 32, xwait=_x)
    for k in range(4):
        A(f"v_mul_f32 {v(32+k)}, {v(32+k)}, v58")
    A(f"v_cvt_pk_bf16_f32 v16, v32, v33")
    A(f"v_cvt_pk_bf16_f32 v17, v34, v35")
    if cfg.pw_fd: wait_flag(A, FP2, 1, 45)
    A(f"buffer_store_dwordx2 v[16:17], v59, {s(sWS,4)}, 0 offen sc1")
    A(f"v_add_u32 v46, v16, v17")
    for d in ("quad_perm:[1,0,3,2]", "quad_perm:[2,3,0,1]", "row_half_mirror"):
        A(f"v_add_u32_dpp v46, v46, v46 {d} row_mask:0xf bank_mask:0xf")
    A(f"v_add_u32 v47, {s(sNONCE)}, v46")
    A(f"s_mov_b32 exec_lo, 0x01010101")
    A(f"s_mov_b32 exec_hi, 0x01010101")
    A(f"buffer_store_dwordx2 v[46:47], v60, {s(sWS,4)}, 0 offen sc1")
    A(f"s_mov_b64 exec, -1")
    if cfg.hop5_gate == 2:
        A(f"s_waitcnt vmcnt(0)")
        arrive(A, FT, 45)
    late_copy(A, cfg, 242, vPUB, vCPUB)
    if False:
        if cfg.hop5_gate == 2: A(f"s_waitcnt vmcnt(0)")
        arrive(A, FT, 45)
    A.label("L_Ldone")
    if cfg.ts:
        stamp(A, cfg, 1, L=True)
        emit_ts(A, cfg, L=True)
    A.label("L_exit")
    A(f"s_endpgm")
    A.label("L_end")
    lines = hazard.fix(A.l, verbose=True)
    return "\n".join(lines) + "\n"

def emit_ts(A, cfg, L=False):
    A(f"s_waitcnt lgkmcnt(0) vmcnt(0)")
    A(f"s_mov_b64 exec, 0x3ff")
    A(f"v_mbcnt_lo_u32_b32 v0, -1, 0")
    A(f"v_mov_b32 v1, 0")
    for k in range(10):
        A(f"v_mov_b32 v2, {s(sTS+2*k)}")
        A(f"v_cmp_eq_u32 vcc, {k}, v0")
        A(f"v_cndmask_b32 v1, v1, v2, vcc")
    if cfg.cnts:
        A(f"s_mov_b64 exec, 0xffff")
        for k in range(6):
            A(f"v_mov_b32 v2, {s(CNTREG[k])}")
            A(f"v_cmp_eq_u32 vcc, {10+k}, v0")
            A(f"v_cndmask_b32 v1, v1, v2, vcc")
    A(f"s_lshl_b32 {s(sT0)}, s2, 3")
    A(f"s_add_u32 {s(sT0)}, {s(sT0)}, {s(sW)}")
    if L: A(f"s_add_u32 {s(sT0)}, {s(sT0)}, 4")
    A(f"s_lshl_b32 {s(sT0)}, {s(sT0)}, 6")
    A(f"s_add_u32 {s(sT0)}, {s(sT0)}, {hex(WS_DBG)}")
    A(f"v_lshl_add_u32 v2, v0, 2, {s(sT0)}")
    A(f"buffer_store_dword v1, v2, {s(sWS,4)}, 0 offen")

DESC = """;
;   waves 0-3 (M): wave 0 q/q_abs projection; all: QK^T, softmax, PV, partial publish, split combine; wave 0 of w<64: final sum
"""

def build(cfg, path):
    body = gen(cfg)
    txt = wrap([(KNAME, body, 256, 102, 256)], [(KNAME, (256,1,1), (512,1,1), LDS_SIZE)], DESC)
    open(path, "w").write(txt)
    return path

if __name__ == "__main__":
    import build as B
    cfg = Cfg()
    for a_ in sys.argv[2:]:
        k, val = a_.split("=")
        setattr(cfg, k, eval(val))
    p = build(cfg, sys.argv[1])
    B.build(p, p.replace(".s", ".co"))
    import subprocess
    print(subprocess.run(f"llvm-objdump -d --mcpu=gfx950 {p.replace('.s','.co')} | grep -c '//' ; llvm-readelf -S {p.replace('.s','.co')} | grep -E 'text'", shell=True, capture_output=True, text=True).stdout)
```
